```python
import torch

def _softmax(x, axis=-1):
    return torch.softmax(x, dim=axis)
def _gelu(x):
    return torch.nn.functional.gelu(x, approximate="tanh")
def _silu(x):
    return torch.nn.functional.silu(x)
def _sigmoid(x):
    return torch.sigmoid(x)
def _layernorm(x, axis=-1, eps=1e-5):
    m = x.mean(dim=axis, keepdim=True)
    v = x.var(dim=axis, keepdim=True, unbiased=False)
    return (x - m) / torch.sqrt(v + eps)
def _scatter_add(tgt, idx, src, axis=0):
    return tgt.clone().index_add_(axis, idx, src)
def _segment_sum(src, seg, n):
    out = torch.zeros((n,) + src.shape[1:], dtype=src.dtype)
    return out.index_add_(0, seg, src)
def _pad(x, pw):
    flat = tuple(v for pair in reversed(pw) for v in pair)
    return torch.nn.functional.pad(x, flat)

kernel_name = 'concat_heads__gqa_block_cached__gqa_block_cached__near_ridge'

def setup_inputs():

    _w = (lambda a: (lambda t: t.to(torch.bfloat16) if t.is_floating_point() else t)(torch.as_tensor(a)))
    def _A_setup():
        B, Sq, D = 16, 48, 448
        Hq, Hkv, Sk, Dh = 16, 8, 512, 256
        assert Hq % Hkv == 0, (Hq, Hkv)
        return {
            "x": _w((lambda *s: torch.randn(*s, dtype=torch.bfloat16) * 0.8)(B, Sq, D)),
            "k_cache": _w((lambda *s: torch.randn(*s, dtype=torch.bfloat16) * 0.8)(B, Hkv, Sk, Dh)),
            "v_cache": _w((lambda *s: torch.randn(*s, dtype=torch.bfloat16) * 0.05)(B, Hkv, Sk, Dh)),
            "wq": _w((lambda *s: torch.randn(*s, dtype=torch.bfloat16) * 0.8)(D, Hq * Dh) * (D ** -0.5)),
            "wo": _w((lambda *s: torch.randn(*s, dtype=torch.bfloat16) * 0.05)(Hq * Dh, D) * ((Hq * Dh) ** -0.5)),
        }
    _A_in = _A_setup()

    def _B_setup():
        B, Sq, D = 16, 48, 448
        Hq, Hkv, Sk, Dh = 16, 8, 512, 256
        assert Hq % Hkv == 0, (Hq, Hkv)
        return {
            "x": _w((lambda *s: torch.randn(*s, dtype=torch.bfloat16) * 0.8)(B, Sq, D)),
            "k_cache": _w((lambda *s: torch.randn(*s, dtype=torch.bfloat16) * 0.8)(B, Hkv, Sk, Dh)),
            "v_cache": _w((lambda *s: torch.randn(*s, dtype=torch.bfloat16) * 0.05)(B, Hkv, Sk, Dh)),
            "wq": _w((lambda *s: torch.randn(*s, dtype=torch.bfloat16) * 0.8)(D, Hq * Dh) * (D ** -0.5)),
            "wo": _w((lambda *s: torch.randn(*s, dtype=torch.bfloat16) * 0.05)(Hq * Dh, D) * ((Hq * Dh) ** -0.5)),
        }
    _B_in = _B_setup()

    return {
        "A_x": _A_in["x"],
        "A_k_cache": _A_in["k_cache"],
        "A_v_cache": _A_in["v_cache"],
        "A_wq": _A_in["wq"],
        "A_wo": _A_in["wo"],
        "B_x": _B_in["x"],
        "B_k_cache": _B_in["k_cache"],
        "B_v_cache": _B_in["v_cache"],
        "B_wq": _B_in["wq"],
        "B_wo": _B_in["wo"],
    }

def reference(A_x, A_k_cache, A_v_cache, A_wq, A_wo, B_x, B_k_cache, B_v_cache, B_wq, B_wo):
    def _A_ref(x, k_cache, v_cache, wq, wo):
        B, Sq, D = x.shape
        Hq, Dh = 16, 256
        Hkv = k_cache.shape[1]
        rep = Hq // Hkv
        q = (lambda x, *d: x.permute(*d))((x @ wq).reshape(B, Sq, Hq, Dh), 0, 2, 1, 3)
        k = (lambda x, n, axis: torch.repeat_interleave(x, n, dim=axis))(k_cache, rep, axis=1)
        v = (lambda x, n, axis: torch.repeat_interleave(x, n, dim=axis))(v_cache, rep, axis=1)
        scores = torch.einsum("bhqd,bhkd->bhqk", q, k) * (Dh ** -0.5)
        p = _softmax(scores, axis=-1)
        o = torch.einsum("bhqk,bhkd->bhqd", p, v)
        return (lambda x, *d: x.permute(*d))(o, 0, 2, 1, 3).reshape(B, Sq, Hq * Dh) @ wo

    def _B_ref(x, k_cache, v_cache, wq, wo):
        B, Sq, D = x.shape
        Hq, Dh = 16, 256
        Hkv = k_cache.shape[1]
        rep = Hq // Hkv
        q = (lambda x, *d: x.permute(*d))((x @ wq).reshape(B, Sq, Hq, Dh), 0, 2, 1, 3)
        k = (lambda x, n, axis: torch.repeat_interleave(x, n, dim=axis))(k_cache, rep, axis=1)
        v = (lambda x, n, axis: torch.repeat_interleave(x, n, dim=axis))(v_cache, rep, axis=1)
        scores = torch.einsum("bhqd,bhkd->bhqk", q, k) * (Dh ** -0.5)
        p = _softmax(scores, axis=-1)
        o = torch.einsum("bhqk,bhkd->bhqd", p, v)
        return (lambda x, *d: x.permute(*d))(o, 0, 2, 1, 3).reshape(B, Sq, Hq * Dh) @ wo

    a = _A_ref(A_x, A_k_cache, A_v_cache, A_wq, A_wo)
    b = _B_ref(B_x, B_k_cache, B_v_cache, B_wq, B_wo)
    return torch.concatenate([a, b], axis=-1)
```

```python
import re

REG_RE = re.compile(r'^(-|\|)?([vsa])(\d+)\|?$')
RNG_RE = re.compile(r'^(-|\|)?([vsa])\[(\d+):(\d+)\]\|?$')

def regs_of(tok):
    t = tok.strip()
    t = re.sub(r'^(neg|abs)\((.*)\)$', r'\2', t)
    m = REG_RE.match(t)
    if m: return {(m.group(2), int(m.group(3)))}
    m = RNG_RE.match(t)
    if m: return {(m.group(2), i) for i in range(int(m.group(3)), int(m.group(4))+1)}
    if t == 'vcc': return {('s', 106), ('s', 107)}
    if t == 'vcc_lo': return {('s', 106)}
    if t == 'vcc_hi': return {('s', 107)}
    if t == 'm0': return {('s', 124)}
    if t == 'exec': return {('s', 126), ('s', 127)}
    if t == 'exec_lo': return {('s', 126)}
    if t == 'exec_hi': return {('s', 127)}
    return set()

TRANS = ('v_exp_f32', 'v_log_f32', 'v_rcp_f32', 'v_rsq_f32', 'v_sqrt_f32', 'v_sin_f32', 'v_cos_f32', 'v_rcp_iflag_f32')

class Ins:
    __slots__ = ('text', 'op', 'defs', 'uses', 'kind', 'srcC', 'srcAB', 'states', 'is_label')
    def __init__(self, text):
        self.text = text
        self.is_label = False
        s = text.split(';')[0].strip()
        self.defs = set(); self.uses = set(); self.srcC = set(); self.srcAB = set()
        self.kind = 'other'; self.states = 1
        if s == '' or s.startswith('.'):
            self.op = ''; self.kind = 'none'; self.states = 0; return
        if s.endswith(':'):
            self.op = ''; self.kind = 'label'; self.is_label = True; self.states = 0; return
        parts = s.split(None, 1)
        self.op = op = parts[0]
        rest = parts[1] if len(parts) > 1 else ''
        toks = [t.strip() for t in rest.split(',')] if rest else []
        ops = []
        for i, t in enumerate(toks):
            if i == len(toks)-1 or True:
                ws = t.split()
                ops.append(ws[0] if ws else '')
        mods = ' '.join(toks[-1].split()[1:]) if toks else ''
        R = [regs_of(t) for t in ops]
        U = lambda lst: set().union(*lst) if lst else set()
        if op == 's_nop':
            self.kind = 'nop'; self.states = int(ops[0], 0) + 1
        elif op.startswith('v_mfma'):
            self.kind = 'mfma'; self.defs = R[0]; self.srcAB = R[1] | R[2]; self.srcC = R[3]
            self.uses = self.srcAB | self.srcC
        elif op.startswith('v_cmp'):
            self.kind = 'valu'; self.defs = R[0]; self.uses = U(R[1:])
        elif op.startswith('v_readfirstlane') or op.startswith('v_readlane'):
            self.kind = 'valu_rl'; self.defs = R[0]; self.uses = U(R[1:])
        elif op.startswith('v_permlane') and 'swap' in op:
            self.kind = 'valu_perm'; self.defs = R[0] | R[1]; self.uses = R[0] | R[1]
        elif op.startswith('v_'):
            self.kind = 'trans' if op.replace('_e32','').replace('_e64','') in TRANS else 'valu'
            self.defs = set(R[0]); self.uses = U(R[1:])
            if op.startswith('v_fmac') or op.startswith('v_writelane') or op.startswith('v_pk_fmac'):
                self.uses |= R[0]
            if op.startswith('v_cndmask') and len(ops) == 3:
                self.uses |= regs_of('vcc')
            if op.startswith(('v_add_co', 'v_sub_co', 'v_addc_co', 'v_subb_co')):
                self.defs |= R[1]; self.uses = U(R[2:])
            if 'dpp' in op or 'row_' in mods or 'quad_perm' in mods:
                self.kind = 'valu_dpp'
        elif op.startswith('ds_read') or op.startswith('ds_bpermute') or op.startswith('ds_swizzle'):
            self.kind = 'ds'; self.defs = R[0]; self.uses = U(R[1:])
        elif op.startswith('ds_'):
            self.kind = 'ds'; self.uses = U(R)
        elif op.startswith('buffer_load'):
            if 'lds' in mods.split():
                self.kind = 'vmem_lds'; self.uses = U(R) | regs_of('m0')
            else:
                self.kind = 'vmem'; self.defs = R[0]; self.uses = U(R[1:])
        elif op.startswith('buffer_store'):
            self.kind = 'vstore'; self.uses = U(R)
            self.srcAB = R[0]
        elif op.startswith('buffer_atomic'):
            self.kind = 'vmem'; self.uses = U(R)
            if 'sc0' in mods.split(): self.defs = R[0]
        elif op.startswith('global_load_lds'):
            self.kind = 'vmem_lds'; self.uses = U(R) | regs_of('m0')
        elif op.startswith('global_load'):
            self.kind = 'vmem'; self.defs = R[0]; self.uses = U(R[1:])
        elif op.startswith('global_store'):
            self.kind = 'vstore'; self.uses = U(R); self.srcAB = R[1]
        elif op.startswith('global_atomic'):
            self.kind = 'vmem'
            if 'sc0' in mods.split(): self.defs = R[0]; self.uses = U(R[1:])
            else: self.uses = U(R)
        elif op.startswith('buffer_'):
            self.kind = 'vmem'
        elif op.startswith('s_cmp') or op.startswith('s_bitcmp'):
            self.kind = 'salu'; self.uses = U(R)
        elif op.startswith(('s_waitcnt', 's_barrier', 's_sleep', 's_setprio', 's_endpgm', 's_branch', 's_cbranch')):
            self.kind = 'ctl'
        elif op.startswith('s_load') or op.startswith('s_memtime') or op.startswith('s_memrealtime') or op.startswith('s_buffer_load'):
            self.kind = 'smem'; self.defs = R[0]; self.uses = U(R[1:])
        elif op.startswith('s_'):
            self.kind = 'salu'; self.defs = R[0]; self.uses = U(R[1:])
            if 'saveexec' in op: self.defs |= regs_of('exec'); self.uses |= regs_of('exec')
        else:
            raise ValueError("unknown op: " + text)

VALU = ('valu', 'trans', 'valu_rl', 'valu_perm', 'valu_dpp')

def need_states(prev, cur):
    n = 0
    pv = {r for r in prev.defs if r[0] == 'v'}
    ps = {r for r in prev.defs if r[0] == 's'}
    if prev.kind in VALU:
        if cur.kind == 'mfma' and pv & cur.uses: n = max(n, 2)
        if cur.kind in ('valu_perm', 'valu_dpp') and pv & cur.uses: n = max(n, 2)
        if cur.kind == 'valu_rl' and pv & cur.uses: n = max(n, 1)
        if prev.kind == 'trans' and cur.kind in VALU + ('mfma',) and pv & cur.uses: n = max(n, 1)
        if prev.kind == 'trans' and cur.kind in ('ds', 'vstore', 'vmem') and pv & cur.uses: n = max(n, 1)
        if ps:
            if cur.kind in ('vmem', 'vmem_lds', 'vstore') and ps & cur.uses: n = max(n, 5)
            if cur.kind in VALU and ps & cur.uses:
                n = max(n, 4 if cur.kind == 'valu_rl' or cur.op.startswith('v_writelane') else 2)
            if cur.kind in ('salu',) and ps & cur.uses: n = max(n, 2)
            if cur.op.startswith('s_cbranch_vcc') and ps & regs_of('vcc'): n = max(n, 2)
    if prev.kind == 'mfma':
        D = prev.defs
        if cur.kind == 'mfma':
            if D & cur.srcAB: n = max(n, 8)
            if D & cur.srcC and cur.srcC != D: n = max(n, 6)
            if D & cur.defs and cur.srcC != D: n = max(n, 6)
        elif cur.kind in VALU:
            if D & (cur.uses | cur.defs): n = max(n, 8)
            if prev.srcC & cur.defs: n = max(n, 3)
        elif cur.kind in ('ds', 'vmem', 'vstore', 'vmem_lds'):
            if D & (cur.uses | cur.defs): n = max(n, 8)
    if prev.kind == 'salu' and ('s', 124) in prev.defs and cur.kind == 'vmem_lds': n = max(n, 1)
    if prev.kind == 'vstore' and len(prev.srcAB) >= 3:
        if cur.kind in VALU and prev.srcAB & cur.defs: n = max(n, 2)
        elif prev.srcAB & cur.defs: n = max(n, 1)
    if prev.kind == 'salu' and (regs_of('exec') & prev.defs) and cur.kind in ('valu_dpp', 'valu_perm', 'mfma'):
        n = max(n, 1)
    return n

class Asm:
    def __init__(self):
        self.ins = []
    def __call__(self, text):
        for line in text.split('\n'):
            self.ins.append(Ins(line))
    def label(self, name): self.ins.append(Ins(name + ':'))
    def comment(self, c): self.ins.append(Ins('; ' + c))
    def finalize(self, window=12):
        out = []
        nops = 0
        for cur in self.ins:
            if cur.kind in ('none', 'label'):
                out.append(cur); continue
            dist = 0; need = 0
            for prev in reversed(out):
                if prev.kind in ('none', 'label'): continue
                req = need_states(prev, cur)
                if req > dist: need = max(need, req - dist)
                dist += prev.states
                if dist >= window: break
            while need > 0:
                k = min(need, 8)
                out.append(Ins(f's_nop {k-1}')); need -= k; nops += 1
            out.append(cur)
        self.ins = out
        self.nops_inserted = nops
    def text(self):
        return '\n'.join(('' if (i.is_label or i.kind == 'none') else '  ') + i.text for i in self.ins) + '\n'
```

```python
import sys, math
from asmlib import Asm

NAME = "concat_heads__gqa_block_cached__gqa_block_cached__near_ridge"

class Cfg:
    kv_flags = "nt"
    w_flags = ""
    pf = True
    pf_flags = "nt"
    dump = None
    stamps = False
cfg = Cfg()

KVA, KVB = 0, 32768
WB = 65536
QO = 122880
XB = 135168
STAT = 159744
LDS_BYTES = 163840
sWG, sWAVE, sIDX, sG, sB, sBR = 2, 3, 4, 5, 6, 7
SRD_K, SRD_V, SRD_WQ, SRD_WO, SRD_X, SRD_OUT, SRD_WS = 8, 12, 16, 20, 24, 28, 32
sDBG = 58
sM0K, sM0W, sC, sXo, sT0, sT1, sT2, sT3 = 62, 63, 64, 65, 66, 67, 68, 69
sEX = 70
def srd(b): return f"s[{b}:{b+3}]"
def vr(b, n=4): return f"v[{b}:{b+n-1}]"

class Role:
    def __init__(self, a): self.a = a; self.vm = []
    def vmem(self, text, tag):
        self.a(text); self.vm.append(tag)
    def wait_vm(self, tag):
        idx = [i for i, t in enumerate(self.vm) if t == tag]
        if not idx: return
        n = len(self.vm) - 1 - idx[-1]
        assert n <= 63
        self.a(f"s_waitcnt vmcnt({n})")
        self.vm = self.vm[idx[-1]+1:]
    def wait_vm_all(self):
        self.a("s_waitcnt vmcnt(0)"); self.vm = []

def emit_prologue(a):
    a("s_cmp_ge_u32 s2, 256")
    a("s_cbranch_scc1 L_end")
    a("s_load_dwordx16 s[36:51], s[0:1], 0")
    a("s_load_dwordx4 s[52:55], s[0:1], 64")
    a("s_load_dwordx4 s[56:59], s[0:1], 80")
    a("s_load_dwordx2 s[60:61], s[0:1], 96")
    a("v_and_b32 v44, 63, v0")
    a("v_lshrrev_b32 v45, 6, v0")
    a("v_and_b32 v46, 15, v44")
    a("v_lshrrev_b32 v47, 4, v44")
    a(f"v_readfirstlane_b32 s{sWAVE}, v45")
    a(f"s_and_b32 s{sG}, s2, 7")
    a(f"s_lshr_b32 s{sB}, s2, 3")
    a(f"s_and_b32 s{sB}, s{sB}, 15")
    a(f"s_lshr_b32 s{sBR}, s2, 7")
    a(f"s_and_b32 s{sIDX}, s{sWAVE}, 3")
    a("s_waitcnt lgkmcnt(0)")
    a(f"s_cmp_eq_u32 s{sBR}, 0")
    a("s_cselect_b64 s[36:37], s[36:37], s[46:47]")
    a("s_cselect_b64 s[38:39], s[38:39], s[48:49]")
    a("s_cselect_b64 s[40:41], s[40:41], s[50:51]")
    a("s_cselect_b64 s[42:43], s[42:43], s[52:53]")
    a("s_cselect_b64 s[44:45], s[44:45], s[54:55]")
    def mk(srdb, ptr, off_s, size):
        if off_s is None:
            a(f"s_mov_b32 s{srdb}, s{ptr}"); a(f"s_and_b32 s{srdb+1}, s{ptr+1}, 0xffff")
        else:
            a(f"s_add_u32 s{srdb}, s{ptr}, s{off_s}")
            a(f"s_addc_u32 s{srdb+1}, s{ptr+1}, 0")
            a(f"s_and_b32 s{srdb+1}, s{srdb+1}, 0xffff")
        if isinstance(size, int): a(f"s_mov_b32 s{srdb+2}, {size}")
        else: a(size)
        a(f"s_mov_b32 s{srdb+3}, 0x20000")
    a(f"s_lshl_b32 s{sT0}, s{sB}, 3"); a(f"s_add_u32 s{sT0}, s{sT0}, s{sG}"); a(f"s_lshl_b32 s{sT0}, s{sT0}, 18")
    mk(SRD_K, 38, sT0, 262144)
    mk(SRD_V, 40, sT0, 262144)
    a(f"s_lshl_b32 s{sT1}, s{sG}, 10")
    mk(SRD_WQ, 42, sT1, f"s_sub_u32 s{SRD_WQ+2}, {448*8192}, s{sT1}")
    a(f"s_mul_i32 s{sT1}, s{sG}, 458752")
    mk(SRD_WO, 44, sT1, 458752)
    a(f"s_mul_i32 s{sT1}, s{sB}, 43008")
    mk(SRD_X, 36, sT1, 43008)
    mk(SRD_OUT, 56, None, 16*48*896*2)
    mk(SRD_WS, 60, None, 256*86016)
    a(f"s_mov_b32 s{sC}, 0x{f32bits(math.log2(math.e)/16.0):08x}")
    a(f"s_cmp_ge_u32 s{sWAVE}, 4")
    a("s_cbranch_scc1 L_P")

def f32bits(x):
    import struct
    return struct.unpack('<I', struct.pack('<f', x))[0]

def S_(t, nt): return 64 + (t*3 + nt)*4
def Qf(s, nt): return (s*3 + nt)*4
KF = 24
vL, vQ, vGq = 44, 46, 47

def a_setup(R):
    a = R.a
    a(f"s_lshr_b32 s{sT0}, s{sIDX}, 1")
    a(f"s_and_b32 s{sT1}, s{sIDX}, 1")
    a(f"v_lshrrev_b32 v48, 1, v{vQ}")
    a(f"v_xor_b32 v49, v{vGq}, v48")
    a(f"v_xor_b32 v50, 4, v49")
    a(f"s_lshl_b32 s{sT2}, s{sT1}, 14")
    a(f"v_lshlrev_b32 v51, 7, v{vQ}")
    a(f"v_add_u32 v51, s{sT2}, v51")
    a(f"v_lshl_add_u32 v40, v49, 4, v51")
    a(f"v_lshl_add_u32 v41, v50, 4, v51")
    a(f"s_mul_i32 s{sT2}, s{sT0}, {48*128}")
    a(f"s_add_u32 s{sT2}, s{sT2}, {QO}")
    a(f"v_lshlrev_b32 v51, 7, v{vQ}")
    a(f"v_add_u32 v51, s{sT2}, v51")
    a(f"v_lshl_add_u32 v42, v49, 4, v51")
    a(f"v_lshl_add_u32 v43, v50, 4, v51")
    if cfg.pf:
        a(f"v_lshrrev_b32 v52, 3, v{vL}"); a("v_lshlrev_b32 v52, 13, v52")
        a(f"v_and_b32 v53, 7, v{vL}"); a("v_lshl_add_u32 v52, v53, 7, v52")
        a(f"s_mul_i32 s{sT2}, s{sB}, 28"); a(f"s_lshl_b32 s{sT3}, s{sIDX}, 3"); a(f"s_add_u32 s{sT2}, s{sT2}, s{sT3}")
        a(f"s_lshl_b32 s{sT2}, s{sT2}, 13")
        R.vmem(f"buffer_load_dword v63, v52, {srd(SRD_WQ)}, s{sT2} offen {cfg.pf_flags}", "pf")

def a_pf_wo(R):
    a = R.a
    if not cfg.pf: return
    a(f"v_lshlrev_b32 v52, 7, v{vL}")
    a(f"s_mul_i32 s{sT2}, s{sB}, 28672"); a(f"s_lshl_b32 s{sT3}, s{sIDX}, 13"); a(f"s_add_u32 s{sT2}, s{sT2}, s{sT3}")
    R.vmem(f"buffer_load_dword v62, v52, {srd(SRD_WO)}, s{sT2} offen {cfg.pf_flags}", "pf")

def a_S(R, n):
    a = R.a
    j, w = n >> 1, n & 1
    buf = KVA if w == 0 else KVB
    if w == 0:
        for s in range(2):
            for nt in range(3):
                a(f"ds_read_b128 {vr(Qf(s,nt))}, v{42+s} offset:{2048*nt}")
    frs = [(i, s) for i in range(8) for s in range(2)]
    NB = 4
    def rd(k):
        i, s = frs[k]
        a(f"ds_read_b128 {vr(KF + 4*(k % NB))}, v{40+s} offset:{buf + 2048*i}")
    for k in range(NB-1): rd(k)
    for k, (i, s) in enumerate(frs):
        if k + NB - 1 < len(frs): rd(k + NB - 1)
        outstanding_after = min(NB-1, len(frs) - 1 - k)
        a(f"s_waitcnt lgkmcnt({outstanding_after})")
        for nt in range(3):
            d = S_(8*w + i, nt)
            c = "0" if (j == 0 and s == 0) else vr(d)
            a(f"v_mfma_f32_16x16x32_bf16 {vr(d)}, {vr(KF + 4*(k % NB))}, {vr(Qf(s,nt))}, {c}")

vAL, vMX, vLS = 0, 3, 6
ONES = 12
def Pf(w, s, nt): return S_(8*w + 2*s, nt)
def Oa(mt, nt): return S_(2*mt + 1, nt)
def XT(i, nt): return S_(9 + 2*i, nt)
def LA(nt): return S_(13, nt)

def a_softmax(R):
    a = R.a
    for nt in range(3):
        m = vMX + nt
        vals = [S_(t, nt) + r for t in range(16) for r in range(4)]
        a(f"v_max3_f32 v{m}, v{vals[0]}, v{vals[1]}, v{vals[2]}")
        k = 3
        while k + 1 < len(vals):
            a(f"v_max3_f32 v{m}, v{m}, v{vals[k]}, v{vals[k+1]}"); k += 2
        a(f"v_max_f32 v{m}, v{m}, v{vals[63]}")
    for nt in range(3):
        m = vMX + nt
        a(f"v_mov_b32 v9, v{m}")
        a(f"v_permlane32_swap_b32 v9, v{m}")
        a(f"v_max_f32 v{m}, v9, v{m}")
        a(f"v_mov_b32 v9, v{m}")
        a(f"v_permlane16_swap_b32 v9, v{m}")
        a(f"v_max_f32 v{m}, v9, v{m}")
        a(f"v_mul_f32 v{m}, s{sC}, v{m}")
    for r in range(4): a(f"v_mov_b32 v{ONES+r}, 0x3f803f80")
    for t0 in range(0, 16, 2):
        for nt in range(3):
            m = vMX + nt
            src = [S_(t0, nt) + r for r in range(4)] + [S_(t0+1, nt) + r for r in range(4)]
            for v in src: a(f"v_fma_f32 v{v}, v{v}, s{sC}, -v{m}")
            for v in src: a(f"v_exp_f32 v{v}, v{v}")
            d = S_(t0, nt)
            a(f"v_cvt_pk_bf16_f32 v{d}, v{src[0]}, v{src[1]}")
            a(f"v_cvt_pk_bf16_f32 v{d+1}, v{src[2]}, v{src[3]}")
            a(f"v_cvt_pk_bf16_f32 v{d+2}, v{src[4]}, v{src[5]}")
            a(f"v_cvt_pk_bf16_f32 v{d+3}, v{src[6]}, v{src[7]}")
    for nt in range(3):
        first = True
        for w in range(2):
            for s in range(4):
                c = "0" if first else vr(LA(nt)); first = False
                a(f"v_mfma_f32_16x16x32_bf16 {vr(LA(nt))}, {vr(ONES)}, {vr(Pf(w,s,nt))}, {c}")
    for nt in range(3):
        a(f"v_mov_b32 v{vLS+nt}, v{LA(nt)}")
    a(f"s_mul_i32 s{sT0}, s{sIDX}, 384"); a(f"s_add_u32 s{sT0}, s{sT0}, {STAT}")
    a(f"v_lshlrev_b32 v49, 3, v{vQ}"); a(f"v_add_u32 v49, s{sT0}, v49")
    a(f"s_xor_b32 s{sT1}, s{sIDX}, 1"); a(f"s_mul_i32 s{sT1}, s{sT1}, 384"); a(f"s_add_u32 s{sT1}, s{sT1}, {STAT}")
    a(f"v_lshlrev_b32 v50, 3, v{vQ}"); a(f"v_add_u32 v50, s{sT1}, v50")
    for nt in range(3):
        a(f"v_mov_b32 v10, v{vMX+nt}"); a(f"v_mov_b32 v11, v{vLS+nt}")
        a(f"ds_write_b64 v49, v[10:11] offset:{128*nt}")
        a("s_nop 0")
    a(f"s_and_b32 s{sT1}, s{sIDX}, 1")
    a(f"v_lshrrev_b32 v51, 2, v{vL}")
    a(f"v_lshrrev_b32 v52, 1, v51"); a("v_and_b32 v52, 3, v52")
    a(f"s_lshl_b32 s{sT2}, s{sT1}, 14")
    a(f"v_lshlrev_b32 v53, 7, v51"); a(f"v_add_u32 v53, s{sT2}, v53")
    a(f"v_and_b32 v54, 3, v{vL}"); a(f"v_lshl_add_u32 v53, v54, 3, v53")
    a(f"s_lshl_b32 s{sT2}, s{sT1}, 1")
    a(f"v_xor_b32 v52, s{sT2}, v52")
    for mt in range(4):
        a(f"v_xor_b32 v54, {mt}, v52")
        a(f"v_lshl_add_u32 v{40+mt}, v54, 5, v53")
    a(f"s_mul_i32 s{sT2}, s{sIDX}, 6144"); a(f"s_add_u32 s{sT2}, s{sT2}, {XB}")
    a(f"v_lshlrev_b32 v55, 4, v{vL}"); a(f"v_add_u32 v56, s{sT2}, v55")
    a(f"s_xor_b32 s{sT2}, s{sIDX}, 1"); a(f"s_mul_i32 s{sT2}, s{sT2}, 6144"); a(f"s_add_u32 s{sT2}, s{sT2}, {XB}")
    a(f"v_add_u32 v57, s{sT2}, v55")
    a(f"s_lshr_b32 s{sT0}, s{sIDX}, 1"); a(f"s_mul_i32 s{sT2}, s{sT0}, {48*128}"); a(f"s_add_u32 s{sT2}, s{sT2}, {QO}")
    a(f"v_lshlrev_b32 v58, 7, v{vQ}"); a(f"v_add_u32 v58, s{sT2}, v58")
    a(f"s_lshl_b32 s{sT3}, s{sT1}, 2")
    a(f"v_or_b32 v54, s{sT3}, v{vGq}")
    a(f"v_lshrrev_b32 v55, 1, v{vQ}"); a("v_xor_b32 v54, v54, v55")
    a("v_lshl_add_u32 v58, v54, 4, v58")
    a("s_waitcnt lgkmcnt(0)")

def a_alpha(R):
    a = R.a
    for nt in range(3):
        a(f"ds_read_b64 v[{16+2*nt}:{17+2*nt}], v50 offset:{128*nt}")
    a("s_waitcnt lgkmcnt(0)")
    for nt in range(3):
        mo, lo = 16 + 2*nt, 17 + 2*nt
        m, l = vMX + nt, vLS + nt
        a(f"v_max_f32 v9, v{m}, v{mo}")
        a(f"v_sub_f32 v10, v{m}, v9"); a(f"v_sub_f32 v11, v{mo}, v9")
        a("v_exp_f32 v10, v10"); a("v_exp_f32 v11, v11")
        a(f"v_mul_f32 v9, v{l}, v10")
        a(f"v_fma_f32 v9, v{lo}, v11, v9")
        a("v_rcp_f32 v9, v9")
        a(f"v_mul_f32 v{vAL+nt}, v10, v9")

def a_PV(R, n):
    a = R.a
    j, w = n >> 1, n & 1
    buf = KVA if w == 0 else KVB
    frs = [(s, mt) for s in range(4) for mt in range(4)]
    NB = 4
    def rd(k):
        s, mt = frs[k]
        b = KF + 4*(k % NB)
        a(f"ds_read_b64_tr_b16 {vr(b,2)}, v{40+mt} offset:{buf + 4096*s}")
        a(f"ds_read_b64_tr_b16 {vr(b+2,2)}, v{40+mt} offset:{buf + 4096*s + 2048}")
    for k in range(NB-1): rd(k)
    for k, (s, mt) in enumerate(frs):
        if k + NB - 1 < len(frs): rd(k + NB - 1)
        a(f"s_waitcnt lgkmcnt({2*min(NB-1, len(frs)-1-k)})")
        for nt in range(3):
            d = Oa(mt, nt)
            c = "0" if (w == 0 and s == 0) else vr(d)
            a(f"v_mfma_f32_16x16x32_bf16 {vr(d)}, {vr(KF + 4*(k % NB))}, {vr(Pf(w,s,nt))}, {c}")

def a_xwrite(R):
    a = R.a
    for mt in (2, 3, 0, 1):
        for nt in range(3):
            for r in range(4):
                v = Oa(mt, nt) + r
                a(f"v_mul_f32 v{v}, v{vAL+nt}, v{v}")
            if mt >= 2:
                a(f"ds_write_b128 v56, {vr(Oa(mt,nt))} offset:{((mt-2)*3+nt)*1024}")
    a("s_waitcnt lgkmcnt(0)")

def a_xfinal(R):
    a = R.a
    for i in range(2):
        for nt in range(3):
            a(f"ds_read_b128 {vr(XT(i,nt))}, v57 offset:{(i*3+nt)*1024}")
    a("s_waitcnt lgkmcnt(0)")
    for nt in range(3):
        for i in range(2):
            for r in range(4):
                a(f"v_add_f32 v{Oa(i,nt)+r}, v{Oa(i,nt)+r}, v{XT(i,nt)+r}")
        d = XT(0, nt)
        a(f"v_cvt_pk_bf16_f32 v{d}, v{Oa(0,nt)}, v{Oa(0,nt)+1}")
        a(f"v_cvt_pk_bf16_f32 v{d+1}, v{Oa(0,nt)+2}, v{Oa(0,nt)+3}")
        a(f"v_cvt_pk_bf16_f32 v{d+2}, v{Oa(1,nt)}, v{Oa(1,nt)+1}")
        a(f"v_cvt_pk_bf16_f32 v{d+3}, v{Oa(1,nt)+2}, v{Oa(1,nt)+3}")
        a(f"ds_write_b128 v58, {vr(d)} offset:{2048*nt}")
    a("s_waitcnt lgkmcnt(0)")

def Xf(s, nt): return 64 + (s*3 + nt)*4
def Qa(i, nt): return 232 + (i*3 + nt)*4
vKdE, vKdO, vWq0, vWq1, vWqR0, vWqR1, vQW0, vQW1 = 16, 17, 18, 19, 20, 21, 22, 23
vVd = 28
vWo = 48
vWoR = 32
vOR = 40
def Outa(i, nt): return 64 + (i*3 + nt)*4
def Of(s, nt): return 148 + (s*3 + nt)*4

def p_setup(R):
    a = R.a
    p = sIDX
    a(f"s_lshl_b32 s{sM0K}, s{p}, 13")
    a(f"s_mul_i32 s{sM0W}, s{p}, 14336"); a(f"s_add_u32 s{sM0W}, s{sM0W}, {WB}")
    a(f"s_mul_i32 s{sXo}, s{p}, 896")
    a(f"s_lshr_b32 s{sT0}, s{p}, 1")
    a(f"v_xor_b32 v55, s{sT0}, v{vL}"); a("v_lshlrev_b32 v55, 4, v55")
    for k in range(4):
        a(f"v_xor_b32 v{56+k}, {(2*k) << 4}, v55")
    a(f"s_mov_b64 s[{sEX}:{sEX+1}], exec")
    a("s_mov_b32 exec_hi, 0x00ffffff")
    for ii in range(12):
        base = (KVB + 3584*ii) if ii < 8 else (QO + 3584*(ii-8))
        a(f"s_add_u32 m0, s{sXo}, {base}")
        a(f"s_add_u32 s{sT1}, s{sXo}, {3584*ii}")
        R.vmem(f"buffer_load_dwordx4 v{56 + (ii % 4)}, {srd(SRD_X)}, s{sT1} offen lds", "x")
    a(f"s_mov_b64 exec, s[{sEX}:{sEX+1}]")
    a(f"v_lshrrev_b32 v48, 4, v{vL}")
    a(f"v_and_b32 v49, 15, v{vL}"); a("v_lshrrev_b32 v50, 1, v49")
    a(f"s_and_b32 s{sT0}, s{p}, 1"); a(f"s_lshl_b32 s{sT0}, s{sT0}, 2")
    a("v_xor_b32 v50, v50, v48"); a(f"v_xor_b32 v50, s{sT0}, v50")
    a(f"s_mul_i32 s{sT1}, s{p}, {56*8192}")
    for (dst, flip) in ((vWq0, 0), (vWq1, 4)):
        a(f"v_xor_b32 v51, {flip}, v50")
        a("v_lshrrev_b32 v52, 2, v51"); a("v_lshlrev_b32 v52, 9, v52")
        a("v_and_b32 v53, 3, v51"); a("v_lshl_add_u32 v52, v53, 5, v52")
        a("v_and_b32 v53, 1, v49"); a("v_lshl_add_u32 v52, v53, 4, v52")
        a("v_lshl_add_u32 v52, v48, 13, v52")
        a(f"v_add_u32 v{dst}, s{sT1}, v52")
    a(f"v_lshrrev_b32 v50, 3, v{vL}"); a("v_lshlrev_b32 v50, 9, v50")
    a(f"s_lshl_b32 s{sT1}, s{p}, 15"); a(f"v_add_u32 v50, s{sT1}, v50")
    a(f"v_and_b32 v51, 7, v{vL}"); a("v_xor_b32 v52, v51, v48")
    a(f"v_lshl_add_u32 v{vKdE}, v52, 4, v50")
    a("v_xor_b32 v52, 4, v52"); a(f"v_lshl_add_u32 v{vKdO}, v52, 4, v50")
    a("v_lshrrev_b32 v52, 1, v51"); a("v_xor_b32 v52, v52, v48")
    a("v_lshl_add_u32 v52, v52, 5, v50")
    a(f"v_and_b32 v53, 1, v{vL}"); a(f"v_lshl_add_u32 v{vVd}, v53, 4, v52")

def p_issue_W(R, m):
    a = R.a
    j, kh2 = m >> 1, m & 1
    for ii in range(14):
        a(f"s_add_u32 m0, s{sM0W}, {1024*ii}")
        a(f"s_mov_b32 s{sT1}, {(224*kh2 + 4*ii)*8192 + 128*j}")
        R.vmem(f"buffer_load_dwordx4 v{vWq0 + ((ii >> 1) & 1)}, {srd(SRD_WQ)}, s{sT1} offen {cfg.w_flags} lds", f"W{m}")

def p_issue_K(R, n):
    a = R.a
    j, w = n >> 1, n & 1
    buf = KVA if w == 0 else KVB
    for ii in range(8):
        a(f"s_add_u32 m0, s{sM0K}, {buf + 1024*ii}")
        a(f"s_mov_b32 s{sT1}, {131072*w + 128*j + 4096*ii}")
        R.vmem(f"buffer_load_dwordx4 v{vKdE + (ii & 1)}, {srd(SRD_K)}, s{sT1} offen {cfg.kv_flags} lds", f"K{n}")

def p_issue_V(R, n):
    a = R.a
    j, w = n >> 1, n & 1
    buf = KVA if w == 0 else KVB
    for ii in range(8):
        a(f"s_add_u32 m0, s{sM0K}, {buf + 1024*ii}")
        a(f"s_mov_b32 s{sT1}, {131072*w + 128*j + 4096*ii}")
        R.vmem(f"buffer_load_dwordx4 v{vVd}, {srd(SRD_V)}, s{sT1} offen {cfg.kv_flags} lds", f"V{n}")

def p_issue_WO(R, m):
    a = R.a
    j, h = m >> 1, m & 1
    for ii in range(14):
        a(f"s_add_u32 m0, s{sM0W}, {1024*ii}")
        a(f"s_mov_b32 s{sT1}, {(256*h + 64*j)*896 + (ii//7)*7168}")
        R.vmem(f"buffer_load_dwordx4 v{vWo + ii % 7}, {srd(SRD_WO)}, s{sT1} offen {cfg.w_flags} lds", f"O{m}")

def p_xfrags(R):
    a = R.a
    a(f"v_lshrrev_b32 v48, 1, v{vQ}")
    a(f"v_xor_b32 v49, v{vGq}, v48"); a("v_xor_b32 v50, 4, v49")
    a(f"s_mov_b32 s{sT0}, 896"); a(f"v_mul_lo_u32 v51, s{sT0}, v{vQ}")
    a(f"v_add_u32 v51, {KVB}, v51")
    a("v_lshl_add_u32 v56, v49, 4, v51"); a("v_lshl_add_u32 v57, v50, 4, v51")
    a(f"v_add_u32 v58, {QO-KVB}, v56"); a(f"v_add_u32 v59, {QO-KVB}, v57")
    cnt = 0
    for s in range(14):
        for nt in range(3):
            if nt < 2: addr, off = 56 + (s & 1), 14336*nt + 128*(s >> 1)
            else: addr, off = 58 + (s & 1), 128*(s >> 1)
            a(f"ds_read_b128 {vr(Xf(s,nt))}, v{addr} offset:{off}")
            cnt += 1
            if cnt % 12 == 0: a("s_waitcnt lgkmcnt(0)")
    a(f"v_bfe_u32 v48, v{vL}, 2, 2")
    a(f"v_and_b32 v49, 3, v{vL}")
    a(f"v_lshl_add_u32 v50, v{vGq}, 3, v48")
    a("v_lshlrev_b32 v50, 8, v50"); a("v_lshl_add_u32 v50, v49, 3, v50"); a(f"v_add_u32 v50, {WB}, v50")
    a(f"v_and_b32 v51, 1, v{vGq}"); a("v_lshl_add_u32 v51, v51, 2, v48")
    a(f"s_lshl_b32 s{sT0}, s{sIDX}, 1")
    a(f"v_xor_b32 v51, s{sT0}, v51")
    a(f"v_lshl_add_u32 v{vWqR0}, v51, 5, v50")
    a("v_xor_b32 v51, 1, v51"); a(f"v_lshl_add_u32 v{vWqR1}, v51, 5, v50")
    a(f"s_lshr_b32 s{sT0}, s{sIDX}, 1"); a(f"s_mul_i32 s{sT0}, s{sT0}, {48*128}"); a(f"s_add_u32 s{sT0}, s{sT0}, {QO}")
    a(f"v_lshlrev_b32 v50, 7, v{vQ}"); a(f"v_add_u32 v50, s{sT0}, v50")
    a(f"v_and_b32 v51, 1, v{vGq}"); a("v_lshl_add_u32 v50, v51, 3, v50")
    a(f"s_and_b32 s{sT1}, s{sIDX}, 1"); a(f"s_lshl_b32 s{sT1}, s{sT1}, 2")
    a(f"v_lshrrev_b32 v51, 1, v{vGq}"); a(f"v_or_b32 v51, s{sT1}, v51")
    a(f"v_lshrrev_b32 v52, 1, v{vQ}"); a("v_xor_b32 v51, v51, v52")
    a(f"v_lshl_add_u32 v{vQW0}, v51, 4, v50")
    a("v_xor_b32 v51, 2, v51"); a(f"v_lshl_add_u32 v{vQW1}, v51, 4, v50")
    a("s_waitcnt lgkmcnt(0)")

def p_qproj(R, m):
    a = R.a
    j, kh2 = m >> 1, m & 1
    def rd(s):
        for i in range(2):
            b = (s & 1)*8 + i*4
            a(f"ds_read_b64_tr_b16 {vr(b,2)}, v{vWqR0+i} offset:{8192*s}")
            a(f"ds_read_b64_tr_b16 {vr(b+2,2)}, v{vWqR0+i} offset:{8192*s + 1024}")
    rd(0)
    for s in range(7):
        if s + 1 < 7: rd(s+1)
        a(f"s_waitcnt lgkmcnt({4 if s + 1 < 7 else 0})")
        sg = 7*kh2 + s
        for i in range(2):
            for nt in range(3):
                d = Qa(i, nt)
                c = "0" if sg == 0 else vr(d)
                a(f"v_mfma_f32_16x16x32_bf16 {vr(d)}, {vr((s & 1)*8 + i*4)}, {vr(Xf(sg,nt))}, {c}")
    if kh2 == 1:
        for i in range(2):
            for nt in range(3):
                d = Qa(i, nt)
                t = 24 + 2*((i*3+nt) & 1)
                a(f"v_cvt_pk_bf16_f32 v{t}, v{d}, v{d+1}")
                a(f"v_cvt_pk_bf16_f32 v{t+1}, v{d+2}, v{d+3}")
                a(f"ds_write_b64 v{vQW0+i}, {vr(t,2)} offset:{2048*nt}")
        a("s_waitcnt lgkmcnt(0)")

def p_vsetup(R):
    a = R.a
    a(f"s_mul_i32 s{sT1}, s{sIDX}, 14336")
    for k in range(7):
        a(f"v_add_u32 v55, {64*k}, v{vL}")
        a("v_mul_u32_u24 v56, 1171, v55"); a("v_lshrrev_b32 v56, 16, v56")
        a("v_mul_u32_u24 v57, 56, v56"); a("v_sub_u32 v57, v55, v57")
        a("v_lshrrev_b32 v58, 1, v56"); a("v_and_b32 v58, 3, v58"); a("v_lshlrev_b32 v58, 1, v58")
        a("v_xor_b32 v57, v57, v58")
        a("v_mul_u32_u24 v56, 56, v56"); a("v_add_u32 v57, v57, v56")
        a("v_lshlrev_b32 v57, 4, v57")
        a(f"v_add_u32 v{vWo+k}, s{sT1}, v57")
    a(f"v_lshrrev_b32 v55, 2, v{vL}")
    a("v_lshrrev_b32 v56, 1, v55"); a("v_and_b32 v56, 3, v56")
    a(f"s_mov_b32 s{sT0}, 896"); a(f"v_mul_lo_u32 v57, s{sT0}, v55")
    a(f"v_and_b32 v58, 3, v{vL}"); a("v_lshl_add_u32 v57, v58, 3, v57"); a(f"v_add_u32 v57, {WB}, v57")
    a(f"s_mul_i32 s{sT0}, s{sIDX}, 7")
    for i in range(7):
        a(f"s_add_u32 s{sT1}, s{sT0}, {i}")
        a(f"v_xor_b32 v58, s{sT1}, v56")
        a(f"v_lshl_add_u32 v{vWoR+i}, v58, 5, v57")
    a(f"v_lshrrev_b32 v55, 1, v{vQ}"); a(f"v_xor_b32 v55, v{vGq}, v55")
    a(f"v_lshlrev_b32 v56, 7, v{vQ}"); a(f"v_add_u32 v56, {QO}, v56")
    a(f"v_lshl_add_u32 v{vOR}, v55, 4, v56")
    a("v_xor_b32 v55, 4, v55"); a(f"v_lshl_add_u32 v{vOR+1}, v55, 4, v56")

def p_oproj(R, m):
    a = R.a
    j, h = m >> 1, m & 1
    for s in range(2):
        for nt in range(3):
            a(f"ds_read_b128 {vr(Of(s,nt))}, v{vOR+s} offset:{6144*h + 2048*nt}")
    frs = [(s, i) for s in range(2) for i in range(7)]
    NB = 4
    def rd(k):
        s, i = frs[k]
        b = 4*(k % NB)
        a(f"ds_read_b64_tr_b16 {vr(b,2)}, v{vWoR+i} offset:{28672*s}")
        a(f"ds_read_b64_tr_b16 {vr(b+2,2)}, v{vWoR+i} offset:{28672*s + 14336}")
    for k in range(NB-1): rd(k)
    for k, (s, i) in enumerate(frs):
        if k + NB - 1 < len(frs): rd(k + NB - 1)
        a(f"s_waitcnt lgkmcnt({2*min(NB-1, len(frs)-1-k)})")
        for nt in range(3):
            d = Outa(i, nt)
            c = "0" if (m == 0 and s == 0) else vr(d)
            a(f"v_mfma_f32_16x16x32_bf16 {vr(d)}, {vr(4*(k % NB))}, {vr(Of(s,nt))}, {c}")

def p_publish(R):
    a = R.a
    a(f"v_lshlrev_b32 v55, 4, v{vL}")
    a(f"s_mul_i32 s{sT0}, s2, 86016"); a(f"s_mul_i32 s{sT1}, s{sIDX}, {21*1024}"); a(f"s_add_u32 s{sT0}, s{sT0}, s{sT1}")
    for i in range(7):
        for nt in range(3):
            k = i*3 + nt
            a(f"s_add_u32 s{sT1}, s{sT0}, {1024*k}")
            R.vmem(f"buffer_store_dwordx4 {vr(Outa(i,nt))}, v55, {srd(SRD_WS)}, s{sT1} offen sc0 sc1", "pub")
    R.wait_vm_all()

def emit_reduce(a):
    a.label("L_tail")
    a("s_barrier")
    a(f"s_cmp_lg_u32 s{sWAVE}, 0")
    a("s_cbranch_scc1 L_tail_wait")
    a(f"s_lshr_b32 s{sT0}, s2, 3"); a(f"s_lshl_b32 s{sT0}, s{sT0}, 3")
    a(f"v_mov_b32 v0, s{sT0}"); a("v_mov_b32 v1, 1")
    a(f"s_mov_b64 s[{sEX}:{sEX+1}], exec")
    a("s_mov_b64 exec, 1")
    a(f"global_atomic_add v0, v1, s[{sDBG}:{sDBG+1}] sc1")
    a(f"s_mov_b32 s{sT2}, 0")
    a.label("L_poll")
    a(f"global_load_dword v2, v0, s[{sDBG}:{sDBG+1}] sc1")
    a("s_waitcnt vmcnt(0)")
    a(f"v_readfirstlane_b32 s{sT1}, v2")
    a(f"s_cmp_ge_u32 s{sT1}, 8")
    a("s_cbranch_scc1 L_poll_done")
    a(f"s_add_u32 s{sT2}, s{sT2}, 1")
    a(f"s_cmp_ge_u32 s{sT2}, 400000")
    a("s_cbranch_scc1 L_poll_done")
    a("s_sleep 1")
    a("s_branch L_poll")
    a.label("L_poll_done")
    a(f"s_mov_b64 exec, s[{sEX}:{sEX+1}]")
    a.label("L_tail_wait")
    a("s_barrier")
    a(f"s_lshl_b32 s{sT0}, s{sWAVE}, 6"); a(f"v_add_u32 v3, s{sT0}, v{vL}")
    a("v_cmp_gt_u32 vcc, 336, v3")
    a(f"s_and_saveexec_b64 s[{sEX}:{sEX+1}], vcc")
    a("s_cbranch_execz L_end")
    a("v_lshrrev_b32 v4, 4, v3")
    a(f"s_mul_i32 s{sT0}, s{sG}, 21"); a(f"v_add_u32 v4, s{sT0}, v4")
    a("v_and_b32 v5, 15, v3")
    a("v_lshlrev_b32 v6, 9, v4"); a("v_lshl_add_u32 v6, v5, 4, v6")
    a(f"s_and_b32 s{sT0}, s2, 0xf8"); a(f"s_mul_i32 s{sT0}, s{sT0}, 86016")
    for k in range(8):
        a(f"s_add_u32 s{sT1}, s{sT0}, {86016*k}")
        a(f"buffer_load_dwordx4 {vr(64+8*k)}, v6, {srd(SRD_WS)}, s{sT1} offen sc0 sc1")
        a(f"buffer_load_dwordx4 {vr(68+8*k)}, v6, {srd(SRD_WS)}, s{sT1} offen offset:256 sc0 sc1")
    a("v_lshrrev_b32 v7, 1, v4"); a("v_and_b32 v8, 1, v4")
    a("v_mul_u32_u24 v9, 171, v7"); a("v_lshrrev_b32 v9, 9, v9")
    a("v_mul_u32_u24 v10, 3, v9"); a("v_sub_u32 v10, v7, v10")
    a("v_lshl_add_u32 v10, v10, 4, v5")
    a(f"s_mul_i32 s{sT0}, s{sB}, 48"); a(f"v_add_u32 v10, s{sT0}, v10")
    a(f"s_mov_b32 s{sT1}, 1792"); a(f"v_mul_lo_u32 v10, s{sT1}, v10")
    a("v_lshlrev_b32 v9, 5, v9"); a("v_lshl_add_u32 v9, v8, 4, v9")
    a("v_add_u32 v10, v10, v9")
    a(f"s_mul_i32 s{sT0}, s{sBR}, 896"); a(f"v_add_u32 v10, s{sT0}, v10")
    a("s_waitcnt vmcnt(0)")
    for k in range(1, 8):
        for r in range(8):
            a(f"v_add_f32 v{64+r}, v{64+r}, v{64+8*k+r}")
    for r in range(4):
        a(f"v_cvt_pk_bf16_f32 v{12+r}, v{64+2*r}, v{65+2*r}")
    a(f"buffer_store_dwordx4 v[12:15], v10, {srd(SRD_OUT)}, 0 offen")
    a("s_waitcnt vmcnt(0)")
    a.label("L_end")
    a("s_endpgm")

def build():
    a = Asm()
    emit_prologue(a)
    A = Role(a)
    bar = lambda: a("s_barrier")
    a_setup(A)
    bar()
    bar()
    for m in range(8):
        bar()
        if m & 1: a_S(A, m-1)
        elif m >= 2: a_S(A, m-1)
        if m == 4: a_pf_wo(A)
        bar()
    a_S(A, 7)
    bar()
    a_softmax(A)
    bar()
    a_alpha(A)
    for j in range(4):
        a_PV(A, 2*j); bar()
        bar()
        a_PV(A, 2*j+1); a_xwrite(A); bar()
        a_xfinal(A); bar()
    bar()
    bar()
    A.wait_vm_all()
    a("s_branch L_tail")
    a.label("L_P")
    P = Role(a)
    p_setup(P)
    p_issue_W(P, 0)
    p_issue_K(P, 0)
    P.wait_vm("x"); bar()
    p_xfrags(P)
    P.wait_vm("W0"); bar()
    for m in range(8):
        if m == 0: p_issue_K(P, 1)
        elif m >= 2: p_issue_K(P, m)
        p_qproj(P, m)
        if m == 6: pass
        bar()
        if m < 7:
            p_issue_W(P, m+1); P.wait_vm(f"W{m+1}")
        else:
            p_vsetup(P); p_issue_WO(P, 0); P.wait_vm("K7")
        bar()
    p_issue_V(P, 0)
    bar()
    p_issue_V(P, 1); P.wait_vm("V0")
    bar()
    for j in range(4):
        if j >= 1: p_oproj(P, 2*j-2)
        bar()
        if j >= 1: p_issue_WO(P, 2*j-1)
        if j <= 2: p_issue_V(P, 2*j+2)
        if j >= 1: P.wait_vm(f"O{2*j-1}")
        if j == 0: P.wait_vm("V1")
        bar()
        if j >= 1: p_oproj(P, 2*j-1)
        bar()
        if j >= 1: p_issue_WO(P, 2*j)
        if j <= 2: p_issue_V(P, 2*j+3)
        if j >= 1: P.wait_vm(f"O{2*j}")
        else: P.wait_vm("V2");
        if j == 0: P.wait_vm("O0")
        bar()
    p_oproj(P, 6); bar()
    p_issue_WO(P, 7); P.wait_vm("O7"); bar()
    p_oproj(P, 7)
    p_publish(P)
    emit_reduce(a)
    a.finalize()
    return a

HEADER = open("cdna_kernels/" + NAME + ".s.ref").read().split("; Override launch")[0]
def full_text(a):
    s = HEADER
    s += f"; @launch grid=(256,1,1) block=(512,1,1) lds={LDS_BYTES}\n"
    s += f'.amdgcn_target "amdgcn-amd-amdhsa--gfx950"\n.text\n.globl {NAME}_kernel\n.p2align 8\n.type {NAME}_kernel,@function\n{NAME}_kernel:\n'
    s += a.text()
    s += f""".section .rodata,"a"
.p2align 6
.amdhsa_kernel {NAME}_kernel
  .amdhsa_next_free_vgpr 256
  .amdhsa_next_free_sgpr 96
  .amdhsa_accum_offset 256
  .amdhsa_group_segment_fixed_size 0
  .amdhsa_kernarg_size 104
  .amdhsa_user_sgpr_count 2
  .amdhsa_user_sgpr_kernarg_segment_ptr 1
  .amdhsa_system_sgpr_workgroup_id_x 1
.end_amdhsa_kernel
"""
    return s

if __name__ == "__main__":
    out = sys.argv[1] if len(sys.argv) > 1 else "cdna_kernels/" + NAME + ".s"
    for kv in sys.argv[2:]:
        k, v = kv.split("=", 1)
        cur = getattr(cfg, k)
        setattr(cfg, k, (v.lower() in ("1", "true")) if isinstance(cur, bool) else v)
    a = build()
    open(out, "w").write(full_text(a))
    print("wrote", out, "instrs:", sum(1 for i in a.ins if i.kind not in ('none','label')), "nops inserted:", a.nops_inserted)
```

```python
import sys, math, struct
from asmlib import Asm

NAME = "concat_heads__gqa_block_cached__gqa_block_cached__near_ridge"

class Cfg:
    k_flags = ""
    v_flags = ""
    w_flags = ""
    pf = False
    pf_flags = ""
    stamps = False
    prio = 0
cfg = Cfg()

KVA, KVB = 0, 32768
WB = 65536
QB = 122880
XB = 135168
STAT = 159744
LDS_BYTES = 163840
PART = 43008
sWAVE, sIDX, sG, sB, sBR = 3, 4, 5, 6, 7
SRD_K, SRD_V, SRD_WQ, SRD_WO, SRD_X, SRD_OUT, SRD_WS = 8, 12, 16, 20, 24, 28, 32
sDBG = 58
sM0, sWp, sC, sXo, sT0, sT1, sT2, sT3 = 62, 63, 64, 65, 66, 67, 68, 69
sEX = 70
sGRP = 76
def srd(b): return f"s[{b}:{b+3}]"
def vr(b, n=4): return f"v[{b}:{b+n-1}]"
def f32bits(x): return struct.unpack('<I', struct.pack('<f', x))[0]
vL, vQ, vGq = 44, 46, 47

class Role:
    def __init__(self, a): self.a = a; self.vm = []; self.lg = []
    def vmem(self, text, tag): self.a(text); self.vm.append(tag)
    def lds(self, text, tag): self.a(text); self.lg.append(tag)
    def wait_vm(self, tag):
        idx = [i for i, t in enumerate(self.vm) if t == tag]
        if not idx: return
        n = len(self.vm) - 1 - idx[-1]
        assert n <= 63
        self.a(f"s_waitcnt vmcnt({n})"); self.vm = self.vm[idx[-1]+1:]
    def wait_lg(self, tag):
        idx = [i for i, t in enumerate(self.lg) if t == tag]
        if not idx: return
        n = len(self.lg) - 1 - idx[-1]
        assert n <= 15, n
        self.a(f"s_waitcnt lgkmcnt({n})"); self.lg = self.lg[idx[-1]+1:]
    def wait_vm_all(self): self.a("s_waitcnt vmcnt(0)"); self.vm = []
    def wait_lg_all(self): self.a("s_waitcnt lgkmcnt(0)"); self.lg = []
    def lds_guard(self, n_new):
        if len(self.lg) + n_new > 15:
            keep = 15 - n_new
            self.a(f"s_waitcnt lgkmcnt({keep})"); self.lg = self.lg[len(self.lg)-keep:] if keep else []

STREG = [61]
def stamp(a, idx):
    a("s_memrealtime s[72:73]")
    a("s_waitcnt lgkmcnt(0)")
    a(f"v_writelane_b32 v{STREG[0]}, s72, {idx}")
def stamp_move(a, new):
    if cfg.stamps:
        a(f"v_mov_b32 v{new}, v{STREG[0]}")
    STREG[0] = new
def stamp_store(a):
    a(f"s_lshl_b32 s{sT0}, s2, 3"); a(f"s_add_u32 s{sT0}, s{sT0}, s{sWAVE}"); a(f"s_lshl_b32 s{sT0}, s{sT0}, 8")
    a("v_mbcnt_lo_u32_b32 v60, -1, 0"); a("v_mbcnt_hi_u32_b32 v60, -1, v60")
    a(f"v_lshlrev_b32 v60, 2, v60"); a(f"v_add_u32 v60, s{sT0}, v60")
    a("s_add_u32 s74, s60, 0x2000000"); a("s_addc_u32 s75, s61, 0")
    a("global_store_dword v60, v61, s[74:75]")
    a("s_waitcnt vmcnt(0)")

def emit_prologue(a):
    a("s_cmp_ge_u32 s2, 256")
    a("s_cbranch_scc1 L_end")
    a("s_load_dwordx16 s[36:51], s[0:1], 0")
    a("s_load_dwordx4 s[52:55], s[0:1], 64")
    a("s_load_dwordx4 s[56:59], s[0:1], 80")
    a("s_load_dwordx2 s[60:61], s[0:1], 96")
    a("v_and_b32 v44, 63, v0")
    a("v_lshrrev_b32 v45, 6, v0")
    a("v_and_b32 v46, 15, v44")
    a("v_lshrrev_b32 v47, 4, v44")
    a(f"v_readfirstlane_b32 s{sWAVE}, v45")
    a(f"s_bfe_u32 s{sBR}, s2, 0x10002")
    a(f"s_and_b32 s{sG}, s2, 3"); a(f"s_lshl_b32 s{sG}, s{sG}, 1")
    a(f"s_bfe_u32 s{sT0}, s2, 0x10003"); a(f"s_or_b32 s{sG}, s{sG}, s{sT0}")
    a(f"s_lshr_b32 s{sB}, s2, 4")
    a(f"s_and_b32 s{sIDX}, s{sWAVE}, 3")
    a(f"s_lshl_b32 s{sGRP}, s{sBR}, 4"); a(f"s_add_u32 s{sGRP}, s{sGRP}, s{sB}")
    a("s_waitcnt lgkmcnt(0)")
    if cfg.stamps: stamp(a, 54)
    a(f"s_cmp_eq_u32 s{sBR}, 0")
    for i in range(5):
        a(f"s_cselect_b64 s[{36+2*i}:{37+2*i}], s[{36+2*i}:{37+2*i}], s[{46+2*i}:{47+2*i}]")
    def mk(srdb, ptr, off_s, size):
        if off_s is None:
            a(f"s_mov_b32 s{srdb}, s{ptr}"); a(f"s_and_b32 s{srdb+1}, s{ptr+1}, 0xffff")
        else:
            a(f"s_add_u32 s{srdb}, s{ptr}, s{off_s}")
            a(f"s_addc_u32 s{srdb+1}, s{ptr+1}, 0")
            a(f"s_and_b32 s{srdb+1}, s{srdb+1}, 0xffff")
        if isinstance(size, int): a(f"s_mov_b32 s{srdb+2}, {size}")
        else: a(size)
        a(f"s_mov_b32 s{srdb+3}, 0x20000")
    a(f"s_mul_i32 s{sT1}, s{sB}, 43008")
    mk(SRD_X, 36, sT1, 43008)
    a(f"s_lshl_b32 s{sT1}, s{sG}, 10")
    mk(SRD_WQ, 42, sT1, f"s_sub_u32 s{SRD_WQ+2}, {448*8192}, s{sT1}")
    a(f"s_lshl_b32 s{sT0}, s{sB}, 3"); a(f"s_add_u32 s{sT0}, s{sT0}, s{sG}"); a(f"s_lshl_b32 s{sT0}, s{sT0}, 18")
    mk(SRD_K, 38, sT0, 262144)
    mk(SRD_V, 40, sT0, 262144)
    a(f"s_mul_i32 s{sT1}, s{sG}, 458752")
    mk(SRD_WO, 44, sT1, 458752)
    mk(SRD_OUT, 56, None, 16*48*896*2)
    mk(SRD_WS, 60, None, 256*PART)
    a(f"s_mov_b32 s{sC}, 0x{f32bits(math.log2(math.e)/16.0):08x}")
    a(f"s_cmp_ge_u32 s{sWAVE}, 4")
    a("s_cbranch_scc1 L_P")

def S_(t, nt): return 64 + (t*3 + nt)*4
def Qf(s, nt): return (s*3 + nt)*4
KF = 24
vKdE, vKdO, vVd = 48, 49, 50

def a_setup(R):
    a = R.a
    a(f"s_lshl_b32 s{sM0}, s{sIDX}, 13")
    a(f"v_lshrrev_b32 v52, 3, v{vL}"); a("v_lshlrev_b32 v52, 9, v52")
    a(f"s_lshl_b32 s{sT1}, s{sIDX}, 15"); a(f"v_add_u32 v52, s{sT1}, v52")
    a(f"v_and_b32 v53, 7, v{vL}"); a(f"v_xor_b32 v54, v53, v{vGq}")
    a(f"v_lshl_add_u32 v{vKdE}, v54, 4, v52")
    a("v_xor_b32 v54, 4, v54"); a(f"v_lshl_add_u32 v{vKdO}, v54, 4, v52")
    a("v_lshrrev_b32 v54, 1, v53"); a(f"v_xor_b32 v54, v54, v{vGq}")
    a("v_lshl_add_u32 v54, v54, 5, v52")
    a(f"v_and_b32 v55, 1, v{vL}"); a(f"v_lshl_add_u32 v{vVd}, v55, 4, v54")

def a_setup2(R):
    a = R.a
    a(f"s_lshr_b32 s{sT0}, s{sIDX}, 1")
    a(f"s_and_b32 s{sT1}, s{sIDX}, 1")
    a(f"v_lshrrev_b32 v52, 1, v{vQ}")
    a(f"v_xor_b32 v53, v{vGq}, v52")
    a(f"v_xor_b32 v54, 4, v53")
    a(f"s_lshl_b32 s{sT2}, s{sT1}, 14")
    a(f"v_lshlrev_b32 v55, 7, v{vQ}")
    a(f"v_add_u32 v55, s{sT2}, v55")
    a(f"v_lshl_add_u32 v40, v53, 4, v55")
    a(f"v_lshl_add_u32 v41, v54, 4, v55")
    a(f"s_mul_i32 s{sT2}, s{sT0}, {48*128}")
    a(f"s_add_u32 s{sT2}, s{sT2}, {QB}")
    a(f"v_lshlrev_b32 v55, 7, v{vQ}")
    a(f"v_add_u32 v55, s{sT2}, v55")
    a(f"v_lshl_add_u32 v42, v53, 4, v55")
    a(f"v_lshl_add_u32 v43, v54, 4, v55")

def a_issue_KV(R, kind, n):
    a = R.a
    j, w = n >> 1, n & 1
    buf = KVA if w == 0 else KVB
    for ii in range(8):
        a(f"s_add_u32 m0, s{sM0}, {buf + 1024*ii}")
        a(f"s_mov_b32 s{sT1}, {131072*w + 128*j + 4096*ii}")
        if kind == "K":
            R.vmem(f"buffer_load_dwordx4 v{vKdE + (ii & 1)}, {srd(SRD_K)}, s{sT1} offen {cfg.k_flags} lds", f"K{n}")
        else:
            R.vmem(f"buffer_load_dwordx4 v{vVd}, {srd(SRD_V)}, s{sT1} offen {cfg.v_flags} lds", f"V{n}")

def a_pf(R, which):
    a = R.a
    if not cfg.pf: return
    if which == "wq":
        a(f"v_lshrrev_b32 v52, 3, v{vL}"); a("v_lshlrev_b32 v52, 13, v52")
        a(f"v_and_b32 v53, 7, v{vL}"); a("v_lshl_add_u32 v52, v53, 7, v52")
        a(f"s_mul_i32 s{sT2}, s{sB}, 28"); a(f"s_lshl_b32 s{sT3}, s{sIDX}, 3"); a(f"s_add_u32 s{sT2}, s{sT2}, s{sT3}")
        a(f"s_lshl_b32 s{sT2}, s{sT2}, 13")
        R.vmem(f"buffer_load_dword v63, v52, {srd(SRD_WQ)}, s{sT2} offen {cfg.pf_flags}", "pf")
    else:
        a(f"v_lshlrev_b32 v52, 7, v{vL}")
        a(f"s_mul_i32 s{sT2}, s{sB}, 28672"); a(f"s_lshl_b32 s{sT3}, s{sIDX}, 13"); a(f"s_add_u32 s{sT2}, s{sT2}, s{sT3}")
        R.vmem(f"buffer_load_dword v62, v52, {srd(SRD_WO)}, s{sT2} offen {cfg.pf_flags}", "pf")

def a_S(R, n):
    a = R.a
    j, w = n >> 1, n & 1
    buf = KVA if w == 0 else KVB
    if w == 0:
        for s in range(2):
            for nt in range(3):
                R.lds(f"ds_read_b128 {vr(Qf(s,nt))}, v{42+s} offset:{12288*(j & 1) + 2048*nt}", "q")
    frs = [(i, s) for i in range(8) for s in range(2)]
    NB = 4
    def rd(k):
        i, s = frs[k]
        R.lds(f"ds_read_b128 {vr(KF + 4*(k % NB))}, v{40+s} offset:{buf + 2048*i}", f"kf{k}")
    for k in range(NB-1): rd(k)
    for k, (i, s) in enumerate(frs):
        if k + NB - 1 < len(frs): rd(k + NB - 1)
        R.wait_lg(f"kf{k}")
        for nt in range(3):
            d = S_(8*w + i, nt)
            c = "0" if (j == 0 and s == 0) else vr(d)
            a(f"v_mfma_f32_16x16x32_bf16 {vr(d)}, {vr(KF + 4*(k % NB))}, {vr(Qf(s,nt))}, {c}")

vAL, vMX, vLS = 0, 3, 6
ONES = 12
def Pf(w, s, nt): return S_(8*w + 2*s, nt)
def Oa(mt, nt): return S_(2*mt + 1, nt)
def XT(i, nt): return S_(9 + 2*i, nt)
def LA(nt): return S_(13, nt)

def a_softmax(R):
    a = R.a
    for nt in range(3):
        m = vMX + nt
        vals = [S_(t, nt) + r for t in range(16) for r in range(4)]
        a(f"v_max3_f32 v{m}, v{vals[0]}, v{vals[1]}, v{vals[2]}")
        a(f"v_max3_f32 v9, v{vals[3]}, v{vals[4]}, v{vals[5]}")
        k = 6
        while k + 3 < len(vals):
            a(f"v_max3_f32 v{m}, v{m}, v{vals[k]}, v{vals[k+1]}")
            a(f"v_max3_f32 v9, v9, v{vals[k+2]}, v{vals[k+3]}")
            k += 4
        a(f"v_max3_f32 v{m}, v{m}, v{vals[62]}, v{vals[63]}")
        a(f"v_max_f32 v{m}, v{m}, v9")
    for nt in range(3):
        m = vMX + nt
        a(f"v_mov_b32 v9, v{m}")
        a(f"v_permlane32_swap_b32 v9, v{m}")
        a(f"v_max_f32 v{m}, v9, v{m}")
        a(f"v_mov_b32 v9, v{m}")
        a(f"v_permlane16_swap_b32 v9, v{m}")
        a(f"v_max_f32 v{m}, v9, v{m}")
        a(f"v_mul_f32 v{m}, s{sC}, v{m}")
    for r in range(4): a(f"v_mov_b32 v{ONES+r}, 0x3f803f80")
    for t0 in range(0, 16, 2):
        for nt in range(3):
            m = vMX + nt
            src = [S_(t0, nt) + r for r in range(4)] + [S_(t0+1, nt) + r for r in range(4)]
            for v in src: a(f"v_fma_f32 v{v}, v{v}, s{sC}, -v{m}")
            for v in src: a(f"v_exp_f32 v{v}, v{v}")
            d = S_(t0, nt)
            a(f"v_cvt_pk_bf16_f32 v{d}, v{src[0]}, v{src[1]}")
            a(f"v_cvt_pk_bf16_f32 v{d+1}, v{src[2]}, v{src[3]}")
            a(f"v_cvt_pk_bf16_f32 v{d+2}, v{src[4]}, v{src[5]}")
            a(f"v_cvt_pk_bf16_f32 v{d+3}, v{src[6]}, v{src[7]}")
    for w in range(2):
        for s in range(4):
            for nt in range(3):
                c = "0" if (w == 0 and s == 0) else vr(LA(nt))
                a(f"v_mfma_f32_16x16x32_bf16 {vr(LA(nt))}, {vr(ONES)}, {vr(Pf(w,s,nt))}, {c}")
    a(f"s_and_b32 s{sT1}, s{sIDX}, 1")
    a(f"v_lshrrev_b32 v51, 2, v{vL}")
    a(f"v_lshrrev_b32 v52, 1, v51"); a("v_and_b32 v52, 3, v52")
    a(f"s_lshl_b32 s{sT2}, s{sT1}, 14")
    a(f"v_lshlrev_b32 v53, 7, v51"); a(f"v_add_u32 v53, s{sT2}, v53")
    a(f"v_and_b32 v54, 3, v{vL}"); a(f"v_lshl_add_u32 v53, v54, 3, v53")
    a(f"s_lshl_b32 s{sT2}, s{sT1}, 1")
    a(f"v_xor_b32 v52, s{sT2}, v52")
    for mt in range(4):
        a(f"v_xor_b32 v54, {mt}, v52")
        a(f"v_lshl_add_u32 v{40+mt}, v54, 5, v53")
    a(f"s_mul_i32 s{sT2}, s{sIDX}, 6144"); a(f"s_add_u32 s{sT2}, s{sT2}, {XB}")
    a(f"v_lshlrev_b32 v55, 4, v{vL}"); a(f"v_add_u32 v56, s{sT2}, v55")
    a(f"s_xor_b32 s{sT2}, s{sIDX}, 1"); a(f"s_mul_i32 s{sT2}, s{sT2}, 6144"); a(f"s_add_u32 s{sT2}, s{sT2}, {XB}")
    a(f"v_add_u32 v57, s{sT2}, v55")
    a(f"s_lshr_b32 s{sT0}, s{sIDX}, 1"); a(f"s_mul_i32 s{sT2}, s{sT0}, {48*128}"); a(f"s_add_u32 s{sT2}, s{sT2}, {QB}")
    a(f"v_lshlrev_b32 v58, 7, v{vQ}"); a(f"v_add_u32 v58, s{sT2}, v58")
    a(f"s_lshl_b32 s{sT3}, s{sT1}, 2")
    a(f"v_or_b32 v54, s{sT3}, v{vGq}")
    a(f"v_lshrrev_b32 v55, 1, v{vQ}"); a("v_xor_b32 v54, v54, v55")
    a("v_lshl_add_u32 v58, v54, 4, v58")
    a(f"s_mul_i32 s{sT0}, s{sIDX}, 384"); a(f"s_add_u32 s{sT0}, s{sT0}, {STAT}")
    a(f"v_lshlrev_b32 v59, 3, v{vQ}"); a(f"v_add_u32 v59, s{sT0}, v59")
    a(f"s_xor_b32 s{sT1}, s{sIDX}, 1"); a(f"s_mul_i32 s{sT1}, s{sT1}, 384"); a(f"s_add_u32 s{sT1}, s{sT1}, {STAT}")
    a(f"v_lshlrev_b32 v60, 3, v{vQ}"); a(f"v_add_u32 v60, s{sT1}, v60")
    for nt in range(3):
        a(f"v_mov_b32 v{vLS+nt}, v{LA(nt)}")
    for nt in range(3):
        a(f"v_mov_b32 v{16+2*nt}, v{vMX+nt}"); a(f"v_mov_b32 v{17+2*nt}, v{vLS+nt}")
    for nt in range(3):
        R.lds(f"ds_write_b64 v59, v[{16+2*nt}:{17+2*nt}] offset:{128*nt}", "st")
    R.wait_lg_all()

def a_alpha(R):
    a = R.a
    for nt in range(3):
        R.lds(f"ds_read_b64 v[{16+2*nt}:{17+2*nt}], v60 offset:{128*nt}", "st")
    R.wait_lg_all()
    for nt in range(3):
        mo, lo = 16 + 2*nt, 17 + 2*nt
        m, l = vMX + nt, vLS + nt
        a(f"v_max_f32 v9, v{m}, v{mo}")
        a(f"v_sub_f32 v10, v{m}, v9"); a(f"v_sub_f32 v11, v{mo}, v9")
        a("v_exp_f32 v10, v10"); a("v_exp_f32 v11, v11")
        a(f"v_mul_f32 v9, v{l}, v10")
        a(f"v_fma_f32 v9, v{lo}, v11, v9")
        a("v_rcp_f32 v9, v9")
        a(f"v_mul_f32 v{vAL+nt}, v10, v9")

def a_PV(R, n):
    a = R.a
    j, w = n >> 1, n & 1
    buf = KVA if w == 0 else KVB
    frs = [(s, mt) for s in range(4) for mt in range(4)]
    NB = 4
    def rd(k):
        s, mt = frs[k]
        b = KF + 4*(k % NB)
        R.lds(f"ds_read_b64_tr_b16 {vr(b,2)}, v{40+mt} offset:{buf + 4096*s}", f"vf{k}")
        R.lds(f"ds_read_b64_tr_b16 {vr(b+2,2)}, v{40+mt} offset:{buf + 4096*s + 2048}", f"vf{k}")
    for k in range(NB-1): rd(k)
    for k, (s, mt) in enumerate(frs):
        if k + NB - 1 < len(frs): rd(k + NB - 1)
        R.wait_lg(f"vf{k}")
        for nt in range(3):
            d = Oa(mt, nt)
            c = "0" if (w == 0 and s == 0) else vr(d)
            a(f"v_mfma_f32_16x16x32_bf16 {vr(d)}, {vr(KF + 4*(k % NB))}, {vr(Pf(w,s,nt))}, {c}")

def a_xwrite(R):
    a = R.a
    for mt in (2, 3, 0, 1):
        for nt in range(3):
            for r in range(4):
                v = Oa(mt, nt) + r
                a(f"v_mul_f32 v{v}, v{vAL+nt}, v{v}")
            if mt >= 2:
                R.lds(f"ds_write_b128 v56, {vr(Oa(mt,nt))} offset:{((mt-2)*3+nt)*1024}", "xw")
    R.wait_lg_all()

def a_xfinal(R):
    a = R.a
    for i in range(2):
        for nt in range(3):
            R.lds(f"ds_read_b128 {vr(XT(i,nt))}, v57 offset:{(i*3+nt)*1024}", f"xr{nt}{i}")
    R.wait_lg_all()
    for nt in range(3):
        for i in range(2):
            for r in range(4):
                a(f"v_add_f32 v{Oa(i,nt)+r}, v{Oa(i,nt)+r}, v{XT(i,nt)+r}")
        d = XT(0, nt)
        a(f"v_cvt_pk_bf16_f32 v{d}, v{Oa(0,nt)}, v{Oa(0,nt)+1}")
        a(f"v_cvt_pk_bf16_f32 v{d+1}, v{Oa(0,nt)+2}, v{Oa(0,nt)+3}")
        a(f"v_cvt_pk_bf16_f32 v{d+2}, v{Oa(1,nt)}, v{Oa(1,nt)+1}")
        a(f"v_cvt_pk_bf16_f32 v{d+3}, v{Oa(1,nt)+2}, v{Oa(1,nt)+3}")
        R.lds(f"ds_write_b128 v58, {vr(d)} offset:{2048*nt}", "ow")
    R.wait_lg_all()

PRING = 0
vWqD = 20
vWqR = 21
vQW = 25
PT = 26
def Xf(s, nt): return 40 + (s*3 + nt)*4
def Qa(mt, nt): return 208 + (mt*3 + nt)*4
NSLOT_Q = 3

def p_lane(a):
    a(f"v_mbcnt_lo_u32_b32 v{PT}, -1, 0"); a(f"v_mbcnt_hi_u32_b32 v{PT}, -1, v{PT}")
    a(f"v_and_b32 v{PT+1}, 15, v{PT}"); a(f"v_lshrrev_b32 v{PT+2}, 4, v{PT}")

def p_setup(R):
    a = R.a
    l, q, g = PT, PT+1, PT+2
    p_lane(a)
    p = sIDX
    a(f"s_mul_i32 s{sWp}, s{p}, 14336"); a(f"s_add_u32 s{sWp}, s{sWp}, {WB}")
    a(f"s_mul_i32 s{sXo}, s{p}, 896")
    a(f"s_lshr_b32 s{sT0}, s{p}, 1")
    a(f"v_xor_b32 v{PT+3}, s{sT0}, v{l}"); a(f"v_lshlrev_b32 v{PT+3}, 4, v{PT+3}")
    for k in range(4):
        a(f"v_xor_b32 v{PT+4+k}, {(2*k) << 4}, v{PT+3}")
    a(f"s_mov_b64 s[{sEX}:{sEX+1}], exec")
    a("s_mov_b32 exec_hi, 0x00ffffff")
    for ii in range(12):
        base = (KVB + 3584*ii) if ii < 8 else (QB + 3584*(ii-8))
        a(f"s_add_u32 m0, s{sXo}, {base}")
        a(f"s_add_u32 s{sT1}, s{sXo}, {3584*ii}")
        R.vmem(f"buffer_load_dwordx4 v{PT+4 + (ii % 4)}, {srd(SRD_X)}, s{sT1} offen lds", "x")
    a(f"s_mov_b64 exec, s[{sEX}:{sEX+1}]")
    a(f"v_lshrrev_b32 v{PT+3}, 3, v{l}"); a(f"v_lshlrev_b32 v{PT+3}, 13, v{PT+3}")
    a(f"v_bfe_u32 v{PT+4}, v{l}, 1, 2"); a(f"v_xor_b32 v{PT+4}, v{PT+4}, v{g}")
    a(f"v_lshl_add_u32 v{PT+3}, v{PT+4}, 5, v{PT+3}")
    a(f"v_and_b32 v{PT+4}, 1, v{l}"); a(f"v_lshl_add_u32 v{PT+3}, v{PT+4}, 4, v{PT+3}")
    a(f"s_and_b32 s{sT0}, s{p}, 1"); a(f"s_lshl_b32 s{sT0}, s{sT0}, 9")
    a(f"s_lshr_b32 s{sT1}, s{p}, 1"); a(f"s_lshl_b32 s{sT1}, s{sT1}, 7"); a(f"s_add_u32 s{sT0}, s{sT0}, s{sT1}")
    a(f"v_add_u32 v{vWqD}, s{sT0}, v{PT+3}")

def p_issue_wq(R, kap):
    a = R.a
    J, s = divmod(kap, 14)
    for ii in range(4):
        a(f"s_add_u32 m0, s{sWp}, {(kap % NSLOT_Q)*4096 + 1024*ii}")
        a(f"s_mov_b32 s{sT1}, {(32*s + 8*ii)*8192 + 256*J}")
        R.vmem(f"buffer_load_dwordx4 v{vWqD}, {srd(SRD_WQ)}, s{sT1} offen {cfg.w_flags} lds", f"w{kap}")

def p_xfrags(R):
    a = R.a
    l, q, g = PT, PT+1, PT+2
    a(f"v_lshrrev_b32 v{PT+3}, 1, v{q}")
    a(f"v_lshrrev_b32 v{PT+4}, 1, v{g}"); a(f"v_xor_b32 v{PT+4}, v{PT+4}, v{PT+3}")
    a(f"s_mov_b32 s{sT0}, 896"); a(f"v_mul_lo_u32 v{PT+5}, s{sT0}, v{q}")
    a(f"v_and_b32 v{PT+6}, 1, v{g}"); a(f"v_lshl_add_u32 v{PT+5}, v{PT+6}, 3, v{PT+5}")
    a(f"v_add_u32 v{PT+5}, {KVB}, v{PT+5}")
    for k in range(4):
        a(f"v_xor_b32 v{PT+6}, {2*k}, v{PT+4}")
        a(f"v_lshl_add_u32 v{PT+7+k}, v{PT+6}, 4, v{PT+5}")
    for pas in range(2):
        for s in range(14):
            for nt in ((0, 1) if pas == 0 else (2,)):
                for half in range(2):
                    k = 2*(s & 1) + half
                    off = (14336*nt if pas == 0 else 0) + 128*(s >> 1)
                    R.lds_guard(1)
                    R.lds(f"ds_read_b64 {vr(Xf(s,nt)+2*half,2)}, v{PT+7+k} offset:{off}", "xf")
        if pas == 0:
            for k in range(4): a(f"v_add_u32 v{PT+7+k}, {QB-KVB}, v{PT+7+k}")
    a(f"v_lshrrev_b32 v{PT+3}, 2, v{l}")
    a(f"v_lshrrev_b32 v{PT+4}, 1, v{PT+3}"); a(f"v_and_b32 v{PT+4}, 3, v{PT+4}")
    a(f"v_lshlrev_b32 v{PT+5}, 7, v{PT+3}"); a(f"v_add_u32 v{PT+5}, s{sWp}, v{PT+5}")
    a(f"v_and_b32 v{PT+6}, 3, v{l}"); a(f"v_lshl_add_u32 v{PT+5}, v{PT+6}, 3, v{PT+5}")
    for mt in range(4):
        a(f"v_xor_b32 v{PT+6}, {mt}, v{PT+4}")
        a(f"v_lshl_add_u32 v{vWqR+mt}, v{PT+6}, 5, v{PT+5}")
    a(f"s_and_b32 s{sT0}, s{sIDX}, 1"); a(f"s_mul_i32 s{sT0}, s{sT0}, {48*128}")
    a(f"s_lshr_b32 s{sT1}, s{sIDX}, 1"); a(f"s_mul_i32 s{sT1}, s{sT1}, 12288")
    a(f"s_add_u32 s{sT0}, s{sT0}, s{sT1}"); a(f"s_add_u32 s{sT0}, s{sT0}, {QB}")
    a(f"v_lshlrev_b32 v{PT+5}, 7, v{q}"); a(f"v_add_u32 v{PT+5}, s{sT0}, v{PT+5}")
    a(f"v_and_b32 v{PT+6}, 1, v{g}"); a(f"v_lshl_add_u32 v{PT+5}, v{PT+6}, 3, v{PT+5}")
    a(f"v_lshrrev_b32 v{PT+6}, 1, v{g}"); a(f"v_lshrrev_b32 v{PT+3}, 1, v{q}"); a(f"v_xor_b32 v{PT+6}, v{PT+6}, v{PT+3}")
    a(f"v_lshl_add_u32 v{vQW}, v{PT+6}, 4, v{PT+5}")
    R.wait_lg_all()

def p_qproj_stream(R, bar, bar_after):
    a = R.a
    D, NB = 4, 5
    frs = [(kap, mt) for kap in range(28) for mt in range(4)]
    def rd(f):
        kap, mt = frs[f]
        if mt == 0: R.wait_vm(f"w{kap}")
        b = PRING + 4*(f % NB)
        off = (kap % NSLOT_Q)*4096
        R.lds(f"ds_read_b64_tr_b16 {vr(b,2)}, v{vWqR+mt} offset:{off}", f"f{f}")
        R.lds(f"ds_read_b64_tr_b16 {vr(b+2,2)}, v{vWqR+mt} offset:{off + 2048}", f"f{f}")
    for f in range(D): rd(f)
    for f, (kap, mt) in enumerate(frs):
        J, s = divmod(kap, 14)
        if f + D < len(frs): rd(f + D)
        R.wait_lg(f"f{f}")
        if mt == 3 and kap + NSLOT_Q < 28: p_issue_wq(R, kap + NSLOT_Q)
        for nt in range(3):
            d = Qa(mt, nt)
            c = "0" if s == 0 else vr(d)
            a(f"v_mfma_f32_16x16x32_bf16 {vr(d)}, {vr(PRING + 4*(f % NB))}, {vr(Xf(s,nt))}, {c}")
        if mt == 3 and s == 13:
            a.comment(f"---- write Q super-chunk {J}")
            k = 0
            for m2 in range(4):
                a(f"v_xor_b32 v{PT+8}, {32*m2}, v{vQW}")
                for nt in range(3):
                    d = Qa(m2, nt)
                    t = PT + 2*(k % 4); k += 1
                    a(f"v_cvt_pk_bf16_f32 v{t}, v{d}, v{d+1}")
                    a(f"v_cvt_pk_bf16_f32 v{t+1}, v{d+2}, v{d+3}")
                    R.lds_guard(1)
                    R.lds(f"ds_write_b64 v{PT+8}, {vr(t,2)} offset:{2048*nt}", "qw")
            R.wait_lg("qw")
        if mt == 3:
            for _ in range(bar_after.get(kap, 0)): bar()

ORING = 0
vWoD = 32
vWoR = 34
vOR = 42
VT = 48
def Outa(i, nt): return 64 + (i*3 + nt)*4
def Of(ks, nt): return 160 + (ks*3 + nt)*4

def p_vsetup(R, wide):
    a = R.a
    l, q, g = VT, VT+1, VT+2
    a(f"v_mbcnt_lo_u32_b32 v{l}, -1, 0"); a(f"v_mbcnt_hi_u32_b32 v{l}, -1, v{l}")
    a(f"v_and_b32 v{q}, 15, v{l}"); a(f"v_lshrrev_b32 v{g}, 4, v{l}")
    a(f"s_lshl_b32 s{sWp}, s{sIDX}, 14"); a(f"s_add_u32 s{sWp}, s{sWp}, {WB}")
    a(f"s_lshl_b32 s{sT0}, s{sIDX}, 8")
    if wide:
        a(f"v_bfe_u32 v{VT+3}, v{l}, 1, 3"); a(f"v_xor_b32 v{VT+3}, v{VT+3}, v{g}")
        a(f"s_mov_b32 s{sT1}, 896"); a(f"v_mul_lo_u32 v{VT+4}, s{sT1}, v{g}")
        a(f"v_and_b32 v{VT+5}, 1, v{l}"); a(f"v_lshl_add_u32 v{VT+4}, v{VT+5}, 4, v{VT+4}")
        a(f"v_add_u32 v{VT+4}, s{sT0}, v{VT+4}")
        a(f"v_lshl_add_u32 v{vWoD}, v{VT+3}, 5, v{VT+4}")
        a(f"v_xor_b32 v{VT+3}, 4, v{VT+3}"); a(f"v_lshl_add_u32 v{vWoD+1}, v{VT+3}, 5, v{VT+4}")
        a(f"v_lshrrev_b32 v{VT+3}, 2, v{l}"); a(f"v_and_b32 v{VT+4}, 7, v{VT+3}")
        a(f"v_lshlrev_b32 v{VT+5}, 8, v{VT+3}"); a(f"v_add_u32 v{VT+5}, s{sWp}, v{VT+5}")
        a(f"v_and_b32 v{VT+6}, 3, v{l}"); a(f"v_lshl_add_u32 v{VT+5}, v{VT+6}, 3, v{VT+5}")
        for mt in range(8):
            a(f"v_xor_b32 v{VT+6}, {mt}, v{VT+4}")
            a(f"v_lshl_add_u32 v{vWoR+mt}, v{VT+6}, 5, v{VT+5}")
    else:
        a(f"v_lshrrev_b32 v{VT+3}, 3, v{l}"); a(f"s_mov_b32 s{sT1}, 896"); a(f"v_mul_lo_u32 v{VT+4}, s{sT1}, v{VT+3}")
        a(f"v_bfe_u32 v{VT+3}, v{l}, 1, 2"); a(f"v_xor_b32 v{VT+3}, v{VT+3}, v{g}")
        a(f"v_lshl_add_u32 v{VT+4}, v{VT+3}, 5, v{VT+4}")
        a(f"v_and_b32 v{VT+5}, 1, v{l}"); a(f"v_lshl_add_u32 v{VT+4}, v{VT+5}, 4, v{VT+4}")
        a(f"v_add_u32 v{vWoD}, s{sT0}, v{VT+4}")
        a(f"v_lshrrev_b32 v{VT+3}, 2, v{l}")
        a(f"v_lshrrev_b32 v{VT+4}, 1, v{VT+3}"); a(f"v_and_b32 v{VT+4}, 3, v{VT+4}")
        a(f"v_lshlrev_b32 v{VT+5}, 7, v{VT+3}"); a(f"v_add_u32 v{VT+5}, s{sWp}, v{VT+5}")
        a(f"v_and_b32 v{VT+6}, 3, v{l}"); a(f"v_lshl_add_u32 v{VT+5}, v{VT+6}, 3, v{VT+5}")
        for mt in range(4):
            a(f"v_xor_b32 v{VT+6}, {mt}, v{VT+4}")
            a(f"v_lshl_add_u32 v{vWoR+mt}, v{VT+6}, 5, v{VT+5}")
    a(f"v_lshrrev_b32 v{VT+3}, 1, v{q}"); a(f"v_xor_b32 v{VT+3}, v{g}, v{VT+3}")
    a(f"v_lshlrev_b32 v{VT+4}, 7, v{q}"); a(f"v_add_u32 v{VT+4}, {QB}, v{VT+4}")
    a(f"v_lshl_add_u32 v{vOR}, v{VT+3}, 4, v{VT+4}")
    a(f"v_xor_b32 v{VT+3}, 4, v{VT+3}"); a(f"v_lshl_add_u32 v{vOR+1}, v{VT+3}, 4, v{VT+4}")

def p_issue_wo(R, kap, wide):
    a = R.a
    j, ks = divmod(kap, 4); h, s = divmod(ks, 2)
    row0 = 256*h + 64*j + 32*s
    slot = 8192 if wide else 4096
    for ii in range(8 if wide else 4):
        a(f"s_add_u32 m0, s{sWp}, {(kap % 2)*slot + 1024*ii}")
        rows = 4*ii if wide else 8*ii
        a(f"s_mov_b32 s{sT1}, {(row0 + rows)*896}")
        pat = vWoD + ((ii & 1) if wide else 0)
        R.vmem(f"buffer_load_dwordx4 v{pat}, {srd(SRD_WO)}, s{sT1} offen {cfg.w_flags} lds", f"o{kap}")

def p_oproj_stream(R, bar, wide):
    a = R.a
    NT = 8 if wide else 4
    D = 7 if wide else 4
    NB = D + 1
    slot = 8192 if wide else 4096
    rowb = 256 if wide else 128
    frs = [(kap, mt) for kap in range(16) for mt in range(NT)]
    def rd(f):
        kap, mt = frs[f]
        if mt == 0: R.wait_vm(f"o{kap}")
        b = ORING + 4*(f % NB)
        off = (kap % 2)*slot
        R.lds_guard(2)
        R.lds(f"ds_read_b64_tr_b16 {vr(b,2)}, v{vWoR+mt} offset:{off}", f"f{f}")
        R.lds(f"ds_read_b64_tr_b16 {vr(b+2,2)}, v{vWoR+mt} offset:{off + 16*rowb}", f"f{f}")
    nbar = 0
    def upto(k):
        nonlocal nbar
        while nbar < k: bar(); nbar += 1
    for f in range(D): rd(f)
    rel = 3 if wide else 3
    for f, (kap, mt) in enumerate(frs):
        j, ks = divmod(kap, 4)
        if ks == 0 and mt == 0:
            upto(2*j + 3)
            R.wait_lg_all()
            for k2 in range(4):
                for nt in range(3):
                    R.lds(f"ds_read_b128 {vr(Of(k2,nt))}, v{vOR + (k2 & 1)} offset:{6144*(k2 >> 1) + 2048*nt}", f"of{k2}")
                if k2 == 2: R.wait_lg("of0")
            R.wait_lg_all()
        if ks == 2 and mt == 0 and j < 3:
            upto(2*j + 4)
        if f + D < len(frs): rd(f + D)
        R.wait_lg(f"f{f}")
        if kap + 2 < 16:
            last = NT*kap + NT - 1
            if wide and mt == rel:
                R.wait_lg(f"f{last}"); p_issue_wo(R, kap + 2, wide)
            if (not wide) and mt == NT-1:
                p_issue_wo(R, kap + 2, wide)
        for nt in range(3):
            d = Outa(mt, nt)
            c = "0" if kap == 0 else vr(d)
            a(f"v_mfma_f32_16x16x32_bf16 {vr(d)}, {vr(ORING + 4*(f % NB))}, {vr(Of(ks,nt))}, {c}")
    return nbar

def p_publish(R, wide):
    a = R.a
    NT = 8 if wide else 4
    a(f"v_mbcnt_lo_u32_b32 v{VT}, -1, 0"); a(f"v_mbcnt_hi_u32_b32 v{VT}, -1, v{VT}"); a(f"v_lshlrev_b32 v{VT}, 4, v{VT}")
    a(f"s_mul_i32 s{sT0}, s2, {PART}"); a(f"s_mul_i32 s{sT1}, s{sIDX}, {12*1024}"); a(f"s_add_u32 s{sT0}, s{sT0}, s{sT1}")
    k = 0
    for ip in range(NT//2):
        for nt in range(3):
            t = 0 + 4*(k % 8); k += 1
            d0, d1 = Outa(2*ip, nt), Outa(2*ip+1, nt)
            a(f"v_cvt_pk_bf16_f32 v{t}, v{d0}, v{d0+1}"); a(f"v_cvt_pk_bf16_f32 v{t+1}, v{d0+2}, v{d0+3}")
            a(f"v_cvt_pk_bf16_f32 v{t+2}, v{d1}, v{d1+1}"); a(f"v_cvt_pk_bf16_f32 v{t+3}, v{d1+2}, v{d1+3}")
            a(f"s_add_u32 s{sT1}, s{sT0}, {1024*(ip*3 + nt)}")
            if k > 8: R.wait_vm(f"pub{k-8}")
            R.vmem(f"buffer_store_dwordx4 {vr(t)}, v{VT}, {srd(SRD_WS)}, s{sT1} offen sc0 sc1", f"pub{k}")
    R.wait_vm_all()

def emit_reduce(a):
    a.label("L_tail")
    if cfg.stamps: stamp(a, 50)
    a("s_barrier")
    if cfg.stamps: stamp(a, 51)
    a(f"s_cmp_lg_u32 s{sWAVE}, 0")
    a("s_cbranch_scc1 L_tail_wait")
    a(f"s_lshl_b32 s{sT0}, s{sGRP}, 3")
    a(f"v_mov_b32 v0, s{sT0}"); a("v_mov_b32 v1, 1")
    a(f"s_mov_b64 s[{sEX}:{sEX+1}], exec")
    a("s_mov_b64 exec, 1")
    a(f"global_atomic_add v0, v1, s[{sDBG}:{sDBG+1}] sc1")
    a(f"s_mov_b32 s{sT2}, 0")
    a.label("L_poll")
    a(f"global_load_dword v2, v0, s[{sDBG}:{sDBG+1}] sc1")
    a("s_waitcnt vmcnt(0)")
    a(f"v_readfirstlane_b32 s{sT1}, v2")
    a(f"s_cmp_ge_u32 s{sT1}, 8")
    a("s_cbranch_scc1 L_poll_done")
    a(f"s_add_u32 s{sT2}, s{sT2}, 1")
    a(f"s_cmp_ge_u32 s{sT2}, 400000")
    a("s_cbranch_scc1 L_poll_done")
    a("s_sleep 1")
    a("s_branch L_poll")
    a.label("L_poll_done")
    a(f"s_mov_b64 exec, s[{sEX}:{sEX+1}]")
    a.label("L_tail_wait")
    a("s_barrier")
    if cfg.stamps: stamp(a, 52)
    a(f"s_min_u32 s{sT0}, s{sG}, 2"); a(f"s_mul_i32 s{sT1}, s{sG}, 5"); a(f"s_add_u32 s{sT0}, s{sT0}, s{sT1}")
    a(f"s_cmp_lt_u32 s{sG}, 2"); a(f"s_cselect_b32 s{sT1}, 6, 5")
    a(f"s_cmp_ge_u32 s{sWAVE}, s{sT1}")
    a("s_cbranch_scc1 " + ("L_nogather" if cfg.stamps else "L_end"))
    a(f"s_add_u32 s{sT0}, s{sT0}, s{sWAVE}")
    a("v_mbcnt_lo_u32_b32 v3, -1, 0"); a("v_mbcnt_hi_u32_b32 v3, -1, v3")
    a("v_lshlrev_b32 v6, 4, v3")
    a(f"s_lshl_b32 s{sT1}, s{sB}, 4"); a(f"s_lshl_b32 s{sT2}, s{sBR}, 2"); a(f"s_add_u32 s{sT1}, s{sT1}, s{sT2}")
    a(f"s_mul_i32 s{sT1}, s{sT1}, {PART}"); a(f"s_lshl_b32 s{sT2}, s{sT0}, 10"); a(f"s_add_u32 s{sT1}, s{sT1}, s{sT2}")
    for k in range(8):
        gb, gp = k >> 2, k & 3
        a(f"s_add_u32 s{sT2}, s{sT1}, {(gb*8 + gp)*PART}")
        a(f"buffer_load_dwordx4 {vr(64+4*k)}, v6, {srd(SRD_WS)}, s{sT2} offen sc0 sc1")
    a(f"s_mul_i32 s{sT2}, s{sT0}, 171"); a(f"s_lshr_b32 s{sT2}, s{sT2}, 9")
    a(f"s_mul_i32 s{sT3}, s{sT2}, 3"); a(f"s_sub_u32 s{sT3}, s{sT0}, s{sT3}")
    a(f"s_lshl_b32 s{sT3}, s{sT3}, 4"); a(f"s_mul_i32 s{sT1}, s{sB}, 48"); a(f"s_add_u32 s{sT3}, s{sT3}, s{sT1}")
    a(f"s_mul_i32 s{sT3}, s{sT3}, 1792"); a(f"s_lshl_b32 s{sT2}, s{sT2}, 6"); a(f"s_add_u32 s{sT3}, s{sT3}, s{sT2}")
    a(f"s_mul_i32 s{sT1}, s{sBR}, 896"); a(f"s_add_u32 s{sT3}, s{sT3}, s{sT1}")
    a("v_and_b32 v7, 15, v3"); a(f"s_mov_b32 s{sT1}, 1792"); a(f"v_mul_lo_u32 v7, s{sT1}, v7")
    a("v_bfe_u32 v8, v3, 4, 1"); a("v_lshl_add_u32 v7, v8, 5, v7")
    a("v_lshrrev_b32 v8, 5, v3"); a("v_lshl_add_u32 v7, v8, 4, v7")
    acc = 16
    a("s_waitcnt vmcnt(0)")
    for k in range(8):
        for r in range(4):
            src = 64 + 4*k + r
            if k == 0:
                a(f"v_lshlrev_b32 v{acc+2*r}, 16, v{src}"); a(f"v_and_b32 v{acc+2*r+1}, 0xffff0000, v{src}")
            else:
                a(f"v_lshlrev_b32 v9, 16, v{src}"); a(f"v_and_b32 v10, 0xffff0000, v{src}")
                a(f"v_add_f32 v{acc+2*r}, v{acc+2*r}, v9"); a(f"v_add_f32 v{acc+2*r+1}, v{acc+2*r+1}, v10")
    for r in range(4):
        a(f"v_cvt_pk_bf16_f32 v{12+r}, v{acc+2*r}, v{acc+2*r+1}")
    a("v_permlane16_swap_b32 v12, v14")
    a("v_permlane16_swap_b32 v13, v15")
    a(f"buffer_store_dwordx4 v[12:15], v7, {srd(SRD_OUT)}, s{sT3} offen")
    a("s_waitcnt vmcnt(0)")
    if cfg.stamps:
        a.label("L_nogather")
        stamp(a, 53)
        stamp_store(a)
    a.label("L_end")
    a("s_endpgm")

def build():
    a = Asm()
    if cfg.stamps:
        a("s_memrealtime s[72:73]"); a("s_waitcnt lgkmcnt(0)"); a("v_writelane_b32 v61, s72, 62")
    emit_prologue(a)
    cnt = {"n": 0}
    def bar():
        a("s_barrier")
        if cfg.stamps:
            stamp(a, cnt["n"])
        cnt["n"] += 1
    A = Role(a)
    a_setup(A)
    a_pf(A, "wq")
    bar()
    a_issue_KV(A, "K", 0)
    a_setup2(A)
    bar()
    bar()
    a_issue_KV(A, "K", 1)
    A.wait_vm("K0")
    bar()
    for k in range(8):
        if k >= 1: a_issue_KV(A, "K" if k+1 < 8 else "V", (k+1) % 8)
        if k == 5: a_pf(A, "wo")
        a_S(A, k)
        if k < 7: A.wait_vm(f"K{k+1}")
        bar()
    a_issue_KV(A, "V", 1)
    a_softmax(A)
    A.wait_vm("V0")
    bar()
    a_alpha(A)
    for n in range(8):
        if 1 <= n <= 6: a_issue_KV(A, "V", n+1)
        if n >= 2 and n % 2 == 0: a_xfinal(A)
        a_PV(A, n)
        if n % 2 == 1: a_xwrite(A)
        if n < 7: A.wait_vm(f"V{n+1}")
        bar()
    a_xfinal(A)
    bar()
    nA = cnt["n"]
    A.wait_vm_all()
    a("s_branch L_tail")
    a.label("L_P")
    cnt["n"] = 0
    P = Role(a)
    stamp_move(a, 39)
    if cfg.stamps: stamp(a, 55)
    if cfg.prio: a(f"s_setprio {cfg.prio}")
    p_setup(P)
    for kap in range(3): p_issue_wq(P, kap)
    if cfg.stamps: stamp(a, 56)
    bar()
    P.wait_vm("x"); bar()
    p_xfrags(P); bar()
    p_qproj_stream(P, bar, {13: 1, 17: 1, 20: 1, 24: 1, 27: 1})
    WIDE = []
    a(f"s_cmp_eq_u32 s{sIDX}, 3")
    a("s_cbranch_scc1 L_P3")
    base = cnt["n"]
    for wide in (True, False):
        if not wide:
            a.label("L_P3"); cnt["n"] = base
        Pw = Role(a)
        STREG[0] = 39
        stamp_move(a, 47)
        p_vsetup(Pw, wide)
        p_issue_wo(Pw, 0, wide); p_issue_wo(Pw, 1, wide)
        for _ in range(5): bar()
        nb = p_oproj_stream(Pw, bar, wide)
        assert nb == 9, nb
        if cfg.stamps: stamp(a, 59)
        p_publish(Pw, wide)
        assert cnt["n"] == nA, (cnt["n"], nA)
        stamp_move(a, 61)
        if wide: a("s_branch L_tail")
    emit_reduce(a)
    a.finalize()
    return a

HEADER = open("cdna_kernels/" + NAME + ".s.ref").read().split("; Override launch")[0]
def full_text(a):
    s = HEADER
    s += f"; @launch grid=(256,1,1) block=(512,1,1) lds={LDS_BYTES}\n"
    s += f'.amdgcn_target "amdgcn-amd-amdhsa--gfx950"\n.text\n.globl {NAME}_kernel\n.p2align 8\n.type {NAME}_kernel,@function\n{NAME}_kernel:\n'
    s += a.text()
    s += f""".section .rodata,"a"
.p2align 6
.amdhsa_kernel {NAME}_kernel
  .amdhsa_next_free_vgpr 256
  .amdhsa_next_free_sgpr 96
  .amdhsa_accum_offset 256
  .amdhsa_group_segment_fixed_size 0
  .amdhsa_kernarg_size 104
  .amdhsa_user_sgpr_count 2
  .amdhsa_user_sgpr_kernarg_segment_ptr 1
  .amdhsa_system_sgpr_workgroup_id_x 1
.end_amdhsa_kernel
"""
    return s

if __name__ == "__main__":
    out = sys.argv[1] if len(sys.argv) > 1 else "cdna_kernels/" + NAME + ".s"
    for kv in sys.argv[2:]:
        k, v = kv.split("=", 1)
        cur = getattr(cfg, k)
        if isinstance(cur, bool): v = v.lower() in ("1", "true")
        elif isinstance(cur, int): v = int(v)
        setattr(cfg, k, v)
    a = build()
    open(out, "w").write(full_text(a))
    print("wrote", out, "instrs:", sum(1 for i in a.ins if i.kind not in ('none','label')), "nops inserted:", a.nops_inserted)
```

```python
import sys, math, struct
from asmlib import Asm

NAME = "concat_heads__gqa_block_cached__gqa_block_cached__near_ridge"

class Cfg:
    k_flags = ""
    v_flags = ""
    w_flags = ""
    pf = False
    pf_flags = ""
    stamps = False
    prio = 0
    dq = 4
    pf_wo_at = 0
    sleep = 0
cfg = Cfg()

KVA, KVB = 0, 32768
WB = 65536
QB = 131072
OB = 122880
XB = 135168
FLG = 16 << 20
STAT = 159744
LDS_BYTES = 163840
PART = 43008
sWAVE, sIDX, sG, sB, sBR = 3, 4, 5, 6, 7
SRD_K, SRD_V, SRD_WQ, SRD_WO, SRD_X, SRD_OUT, SRD_WS = 8, 12, 16, 20, 24, 28, 32
sDBG = 58
sM0, sWp, sC, sXo, sT0, sT1, sT2, sT3 = 62, 63, 64, 65, 66, 67, 68, 69
sEX = 70
sGRP = 76
def srd(b): return f"s[{b}:{b+3}]"
def vr(b, n=4): return f"v[{b}:{b+n-1}]"
def f32bits(x): return struct.unpack('<I', struct.pack('<f', x))[0]
vL, vQ, vGq = 44, 46, 47

class Role:
    def __init__(self, a): self.a = a; self.vm = []; self.lg = []
    def vmem(self, text, tag): self.a(text); self.vm.append(tag)
    def lds(self, text, tag): self.a(text); self.lg.append(tag)
    def wait_vm(self, tag):
        idx = [i for i, t in enumerate(self.vm) if t == tag]
        if not idx: return
        n = len(self.vm) - 1 - idx[-1]
        assert n <= 63
        self.a(f"s_waitcnt vmcnt({n})"); self.vm = self.vm[idx[-1]+1:]
    def wait_lg(self, tag):
        idx = [i for i, t in enumerate(self.lg) if t == tag]
        if not idx: return
        n = len(self.lg) - 1 - idx[-1]
        assert n <= 15, n
        self.a(f"s_waitcnt lgkmcnt({n})"); self.lg = self.lg[idx[-1]+1:]
    def wait_vm_all(self): self.a("s_waitcnt vmcnt(0)"); self.vm = []
    def wait_lg_all(self): self.a("s_waitcnt lgkmcnt(0)"); self.lg = []
    def lds_guard(self, n_new):
        if len(self.lg) + n_new > 15:
            keep = 15 - n_new
            self.a(f"s_waitcnt lgkmcnt({keep})"); self.lg = self.lg[len(self.lg)-keep:] if keep else []

STREG = [61]
def stamp(a, idx):
    a("s_memrealtime s[72:73]")
    a("s_waitcnt lgkmcnt(0)")
    a(f"v_writelane_b32 v{STREG[0]}, s72, {idx}")
def stamp_move(a, new):
    if cfg.stamps:
        a(f"v_mov_b32 v{new}, v{STREG[0]}")
    STREG[0] = new
def stamp_store(a):
    a(f"s_lshl_b32 s{sT0}, s2, 3"); a(f"s_add_u32 s{sT0}, s{sT0}, s{sWAVE}"); a(f"s_lshl_b32 s{sT0}, s{sT0}, 8")
    a("v_mbcnt_lo_u32_b32 v60, -1, 0"); a("v_mbcnt_hi_u32_b32 v60, -1, v60")
    a(f"v_lshlrev_b32 v60, 2, v60"); a(f"v_add_u32 v60, s{sT0}, v60")
    a("s_add_u32 s74, s60, 0x2000000"); a("s_addc_u32 s75, s61, 0")
    a("global_store_dword v60, v61, s[74:75]")
    a("s_waitcnt vmcnt(0)")

def emit_prologue(a):
    a("s_cmp_ge_u32 s2, 256")
    a("s_cbranch_scc1 L_end")
    a("s_load_dwordx16 s[36:51], s[0:1], 0")
    a("s_load_dwordx4 s[52:55], s[0:1], 64")
    a("s_load_dwordx4 s[56:59], s[0:1], 80")
    a("s_load_dwordx2 s[60:61], s[0:1], 96")
    a("v_and_b32 v44, 63, v0")
    a("v_lshrrev_b32 v45, 6, v0")
    a("v_and_b32 v46, 15, v44")
    a("v_lshrrev_b32 v47, 4, v44")
    a(f"v_readfirstlane_b32 s{sWAVE}, v45")
    a(f"s_bfe_u32 s{sBR}, s2, 0x10002")
    a(f"s_and_b32 s{sG}, s2, 3"); a(f"s_lshl_b32 s{sG}, s{sG}, 1")
    a(f"s_bfe_u32 s{sT0}, s2, 0x10003"); a(f"s_or_b32 s{sG}, s{sG}, s{sT0}")
    a(f"s_lshr_b32 s{sB}, s2, 4")
    a(f"s_and_b32 s{sIDX}, s{sWAVE}, 3")
    a(f"s_lshl_b32 s{sGRP}, s{sBR}, 4"); a(f"s_add_u32 s{sGRP}, s{sGRP}, s{sB}")
    a("s_waitcnt lgkmcnt(0)")
    if cfg.stamps: stamp(a, 54)
    a(f"s_cmp_eq_u32 s{sBR}, 0")
    for i in range(5):
        a(f"s_cselect_b64 s[{36+2*i}:{37+2*i}], s[{36+2*i}:{37+2*i}], s[{46+2*i}:{47+2*i}]")
    def mk(srdb, ptr, off_s, size):
        if off_s is None:
            a(f"s_mov_b32 s{srdb}, s{ptr}"); a(f"s_and_b32 s{srdb+1}, s{ptr+1}, 0xffff")
        else:
            a(f"s_add_u32 s{srdb}, s{ptr}, s{off_s}")
            a(f"s_addc_u32 s{srdb+1}, s{ptr+1}, 0")
            a(f"s_and_b32 s{srdb+1}, s{srdb+1}, 0xffff")
        if isinstance(size, int): a(f"s_mov_b32 s{srdb+2}, {size}")
        else: a(size)
        a(f"s_mov_b32 s{srdb+3}, 0x20000")
    a(f"s_mul_i32 s{sT1}, s{sB}, 43008")
    mk(SRD_X, 36, sT1, 43008)
    a(f"s_lshl_b32 s{sT1}, s{sG}, 10")
    mk(SRD_WQ, 42, sT1, f"s_sub_u32 s{SRD_WQ+2}, {448*8192}, s{sT1}")
    a(f"s_lshl_b32 s{sT0}, s{sB}, 3"); a(f"s_add_u32 s{sT0}, s{sT0}, s{sG}"); a(f"s_lshl_b32 s{sT0}, s{sT0}, 18")
    mk(SRD_K, 38, sT0, 262144)
    mk(SRD_V, 40, sT0, 262144)
    a(f"s_mul_i32 s{sT1}, s{sG}, 458752")
    mk(SRD_WO, 44, sT1, 458752)
    mk(SRD_OUT, 56, None, 16*48*896*2)
    mk(SRD_WS, 60, None, FLG + 32*256)
    a(f"s_mov_b32 s{sC}, 0x{f32bits(math.log2(math.e)/16.0):08x}")
    a(f"s_cmp_ge_u32 s{sWAVE}, 4")
    a("s_cbranch_scc1 L_P")

def S_(t, nt): return 64 + (t*3 + nt)*4
def Qf(s, nt): return (s*3 + nt)*4
KF = 24
vKdE, vKdO, vVd = 48, 49, 50

def a_setup(R):
    a = R.a
    a(f"s_lshl_b32 s{sM0}, s{sIDX}, 13")
    a(f"v_lshrrev_b32 v52, 3, v{vL}"); a("v_lshlrev_b32 v52, 9, v52")
    a(f"s_lshl_b32 s{sT1}, s{sIDX}, 15"); a(f"v_add_u32 v52, s{sT1}, v52")
    a(f"v_and_b32 v53, 7, v{vL}"); a(f"v_xor_b32 v54, v53, v{vGq}")
    a(f"v_lshl_add_u32 v{vKdE}, v54, 4, v52")
    a("v_xor_b32 v54, 4, v54"); a(f"v_lshl_add_u32 v{vKdO}, v54, 4, v52")
    a("v_lshrrev_b32 v54, 1, v53"); a(f"v_xor_b32 v54, v54, v{vGq}")
    a("v_lshl_add_u32 v54, v54, 5, v52")
    a(f"v_and_b32 v55, 1, v{vL}"); a(f"v_lshl_add_u32 v{vVd}, v55, 4, v54")

def a_setup2(R):
    a = R.a
    a(f"s_lshr_b32 s{sT0}, s{sIDX}, 1")
    a(f"s_and_b32 s{sT1}, s{sIDX}, 1")
    a(f"v_lshrrev_b32 v52, 1, v{vQ}")
    a(f"v_xor_b32 v53, v{vGq}, v52")
    a(f"v_xor_b32 v54, 4, v53")
    a(f"s_lshl_b32 s{sT2}, s{sT1}, 14")
    a(f"v_lshlrev_b32 v55, 7, v{vQ}")
    a(f"v_add_u32 v55, s{sT2}, v55")
    a(f"v_lshl_add_u32 v40, v53, 4, v55")
    a(f"v_lshl_add_u32 v41, v54, 4, v55")
    a(f"s_mul_i32 s{sT2}, s{sT0}, {48*128}")
    a(f"s_add_u32 s{sT2}, s{sT2}, {QB}")
    a(f"v_lshlrev_b32 v55, 7, v{vQ}")
    a(f"v_add_u32 v55, s{sT2}, v55")
    a(f"v_lshl_add_u32 v42, v53, 4, v55")
    a(f"v_lshl_add_u32 v43, v54, 4, v55")

def a_issue_KV(R, kind, n):
    a = R.a
    j, w = n >> 1, n & 1
    buf = KVA if w == 0 else KVB
    for ii in range(8):
        a(f"s_add_u32 m0, s{sM0}, {buf + 1024*ii}")
        a(f"s_mov_b32 s{sT1}, {131072*w + 128*j + 4096*ii}")
        if kind == "K":
            R.vmem(f"buffer_load_dwordx4 v{vKdE + (ii & 1)}, {srd(SRD_K)}, s{sT1} offen {cfg.k_flags} lds", f"K{n}")
        else:
            R.vmem(f"buffer_load_dwordx4 v{vVd}, {srd(SRD_V)}, s{sT1} offen {cfg.v_flags} lds", f"V{n}")

def a_pf(R, which):
    a = R.a
    if not cfg.pf: return
    if which == "wq":
        a(f"v_lshrrev_b32 v52, 3, v{vL}"); a("v_lshlrev_b32 v52, 13, v52")
        a(f"v_and_b32 v53, 7, v{vL}"); a("v_lshl_add_u32 v52, v53, 7, v52")
        a(f"s_mul_i32 s{sT2}, s{sB}, 28"); a(f"s_lshl_b32 s{sT3}, s{sIDX}, 3"); a(f"s_add_u32 s{sT2}, s{sT2}, s{sT3}")
        a(f"s_lshl_b32 s{sT2}, s{sT2}, 13")
        R.vmem(f"buffer_load_dword v63, v52, {srd(SRD_WQ)}, s{sT2} offen {cfg.pf_flags}", "pf")
    else:
        a(f"v_lshlrev_b32 v52, 7, v{vL}")
        a(f"s_mul_i32 s{sT2}, s{sB}, 28672"); a(f"s_lshl_b32 s{sT3}, s{sIDX}, 13"); a(f"s_add_u32 s{sT2}, s{sT2}, s{sT3}")
        R.vmem(f"buffer_load_dword v62, v52, {srd(SRD_WO)}, s{sT2} offen {cfg.pf_flags}", "pf")

def a0_flag_zero(R):
    a = R.a
    a(f"s_or_b32 s{sT0}, s{sG}, s{sIDX}"); a(f"s_cmp_lg_u32 s{sT0}, 0"); a("s_cbranch_scc1 L_fz_skip")
    a(f"s_lshl_b32 s{sT0}, s{sGRP}, 8"); a(f"s_add_u32 s{sT0}, s{sT0}, {FLG}")
    a(f"v_lshlrev_b32 v52, 2, v{vL}"); a("v_mov_b32 v53, 0")
    a(f"s_mov_b64 s[{sEX}:{sEX+1}], exec"); a("s_mov_b64 exec, 0xff")
    a(f"buffer_store_dword v53, v52, {srd(SRD_WS)}, s{sT0} offen sc0 sc1")
    a(f"s_mov_b64 exec, s[{sEX}:{sEX+1}]")
    a("s_waitcnt vmcnt(0)")
    a(f"s_lshl_b32 s{sT0}, s{sGRP}, 2"); a(f"v_mov_b32 v52, s{sT0}"); a("v_mov_b32 v53, 1")
    a("s_mov_b64 exec, 1")
    a(f"global_store_dword v52, v53, s[{sDBG}:{sDBG+1}] sc0 sc1")
    a(f"s_mov_b64 exec, s[{sEX}:{sEX+1}]")
    a("s_waitcnt vmcnt(0)")
    a.label("L_fz_skip")

def a_flag_load(R):
    a = R.a
    a(f"s_lshl_b32 s{sT0}, s{sGRP}, 2"); a(f"v_mov_b32 v56, s{sT0}")
    R.vmem(f"global_load_dword v57, v56, s[{sDBG}:{sDBG+1}] sc0 sc1", "chk")

def a_flag_check(R):
    a = R.a
    R.wait_vm("chk")
    a(f"s_mov_b32 s{sT2}, 0")
    a.label("L_fc_poll")
    a(f"v_readfirstlane_b32 s{sT1}, v57")
    a(f"s_cmp_eq_u32 s{sT1}, 1"); a("s_cbranch_scc1 L_fc_skip")
    a(f"s_add_u32 s{sT2}, s{sT2}, 1"); a(f"s_cmp_ge_u32 s{sT2}, 400000"); a("s_cbranch_scc1 L_fc_skip")
    a("s_sleep 2")
    a(f"global_load_dword v57, v56, s[{sDBG}:{sDBG+1}] sc0 sc1")
    a("s_waitcnt vmcnt(0)")
    a("s_branch L_fc_poll")
    a.label("L_fc_skip")

def a_S(R, n):
    a = R.a
    j, w = n >> 1, n & 1
    buf = KVA if w == 0 else KVB
    if w == 0:
        for s in range(2):
            for nt in range(3):
                R.lds(f"ds_read_b128 {vr(Qf(s,nt))}, v{42+s} offset:{12288*(j & 1) + 2048*nt}", "q")
    frs = [(i, s) for i in range(8) for s in range(2)]
    NB = 4
    def rd(k):
        i, s = frs[k]
        R.lds(f"ds_read_b128 {vr(KF + 4*(k % NB))}, v{40+s} offset:{buf + 2048*i}", f"kf{k}")
    for k in range(NB-1): rd(k)
    for k, (i, s) in enumerate(frs):
        if k + NB - 1 < len(frs): rd(k + NB - 1)
        R.wait_lg(f"kf{k}")
        for nt in range(3):
            d = S_(8*w + i, nt)
            c = "0" if (j == 0 and s == 0) else vr(d)
            a(f"v_mfma_f32_16x16x32_bf16 {vr(d)}, {vr(KF + 4*(k % NB))}, {vr(Qf(s,nt))}, {c}")

vAL, vMX, vLS = 0, 3, 6
ONES = 12
def Pf(w, s, nt): return S_(8*w + 2*s, nt)
def Oa(mt, nt): return S_(2*mt + 1, nt)
def XT(i, nt): return S_(9 + 2*i, nt)
def LA(nt): return S_(13, nt)

def a_softmax(R):
    a = R.a
    for nt in range(3):
        m = vMX + nt
        vals = [S_(t, nt) + r for t in range(16) for r in range(4)]
        a(f"v_max3_f32 v{m}, v{vals[0]}, v{vals[1]}, v{vals[2]}")
        a(f"v_max3_f32 v9, v{vals[3]}, v{vals[4]}, v{vals[5]}")
        k = 6
        while k + 3 < len(vals):
            a(f"v_max3_f32 v{m}, v{m}, v{vals[k]}, v{vals[k+1]}")
            a(f"v_max3_f32 v9, v9, v{vals[k+2]}, v{vals[k+3]}")
            k += 4
        a(f"v_max3_f32 v{m}, v{m}, v{vals[62]}, v{vals[63]}")
        a(f"v_max_f32 v{m}, v{m}, v9")
    for nt in range(3):
        m = vMX + nt
        a(f"v_mov_b32 v9, v{m}")
        a(f"v_permlane32_swap_b32 v9, v{m}")
        a(f"v_max_f32 v{m}, v9, v{m}")
        a(f"v_mov_b32 v9, v{m}")
        a(f"v_permlane16_swap_b32 v9, v{m}")
        a(f"v_max_f32 v{m}, v9, v{m}")
        a(f"v_mul_f32 v{m}, s{sC}, v{m}")
    for r in range(4): a(f"v_mov_b32 v{ONES+r}, 0x3f803f80")
    for t0 in range(0, 16, 2):
        for nt in range(3):
            m = vMX + nt
            src = [S_(t0, nt) + r for r in range(4)] + [S_(t0+1, nt) + r for r in range(4)]
            for v in src: a(f"v_fma_f32 v{v}, v{v}, s{sC}, -v{m}")
            for v in src: a(f"v_exp_f32 v{v}, v{v}")
            d = S_(t0, nt)
            a(f"v_cvt_pk_bf16_f32 v{d}, v{src[0]}, v{src[1]}")
            a(f"v_cvt_pk_bf16_f32 v{d+1}, v{src[2]}, v{src[3]}")
            a(f"v_cvt_pk_bf16_f32 v{d+2}, v{src[4]}, v{src[5]}")
            a(f"v_cvt_pk_bf16_f32 v{d+3}, v{src[6]}, v{src[7]}")
    for w in range(2):
        for s in range(4):
            for nt in range(3):
                c = "0" if (w == 0 and s == 0) else vr(LA(nt))
                a(f"v_mfma_f32_16x16x32_bf16 {vr(LA(nt))}, {vr(ONES)}, {vr(Pf(w,s,nt))}, {c}")
    a(f"s_and_b32 s{sT1}, s{sIDX}, 1")
    a(f"v_lshrrev_b32 v51, 2, v{vL}")
    a(f"v_lshrrev_b32 v52, 1, v51"); a("v_and_b32 v52, 3, v52")
    a(f"s_lshl_b32 s{sT2}, s{sT1}, 14")
    a(f"v_lshlrev_b32 v53, 7, v51"); a(f"v_add_u32 v53, s{sT2}, v53")
    a(f"v_and_b32 v54, 3, v{vL}"); a(f"v_lshl_add_u32 v53, v54, 3, v53")
    a(f"s_lshl_b32 s{sT2}, s{sT1}, 1")
    a(f"v_xor_b32 v52, s{sT2}, v52")
    for mt in range(4):
        a(f"v_xor_b32 v54, {mt}, v52")
        a(f"v_lshl_add_u32 v{40+mt}, v54, 5, v53")
    a(f"s_mul_i32 s{sT2}, s{sIDX}, 6144"); a(f"s_add_u32 s{sT2}, s{sT2}, {XB}")
    a(f"v_lshlrev_b32 v55, 4, v{vL}"); a(f"v_add_u32 v56, s{sT2}, v55")
    a(f"s_xor_b32 s{sT2}, s{sIDX}, 1"); a(f"s_mul_i32 s{sT2}, s{sT2}, 6144"); a(f"s_add_u32 s{sT2}, s{sT2}, {XB}")
    a(f"v_add_u32 v57, s{sT2}, v55")
    a(f"s_lshr_b32 s{sT0}, s{sIDX}, 1"); a(f"s_mul_i32 s{sT2}, s{sT0}, {48*128}"); a(f"s_add_u32 s{sT2}, s{sT2}, {OB}")
    a(f"v_lshlrev_b32 v58, 7, v{vQ}"); a(f"v_add_u32 v58, s{sT2}, v58")
    a(f"s_lshl_b32 s{sT3}, s{sT1}, 2")
    a(f"v_or_b32 v54, s{sT3}, v{vGq}")
    a(f"v_lshrrev_b32 v55, 1, v{vQ}"); a("v_xor_b32 v54, v54, v55")
    a("v_lshl_add_u32 v58, v54, 4, v58")
    a(f"s_mul_i32 s{sT0}, s{sIDX}, 384"); a(f"s_add_u32 s{sT0}, s{sT0}, {STAT}")
    a(f"v_lshlrev_b32 v59, 3, v{vQ}"); a(f"v_add_u32 v59, s{sT0}, v59")
    a(f"s_xor_b32 s{sT1}, s{sIDX}, 1"); a(f"s_mul_i32 s{sT1}, s{sT1}, 384"); a(f"s_add_u32 s{sT1}, s{sT1}, {STAT}")
    a(f"v_lshlrev_b32 v60, 3, v{vQ}"); a(f"v_add_u32 v60, s{sT1}, v60")
    for nt in range(3):
        a(f"v_mov_b32 v{vLS+nt}, v{LA(nt)}")
    for nt in range(3):
        a(f"v_mov_b32 v{16+2*nt}, v{vMX+nt}"); a(f"v_mov_b32 v{17+2*nt}, v{vLS+nt}")
    for nt in range(3):
        R.lds(f"ds_write_b64 v59, v[{16+2*nt}:{17+2*nt}] offset:{128*nt}", "st")
    R.wait_lg_all()

def a_alpha(R):
    a = R.a
    for nt in range(3):
        R.lds(f"ds_read_b64 v[{16+2*nt}:{17+2*nt}], v60 offset:{128*nt}", "st")
    R.wait_lg_all()
    for nt in range(3):
        mo, lo = 16 + 2*nt, 17 + 2*nt
        m, l = vMX + nt, vLS + nt
        a(f"v_max_f32 v9, v{m}, v{mo}")
        a(f"v_sub_f32 v10, v{m}, v9"); a(f"v_sub_f32 v11, v{mo}, v9")
        a("v_exp_f32 v10, v10"); a("v_exp_f32 v11, v11")
        a(f"v_mul_f32 v9, v{l}, v10")
        a(f"v_fma_f32 v9, v{lo}, v11, v9")
        a("v_rcp_f32 v9, v9")
        a(f"v_mul_f32 v{vAL+nt}, v10, v9")

def a_PV(R, n):
    a = R.a
    j, w = n >> 1, n & 1
    buf = KVA if w == 0 else KVB
    frs = [(s, mt) for s in range(4) for mt in range(4)]
    NB = 4
    def rd(k):
        s, mt = frs[k]
        b = KF + 4*(k % NB)
        R.lds(f"ds_read_b64_tr_b16 {vr(b,2)}, v{40+mt} offset:{buf + 4096*s}", f"vf{k}")
        R.lds(f"ds_read_b64_tr_b16 {vr(b+2,2)}, v{40+mt} offset:{buf + 4096*s + 2048}", f"vf{k}")
    for k in range(NB-1): rd(k)
    for k, (s, mt) in enumerate(frs):
        if k + NB - 1 < len(frs): rd(k + NB - 1)
        R.wait_lg(f"vf{k}")
        for nt in range(3):
            d = Oa(mt, nt)
            c = "0" if (w == 0 and s == 0) else vr(d)
            a(f"v_mfma_f32_16x16x32_bf16 {vr(d)}, {vr(KF + 4*(k % NB))}, {vr(Pf(w,s,nt))}, {c}")

def a_xwrite(R):
    a = R.a
    for mt in (2, 3, 0, 1):
        for nt in range(3):
            for r in range(4):
                v = Oa(mt, nt) + r
                a(f"v_mul_f32 v{v}, v{vAL+nt}, v{v}")
            if mt >= 2:
                R.lds(f"ds_write_b128 v56, {vr(Oa(mt,nt))} offset:{((mt-2)*3+nt)*1024}", "xw")
    R.wait_lg_all()

def a_xfinal(R):
    a = R.a
    for i in range(2):
        for nt in range(3):
            R.lds(f"ds_read_b128 {vr(XT(i,nt))}, v57 offset:{(i*3+nt)*1024}", f"xr{nt}{i}")
    R.wait_lg_all()
    for nt in range(3):
        for i in range(2):
            for r in range(4):
                a(f"v_add_f32 v{Oa(i,nt)+r}, v{Oa(i,nt)+r}, v{XT(i,nt)+r}")
        d = XT(0, nt)
        a(f"v_cvt_pk_bf16_f32 v{d}, v{Oa(0,nt)}, v{Oa(0,nt)+1}")
        a(f"v_cvt_pk_bf16_f32 v{d+1}, v{Oa(0,nt)+2}, v{Oa(0,nt)+3}")
        a(f"v_cvt_pk_bf16_f32 v{d+2}, v{Oa(1,nt)}, v{Oa(1,nt)+1}")
        a(f"v_cvt_pk_bf16_f32 v{d+3}, v{Oa(1,nt)+2}, v{Oa(1,nt)+3}")
        R.lds(f"ds_write_b128 v58, {vr(d)} offset:{2048*nt}", "ow")
    R.wait_lg_all()

PRING = 0
vWqD = 20
vWqR = 21
vQW = 25
PT = 26
def Xf(s, nt): return 40 + (s*3 + nt)*4
def Qa(mt, nt): return 208 + (mt*3 + nt)*4
NSLOT_Q = 4

def p_lane(a):
    a(f"v_mbcnt_lo_u32_b32 v{PT}, -1, 0"); a(f"v_mbcnt_hi_u32_b32 v{PT}, -1, v{PT}")
    a(f"v_and_b32 v{PT+1}, 15, v{PT}"); a(f"v_lshrrev_b32 v{PT+2}, 4, v{PT}")

def p_setup(R):
    a = R.a
    l, q, g = PT, PT+1, PT+2
    p_lane(a)
    p = sIDX
    a(f"s_lshl_b32 s{sWp}, s{p}, 14"); a(f"s_add_u32 s{sWp}, s{sWp}, {WB}")
    a(f"s_mul_i32 s{sXo}, s{p}, 896")
    a(f"s_lshr_b32 s{sT0}, s{p}, 1")
    a(f"v_xor_b32 v{PT+3}, s{sT0}, v{l}"); a(f"v_lshlrev_b32 v{PT+3}, 4, v{PT+3}")
    for k in range(4):
        a(f"v_xor_b32 v{PT+4+k}, {(2*k) << 4}, v{PT+3}")
    a(f"s_mov_b64 s[{sEX}:{sEX+1}], exec")
    a("s_mov_b32 exec_hi, 0x00ffffff")
    for ii in range(12):
        base = (KVB + 3584*ii) if ii < 8 else (QB + 3584*(ii-8))
        a(f"s_add_u32 m0, s{sXo}, {base}")
        a(f"s_add_u32 s{sT1}, s{sXo}, {3584*ii}")
        R.vmem(f"buffer_load_dwordx4 v{PT+4 + (ii % 4)}, {srd(SRD_X)}, s{sT1} offen lds", "x")
    a(f"s_mov_b64 exec, s[{sEX}:{sEX+1}]")
    a(f"v_lshrrev_b32 v{PT+3}, 3, v{l}"); a(f"v_lshlrev_b32 v{PT+3}, 13, v{PT+3}")
    a(f"v_bfe_u32 v{PT+4}, v{l}, 1, 2"); a(f"v_xor_b32 v{PT+4}, v{PT+4}, v{g}")
    a(f"v_lshl_add_u32 v{PT+3}, v{PT+4}, 5, v{PT+3}")
    a(f"v_and_b32 v{PT+4}, 1, v{l}"); a(f"v_lshl_add_u32 v{PT+3}, v{PT+4}, 4, v{PT+3}")
    a(f"s_and_b32 s{sT0}, s{p}, 1"); a(f"s_lshl_b32 s{sT0}, s{sT0}, 9")
    a(f"s_lshr_b32 s{sT1}, s{p}, 1"); a(f"s_lshl_b32 s{sT1}, s{sT1}, 7"); a(f"s_add_u32 s{sT0}, s{sT0}, s{sT1}")
    a(f"v_add_u32 v{vWqD}, s{sT0}, v{PT+3}")

def p_issue_wq(R, kap):
    a = R.a
    J, s = divmod(kap, 14)
    for ii in range(4):
        a(f"s_add_u32 m0, s{sWp}, {(kap % NSLOT_Q)*4096 + 1024*ii}")
        a(f"s_mov_b32 s{sT1}, {(32*s + 8*ii)*8192 + 256*J}")
        R.vmem(f"buffer_load_dwordx4 v{vWqD}, {srd(SRD_WQ)}, s{sT1} offen {cfg.w_flags} lds", f"w{kap}")

def p_xfrags(R):
    a = R.a
    l, q, g = PT, PT+1, PT+2
    a(f"v_lshrrev_b32 v{PT+3}, 1, v{q}")
    a(f"v_lshrrev_b32 v{PT+4}, 1, v{g}"); a(f"v_xor_b32 v{PT+4}, v{PT+4}, v{PT+3}")
    a(f"s_mov_b32 s{sT0}, 896"); a(f"v_mul_lo_u32 v{PT+5}, s{sT0}, v{q}")
    a(f"v_and_b32 v{PT+6}, 1, v{g}"); a(f"v_lshl_add_u32 v{PT+5}, v{PT+6}, 3, v{PT+5}")
    a(f"v_add_u32 v{PT+5}, {KVB}, v{PT+5}")
    for k in range(4):
        a(f"v_xor_b32 v{PT+6}, {2*k}, v{PT+4}")
        a(f"v_lshl_add_u32 v{PT+7+k}, v{PT+6}, 4, v{PT+5}")
    for pas in range(2):
        for s in range(14):
            for nt in ((0, 1) if pas == 0 else (2,)):
                for half in range(2):
                    k = 2*(s & 1) + half
                    off = (14336*nt if pas == 0 else 0) + 128*(s >> 1)
                    R.lds_guard(1)
                    R.lds(f"ds_read_b64 {vr(Xf(s,nt)+2*half,2)}, v{PT+7+k} offset:{off}", "xf")
        if pas == 0:
            for k in range(4): a(f"v_add_u32 v{PT+7+k}, {QB-KVB}, v{PT+7+k}")
    a(f"v_lshrrev_b32 v{PT+3}, 2, v{l}")
    a(f"v_lshrrev_b32 v{PT+4}, 1, v{PT+3}"); a(f"v_and_b32 v{PT+4}, 3, v{PT+4}")
    a(f"v_lshlrev_b32 v{PT+5}, 7, v{PT+3}"); a(f"v_add_u32 v{PT+5}, s{sWp}, v{PT+5}")
    a(f"v_and_b32 v{PT+6}, 3, v{l}"); a(f"v_lshl_add_u32 v{PT+5}, v{PT+6}, 3, v{PT+5}")
    for mt in range(4):
        a(f"v_xor_b32 v{PT+6}, {mt}, v{PT+4}")
        a(f"v_lshl_add_u32 v{vWqR+mt}, v{PT+6}, 5, v{PT+5}")
    a(f"s_and_b32 s{sT0}, s{sIDX}, 1"); a(f"s_mul_i32 s{sT0}, s{sT0}, {48*128}")
    a(f"s_lshr_b32 s{sT1}, s{sIDX}, 1"); a(f"s_mul_i32 s{sT1}, s{sT1}, 12288")
    a(f"s_add_u32 s{sT0}, s{sT0}, s{sT1}"); a(f"s_add_u32 s{sT0}, s{sT0}, {QB}")
    a(f"v_lshlrev_b32 v{PT+5}, 7, v{q}"); a(f"v_add_u32 v{PT+5}, s{sT0}, v{PT+5}")
    a(f"v_and_b32 v{PT+6}, 1, v{g}"); a(f"v_lshl_add_u32 v{PT+5}, v{PT+6}, 3, v{PT+5}")
    a(f"v_lshrrev_b32 v{PT+6}, 1, v{g}"); a(f"v_lshrrev_b32 v{PT+3}, 1, v{q}"); a(f"v_xor_b32 v{PT+6}, v{PT+6}, v{PT+3}")
    a(f"v_lshl_add_u32 v{vQW}, v{PT+6}, 4, v{PT+5}")
    R.wait_lg_all()

def p_qcompute(R, kaps, stream_next):
    a = R.a
    D = cfg.dq; NB = D + 1
    frs = [(kap, mt) for kap in kaps for mt in range(4)]
    def rd(f):
        kap, mt = frs[f]
        if mt == 0: R.wait_vm(f"w{kap}")
        b = PRING + 4*(f % NB)
        off = (kap % NSLOT_Q)*4096
        R.lds(f"ds_read_b64_tr_b16 {vr(b,2)}, v{vWqR+mt} offset:{off}", f"f{kap}_{mt}")
        R.lds(f"ds_read_b64_tr_b16 {vr(b+2,2)}, v{vWqR+mt} offset:{off + 2048}", f"f{kap}_{mt}")
    for f in range(min(D, len(frs))): rd(f)
    for f, (kap, mt) in enumerate(frs):
        J, s = divmod(kap, 14)
        if f + D < len(frs): rd(f + D)
        R.wait_lg(f"f{kap}_{mt}")
        if stream_next and mt == 3 and kap + NSLOT_Q < 28: p_issue_wq(R, kap + NSLOT_Q)
        for nt in range(3):
            d = Qa(mt, nt)
            c = "0" if s == 0 else vr(d)
            a(f"v_mfma_f32_16x16x32_bf16 {vr(d)}, {vr(PRING + 4*(f % NB))}, {vr(Xf(s,nt))}, {c}")
        if mt == 3 and s == 13:
            a.comment(f"---- write Q super-chunk {J}")
            k = 0
            for m2 in range(4):
                a(f"v_xor_b32 v{PT+8}, {32*m2}, v{vQW}")
                for nt in range(3):
                    d = Qa(m2, nt)
                    t = PT + 2*(k % 4); k += 1
                    a(f"v_cvt_pk_bf16_f32 v{t}, v{d}, v{d+1}")
                    a(f"v_cvt_pk_bf16_f32 v{t+1}, v{d+2}, v{d+3}")
                    R.lds_guard(1)
                    R.lds(f"ds_write_b64 v{PT+8}, {vr(t,2)} offset:{2048*nt}", "qw")
            R.wait_lg("qw")

ORING = 0
vWoD = 32
vWoR = 34
vOR = 42
VT = 48
def Outa(i, nt): return 64 + (i*3 + nt)*4
def Of(ks, nt): return 160 + (ks*3 + nt)*4

def p_vsetup(R, wide):
    a = R.a
    l, q, g = VT, VT+1, VT+2
    a(f"v_mbcnt_lo_u32_b32 v{l}, -1, 0"); a(f"v_mbcnt_hi_u32_b32 v{l}, -1, v{l}")
    a(f"v_and_b32 v{q}, 15, v{l}"); a(f"v_lshrrev_b32 v{g}, 4, v{l}")
    a(f"s_lshl_b32 s{sWp}, s{sIDX}, 14"); a(f"s_add_u32 s{sWp}, s{sWp}, {WB}")
    a(f"s_lshl_b32 s{sT0}, s{sIDX}, 8")
    if wide:
        a(f"v_bfe_u32 v{VT+3}, v{l}, 1, 3"); a(f"v_xor_b32 v{VT+3}, v{VT+3}, v{g}")
        a(f"s_mov_b32 s{sT1}, 896"); a(f"v_mul_lo_u32 v{VT+4}, s{sT1}, v{g}")
        a(f"v_and_b32 v{VT+5}, 1, v{l}"); a(f"v_lshl_add_u32 v{VT+4}, v{VT+5}, 4, v{VT+4}")
        a(f"v_add_u32 v{VT+4}, s{sT0}, v{VT+4}")
        a(f"v_lshl_add_u32 v{vWoD}, v{VT+3}, 5, v{VT+4}")
        a(f"v_xor_b32 v{VT+3}, 4, v{VT+3}"); a(f"v_lshl_add_u32 v{vWoD+1}, v{VT+3}, 5, v{VT+4}")
        a(f"v_lshrrev_b32 v{VT+3}, 2, v{l}"); a(f"v_and_b32 v{VT+4}, 7, v{VT+3}")
        a(f"v_lshlrev_b32 v{VT+5}, 8, v{VT+3}"); a(f"v_add_u32 v{VT+5}, s{sWp}, v{VT+5}")
        a(f"v_and_b32 v{VT+6}, 3, v{l}"); a(f"v_lshl_add_u32 v{VT+5}, v{VT+6}, 3, v{VT+5}")
        for mt in range(8):
            a(f"v_xor_b32 v{VT+6}, {mt}, v{VT+4}")
            a(f"v_lshl_add_u32 v{vWoR+mt}, v{VT+6}, 5, v{VT+5}")
    else:
        a(f"v_lshrrev_b32 v{VT+3}, 3, v{l}"); a(f"s_mov_b32 s{sT1}, 896"); a(f"v_mul_lo_u32 v{VT+4}, s{sT1}, v{VT+3}")
        a(f"v_bfe_u32 v{VT+3}, v{l}, 1, 2"); a(f"v_xor_b32 v{VT+3}, v{VT+3}, v{g}")
        a(f"v_lshl_add_u32 v{VT+4}, v{VT+3}, 5, v{VT+4}")
        a(f"v_and_b32 v{VT+5}, 1, v{l}"); a(f"v_lshl_add_u32 v{VT+4}, v{VT+5}, 4, v{VT+4}")
        a(f"v_add_u32 v{vWoD}, s{sT0}, v{VT+4}")
        a(f"v_lshrrev_b32 v{VT+3}, 2, v{l}")
        a(f"v_lshrrev_b32 v{VT+4}, 1, v{VT+3}"); a(f"v_and_b32 v{VT+4}, 3, v{VT+4}")
        a(f"v_lshlrev_b32 v{VT+5}, 7, v{VT+3}"); a(f"v_add_u32 v{VT+5}, s{sWp}, v{VT+5}")
        a(f"v_and_b32 v{VT+6}, 3, v{l}"); a(f"v_lshl_add_u32 v{VT+5}, v{VT+6}, 3, v{VT+5}")
        for mt in range(4):
            a(f"v_xor_b32 v{VT+6}, {mt}, v{VT+4}")
            a(f"v_lshl_add_u32 v{vWoR+mt}, v{VT+6}, 5, v{VT+5}")
    a(f"v_lshrrev_b32 v{VT+3}, 1, v{q}"); a(f"v_xor_b32 v{VT+3}, v{g}, v{VT+3}")
    a(f"v_lshlrev_b32 v{VT+4}, 7, v{q}"); a(f"v_add_u32 v{VT+4}, {OB}, v{VT+4}")
    a(f"v_lshl_add_u32 v{vOR}, v{VT+3}, 4, v{VT+4}")
    a(f"v_xor_b32 v{VT+3}, 4, v{VT+3}"); a(f"v_lshl_add_u32 v{vOR+1}, v{VT+3}, 4, v{VT+4}")

def p_issue_wo(R, kap, wide, alt=False):
    a = R.a
    j, ks = divmod(kap, 4); h, s = divmod(ks, 2)
    row0 = 256*h + 64*j + 32*s
    slot = 8192 if wide else 4096
    for ii in range(8 if wide else 4):
        off = (kap % 2)*slot + 1024*ii - (WB if alt else 0)
        if off >= 0: a(f"s_add_u32 m0, s{sWp}, {off}")
        else: a(f"s_sub_u32 m0, s{sWp}, {-off}")
        rows = 4*ii if wide else 8*ii
        a(f"s_mov_b32 s{sT1}, {(row0 + rows)*896}")
        pat = vWoD + ((ii & 1) if wide else 0)
        R.vmem(f"buffer_load_dwordx4 v{pat}, {srd(SRD_WO)}, s{sT1} offen {cfg.w_flags} lds", f"o{kap}")

def p_ofrags(R):
    a = R.a
    for k2 in range(4):
        for nt in range(3):
            R.lds_guard(1)
            R.lds(f"ds_read_b128 {vr(Of(k2,nt))}, v{vOR + (k2 & 1)} offset:{6144*(k2 >> 1) + 2048*nt}", f"of{k2}")

def p_ocompute(R, kaps, wide, addr=None):
    a = R.a
    NT = 8 if wide else 4
    D = 4; NB = 5
    slot = 8192 if wide else 4096
    rowb = 256 if wide else 128
    addr = addr or vWoR
    frs = [(kap, mt) for kap in kaps for mt in range(NT)]
    def rd(f):
        kap, mt = frs[f]
        if mt == 0: R.wait_vm(f"o{kap}")
        b = ORING + 4*(f % NB)
        off = (kap % 2)*slot
        R.lds_guard(2)
        R.lds(f"ds_read_b64_tr_b16 {vr(b,2)}, v{addr+mt} offset:{off}", f"f{kap}_{mt}")
        R.lds(f"ds_read_b64_tr_b16 {vr(b+2,2)}, v{addr+mt} offset:{off + 16*rowb}", f"f{kap}_{mt}")
    for f in range(D): rd(f)
    for f, (kap, mt) in enumerate(frs):
        j, ks = divmod(kap, 4)
        if f + D < len(frs): rd(f + D)
        R.wait_lg(f"f{kap}_{mt}")
        if mt == 0: R.wait_lg(f"of{ks}")
        for nt in range(3):
            d = Outa(mt, nt)
            c = "0" if kap == 0 else vr(d)
            a(f"v_mfma_f32_16x16x32_bf16 {vr(d)}, {vr(ORING + 4*(f % NB))}, {vr(Of(ks,nt))}, {c}")

def p_oproj_phase(R, bar, wide):
    a = R.a
    NT = 8 if wide else 4
    ALT = 208
    nbar = 0
    def upto(k):
        nonlocal nbar
        while nbar < k: bar(); nbar += 1
    for j in range(4):
        upto(2*j + 3)
        p_ofrags(R)
        p_ocompute(R, [4*j, 4*j+1], wide)
        if j < 3:
            p_issue_wo(R, 4*j+2, wide); p_issue_wo(R, 4*j+3, wide)
            upto(2*j + 4)
            if j == 2:
                p_issue_wo(R, 14, wide, alt=True); p_issue_wo(R, 15, wide, alt=True)
                for mt in range(NT): a(f"v_subrev_u32 v{ALT+mt}, {WB}, v{vWoR+mt}")
            p_ocompute(R, [4*j+2, 4*j+3], wide)
            p_issue_wo(R, 4*j+4, wide); p_issue_wo(R, 4*j+5, wide)
        else:
            p_ocompute(R, [14, 15], wide, addr=ALT)
    return nbar

def p_publish(R, wide):
    a = R.a
    NT = 8 if wide else 4
    a(f"v_mbcnt_lo_u32_b32 v{VT}, -1, 0"); a(f"v_mbcnt_hi_u32_b32 v{VT}, -1, v{VT}"); a(f"v_lshlrev_b32 v{VT}, 4, v{VT}")
    a(f"s_mul_i32 s{sT0}, s2, {PART}"); a(f"s_mul_i32 s{sT1}, s{sIDX}, {12*1024}"); a(f"s_add_u32 s{sT0}, s{sT0}, s{sT1}")
    k = 0
    for ip in range(NT//2):
        for nt in range(3):
            t = 0 + 4*(k % 8); k += 1
            d0, d1 = Outa(2*ip, nt), Outa(2*ip+1, nt)
            a(f"v_cvt_pk_bf16_f32 v{t}, v{d0}, v{d0+1}"); a(f"v_cvt_pk_bf16_f32 v{t+1}, v{d0+2}, v{d0+3}")
            a(f"v_cvt_pk_bf16_f32 v{t+2}, v{d1}, v{d1+1}"); a(f"v_cvt_pk_bf16_f32 v{t+3}, v{d1+2}, v{d1+3}")
            a(f"s_add_u32 s{sT1}, s{sT0}, {1024*(ip*3 + nt)}")
            if k > 8: R.wait_vm(f"pub{k-8}")
            R.vmem(f"buffer_store_dwordx4 {vr(t)}, v{VT}, {srd(SRD_WS)}, s{sT1} offen sc0 sc1", f"pub{k}")
    R.wait_vm_all()

def emit_reduce(a):
    a.label("L_tail")
    if cfg.stamps: stamp(a, 50)
    a("s_barrier")
    if cfg.stamps: stamp(a, 51)
    a(f"s_cmp_lg_u32 s{sWAVE}, 0")
    a("s_cbranch_scc1 L_tail_wait")
    a(f"s_lshl_b32 s{sT0}, s{sGRP}, 8"); a(f"s_add_u32 s{sT0}, s{sT0}, {FLG}")
    a("v_mbcnt_lo_u32_b32 v0, -1, 0"); a("v_mbcnt_hi_u32_b32 v0, -1, v0"); a("v_lshlrev_b32 v0, 2, v0")
    a(f"s_lshl_b32 s{sT1}, s{sG}, 2"); a(f"v_mov_b32 v2, s{sT1}"); a("v_mov_b32 v1, 1")
    a(f"s_mov_b64 s[{sEX}:{sEX+1}], exec")
    a("s_mov_b64 exec, 1")
    a(f"buffer_store_dword v1, v2, {srd(SRD_WS)}, s{sT0} offen sc0 sc1")
    a("s_mov_b64 exec, 0xff")
    a(f"s_mov_b32 s{sT2}, 0")
    a.label("L_poll")
    a(f"buffer_load_dword v3, v0, {srd(SRD_WS)}, s{sT0} offen sc0 sc1")
    a("s_waitcnt vmcnt(0)")
    a("v_cmp_eq_u32 vcc, 1, v3")
    a("s_nop 1")
    a("s_cmp_eq_u32 vcc_lo, 0xff")
    a("s_cbranch_scc1 L_poll_done")
    a(f"s_add_u32 s{sT2}, s{sT2}, 1")
    a(f"s_cmp_ge_u32 s{sT2}, 400000")
    a("s_cbranch_scc1 L_poll_done")
    if cfg.sleep: a(f"s_sleep {cfg.sleep}")
    a("s_branch L_poll")
    a.label("L_poll_done")
    a(f"s_mov_b64 exec, s[{sEX}:{sEX+1}]")
    a.label("L_tail_wait")
    a("s_barrier")
    if cfg.stamps: stamp(a, 52)
    a(f"s_min_u32 s{sT0}, s{sG}, 2"); a(f"s_mul_i32 s{sT1}, s{sG}, 5"); a(f"s_add_u32 s{sT0}, s{sT0}, s{sT1}")
    a(f"s_cmp_lt_u32 s{sG}, 2"); a(f"s_cselect_b32 s{sT1}, 6, 5")
    a(f"s_cmp_ge_u32 s{sWAVE}, s{sT1}")
    a("s_cbranch_scc1 " + ("L_nogather" if cfg.stamps else "L_end"))
    a(f"s_add_u32 s{sT0}, s{sT0}, s{sWAVE}")
    a("v_mbcnt_lo_u32_b32 v3, -1, 0"); a("v_mbcnt_hi_u32_b32 v3, -1, v3")
    a("v_lshlrev_b32 v6, 4, v3")
    a(f"s_lshl_b32 s{sT1}, s{sB}, 4"); a(f"s_lshl_b32 s{sT2}, s{sBR}, 2"); a(f"s_add_u32 s{sT1}, s{sT1}, s{sT2}")
    a(f"s_mul_i32 s{sT1}, s{sT1}, {PART}"); a(f"s_lshl_b32 s{sT2}, s{sT0}, 10"); a(f"s_add_u32 s{sT1}, s{sT1}, s{sT2}")
    for k in range(8):
        gb, gp = k >> 2, k & 3
        a(f"s_add_u32 s{sT2}, s{sT1}, {(gb*8 + gp)*PART}")
        a(f"buffer_load_dwordx4 {vr(64+4*k)}, v6, {srd(SRD_WS)}, s{sT2} offen sc0 sc1")
    a(f"s_mul_i32 s{sT2}, s{sT0}, 171"); a(f"s_lshr_b32 s{sT2}, s{sT2}, 9")
    a(f"s_mul_i32 s{sT3}, s{sT2}, 3"); a(f"s_sub_u32 s{sT3}, s{sT0}, s{sT3}")
    a(f"s_lshl_b32 s{sT3}, s{sT3}, 4"); a(f"s_mul_i32 s{sT1}, s{sB}, 48"); a(f"s_add_u32 s{sT3}, s{sT3}, s{sT1}")
    a(f"s_mul_i32 s{sT3}, s{sT3}, 1792"); a(f"s_lshl_b32 s{sT2}, s{sT2}, 6"); a(f"s_add_u32 s{sT3}, s{sT3}, s{sT2}")
    a(f"s_mul_i32 s{sT1}, s{sBR}, 896"); a(f"s_add_u32 s{sT3}, s{sT3}, s{sT1}")
    a("v_and_b32 v7, 15, v3"); a(f"s_mov_b32 s{sT1}, 1792"); a(f"v_mul_lo_u32 v7, s{sT1}, v7")
    a("v_bfe_u32 v8, v3, 4, 1"); a("v_lshl_add_u32 v7, v8, 5, v7")
    a("v_lshrrev_b32 v8, 5, v3"); a("v_lshl_add_u32 v7, v8, 4, v7")
    acc = 16
    a("s_waitcnt vmcnt(0)")
    for k in range(8):
        for r in range(4):
            src = 64 + 4*k + r
            if k == 0:
                a(f"v_lshlrev_b32 v{acc+2*r}, 16, v{src}"); a(f"v_and_b32 v{acc+2*r+1}, 0xffff0000, v{src}")
            else:
                a(f"v_lshlrev_b32 v9, 16, v{src}"); a(f"v_and_b32 v10, 0xffff0000, v{src}")
                a(f"v_add_f32 v{acc+2*r}, v{acc+2*r}, v9"); a(f"v_add_f32 v{acc+2*r+1}, v{acc+2*r+1}, v10")
    for r in range(4):
        a(f"v_cvt_pk_bf16_f32 v{12+r}, v{acc+2*r}, v{acc+2*r+1}")
    a("v_permlane16_swap_b32 v12, v14")
    a("v_permlane16_swap_b32 v13, v15")
    a(f"buffer_store_dwordx4 v[12:15], v7, {srd(SRD_OUT)}, s{sT3} offen")
    a("s_waitcnt vmcnt(0)")
    if cfg.stamps:
        a.label("L_nogather")
        stamp(a, 53)
        stamp_store(a)
    a.label("L_end")
    a("s_endpgm")

def build():
    a = Asm()
    if cfg.stamps:
        a("s_memrealtime s[72:73]"); a("s_waitcnt lgkmcnt(0)"); a("v_writelane_b32 v61, s72, 62")
    emit_prologue(a)
    cnt = {"n": 0}
    def bar():
        a("s_barrier")
        if cfg.stamps:
            stamp(a, cnt["n"])
        cnt["n"] += 1
    A = Role(a)
    a_setup(A)
    a_pf(A, "wq")
    bar()
    a_issue_KV(A, "K", 0)
    a_setup2(A)
    bar()
    bar()
    a_issue_KV(A, "K", 1)
    if cfg.pf_wo_at < 0: a_pf(A, "wo")
    A.wait_vm_all()
    a0_flag_zero(A)
    bar()
    for k in range(8):
        if k == 5: a_flag_load(A)
        if k >= 1: a_issue_KV(A, "K" if k+1 < 8 else "V", (k+1) % 8)
        if k == cfg.pf_wo_at: a_pf(A, "wo")
        a_S(A, k)
        if 1 <= k < 7: A.wait_vm(f"K{k+1}")
        if k == 5: a_flag_check(A)
        bar()
    a_issue_KV(A, "V", 1)
    a_softmax(A)
    A.wait_vm("V0")
    bar()
    a_alpha(A)
    for n in range(8):
        if 1 <= n <= 6: a_issue_KV(A, "V", n+1)
        if n >= 2 and n % 2 == 0: a_xfinal(A)
        a_PV(A, n)
        if n % 2 == 1: a_xwrite(A)
        if n < 7: A.wait_vm(f"V{n+1}")
        bar()
    a_xfinal(A)
    bar()
    nA = cnt["n"]
    A.wait_vm_all()
    a("s_branch L_tail")
    a.label("L_P")
    cnt["n"] = 0
    P = Role(a)
    stamp_move(a, 39)
    if cfg.stamps: stamp(a, 55)
    if cfg.prio: a(f"s_setprio {cfg.prio}")
    p_setup(P)
    for kap in range(NSLOT_Q): p_issue_wq(P, kap)
    if cfg.stamps: stamp(a, 56)
    bar()
    P.wait_vm("x"); bar()
    p_xfrags(P); bar()
    p_qcompute(P, list(range(14)), True)
    bar()
    for kaps, nxt in (([14,15,16,17], [18,19,20]), ([18,19,20], [21,22,23,24]), ([21,22,23,24], [25,26,27]), ([25,26,27], [])):
        p_qcompute(P, kaps, False)
        for kap in nxt: p_issue_wq(P, kap)
        bar()
    a(f"s_cmp_eq_u32 s{sIDX}, 3")
    a("s_cbranch_scc1 L_P3")
    base = cnt["n"]
    for wide in (True, False):
        if not wide:
            a.label("L_P3"); cnt["n"] = base
        Pw = Role(a)
        STREG[0] = 39
        stamp_move(a, 47)
        p_vsetup(Pw, wide)
        p_issue_wo(Pw, 0, wide); p_issue_wo(Pw, 1, wide)
        for _ in range(5): bar()
        nb = p_oproj_phase(Pw, bar, wide)
        assert nb == 9, nb
        if cfg.stamps: stamp(a, 59)
        p_publish(Pw, wide)
        assert cnt["n"] == nA, (cnt["n"], nA)
        stamp_move(a, 61)
        if wide: a("s_branch L_tail")
    emit_reduce(a)
    a.finalize()
    return a

HEADER = open("cdna_kernels/" + NAME + ".s.ref").read().split("; Override launch")[0]
def full_text(a):
    s = HEADER
    s += f"; @launch grid=(256,1,1) block=(512,1,1) lds={LDS_BYTES}\n"
    s += f'.amdgcn_target "amdgcn-amd-amdhsa--gfx950"\n.text\n.globl {NAME}_kernel\n.p2align 8\n.type {NAME}_kernel,@function\n{NAME}_kernel:\n'
    s += a.text()
    s += f""".section .rodata,"a"
.p2align 6
.amdhsa_kernel {NAME}_kernel
  .amdhsa_next_free_vgpr 256
  .amdhsa_next_free_sgpr 96
  .amdhsa_accum_offset 256
  .amdhsa_group_segment_fixed_size 0
  .amdhsa_kernarg_size 104
  .amdhsa_user_sgpr_count 2
  .amdhsa_user_sgpr_kernarg_segment_ptr 1
  .amdhsa_system_sgpr_workgroup_id_x 1
.end_amdhsa_kernel
"""
    return s

if __name__ == "__main__":
    out = sys.argv[1] if len(sys.argv) > 1 else "cdna_kernels/" + NAME + ".s"
    for kv in sys.argv[2:]:
        k, v = kv.split("=", 1)
        cur = getattr(cfg, k)
        if isinstance(cur, bool): v = v.lower() in ("1", "true")
        elif isinstance(cur, int): v = int(v)
        setattr(cfg, k, v)
    a = build()
    open(out, "w").write(full_text(a))
    print("wrote", out, "instrs:", sum(1 for i in a.ins if i.kind not in ('none','label')), "nops inserted:", a.nops_inserted)
```

```python
import sys, math, struct
from asmlib import Asm

NAME = "concat_heads__gqa_block_cached__gqa_block_cached__near_ridge"

class Cfg:
    k_flags = "nt"
    v_flags = "nt"
    w_flags = ""
    pf = True
    pf_flags = ""
    stamps = False
    lstamps = False
    prioA = 0
    prioP = 0
    dq = 4
    pf_wo_at = 8
    k1_after = 9
    split_sm = True
    sleep = 0
    interleave = False
    pf_first = False
    wo_first_after = 7
    tst = False
    kst = False
cfg = Cfg()

KVA, KVB = 0, 32768
WB = 65536
QB = 131072
OB = 122880
XB = 135168
STAT = 159744
LDS_BYTES = 163840
PART = 43008
FLG = 16 << 20
FSTR = 8448
sWAVE, sIDX, sG, sB, sBR = 3, 4, 5, 6, 7
SRD_K, SRD_V, SRD_WQ, SRD_WO, SRD_X, SRD_OUT, SRD_WS = 8, 12, 16, 20, 24, 28, 32
sDBG = 58
sM0, sWp = 62, 63
sC = 64
sT0, sT1, sT2, sT3 = 66, 67, 68, 69
sEX = 70
sGRP, sXo = 76, 77
def srd(b): return f"s[{b}:{b+3}]"
def vr(b, n=4): return f"v[{b}:{b+n-1}]"
def f32bits(x): return struct.unpack('<I', struct.pack('<f', x))[0]
vL, vQ, vGq = 44, 46, 47

class Role:
    def __init__(self, a): self.a = a; self.vm = []; self.lg = []
    def vmem(self, text, tag): self.a(text); self.vm.append(tag)
    def lds(self, text, tag): self.a(text); self.lg.append(tag)
    def wait_vm(self, tag):
        idx = [i for i, t in enumerate(self.vm) if t == tag]
        if not idx: return
        n = len(self.vm) - 1 - idx[-1]
        assert n <= 63
        self.a(f"s_waitcnt vmcnt({n})"); self.vm = self.vm[idx[-1]+1:]
    def wait_lg(self, tag):
        idx = [i for i, t in enumerate(self.lg) if t == tag]
        if not idx: return
        n = len(self.lg) - 1 - idx[-1]
        assert n <= 15, n
        self.a(f"s_waitcnt lgkmcnt({n})"); self.lg = self.lg[idx[-1]+1:]
    def wait_vm_all(self): self.a("s_waitcnt vmcnt(0)"); self.vm = []
    def wait_lg_all(self): self.a("s_waitcnt lgkmcnt(0)"); self.lg = []
    def lds_guard(self, n_new):
        if len(self.lg) + n_new > 15:
            keep = 15 - n_new
            self.a(f"s_waitcnt lgkmcnt({keep})"); self.lg = self.lg[len(self.lg)-keep:] if keep else []

STREG = [61]
PEND = []
def stamp(a, idx):
    a("s_memrealtime s[72:73]")
    a("s_waitcnt lgkmcnt(0)")
    a(f"v_writelane_b32 v{STREG[0]}, s72, {idx}")
    for (sp, i2) in PEND: a(f"v_writelane_b32 v{STREG[0]}, s{sp}, {i2}")
    PEND.clear()
def lstamp(a, idx):
    if not cfg.lstamps: return
    sp = 78 + 2*len(PEND)
    assert sp <= 98
    a(f"s_memrealtime s[{sp}:{sp+1}]")
    PEND.append((sp, idx))
def stamp_move(a, new):
    if cfg.stamps: a(f"v_mov_b32 v{new}, v{STREG[0]}")
    STREG[0] = new
def stamp_store(a):
    a(f"s_lshl_b32 s{sT0}, s2, 3"); a(f"s_add_u32 s{sT0}, s{sT0}, s{sWAVE}"); a(f"s_lshl_b32 s{sT0}, s{sT0}, 8")
    a("v_mbcnt_lo_u32_b32 v60, -1, 0"); a("v_mbcnt_hi_u32_b32 v60, -1, v60")
    a(f"v_lshlrev_b32 v60, 2, v60"); a(f"v_add_u32 v60, s{sT0}, v60")
    a("s_add_u32 s74, s60, 0x2000000"); a("s_addc_u32 s75, s61, 0")
    a("global_store_dword v60, v61, s[74:75]")
    a("s_waitcnt vmcnt(0)")

def emit_prologue(a):
    a("s_cmp_ge_u32 s2, 256")
    a("s_cbranch_scc1 L_end")
    a("s_load_dwordx16 s[36:51], s[0:1], 0")
    a("s_load_dwordx4 s[52:55], s[0:1], 64")
    a("s_load_dwordx4 s[56:59], s[0:1], 80")
    a("s_load_dwordx2 s[60:61], s[0:1], 96")
    a("v_and_b32 v44, 63, v0")
    a("v_lshrrev_b32 v45, 6, v0")
    a("v_and_b32 v46, 15, v44")
    a("v_lshrrev_b32 v47, 4, v44")
    a(f"v_readfirstlane_b32 s{sWAVE}, v45")
    a(f"s_bfe_u32 s{sBR}, s2, 0x10002")
    a(f"s_and_b32 s{sG}, s2, 3"); a(f"s_lshl_b32 s{sG}, s{sG}, 1")
    a(f"s_bfe_u32 s{sT0}, s2, 0x10003"); a(f"s_or_b32 s{sG}, s{sG}, s{sT0}")
    a(f"s_lshr_b32 s{sB}, s2, 4")
    a(f"s_and_b32 s{sIDX}, s{sWAVE}, 3")
    a(f"s_lshl_b32 s{sGRP}, s{sBR}, 4"); a(f"s_add_u32 s{sGRP}, s{sGRP}, s{sB}")
    a(f"s_mov_b32 s{sC}, 0x{f32bits(math.log2(math.e)/16.0):08x}"); a(f"s_mov_b32 s{sC+1}, s{sC}")
    a("s_waitcnt lgkmcnt(0)")
    if cfg.stamps: stamp(a, 54)
    a(f"s_cmp_eq_u32 s{sBR}, 0")
    for i in range(5):
        a(f"s_cselect_b64 s[{36+2*i}:{37+2*i}], s[{36+2*i}:{37+2*i}], s[{46+2*i}:{47+2*i}]")
    def mk(srdb, ptr, off_s, size):
        if off_s is None:
            a(f"s_mov_b32 s{srdb}, s{ptr}"); a(f"s_and_b32 s{srdb+1}, s{ptr+1}, 0xffff")
        else:
            a(f"s_add_u32 s{srdb}, s{ptr}, s{off_s}")
            a(f"s_addc_u32 s{srdb+1}, s{ptr+1}, 0")
            a(f"s_and_b32 s{srdb+1}, s{srdb+1}, 0xffff")
        if isinstance(size, int): a(f"s_mov_b32 s{srdb+2}, {size}")
        else: a(size)
        a(f"s_mov_b32 s{srdb+3}, 0x20000")
    a(f"s_mul_i32 s{sT1}, s{sB}, 43008")
    mk(SRD_X, 36, sT1, 43008)
    a(f"s_lshl_b32 s{sT1}, s{sG}, 10")
    mk(SRD_WQ, 42, sT1, f"s_sub_u32 s{SRD_WQ+2}, {448*8192}, s{sT1}")
    a(f"s_lshl_b32 s{sT0}, s{sB}, 3"); a(f"s_add_u32 s{sT0}, s{sT0}, s{sG}"); a(f"s_lshl_b32 s{sT0}, s{sT0}, 18")
    mk(SRD_K, 38, sT0, 262144)
    mk(SRD_V, 40, sT0, 262144)
    a(f"s_mul_i32 s{sT1}, s{sG}, 458752")
    mk(SRD_WO, 44, sT1, 458752)
    mk(SRD_OUT, 56, None, 16*48*896*2)
    mk(SRD_WS, 60, None, FLG + 32*FSTR)
    a(f"s_cmp_ge_u32 s{sWAVE}, 4")
    a("s_cbranch_scc1 L_P")

def wq_dma_pattern(a, dst, l, g, t0, t1):
    a(f"v_lshrrev_b32 v{t0}, 3, v{l}"); a(f"v_lshlrev_b32 v{t0}, 13, v{t0}")
    a(f"v_bfe_u32 v{t1}, v{l}, 1, 2"); a(f"v_xor_b32 v{t1}, v{t1}, v{g}")
    a(f"v_lshl_add_u32 v{t0}, v{t1}, 5, v{t0}")
    a(f"v_and_b32 v{t1}, 1, v{l}"); a(f"v_lshl_add_u32 v{t0}, v{t1}, 4, v{t0}")
    a(f"s_and_b32 s{sT0}, s{sIDX}, 1"); a(f"s_lshl_b32 s{sT0}, s{sT0}, 9")
    a(f"s_lshr_b32 s{sT1}, s{sIDX}, 1"); a(f"s_lshl_b32 s{sT1}, s{sT1}, 7"); a(f"s_add_u32 s{sT0}, s{sT0}, s{sT1}")
    a(f"v_add_u32 v{dst}, s{sT0}, v{t0}")

NSLOT_Q = 4
def wq_dma(R, kap, vpat, ii_list=range(4)):
    a = R.a
    J, s = divmod(kap, 14)
    for ii in ii_list:
        a(f"s_add_u32 m0, s{sWp}, {(kap % NSLOT_Q)*4096 + 1024*ii}")
        a(f"s_mov_b32 s{sT1}, {(32*s + 8*ii)*8192 + 256*J}")
        R.vmem(f"buffer_load_dwordx4 v{vpat}, {srd(SRD_WQ)}, s{sT1} offen {cfg.w_flags} lds", f"w{kap}")

def S_(t, nt): return 64 + (t*3 + nt)*4
def Qf(s, nt): return (s*3 + nt)*4
KF = 24
vKdE, vKdO, vVd, vWqA = 48, 49, 50, 51

def a_setup(R):
    a = R.a
    a(f"s_lshl_b32 s{sM0}, s{sIDX}, 13")
    a(f"s_lshl_b32 s{sWp}, s{sIDX}, 14"); a(f"s_add_u32 s{sWp}, s{sWp}, {WB}")
    if cfg.pf:
        a(f"v_lshrrev_b32 v52, 3, v{vL}"); a("v_lshlrev_b32 v52, 13, v52")
        a(f"v_and_b32 v53, 7, v{vL}"); a("v_lshl_add_u32 v56, v53, 7, v52")
        a(f"s_mul_i32 s{sT2}, s{sB}, 28"); a(f"s_lshl_b32 s{sT3}, s{sIDX}, 3"); a(f"s_add_u32 s{sT2}, s{sT2}, s{sT3}")
        a(f"s_lshl_b32 s{sT2}, s{sT2}, 13")

def a_pf(R, which):
    a = R.a
    if not cfg.pf: return
    if which == "wq":
        R.vmem(f"buffer_load_dword v63, v56, {srd(SRD_WQ)}, s{sT2} offen {cfg.pf_flags}", "pf")
    else:
        a(f"v_lshlrev_b32 v58, 7, v{vL}")
        a(f"s_mul_i32 s{sT2}, s{sB}, 28672"); a(f"s_lshl_b32 s{sT3}, s{sIDX}, 13"); a(f"s_add_u32 s{sT2}, s{sT2}, s{sT3}")
        R.vmem(f"buffer_load_dword v62, v58, {srd(SRD_WO)}, s{sT2} offen {cfg.pf_flags}", "pf")

def a_setup2(R):
    a = R.a
    wq_dma_pattern(a, vWqA, vL, vGq, 52, 53)
    a(f"v_lshrrev_b32 v52, 3, v{vL}"); a("v_lshlrev_b32 v52, 9, v52")
    a(f"s_lshl_b32 s{sT1}, s{sIDX}, 15"); a(f"v_add_u32 v52, s{sT1}, v52")
    a(f"v_and_b32 v53, 7, v{vL}"); a(f"v_xor_b32 v54, v53, v{vGq}")
    a(f"v_lshl_add_u32 v{vKdE}, v54, 4, v52")
    a("v_xor_b32 v54, 4, v54"); a(f"v_lshl_add_u32 v{vKdO}, v54, 4, v52")
    a("v_lshrrev_b32 v54, 1, v53"); a(f"v_xor_b32 v54, v54, v{vGq}")
    a("v_lshl_add_u32 v54, v54, 5, v52")
    a(f"v_and_b32 v55, 1, v{vL}"); a(f"v_lshl_add_u32 v{vVd}, v55, 4, v54")

def a_setup3(R):
    a = R.a
    a(f"s_lshr_b32 s{sT0}, s{sIDX}, 1")
    a(f"s_and_b32 s{sT1}, s{sIDX}, 1")
    a(f"v_lshrrev_b32 v52, 1, v{vQ}")
    a(f"v_xor_b32 v53, v{vGq}, v52")
    a(f"v_xor_b32 v54, 4, v53")
    a(f"s_lshl_b32 s{sT2}, s{sT1}, 14")
    a(f"v_lshlrev_b32 v55, 7, v{vQ}")
    a(f"v_add_u32 v55, s{sT2}, v55")
    a(f"v_lshl_add_u32 v40, v53, 4, v55")
    a(f"v_lshl_add_u32 v41, v54, 4, v55")
    a(f"s_mul_i32 s{sT2}, s{sT0}, {48*128}")
    a(f"s_add_u32 s{sT2}, s{sT2}, {QB}")
    a(f"v_lshlrev_b32 v55, 7, v{vQ}")
    a(f"v_add_u32 v55, s{sT2}, v55")
    a(f"v_lshl_add_u32 v42, v53, 4, v55")
    a(f"v_lshl_add_u32 v43, v54, 4, v55")

def kv_dma(R, kind, n, ii):
    a = R.a
    j, w = n >> 1, n & 1
    buf = KVA if w == 0 else KVB
    a(f"s_add_u32 m0, s{sM0}, {buf + 1024*ii}")
    a(f"s_mov_b32 s{sT1}, {131072*w + 128*j + 4096*ii}")
    if kind == "K":
        R.vmem(f"buffer_load_dwordx4 v{vKdE + (ii & 1)}, {srd(SRD_K)}, s{sT1} offen {cfg.k_flags} lds", f"K{n}")
    else:
        R.vmem(f"buffer_load_dwordx4 v{vVd}, {srd(SRD_V)}, s{sT1} offen {cfg.v_flags} lds", f"V{n}")
def a_issue_KV(R, kind, n):
    R.a.comment(f"---- issue {kind} window {n}")
    for ii in range(8): kv_dma(R, kind, n, ii)

def a0_flag_zero(R):
    a = R.a
    a(f"s_or_b32 s{sT0}, s{sG}, s{sIDX}"); a(f"s_cmp_lg_u32 s{sT0}, 0"); a("s_cbranch_scc1 L_fz_skip")
    a(f"s_mul_i32 s{sT0}, s{sGRP}, {FSTR}"); a(f"s_add_u32 s{sT0}, s{sT0}, {FLG}")
    a(f"v_lshlrev_b32 v52, 2, v{vL}"); a("v_mov_b32 v53, 0")
    a(f"s_mov_b64 s[{sEX}:{sEX+1}], exec"); a("s_mov_b32 exec_hi, 0")
    a(f"buffer_store_dword v53, v52, {srd(SRD_WS)}, s{sT0} offen sc0 sc1")
    a(f"s_mov_b64 exec, s[{sEX}:{sEX+1}]")
    a("s_waitcnt vmcnt(0)")
    a(f"s_lshl_b32 s{sT0}, s{sGRP}, 2"); a(f"v_mov_b32 v52, s{sT0}"); a("v_mov_b32 v53, 1")
    a("s_mov_b64 exec, 1")
    a(f"global_store_dword v52, v53, s[{sDBG}:{sDBG+1}] sc0 sc1")
    a(f"s_mov_b64 exec, s[{sEX}:{sEX+1}]")
    a("s_waitcnt vmcnt(0)")
    a.label("L_fz_skip")

def a_flag_load(R):
    a = R.a
    a(f"s_lshl_b32 s{sT0}, s{sGRP}, 2"); a(f"v_mov_b32 v58, s{sT0}")
    R.vmem(f"global_load_dword v59, v58, s[{sDBG}:{sDBG+1}] sc0 sc1", "chk")
def a_flag_check(R):
    a = R.a
    R.wait_vm("chk")
    a(f"s_mov_b32 s{sT2}, 0")
    a.label("L_fc_poll")
    a(f"v_readfirstlane_b32 s{sT1}, v59")
    a(f"s_cmp_eq_u32 s{sT1}, 1"); a("s_cbranch_scc1 L_fc_skip")
    a(f"s_add_u32 s{sT2}, s{sT2}, 1"); a(f"s_cmp_ge_u32 s{sT2}, 400000"); a("s_cbranch_scc1 L_fc_skip")
    a("s_sleep 2")
    a(f"global_load_dword v59, v58, s[{sDBG}:{sDBG+1}] sc0 sc1")
    a("s_waitcnt vmcnt(0)")
    a("s_branch L_fc_poll")
    a.label("L_fc_skip")

def a_S(R, n, dma=None):
    a = R.a
    j, w = n >> 1, n & 1
    buf = KVA if w == 0 else KVB
    if w == 0:
        for s in range(2):
            for nt in range(3):
                R.lds(f"ds_read_b128 {vr(Qf(s,nt))}, v{42+s} offset:{12288*(j & 1) + 2048*nt}", "q")
    frs = [(i, s) for i in range(8) for s in range(2)]
    NB = 4
    def rd(k):
        i, s = frs[k]
        R.lds(f"ds_read_b128 {vr(KF + 4*(k % NB))}, v{40+s} offset:{buf + 2048*i}", f"kf{k}")
    for k in range(NB-1): rd(k)
    if dma and not cfg.interleave:
        for ii in range(8): kv_dma(R, dma[0], dma[1], ii)
        dma = None
    for k, (i, s) in enumerate(frs):
        if k + NB - 1 < len(frs): rd(k + NB - 1)
        if dma and k < 8: kv_dma(R, dma[0], dma[1], k)
        R.wait_lg(f"kf{k}")
        for nt in range(3):
            d = S_(8*w + i, nt)
            c = "0" if (j == 0 and s == 0) else vr(d)
            a(f"v_mfma_f32_16x16x32_bf16 {vr(d)}, {vr(KF + 4*(k % NB))}, {vr(Qf(s,nt))}, {c}")

M1 = (52, 54, 56)
L1 = (53, 55, 57)
BETA = (0, 2, 4); ALO = (6, 8, 10); ALP = (12, 14, 16)
ONES1, ONES2 = 36, 20
def Pf(w, s, nt): return S_(8*w + 2*s, nt)
def Oa(mt, nt): return S_(2*mt + 1, nt)
def XT(i, nt): return S_(9 + 2*i, nt)

def _rowmax(a, tiles, dst, tmp):
    for nt in range(3):
        m = dst[nt]
        vals = [S_(t, nt) + r for t in tiles for r in range(4)]
        a(f"v_max3_f32 v{m}, v{vals[0]}, v{vals[1]}, v{vals[2]}")
        a(f"v_max3_f32 v{tmp}, v{vals[3]}, v{vals[4]}, v{vals[5]}")
        k = 6
        while k + 3 < len(vals):
            a(f"v_max3_f32 v{m}, v{m}, v{vals[k]}, v{vals[k+1]}")
            a(f"v_max3_f32 v{tmp}, v{tmp}, v{vals[k+2]}, v{vals[k+3]}")
            k += 4
        rest = vals[k:]
        assert len(rest) == 2
        a(f"v_max3_f32 v{m}, v{m}, v{rest[0]}, v{rest[1]}")
        a(f"v_max_f32 v{m}, v{m}, v{tmp}")
    for nt in range(3):
        m = dst[nt]
        a(f"v_mov_b32 v{tmp+nt}, v{m}")
    for nt in range(3):
        a(f"v_permlane32_swap_b32 v{tmp+nt}, v{dst[nt]}")
    for nt in range(3):
        a(f"v_max_f32 v{dst[nt]}, v{tmp+nt}, v{dst[nt]}")
    for nt in range(3):
        a(f"v_mov_b32 v{tmp+nt}, v{dst[nt]}")
    for nt in range(3):
        a(f"v_permlane16_swap_b32 v{tmp+nt}, v{dst[nt]}")
    for nt in range(3):
        a(f"v_max_f32 v{dst[nt]}, v{tmp+nt}, v{dst[nt]}")
        a(f"v_mul_f32 v{dst[nt]}, s{sC}, v{dst[nt]}")

def _exppack(a, t0s, mreg):
    for t0 in t0s:
        for nt in range(3):
            m = mreg[nt]
            b0, b1 = S_(t0, nt), S_(t0+1, nt)
            for b in (b0, b0+2, b1, b1+2):
                a(f"v_pk_fma_f32 {vr(b,2)}, {vr(b,2)}, s[{sC}:{sC+1}], {vr(m,2)} op_sel_hi:[1,1,0] neg_lo:[0,0,1] neg_hi:[0,0,1]")
            src = [b0+r for r in range(4)] + [b1+r for r in range(4)]
            for v in src: a(f"v_exp_f32 v{v}, v{v}")
            a(f"v_cvt_pk_bf16_f32 v{b0}, v{src[0]}, v{src[1]}")
            a(f"v_cvt_pk_bf16_f32 v{b0+1}, v{src[2]}, v{src[3]}")
            a(f"v_cvt_pk_bf16_f32 v{b0+2}, v{src[4]}, v{src[5]}")
            a(f"v_cvt_pk_bf16_f32 v{b0+3}, v{src[6]}, v{src[7]}")

def _rowsum(a, w, ones, acc):
    for r in range(4): a(f"v_mov_b32 v{ones+r}, 0x3f803f80")
    for s in range(4):
        for nt in range(3):
            c = "0" if s == 0 else vr(acc(nt))
            a(f"v_mfma_f32_16x16x32_bf16 {vr(acc(nt))}, {vr(ones)}, {vr(Pf(w,s,nt))}, {c}")

def a_softmax1(R):
    a = R.a
    _rowmax(a, range(0, 8), M1, 24)
    _exppack(a, (0, 2, 4, 6), M1)
    _rowsum(a, 0, ONES1, lambda nt: S_(1, nt))
    for nt in range(3): a(f"v_mov_b32 v{L1[nt]}, v{S_(1,nt)}")

def a_softmax2(R):
    a = R.a
    M2 = (24, 26, 28)
    _rowmax(a, range(8, 16), M2, 30)
    for nt in range(3):
        a(f"v_max_f32 v{M2[nt]}, v{M2[nt]}, v{M1[nt]}")
        a(f"v_sub_f32 v{BETA[nt]}, v{M1[nt]}, v{M2[nt]}")
    for nt in range(3): a(f"v_exp_f32 v{BETA[nt]}, v{BETA[nt]}")
    _exppack(a, (8, 10, 12, 14), M2)
    _rowsum(a, 1, ONES2, lambda nt: S_(13, nt))
    a_vaddr(R)
    for nt in range(3):
        a(f"v_fma_f32 v{M2[nt]+1}, v{BETA[nt]}, v{L1[nt]}, v{S_(13,nt)}")
    for nt in range(3):
        R.lds(f"ds_write_b64 v59, {vr(M2[nt],2)} offset:{128*nt}", "st")
    R.wait_lg_all()

vXW, vXR, vOW = 52, 53, 54
def a_vaddr(R):
    a = R.a
    a(f"s_and_b32 s{sT1}, s{sIDX}, 1")
    a(f"v_lshrrev_b32 v32, 2, v{vL}")
    a(f"v_lshrrev_b32 v33, 1, v32"); a("v_and_b32 v33, 3, v33")
    a(f"s_lshl_b32 s{sT2}, s{sT1}, 14")
    a(f"v_lshlrev_b32 v34, 7, v32"); a(f"v_add_u32 v34, s{sT2}, v34")
    a(f"v_and_b32 v35, 3, v{vL}"); a(f"v_lshl_add_u32 v34, v35, 3, v34")
    a(f"s_lshl_b32 s{sT2}, s{sT1}, 1")
    a(f"v_xor_b32 v33, s{sT2}, v33")
    for mt in range(4):
        a(f"v_xor_b32 v35, {mt}, v33")
        a(f"v_lshl_add_u32 v{40+mt}, v35, 5, v34")
    a(f"s_mul_i32 s{sT0}, s{sIDX}, 384"); a(f"s_add_u32 s{sT0}, s{sT0}, {STAT}")
    a(f"v_lshlrev_b32 v59, 3, v{vQ}"); a(f"v_add_u32 v59, s{sT0}, v59")
    a(f"s_xor_b32 s{sT1}, s{sIDX}, 1"); a(f"s_mul_i32 s{sT1}, s{sT1}, 384"); a(f"s_add_u32 s{sT1}, s{sT1}, {STAT}")
    a(f"v_lshlrev_b32 v60, 3, v{vQ}"); a(f"v_add_u32 v60, s{sT1}, v60")

def a_alpha(R):
    a = R.a
    M2 = (24, 26, 28)
    for nt in range(3):
        R.lds(f"ds_read_b64 v[{32+2*nt}:{33+2*nt}], v60 offset:{128*nt}", "st")
    a(f"s_mul_i32 s{sT2}, s{sIDX}, 6144"); a(f"s_add_u32 s{sT2}, s{sT2}, {XB}")
    a(f"v_lshlrev_b32 v55, 4, v{vL}"); a(f"v_add_u32 v{vXW}, s{sT2}, v55")
    a(f"s_xor_b32 s{sT2}, s{sIDX}, 1"); a(f"s_mul_i32 s{sT2}, s{sT2}, 6144"); a(f"s_add_u32 s{sT2}, s{sT2}, {XB}")
    a(f"v_add_u32 v{vXR}, s{sT2}, v55")
    a(f"s_and_b32 s{sT1}, s{sIDX}, 1")
    a(f"s_lshr_b32 s{sT0}, s{sIDX}, 1"); a(f"s_mul_i32 s{sT2}, s{sT0}, {48*128}"); a(f"s_add_u32 s{sT2}, s{sT2}, {OB}")
    a(f"v_lshlrev_b32 v{vOW}, 7, v{vQ}"); a(f"v_add_u32 v{vOW}, s{sT2}, v{vOW}")
    a(f"s_lshl_b32 s{sT3}, s{sT1}, 2")
    a(f"v_or_b32 v55, s{sT3}, v{vGq}")
    a(f"v_lshrrev_b32 v56, 1, v{vQ}"); a("v_xor_b32 v55, v55, v56")
    a(f"v_lshl_add_u32 v{vOW}, v55, 4, v{vOW}")
    R.wait_lg_all()
    for nt in range(3):
        mo, lo = 32 + 2*nt, 33 + 2*nt
        m, l = M2[nt], M2[nt] + 1
        a(f"v_max_f32 v38, v{m}, v{mo}")
        a(f"v_sub_f32 v{ALO[nt]}, v{m}, v38"); a(f"v_sub_f32 v{ALP[nt]}, v{mo}, v38")
        a(f"v_exp_f32 v{ALO[nt]}, v{ALO[nt]}"); a(f"v_exp_f32 v{ALP[nt]}, v{ALP[nt]}")
        a(f"v_mul_f32 v38, v{l}, v{ALO[nt]}")
        a(f"v_fma_f32 v38, v{lo}, v{ALP[nt]}, v38")
        a("v_rcp_f32 v38, v38")
        a(f"v_mul_f32 v{ALO[nt]}, v{ALO[nt]}, v38"); a(f"v_mul_f32 v{ALP[nt]}, v{ALP[nt]}, v38")

def a_PV(R, n, dma=None):
    a = R.a
    j, w = n >> 1, n & 1
    buf = KVA if w == 0 else KVB
    frs = [(s, mt) for s in range(4) for mt in range(4)]
    NB = 4
    def rd(k):
        s, mt = frs[k]
        b = KF + 4*(k % NB)
        R.lds(f"ds_read_b64_tr_b16 {vr(b,2)}, v{40+mt} offset:{buf + 4096*s}", f"vf{k}")
        R.lds(f"ds_read_b64_tr_b16 {vr(b+2,2)}, v{40+mt} offset:{buf + 4096*s + 2048}", f"vf{k}")
    for k in range(NB-1): rd(k)
    if dma and not cfg.interleave:
        for ii in range(8): kv_dma(R, dma[0], dma[1], ii)
        dma = None
    for k, (s, mt) in enumerate(frs):
        if k + NB - 1 < len(frs): rd(k + NB - 1)
        if dma and k < 8: kv_dma(R, dma[0], dma[1], k)
        R.wait_lg(f"vf{k}")
        for nt in range(3):
            d = Oa(mt, nt)
            c = "0" if (w == 0 and s == 0) else vr(d)
            a(f"v_mfma_f32_16x16x32_bf16 {vr(d)}, {vr(KF + 4*(k % NB))}, {vr(Pf(w,s,nt))}, {c}")

def a_rescale(R):
    a = R.a
    for mt in range(4):
        for nt in range(3):
            for h2 in (0, 2):
                b = Oa(mt, nt) + h2
                a(f"v_pk_mul_f32 {vr(b,2)}, {vr(b,2)}, {vr(BETA[nt],2)} op_sel_hi:[1,0]")

def a_xwrite(R):
    a = R.a
    for mt in (2, 3):
        for nt in range(3):
            R.lds(f"ds_write_b128 v{vXW}, {vr(Oa(mt,nt))} offset:{((mt-2)*3+nt)*1024}", "xw")

def a_xfinal(R, dma=None):
    a = R.a
    for nt in range(3):
        for i in range(2):
            R.lds(f"ds_read_b128 {vr(XT(i,nt))}, v{vXR} offset:{(i*3+nt)*1024}", f"xr{nt}")
    if dma:
        for ii in range(8): kv_dma(R, dma[0], dma[1], ii)
    for nt in range(3):
        for i in range(2):
            for h2 in (0, 2):
                b = Oa(i, nt) + h2
                a(f"v_pk_mul_f32 {vr(b,2)}, {vr(b,2)}, {vr(ALO[nt],2)} op_sel_hi:[1,0]")
    for nt in range(3):
        R.wait_lg(f"xr{nt}")
        for i in range(2):
            for h2 in (0, 2):
                b, x = Oa(i, nt) + h2, XT(i, nt) + h2
                a(f"v_pk_fma_f32 {vr(b,2)}, {vr(x,2)}, {vr(ALP[nt],2)}, {vr(b,2)} op_sel_hi:[1,0,1]")
        d = XT(0, nt)
        a(f"v_cvt_pk_bf16_f32 v{d}, v{Oa(0,nt)}, v{Oa(0,nt)+1}")
        a(f"v_cvt_pk_bf16_f32 v{d+1}, v{Oa(0,nt)+2}, v{Oa(0,nt)+3}")
        a(f"v_cvt_pk_bf16_f32 v{d+2}, v{Oa(1,nt)}, v{Oa(1,nt)+1}")
        a(f"v_cvt_pk_bf16_f32 v{d+3}, v{Oa(1,nt)+2}, v{Oa(1,nt)+3}")
        R.lds(f"ds_write_b128 v{vOW}, {vr(d)} offset:{2048*nt}", "ow")

PRING = 0
vWqD = 20
vWqR = 21
vQW = 25
PT = 26
def Xf(s, nt): return 40 + (s*3 + nt)*4
def Qa(mt, nt): return 208 + (mt*3 + nt)*4

def p_lane(a):
    a(f"v_mbcnt_lo_u32_b32 v{PT}, -1, 0"); a(f"v_mbcnt_hi_u32_b32 v{PT}, -1, v{PT}")
    a(f"v_and_b32 v{PT+1}, 15, v{PT}"); a(f"v_lshrrev_b32 v{PT+2}, 4, v{PT}")

def p_setup(R):
    a = R.a
    l, q, g = PT, PT+1, PT+2
    p = sIDX
    p_lane(a)
    a(f"s_mul_i32 s{sXo}, s{p}, 896")
    a(f"s_lshr_b32 s{sT0}, s{p}, 1")
    a(f"v_xor_b32 v{PT+3}, s{sT0}, v{l}"); a(f"v_lshlrev_b32 v{PT+3}, 4, v{PT+3}")
    for k in range(4):
        a(f"v_xor_b32 v{PT+4+k}, {(2*k) << 4}, v{PT+3}")
    a(f"s_mov_b64 s[{sEX}:{sEX+1}], exec")
    a("s_mov_b32 exec_hi, 0x00ffffff")
    for ii in range(12):
        base = (KVB + 3584*ii) if ii < 8 else (QB + 3584*(ii-8))
        a(f"s_add_u32 m0, s{sXo}, {base}")
        a(f"s_add_u32 s{sT1}, s{sXo}, {3584*ii}")
        R.vmem(f"buffer_load_dwordx4 v{PT+4 + (ii % 4)}, {srd(SRD_X)}, s{sT1} offen lds", "x")
    a(f"s_mov_b64 exec, s[{sEX}:{sEX+1}]")

def p_setup2(R):
    a = R.a
    l, q, g = PT, PT+1, PT+2
    p = sIDX
    a(f"s_lshl_b32 s{sWp}, s{p}, 14"); a(f"s_add_u32 s{sWp}, s{sWp}, {WB}")
    wq_dma_pattern(a, vWqD, l, g, PT+3, PT+4)
    a(f"v_lshrrev_b32 v{PT+3}, 2, v{l}")
    a(f"v_lshrrev_b32 v{PT+4}, 1, v{PT+3}"); a(f"v_and_b32 v{PT+4}, 3, v{PT+4}")
    a(f"v_lshlrev_b32 v{PT+5}, 7, v{PT+3}"); a(f"v_add_u32 v{PT+5}, s{sWp}, v{PT+5}")
    a(f"v_and_b32 v{PT+6}, 3, v{l}"); a(f"v_lshl_add_u32 v{PT+5}, v{PT+6}, 3, v{PT+5}")
    for mt in range(4):
        a(f"v_xor_b32 v{PT+6}, {mt}, v{PT+4}")
        a(f"v_lshl_add_u32 v{vWqR+mt}, v{PT+6}, 5, v{PT+5}")
    a(f"s_and_b32 s{sT0}, s{sIDX}, 1"); a(f"s_mul_i32 s{sT0}, s{sT0}, {48*128}")
    a(f"s_lshr_b32 s{sT1}, s{sIDX}, 1"); a(f"s_mul_i32 s{sT1}, s{sT1}, 12288")
    a(f"s_add_u32 s{sT0}, s{sT0}, s{sT1}"); a(f"s_add_u32 s{sT0}, s{sT0}, {QB}")
    a(f"v_lshlrev_b32 v{PT+5}, 7, v{q}"); a(f"v_add_u32 v{PT+5}, s{sT0}, v{PT+5}")
    a(f"v_and_b32 v{PT+6}, 1, v{g}"); a(f"v_lshl_add_u32 v{PT+5}, v{PT+6}, 3, v{PT+5}")
    a(f"v_lshrrev_b32 v{PT+6}, 1, v{g}"); a(f"v_lshrrev_b32 v{PT+3}, 1, v{q}"); a(f"v_xor_b32 v{PT+6}, v{PT+6}, v{PT+3}")
    a(f"v_lshl_add_u32 v{vQW}, v{PT+6}, 4, v{PT+5}")
    a(f"v_lshrrev_b32 v{PT+3}, 1, v{q}")
    a(f"v_lshrrev_b32 v{PT+4}, 1, v{g}"); a(f"v_xor_b32 v{PT+4}, v{PT+4}, v{PT+3}")
    a(f"s_mov_b32 s{sT0}, 896"); a(f"v_mul_lo_u32 v{PT+5}, s{sT0}, v{q}")
    a(f"v_and_b32 v{PT+6}, 1, v{g}"); a(f"v_lshl_add_u32 v{PT+5}, v{PT+6}, 3, v{PT+5}")
    a(f"v_add_u32 v{PT+5}, {KVB}, v{PT+5}")
    for k in range(4):
        a(f"v_xor_b32 v{PT+6}, {2*k}, v{PT+4}")
        a(f"v_lshl_add_u32 v{PT+7+k}, v{PT+6}, 4, v{PT+5}")

def p_xfrags(R):
    a = R.a
    for pas in range(2):
        for s in range(14):
            for nt in ((0, 1) if pas == 0 else (2,)):
                for half in range(2):
                    k = 2*(s & 1) + half
                    off = (14336*nt if pas == 0 else 0) + 128*(s >> 1)
                    R.lds_guard(1)
                    R.lds(f"ds_read_b64 {vr(Xf(s,nt)+2*half,2)}, v{PT+7+k} offset:{off}", "xf")
        if pas == 0:
            R.wait_lg_all()
            for k in range(4): a(f"v_add_u32 v{PT+7+k}, {QB-KVB}, v{PT+7+k}")
    R.wait_lg_all()

def p_qcompute(R, kaps, stream_next, hooks=None):
    a = R.a
    D = cfg.dq; NB = D + 1
    hooks = hooks or {}
    frs = [(kap, mt) for kap in kaps for mt in range(4)]
    def rd(f):
        kap, mt = frs[f]
        if mt == 0: R.wait_vm(f"w{kap}")
        b = PRING + 4*(f % NB)
        off = (kap % NSLOT_Q)*4096
        R.lds(f"ds_read_b64_tr_b16 {vr(b,2)}, v{vWqR+mt} offset:{off}", f"f{kap}_{mt}")
        R.lds(f"ds_read_b64_tr_b16 {vr(b+2,2)}, v{vWqR+mt} offset:{off + 2048}", f"f{kap}_{mt}")
    for f in range(min(D, len(frs))): rd(f)
    for f, (kap, mt) in enumerate(frs):
        J, s = divmod(kap, 14)
        if f + D < len(frs): rd(f + D)
        R.wait_lg(f"f{kap}_{mt}")
        if cfg.kst and mt == 0 and kap < 14 and kap % 2 == 0: lstamp(a, 26 + kap // 2)
        for nt in range(3):
            d = Qa(mt, nt)
            c = "0" if s == 0 else vr(d)
            a(f"v_mfma_f32_16x16x32_bf16 {vr(d)}, {vr(PRING + 4*(f % NB))}, {vr(Xf(s,nt))}, {c}")
        if stream_next and mt == 3 and kap + NSLOT_Q < 14: wq_dma(R, kap + NSLOT_Q, vWqD)
        if mt == 3 and kap in hooks: hooks[kap]()
    last = kaps[-1]
    if last % 14 == 13:
        if cfg.kst and last == 13: lstamp(a, 33)
        k = 0
        for m2 in range(4):
            a(f"v_xor_b32 v{PT+8}, {32*m2}, v{vQW}")
            for nt in range(3):
                d = Qa(m2, nt)
                t = PT + 2*(k % 4); k += 1
                a(f"v_cvt_pk_bf16_f32 v{t}, v{d}, v{d+1}")
                a(f"v_cvt_pk_bf16_f32 v{t+1}, v{d+2}, v{d+3}")
                R.lds_guard(1)
                R.lds(f"ds_write_b64 v{PT+8}, {vr(t,2)} offset:{2048*nt}", "qw")
        R.wait_lg("qw")

ORING = 0
vWoD = 32
vWoR = 34
vOR = 42
VT = 48
ALT = 208
PUB = [216 + 4*i for i in range(10)] + [20, 24]
def Outa(i, nt): return 64 + (i*3 + nt)*4
def Of(ks, nt): return 160 + (ks*3 + nt)*4

def p_vsetup(R, wide):
    a = R.a
    l, q, g = VT, VT+1, VT+2
    a(f"v_mbcnt_lo_u32_b32 v{l}, -1, 0"); a(f"v_mbcnt_hi_u32_b32 v{l}, -1, v{l}")
    a(f"v_and_b32 v{q}, 15, v{l}"); a(f"v_lshrrev_b32 v{g}, 4, v{l}")
    a(f"s_lshl_b32 s{sT0}, s{sIDX}, 8")
    if wide:
        a(f"v_bfe_u32 v{VT+3}, v{l}, 1, 3"); a(f"v_xor_b32 v{VT+3}, v{VT+3}, v{g}")
        a(f"s_mov_b32 s{sT1}, 896"); a(f"v_mul_lo_u32 v{VT+4}, s{sT1}, v{g}")
        a(f"v_and_b32 v{VT+5}, 1, v{l}"); a(f"v_lshl_add_u32 v{VT+4}, v{VT+5}, 4, v{VT+4}")
        a(f"v_add_u32 v{VT+4}, s{sT0}, v{VT+4}")
        a(f"v_lshl_add_u32 v{vWoD}, v{VT+3}, 5, v{VT+4}")
        a(f"v_xor_b32 v{VT+3}, 4, v{VT+3}"); a(f"v_lshl_add_u32 v{vWoD+1}, v{VT+3}, 5, v{VT+4}")
        a(f"v_lshrrev_b32 v{VT+3}, 2, v{l}"); a(f"v_and_b32 v{VT+4}, 7, v{VT+3}")
        a(f"v_lshlrev_b32 v{VT+5}, 8, v{VT+3}")
    else:
        a(f"v_lshrrev_b32 v{VT+3}, 3, v{l}"); a(f"s_mov_b32 s{sT1}, 896"); a(f"v_mul_lo_u32 v{VT+4}, s{sT1}, v{VT+3}")
        a(f"v_bfe_u32 v{VT+3}, v{l}, 1, 2"); a(f"v_xor_b32 v{VT+3}, v{VT+3}, v{g}")
        a(f"v_lshl_add_u32 v{VT+4}, v{VT+3}, 5, v{VT+4}")
        a(f"v_and_b32 v{VT+5}, 1, v{l}"); a(f"v_lshl_add_u32 v{VT+4}, v{VT+5}, 4, v{VT+4}")
        a(f"v_add_u32 v{vWoD}, s{sT0}, v{VT+4}")
        a(f"v_lshrrev_b32 v{VT+3}, 2, v{l}")
        a(f"v_lshrrev_b32 v{VT+4}, 1, v{VT+3}"); a(f"v_and_b32 v{VT+4}, 3, v{VT+4}")
        a(f"v_lshlrev_b32 v{VT+5}, 7, v{VT+3}")
    a(f"v_and_b32 v{VT+6}, 3, v{l}"); a(f"v_lshl_add_u32 v{VT+5}, v{VT+6}, 3, v{VT+5}")
    a(f"s_lshl_b32 s{sT1}, s{sIDX}, 13")
    for mt in range(8 if wide else 4):
        a(f"v_xor_b32 v{VT+6}, {mt}, v{VT+4}")
        a(f"v_lshl_add_u32 v{VT+7}, v{VT+6}, 5, v{VT+5}")
        a(f"v_add_u32 v{vWoR+mt}, s{sWp}, v{VT+7}")
        a(f"v_add_u32 v{ALT+mt}, s{sT1}, v{VT+7}")
    a(f"v_lshrrev_b32 v{VT+3}, 1, v{q}"); a(f"v_xor_b32 v{VT+3}, v{g}, v{VT+3}")
    a(f"v_lshlrev_b32 v{VT+4}, 7, v{q}"); a(f"v_add_u32 v{VT+4}, {OB}, v{VT+4}")
    a(f"v_lshl_add_u32 v{vOR}, v{VT+3}, 4, v{VT+4}")
    a(f"v_xor_b32 v{VT+3}, 4, v{VT+3}"); a(f"v_lshl_add_u32 v{vOR+1}, v{VT+3}, 4, v{VT+4}")
    a(f"s_lshl_b32 s{sM0}, s{sIDX}, 13")

def wo_slot(kap, wide):
    slot = 8192 if wide else 4096
    special = {10: ('kv', KVA), 11: ('own', 0), 12: ('own', slot), 13: ('kv', KVB), 14: ('kv', KVA), 15: ('own', 0)}
    if kap in special: return special[kap]
    return ('own', (kap % 2)*slot)

def wo_dma(R, kap, wide, ii_list=None):
    a = R.a
    j, ks = divmod(kap, 4); h, s = divmod(ks, 2)
    row0 = 256*h + 64*j + 32*s
    area, off = wo_slot(kap, wide)
    base = sWp if area == 'own' else sM0
    for ii in (ii_list if ii_list is not None else range(8 if wide else 4)):
        a(f"s_add_u32 m0, s{base}, {off + 1024*ii}")
        rows = 4*ii if wide else 8*ii
        a(f"s_mov_b32 s{sT1}, {(row0 + rows)*896}")
        pat = vWoD + ((ii & 1) if wide else 0)
        R.vmem(f"buffer_load_dwordx4 v{pat}, {srd(SRD_WO)}, s{sT1} offen {cfg.w_flags} lds", f"o{kap}")

def p_ofrags(R):
    for k2 in range(4):
        for nt in range(3):
            R.lds_guard(1)
            R.lds(f"ds_read_b128 {vr(Of(k2,nt))}, v{vOR + (k2 & 1)} offset:{6144*(k2 >> 1) + 2048*nt}", f"of{k2}")

def p_ocompute(R, kaps, wide, refill=None, publish=False):
    a = R.a
    NT = 8 if wide else 4
    D = 4; NB = 5
    rowb = 256 if wide else 128
    refill = refill or {}
    frs = [(kap, mt) for kap in kaps for mt in range(NT)]
    def rd(f):
        kap, mt = frs[f]
        if mt == 0: R.wait_vm(f"o{kap}")
        b = ORING + 4*(f % NB)
        area, off = wo_slot(kap, wide)
        addr = (vWoR if area == 'own' else ALT) + mt
        R.lds_guard(2)
        R.lds(f"ds_read_b64_tr_b16 {vr(b,2)}, v{addr} offset:{off}", f"f{kap}_{mt}")
        R.lds(f"ds_read_b64_tr_b16 {vr(b+2,2)}, v{addr} offset:{off + 16*rowb}", f"f{kap}_{mt}")
    for f in range(D): rd(f)
    pend = None
    npub = 0
    def pub_pair(ip):
        nonlocal npub
        for nt in range(3):
            t = PUB[npub]; npub += 1
            d0, d1 = Outa(2*ip, nt), Outa(2*ip+1, nt)
            a(f"v_cvt_pk_bf16_f32 v{t}, v{d0}, v{d0+1}"); a(f"v_cvt_pk_bf16_f32 v{t+1}, v{d0+2}, v{d0+3}")
            a(f"v_cvt_pk_bf16_f32 v{t+2}, v{d1}, v{d1+1}"); a(f"v_cvt_pk_bf16_f32 v{t+3}, v{d1+2}, v{d1+3}")
            a(f"s_add_u32 s{sT1}, s{sT2}, {1024*(ip*3 + nt)}")
            R.vmem(f"buffer_store_dwordx4 {vr(t)}, v{VT}, {srd(SRD_WS)}, s{sT1} offen sc0 sc1", "pub")
    if publish:
        a(f"v_mbcnt_lo_u32_b32 v{VT}, -1, 0"); a(f"v_mbcnt_hi_u32_b32 v{VT}, -1, v{VT}"); a(f"v_lshlrev_b32 v{VT}, 4, v{VT}")
        a(f"s_mul_i32 s{sT2}, s2, {PART}"); a(f"s_mul_i32 s{sT3}, s{sIDX}, {12*1024}"); a(f"s_add_u32 s{sT2}, s{sT2}, s{sT3}")
    for f, (kap, mt) in enumerate(frs):
        j, ks = divmod(kap, 4)
        if f + D < len(frs): rd(f + D)
        if pend is not None and mt < NT:
            wo_dma(R, pend, wide, [mt])
            if mt == NT - 1: pend = None
        R.wait_lg(f"f{kap}_{mt}")
        if mt == 0: R.wait_lg(f"of{ks}")
        for nt in range(3):
            d = Outa(mt, nt)
            c = "0" if kap == 0 else vr(d)
            a(f"v_mfma_f32_16x16x32_bf16 {vr(d)}, {vr(ORING + 4*(f % NB))}, {vr(Of(ks,nt))}, {c}")
        if cfg.tst and mt == NT - 1 and kap >= 10: lstamp(a, 26 + kap - 10)
        if mt == NT - 1 and kap in refill:
            if kap == kaps[-1]: wo_dma(R, refill[kap], wide)
            else: pend = refill[kap]
        if publish and kap == kaps[-1] and mt % 2 == 1 and mt >= 3:
            pub_pair((mt - 3)//2)
    if publish: pub_pair(NT//2 - 1)

def p_oproj_phase(R, bar, wide):
    a = R.a
    nbar = 0
    def upto(k):
        nonlocal nbar
        while nbar < k: bar(); nbar += 1
    if cfg.wo_first_after >= 6:
        upto(cfg.wo_first_after - 6)
        wo_dma(R, 0, wide); wo_dma(R, 1, wide)
    for j in range(2):
        upto(2*j + 3)
        p_ofrags(R)
        p_ocompute(R, [4*j, 4*j+1], wide)
        wo_dma(R, 4*j+2, wide); wo_dma(R, 4*j+3, wide)
        upto(2*j + 4)
        p_ocompute(R, [4*j+2, 4*j+3], wide)
        wo_dma(R, 4*j+4, wide); wo_dma(R, 4*j+5, wide)
    upto(7)
    p_ofrags(R)
    wo_dma(R, 10, wide)
    p_ocompute(R, [8, 9], wide, refill={8: 11, 9: 12})
    upto(8)
    wo_dma(R, 13, wide)
    p_ocompute(R, [10, 11], wide, refill={10: 14, 11: 15})
    upto(9)
    p_ofrags(R)
    p_ocompute(R, [12, 13, 14, 15], wide, publish=True)
    return nbar

def p_flag(R):
    a = R.a
    if cfg.tst: lstamp(a, 32)
    R.wait_vm_all()
    if cfg.tst: lstamp(a, 33)
    a(f"s_mul_i32 s{sT0}, s{sGRP}, {FSTR}"); a(f"s_add_u32 s{sT0}, s{sT0}, {FLG}")
    a(f"s_lshl_b32 s{sT1}, s{sG}, 2"); a(f"s_add_u32 s{sT1}, s{sT1}, s{sIDX}"); a(f"s_lshl_b32 s{sT1}, s{sT1}, 2")
    a(f"v_mov_b32 v2, s{sT1}"); a("v_mov_b32 v1, 1")
    a(f"s_mov_b64 s[{sEX}:{sEX+1}], exec")
    a("s_mov_b64 exec, 1")
    a(f"buffer_store_dword v1, v2, {srd(SRD_WS)}, s{sT0} offen sc0 sc1")
    a(f"s_mov_b64 exec, s[{sEX}:{sEX+1}]")

def emit_reduce(a):
    a.label("L_tail")
    if cfg.stamps: stamp(a, 50)
    a(f"s_min_u32 s{sT0}, s{sG}, 2"); a(f"s_mul_i32 s{sT1}, s{sG}, 5"); a(f"s_add_u32 s{sT0}, s{sT0}, s{sT1}")
    a(f"s_cmp_lt_u32 s{sG}, 2"); a(f"s_cselect_b32 s{sT1}, 6, 5")
    a(f"s_cmp_ge_u32 s{sWAVE}, s{sT1}")
    a("s_cbranch_scc1 " + ("L_nogather" if cfg.stamps else "L_end"))
    a(f"s_add_u32 s{sT0}, s{sT0}, s{sWAVE}")
    a("v_mbcnt_lo_u32_b32 v3, -1, 0"); a("v_mbcnt_hi_u32_b32 v3, -1, v3")
    a("v_lshlrev_b32 v6, 4, v3"); a("v_lshlrev_b32 v0, 2, v3")
    a(f"s_mul_i32 s{sT2}, s{sT0}, 171"); a(f"s_lshr_b32 s{sT2}, s{sT2}, 9")
    a(f"s_mul_i32 s{sT3}, s{sT2}, 3"); a(f"s_sub_u32 s{sT3}, s{sT0}, s{sT3}")
    a(f"s_lshl_b32 s{sT3}, s{sT3}, 4"); a(f"s_mul_i32 s{sT1}, s{sB}, 48"); a(f"s_add_u32 s{sT3}, s{sT3}, s{sT1}")
    a(f"s_mul_i32 s{sT3}, s{sT3}, 1792"); a(f"s_lshl_b32 s{sT2}, s{sT2}, 6"); a(f"s_add_u32 s{sT3}, s{sT3}, s{sT2}")
    a(f"s_mul_i32 s{sT1}, s{sBR}, 896"); a(f"s_add_u32 s78, s{sT3}, s{sT1}") if not cfg.lstamps else None
    if cfg.lstamps: a(f"s_mul_i32 s{sT1}, s{sBR}, 896"); a(f"s_add_u32 s100, s{sT3}, s{sT1}")
    sOUT = 100 if cfg.lstamps else 78
    a("v_and_b32 v7, 15, v3"); a(f"s_mov_b32 s{sT1}, 1792"); a(f"v_mul_lo_u32 v7, s{sT1}, v7")
    a("v_bfe_u32 v8, v3, 4, 1"); a("v_lshl_add_u32 v7, v8, 5, v7")
    a("v_lshrrev_b32 v8, 5, v3"); a("v_lshl_add_u32 v7, v8, 4, v7")
    a(f"s_lshl_b32 s{sT1}, s{sB}, 4"); a(f"s_lshl_b32 s{sT2}, s{sBR}, 2"); a(f"s_add_u32 s{sT1}, s{sT1}, s{sT2}")
    a(f"s_mul_i32 s{sT1}, s{sT1}, {PART}"); a(f"s_lshl_b32 s{sT2}, s{sT0}, 10"); a(f"s_add_u32 s{sT3}, s{sT1}, s{sT2}")
    a(f"s_mul_i32 s{sT0}, s{sGRP}, {FSTR}"); a(f"s_add_u32 s{sT0}, s{sT0}, {FLG}")
    a(f"s_mov_b64 s[{sEX}:{sEX+1}], exec")
    a("s_mov_b32 exec_hi, 0")
    a(f"s_mov_b32 s{sT2}, 0")
    a.label("L_poll")
    a(f"buffer_load_dword v4, v0, {srd(SRD_WS)}, s{sT0} offen sc0 sc1")
    a("s_waitcnt vmcnt(0)")
    a("v_cmp_eq_u32 vcc, 1, v4")
    a("s_cmp_eq_u32 vcc_lo, -1")
    a("s_cbranch_scc1 L_poll_done")
    a(f"s_add_u32 s{sT2}, s{sT2}, 1")
    a(f"s_cmp_ge_u32 s{sT2}, 400000")
    a("s_cbranch_scc1 L_poll_done")
    if cfg.sleep: a(f"s_sleep {cfg.sleep}")
    a("s_branch L_poll")
    a.label("L_poll_done")
    a(f"s_mov_b64 exec, s[{sEX}:{sEX+1}]")
    if cfg.stamps: stamp(a, 52)
    for k in range(8):
        gb, gp = k >> 2, k & 3
        a(f"s_add_u32 s{sT2}, s{sT3}, {(gb*8 + gp)*PART}")
        a(f"buffer_load_dwordx4 {vr(64+4*k)}, v6, {srd(SRD_WS)}, s{sT2} offen sc0 sc1")
    acc = 16
    for k in range(8):
        a(f"s_waitcnt vmcnt({7-k})")
        for r in range(4):
            src = 64 + 4*k + r
            if k == 0:
                a(f"v_lshlrev_b32 v{acc+2*r}, 16, v{src}"); a(f"v_and_b32 v{acc+2*r+1}, 0xffff0000, v{src}")
            else:
                t = 8 + 2*(r & 1) + 2
                a(f"v_lshlrev_b32 v{t}, 16, v{src}"); a(f"v_and_b32 v{t+1}, 0xffff0000, v{src}")
                a(f"v_pk_add_f32 {vr(acc+2*r,2)}, {vr(acc+2*r,2)}, {vr(t,2)}")
    for r in range(4):
        a(f"v_cvt_pk_bf16_f32 v{12+r}, v{acc+2*r}, v{acc+2*r+1}")
    a("v_permlane16_swap_b32 v12, v14")
    a("v_permlane16_swap_b32 v13, v15")
    a(f"buffer_store_dwordx4 v[12:15], v7, {srd(SRD_OUT)}, s{sOUT} offen")
    if cfg.stamps:
        a("s_waitcnt vmcnt(0)")
        a.label("L_nogather")
        stamp(a, 53)
        a("s_memtime s[74:75]"); a("s_waitcnt lgkmcnt(0)"); a("v_writelane_b32 v61, s74, 61")
        stamp_store(a)
    a.label("L_end")
    a("s_endpgm")

def build():
    a = Asm()
    if cfg.stamps:
        a("s_memrealtime s[72:73]"); a("s_memtime s[74:75]"); a("s_waitcnt lgkmcnt(0)")
        a("v_writelane_b32 v61, s72, 62"); a("v_writelane_b32 v61, s74, 60")
    emit_prologue(a)
    cnt = {"n": 0}
    def bar():
        a("s_barrier")
        if cfg.stamps: stamp(a, cnt["n"])
        cnt["n"] += 1
    A = Role(a)
    if cfg.prioA: a(f"s_setprio {cfg.prioA}")
    a_setup(A)
    if cfg.pf_first: a_pf(A, "wq")
    bar()
    if not cfg.pf_first: a_pf(A, "wq")
    a_setup2(A)
    bar()
    for kap in range(4): wq_dma(A, kap, vWqA)
    a_issue_KV(A, "K", 0)
    a_setup3(A)
    A.wait_vm("w3")
    bar()
    bar()
    a_issue_KV(A, "K", 1)
    A.wait_vm("K0")
    a0_flag_zero(A)
    bar()
    for k in range(6):
        if k == 4: a_flag_load(A)
        if k == cfg.pf_wo_at: a_pf(A, "wo")
        a_S(A, k, dma=("K", k+1) if k >= 1 else None)
        A.wait_vm(f"K{k+1}")
        if k == 4: a_flag_check(A)
        bar()
    a_S(A, 6, dma=("K", 7))
    bar()
    a_issue_KV(A, "V", 0)
    if cfg.split_sm: a_softmax1(A)
    A.wait_vm("K7")
    bar()
    a_S(A, 7)
    bar()
    a_issue_KV(A, "V", 1)
    if cfg.pf_wo_at == 8: a_pf(A, "wo")
    if not cfg.split_sm: a_softmax1(A)
    a_softmax2(A)
    A.wait_vm("V0")
    bar()
    a_alpha(A)
    for n in range(8):
        dma = ("V", n+1) if 1 <= n <= 6 else None
        if n >= 2 and n % 2 == 0:
            a_xfinal(A, dma); dma = None
        a_PV(A, n, dma)
        if n % 2 == 0: a_rescale(A)
        else: a_xwrite(A)
        if n < 7: A.wait_vm(f"V{n+1}")
        A.wait_lg_all()
        bar()
    a_xfinal(A)
    A.wait_lg_all()
    bar()
    nA = cnt["n"]
    A.wait_vm_all()
    a("s_branch L_tail")
    a.label("L_P")
    cnt["n"] = 0
    P = Role(a)
    stamp_move(a, 39)
    if cfg.stamps: stamp(a, 55)
    if cfg.prioP: a(f"s_setprio {cfg.prioP}")
    p_setup(P)
    if cfg.stamps: stamp(a, 56)
    bar()
    p_setup2(P)
    P.wait_vm("x"); bar()
    p_xfrags(P); bar()
    p_qcompute(P, list(range(14)), True, hooks={cfg.k1_after: bar})
    bar()
    for kap in (14, 15, 16, 17): wq_dma(P, kap, vWqD)
    for kaps, nxt in (([14,15], [18,19]), ([16,17,18,19], [20,21,22,23]), ([20,21,22,23], [24,25,26,27]), ([24,25,26,27], [])):
        p_qcompute(P, kaps, False)
        for kap in nxt: wq_dma(P, kap, vWqD)
        bar()
    a(f"s_cmp_eq_u32 s{sIDX}, 3")
    a("s_cbranch_scc1 L_P3")
    base = cnt["n"]
    for wide in (True, False):
        if not wide:
            a.label("L_P3"); cnt["n"] = base
        Pw = Role(a)
        STREG[0] = 39
        stamp_move(a, 47)
        p_vsetup(Pw, wide)
        for ib in range(6):
            if ib == cfg.wo_first_after: wo_dma(Pw, 0, wide); wo_dma(Pw, 1, wide)
            bar()
        nb = p_oproj_phase(Pw, bar, wide)
        assert nb == 9, nb
        if cfg.stamps: stamp(a, 59)
        p_flag(Pw)
        if cfg.stamps: stamp(a, 58)
        assert cnt["n"] == nA, (cnt["n"], nA)
        stamp_move(a, 61)
        if wide: a("s_branch L_tail")
    emit_reduce(a)
    a.finalize()
    return a

HEADER = open("cdna_kernels/" + NAME + ".s.ref").read().split("; Override launch")[0]
def full_text(a):
    s = HEADER
    s += f"; @launch grid=(256,1,1) block=(512,1,1) lds={LDS_BYTES}\n"
    s += f'.amdgcn_target "amdgcn-amd-amdhsa--gfx950"\n.text\n.globl {NAME}_kernel\n.p2align 8\n.type {NAME}_kernel,@function\n{NAME}_kernel:\n'
    s += a.text()
    s += f""".section .rodata,"a"
.p2align 6
.amdhsa_kernel {NAME}_kernel
  .amdhsa_next_free_vgpr 256
  .amdhsa_next_free_sgpr 102
  .amdhsa_accum_offset 256
  .amdhsa_group_segment_fixed_size 0
  .amdhsa_kernarg_size 104
  .amdhsa_user_sgpr_count 2
  .amdhsa_user_sgpr_kernarg_segment_ptr 1
  .amdhsa_system_sgpr_workgroup_id_x 1
.end_amdhsa_kernel
"""
    return s

if __name__ == "__main__":
    out = sys.argv[1] if len(sys.argv) > 1 else "cdna_kernels/" + NAME + ".s"
    for kv in sys.argv[2:]:
        k, v = kv.split("=", 1)
        cur = getattr(cfg, k)
        if isinstance(cur, bool): v = v.lower() in ("1", "true")
        elif isinstance(cur, int): v = int(v)
        setattr(cfg, k, v)
    a = build()
    open(out, "w").write(full_text(a))
    print("wrote", out, "instrs:", sum(1 for i in a.ins if i.kind not in ('none','label')), "nops inserted:", a.nops_inserted)
```

```python
import sys, math, struct
from asmlib import Asm

NAME = "concat_heads__gqa_block_cached__gqa_block_cached__near_ridge"

class Cfg:
    k_flags = "nt"
    v_flags = "nt"
    w_flags = ""
    pf = True
    pf_flags = ""
    stamps = False
    lstamps = False
    mini = False
    prioA = 0
    prioP = 0
    dq = 4
    pf_wo_at = 8
    k1_after = 9
    split_sm = True
    sleep = 0
    interleave = False
    pf_first = False
    wo_first_after = 7
    tst = False
    rot = 1
    kst = False
cfg = Cfg()

KVA, KVB = 0, 32768
WB = 65536
QB = 131072
OB = 122880
XB = 135168
STAT = 159744
PFL = 161280
LDS_BYTES = 163840
PART = 43008
FLG = 16 << 20
FSTR = 8448
sWAVE, sIDX, sG, sB, sBR = 3, 4, 5, 6, 7
SRD_K, SRD_V, SRD_WQ, SRD_WO, SRD_X, SRD_OUT, SRD_WS = 8, 12, 16, 20, 24, 28, 32
sDBG = 58
sM0, sWp = 62, 63
sC = 64
sT0, sT1, sT2, sT3 = 66, 67, 68, 69
sEX = 70
sGRP, sXo = 76, 77
sCOL = 36
sJ = 44
def srd(b): return f"s[{b}:{b+3}]"
def vr(b, n=4): return f"v[{b}:{b+n-1}]"
def f32bits(x): return struct.unpack('<I', struct.pack('<f', x))[0]
vL, vQ, vGq = 44, 46, 47

class Role:
    def __init__(self, a): self.a = a; self.vm = []; self.lg = []
    def vmem(self, text, tag): self.a(text); self.vm.append(tag)
    def lds(self, text, tag): self.a(text); self.lg.append(tag)
    def wait_vm(self, tag):
        idx = [i for i, t in enumerate(self.vm) if t == tag]
        if not idx: return
        n = len(self.vm) - 1 - idx[-1]
        assert n <= 63
        self.a(f"s_waitcnt vmcnt({n})"); self.vm = self.vm[idx[-1]+1:]
    def wait_lg(self, tag):
        idx = [i for i, t in enumerate(self.lg) if t == tag]
        if not idx: return
        n = len(self.lg) - 1 - idx[-1]
        assert n <= 15, n
        self.a(f"s_waitcnt lgkmcnt({n})"); self.lg = self.lg[idx[-1]+1:]
    def wait_vm_all(self): self.a("s_waitcnt vmcnt(0)"); self.vm = []
    def wait_lg_all(self): self.a("s_waitcnt lgkmcnt(0)"); self.lg = []
    def lds_guard(self, n_new):
        if len(self.lg) + n_new > 15:
            keep = 15 - n_new
            self.a(f"s_waitcnt lgkmcnt({keep})"); self.lg = self.lg[len(self.lg)-keep:] if keep else []

STREG = [61]
PEND = []
def stamp(a, idx):
    a("s_memrealtime s[72:73]")
    a("s_waitcnt lgkmcnt(0)")
    a(f"v_writelane_b32 v{STREG[0]}, s72, {idx}")
    for (sp, i2) in PEND: a(f"v_writelane_b32 v{STREG[0]}, s{sp}, {i2}")
    PEND.clear()
def lstamp(a, idx):
    if not cfg.lstamps: return
    sp = 78 + 2*len(PEND)
    assert sp <= 98
    a(f"s_memrealtime s[{sp}:{sp+1}]")
    PEND.append((sp, idx))
def stamp_move(a, new):
    if cfg.stamps: a(f"v_mov_b32 v{new}, v{STREG[0]}")
    STREG[0] = new
def stamp_store(a):
    a(f"s_lshl_b32 s{sT0}, s2, 3"); a(f"s_add_u32 s{sT0}, s{sT0}, s{sWAVE}"); a(f"s_lshl_b32 s{sT0}, s{sT0}, 8")
    a("v_mbcnt_lo_u32_b32 v60, -1, 0"); a("v_mbcnt_hi_u32_b32 v60, -1, v60")
    a(f"v_lshlrev_b32 v60, 2, v60"); a(f"v_add_u32 v60, s{sT0}, v60")
    a("s_add_u32 s74, s60, 0x2000000"); a("s_addc_u32 s75, s61, 0")
    a("global_store_dword v60, v61, s[74:75]")
    a("s_waitcnt vmcnt(0)")

def emit_prologue(a):
    a("s_cmp_ge_u32 s2, 256")
    a("s_cbranch_scc1 L_end")
    a("s_load_dwordx16 s[36:51], s[0:1], 0")
    a("s_load_dwordx4 s[52:55], s[0:1], 64")
    a("s_load_dwordx4 s[56:59], s[0:1], 80")
    a("s_load_dwordx2 s[60:61], s[0:1], 96")
    a("v_and_b32 v44, 63, v0")
    a("v_lshrrev_b32 v45, 6, v0")
    a("v_and_b32 v46, 15, v44")
    a("v_lshrrev_b32 v47, 4, v44")
    a(f"v_readfirstlane_b32 s{sWAVE}, v45")
    a(f"s_bfe_u32 s{sBR}, s2, 0x10002")
    a(f"s_and_b32 s{sG}, s2, 3"); a(f"s_lshl_b32 s{sG}, s{sG}, 1")
    a(f"s_bfe_u32 s{sT0}, s2, 0x10003"); a(f"s_or_b32 s{sG}, s{sG}, s{sT0}")
    a(f"s_lshr_b32 s{sB}, s2, 4")
    a(f"s_and_b32 s{sIDX}, s{sWAVE}, 3")
    a(f"s_lshl_b32 s{sGRP}, s{sBR}, 4"); a(f"s_add_u32 s{sGRP}, s{sGRP}, s{sB}")
    a(f"s_mov_b32 s{sC}, 0x{f32bits(math.log2(math.e)/16.0):08x}"); a(f"s_mov_b32 s{sC+1}, s{sC}")
    a("s_waitcnt lgkmcnt(0)")
    if cfg.stamps: stamp(a, 54)
    a(f"s_cmp_eq_u32 s{sBR}, 0")
    for i in range(5):
        a(f"s_cselect_b64 s[{36+2*i}:{37+2*i}], s[{36+2*i}:{37+2*i}], s[{46+2*i}:{47+2*i}]")
    def mk(srdb, ptr, off_s, size):
        if off_s is None:
            a(f"s_mov_b32 s{srdb}, s{ptr}"); a(f"s_and_b32 s{srdb+1}, s{ptr+1}, 0xffff")
        else:
            a(f"s_add_u32 s{srdb}, s{ptr}, s{off_s}")
            a(f"s_addc_u32 s{srdb+1}, s{ptr+1}, 0")
            a(f"s_and_b32 s{srdb+1}, s{srdb+1}, 0xffff")
        if isinstance(size, int): a(f"s_mov_b32 s{srdb+2}, {size}")
        else: a(size)
        a(f"s_mov_b32 s{srdb+3}, 0x20000")
    a(f"s_mul_i32 s{sT1}, s{sB}, 43008")
    mk(SRD_X, 36, sT1, 43008)
    a(f"s_lshl_b32 s{sT1}, s{sG}, 10")
    mk(SRD_WQ, 42, sT1, f"s_sub_u32 s{SRD_WQ+2}, {448*8192}, s{sT1}")
    a(f"s_lshl_b32 s{sT0}, s{sB}, 3"); a(f"s_add_u32 s{sT0}, s{sT0}, s{sG}"); a(f"s_lshl_b32 s{sT0}, s{sT0}, 18")
    mk(SRD_K, 38, sT0, 262144)
    mk(SRD_V, 40, sT0, 262144)
    a(f"s_mul_i32 s{sT1}, s{sG}, 458752")
    mk(SRD_WO, 44, sT1, 458752)
    mk(SRD_OUT, 56, None, 16*48*896*2)
    mk(SRD_WS, 60, None, FLG + 32*FSTR)
    if cfg.rot == 0: a(f"s_mov_b32 s{sT0}, 0")
    elif cfg.rot == 1: a(f"s_and_b32 s{sT0}, s{sB}, 3")
    elif cfg.rot == 2: a(f"s_add_u32 s{sT0}, s{sB}, s{sG}"); a(f"s_and_b32 s{sT0}, s{sT0}, 3")
    elif cfg.rot == 3: a(f"s_and_b32 s{sT0}, s{sB}, 1"); a(f"s_lshl_b32 s{sT0}, s{sT0}, 1")
    for j in range(4):
        a(f"s_add_u32 s{sT1}, s{sT0}, {j}"); a(f"s_and_b32 s{sT1}, s{sT1}, 3")
        a(f"s_lshl_b32 s{sCOL+j}, s{sT1}, 7"); a(f"s_mul_i32 s{sCOL+4+j}, s{sT1}, {64*896}")
    a(f"s_lshr_b32 s{sT2}, s{sIDX}, 1")
    for J in range(2):
        a(f"s_add_u32 s{sT1}, s{sT0}, s{sT2}"); a(f"s_add_u32 s{sT1}, s{sT1}, {2*J}"); a(f"s_and_b32 s{sT1}, s{sT1}, 3")
        a(f"s_lshl_b32 s{sJ+J}, s{sT1}, 7")
    a(f"s_cmp_ge_u32 s{sWAVE}, 4")
    a("s_cbranch_scc1 L_P")

def wq_dma_pattern(a, dst, l, g, t0, t1):
    a(f"v_lshrrev_b32 v{t0}, 3, v{l}"); a(f"v_lshlrev_b32 v{t0}, 13, v{t0}")
    a(f"v_bfe_u32 v{t1}, v{l}, 1, 2"); a(f"v_xor_b32 v{t1}, v{t1}, v{g}")
    a(f"v_lshl_add_u32 v{t0}, v{t1}, 5, v{t0}")
    a(f"v_and_b32 v{t1}, 1, v{l}"); a(f"v_lshl_add_u32 v{t0}, v{t1}, 4, v{t0}")
    a(f"s_and_b32 s{sT0}, s{sIDX}, 1"); a(f"s_lshl_b32 s{sT0}, s{sT0}, 9")
    a(f"v_add_u32 v{dst}, s{sT0}, v{t0}")

NSLOT_Q = 4
def wq_dma(R, kap, vpat, ii_list=range(4)):
    a = R.a
    J, s = divmod(kap, 14)
    for ii in ii_list:
        a(f"s_add_u32 m0, s{sWp}, {(kap % NSLOT_Q)*4096 + 1024*ii}")
        a(f"s_add_u32 s{sT1}, s{sJ+J}, {(32*s + 8*ii)*8192}")
        R.vmem(f"buffer_load_dwordx4 v{vpat}, {srd(SRD_WQ)}, s{sT1} offen {cfg.w_flags} lds", f"w{kap}")

def S_(t, nt): return 64 + (t*3 + nt)*4
def Qf(s, nt): return (s*3 + nt)*4
KF = 24
vKdE, vKdO, vVd, vWqA = 48, 49, 50, 51

def a_setup(R):
    a = R.a
    a(f"s_lshl_b32 s{sM0}, s{sIDX}, 13")
    a(f"s_lshl_b32 s{sWp}, s{sIDX}, 14"); a(f"s_add_u32 s{sWp}, s{sWp}, {WB}")
    if cfg.pf:
        a(f"v_lshrrev_b32 v52, 3, v{vL}"); a("v_lshlrev_b32 v52, 13, v52")
        a(f"v_and_b32 v53, 7, v{vL}"); a("v_lshl_add_u32 v56, v53, 7, v52")
        a(f"s_mul_i32 s{sT2}, s{sB}, 28"); a(f"s_lshl_b32 s{sT3}, s{sIDX}, 3"); a(f"s_add_u32 s{sT2}, s{sT2}, s{sT3}")
        a(f"s_lshl_b32 s{sT2}, s{sT2}, 13")

def a_pf(R, which):
    a = R.a
    if not cfg.pf: return
    if which == "wq":
        R.vmem(f"buffer_load_dword v63, v56, {srd(SRD_WQ)}, s{sT2} offen {cfg.pf_flags}", "pf")
    else:
        a(f"v_lshlrev_b32 v58, 7, v{vL}")
        a(f"s_mul_i32 s{sT2}, s{sB}, 28672"); a(f"s_lshl_b32 s{sT3}, s{sIDX}, 13"); a(f"s_add_u32 s{sT2}, s{sT2}, s{sT3}")
        R.vmem(f"buffer_load_dword v62, v58, {srd(SRD_WO)}, s{sT2} offen {cfg.pf_flags}", "pf")

def a_setup2(R):
    a = R.a
    wq_dma_pattern(a, vWqA, vL, vGq, 52, 53)
    a(f"v_lshrrev_b32 v52, 3, v{vL}"); a("v_lshlrev_b32 v52, 9, v52")
    a(f"s_lshl_b32 s{sT1}, s{sIDX}, 15"); a(f"v_add_u32 v52, s{sT1}, v52")
    a(f"v_and_b32 v53, 7, v{vL}"); a(f"v_xor_b32 v54, v53, v{vGq}")
    a(f"v_lshl_add_u32 v{vKdE}, v54, 4, v52")
    a("v_xor_b32 v54, 4, v54"); a(f"v_lshl_add_u32 v{vKdO}, v54, 4, v52")
    a("v_lshrrev_b32 v54, 1, v53"); a(f"v_xor_b32 v54, v54, v{vGq}")
    a("v_lshl_add_u32 v54, v54, 5, v52")
    a(f"v_and_b32 v55, 1, v{vL}"); a(f"v_lshl_add_u32 v{vVd}, v55, 4, v54")

def a_setup3(R):
    a = R.a
    a(f"s_lshr_b32 s{sT0}, s{sIDX}, 1")
    a(f"s_and_b32 s{sT1}, s{sIDX}, 1")
    a(f"v_lshrrev_b32 v52, 1, v{vQ}")
    a(f"v_xor_b32 v53, v{vGq}, v52")
    a(f"v_xor_b32 v54, 4, v53")
    a(f"s_lshl_b32 s{sT2}, s{sT1}, 14")
    a(f"v_lshlrev_b32 v55, 7, v{vQ}")
    a(f"v_add_u32 v55, s{sT2}, v55")
    a(f"v_lshl_add_u32 v40, v53, 4, v55")
    a(f"v_lshl_add_u32 v41, v54, 4, v55")
    a(f"s_mul_i32 s{sT2}, s{sT0}, {48*128}")
    a(f"s_add_u32 s{sT2}, s{sT2}, {QB}")
    a(f"v_lshlrev_b32 v55, 7, v{vQ}")
    a(f"v_add_u32 v55, s{sT2}, v55")
    a(f"v_lshl_add_u32 v42, v53, 4, v55")
    a(f"v_lshl_add_u32 v43, v54, 4, v55")

def a_pair_init(R):
    a = R.a
    a(f"s_lshl_b32 s{sT0}, s{sIDX}, 4"); a(f"s_add_u32 s{sT0}, s{sT0}, {PFL}")
    a(f"v_mov_b32 v55, s{sT0}"); a("v_mov_b32 v56, 0")
    R.lds("ds_write_b32 v55, v56", "pf0")
    R.wait_lg_all()

def a_pair_addr(R):
    a = R.a
    a(f"s_lshl_b32 s{sT0}, s{sIDX}, 4"); a(f"s_add_u32 s{sT0}, s{sT0}, {PFL}")
    a(f"v_mov_b32 v55, s{sT0}"); a(f"s_xor_b32 s{sT0}, s{sT0}, 16"); a(f"v_mov_b32 v56, s{sT0}")

def a_pair_sync(R, j):
    a = R.a
    R.wait_lg_all()
    a(f"v_mov_b32 v57, {j+1}")
    a("ds_write_b32 v55, v57")
    a.label(f"L_ps{j}")
    a("ds_read_b32 v57, v56")
    a("s_waitcnt lgkmcnt(0)")
    a(f"v_readfirstlane_b32 s{sT0}, v57")
    a(f"s_cmp_lt_u32 s{sT0}, {j+1}")
    a(f"s_cbranch_scc1 L_ps{j}")

def kv_dma(R, kind, n, ii):
    a = R.a
    j, w = n >> 1, n & 1
    buf = KVA if w == 0 else KVB
    a(f"s_add_u32 m0, s{sM0}, {buf + 1024*ii}")
    a(f"s_add_u32 s{sT1}, s{sCOL+j}, {131072*w + 4096*ii}")
    if kind == "K":
        R.vmem(f"buffer_load_dwordx4 v{vKdE + (ii & 1)}, {srd(SRD_K)}, s{sT1} offen {cfg.k_flags} lds", f"K{n}")
    else:
        R.vmem(f"buffer_load_dwordx4 v{vVd}, {srd(SRD_V)}, s{sT1} offen {cfg.v_flags} lds", f"V{n}")
def a_issue_KV(R, kind, n):
    R.a.comment(f"---- issue {kind} window {n}")
    for ii in range(8): kv_dma(R, kind, n, ii)

def a0_flag_zero(R):
    a = R.a
    a(f"s_or_b32 s{sT0}, s{sG}, s{sIDX}"); a(f"s_cmp_lg_u32 s{sT0}, 0"); a("s_cbranch_scc1 L_fz_skip")
    a(f"s_mul_i32 s{sT0}, s{sGRP}, {FSTR}"); a(f"s_add_u32 s{sT0}, s{sT0}, {FLG}")
    a(f"v_lshlrev_b32 v58, 2, v{vL}"); a("v_mov_b32 v59, 0")
    a(f"s_mov_b64 s[{sEX}:{sEX+1}], exec"); a("s_mov_b32 exec_hi, 0")
    a(f"buffer_store_dword v59, v58, {srd(SRD_WS)}, s{sT0} offen sc0 sc1")
    a(f"s_mov_b64 exec, s[{sEX}:{sEX+1}]")
    a.label("L_fz_skip")

def a0_flag_mark(R):
    a = R.a
    a(f"s_or_b32 s{sT0}, s{sG}, s{sIDX}"); a(f"s_cmp_lg_u32 s{sT0}, 0"); a("s_cbranch_scc1 L_fm_skip")
    a(f"s_lshl_b32 s{sT0}, s{sGRP}, 2"); a(f"v_mov_b32 v58, s{sT0}"); a("v_mov_b32 v59, 1")
    a(f"s_mov_b64 s[{sEX}:{sEX+1}], exec"); a("s_mov_b64 exec, 1")
    a(f"global_store_dword v58, v59, s[{sDBG}:{sDBG+1}] sc0 sc1")
    a(f"s_mov_b64 exec, s[{sEX}:{sEX+1}]")
    a.label("L_fm_skip")

def a_flag_load(R):
    a = R.a
    a(f"s_lshl_b32 s{sT0}, s{sGRP}, 2"); a(f"v_mov_b32 v58, s{sT0}")
    R.vmem(f"global_load_dword v59, v58, s[{sDBG}:{sDBG+1}] sc0 sc1", "chk")
def a_flag_check(R):
    a = R.a
    R.wait_vm("chk")
    a(f"s_mov_b32 s{sT2}, 0")
    a.label("L_fc_poll")
    a(f"v_readfirstlane_b32 s{sT1}, v59")
    a(f"s_cmp_eq_u32 s{sT1}, 1"); a("s_cbranch_scc1 L_fc_skip")
    a(f"s_add_u32 s{sT2}, s{sT2}, 1"); a(f"s_cmp_ge_u32 s{sT2}, 400000"); a("s_cbranch_scc1 L_fc_skip")
    a("s_sleep 2")
    a(f"global_load_dword v59, v58, s[{sDBG}:{sDBG+1}] sc0 sc1")
    a("s_waitcnt vmcnt(0)")
    a("s_branch L_fc_poll")
    a.label("L_fc_skip")

def a_S(R, n, dma=None):
    a = R.a
    j, w = n >> 1, n & 1
    buf = KVA if w == 0 else KVB
    if w == 0:
        for s in range(2):
            for nt in range(3):
                R.lds(f"ds_read_b128 {vr(Qf(s,nt))}, v{42+s} offset:{12288*(j & 1) + 2048*nt}", "q")
    frs = [(i, s) for i in range(8) for s in range(2)]
    NB = 4
    def rd(k):
        i, s = frs[k]
        R.lds(f"ds_read_b128 {vr(KF + 4*(k % NB))}, v{40+s} offset:{buf + 2048*i}", f"kf{k}")
    for k in range(NB-1): rd(k)
    if dma and not cfg.interleave:
        for ii in range(8): kv_dma(R, dma[0], dma[1], ii)
        dma = None
    for k, (i, s) in enumerate(frs):
        if k + NB - 1 < len(frs): rd(k + NB - 1)
        if dma and k < 8: kv_dma(R, dma[0], dma[1], k)
        R.wait_lg(f"kf{k}")
        for nt in range(3):
            d = S_(8*w + i, nt)
            c = "0" if (j == 0 and s == 0) else vr(d)
            a(f"v_mfma_f32_16x16x32_bf16 {vr(d)}, {vr(KF + 4*(k % NB))}, {vr(Qf(s,nt))}, {c}")

M1 = (52, 54, 56)
L1 = (53, 55, 57)
BETA = (0, 2, 4); ALO = (6, 8, 10); ALP = (12, 14, 16)
ONES1, ONES2 = 36, 20
def Pf(w, s, nt): return S_(8*w + 2*s, nt)
def Oa(mt, nt): return S_(2*mt + 1, nt)
def XT(i, nt): return S_(9 + 2*i, nt)

def _rowmax(a, tiles, dst, tmp):
    for nt in range(3):
        m = dst[nt]
        vals = [S_(t, nt) + r for t in tiles for r in range(4)]
        a(f"v_max3_f32 v{m}, v{vals[0]}, v{vals[1]}, v{vals[2]}")
        a(f"v_max3_f32 v{tmp}, v{vals[3]}, v{vals[4]}, v{vals[5]}")
        k = 6
        while k + 3 < len(vals):
            a(f"v_max3_f32 v{m}, v{m}, v{vals[k]}, v{vals[k+1]}")
            a(f"v_max3_f32 v{tmp}, v{tmp}, v{vals[k+2]}, v{vals[k+3]}")
            k += 4
        rest = vals[k:]
        assert len(rest) == 2
        a(f"v_max3_f32 v{m}, v{m}, v{rest[0]}, v{rest[1]}")
        a(f"v_max_f32 v{m}, v{m}, v{tmp}")
    for nt in range(3):
        m = dst[nt]
        a(f"v_mov_b32 v{tmp+nt}, v{m}")
    for nt in range(3):
        a(f"v_permlane32_swap_b32 v{tmp+nt}, v{dst[nt]}")
    for nt in range(3):
        a(f"v_max_f32 v{dst[nt]}, v{tmp+nt}, v{dst[nt]}")
    for nt in range(3):
        a(f"v_mov_b32 v{tmp+nt}, v{dst[nt]}")
    for nt in range(3):
        a(f"v_permlane16_swap_b32 v{tmp+nt}, v{dst[nt]}")
    for nt in range(3):
        a(f"v_max_f32 v{dst[nt]}, v{tmp+nt}, v{dst[nt]}")
        a(f"v_mul_f32 v{dst[nt]}, s{sC}, v{dst[nt]}")

def _exppack(a, t0s, mreg):
    for t0 in t0s:
        for nt in range(3):
            m = mreg[nt]
            b0, b1 = S_(t0, nt), S_(t0+1, nt)
            for b in (b0, b0+2, b1, b1+2):
                a(f"v_pk_fma_f32 {vr(b,2)}, {vr(b,2)}, s[{sC}:{sC+1}], {vr(m,2)} op_sel_hi:[1,1,0] neg_lo:[0,0,1] neg_hi:[0,0,1]")
            src = [b0+r for r in range(4)] + [b1+r for r in range(4)]
            for v in src: a(f"v_exp_f32 v{v}, v{v}")
            a(f"v_cvt_pk_bf16_f32 v{b0}, v{src[0]}, v{src[1]}")
            a(f"v_cvt_pk_bf16_f32 v{b0+1}, v{src[2]}, v{src[3]}")
            a(f"v_cvt_pk_bf16_f32 v{b0+2}, v{src[4]}, v{src[5]}")
            a(f"v_cvt_pk_bf16_f32 v{b0+3}, v{src[6]}, v{src[7]}")

def _rowsum(a, w, ones, acc):
    for r in range(4): a(f"v_mov_b32 v{ones+r}, 0x3f803f80")
    for s in range(4):
        for nt in range(3):
            c = "0" if s == 0 else vr(acc(nt))
            a(f"v_mfma_f32_16x16x32_bf16 {vr(acc(nt))}, {vr(ones)}, {vr(Pf(w,s,nt))}, {c}")

def a_softmax1(R):
    a = R.a
    _rowmax(a, range(0, 8), M1, 24)
    _exppack(a, (0, 2, 4, 6), M1)
    _rowsum(a, 0, ONES1, lambda nt: S_(1, nt))
    for nt in range(3): a(f"v_mov_b32 v{L1[nt]}, v{S_(1,nt)}")

def a_softmax2(R):
    a = R.a
    M2 = (24, 26, 28)
    _rowmax(a, range(8, 16), M2, 30)
    for nt in range(3):
        a(f"v_max_f32 v{M2[nt]}, v{M2[nt]}, v{M1[nt]}")
        a(f"v_sub_f32 v{BETA[nt]}, v{M1[nt]}, v{M2[nt]}")
    for nt in range(3): a(f"v_exp_f32 v{BETA[nt]}, v{BETA[nt]}")
    _exppack(a, (8, 10, 12, 14), M2)
    _rowsum(a, 1, ONES2, lambda nt: S_(13, nt))
    a_vaddr(R)
    for nt in range(3):
        a(f"v_fma_f32 v{M2[nt]+1}, v{BETA[nt]}, v{L1[nt]}, v{S_(13,nt)}")
    for nt in range(3):
        R.lds(f"ds_write_b64 v59, {vr(M2[nt],2)} offset:{128*nt}", "st")
    R.wait_lg_all()

vXW, vXR, vOW = 52, 53, 54
def a_vaddr(R):
    a = R.a
    a(f"s_and_b32 s{sT1}, s{sIDX}, 1")
    a(f"v_lshrrev_b32 v32, 2, v{vL}")
    a(f"v_lshrrev_b32 v33, 1, v32"); a("v_and_b32 v33, 3, v33")
    a(f"s_lshl_b32 s{sT2}, s{sT1}, 14")
    a(f"v_lshlrev_b32 v34, 7, v32"); a(f"v_add_u32 v34, s{sT2}, v34")
    a(f"v_and_b32 v35, 3, v{vL}"); a(f"v_lshl_add_u32 v34, v35, 3, v34")
    a(f"s_lshl_b32 s{sT2}, s{sT1}, 1")
    a(f"v_xor_b32 v33, s{sT2}, v33")
    for mt in range(4):
        a(f"v_xor_b32 v35, {mt}, v33")
        a(f"v_lshl_add_u32 v{40+mt}, v35, 5, v34")
    a(f"s_mul_i32 s{sT0}, s{sIDX}, 384"); a(f"s_add_u32 s{sT0}, s{sT0}, {STAT}")
    a(f"v_lshlrev_b32 v59, 3, v{vQ}"); a(f"v_add_u32 v59, s{sT0}, v59")
    a(f"s_xor_b32 s{sT1}, s{sIDX}, 1"); a(f"s_mul_i32 s{sT1}, s{sT1}, 384"); a(f"s_add_u32 s{sT1}, s{sT1}, {STAT}")
    a(f"v_lshlrev_b32 v60, 3, v{vQ}"); a(f"v_add_u32 v60, s{sT1}, v60")

def a_alpha(R):
    a = R.a
    M2 = (24, 26, 28)
    for nt in range(3):
        R.lds(f"ds_read_b64 v[{32+2*nt}:{33+2*nt}], v60 offset:{128*nt}", "st")
    a(f"s_mul_i32 s{sT2}, s{sIDX}, 6144"); a(f"s_add_u32 s{sT2}, s{sT2}, {XB}")
    a(f"v_lshlrev_b32 v55, 4, v{vL}"); a(f"v_add_u32 v{vXW}, s{sT2}, v55")
    a(f"s_xor_b32 s{sT2}, s{sIDX}, 1"); a(f"s_mul_i32 s{sT2}, s{sT2}, 6144"); a(f"s_add_u32 s{sT2}, s{sT2}, {XB}")
    a(f"v_add_u32 v{vXR}, s{sT2}, v55")
    a(f"s_and_b32 s{sT1}, s{sIDX}, 1")
    a(f"s_lshr_b32 s{sT0}, s{sIDX}, 1"); a(f"s_mul_i32 s{sT2}, s{sT0}, {48*128}"); a(f"s_add_u32 s{sT2}, s{sT2}, {OB}")
    a(f"v_lshlrev_b32 v{vOW}, 7, v{vQ}"); a(f"v_add_u32 v{vOW}, s{sT2}, v{vOW}")
    a(f"s_lshl_b32 s{sT3}, s{sT1}, 2")
    a(f"v_or_b32 v55, s{sT3}, v{vGq}")
    a(f"v_lshrrev_b32 v56, 1, v{vQ}"); a("v_xor_b32 v55, v55, v56")
    a(f"v_lshl_add_u32 v{vOW}, v55, 4, v{vOW}")
    R.wait_lg_all()
    for nt in range(3):
        mo, lo = 32 + 2*nt, 33 + 2*nt
        m, l = M2[nt], M2[nt] + 1
        a(f"v_max_f32 v38, v{m}, v{mo}")
        a(f"v_sub_f32 v{ALO[nt]}, v{m}, v38"); a(f"v_sub_f32 v{ALP[nt]}, v{mo}, v38")
        a(f"v_exp_f32 v{ALO[nt]}, v{ALO[nt]}"); a(f"v_exp_f32 v{ALP[nt]}, v{ALP[nt]}")
        a(f"v_mul_f32 v38, v{l}, v{ALO[nt]}")
        a(f"v_fma_f32 v38, v{lo}, v{ALP[nt]}, v38")
        a("v_rcp_f32 v38, v38")
        a(f"v_mul_f32 v{ALO[nt]}, v{ALO[nt]}, v38"); a(f"v_mul_f32 v{ALP[nt]}, v{ALP[nt]}, v38")

def a_PV(R, n, dma=None):
    a = R.a
    j, w = n >> 1, n & 1
    buf = KVA if w == 0 else KVB
    frs = [(s, mt) for s in range(4) for mt in range(4)]
    NB = 4
    def rd(k):
        s, mt = frs[k]
        b = KF + 4*(k % NB)
        R.lds(f"ds_read_b64_tr_b16 {vr(b,2)}, v{40+mt} offset:{buf + 4096*s}", f"vf{k}")
        R.lds(f"ds_read_b64_tr_b16 {vr(b+2,2)}, v{40+mt} offset:{buf + 4096*s + 2048}", f"vf{k}")
    for k in range(NB-1): rd(k)
    if dma and not cfg.interleave:
        for ii in range(8): kv_dma(R, dma[0], dma[1], ii)
        dma = None
    for k, (s, mt) in enumerate(frs):
        if k + NB - 1 < len(frs): rd(k + NB - 1)
        if dma and k < 8: kv_dma(R, dma[0], dma[1], k)
        R.wait_lg(f"vf{k}")
        for nt in range(3):
            d = Oa(mt, nt)
            c = "0" if (w == 0 and s == 0) else vr(d)
            a(f"v_mfma_f32_16x16x32_bf16 {vr(d)}, {vr(KF + 4*(k % NB))}, {vr(Pf(w,s,nt))}, {c}")

def a_rescale(R):
    a = R.a
    for mt in range(4):
        for nt in range(3):
            for h2 in (0, 2):
                b = Oa(mt, nt) + h2
                a(f"v_pk_mul_f32 {vr(b,2)}, {vr(b,2)}, {vr(BETA[nt],2)} op_sel_hi:[1,0]")

def a_xwrite(R):
    a = R.a
    for mt in (2, 3):
        for nt in range(3):
            R.lds(f"ds_write_b128 v{vXW}, {vr(Oa(mt,nt))} offset:{((mt-2)*3+nt)*1024}", "xw")

def a_xfinal(R, dma=None):
    a = R.a
    for nt in range(3):
        for i in range(2):
            R.lds(f"ds_read_b128 {vr(XT(i,nt))}, v{vXR} offset:{(i*3+nt)*1024}", f"xr{nt}")
    if dma:
        for ii in range(8): kv_dma(R, dma[0], dma[1], ii)
    for nt in range(3):
        for i in range(2):
            for h2 in (0, 2):
                b = Oa(i, nt) + h2
                a(f"v_pk_mul_f32 {vr(b,2)}, {vr(b,2)}, {vr(ALO[nt],2)} op_sel_hi:[1,0]")
    for nt in range(3):
        R.wait_lg(f"xr{nt}")
        for i in range(2):
            for h2 in (0, 2):
                b, x = Oa(i, nt) + h2, XT(i, nt) + h2
                a(f"v_pk_fma_f32 {vr(b,2)}, {vr(x,2)}, {vr(ALP[nt],2)}, {vr(b,2)} op_sel_hi:[1,0,1]")
        d = XT(0, nt)
        a(f"v_cvt_pk_bf16_f32 v{d}, v{Oa(0,nt)}, v{Oa(0,nt)+1}")
        a(f"v_cvt_pk_bf16_f32 v{d+1}, v{Oa(0,nt)+2}, v{Oa(0,nt)+3}")
        a(f"v_cvt_pk_bf16_f32 v{d+2}, v{Oa(1,nt)}, v{Oa(1,nt)+1}")
        a(f"v_cvt_pk_bf16_f32 v{d+3}, v{Oa(1,nt)+2}, v{Oa(1,nt)+3}")
        R.lds(f"ds_write_b128 v{vOW}, {vr(d)} offset:{2048*nt}", "ow")

PRING = 0
vWqD = 20
vWqR = 21
vQW = 25
PT = 26
def Xf(s, nt): return 40 + (s*3 + nt)*4
def Qa(mt, nt): return 208 + (mt*3 + nt)*4

def p_lane(a):
    a(f"v_mbcnt_lo_u32_b32 v{PT}, -1, 0"); a(f"v_mbcnt_hi_u32_b32 v{PT}, -1, v{PT}")
    a(f"v_and_b32 v{PT+1}, 15, v{PT}"); a(f"v_lshrrev_b32 v{PT+2}, 4, v{PT}")

def p_setup(R):
    a = R.a
    l, q, g = PT, PT+1, PT+2
    p = sIDX
    p_lane(a)
    a(f"s_mul_i32 s{sXo}, s{p}, 896")
    a(f"s_lshr_b32 s{sT0}, s{p}, 1")
    a(f"v_xor_b32 v{PT+3}, s{sT0}, v{l}"); a(f"v_lshlrev_b32 v{PT+3}, 4, v{PT+3}")
    for k in range(4):
        a(f"v_xor_b32 v{PT+4+k}, {(2*k) << 4}, v{PT+3}")
    a(f"s_mov_b64 s[{sEX}:{sEX+1}], exec")
    a("s_mov_b32 exec_hi, 0x00ffffff")
    for ii in range(12):
        base = (KVB + 3584*ii) if ii < 8 else (QB + 3584*(ii-8))
        a(f"s_add_u32 m0, s{sXo}, {base}")
        a(f"s_add_u32 s{sT1}, s{sXo}, {3584*ii}")
        R.vmem(f"buffer_load_dwordx4 v{PT+4 + (ii % 4)}, {srd(SRD_X)}, s{sT1} offen lds", "x")
    a(f"s_mov_b64 exec, s[{sEX}:{sEX+1}]")

def p_setup2(R):
    a = R.a
    l, q, g = PT, PT+1, PT+2
    p = sIDX
    a(f"s_lshl_b32 s{sWp}, s{p}, 14"); a(f"s_add_u32 s{sWp}, s{sWp}, {WB}")
    wq_dma_pattern(a, vWqD, l, g, PT+3, PT+4)
    a(f"v_lshrrev_b32 v{PT+3}, 2, v{l}")
    a(f"v_lshrrev_b32 v{PT+4}, 1, v{PT+3}"); a(f"v_and_b32 v{PT+4}, 3, v{PT+4}")
    a(f"v_lshlrev_b32 v{PT+5}, 7, v{PT+3}"); a(f"v_add_u32 v{PT+5}, s{sWp}, v{PT+5}")
    a(f"v_and_b32 v{PT+6}, 3, v{l}"); a(f"v_lshl_add_u32 v{PT+5}, v{PT+6}, 3, v{PT+5}")
    for mt in range(4):
        a(f"v_xor_b32 v{PT+6}, {mt}, v{PT+4}")
        a(f"v_lshl_add_u32 v{vWqR+mt}, v{PT+6}, 5, v{PT+5}")
    a(f"s_and_b32 s{sT0}, s{sIDX}, 1"); a(f"s_mul_i32 s{sT0}, s{sT0}, {48*128}")
    a(f"s_lshr_b32 s{sT1}, s{sIDX}, 1"); a(f"s_mul_i32 s{sT1}, s{sT1}, 12288")
    a(f"s_add_u32 s{sT0}, s{sT0}, s{sT1}"); a(f"s_add_u32 s{sT0}, s{sT0}, {QB}")
    a(f"v_lshlrev_b32 v{PT+5}, 7, v{q}"); a(f"v_add_u32 v{PT+5}, s{sT0}, v{PT+5}")
    a(f"v_and_b32 v{PT+6}, 1, v{g}"); a(f"v_lshl_add_u32 v{PT+5}, v{PT+6}, 3, v{PT+5}")
    a(f"v_lshrrev_b32 v{PT+6}, 1, v{g}"); a(f"v_lshrrev_b32 v{PT+3}, 1, v{q}"); a(f"v_xor_b32 v{PT+6}, v{PT+6}, v{PT+3}")
    a(f"v_lshl_add_u32 v{vQW}, v{PT+6}, 4, v{PT+5}")
    a(f"v_lshrrev_b32 v{PT+3}, 1, v{q}")
    a(f"v_lshrrev_b32 v{PT+4}, 1, v{g}"); a(f"v_xor_b32 v{PT+4}, v{PT+4}, v{PT+3}")
    a(f"s_mov_b32 s{sT0}, 896"); a(f"v_mul_lo_u32 v{PT+5}, s{sT0}, v{q}")
    a(f"v_and_b32 v{PT+6}, 1, v{g}"); a(f"v_lshl_add_u32 v{PT+5}, v{PT+6}, 3, v{PT+5}")
    a(f"v_add_u32 v{PT+5}, {KVB}, v{PT+5}")
    for k in range(4):
        a(f"v_xor_b32 v{PT+6}, {2*k}, v{PT+4}")
        a(f"v_lshl_add_u32 v{PT+7+k}, v{PT+6}, 4, v{PT+5}")

def p_xfrags(R):
    a = R.a
    for pas in range(2):
        for s in range(14):
            for nt in ((0, 1) if pas == 0 else (2,)):
                for half in range(2):
                    k = 2*(s & 1) + half
                    off = (14336*nt if pas == 0 else 0) + 128*(s >> 1)
                    R.lds_guard(1)
                    R.lds(f"ds_read_b64 {vr(Xf(s,nt)+2*half,2)}, v{PT+7+k} offset:{off}", "xf")
        if pas == 0:
            R.wait_lg_all()
            for k in range(4): a(f"v_add_u32 v{PT+7+k}, {QB-KVB}, v{PT+7+k}")
    R.wait_lg_all()

def p_qcompute(R, kaps, stream_next, hooks=None):
    a = R.a
    D = cfg.dq; NB = D + 1
    hooks = hooks or {}
    frs = [(kap, mt) for kap in kaps for mt in range(4)]
    def rd(f):
        kap, mt = frs[f]
        if mt == 0: R.wait_vm(f"w{kap}")
        b = PRING + 4*(f % NB)
        off = (kap % NSLOT_Q)*4096
        R.lds(f"ds_read_b64_tr_b16 {vr(b,2)}, v{vWqR+mt} offset:{off}", f"f{kap}_{mt}")
        R.lds(f"ds_read_b64_tr_b16 {vr(b+2,2)}, v{vWqR+mt} offset:{off + 2048}", f"f{kap}_{mt}")
    for f in range(min(D, len(frs))): rd(f)
    for f, (kap, mt) in enumerate(frs):
        J, s = divmod(kap, 14)
        if f + D < len(frs): rd(f + D)
        R.wait_lg(f"f{kap}_{mt}")
        if cfg.kst and mt == 0 and kap < 14 and kap % 2 == 0: lstamp(a, 26 + kap // 2)
        for nt in range(3):
            d = Qa(mt, nt)
            c = "0" if s == 0 else vr(d)
            a(f"v_mfma_f32_16x16x32_bf16 {vr(d)}, {vr(PRING + 4*(f % NB))}, {vr(Xf(s,nt))}, {c}")
        if stream_next and mt == 3 and kap + NSLOT_Q < 14: wq_dma(R, kap + NSLOT_Q, vWqD)
        if mt == 3 and kap in hooks: hooks[kap]()
    last = kaps[-1]
    if last % 14 == 13:
        if cfg.kst and last == 13: lstamp(a, 33)
        k = 0
        for m2 in range(4):
            a(f"v_xor_b32 v{PT+8}, {32*m2}, v{vQW}")
            for nt in range(3):
                d = Qa(m2, nt)
                t = PT + 2*(k % 4); k += 1
                a(f"v_cvt_pk_bf16_f32 v{t}, v{d}, v{d+1}")
                a(f"v_cvt_pk_bf16_f32 v{t+1}, v{d+2}, v{d+3}")
                R.lds_guard(1)
                R.lds(f"ds_write_b64 v{PT+8}, {vr(t,2)} offset:{2048*nt}", "qw")
        R.wait_lg("qw")

ORING = 0
vWoD = 32
vWoR = 34
vOR = 42
VT = 48
ALT = 208
PUB = [216 + 4*i for i in range(10)] + [20, 24]
def Outa(i, nt): return 64 + (i*3 + nt)*4
def Of(ks, nt): return 160 + (ks*3 + nt)*4

def p_vsetup(R, wide):
    a = R.a
    l, q, g = VT, VT+1, VT+2
    a(f"v_mbcnt_lo_u32_b32 v{l}, -1, 0"); a(f"v_mbcnt_hi_u32_b32 v{l}, -1, v{l}")
    a(f"v_and_b32 v{q}, 15, v{l}"); a(f"v_lshrrev_b32 v{g}, 4, v{l}")
    a(f"s_lshl_b32 s{sT0}, s{sIDX}, 8")
    if wide:
        a(f"v_bfe_u32 v{VT+3}, v{l}, 1, 3"); a(f"v_xor_b32 v{VT+3}, v{VT+3}, v{g}")
        a(f"s_mov_b32 s{sT1}, 896"); a(f"v_mul_lo_u32 v{VT+4}, s{sT1}, v{g}")
        a(f"v_and_b32 v{VT+5}, 1, v{l}"); a(f"v_lshl_add_u32 v{VT+4}, v{VT+5}, 4, v{VT+4}")
        a(f"v_add_u32 v{VT+4}, s{sT0}, v{VT+4}")
        a(f"v_lshl_add_u32 v{vWoD}, v{VT+3}, 5, v{VT+4}")
        a(f"v_xor_b32 v{VT+3}, 4, v{VT+3}"); a(f"v_lshl_add_u32 v{vWoD+1}, v{VT+3}, 5, v{VT+4}")
        a(f"v_lshrrev_b32 v{VT+3}, 2, v{l}"); a(f"v_and_b32 v{VT+4}, 7, v{VT+3}")
        a(f"v_lshlrev_b32 v{VT+5}, 8, v{VT+3}")
    else:
        a(f"v_lshrrev_b32 v{VT+3}, 3, v{l}"); a(f"s_mov_b32 s{sT1}, 896"); a(f"v_mul_lo_u32 v{VT+4}, s{sT1}, v{VT+3}")
        a(f"v_bfe_u32 v{VT+3}, v{l}, 1, 2"); a(f"v_xor_b32 v{VT+3}, v{VT+3}, v{g}")
        a(f"v_lshl_add_u32 v{VT+4}, v{VT+3}, 5, v{VT+4}")
        a(f"v_and_b32 v{VT+5}, 1, v{l}"); a(f"v_lshl_add_u32 v{VT+4}, v{VT+5}, 4, v{VT+4}")
        a(f"v_add_u32 v{vWoD}, s{sT0}, v{VT+4}")
        a(f"v_lshrrev_b32 v{VT+3}, 2, v{l}")
        a(f"v_lshrrev_b32 v{VT+4}, 1, v{VT+3}"); a(f"v_and_b32 v{VT+4}, 3, v{VT+4}")
        a(f"v_lshlrev_b32 v{VT+5}, 7, v{VT+3}")
    a(f"v_and_b32 v{VT+6}, 3, v{l}"); a(f"v_lshl_add_u32 v{VT+5}, v{VT+6}, 3, v{VT+5}")
    a(f"s_lshl_b32 s{sT1}, s{sIDX}, 13")
    for mt in range(8 if wide else 4):
        a(f"v_xor_b32 v{VT+6}, {mt}, v{VT+4}")
        a(f"v_lshl_add_u32 v{VT+7}, v{VT+6}, 5, v{VT+5}")
        a(f"v_add_u32 v{vWoR+mt}, s{sWp}, v{VT+7}")
        a(f"v_add_u32 v{ALT+mt}, s{sT1}, v{VT+7}")
    a(f"v_lshrrev_b32 v{VT+3}, 1, v{q}"); a(f"v_xor_b32 v{VT+3}, v{g}, v{VT+3}")
    a(f"v_lshlrev_b32 v{VT+4}, 7, v{q}"); a(f"v_add_u32 v{VT+4}, {OB}, v{VT+4}")
    a(f"v_lshl_add_u32 v{vOR}, v{VT+3}, 4, v{VT+4}")
    a(f"v_xor_b32 v{VT+3}, 4, v{VT+3}"); a(f"v_lshl_add_u32 v{vOR+1}, v{VT+3}, 4, v{VT+4}")
    a(f"s_lshl_b32 s{sM0}, s{sIDX}, 13")

def wo_slot(kap, wide):
    slot = 8192 if wide else 4096
    special = {14: ('kv', KVA), 15: ('kv', KVB)}
    if kap in special: return special[kap]
    return ('own', (kap % 2)*slot)

def wo_dma(R, kap, wide, ii_list=None):
    a = R.a
    j, ks = divmod(kap, 4); h, s = divmod(ks, 2)
    row0 = 256*h + 32*s
    area, off = wo_slot(kap, wide)
    base = sWp if area == 'own' else sM0
    for ii in (ii_list if ii_list is not None else range(8 if wide else 4)):
        a(f"s_add_u32 m0, s{base}, {off + 1024*ii}")
        rows = 4*ii if wide else 8*ii
        a(f"s_add_u32 s{sT1}, s{sCOL+4+j}, {(row0 + rows)*896}")
        pat = vWoD + ((ii & 1) if wide else 0)
        R.vmem(f"buffer_load_dwordx4 v{pat}, {srd(SRD_WO)}, s{sT1} offen {cfg.w_flags} lds", f"o{kap}")

def p_ofrags(R):
    for k2 in range(4):
        for nt in range(3):
            R.lds_guard(1)
            R.lds(f"ds_read_b128 {vr(Of(k2,nt))}, v{vOR + (k2 & 1)} offset:{6144*(k2 >> 1) + 2048*nt}", f"of{k2}")

def p_ocompute(R, kaps, wide, refill=None, publish=False):
    a = R.a
    NT = 8 if wide else 4
    D = 4; NB = 5
    rowb = 256 if wide else 128
    refill = refill or {}
    frs = [(kap, mt) for kap in kaps for mt in range(NT)]
    def rd(f):
        kap, mt = frs[f]
        if mt == 0: R.wait_vm(f"o{kap}")
        b = ORING + 4*(f % NB)
        area, off = wo_slot(kap, wide)
        addr = (vWoR if area == 'own' else ALT) + mt
        R.lds_guard(2)
        R.lds(f"ds_read_b64_tr_b16 {vr(b,2)}, v{addr} offset:{off}", f"f{kap}_{mt}")
        R.lds(f"ds_read_b64_tr_b16 {vr(b+2,2)}, v{addr} offset:{off + 16*rowb}", f"f{kap}_{mt}")
    for f in range(D): rd(f)
    pend = None
    npub = 0
    def pub_pair(ip):
        nonlocal npub
        for nt in range(3):
            t = PUB[npub]; npub += 1
            d0, d1 = Outa(2*ip, nt), Outa(2*ip+1, nt)
            a(f"v_cvt_pk_bf16_f32 v{t}, v{d0}, v{d0+1}"); a(f"v_cvt_pk_bf16_f32 v{t+1}, v{d0+2}, v{d0+3}")
            a(f"v_cvt_pk_bf16_f32 v{t+2}, v{d1}, v{d1+1}"); a(f"v_cvt_pk_bf16_f32 v{t+3}, v{d1+2}, v{d1+3}")
            a(f"s_add_u32 s{sT1}, s{sT2}, {1024*(ip*3 + nt)}")
            R.vmem(f"buffer_store_dwordx4 {vr(t)}, v{VT}, {srd(SRD_WS)}, s{sT1} offen sc0 sc1", "pub")
    if publish:
        a(f"v_mbcnt_lo_u32_b32 v{VT}, -1, 0"); a(f"v_mbcnt_hi_u32_b32 v{VT}, -1, v{VT}"); a(f"v_lshlrev_b32 v{VT}, 4, v{VT}")
        a(f"s_mul_i32 s{sT2}, s2, {PART}"); a(f"s_mul_i32 s{sT3}, s{sIDX}, {12*1024}"); a(f"s_add_u32 s{sT2}, s{sT2}, s{sT3}")
    for f, (kap, mt) in enumerate(frs):
        j, ks = divmod(kap, 4)
        if f + D < len(frs): rd(f + D)
        if pend is not None and mt < NT:
            wo_dma(R, pend, wide, [mt])
            if mt == NT - 1: pend = None
        R.wait_lg(f"f{kap}_{mt}")
        if mt == 0: R.wait_lg(f"of{ks}")
        for nt in range(3):
            d = Outa(mt, nt)
            c = "0" if kap == 0 else vr(d)
            a(f"v_mfma_f32_16x16x32_bf16 {vr(d)}, {vr(ORING + 4*(f % NB))}, {vr(Of(ks,nt))}, {c}")
        if cfg.tst and mt == NT - 1 and kap >= 10: lstamp(a, 26 + kap - 10)
        if mt == NT - 1 and kap in refill:
            if kap == kaps[-1]: wo_dma(R, refill[kap], wide)
            else: pend = refill[kap]
        if publish and kap == kaps[-1] and mt % 2 == 1 and mt >= 3:
            pub_pair((mt - 3)//2)
    if publish: pub_pair(NT//2 - 1)

def p_oproj_phase(R, bar, wide):
    a = R.a
    nbar = 0
    def b1():
        nonlocal nbar
        bar(); nbar += 1
    b1()
    if cfg.wo_first_after >= 6: wo_dma(R, 0, wide); wo_dma(R, 1, wide)
    b1()
    for j in range(3):
        a.comment(f"---- O projection chunk {j}")
        p_ofrags(R)
        p_ocompute(R, [4*j, 4*j+1], wide)
        wo_dma(R, 4*j+2, wide); wo_dma(R, 4*j+3, wide)
        b1()
        if j == 2: wo_dma(R, 14, wide)
        p_ocompute(R, [4*j+2, 4*j+3], wide)
        wo_dma(R, 4*j+4, wide); wo_dma(R, 4*j+5, wide)
        b1()
    wo_dma(R, 15, wide)
    p_ofrags(R)
    p_ocompute(R, [12, 13], wide)
    p_ocompute_last(R, wide)
    return nbar

def p_ocompute_last(R, wide):
    a = R.a
    NT = 8 if wide else 4
    D = 4; NB = 5
    rowb = 256 if wide else 128
    frs = [(kap, 2*ip + t) for ip in range(NT//2) for kap in (14, 15) for t in range(2)]
    def rd(f):
        kap, mt = frs[f]
        if f == 0: R.wait_vm("o14"); R.wait_vm("o15")
        b = ORING + 4*(f % NB)
        area, off = wo_slot(kap, wide)
        addr = (vWoR if area == 'own' else ALT) + mt
        R.lds_guard(2)
        R.lds(f"ds_read_b64_tr_b16 {vr(b,2)}, v{addr} offset:{off}", f"g{f}")
        R.lds(f"ds_read_b64_tr_b16 {vr(b+2,2)}, v{addr} offset:{off + 16*rowb}", f"g{f}")
    a(f"v_mbcnt_lo_u32_b32 v{VT}, -1, 0"); a(f"v_mbcnt_hi_u32_b32 v{VT}, -1, v{VT}"); a(f"v_lshlrev_b32 v{VT}, 4, v{VT}")
    a(f"s_mul_i32 s{sT2}, s2, {PART}"); a(f"s_mul_i32 s{sT3}, s{sIDX}, {12*1024}"); a(f"s_add_u32 s{sT2}, s{sT2}, s{sT3}")
    npub = 0
    def pub_pair(ip):
        nonlocal npub
        for nt in range(3):
            t = PUB[npub]; npub += 1
            d0, d1 = Outa(2*ip, nt), Outa(2*ip+1, nt)
            a(f"v_cvt_pk_bf16_f32 v{t}, v{d0}, v{d0+1}"); a(f"v_cvt_pk_bf16_f32 v{t+1}, v{d0+2}, v{d0+3}")
            a(f"v_cvt_pk_bf16_f32 v{t+2}, v{d1}, v{d1+1}"); a(f"v_cvt_pk_bf16_f32 v{t+3}, v{d1+2}, v{d1+3}")
            a(f"s_add_u32 s{sT1}, s{sT2}, {1024*(ip*3 + nt)}")
            R.vmem(f"buffer_store_dwordx4 {vr(t)}, v{VT}, {srd(SRD_WS)}, s{sT1} offen sc0 sc1", "pub")
    for f in range(D): rd(f)
    for f, (kap, mt) in enumerate(frs):
        ks = kap % 4
        if f + D < len(frs): rd(f + D)
        R.wait_lg(f"g{f}")
        for nt in range(3):
            d = Outa(mt, nt)
            a(f"v_mfma_f32_16x16x32_bf16 {vr(d)}, {vr(ORING + 4*(f % NB))}, {vr(Of(ks,nt))}, {vr(d)}")
        if f % 4 == 1 and f >= 5: pub_pair(f//4 - 1)
    pub_pair(NT//2 - 1)

def p_flag(R):
    a = R.a
    if cfg.tst: lstamp(a, 32)
    R.wait_vm_all()
    if cfg.tst: lstamp(a, 33)
    a(f"s_mul_i32 s{sT0}, s{sGRP}, {FSTR}"); a(f"s_add_u32 s{sT0}, s{sT0}, {FLG}")
    a(f"s_lshl_b32 s{sT1}, s{sG}, 2"); a(f"s_add_u32 s{sT1}, s{sT1}, s{sIDX}"); a(f"s_lshl_b32 s{sT1}, s{sT1}, 2")
    a(f"v_mov_b32 v2, s{sT1}"); a("v_mov_b32 v1, 1")
    a(f"s_mov_b64 s[{sEX}:{sEX+1}], exec")
    a("s_mov_b64 exec, 1")
    a(f"buffer_store_dword v1, v2, {srd(SRD_WS)}, s{sT0} offen sc0 sc1")
    a(f"s_mov_b64 exec, s[{sEX}:{sEX+1}]")

def emit_reduce(a):
    a.label("L_tail")
    if cfg.stamps: stamp(a, 50)
    a(f"s_min_u32 s{sT0}, s{sG}, 2"); a(f"s_mul_i32 s{sT1}, s{sG}, 5"); a(f"s_add_u32 s{sT0}, s{sT0}, s{sT1}")
    a(f"s_cmp_lt_u32 s{sG}, 2"); a(f"s_cselect_b32 s{sT1}, 6, 5")
    a(f"s_cmp_ge_u32 s{sWAVE}, s{sT1}")
    a("s_cbranch_scc1 " + ("L_nogather" if cfg.stamps else ("L_mini" if cfg.mini else "L_end")))
    a(f"s_add_u32 s{sT0}, s{sT0}, s{sWAVE}")
    a("v_mbcnt_lo_u32_b32 v3, -1, 0"); a("v_mbcnt_hi_u32_b32 v3, -1, v3")
    a("v_lshlrev_b32 v6, 4, v3"); a("v_lshlrev_b32 v0, 2, v3")
    a(f"s_mul_i32 s{sT2}, s{sT0}, 171"); a(f"s_lshr_b32 s{sT2}, s{sT2}, 9")
    a(f"s_mul_i32 s{sT3}, s{sT2}, 3"); a(f"s_sub_u32 s{sT3}, s{sT0}, s{sT3}")
    a(f"s_lshl_b32 s{sT3}, s{sT3}, 4"); a(f"s_mul_i32 s{sT1}, s{sB}, 48"); a(f"s_add_u32 s{sT3}, s{sT3}, s{sT1}")
    a(f"s_mul_i32 s{sT3}, s{sT3}, 1792"); a(f"s_lshl_b32 s{sT2}, s{sT2}, 6"); a(f"s_add_u32 s{sT3}, s{sT3}, s{sT2}")
    a(f"s_mul_i32 s{sT1}, s{sBR}, 896"); a(f"s_add_u32 s78, s{sT3}, s{sT1}") if not cfg.lstamps else None
    if cfg.lstamps: a(f"s_mul_i32 s{sT1}, s{sBR}, 896"); a(f"s_add_u32 s100, s{sT3}, s{sT1}")
    sOUT = 100 if cfg.lstamps else 78
    a("v_and_b32 v7, 15, v3"); a(f"s_mov_b32 s{sT1}, 1792"); a(f"v_mul_lo_u32 v7, s{sT1}, v7")
    a("v_bfe_u32 v8, v3, 4, 1"); a("v_lshl_add_u32 v7, v8, 5, v7")
    a("v_lshrrev_b32 v8, 5, v3"); a("v_lshl_add_u32 v7, v8, 4, v7")
    a(f"s_lshl_b32 s{sT1}, s{sB}, 4"); a(f"s_lshl_b32 s{sT2}, s{sBR}, 2"); a(f"s_add_u32 s{sT1}, s{sT1}, s{sT2}")
    a(f"s_mul_i32 s{sT1}, s{sT1}, {PART}"); a(f"s_lshl_b32 s{sT2}, s{sT0}, 10"); a(f"s_add_u32 s{sT3}, s{sT1}, s{sT2}")
    a(f"s_mul_i32 s{sT0}, s{sGRP}, {FSTR}"); a(f"s_add_u32 s{sT0}, s{sT0}, {FLG}")
    a(f"s_mov_b64 s[{sEX}:{sEX+1}], exec")
    a("s_mov_b32 exec_hi, 0")
    a(f"s_mov_b32 s{sT2}, 0")
    a.label("L_poll")
    a(f"buffer_load_dword v4, v0, {srd(SRD_WS)}, s{sT0} offen sc0 sc1")
    a("s_waitcnt vmcnt(0)")
    a("v_cmp_eq_u32 vcc, 1, v4")
    a("s_cmp_eq_u32 vcc_lo, -1")
    a("s_cbranch_scc1 L_poll_done")
    a(f"s_add_u32 s{sT2}, s{sT2}, 1")
    a(f"s_cmp_ge_u32 s{sT2}, 400000")
    a("s_cbranch_scc1 L_poll_done")
    if cfg.sleep: a(f"s_sleep {cfg.sleep}")
    a("s_branch L_poll")
    a.label("L_poll_done")
    a(f"s_mov_b64 exec, s[{sEX}:{sEX+1}]")
    if cfg.stamps: stamp(a, 52)
    for k in range(8):
        gb, gp = k >> 2, k & 3
        a(f"s_add_u32 s{sT2}, s{sT3}, {(gb*8 + gp)*PART}")
        a(f"buffer_load_dwordx4 {vr(64+4*k)}, v6, {srd(SRD_WS)}, s{sT2} offen sc0 sc1")
    acc = 16
    for k in range(8):
        a(f"s_waitcnt vmcnt({7-k})")
        for r in range(4):
            src = 64 + 4*k + r
            if k == 0:
                a(f"v_lshlrev_b32 v{acc+2*r}, 16, v{src}"); a(f"v_and_b32 v{acc+2*r+1}, 0xffff0000, v{src}")
            else:
                t = 8 + 2*(r & 1) + 2
                a(f"v_lshlrev_b32 v{t}, 16, v{src}"); a(f"v_and_b32 v{t+1}, 0xffff0000, v{src}")
                a(f"v_pk_add_f32 {vr(acc+2*r,2)}, {vr(acc+2*r,2)}, {vr(t,2)}")
    for r in range(4):
        a(f"v_cvt_pk_bf16_f32 v{12+r}, v{acc+2*r}, v{acc+2*r+1}")
    a("v_permlane16_swap_b32 v12, v14")
    a("v_permlane16_swap_b32 v13, v15")
    a(f"buffer_store_dwordx4 v[12:15], v7, {srd(SRD_OUT)}, s{sOUT} offen")
    if cfg.stamps:
        a("s_waitcnt vmcnt(0)")
        a.label("L_nogather")
        stamp(a, 53)
        a("s_memtime s[74:75]"); a("s_waitcnt lgkmcnt(0)"); a("v_writelane_b32 v61, s74, 61")
        stamp_store(a)
    if cfg.mini:
        a.label("L_mini")
        a("s_memrealtime s[72:73]"); a("s_waitcnt vmcnt(0) lgkmcnt(0)")
        a("s_memrealtime s[72:73]"); a("s_waitcnt lgkmcnt(0)")
        a("v_mov_b32 v61, 0"); a("v_writelane_b32 v61, s90, 62"); a("v_writelane_b32 v61, s72, 53")
        stamp_store(a)
    a.label("L_end")
    a("s_endpgm")

def build():
    a = Asm()
    if cfg.mini:
        a("s_memrealtime s[90:91]")
    if cfg.stamps:
        a("s_memrealtime s[72:73]"); a("s_memtime s[74:75]"); a("s_waitcnt lgkmcnt(0)")
        a("v_writelane_b32 v61, s72, 62"); a("v_writelane_b32 v61, s74, 60")
    emit_prologue(a)
    cnt = {"n": 0}
    def bar():
        a("s_barrier")
        if cfg.stamps: stamp(a, cnt["n"])
        cnt["n"] += 1
    A = Role(a)
    if cfg.prioA: a(f"s_setprio {cfg.prioA}")
    a_setup(A)
    if cfg.pf_first: a_pf(A, "wq")
    bar()
    if not cfg.pf_first: a_pf(A, "wq")
    a_setup2(A)
    bar()
    a0_flag_zero(A)
    for kap in range(4): wq_dma(A, kap, vWqA)
    a_issue_KV(A, "K", 0)
    a_setup3(A)
    a_pair_init(A)
    A.wait_vm("w3")
    a0_flag_mark(A)
    bar()
    bar()
    a_issue_KV(A, "K", 1)
    A.wait_vm("K0")
    bar()
    for k in range(6):
        if k == 4: a_flag_load(A)
        if k == cfg.pf_wo_at: a_pf(A, "wo")
        a_S(A, k, dma=("K", k+1) if k >= 1 else None)
        A.wait_vm(f"K{k+1}")
        if k == 4: a_flag_check(A)
        bar()
    a_S(A, 6, dma=("K", 7))
    bar()
    a_issue_KV(A, "V", 0)
    if cfg.split_sm: a_softmax1(A)
    A.wait_vm("K7")
    bar()
    a_S(A, 7)
    bar()
    a_issue_KV(A, "V", 1)
    if cfg.pf_wo_at == 8: a_pf(A, "wo")
    if not cfg.split_sm: a_softmax1(A)
    a_softmax2(A)
    A.wait_vm("V0")
    bar()
    a_alpha(A)
    a_pair_addr(A)
    for n in range(8):
        dma = ("V", n+1) if 1 <= n <= 6 else None
        a_PV(A, n, dma)
        if n % 2 == 0:
            a_rescale(A)
        else:
            a_xwrite(A)
            a_pair_sync(A, n >> 1)
            a_xfinal(A)
        if n < 7: A.wait_vm(f"V{n+1}")
        A.wait_lg_all()
        bar()
    nA = cnt["n"]
    A.wait_vm_all()
    a("s_branch L_tail")
    a.label("L_P")
    cnt["n"] = 0
    P = Role(a)
    stamp_move(a, 39)
    if cfg.stamps: stamp(a, 55)
    if cfg.prioP: a(f"s_setprio {cfg.prioP}")
    p_setup(P)
    if cfg.stamps: stamp(a, 56)
    bar()
    p_setup2(P)
    P.wait_vm("x"); bar()
    p_xfrags(P); bar()
    p_qcompute(P, list(range(14)), True, hooks={cfg.k1_after: bar})
    bar()
    for kap in (14, 15, 16, 17): wq_dma(P, kap, vWqD)
    for kaps, nxt in (([14,15], [18,19]), ([16,17,18,19], [20,21,22,23]), ([20,21,22,23], [24,25,26,27]), ([24,25,26,27], [])):
        p_qcompute(P, kaps, False)
        for kap in nxt: wq_dma(P, kap, vWqD)
        bar()
    a(f"s_cmp_eq_u32 s{sIDX}, 3")
    a("s_cbranch_scc1 L_P3")
    base = cnt["n"]
    for wide in (True, False):
        if not wide:
            a.label("L_P3"); cnt["n"] = base
        Pw = Role(a)
        STREG[0] = 39
        stamp_move(a, 47)
        p_vsetup(Pw, wide)
        for ib in range(6):
            if ib == cfg.wo_first_after: wo_dma(Pw, 0, wide); wo_dma(Pw, 1, wide)
            bar()
        nb = p_oproj_phase(Pw, bar, wide)
        assert nb == 8, nb
        if cfg.stamps: stamp(a, 59)
        p_flag(Pw)
        if cfg.stamps: stamp(a, 58)
        assert cnt["n"] == nA, (cnt["n"], nA)
        stamp_move(a, 61)
        if wide: a("s_branch L_tail")
    emit_reduce(a)
    a.finalize()
    return a

HEADER = open("cdna_kernels/" + NAME + ".s.ref").read().split("; Override launch")[0]
def full_text(a):
    s = HEADER
    s += f"; @launch grid=(256,1,1) block=(512,1,1) lds={LDS_BYTES}\n"
    s += f'.amdgcn_target "amdgcn-amd-amdhsa--gfx950"\n.text\n.globl {NAME}_kernel\n.p2align 8\n.type {NAME}_kernel,@function\n{NAME}_kernel:\n'
    s += a.text()
    s += f""".section .rodata,"a"
.p2align 6
.amdhsa_kernel {NAME}_kernel
  .amdhsa_next_free_vgpr 256
  .amdhsa_next_free_sgpr 102
  .amdhsa_accum_offset 256
  .amdhsa_group_segment_fixed_size 0
  .amdhsa_kernarg_size 104
  .amdhsa_user_sgpr_count 2
  .amdhsa_user_sgpr_kernarg_segment_ptr 1
  .amdhsa_system_sgpr_workgroup_id_x 1
.end_amdhsa_kernel
"""
    return s

if __name__ == "__main__":
    out = sys.argv[1] if len(sys.argv) > 1 else "cdna_kernels/" + NAME + ".s"
    for kv in sys.argv[2:]:
        k, v = kv.split("=", 1)
        cur = getattr(cfg, k)
        if isinstance(cur, bool): v = v.lower() in ("1", "true")
        elif isinstance(cur, int): v = int(v)
        setattr(cfg, k, v)
    a = build()
    open(out, "w").write(full_text(a))
    print("wrote", out, "instrs:", sum(1 for i in a.ins if i.kind not in ('none','label')), "nops inserted:", a.nops_inserted)
```

```python
import sys, math, struct
from asmlib import Asm

NAME = "concat_heads__gqa_block_cached__gqa_block_cached__near_ridge"

class Cfg:
    k_flags = "nt"
    v_flags = "nt"
    w_flags = ""
    pf = True
    pf_flags = ""
    stamps = False
    lstamps = False
    mini = False
    prioA = 0
    prioP = 0
    dq = 4
    pf_wo_at = 8
    k1_after = 9
    split_sm = True
    sleep = 0
    interleave = False
    pf_first = False
    wo_first_after = 7
    tst = False
    unpack = True
    tight = True
    rot = 1
    kst = False
cfg = Cfg()

KVA, KVB = 0, 32768
WB = 65536
QB = 131072
OB = 122880
XB = 135168
STAT = 159744
PFL = 161280
LDS_BYTES = 163840
PART = 43008
FLG = 16 << 20
FSTR = 8448
CHK = 12 << 20
sNON = 46
sWAVE, sIDX, sG, sB, sBR = 3, 4, 5, 6, 7
SRD_K, SRD_V, SRD_WQ, SRD_WO, SRD_X, SRD_OUT, SRD_WS = 8, 12, 16, 20, 24, 28, 32
sDBG = 58
sM0, sWp = 62, 63
sC = 64
sT0, sT1, sT2, sT3 = 66, 67, 68, 69
sEX = 70
sGRP, sXo = 76, 77
sCOL = 36
sJ = 44
def srd(b): return f"s[{b}:{b+3}]"
def vr(b, n=4): return f"v[{b}:{b+n-1}]"
def f32bits(x): return struct.unpack('<I', struct.pack('<f', x))[0]
vL, vQ, vGq = 44, 46, 47

class Role:
    def __init__(self, a): self.a = a; self.vm = []; self.lg = []
    def vmem(self, text, tag): self.a(text); self.vm.append(tag)
    def lds(self, text, tag): self.a(text); self.lg.append(tag)
    def wait_vm(self, tag):
        idx = [i for i, t in enumerate(self.vm) if t == tag]
        if not idx: return
        n = len(self.vm) - 1 - idx[-1]
        assert n <= 63
        self.a(f"s_waitcnt vmcnt({n})"); self.vm = self.vm[idx[-1]+1:]
    def wait_lg(self, tag):
        idx = [i for i, t in enumerate(self.lg) if t == tag]
        if not idx: return
        n = len(self.lg) - 1 - idx[-1]
        assert n <= 15, n
        self.a(f"s_waitcnt lgkmcnt({n})"); self.lg = self.lg[idx[-1]+1:]
    def wait_vm_all(self): self.a("s_waitcnt vmcnt(0)"); self.vm = []
    def wait_lg_all(self): self.a("s_waitcnt lgkmcnt(0)"); self.lg = []
    def lds_guard(self, n_new):
        if len(self.lg) + n_new > 15:
            keep = 15 - n_new
            self.a(f"s_waitcnt lgkmcnt({keep})"); self.lg = self.lg[len(self.lg)-keep:] if keep else []

STREG = [61]
PEND = []
def stamp(a, idx):
    a("s_memrealtime s[72:73]")
    a("s_waitcnt lgkmcnt(0)")
    a(f"v_writelane_b32 v{STREG[0]}, s72, {idx}")
    for (sp, i2) in PEND: a(f"v_writelane_b32 v{STREG[0]}, s{sp}, {i2}")
    PEND.clear()
def lstamp(a, idx):
    if not cfg.lstamps: return
    sp = 78 + 2*len(PEND)
    assert sp <= 98
    a(f"s_memrealtime s[{sp}:{sp+1}]")
    PEND.append((sp, idx))
def stamp_move(a, new):
    if cfg.stamps: a(f"v_mov_b32 v{new}, v{STREG[0]}")
    STREG[0] = new
def stamp_store(a):
    a(f"s_lshl_b32 s{sT0}, s2, 3"); a(f"s_add_u32 s{sT0}, s{sT0}, s{sWAVE}"); a(f"s_lshl_b32 s{sT0}, s{sT0}, 8")
    a("v_mbcnt_lo_u32_b32 v60, -1, 0"); a("v_mbcnt_hi_u32_b32 v60, -1, v60")
    a(f"v_lshlrev_b32 v60, 2, v60"); a(f"v_add_u32 v60, s{sT0}, v60")
    a("s_add_u32 s74, s60, 0x2000000"); a("s_addc_u32 s75, s61, 0")
    a("global_store_dword v60, v61, s[74:75]")
    a("s_waitcnt vmcnt(0)")

def emit_prologue(a):
    a("s_cmp_ge_u32 s2, 256")
    a("s_cbranch_scc1 L_end")
    a("s_load_dwordx16 s[36:51], s[0:1], 0")
    a("s_load_dwordx4 s[52:55], s[0:1], 64")
    a("s_load_dwordx4 s[56:59], s[0:1], 80")
    a("s_load_dwordx2 s[60:61], s[0:1], 96")
    a("v_and_b32 v44, 63, v0")
    a("v_lshrrev_b32 v45, 6, v0")
    a("v_and_b32 v46, 15, v44")
    a("v_lshrrev_b32 v47, 4, v44")
    a(f"v_readfirstlane_b32 s{sWAVE}, v45")
    a(f"s_bfe_u32 s{sBR}, s2, 0x10002")
    a(f"s_and_b32 s{sG}, s2, 3"); a(f"s_lshl_b32 s{sG}, s{sG}, 1")
    a(f"s_bfe_u32 s{sT0}, s2, 0x10003"); a(f"s_or_b32 s{sG}, s{sG}, s{sT0}")
    a(f"s_lshr_b32 s{sB}, s2, 4")
    a(f"s_and_b32 s{sIDX}, s{sWAVE}, 3")
    a(f"s_lshl_b32 s{sGRP}, s{sBR}, 4"); a(f"s_add_u32 s{sGRP}, s{sGRP}, s{sB}")
    a(f"s_mov_b32 s{sC}, 0x{f32bits(math.log2(math.e)/16.0):08x}"); a(f"s_mov_b32 s{sC+1}, s{sC}")
    a("s_waitcnt lgkmcnt(0)")
    if cfg.stamps: stamp(a, 54)
    a(f"s_cmp_eq_u32 s{sBR}, 0")
    for i in range(5):
        a(f"s_cselect_b64 s[{36+2*i}:{37+2*i}], s[{36+2*i}:{37+2*i}], s[{46+2*i}:{47+2*i}]")
    def mk(srdb, ptr, off_s, size):
        if off_s is None:
            a(f"s_mov_b32 s{srdb}, s{ptr}"); a(f"s_and_b32 s{srdb+1}, s{ptr+1}, 0xffff")
        else:
            a(f"s_add_u32 s{srdb}, s{ptr}, s{off_s}")
            a(f"s_addc_u32 s{srdb+1}, s{ptr+1}, 0")
            a(f"s_and_b32 s{srdb+1}, s{srdb+1}, 0xffff")
        if isinstance(size, int): a(f"s_mov_b32 s{srdb+2}, {size}")
        else: a(size)
        a(f"s_mov_b32 s{srdb+3}, 0x20000")
    a(f"s_mul_i32 s{sT1}, s{sB}, 43008")
    mk(SRD_X, 36, sT1, 43008)
    a(f"s_lshl_b32 s{sT1}, s{sG}, 10")
    mk(SRD_WQ, 42, sT1, f"s_sub_u32 s{SRD_WQ+2}, {448*8192}, s{sT1}")
    a(f"s_lshl_b32 s{sT0}, s{sB}, 3"); a(f"s_add_u32 s{sT0}, s{sT0}, s{sG}"); a(f"s_lshl_b32 s{sT0}, s{sT0}, 18")
    mk(SRD_K, 38, sT0, 262144)
    mk(SRD_V, 40, sT0, 262144)
    a(f"s_mul_i32 s{sT1}, s{sG}, 458752")
    mk(SRD_WO, 44, sT1, 458752)
    mk(SRD_OUT, 56, None, 16*48*896*2)
    mk(SRD_WS, 60, None, FLG + 32*FSTR)
    if cfg.rot == 0: a(f"s_mov_b32 s{sT0}, 0")
    elif cfg.rot == 1: a(f"s_and_b32 s{sT0}, s{sB}, 3")
    elif cfg.rot == 2: a(f"s_add_u32 s{sT0}, s{sB}, s{sG}"); a(f"s_and_b32 s{sT0}, s{sT0}, 3")
    elif cfg.rot == 3: a(f"s_and_b32 s{sT0}, s{sB}, 1"); a(f"s_lshl_b32 s{sT0}, s{sT0}, 1")
    for j in range(4):
        a(f"s_add_u32 s{sT1}, s{sT0}, {j}"); a(f"s_and_b32 s{sT1}, s{sT1}, 3")
        a(f"s_lshl_b32 s{sCOL+j}, s{sT1}, 7"); a(f"s_mul_i32 s{sCOL+4+j}, s{sT1}, {64*896}")
    a(f"s_lshr_b32 s{sT2}, s{sIDX}, 1")
    for J in range(2):
        a(f"s_add_u32 s{sT1}, s{sT0}, s{sT2}"); a(f"s_add_u32 s{sT1}, s{sT1}, {2*J}"); a(f"s_and_b32 s{sT1}, s{sT1}, 3")
        a(f"s_lshl_b32 s{sJ+J}, s{sT1}, 7")
    a(f"s_cmp_ge_u32 s{sWAVE}, 4")
    a("s_cbranch_scc1 L_P")

def wq_dma_pattern(a, dst, l, g, t0, t1):
    a(f"v_lshrrev_b32 v{t0}, 3, v{l}"); a(f"v_lshlrev_b32 v{t0}, 13, v{t0}")
    a(f"v_bfe_u32 v{t1}, v{l}, 1, 2"); a(f"v_xor_b32 v{t1}, v{t1}, v{g}")
    a(f"v_lshl_add_u32 v{t0}, v{t1}, 5, v{t0}")
    a(f"v_and_b32 v{t1}, 1, v{l}"); a(f"v_lshl_add_u32 v{t0}, v{t1}, 4, v{t0}")
    a(f"s_and_b32 s{sT0}, s{sIDX}, 1"); a(f"s_lshl_b32 s{sT0}, s{sT0}, 9")
    a(f"v_add_u32 v{dst}, s{sT0}, v{t0}")

NSLOT_Q = 4
def wq_dma(R, kap, vpat, ii_list=range(4)):
    a = R.a
    J, s = divmod(kap, 14)
    for ii in ii_list:
        a(f"s_add_u32 m0, s{sWp}, {(kap % NSLOT_Q)*4096 + 1024*ii}")
        a(f"s_add_u32 s{sT1}, s{sJ+J}, {(32*s + 8*ii)*8192}")
        R.vmem(f"buffer_load_dwordx4 v{vpat}, {srd(SRD_WQ)}, s{sT1} offen {cfg.w_flags} lds", f"w{kap}")

def S_(t, nt): return 64 + (t*3 + nt)*4
def Qf(s, nt): return (s*3 + nt)*4
KF = 24
vKdE, vKdO, vVd, vWqA = 48, 49, 50, 51

def a_setup(R):
    a = R.a
    a(f"s_lshl_b32 s{sM0}, s{sIDX}, 13")
    a(f"s_lshl_b32 s{sWp}, s{sIDX}, 14"); a(f"s_add_u32 s{sWp}, s{sWp}, {WB}")
    if cfg.pf:
        a(f"v_lshrrev_b32 v52, 3, v{vL}"); a("v_lshlrev_b32 v52, 13, v52")
        a(f"v_and_b32 v53, 7, v{vL}"); a("v_lshl_add_u32 v56, v53, 7, v52")
        a(f"s_mul_i32 s{sT2}, s{sB}, 28"); a(f"s_lshl_b32 s{sT3}, s{sIDX}, 3"); a(f"s_add_u32 s{sT2}, s{sT2}, s{sT3}")
        a(f"s_lshl_b32 s{sT2}, s{sT2}, 13")

def a_pf(R, which):
    a = R.a
    if not cfg.pf: return
    if which == "wq":
        R.vmem(f"buffer_load_dword v63, v56, {srd(SRD_WQ)}, s{sT2} offen {cfg.pf_flags}", "pf")
    else:
        a(f"v_lshlrev_b32 v58, 7, v{vL}")
        a(f"s_mul_i32 s{sT2}, s{sB}, 28672"); a(f"s_lshl_b32 s{sT3}, s{sIDX}, 13"); a(f"s_add_u32 s{sT2}, s{sT2}, s{sT3}")
        R.vmem(f"buffer_load_dword v62, v58, {srd(SRD_WO)}, s{sT2} offen {cfg.pf_flags}", "pf")

def a_setup2(R):
    a = R.a
    wq_dma_pattern(a, vWqA, vL, vGq, 52, 53)
    a(f"v_lshrrev_b32 v52, 3, v{vL}"); a("v_lshlrev_b32 v52, 9, v52")
    a(f"s_lshl_b32 s{sT1}, s{sIDX}, 15"); a(f"v_add_u32 v52, s{sT1}, v52")
    a(f"v_and_b32 v53, 7, v{vL}"); a(f"v_xor_b32 v54, v53, v{vGq}")
    a(f"v_lshl_add_u32 v{vKdE}, v54, 4, v52")
    a("v_xor_b32 v54, 4, v54"); a(f"v_lshl_add_u32 v{vKdO}, v54, 4, v52")
    a("v_lshrrev_b32 v54, 1, v53"); a(f"v_xor_b32 v54, v54, v{vGq}")
    a("v_lshl_add_u32 v54, v54, 5, v52")
    a(f"v_and_b32 v55, 1, v{vL}"); a(f"v_lshl_add_u32 v{vVd}, v55, 4, v54")

def a_setup3(R):
    a = R.a
    a(f"s_lshr_b32 s{sT0}, s{sIDX}, 1")
    a(f"s_and_b32 s{sT1}, s{sIDX}, 1")
    a(f"v_lshrrev_b32 v52, 1, v{vQ}")
    a(f"v_xor_b32 v53, v{vGq}, v52")
    a(f"v_xor_b32 v54, 4, v53")
    a(f"s_lshl_b32 s{sT2}, s{sT1}, 14")
    a(f"v_lshlrev_b32 v55, 7, v{vQ}")
    a(f"v_add_u32 v55, s{sT2}, v55")
    a(f"v_lshl_add_u32 v40, v53, 4, v55")
    a(f"v_lshl_add_u32 v41, v54, 4, v55")
    a(f"s_mul_i32 s{sT2}, s{sT0}, {48*128}")
    a(f"s_add_u32 s{sT2}, s{sT2}, {QB}")
    a(f"v_lshlrev_b32 v55, 7, v{vQ}")
    a(f"v_add_u32 v55, s{sT2}, v55")
    a(f"v_lshl_add_u32 v42, v53, 4, v55")
    a(f"v_lshl_add_u32 v43, v54, 4, v55")

def a_pair_init(R):
    a = R.a
    a(f"s_lshl_b32 s{sT0}, s{sIDX}, 4"); a(f"s_add_u32 s{sT0}, s{sT0}, {PFL}")
    a(f"v_mov_b32 v55, s{sT0}"); a("v_mov_b32 v56, 0")
    R.lds("ds_write_b32 v55, v56", "pf0")
    a(f"s_lshl_b32 s{sT0}, s{sIDX}, 2"); a(f"s_add_u32 s{sT0}, s{sT0}, {PFL + 64}"); a(f"v_mov_b32 v55, s{sT0}")
    R.lds("ds_write_b32 v55, v56", "pf0")
    R.wait_lg_all()

def a_pair_addr(R):
    a = R.a
    a(f"s_lshl_b32 s{sT0}, s{sIDX}, 4"); a(f"s_add_u32 s{sT0}, s{sT0}, {PFL}")
    a(f"v_mov_b32 v55, s{sT0}"); a(f"s_xor_b32 s{sT0}, s{sT0}, 16"); a(f"v_mov_b32 v56, s{sT0}")

def a_pair_sync(R, j):
    a = R.a
    R.wait_lg_all()
    a(f"v_mov_b32 v57, {j+1}")
    a("ds_write_b32 v55, v57")
    a.label(f"L_ps{j}")
    a("ds_read_b32 v57, v56")
    a("s_waitcnt lgkmcnt(0)")
    a(f"v_readfirstlane_b32 s{sT0}, v57")
    a(f"s_cmp_lt_u32 s{sT0}, {j+1}")
    a(f"s_cbranch_scc1 L_ps{j}")

def kv_dma(R, kind, n, ii):
    a = R.a
    j, w = n >> 1, n & 1
    buf = KVA if w == 0 else KVB
    a(f"s_add_u32 m0, s{sM0}, {buf + 1024*ii}")
    a(f"s_add_u32 s{sT1}, s{sCOL+j}, {131072*w + 4096*ii}")
    if kind == "K":
        R.vmem(f"buffer_load_dwordx4 v{vKdE + (ii & 1)}, {srd(SRD_K)}, s{sT1} offen {cfg.k_flags} lds", f"K{n}")
    else:
        R.vmem(f"buffer_load_dwordx4 v{vVd}, {srd(SRD_V)}, s{sT1} offen {cfg.v_flags} lds", f"V{n}")
def a_issue_KV(R, kind, n):
    R.a.comment(f"---- issue {kind} window {n}")
    for ii in range(8): kv_dma(R, kind, n, ii)

def a0_nonce(R):
    a = R.a
    a(f"s_or_b32 s{sT0}, s{sG}, s{sIDX}"); a(f"s_cmp_lg_u32 s{sT0}, 0"); a("s_cbranch_scc1 L_nz_skip")
    a("s_memrealtime s[72:73]"); a("s_waitcnt lgkmcnt(0)")
    a(f"s_lshl_b32 s{sT1}, s72, 1"); a(f"s_or_b32 s{sT1}, s{sT1}, 1")
    a(f"s_lshl_b32 s{sT0}, s{sGRP}, 2"); a(f"v_mov_b32 v58, s{sT0}"); a(f"v_mov_b32 v59, s{sT1}")
    a(f"s_mov_b64 s[{sEX}:{sEX+1}], exec"); a("s_mov_b64 exec, 1")
    a(f"global_store_dword v58, v59, s[{sDBG}:{sDBG+1}] sc0 sc1")
    a(f"s_mov_b64 exec, s[{sEX}:{sEX+1}]")
    a.label("L_nz_skip")

def nonce_load(R, va, vd):
    a = R.a
    a(f"s_lshl_b32 s{sT0}, s{sGRP}, 2"); a(f"v_mov_b32 v{va}, s{sT0}")
    R.vmem(f"global_load_dword v{vd}, v{va}, s[{sDBG}:{sDBG+1}] sc0 sc1", "chk")
def nonce_check(R, va, vd, lab):
    a = R.a
    R.wait_vm("chk")
    a(f"s_mov_b32 s{sT2}, 0")
    a.label(f"{lab}_poll")
    a(f"v_readfirstlane_b32 s{sNON}, v{vd}")
    a(f"s_cmp_lg_u32 s{sNON}, 0"); a(f"s_cbranch_scc1 {lab}_ok")
    a(f"s_add_u32 s{sT2}, s{sT2}, 1"); a(f"s_cmp_ge_u32 s{sT2}, 400000"); a(f"s_cbranch_scc1 {lab}_ok")
    a("s_sleep 2")
    a(f"global_load_dword v{vd}, v{va}, s[{sDBG}:{sDBG+1}] sc0 sc1")
    a("s_waitcnt vmcnt(0)")
    a(f"s_branch {lab}_poll")
    a.label(f"{lab}_ok")

def a_S(R, n, dma=None):
    a = R.a
    j, w = n >> 1, n & 1
    buf = KVA if w == 0 else KVB
    if w == 0:
        for s in range(2):
            for nt in range(3):
                R.lds(f"ds_read_b128 {vr(Qf(s,nt))}, v{42+s} offset:{12288*(j & 1) + 2048*nt}", "q")
    frs = [(i, s) for i in range(8) for s in range(2)]
    NB = 4
    def rd(k):
        i, s = frs[k]
        R.lds(f"ds_read_b128 {vr(KF + 4*(k % NB))}, v{40+s} offset:{buf + 2048*i}", f"kf{k}")
    for k in range(NB-1): rd(k)
    if dma and not cfg.interleave:
        for ii in range(8): kv_dma(R, dma[0], dma[1], ii)
        dma = None
    for k, (i, s) in enumerate(frs):
        if k + NB - 1 < len(frs): rd(k + NB - 1)
        if dma and k < 8: kv_dma(R, dma[0], dma[1], k)
        R.wait_lg(f"kf{k}")
        for nt in range(3):
            d = S_(8*w + i, nt)
            c = "0" if (j == 0 and s == 0) else vr(d)
            a(f"v_mfma_f32_16x16x32_bf16 {vr(d)}, {vr(KF + 4*(k % NB))}, {vr(Qf(s,nt))}, {c}")

M1 = (52, 54, 56)
L1 = (53, 55, 57)
BETA = (0, 2, 4); ALO = (6, 8, 10); ALP = (12, 14, 16)
ONES1, ONES2 = 36, 20
def Pf(w, s, nt): return S_(8*w + 2*s, nt)
def Oa(mt, nt): return S_(2*mt + 1, nt)
def XT(i, nt): return S_(9 + 2*i, nt)

def _rowmax(a, tiles, dst, tmp):
    for nt in range(3):
        m = dst[nt]
        vals = [S_(t, nt) + r for t in tiles for r in range(4)]
        a(f"v_max3_f32 v{m}, v{vals[0]}, v{vals[1]}, v{vals[2]}")
        a(f"v_max3_f32 v{tmp}, v{vals[3]}, v{vals[4]}, v{vals[5]}")
        k = 6
        while k + 3 < len(vals):
            a(f"v_max3_f32 v{m}, v{m}, v{vals[k]}, v{vals[k+1]}")
            a(f"v_max3_f32 v{tmp}, v{tmp}, v{vals[k+2]}, v{vals[k+3]}")
            k += 4
        rest = vals[k:]
        assert len(rest) == 2
        a(f"v_max3_f32 v{m}, v{m}, v{rest[0]}, v{rest[1]}")
        a(f"v_max_f32 v{m}, v{m}, v{tmp}")
    for nt in range(3):
        m = dst[nt]
        a(f"v_mov_b32 v{tmp+nt}, v{m}")
    for nt in range(3):
        a(f"v_permlane32_swap_b32 v{tmp+nt}, v{dst[nt]}")
    for nt in range(3):
        a(f"v_max_f32 v{dst[nt]}, v{tmp+nt}, v{dst[nt]}")
    for nt in range(3):
        a(f"v_mov_b32 v{tmp+nt}, v{dst[nt]}")
    for nt in range(3):
        a(f"v_permlane16_swap_b32 v{tmp+nt}, v{dst[nt]}")
    for nt in range(3):
        a(f"v_max_f32 v{dst[nt]}, v{tmp+nt}, v{dst[nt]}")
        a(f"v_mul_f32 v{dst[nt]}, s{sC}, v{dst[nt]}")

def _exppack(a, t0s, mreg):
    for t0 in t0s:
        for nt in range(3):
            m = mreg[nt]
            b0, b1 = S_(t0, nt), S_(t0+1, nt)
            for b in (b0, b0+2, b1, b1+2):
                a(f"v_pk_fma_f32 {vr(b,2)}, {vr(b,2)}, s[{sC}:{sC+1}], {vr(m,2)} op_sel_hi:[1,1,0] neg_lo:[0,0,1] neg_hi:[0,0,1]")
            src = [b0+r for r in range(4)] + [b1+r for r in range(4)]
            for v in src: a(f"v_exp_f32 v{v}, v{v}")
            a(f"v_cvt_pk_bf16_f32 v{b0}, v{src[0]}, v{src[1]}")
            a(f"v_cvt_pk_bf16_f32 v{b0+1}, v{src[2]}, v{src[3]}")
            a(f"v_cvt_pk_bf16_f32 v{b0+2}, v{src[4]}, v{src[5]}")
            a(f"v_cvt_pk_bf16_f32 v{b0+3}, v{src[6]}, v{src[7]}")

def _rowsum(a, w, ones, acc):
    for r in range(4): a(f"v_mov_b32 v{ones+r}, 0x3f803f80")
    for s in range(4):
        for nt in range(3):
            c = "0" if s == 0 else vr(acc(nt))
            a(f"v_mfma_f32_16x16x32_bf16 {vr(acc(nt))}, {vr(ones)}, {vr(Pf(w,s,nt))}, {c}")

def a_softmax1(R):
    a = R.a
    _rowmax(a, range(0, 8), M1, 24)
    _exppack(a, (0, 2, 4, 6), M1)
    _rowsum(a, 0, ONES1, lambda nt: S_(1, nt))
    for nt in range(3): a(f"v_mov_b32 v{L1[nt]}, v{S_(1,nt)}")

def a_softmax2(R):
    a = R.a
    M2 = (24, 26, 28)
    _rowmax(a, range(8, 16), M2, 30)
    for nt in range(3):
        a(f"v_max_f32 v{M2[nt]}, v{M2[nt]}, v{M1[nt]}")
        a(f"v_sub_f32 v{BETA[nt]}, v{M1[nt]}, v{M2[nt]}")
    for nt in range(3): a(f"v_exp_f32 v{BETA[nt]}, v{BETA[nt]}")
    _exppack(a, (8, 10, 12, 14), M2)
    _rowsum(a, 1, ONES2, lambda nt: S_(13, nt))
    a_vaddr(R)
    for nt in range(3):
        a(f"v_fma_f32 v{M2[nt]+1}, v{BETA[nt]}, v{L1[nt]}, v{S_(13,nt)}")
    for nt in range(3):
        R.lds(f"ds_write_b64 v59, {vr(M2[nt],2)} offset:{128*nt}", "st")
    R.wait_lg_all()

vXW, vXR, vOW = 52, 53, 54
def a_vaddr(R):
    a = R.a
    a(f"s_and_b32 s{sT1}, s{sIDX}, 1")
    a(f"v_lshrrev_b32 v32, 2, v{vL}")
    a(f"v_lshrrev_b32 v33, 1, v32"); a("v_and_b32 v33, 3, v33")
    a(f"s_lshl_b32 s{sT2}, s{sT1}, 14")
    a(f"v_lshlrev_b32 v34, 7, v32"); a(f"v_add_u32 v34, s{sT2}, v34")
    a(f"v_and_b32 v35, 3, v{vL}"); a(f"v_lshl_add_u32 v34, v35, 3, v34")
    a(f"s_lshl_b32 s{sT2}, s{sT1}, 1")
    a(f"v_xor_b32 v33, s{sT2}, v33")
    for mt in range(4):
        a(f"v_xor_b32 v35, {mt}, v33")
        a(f"v_lshl_add_u32 v{40+mt}, v35, 5, v34")
    a(f"s_mul_i32 s{sT0}, s{sIDX}, 384"); a(f"s_add_u32 s{sT0}, s{sT0}, {STAT}")
    a(f"v_lshlrev_b32 v59, 3, v{vQ}"); a(f"v_add_u32 v59, s{sT0}, v59")
    a(f"s_xor_b32 s{sT1}, s{sIDX}, 1"); a(f"s_mul_i32 s{sT1}, s{sT1}, 384"); a(f"s_add_u32 s{sT1}, s{sT1}, {STAT}")
    a(f"v_lshlrev_b32 v60, 3, v{vQ}"); a(f"v_add_u32 v60, s{sT1}, v60")

def a_alpha(R):
    a = R.a
    M2 = (24, 26, 28)
    for nt in range(3):
        R.lds(f"ds_read_b64 v[{32+2*nt}:{33+2*nt}], v60 offset:{128*nt}", "st")
    a(f"s_mul_i32 s{sT2}, s{sIDX}, 6144"); a(f"s_add_u32 s{sT2}, s{sT2}, {XB}")
    a(f"v_lshlrev_b32 v55, 4, v{vL}"); a(f"v_add_u32 v{vXW}, s{sT2}, v55")
    a(f"s_xor_b32 s{sT2}, s{sIDX}, 1"); a(f"s_mul_i32 s{sT2}, s{sT2}, 6144"); a(f"s_add_u32 s{sT2}, s{sT2}, {XB}")
    a(f"v_add_u32 v{vXR}, s{sT2}, v55")
    a(f"s_and_b32 s{sT1}, s{sIDX}, 1")
    a(f"s_lshr_b32 s{sT0}, s{sIDX}, 1"); a(f"s_mul_i32 s{sT2}, s{sT0}, {48*128}"); a(f"s_add_u32 s{sT2}, s{sT2}, {OB}")
    a(f"v_lshlrev_b32 v{vOW}, 7, v{vQ}"); a(f"v_add_u32 v{vOW}, s{sT2}, v{vOW}")
    a(f"s_lshl_b32 s{sT3}, s{sT1}, 2")
    a(f"v_or_b32 v55, s{sT3}, v{vGq}")
    a(f"v_lshrrev_b32 v56, 1, v{vQ}"); a("v_xor_b32 v55, v55, v56")
    a(f"v_lshl_add_u32 v{vOW}, v55, 4, v{vOW}")
    R.wait_lg_all()
    for nt in range(3):
        mo, lo = 32 + 2*nt, 33 + 2*nt
        m, l = M2[nt], M2[nt] + 1
        a(f"v_max_f32 v38, v{m}, v{mo}")
        a(f"v_sub_f32 v{ALO[nt]}, v{m}, v38"); a(f"v_sub_f32 v{ALP[nt]}, v{mo}, v38")
        a(f"v_exp_f32 v{ALO[nt]}, v{ALO[nt]}"); a(f"v_exp_f32 v{ALP[nt]}, v{ALP[nt]}")
        a(f"v_mul_f32 v38, v{l}, v{ALO[nt]}")
        a(f"v_fma_f32 v38, v{lo}, v{ALP[nt]}, v38")
        a("v_rcp_f32 v38, v38")
        a(f"v_mul_f32 v{ALO[nt]}, v{ALO[nt]}, v38"); a(f"v_mul_f32 v{ALP[nt]}, v{ALP[nt]}, v38")

def a_PV(R, n, dma=None):
    a = R.a
    j, w = n >> 1, n & 1
    buf = KVA if w == 0 else KVB
    frs = [(s, mt) for s in range(4) for mt in range(4)]
    if w == 1: frs = frs[:12] + [(3, 2), (3, 3), (3, 0), (3, 1)]
    NB = 4
    def rd(k):
        s, mt = frs[k]
        b = KF + 4*(k % NB)
        R.lds(f"ds_read_b64_tr_b16 {vr(b,2)}, v{40+mt} offset:{buf + 4096*s}", f"vf{k}")
        R.lds(f"ds_read_b64_tr_b16 {vr(b+2,2)}, v{40+mt} offset:{buf + 4096*s + 2048}", f"vf{k}")
    for k in range(NB-1): rd(k)
    if dma and not cfg.interleave:
        for ii in range(8): kv_dma(R, dma[0], dma[1], ii)
        dma = None
    for k, (s, mt) in enumerate(frs):
        if k + NB - 1 < len(frs): rd(k + NB - 1)
        if dma and k < 8: kv_dma(R, dma[0], dma[1], k)
        R.wait_lg(f"vf{k}")
        for nt in range(3):
            d = Oa(mt, nt)
            c = "0" if (w == 0 and s == 0) else vr(d)
            a(f"v_mfma_f32_16x16x32_bf16 {vr(d)}, {vr(KF + 4*(k % NB))}, {vr(Pf(w,s,nt))}, {c}")
        if w == 1 and k >= 14:
            m2 = k - 12
            for nt in range(3):
                R.lds(f"ds_write_b128 v{vXW}, {vr(Oa(m2,nt))} offset:{((m2-2)*3+nt)*1024}", "xw")

def a_rescale(R):
    a = R.a
    for mt in range(4):
        for nt in range(3):
            if cfg.unpack:
                for r in range(4): a(f"v_mul_f32 v{Oa(mt,nt)+r}, v{BETA[nt]}, v{Oa(mt,nt)+r}")
                continue
            for h2 in (0, 2):
                b = Oa(mt, nt) + h2
                a(f"v_pk_mul_f32 {vr(b,2)}, {vr(b,2)}, {vr(BETA[nt],2)} op_sel_hi:[1,0]")

def a_xwrite(R):
    a = R.a
    for mt in (2, 3):
        for nt in range(3):
            R.lds(f"ds_write_b128 v{vXW}, {vr(Oa(mt,nt))} offset:{((mt-2)*3+nt)*1024}", "xw")

def a_wait_pflags(R):
    a = R.a
    a(f"v_mov_b32 v57, {PFL + 64}")
    a.label("L_pw")
    a("ds_read_b128 v[28:31], v57")
    a("s_waitcnt lgkmcnt(0)")
    a("v_and_b32 v28, v28, v29"); a("v_and_b32 v30, v30, v31"); a("v_and_b32 v28, v28, v30")
    a(f"v_readfirstlane_b32 s{sT0}, v28")
    a(f"s_cmp_eq_u32 s{sT0}, 1")
    a("s_cbranch_scc0 L_pw")

def a_xfinal(R, dma=None):
    a = R.a
    for nt in range(3):
        for i in range(2):
            R.lds(f"ds_read_b128 {vr(XT(i,nt))}, v{vXR} offset:{(i*3+nt)*1024}", f"xr{nt}")
    if dma:
        for ii in range(8): kv_dma(R, dma[0], dma[1], ii)
    for nt in range(3):
        for i in range(2):
            if cfg.unpack:
                for r in range(4): a(f"v_mul_f32 v{Oa(i,nt)+r}, v{ALO[nt]}, v{Oa(i,nt)+r}")
                continue
            for h2 in (0, 2):
                b = Oa(i, nt) + h2
                a(f"v_pk_mul_f32 {vr(b,2)}, {vr(b,2)}, {vr(ALO[nt],2)} op_sel_hi:[1,0]")
    for nt in range(3):
        R.wait_lg(f"xr{nt}")
        for i in range(2):
            if cfg.unpack:
                for r in range(4): a(f"v_fma_f32 v{Oa(i,nt)+r}, v{XT(i,nt)+r}, v{ALP[nt]}, v{Oa(i,nt)+r}")
                continue
            for h2 in (0, 2):
                b, x = Oa(i, nt) + h2, XT(i, nt) + h2
                a(f"v_pk_fma_f32 {vr(b,2)}, {vr(x,2)}, {vr(ALP[nt],2)}, {vr(b,2)} op_sel_hi:[1,0,1]")
        d = XT(0, nt)
        a(f"v_cvt_pk_bf16_f32 v{d}, v{Oa(0,nt)}, v{Oa(0,nt)+1}")
        a(f"v_cvt_pk_bf16_f32 v{d+1}, v{Oa(0,nt)+2}, v{Oa(0,nt)+3}")
        a(f"v_cvt_pk_bf16_f32 v{d+2}, v{Oa(1,nt)}, v{Oa(1,nt)+1}")
        a(f"v_cvt_pk_bf16_f32 v{d+3}, v{Oa(1,nt)+2}, v{Oa(1,nt)+3}")
        R.lds(f"ds_write_b128 v{vOW}, {vr(d)} offset:{2048*nt}", "ow")

PRING = 0
vWqD = 20
vWqR = 21
vQW = 25
PT = 26
def Xf(s, nt): return 40 + (s*3 + nt)*4
def Qa(mt, nt): return 208 + (mt*3 + nt)*4

def p_lane(a):
    a(f"v_mbcnt_lo_u32_b32 v{PT}, -1, 0"); a(f"v_mbcnt_hi_u32_b32 v{PT}, -1, v{PT}")
    a(f"v_and_b32 v{PT+1}, 15, v{PT}"); a(f"v_lshrrev_b32 v{PT+2}, 4, v{PT}")

def p_setup(R):
    a = R.a
    l, q, g = PT, PT+1, PT+2
    p = sIDX
    p_lane(a)
    a(f"s_mul_i32 s{sXo}, s{p}, 896")
    a(f"s_lshr_b32 s{sT0}, s{p}, 1")
    a(f"v_xor_b32 v{PT+3}, s{sT0}, v{l}"); a(f"v_lshlrev_b32 v{PT+3}, 4, v{PT+3}")
    for k in range(4):
        a(f"v_xor_b32 v{PT+4+k}, {(2*k) << 4}, v{PT+3}")
    a(f"s_mov_b64 s[{sEX}:{sEX+1}], exec")
    a("s_mov_b32 exec_hi, 0x00ffffff")
    for ii in range(12):
        base = (KVB + 3584*ii) if ii < 8 else (QB + 3584*(ii-8))
        a(f"s_add_u32 m0, s{sXo}, {base}")
        a(f"s_add_u32 s{sT1}, s{sXo}, {3584*ii}")
        R.vmem(f"buffer_load_dwordx4 v{PT+4 + (ii % 4)}, {srd(SRD_X)}, s{sT1} offen lds", "x")
    a(f"s_mov_b64 exec, s[{sEX}:{sEX+1}]")

def p_setup2(R):
    a = R.a
    l, q, g = PT, PT+1, PT+2
    p = sIDX
    a(f"s_lshl_b32 s{sWp}, s{p}, 14"); a(f"s_add_u32 s{sWp}, s{sWp}, {WB}")
    wq_dma_pattern(a, vWqD, l, g, PT+3, PT+4)
    a(f"v_lshrrev_b32 v{PT+3}, 2, v{l}")
    a(f"v_lshrrev_b32 v{PT+4}, 1, v{PT+3}"); a(f"v_and_b32 v{PT+4}, 3, v{PT+4}")
    a(f"v_lshlrev_b32 v{PT+5}, 7, v{PT+3}"); a(f"v_add_u32 v{PT+5}, s{sWp}, v{PT+5}")
    a(f"v_and_b32 v{PT+6}, 3, v{l}"); a(f"v_lshl_add_u32 v{PT+5}, v{PT+6}, 3, v{PT+5}")
    for mt in range(4):
        a(f"v_xor_b32 v{PT+6}, {mt}, v{PT+4}")
        a(f"v_lshl_add_u32 v{vWqR+mt}, v{PT+6}, 5, v{PT+5}")
    a(f"s_and_b32 s{sT0}, s{sIDX}, 1"); a(f"s_mul_i32 s{sT0}, s{sT0}, {48*128}")
    a(f"s_lshr_b32 s{sT1}, s{sIDX}, 1"); a(f"s_mul_i32 s{sT1}, s{sT1}, 12288")
    a(f"s_add_u32 s{sT0}, s{sT0}, s{sT1}"); a(f"s_add_u32 s{sT0}, s{sT0}, {QB}")
    a(f"v_lshlrev_b32 v{PT+5}, 7, v{q}"); a(f"v_add_u32 v{PT+5}, s{sT0}, v{PT+5}")
    a(f"v_and_b32 v{PT+6}, 1, v{g}"); a(f"v_lshl_add_u32 v{PT+5}, v{PT+6}, 3, v{PT+5}")
    a(f"v_lshrrev_b32 v{PT+6}, 1, v{g}"); a(f"v_lshrrev_b32 v{PT+3}, 1, v{q}"); a(f"v_xor_b32 v{PT+6}, v{PT+6}, v{PT+3}")
    a(f"v_lshl_add_u32 v{vQW}, v{PT+6}, 4, v{PT+5}")
    a(f"v_lshrrev_b32 v{PT+3}, 1, v{q}")
    a(f"v_lshrrev_b32 v{PT+4}, 1, v{g}"); a(f"v_xor_b32 v{PT+4}, v{PT+4}, v{PT+3}")
    a(f"s_mov_b32 s{sT0}, 896"); a(f"v_mul_lo_u32 v{PT+5}, s{sT0}, v{q}")
    a(f"v_and_b32 v{PT+6}, 1, v{g}"); a(f"v_lshl_add_u32 v{PT+5}, v{PT+6}, 3, v{PT+5}")
    a(f"v_add_u32 v{PT+5}, {KVB}, v{PT+5}")
    for k in range(4):
        a(f"v_xor_b32 v{PT+6}, {2*k}, v{PT+4}")
        a(f"v_lshl_add_u32 v{PT+7+k}, v{PT+6}, 4, v{PT+5}")

def p_xfrags(R):
    a = R.a
    for pas in range(2):
        for s in range(14):
            for nt in ((0, 1) if pas == 0 else (2,)):
                for half in range(2):
                    k = 2*(s & 1) + half
                    off = (14336*nt if pas == 0 else 0) + 128*(s >> 1)
                    R.lds_guard(1)
                    R.lds(f"ds_read_b64 {vr(Xf(s,nt)+2*half,2)}, v{PT+7+k} offset:{off}", "xf")
        if pas == 0:
            R.wait_lg_all()
            for k in range(4): a(f"v_add_u32 v{PT+7+k}, {QB-KVB}, v{PT+7+k}")
    R.wait_lg_all()

def p_qcompute(R, kaps, stream_next, hooks=None):
    a = R.a
    D = cfg.dq; NB = D + 1
    hooks = hooks or {}
    frs = [(kap, mt) for kap in kaps for mt in range(4)]
    def rd(f):
        kap, mt = frs[f]
        if mt == 0: R.wait_vm(f"w{kap}")
        b = PRING + 4*(f % NB)
        off = (kap % NSLOT_Q)*4096
        R.lds(f"ds_read_b64_tr_b16 {vr(b,2)}, v{vWqR+mt} offset:{off}", f"f{kap}_{mt}")
        R.lds(f"ds_read_b64_tr_b16 {vr(b+2,2)}, v{vWqR+mt} offset:{off + 2048}", f"f{kap}_{mt}")
    for f in range(min(D, len(frs))): rd(f)
    for f, (kap, mt) in enumerate(frs):
        J, s = divmod(kap, 14)
        if f + D < len(frs): rd(f + D)
        R.wait_lg(f"f{kap}_{mt}")
        if cfg.kst and mt == 0 and kap < 14 and kap % 2 == 0: lstamp(a, 26 + kap // 2)
        for nt in range(3):
            d = Qa(mt, nt)
            c = "0" if s == 0 else vr(d)
            a(f"v_mfma_f32_16x16x32_bf16 {vr(d)}, {vr(PRING + 4*(f % NB))}, {vr(Xf(s,nt))}, {c}")
        if stream_next and mt == 3 and kap + NSLOT_Q < 14: wq_dma(R, kap + NSLOT_Q, vWqD)
        if mt == 3 and kap in hooks: hooks[kap]()
    last = kaps[-1]
    if last % 14 == 13:
        if cfg.kst and last == 13: lstamp(a, 33)
        k = 0
        for m2 in range(4):
            a(f"v_xor_b32 v{PT+8}, {32*m2}, v{vQW}")
            for nt in range(3):
                d = Qa(m2, nt)
                t = PT + 2*(k % 4); k += 1
                a(f"v_cvt_pk_bf16_f32 v{t}, v{d}, v{d+1}")
                a(f"v_cvt_pk_bf16_f32 v{t+1}, v{d+2}, v{d+3}")
                R.lds_guard(1)
                R.lds(f"ds_write_b64 v{PT+8}, {vr(t,2)} offset:{2048*nt}", "qw")
        R.wait_lg("qw")

ORING = 0
vWoD = 32
vWoR = 34
vOR = 42
VT = 48
ALT = 208
PUB = [216 + 4*i for i in range(10)] + [20, 24]
def Outa(i, nt): return 64 + (i*3 + nt)*4
def Of(ks, nt): return 160 + (ks*3 + nt)*4

def p_vsetup(R, wide):
    a = R.a
    l, q, g = VT, VT+1, VT+2
    a(f"v_mbcnt_lo_u32_b32 v{l}, -1, 0"); a(f"v_mbcnt_hi_u32_b32 v{l}, -1, v{l}")
    a(f"v_and_b32 v{q}, 15, v{l}"); a(f"v_lshrrev_b32 v{g}, 4, v{l}")
    a(f"s_lshl_b32 s{sT0}, s{sIDX}, 8")
    if wide:
        a(f"v_bfe_u32 v{VT+3}, v{l}, 1, 3"); a(f"v_xor_b32 v{VT+3}, v{VT+3}, v{g}")
        a(f"s_mov_b32 s{sT1}, 896"); a(f"v_mul_lo_u32 v{VT+4}, s{sT1}, v{g}")
        a(f"v_and_b32 v{VT+5}, 1, v{l}"); a(f"v_lshl_add_u32 v{VT+4}, v{VT+5}, 4, v{VT+4}")
        a(f"v_add_u32 v{VT+4}, s{sT0}, v{VT+4}")
        a(f"v_lshl_add_u32 v{vWoD}, v{VT+3}, 5, v{VT+4}")
        a(f"v_xor_b32 v{VT+3}, 4, v{VT+3}"); a(f"v_lshl_add_u32 v{vWoD+1}, v{VT+3}, 5, v{VT+4}")
        a(f"v_lshrrev_b32 v{VT+3}, 2, v{l}"); a(f"v_and_b32 v{VT+4}, 7, v{VT+3}")
        a(f"v_lshlrev_b32 v{VT+5}, 8, v{VT+3}")
    else:
        a(f"v_lshrrev_b32 v{VT+3}, 3, v{l}"); a(f"s_mov_b32 s{sT1}, 896"); a(f"v_mul_lo_u32 v{VT+4}, s{sT1}, v{VT+3}")
        a(f"v_bfe_u32 v{VT+3}, v{l}, 1, 2"); a(f"v_xor_b32 v{VT+3}, v{VT+3}, v{g}")
        a(f"v_lshl_add_u32 v{VT+4}, v{VT+3}, 5, v{VT+4}")
        a(f"v_and_b32 v{VT+5}, 1, v{l}"); a(f"v_lshl_add_u32 v{VT+4}, v{VT+5}, 4, v{VT+4}")
        a(f"v_add_u32 v{vWoD}, s{sT0}, v{VT+4}")
        a(f"v_lshrrev_b32 v{VT+3}, 2, v{l}")
        a(f"v_lshrrev_b32 v{VT+4}, 1, v{VT+3}"); a(f"v_and_b32 v{VT+4}, 3, v{VT+4}")
        a(f"v_lshlrev_b32 v{VT+5}, 7, v{VT+3}")
    a(f"v_and_b32 v{VT+6}, 3, v{l}"); a(f"v_lshl_add_u32 v{VT+5}, v{VT+6}, 3, v{VT+5}")
    a(f"s_lshl_b32 s{sT1}, s{sIDX}, 13")
    for mt in range(8 if wide else 4):
        a(f"v_xor_b32 v{VT+6}, {mt}, v{VT+4}")
        a(f"v_lshl_add_u32 v{VT+7}, v{VT+6}, 5, v{VT+5}")
        a(f"v_add_u32 v{vWoR+mt}, s{sWp}, v{VT+7}")
        a(f"v_add_u32 v{ALT+mt}, s{sT1}, v{VT+7}")
    a(f"v_lshrrev_b32 v{VT+3}, 1, v{q}"); a(f"v_xor_b32 v{VT+3}, v{g}, v{VT+3}")
    a(f"v_lshlrev_b32 v{VT+4}, 7, v{q}"); a(f"v_add_u32 v{VT+4}, {OB}, v{VT+4}")
    a(f"v_lshl_add_u32 v{vOR}, v{VT+3}, 4, v{VT+4}")
    a(f"v_xor_b32 v{VT+3}, 4, v{VT+3}"); a(f"v_lshl_add_u32 v{vOR+1}, v{VT+3}, 4, v{VT+4}")
    a(f"s_lshl_b32 s{sM0}, s{sIDX}, 13")

def wo_slot(kap, wide):
    slot = 8192 if wide else 4096
    if cfg.tight: special = {14: ('kv', KVA), 15: ('kv', KVB)}
    else: special = {10: ('kv', KVA), 11: ('own', 0), 12: ('own', slot), 13: ('own', 0), 14: ('kv', KVA), 15: ('kv', KVB)}
    if kap in special: return special[kap]
    return ('own', (kap % 2)*slot)

def wo_dma(R, kap, wide, ii_list=None):
    a = R.a
    j, ks = divmod(kap, 4); h, s = divmod(ks, 2)
    row0 = 256*h + 32*s
    area, off = wo_slot(kap, wide)
    base = sWp if area == 'own' else sM0
    for ii in (ii_list if ii_list is not None else range(8 if wide else 4)):
        a(f"s_add_u32 m0, s{base}, {off + 1024*ii}")
        rows = 4*ii if wide else 8*ii
        a(f"s_add_u32 s{sT1}, s{sCOL+4+j}, {(row0 + rows)*896}")
        pat = vWoD + ((ii & 1) if wide else 0)
        R.vmem(f"buffer_load_dwordx4 v{pat}, {srd(SRD_WO)}, s{sT1} offen {cfg.w_flags} lds", f"o{kap}")

def p_ofrags(R):
    for k2 in range(4):
        for nt in range(3):
            R.lds_guard(1)
            R.lds(f"ds_read_b128 {vr(Of(k2,nt))}, v{vOR + (k2 & 1)} offset:{6144*(k2 >> 1) + 2048*nt}", f"of{k2}")

def p_of(R, k2):
    for nt in range(3):
        R.lds_guard(1)
        R.lds(f"ds_read_b128 {vr(Of(k2,nt))}, v{vOR + (k2 & 1)} offset:{6144*(k2 >> 1) + 2048*nt}", f"of{k2}")

def p_ocompute(R, kaps, wide, inter=None, ofr=False, signal=False):
    a = R.a
    NT = 8 if wide else 4
    D = 4; NB = 5
    rowb = 256 if wide else 128
    inter = inter or {}
    frs = [(kap, mt) for kap in kaps for mt in range(NT)]
    def rd(f):
        kap, mt = frs[f]
        if mt == 0: R.wait_vm(f"o{kap}")
        b = ORING + 4*(f % NB)
        area, off = wo_slot(kap, wide)
        addr = (vWoR if area == 'own' else ALT) + mt
        R.lds_guard(2)
        R.lds(f"ds_read_b64_tr_b16 {vr(b,2)}, v{addr} offset:{off}", f"f{kap}_{mt}")
        R.lds(f"ds_read_b64_tr_b16 {vr(b+2,2)}, v{addr} offset:{off + 16*rowb}", f"f{kap}_{mt}")
    if ofr: p_of(R, 0)
    for f in range(D): rd(f)
    for f, (kap, mt) in enumerate(frs):
        j, ks = divmod(kap, 4)
        if f + D < len(frs): rd(f + D)
        if ofr and f < 3: p_of(R, f + 1)
        if signal and f == 3:
            R.wait_lg("of3")
            a(f"s_lshl_b32 s{sT0}, s{sIDX}, 2"); a(f"s_add_u32 s{sT0}, s{sT0}, {PFL + 64}")
            a(f"v_mov_b32 v{VT+1}, s{sT0}"); a(f"v_mov_b32 v{VT+2}, 1")
            R.lds(f"ds_write_b32 v{VT+1}, v{VT+2}", "sig")
        for (k2, ii) in inter.get(f, []): wo_dma(R, k2, wide, [ii])
        R.wait_lg(f"f{kap}_{mt}")
        if mt == 0: R.wait_lg(f"of{ks}")
        for nt in range(3):
            d = Outa(mt, nt)
            c = "0" if kap == 0 else vr(d)
            a(f"v_mfma_f32_16x16x32_bf16 {vr(d)}, {vr(ORING + 4*(f % NB))}, {vr(Of(ks,nt))}, {c}")
        if cfg.tst and mt == NT - 1 and kap >= 10: lstamp(a, 26 + kap - 10)

def p_oproj_phase(R, bar, wide):
    a = R.a
    NT = 8 if wide else 4
    nbar = 0
    def b1():
        nonlocal nbar
        bar(); nbar += 1
    b1()
    wo_dma(R, 0, wide); wo_dma(R, 1, wide)
    b1(); b1()
    for j in range(2):
        a.comment(f"---- O projection chunk {j}")
        p_ocompute(R, [4*j, 4*j+1], wide, ofr=True)
        wo_dma(R, 4*j+2, wide); wo_dma(R, 4*j+3, wide)
        b1()
        p_ocompute(R, [4*j+2, 4*j+3], wide)
        wo_dma(R, 4*j+4, wide); wo_dma(R, 4*j+5, wide)
        b1()
    inter = {}
    for slot_k, k2 in enumerate((10, 11, 12, 14)):
        for f in range(NT): inter[slot_k*NT + f] = [(k2, f)]
    p_ocompute(R, [8, 9, 10, 11], wide, inter=inter, ofr=True, signal=True)
    wo_dma(R, 13, wide)
    b1()
    p_ocompute(R, [12, 13], wide, inter={f: [(15, f)] for f in range(NT)}, ofr=True)
    p_ocompute_last(R, wide)
    return nbar

def p_oproj_phase_tight(R, bar, wide):
    a = R.a
    NT = 8 if wide else 4
    nbar = 0
    def b1():
        nonlocal nbar
        bar(); nbar += 1
    b1()
    if cfg.wo_first_after >= 6: wo_dma(R, 0, wide); wo_dma(R, 1, wide)
    b1()
    for j in range(3):
        a.comment(f"---- O projection chunk {j}")
        p_ocompute(R, [4*j, 4*j+1], wide, ofr=True)
        wo_dma(R, 4*j+2, wide); wo_dma(R, 4*j+3, wide)
        b1()
        if j < 2:
            p_ocompute(R, [4*j+2, 4*j+3], wide)
            wo_dma(R, 4*j+4, wide); wo_dma(R, 4*j+5, wide)
        else:
            inter = {f: [(14, f)] for f in range(NT)}
            inter.update({NT + f: [(12, f)] for f in range(NT)})
            p_ocompute(R, [10, 11], wide, inter=inter)
            wo_dma(R, 13, wide)
        b1()
    p_ocompute(R, [12, 13], wide, inter={f: [(15, f)] for f in range(NT)}, ofr=True)
    p_ocompute_last(R, wide)
    return nbar

def p_ocompute_last(R, wide):
    a = R.a
    NT = 8 if wide else 4
    D = 4; NB = 5
    rowb = 256 if wide else 128
    frs = [(kap, 2*ip + t) for ip in range(NT//2) for kap in (14, 15) for t in range(2)]
    def rd(f):
        kap, mt = frs[f]
        if f == 0: R.wait_vm("o14"); R.wait_vm("o15")
        b = ORING + 4*(f % NB)
        area, off = wo_slot(kap, wide)
        addr = (vWoR if area == 'own' else ALT) + mt
        R.lds_guard(2)
        R.lds(f"ds_read_b64_tr_b16 {vr(b,2)}, v{addr} offset:{off}", f"g{f}")
        R.lds(f"ds_read_b64_tr_b16 {vr(b+2,2)}, v{addr} offset:{off + 16*rowb}", f"g{f}")
    a(f"v_mbcnt_lo_u32_b32 v{VT}, -1, 0"); a(f"v_mbcnt_hi_u32_b32 v{VT}, -1, v{VT}"); a(f"v_lshlrev_b32 v{VT}, 4, v{VT}")
    a(f"s_mul_i32 s{sT2}, s2, {PART}"); a(f"s_mul_i32 s{sT3}, s{sIDX}, {12*1024}"); a(f"s_add_u32 s{sT2}, s{sT2}, s{sT3}")
    a(f"s_mul_i32 s{sT3}, s2, 14336"); a(f"s_lshl_b32 s{sT1}, s{sIDX}, 12"); a(f"s_add_u32 s{sT3}, s{sT3}, s{sT1}"); a(f"s_add_u32 s{sT3}, s{sT3}, {CHK}")
    CK = [28, 56, 60, 44] if wide else [28, 56]
    npub = 0
    def pub_pair(ip):
        nonlocal npub
        for nt in range(3):
            t = PUB[npub]; npub += 1
            d0, d1 = Outa(2*ip, nt), Outa(2*ip+1, nt)
            a(f"v_cvt_pk_bf16_f32 v{t}, v{d0}, v{d0+1}"); a(f"v_cvt_pk_bf16_f32 v{t+1}, v{d0+2}, v{d0+3}")
            a(f"v_cvt_pk_bf16_f32 v{t+2}, v{d1}, v{d1+1}"); a(f"v_cvt_pk_bf16_f32 v{t+3}, v{d1+2}, v{d1+3}")
            a(f"s_add_u32 s{sT1}, s{sT2}, {1024*(ip*3 + nt)}")
            R.vmem(f"buffer_store_dwordx4 {vr(t)}, v{VT}, {srd(SRD_WS)}, s{sT1} offen sc0 sc1", "pub")
            c = CK[ip] + nt
            a(f"v_bitop3_b32 v{c}, v{t}, v{t+1}, v{t+2} bitop3:0x96")
            a(f"v_bitop3_b32 v{c}, v{c}, v{t+3}, s{sNON} bitop3:0x96")
        a(f"s_add_u32 s{sT1}, s{sT3}, {1024*ip}")
        R.vmem(f"buffer_store_dwordx4 {vr(CK[ip])}, v{VT}, {srd(SRD_WS)}, s{sT1} offen sc0 sc1", "pub")
    for f in range(D): rd(f)
    for f, (kap, mt) in enumerate(frs):
        ks = kap % 4
        if f + D < len(frs): rd(f + D)
        R.wait_lg(f"g{f}")
        for nt in range(3):
            d = Outa(mt, nt)
            a(f"v_mfma_f32_16x16x32_bf16 {vr(d)}, {vr(ORING + 4*(f % NB))}, {vr(Of(ks,nt))}, {vr(d)}")
        if f % 4 == 1 and f >= 5: pub_pair(f//4 - 1)
    pub_pair(NT//2 - 1)

def p_hint(R):
    a = R.a
    a(f"s_mul_i32 s{sT0}, s{sGRP}, {FSTR}"); a(f"s_add_u32 s{sT0}, s{sT0}, {FLG}")
    a(f"s_lshl_b32 s{sT1}, s{sG}, 2"); a(f"s_add_u32 s{sT1}, s{sT1}, s{sIDX}"); a(f"s_lshl_b32 s{sT1}, s{sT1}, 2")
    a(f"v_mov_b32 v2, s{sT1}"); a(f"v_mov_b32 v1, s{sNON}")
    a(f"s_mov_b64 s[{sEX}:{sEX+1}], exec")
    a("s_mov_b64 exec, 1")
    a(f"buffer_store_dword v1, v2, {srd(SRD_WS)}, s{sT0} offen sc0 sc1")
    a(f"s_mov_b64 exec, s[{sEX}:{sEX+1}]")

sOUT2, sSRC = 78, 79
def a_gather_setup(a):
    o = 20 if cfg.lstamps else 0
    a(f"s_min_u32 s{sT0}, s{sG}, 2"); a(f"s_mul_i32 s{sT1}, s{sG}, 5"); a(f"s_add_u32 s{sT0}, s{sT0}, s{sT1}")
    a(f"s_add_u32 s{sT0}, s{sT0}, s{sIDX}")
    a("v_mbcnt_lo_u32_b32 v3, -1, 0"); a("v_mbcnt_hi_u32_b32 v3, -1, v3")
    a("v_lshlrev_b32 v6, 4, v3")
    for blk in range(2):
        so, ss = 78 + 2*blk + o, 79 + 2*blk + o
        if blk == 1: a(f"s_add_u32 s{sT0}, s{sT0}, 4")
        a(f"s_mul_i32 s{sT2}, s{sT0}, 171"); a(f"s_lshr_b32 s{sT2}, s{sT2}, 9")
        a(f"s_mul_i32 s{sT3}, s{sT2}, 3"); a(f"s_sub_u32 s{sT3}, s{sT0}, s{sT3}")
        a(f"s_lshl_b32 s{sT3}, s{sT3}, 4"); a(f"s_mul_i32 s{sT1}, s{sB}, 48"); a(f"s_add_u32 s{sT3}, s{sT3}, s{sT1}")
        a(f"s_mul_i32 s{sT3}, s{sT3}, 1792"); a(f"s_lshl_b32 s{sT2}, s{sT2}, 6"); a(f"s_add_u32 s{sT3}, s{sT3}, s{sT2}")
        a(f"s_mul_i32 s{sT1}, s{sBR}, 896"); a(f"s_add_u32 s{so}, s{sT3}, s{sT1}")
        a(f"s_lshl_b32 s{sT1}, s{sB}, 4"); a(f"s_lshl_b32 s{sT2}, s{sBR}, 2"); a(f"s_add_u32 s{sT1}, s{sT1}, s{sT2}")
        a(f"s_mul_i32 s{sT3}, s{sT1}, 14336")
        a(f"s_mul_i32 s{sT1}, s{sT1}, {PART}"); a(f"s_lshl_b32 s{sT2}, s{sT0}, 10"); a(f"s_add_u32 s{ss}, s{sT1}, s{sT2}")
        a(f"s_mul_i32 s{sT2}, s{sT0}, 171"); a(f"s_lshr_b32 s{sT2}, s{sT2}, 9")
        a(f"s_mul_i32 s{sT1}, s{sT2}, 3"); a(f"s_sub_u32 s{sT1}, s{sT0}, s{sT1}"); a(f"s_lshl_b32 s{sT1}, s{sT1}, 2")
        a(f"s_lshl_b32 s{sT2}, s{sT2}, 10"); a(f"s_add_u32 s{sT3}, s{sT3}, s{sT2}"); a(f"s_add_u32 s{sT3}, s{sT3}, s{sT1}")
        a(f"s_add_u32 s{48 + blk}, s{sT3}, {CHK}")
    a("v_and_b32 v7, 15, v3"); a(f"s_mov_b32 s{sT1}, 1792"); a(f"v_mul_lo_u32 v7, s{sT1}, v7")
    a("v_bfe_u32 v8, v3, 4, 1"); a("v_lshl_add_u32 v7, v8, 5, v7")
    a("v_lshrrev_b32 v8, 5, v3"); a("v_lshl_add_u32 v7, v8, 4, v7")

def gather_code(a, nb, lab):
    o = 20 if cfg.lstamps else 0
    a(f"s_mov_b32 s{sT0}, 0")
    a.label(f"{lab}_retry")
    for blk in range(nb):
        for k in range(8):
            gb, gp = k >> 2, k & 3
            a(f"s_add_u32 s{sT2}, s{79 + 2*blk + o}, {(gb*8 + gp)*PART}")
            a(f"buffer_load_dwordx4 {vr(64+32*blk+4*k)}, v6, {srd(SRD_WS)}, s{sT2} offen sc0 sc1")
            a(f"s_add_u32 s{sT2}, s{48 + blk}, {(gb*8 + gp)*14336}")
            a(f"buffer_load_dword v{128+8*blk+k}, v6, {srd(SRD_WS)}, s{sT2} offen sc0 sc1")
    a("v_mov_b32 v9, 0")
    n_out = 16*nb
    for blk in range(nb):
        acc = 16 + 8*blk
        for k in range(8):
            n_out -= 2
            a(f"s_waitcnt vmcnt({n_out})")
            src = 64 + 32*blk + 4*k
            a(f"v_bitop3_b32 v14, v{src}, v{src+1}, v{src+2} bitop3:0x96")
            a(f"v_bitop3_b32 v14, v14, v{src+3}, s{sNON} bitop3:0x96")
            a(f"v_xor_b32 v14, v14, v{128+8*blk+k}")
            a("v_or_b32 v9, v9, v14")
            for r in range(4):
                if k == 0:
                    a(f"v_lshlrev_b32 v{acc+2*r}, 16, v{src+r}"); a(f"v_and_b32 v{acc+2*r+1}, 0xffff0000, v{src+r}")
                else:
                    t = 10 + 2*(r & 1)
                    a(f"v_lshlrev_b32 v{t}, 16, v{src+r}"); a(f"v_and_b32 v{t+1}, 0xffff0000, v{src+r}")
                    a(f"v_pk_add_f32 {vr(acc+2*r,2)}, {vr(acc+2*r,2)}, {vr(t,2)}")
    a("v_cmp_ne_u32 vcc, 0, v9")
    a("s_cmp_eq_u64 vcc, 0")
    a(f"s_cbranch_scc1 {lab}_ok")
    a(f"s_add_u32 s{sT0}, s{sT0}, 1")
    a(f"s_cmp_ge_u32 s{sT0}, 200000"); a(f"s_cbranch_scc1 {lab}_ok")
    if cfg.sleep: a(f"s_sleep {cfg.sleep}")
    a(f"s_branch {lab}_retry")
    a.label(f"{lab}_ok")
    if cfg.stamps: stamp(a, 52)
    for blk in range(nb):
        acc = 16 + 8*blk
        d = 32 + 4*blk
        for r in range(4):
            a(f"v_cvt_pk_bf16_f32 v{d+r}, v{acc+2*r}, v{acc+2*r+1}")
        a(f"v_permlane16_swap_b32 v{d}, v{d+2}")
        a(f"v_permlane16_swap_b32 v{d+1}, v{d+3}")
        a(f"buffer_store_dwordx4 {vr(d)}, v7, {srd(SRD_OUT)}, s{78 + 2*blk + o} offen")

def emit_reduce(a):
    a.label("L_tail")
    if cfg.stamps: stamp(a, 50)
    a(f"s_mul_i32 s{sT0}, s{sGRP}, {FSTR}"); a(f"s_add_u32 s{sT0}, s{sT0}, {FLG}")
    a("v_lshlrev_b32 v0, 2, v3")
    a(f"s_mov_b64 s[{sEX}:{sEX+1}], exec")
    a("s_mov_b32 exec_hi, 0")
    a(f"s_mov_b32 s{sT2}, 0")
    a.label("L_poll")
    a(f"buffer_load_dword v4, v0, {srd(SRD_WS)}, s{sT0} offen sc0 sc1")
    a("s_waitcnt vmcnt(0)")
    a(f"v_cmp_eq_u32 vcc, s{sNON}, v4")
    a("s_cmp_eq_u32 vcc_lo, -1")
    a("s_cbranch_scc1 L_poll_done")
    a(f"s_add_u32 s{sT2}, s{sT2}, 1")
    a(f"s_cmp_ge_u32 s{sT2}, 400000")
    a("s_cbranch_scc1 L_poll_done")
    if cfg.sleep: a(f"s_sleep {cfg.sleep}")
    a("s_branch L_poll")
    a.label("L_poll_done")
    a(f"s_mov_b64 exec, s[{sEX}:{sEX+1}]")
    if cfg.stamps: stamp(a, 51)
    a(f"s_cmp_lt_u32 s{sG}, 2"); a(f"s_cselect_b32 s{sT1}, 2, 1")
    a(f"s_cmp_lt_u32 s{sIDX}, s{sT1}")
    a("s_cbranch_scc1 L_g2")
    gather_code(a, 1, "L_ga")
    a("s_branch L_gdone")
    a.label("L_g2")
    gather_code(a, 2, "L_gb")
    a.label("L_gdone")
    if cfg.stamps:
        a("s_waitcnt vmcnt(0)")
        a.label("L_nogather")
        stamp(a, 53)
        a("s_memtime s[74:75]"); a("s_waitcnt lgkmcnt(0)"); a("v_writelane_b32 v61, s74, 61")
        stamp_store(a)
    if cfg.mini:
        a.label("L_mini")
        a("s_memrealtime s[72:73]"); a("s_waitcnt vmcnt(0) lgkmcnt(0)")
        a("s_memrealtime s[72:73]"); a("s_waitcnt lgkmcnt(0)")
        a("v_mov_b32 v61, 0"); a("v_writelane_b32 v61, s90, 62"); a("v_writelane_b32 v61, s72, 53")
        stamp_store(a)
    a.label("L_end")
    a("s_endpgm")

def build():
    a = Asm()
    if cfg.mini:
        a("s_memrealtime s[90:91]")
    if cfg.stamps:
        a("s_memrealtime s[72:73]"); a("s_memtime s[74:75]"); a("s_waitcnt lgkmcnt(0)")
        a("v_writelane_b32 v61, s72, 62"); a("v_writelane_b32 v61, s74, 60")
    emit_prologue(a)
    cnt = {"n": 0}
    def bar():
        a("s_barrier")
        if cfg.stamps: stamp(a, cnt["n"])
        cnt["n"] += 1
    A = Role(a)
    if cfg.prioA: a(f"s_setprio {cfg.prioA}")
    a_setup(A)
    if cfg.pf_first: a_pf(A, "wq")
    bar()
    if not cfg.pf_first: a_pf(A, "wq")
    a_setup2(A)
    bar()
    a0_nonce(A)
    for kap in range(4): wq_dma(A, kap, vWqA)
    a_issue_KV(A, "K", 0)
    a_setup3(A)
    a_pair_init(A)
    A.wait_vm("w3")
    bar()
    bar()
    a_issue_KV(A, "K", 1)
    A.wait_vm("K0")
    bar()
    for k in range(6):
        if k == 4: nonce_load(A, 58, 59)
        if k == cfg.pf_wo_at: a_pf(A, "wo")
        a_S(A, k, dma=("K", k+1) if k >= 1 else None)
        A.wait_vm(f"K{k+1}")
        if k == 4: nonce_check(A, 58, 59, "L_na")
        bar()
    a_S(A, 6, dma=("K", 7))
    bar()
    a_issue_KV(A, "V", 0)
    if cfg.split_sm: a_softmax1(A)
    A.wait_vm("K7")
    bar()
    a_S(A, 7)
    bar()
    a_issue_KV(A, "V", 1)
    if cfg.pf_wo_at == 8: a_pf(A, "wo")
    if not cfg.split_sm: a_softmax1(A)
    a_softmax2(A)
    A.wait_vm("V0")
    bar()
    a_alpha(A)
    a_pair_addr(A)
    for n in range(8):
        dma = ("V", n+1) if 1 <= n <= 6 else None
        if not cfg.tight and n in (2, 4, 6):
            a_xfinal(A, dma); dma = None
        a_PV(A, n, dma)
        if n % 2 == 0: a_rescale(A)
        elif cfg.tight:
            a_pair_sync(A, n >> 1)
            a_xfinal(A)
        elif n == 7:
            a_pair_sync(A, 0)
            a_wait_pflags(A)
            a_xfinal(A)
        if n < 7: A.wait_vm(f"V{n+1}")
        A.wait_lg_all()
        bar()
    A.wait_vm_all()
    a_gather_setup(a)
    bar()
    nA = cnt["n"]
    a("s_branch L_tail")
    a.label("L_P")
    cnt["n"] = 0
    P = Role(a)
    stamp_move(a, 39)
    if cfg.stamps: stamp(a, 55)
    if cfg.prioP: a(f"s_setprio {cfg.prioP}")
    p_setup(P)
    if cfg.stamps: stamp(a, 56)
    bar()
    p_setup2(P)
    P.wait_vm("x"); bar()
    p_xfrags(P); bar()
    p_qcompute(P, list(range(14)), True, hooks={cfg.k1_after: bar})
    bar()
    for kap in (14, 15, 16, 17): wq_dma(P, kap, vWqD)
    for kaps, nxt in (([14,15], [18,19]), ([16,17,18,19], [20,21,22,23]), ([20,21,22,23], [24,25,26,27]), ([24,25,26,27], [])):
        p_qcompute(P, kaps, False)
        for kap in nxt: wq_dma(P, kap, vWqD)
        bar()
    a(f"s_cmp_eq_u32 s{sIDX}, 3")
    a("s_cbranch_scc1 L_P3")
    base = cnt["n"]
    for wide in (True, False):
        if not wide:
            a.label("L_P3"); cnt["n"] = base
        Pw = Role(a)
        STREG[0] = 39
        stamp_move(a, 47)
        p_vsetup(Pw, wide)
        nonce_load(Pw, 20, 21); nonce_check(Pw, 20, 21, "L_np" + ("w" if wide else "n"))
        for ib in range(6):
            if ib == cfg.wo_first_after: wo_dma(Pw, 0, wide); wo_dma(Pw, 1, wide)
            bar()
        nb = (p_oproj_phase_tight if cfg.tight else p_oproj_phase)(Pw, bar, wide)
        assert nb == 8, nb
        p_hint(Pw)
        if cfg.stamps: stamp(a, 59)
        bar()
        assert cnt["n"] == nA, (cnt["n"], nA)
        stamp_move(a, 61)
        if cfg.stamps: a("s_branch L_nogather")
        elif cfg.mini: a("s_branch L_mini")
        else: a("s_endpgm")
    emit_reduce(a)
    a.finalize()
    return a

HEADER = open("cdna_kernels/" + NAME + ".s.ref").read().split("; Override launch")[0]
def full_text(a):
    s = HEADER
    s += f"; @launch grid=(256,1,1) block=(512,1,1) lds={LDS_BYTES}\n"
    s += f'.amdgcn_target "amdgcn-amd-amdhsa--gfx950"\n.text\n.globl {NAME}_kernel\n.p2align 8\n.type {NAME}_kernel,@function\n{NAME}_kernel:\n'
    s += a.text()
    s += f""".section .rodata,"a"
.p2align 6
.amdhsa_kernel {NAME}_kernel
  .amdhsa_next_free_vgpr 256
  .amdhsa_next_free_sgpr 102
  .amdhsa_accum_offset 256
  .amdhsa_group_segment_fixed_size 0
  .amdhsa_kernarg_size 104
  .amdhsa_user_sgpr_count 2
  .amdhsa_user_sgpr_kernarg_segment_ptr 1
  .amdhsa_system_sgpr_workgroup_id_x 1
.end_amdhsa_kernel
"""
    return s

if __name__ == "__main__":
    out = sys.argv[1] if len(sys.argv) > 1 else "cdna_kernels/" + NAME + ".s"
    for kv in sys.argv[2:]:
        k, v = kv.split("=", 1)
        cur = getattr(cfg, k)
        if isinstance(cur, bool): v = v.lower() in ("1", "true")
        elif isinstance(cur, int): v = int(v)
        setattr(cfg, k, v)
    a = build()
    open(out, "w").write(full_text(a))
    print("wrote", out, "instrs:", sum(1 for i in a.ins if i.kind not in ('none','label')), "nops inserted:", a.nops_inserted)
```

```python
import sys, math, struct
from asmlib import Asm

NAME = "concat_heads__gqa_block_cached__gqa_block_cached__near_ridge"

class Cfg:
    k_flags = "nt"
    v_flags = "nt"
    w_flags = ""
    pf = True
    pf_flags = ""
    stamps = False
    lstamps = False
    mini = False
    prioA = 0
    prioP = 0
    dq = 4
    pf_wo_at = 8
    k1_after = 9
    split_sm = True
    sleep = 0
    interleave = False
    pf_first = False
    wo_first_after = 7
    tst = False
    pkv = True
    unpack = True
    j0s5 = True
    rot = 1
    kst = False
cfg = Cfg()

KVA, KVB = 0, 32768
WB = 65536
QB = 131072
OB = 122880
XB = 135168
STAT = 159744
PFL = 161280
LDS_BYTES = 163840
PART = 43008
FLG = 16 << 20
FSTR = 8448
sWAVE, sIDX, sG, sB, sBR = 3, 4, 5, 6, 7
SRD_K, SRD_V, SRD_WQ, SRD_WO, SRD_X, SRD_OUT, SRD_WS = 8, 12, 16, 20, 24, 28, 32
sDBG = 58
sM0, sWp = 62, 63
sC = 64
sT0, sT1, sT2, sT3 = 66, 67, 68, 69
sEX = 70
sGRP, sXo = 76, 77
sCOL = 36
sJ = 44
def srd(b): return f"s[{b}:{b+3}]"
def vr(b, n=4): return f"v[{b}:{b+n-1}]"
def f32bits(x): return struct.unpack('<I', struct.pack('<f', x))[0]
vL, vQ, vGq = 44, 46, 47

class Role:
    def __init__(self, a): self.a = a; self.vm = []; self.lg = []
    def vmem(self, text, tag): self.a(text); self.vm.append(tag)
    def lds(self, text, tag): self.a(text); self.lg.append(tag)
    def wait_vm(self, tag):
        idx = [i for i, t in enumerate(self.vm) if t == tag]
        if not idx: return
        n = len(self.vm) - 1 - idx[-1]
        assert n <= 63
        self.a(f"s_waitcnt vmcnt({n})"); self.vm = self.vm[idx[-1]+1:]
    def wait_lg(self, tag):
        idx = [i for i, t in enumerate(self.lg) if t == tag]
        if not idx: return
        n = len(self.lg) - 1 - idx[-1]
        assert n <= 15, n
        self.a(f"s_waitcnt lgkmcnt({n})"); self.lg = self.lg[idx[-1]+1:]
    def wait_vm_all(self): self.a("s_waitcnt vmcnt(0)"); self.vm = []
    def wait_lg_all(self): self.a("s_waitcnt lgkmcnt(0)"); self.lg = []
    def lds_guard(self, n_new):
        if len(self.lg) + n_new > 15:
            keep = 15 - n_new
            self.a(f"s_waitcnt lgkmcnt({keep})"); self.lg = self.lg[len(self.lg)-keep:] if keep else []

STREG = [61]
PEND = []
def stamp(a, idx):
    a("s_memrealtime s[72:73]")
    a("s_waitcnt lgkmcnt(0)")
    a(f"v_writelane_b32 v{STREG[0]}, s72, {idx}")
    for (sp, i2) in PEND: a(f"v_writelane_b32 v{STREG[0]}, s{sp}, {i2}")
    PEND.clear()
def lstamp(a, idx):
    if not cfg.lstamps: return
    sp = 78 + 2*len(PEND)
    assert sp <= 98
    a(f"s_memrealtime s[{sp}:{sp+1}]")
    PEND.append((sp, idx))
def stamp_move(a, new):
    if cfg.stamps: a(f"v_mov_b32 v{new}, v{STREG[0]}")
    STREG[0] = new
def stamp_store(a):
    a(f"s_lshl_b32 s{sT0}, s2, 3"); a(f"s_add_u32 s{sT0}, s{sT0}, s{sWAVE}"); a(f"s_lshl_b32 s{sT0}, s{sT0}, 8")
    a("v_mbcnt_lo_u32_b32 v60, -1, 0"); a("v_mbcnt_hi_u32_b32 v60, -1, v60")
    a(f"v_lshlrev_b32 v60, 2, v60"); a(f"v_add_u32 v60, s{sT0}, v60")
    a("s_add_u32 s74, s60, 0x2000000"); a("s_addc_u32 s75, s61, 0")
    a("global_store_dword v60, v61, s[74:75]")
    a("s_waitcnt vmcnt(0)")

def emit_prologue(a):
    a("s_cmp_ge_u32 s2, 256")
    a("s_cbranch_scc1 L_end")
    a("s_load_dwordx16 s[36:51], s[0:1], 0")
    a("s_load_dwordx4 s[52:55], s[0:1], 64")
    a("s_load_dwordx4 s[56:59], s[0:1], 80")
    a("s_load_dwordx2 s[60:61], s[0:1], 96")
    a("v_and_b32 v44, 63, v0")
    a("v_lshrrev_b32 v45, 6, v0")
    a("v_and_b32 v46, 15, v44")
    a("v_lshrrev_b32 v47, 4, v44")
    a(f"v_readfirstlane_b32 s{sWAVE}, v45")
    a(f"s_bfe_u32 s{sBR}, s2, 0x10002")
    a(f"s_and_b32 s{sG}, s2, 3"); a(f"s_lshl_b32 s{sG}, s{sG}, 1")
    a(f"s_bfe_u32 s{sT0}, s2, 0x10003"); a(f"s_or_b32 s{sG}, s{sG}, s{sT0}")
    a(f"s_lshr_b32 s{sB}, s2, 4")
    a(f"s_and_b32 s{sIDX}, s{sWAVE}, 3")
    a(f"s_lshl_b32 s{sGRP}, s{sBR}, 4"); a(f"s_add_u32 s{sGRP}, s{sGRP}, s{sB}")
    a(f"s_mov_b32 s{sC}, 0x{f32bits(math.log2(math.e)/16.0):08x}"); a(f"s_mov_b32 s{sC+1}, s{sC}")
    a("s_waitcnt lgkmcnt(0)")
    if cfg.stamps: stamp(a, 54)
    a(f"s_cmp_eq_u32 s{sBR}, 0")
    for i in range(5):
        a(f"s_cselect_b64 s[{36+2*i}:{37+2*i}], s[{36+2*i}:{37+2*i}], s[{46+2*i}:{47+2*i}]")
    def mk(srdb, ptr, off_s, size):
        if off_s is None:
            a(f"s_mov_b32 s{srdb}, s{ptr}"); a(f"s_and_b32 s{srdb+1}, s{ptr+1}, 0xffff")
        else:
            a(f"s_add_u32 s{srdb}, s{ptr}, s{off_s}")
            a(f"s_addc_u32 s{srdb+1}, s{ptr+1}, 0")
            a(f"s_and_b32 s{srdb+1}, s{srdb+1}, 0xffff")
        if isinstance(size, int): a(f"s_mov_b32 s{srdb+2}, {size}")
        else: a(size)
        a(f"s_mov_b32 s{srdb+3}, 0x20000")
    a(f"s_mul_i32 s{sT1}, s{sB}, 43008")
    mk(SRD_X, 36, sT1, 43008)
    a(f"s_cmp_lt_u32 s{sWAVE}, 4"); a("s_cbranch_scc1 L_nox")
    PX = Role(a); p_setup(PX)
    a.label("L_nox")
    a(f"s_lshl_b32 s{sT1}, s{sG}, 10")
    mk(SRD_WQ, 42, sT1, f"s_sub_u32 s{SRD_WQ+2}, {448*8192}, s{sT1}")
    a(f"s_lshl_b32 s{sT0}, s{sB}, 3"); a(f"s_add_u32 s{sT0}, s{sT0}, s{sG}"); a(f"s_lshl_b32 s{sT0}, s{sT0}, 18")
    mk(SRD_K, 38, sT0, 262144)
    mk(SRD_V, 40, sT0, 262144)
    a(f"s_mul_i32 s{sT1}, s{sG}, 458752")
    mk(SRD_WO, 44, sT1, 458752)
    mk(SRD_OUT, 56, None, 16*48*896*2)
    mk(SRD_WS, 60, None, FLG + 32*FSTR)
    if cfg.rot == 0: a(f"s_mov_b32 s{sT0}, 0")
    elif cfg.rot == 1: a(f"s_and_b32 s{sT0}, s{sB}, 3")
    elif cfg.rot == 2: a(f"s_add_u32 s{sT0}, s{sB}, s{sG}"); a(f"s_and_b32 s{sT0}, s{sT0}, 3")
    elif cfg.rot == 3: a(f"s_and_b32 s{sT0}, s{sB}, 1"); a(f"s_lshl_b32 s{sT0}, s{sT0}, 1")
    for j in range(4):
        a(f"s_add_u32 s{sT1}, s{sT0}, {j}"); a(f"s_and_b32 s{sT1}, s{sT1}, 3")
        a(f"s_lshl_b32 s{sCOL+j}, s{sT1}, 7"); a(f"s_mul_i32 s{sCOL+4+j}, s{sT1}, {64*896}")
    a(f"s_lshr_b32 s{sT2}, s{sIDX}, 1")
    for J in range(2):
        a(f"s_add_u32 s{sT1}, s{sT0}, s{sT2}"); a(f"s_add_u32 s{sT1}, s{sT1}, {2*J}"); a(f"s_and_b32 s{sT1}, s{sT1}, 3")
        a(f"s_lshl_b32 s{sJ+J}, s{sT1}, 7")
    a(f"s_cmp_ge_u32 s{sWAVE}, 4")
    a("s_cbranch_scc1 L_P")

def wq_dma_pattern(a, dst, l, g, t0, t1):
    a(f"v_lshrrev_b32 v{t0}, 3, v{l}"); a(f"v_lshlrev_b32 v{t0}, 13, v{t0}")
    a(f"v_bfe_u32 v{t1}, v{l}, 1, 2"); a(f"v_xor_b32 v{t1}, v{t1}, v{g}")
    a(f"v_lshl_add_u32 v{t0}, v{t1}, 5, v{t0}")
    a(f"v_and_b32 v{t1}, 1, v{l}"); a(f"v_lshl_add_u32 v{t0}, v{t1}, 4, v{t0}")
    a(f"s_and_b32 s{sT0}, s{sIDX}, 1"); a(f"s_lshl_b32 s{sT0}, s{sT0}, 9")
    a(f"v_add_u32 v{dst}, s{sT0}, v{t0}")

NSLOT_Q = 4
def wq_slot(kap):
    if cfg.j0s5 and kap < 14:
        sl = kap % 5
        return ('q', 0) if sl == 4 else ('own', sl*4096)
    return ('own', (kap % NSLOT_Q)*4096)
sWq5 = 47
def wq_dma(R, kap, vpat, ii_list=range(4)):
    a = R.a
    J, s = divmod(kap, 14)
    area, off = wq_slot(kap)
    for ii in ii_list:
        a(f"s_add_u32 m0, s{sWp if area == 'own' else sWq5}, {off + 1024*ii}")
        a(f"s_add_u32 s{sT1}, s{sJ+J}, {(32*s + 8*ii)*8192}")
        R.vmem(f"buffer_load_dwordx4 v{vpat}, {srd(SRD_WQ)}, s{sT1} offen {cfg.w_flags} lds", f"w{kap}")

def S_(t, nt): return 64 + (t*3 + nt)*4
def Qf(s, nt): return (s*3 + nt)*4
KF = 24
vKdE, vKdO, vVd, vWqA = 48, 49, 50, 51

def a_setup(R):
    a = R.a
    a(f"s_lshl_b32 s{sM0}, s{sIDX}, 13")
    a(f"s_lshl_b32 s{sWp}, s{sIDX}, 14"); a(f"s_add_u32 s{sWp}, s{sWp}, {WB}")
    if cfg.pf:
        a(f"v_lshrrev_b32 v52, 3, v{vL}"); a("v_lshlrev_b32 v52, 13, v52")
        a(f"v_and_b32 v53, 7, v{vL}"); a("v_lshl_add_u32 v56, v53, 7, v52")
        a(f"s_mul_i32 s{sT2}, s{sB}, 28"); a(f"s_lshl_b32 s{sT3}, s{sIDX}, 3"); a(f"s_add_u32 s{sT2}, s{sT2}, s{sT3}")
        a(f"s_lshl_b32 s{sT2}, s{sT2}, 13")

def a_pf(R, which):
    a = R.a
    if not cfg.pf: return
    if which == "wq":
        R.vmem(f"buffer_load_dword v63, v56, {srd(SRD_WQ)}, s{sT2} offen {cfg.pf_flags}", "pf")
    else:
        a(f"v_lshlrev_b32 v58, 7, v{vL}")
        a(f"s_mul_i32 s{sT2}, s{sB}, 28672"); a(f"s_lshl_b32 s{sT3}, s{sIDX}, 13"); a(f"s_add_u32 s{sT2}, s{sT2}, s{sT3}")
        R.vmem(f"buffer_load_dword v62, v58, {srd(SRD_WO)}, s{sT2} offen {cfg.pf_flags}", "pf")

def a_setup2(R):
    a = R.a
    wq_dma_pattern(a, vWqA, vL, vGq, 52, 53)
    a(f"v_lshrrev_b32 v52, 3, v{vL}"); a("v_lshlrev_b32 v52, 9, v52")
    a(f"s_lshl_b32 s{sT1}, s{sIDX}, 15"); a(f"v_add_u32 v52, s{sT1}, v52")
    a(f"v_and_b32 v53, 7, v{vL}"); a(f"v_xor_b32 v54, v53, v{vGq}")
    a(f"v_lshl_add_u32 v{vKdE}, v54, 4, v52")
    a("v_xor_b32 v54, 4, v54"); a(f"v_lshl_add_u32 v{vKdO}, v54, 4, v52")
    a("v_lshrrev_b32 v54, 1, v53"); a(f"v_xor_b32 v54, v54, v{vGq}")
    a("v_lshl_add_u32 v54, v54, 5, v52")
    a(f"v_and_b32 v55, 1, v{vL}"); a(f"v_lshl_add_u32 v{vVd}, v55, 4, v54")

def a_setup3(R):
    a = R.a
    a(f"s_lshr_b32 s{sT0}, s{sIDX}, 1")
    a(f"s_and_b32 s{sT1}, s{sIDX}, 1")
    a(f"v_lshrrev_b32 v52, 1, v{vQ}")
    a(f"v_xor_b32 v53, v{vGq}, v52")
    a(f"v_xor_b32 v54, 4, v53")
    a(f"s_lshl_b32 s{sT2}, s{sT1}, 14")
    a(f"v_lshlrev_b32 v55, 7, v{vQ}")
    a(f"v_add_u32 v55, s{sT2}, v55")
    a(f"v_lshl_add_u32 v40, v53, 4, v55")
    a(f"v_lshl_add_u32 v41, v54, 4, v55")
    a(f"s_mul_i32 s{sT2}, s{sT0}, {48*128}")
    a(f"s_add_u32 s{sT2}, s{sT2}, {QB}")
    a(f"v_lshlrev_b32 v55, 7, v{vQ}")
    a(f"v_add_u32 v55, s{sT2}, v55")
    a(f"v_lshl_add_u32 v42, v53, 4, v55")
    a(f"v_lshl_add_u32 v43, v54, 4, v55")

def a_pair_init(R):
    a = R.a
    a(f"s_lshl_b32 s{sT0}, s{sIDX}, 4"); a(f"s_add_u32 s{sT0}, s{sT0}, {PFL}")
    a(f"v_mov_b32 v55, s{sT0}"); a("v_mov_b32 v56, 0")
    R.lds("ds_write_b32 v55, v56", "pf0")
    R.wait_lg_all()

def a_pair_addr(R):
    a = R.a
    a(f"s_lshl_b32 s{sT0}, s{sIDX}, 4"); a(f"s_add_u32 s{sT0}, s{sT0}, {PFL}")
    a(f"v_mov_b32 v55, s{sT0}"); a(f"s_xor_b32 s{sT0}, s{sT0}, 16"); a(f"v_mov_b32 v56, s{sT0}")

def a_pair_sync(R, j):
    a = R.a
    R.wait_lg_all()
    a(f"v_mov_b32 v57, {j+1}")
    a("ds_write_b32 v55, v57")
    a.label(f"L_ps{j}")
    a("ds_read_b32 v57, v56")
    a("s_waitcnt lgkmcnt(0)")
    a(f"v_readfirstlane_b32 s{sT0}, v57")
    a(f"s_cmp_lt_u32 s{sT0}, {j+1}")
    a(f"s_cbranch_scc1 L_ps{j}")

def kv_dma(R, kind, n, ii):
    a = R.a
    j, w = n >> 1, n & 1
    buf = KVA if w == 0 else KVB
    a(f"s_add_u32 m0, s{sM0}, {buf + 1024*ii}")
    a(f"s_add_u32 s{sT1}, s{sCOL+j}, {131072*w + 4096*ii}")
    if kind == "K":
        R.vmem(f"buffer_load_dwordx4 v{vKdE + (ii & 1)}, {srd(SRD_K)}, s{sT1} offen {cfg.k_flags} lds", f"K{n}")
    else:
        R.vmem(f"buffer_load_dwordx4 v{vVd}, {srd(SRD_V)}, s{sT1} offen {cfg.v_flags} lds", f"V{n}")
def a_issue_KV(R, kind, n):
    R.a.comment(f"---- issue {kind} window {n}")
    for ii in range(8): kv_dma(R, kind, n, ii)

def a0_flag_zero(R):
    a = R.a
    a(f"s_or_b32 s{sT0}, s{sG}, s{sIDX}"); a(f"s_cmp_lg_u32 s{sT0}, 0"); a("s_cbranch_scc1 L_fz_skip")
    a(f"s_mul_i32 s{sT0}, s{sGRP}, {FSTR}"); a(f"s_add_u32 s{sT0}, s{sT0}, {FLG}")
    a(f"v_lshlrev_b32 v58, 2, v{vL}"); a("v_mov_b32 v59, 0")
    a(f"s_mov_b64 s[{sEX}:{sEX+1}], exec"); a("s_mov_b32 exec_hi, 0")
    a(f"buffer_store_dword v59, v58, {srd(SRD_WS)}, s{sT0} offen sc0 sc1")
    a(f"s_mov_b64 exec, s[{sEX}:{sEX+1}]")
    a.label("L_fz_skip")

def a0_flag_mark(R):
    a = R.a
    a(f"s_or_b32 s{sT0}, s{sG}, s{sIDX}"); a(f"s_cmp_lg_u32 s{sT0}, 0"); a("s_cbranch_scc1 L_fm_skip")
    a(f"s_lshl_b32 s{sT0}, s{sGRP}, 2"); a(f"v_mov_b32 v58, s{sT0}"); a("v_mov_b32 v59, 1")
    a(f"s_mov_b64 s[{sEX}:{sEX+1}], exec"); a("s_mov_b64 exec, 1")
    a(f"global_store_dword v58, v59, s[{sDBG}:{sDBG+1}] sc0 sc1")
    a(f"s_mov_b64 exec, s[{sEX}:{sEX+1}]")
    a.label("L_fm_skip")

def a_flag_load(R):
    a = R.a
    a(f"s_lshl_b32 s{sT0}, s{sGRP}, 2"); a(f"v_mov_b32 v58, s{sT0}")
    R.vmem(f"global_load_dword v59, v58, s[{sDBG}:{sDBG+1}] sc0 sc1", "chk")
def a_flag_check(R):
    a = R.a
    R.wait_vm("chk")
    a(f"s_mov_b32 s{sT2}, 0")
    a.label("L_fc_poll")
    a(f"v_readfirstlane_b32 s{sT1}, v59")
    a(f"s_cmp_eq_u32 s{sT1}, 1"); a("s_cbranch_scc1 L_fc_skip")
    a(f"s_add_u32 s{sT2}, s{sT2}, 1"); a(f"s_cmp_ge_u32 s{sT2}, 400000"); a("s_cbranch_scc1 L_fc_skip")
    a("s_sleep 2")
    a(f"global_load_dword v59, v58, s[{sDBG}:{sDBG+1}] sc0 sc1")
    a("s_waitcnt vmcnt(0)")
    a("s_branch L_fc_poll")
    a.label("L_fc_skip")

def a_S(R, n, dma=None):
    a = R.a
    j, w = n >> 1, n & 1
    buf = KVA if w == 0 else KVB
    if w == 0:
        for s in range(2):
            for nt in range(3):
                R.lds(f"ds_read_b128 {vr(Qf(s,nt))}, v{42+s} offset:{12288*(j & 1) + 2048*nt}", "q")
    frs = [(i, s) for i in range(8) for s in range(2)]
    NB = 4
    def rd(k):
        i, s = frs[k]
        R.lds(f"ds_read_b128 {vr(KF + 4*(k % NB))}, v{40+s} offset:{buf + 2048*i}", f"kf{k}")
    for k in range(NB-1): rd(k)
    if dma and not cfg.interleave:
        for ii in range(8): kv_dma(R, dma[0], dma[1], ii)
        dma = None
    for k, (i, s) in enumerate(frs):
        if k + NB - 1 < len(frs): rd(k + NB - 1)
        if dma and k < 8: kv_dma(R, dma[0], dma[1], k)
        R.wait_lg(f"kf{k}")
        for nt in range(3):
            d = S_(8*w + i, nt)
            c = "0" if (j == 0 and s == 0) else vr(d)
            a(f"v_mfma_f32_16x16x32_bf16 {vr(d)}, {vr(KF + 4*(k % NB))}, {vr(Qf(s,nt))}, {c}")

M1 = (52, 54, 56)
L1 = (53, 55, 57)
BETA = (0, 2, 4); ALO = (6, 8, 10); ALP = (12, 14, 16)
ONES1, ONES2 = 36, 20
def Pf(w, s, nt): return S_(8*w + 2*s, nt)
def Oa(mt, nt): return S_(2*mt + 1, nt)
def XT(i, nt): return S_(9 + 2*i, nt)

def _rowmax(a, tiles, dst, tmp):
    for nt in range(3):
        m = dst[nt]
        vals = [S_(t, nt) + r for t in tiles for r in range(4)]
        a(f"v_max3_f32 v{m}, v{vals[0]}, v{vals[1]}, v{vals[2]}")
        a(f"v_max3_f32 v{tmp}, v{vals[3]}, v{vals[4]}, v{vals[5]}")
        k = 6
        while k + 3 < len(vals):
            a(f"v_max3_f32 v{m}, v{m}, v{vals[k]}, v{vals[k+1]}")
            a(f"v_max3_f32 v{tmp}, v{tmp}, v{vals[k+2]}, v{vals[k+3]}")
            k += 4
        rest = vals[k:]
        assert len(rest) == 2
        a(f"v_max3_f32 v{m}, v{m}, v{rest[0]}, v{rest[1]}")
        a(f"v_max_f32 v{m}, v{m}, v{tmp}")
    for nt in range(3):
        m = dst[nt]
        a(f"v_mov_b32 v{tmp+nt}, v{m}")
    for nt in range(3):
        a(f"v_permlane32_swap_b32 v{tmp+nt}, v{dst[nt]}")
    for nt in range(3):
        a(f"v_max_f32 v{dst[nt]}, v{tmp+nt}, v{dst[nt]}")
    for nt in range(3):
        a(f"v_mov_b32 v{tmp+nt}, v{dst[nt]}")
    for nt in range(3):
        a(f"v_permlane16_swap_b32 v{tmp+nt}, v{dst[nt]}")
    for nt in range(3):
        a(f"v_max_f32 v{dst[nt]}, v{tmp+nt}, v{dst[nt]}")
        a(f"v_mul_f32 v{dst[nt]}, s{sC}, v{dst[nt]}")

def _exppack(a, t0s, mreg):
    for t0 in t0s:
        for nt in range(3):
            m = mreg[nt]
            b0, b1 = S_(t0, nt), S_(t0+1, nt)
            for b in (b0, b0+2, b1, b1+2):
                a(f"v_pk_fma_f32 {vr(b,2)}, {vr(b,2)}, s[{sC}:{sC+1}], {vr(m,2)} op_sel_hi:[1,1,0] neg_lo:[0,0,1] neg_hi:[0,0,1]")
            src = [b0+r for r in range(4)] + [b1+r for r in range(4)]
            for v in src: a(f"v_exp_f32 v{v}, v{v}")
            a(f"v_cvt_pk_bf16_f32 v{b0}, v{src[0]}, v{src[1]}")
            a(f"v_cvt_pk_bf16_f32 v{b0+1}, v{src[2]}, v{src[3]}")
            a(f"v_cvt_pk_bf16_f32 v{b0+2}, v{src[4]}, v{src[5]}")
            a(f"v_cvt_pk_bf16_f32 v{b0+3}, v{src[6]}, v{src[7]}")

def _rowsum(a, w, ones, acc):
    for r in range(4): a(f"v_mov_b32 v{ones+r}, 0x3f803f80")
    for s in range(4):
        for nt in range(3):
            c = "0" if s == 0 else vr(acc(nt))
            a(f"v_mfma_f32_16x16x32_bf16 {vr(acc(nt))}, {vr(ones)}, {vr(Pf(w,s,nt))}, {c}")

def a_softmax1(R):
    a = R.a
    _rowmax(a, range(0, 8), M1, 24)
    _exppack(a, (0, 2, 4, 6), M1)
    _rowsum(a, 0, ONES1, lambda nt: S_(1, nt))
    for nt in range(3): a(f"v_mov_b32 v{L1[nt]}, v{S_(1,nt)}")

def a_softmax2(R):
    a = R.a
    M2 = (24, 26, 28)
    _rowmax(a, range(8, 16), M2, 30)
    for nt in range(3):
        a(f"v_max_f32 v{M2[nt]}, v{M2[nt]}, v{M1[nt]}")
        a(f"v_sub_f32 v{BETA[nt]}, v{M1[nt]}, v{M2[nt]}")
    for nt in range(3): a(f"v_exp_f32 v{BETA[nt]}, v{BETA[nt]}")
    _exppack(a, (8, 10, 12, 14), M2)
    _rowsum(a, 1, ONES2, lambda nt: S_(13, nt))
    a_vaddr(R)
    for nt in range(3):
        a(f"v_fma_f32 v{M2[nt]+1}, v{BETA[nt]}, v{L1[nt]}, v{S_(13,nt)}")
    for nt in range(3):
        R.lds(f"ds_write_b64 v59, {vr(M2[nt],2)} offset:{128*nt}", "st")
    for nt in range(3):
        a(f"v_mov_b32 v{18+2*nt}, v{M2[nt]}"); a(f"v_mov_b32 v{19+2*nt}, v{M2[nt]+1}")
    R.wait_lg_all()

vXW, vXR, vOW = 52, 53, 54
def a_vaddr(R):
    a = R.a
    a(f"s_and_b32 s{sT1}, s{sIDX}, 1")
    a(f"v_lshrrev_b32 v32, 2, v{vL}")
    a(f"v_lshrrev_b32 v33, 1, v32"); a("v_and_b32 v33, 3, v33")
    a(f"s_lshl_b32 s{sT2}, s{sT1}, 14")
    a(f"v_lshlrev_b32 v34, 7, v32"); a(f"v_add_u32 v34, s{sT2}, v34")
    a(f"v_and_b32 v35, 3, v{vL}"); a(f"v_lshl_add_u32 v34, v35, 3, v34")
    a(f"s_lshl_b32 s{sT2}, s{sT1}, 1")
    a(f"v_xor_b32 v33, s{sT2}, v33")
    for mt in range(4):
        a(f"v_xor_b32 v35, {mt}, v33")
        a(f"v_lshl_add_u32 v{40+mt}, v35, 5, v34")
    a(f"s_mul_i32 s{sT0}, s{sIDX}, 384"); a(f"s_add_u32 s{sT0}, s{sT0}, {STAT}")
    a(f"v_lshlrev_b32 v59, 3, v{vQ}"); a(f"v_add_u32 v59, s{sT0}, v59")
    a(f"s_xor_b32 s{sT1}, s{sIDX}, 1"); a(f"s_mul_i32 s{sT1}, s{sT1}, 384"); a(f"s_add_u32 s{sT1}, s{sT1}, {STAT}")
    a(f"v_lshlrev_b32 v60, 3, v{vQ}"); a(f"v_add_u32 v60, s{sT1}, v60")

def a_alpha(R):
    a = R.a
    M2 = (18, 20, 22)
    for nt in range(3):
        R.lds(f"ds_read_b64 v[{32+2*nt}:{33+2*nt}], v60 offset:{128*nt}", "st")
    a(f"s_mul_i32 s{sT2}, s{sIDX}, 6144"); a(f"s_add_u32 s{sT2}, s{sT2}, {XB}")
    a(f"v_lshlrev_b32 v55, 4, v{vL}"); a(f"v_add_u32 v{vXW}, s{sT2}, v55")
    a(f"s_xor_b32 s{sT2}, s{sIDX}, 1"); a(f"s_mul_i32 s{sT2}, s{sT2}, 6144"); a(f"s_add_u32 s{sT2}, s{sT2}, {XB}")
    a(f"v_add_u32 v{vXR}, s{sT2}, v55")
    a(f"s_and_b32 s{sT1}, s{sIDX}, 1")
    a(f"s_lshr_b32 s{sT0}, s{sIDX}, 1"); a(f"s_mul_i32 s{sT2}, s{sT0}, {48*128}"); a(f"s_add_u32 s{sT2}, s{sT2}, {OB}")
    a(f"v_lshlrev_b32 v{vOW}, 7, v{vQ}"); a(f"v_add_u32 v{vOW}, s{sT2}, v{vOW}")
    a(f"s_lshl_b32 s{sT3}, s{sT1}, 2")
    a(f"v_or_b32 v55, s{sT3}, v{vGq}")
    a(f"v_lshrrev_b32 v56, 1, v{vQ}"); a("v_xor_b32 v55, v55, v56")
    a(f"v_lshl_add_u32 v{vOW}, v55, 4, v{vOW}")
    R.wait_lg_all()
    for nt in range(3):
        mo, lo = 32 + 2*nt, 33 + 2*nt
        m, l = M2[nt], M2[nt] + 1
        a(f"v_max_f32 v38, v{m}, v{mo}")
        a(f"v_sub_f32 v{ALO[nt]}, v{m}, v38"); a(f"v_sub_f32 v{ALP[nt]}, v{mo}, v38")
        a(f"v_exp_f32 v{ALO[nt]}, v{ALO[nt]}"); a(f"v_exp_f32 v{ALP[nt]}, v{ALP[nt]}")
        a(f"v_mul_f32 v38, v{l}, v{ALO[nt]}")
        a(f"v_fma_f32 v38, v{lo}, v{ALP[nt]}, v38")
        a("v_rcp_f32 v38, v38")
        a(f"v_mul_f32 v{ALO[nt]}, v{ALO[nt]}, v38"); a(f"v_mul_f32 v{ALP[nt]}, v{ALP[nt]}, v38")

def a_PV(R, n, dma=None):
    a = R.a
    j, w = n >> 1, n & 1
    buf = KVA if w == 0 else KVB
    frs = [(s, mt) for s in range(4) for mt in range(4)]
    if w == 1: frs = frs[:12] + [(3, 2), (3, 3), (3, 0), (3, 1)]
    NB = 4
    def rd(k):
        s, mt = frs[k]
        b = KF + 4*(k % NB)
        R.lds(f"ds_read_b64_tr_b16 {vr(b,2)}, v{40+mt} offset:{buf + 4096*s}", f"vf{k}")
        R.lds(f"ds_read_b64_tr_b16 {vr(b+2,2)}, v{40+mt} offset:{buf + 4096*s + 2048}", f"vf{k}")
    for k in range(NB-1): rd(k)
    if dma and not cfg.interleave:
        for ii in range(8): kv_dma(R, dma[0], dma[1], ii)
        dma = None
    for k, (s, mt) in enumerate(frs):
        if k + NB - 1 < len(frs): rd(k + NB - 1)
        if dma and k < 8: kv_dma(R, dma[0], dma[1], k)
        R.wait_lg(f"vf{k}")
        for nt in range(3):
            d = Oa(mt, nt)
            c = "0" if (w == 0 and s == 0) else vr(d)
            a(f"v_mfma_f32_16x16x32_bf16 {vr(d)}, {vr(KF + 4*(k % NB))}, {vr(Pf(w,s,nt))}, {c}")
        if w == 1 and k >= 14:
            m2 = k - 12
            for nt in range(3):
                R.lds(f"ds_write_b128 v{vXW}, {vr(Oa(m2,nt))} offset:{((m2-2)*3+nt)*1024}", "xw")

def a_rescale(R):
    a = R.a
    for mt in range(4):
        for nt in range(3):
            if cfg.unpack:
                for r in range(4): a(f"v_mul_f32 v{Oa(mt,nt)+r}, v{BETA[nt]}, v{Oa(mt,nt)+r}")
                continue
            for h2 in (0, 2):
                b = Oa(mt, nt) + h2
                a(f"v_pk_mul_f32 {vr(b,2)}, {vr(b,2)}, {vr(BETA[nt],2)} op_sel_hi:[1,0]")

def a_xwrite(R):
    a = R.a
    for mt in (2, 3):
        for nt in range(3):
            R.lds(f"ds_write_b128 v{vXW}, {vr(Oa(mt,nt))} offset:{((mt-2)*3+nt)*1024}", "xw")

def a_xfinal(R, dma=None):
    a = R.a
    for nt in range(3):
        for i in range(2):
            R.lds(f"ds_read_b128 {vr(XT(i,nt))}, v{vXR} offset:{(i*3+nt)*1024}", f"xr{nt}")
    if dma:
        for ii in range(8): kv_dma(R, dma[0], dma[1], ii)
    for nt in range(3):
        for i in range(2):
            if cfg.unpack:
                for r in range(4): a(f"v_mul_f32 v{Oa(i,nt)+r}, v{ALO[nt]}, v{Oa(i,nt)+r}")
                continue
            for h2 in (0, 2):
                b = Oa(i, nt) + h2
                a(f"v_pk_mul_f32 {vr(b,2)}, {vr(b,2)}, {vr(ALO[nt],2)} op_sel_hi:[1,0]")
    for nt in range(3):
        R.wait_lg(f"xr{nt}")
        for i in range(2):
            if cfg.unpack:
                for r in range(4): a(f"v_fma_f32 v{Oa(i,nt)+r}, v{XT(i,nt)+r}, v{ALP[nt]}, v{Oa(i,nt)+r}")
                continue
            for h2 in (0, 2):
                b, x = Oa(i, nt) + h2, XT(i, nt) + h2
                a(f"v_pk_fma_f32 {vr(b,2)}, {vr(x,2)}, {vr(ALP[nt],2)}, {vr(b,2)} op_sel_hi:[1,0,1]")
        d = XT(0, nt)
        a(f"v_cvt_pk_bf16_f32 v{d}, v{Oa(0,nt)}, v{Oa(0,nt)+1}")
        a(f"v_cvt_pk_bf16_f32 v{d+1}, v{Oa(0,nt)+2}, v{Oa(0,nt)+3}")
        a(f"v_cvt_pk_bf16_f32 v{d+2}, v{Oa(1,nt)}, v{Oa(1,nt)+1}")
        a(f"v_cvt_pk_bf16_f32 v{d+3}, v{Oa(1,nt)+2}, v{Oa(1,nt)+3}")
        R.lds(f"ds_write_b128 v{vOW}, {vr(d)} offset:{2048*nt}", "ow")

PRING = 0
vWqD = 20
vWqR = 21
vQW = 25
PT = 26
vWqR5 = 35
def Xf(s, nt): return 40 + (s*3 + nt)*4
def Qa(mt, nt): return 208 + (mt*3 + nt)*4

def p_lane(a):
    a(f"v_mbcnt_lo_u32_b32 v{PT}, -1, 0"); a(f"v_mbcnt_hi_u32_b32 v{PT}, -1, v{PT}")
    a(f"v_and_b32 v{PT+1}, 15, v{PT}"); a(f"v_lshrrev_b32 v{PT+2}, 4, v{PT}")

def p_setup(R):
    a = R.a
    l, q, g = PT, PT+1, PT+2
    p = sIDX
    p_lane(a)
    a(f"s_mul_i32 s{sXo}, s{p}, 896")
    a(f"s_lshr_b32 s{sT0}, s{p}, 1")
    a(f"v_xor_b32 v{PT+3}, s{sT0}, v{l}"); a(f"v_lshlrev_b32 v{PT+3}, 4, v{PT+3}")
    for k in range(4):
        a(f"v_xor_b32 v{PT+4+k}, {(2*k) << 4}, v{PT+3}")
    a(f"s_mov_b64 s[{sEX}:{sEX+1}], exec")
    a("s_mov_b32 exec_hi, 0x00ffffff")
    for ii in range(12):
        base = (KVB + 3584*ii) if ii < 8 else (QB + 3584*(ii-8))
        a(f"s_add_u32 m0, s{sXo}, {base}")
        a(f"s_add_u32 s{sT1}, s{sXo}, {3584*ii}")
        R.vmem(f"buffer_load_dwordx4 v{PT+4 + (ii % 4)}, {srd(SRD_X)}, s{sT1} offen lds", "x")
    a(f"s_mov_b64 exec, s[{sEX}:{sEX+1}]")

def p_setup2(R):
    a = R.a
    l, q, g = PT, PT+1, PT+2
    p = sIDX
    a(f"s_lshl_b32 s{sWp}, s{p}, 14"); a(f"s_add_u32 s{sWp}, s{sWp}, {WB}")
    wq_dma_pattern(a, vWqD, l, g, PT+3, PT+4)
    a(f"v_lshrrev_b32 v{PT+3}, 2, v{l}")
    a(f"v_lshrrev_b32 v{PT+4}, 1, v{PT+3}"); a(f"v_and_b32 v{PT+4}, 3, v{PT+4}")
    a(f"v_lshlrev_b32 v{PT+5}, 7, v{PT+3}"); a(f"v_add_u32 v{PT+5}, s{sWp}, v{PT+5}")
    a(f"v_and_b32 v{PT+6}, 3, v{l}"); a(f"v_lshl_add_u32 v{PT+5}, v{PT+6}, 3, v{PT+5}")
    for mt in range(4):
        a(f"v_xor_b32 v{PT+6}, {mt}, v{PT+4}")
        a(f"v_lshl_add_u32 v{vWqR+mt}, v{PT+6}, 5, v{PT+5}")
    a(f"s_and_b32 s{sT0}, s{sIDX}, 1"); a(f"s_mul_i32 s{sT0}, s{sT0}, {48*128}")
    a(f"s_lshr_b32 s{sT1}, s{sIDX}, 1"); a(f"s_mul_i32 s{sT1}, s{sT1}, 12288")
    a(f"s_add_u32 s{sT0}, s{sT0}, s{sT1}"); a(f"s_add_u32 s{sT0}, s{sT0}, {QB}")
    a(f"v_lshlrev_b32 v{PT+5}, 7, v{q}"); a(f"v_add_u32 v{PT+5}, s{sT0}, v{PT+5}")
    a(f"v_and_b32 v{PT+6}, 1, v{g}"); a(f"v_lshl_add_u32 v{PT+5}, v{PT+6}, 3, v{PT+5}")
    a(f"v_lshrrev_b32 v{PT+6}, 1, v{g}"); a(f"v_lshrrev_b32 v{PT+3}, 1, v{q}"); a(f"v_xor_b32 v{PT+6}, v{PT+6}, v{PT+3}")
    a(f"v_lshl_add_u32 v{vQW}, v{PT+6}, 4, v{PT+5}")
    a(f"v_lshrrev_b32 v{PT+3}, 1, v{q}")
    a(f"v_lshrrev_b32 v{PT+4}, 1, v{g}"); a(f"v_xor_b32 v{PT+4}, v{PT+4}, v{PT+3}")
    a(f"s_mov_b32 s{sT0}, 896"); a(f"v_mul_lo_u32 v{PT+5}, s{sT0}, v{q}")
    a(f"v_and_b32 v{PT+6}, 1, v{g}"); a(f"v_lshl_add_u32 v{PT+5}, v{PT+6}, 3, v{PT+5}")
    a(f"v_add_u32 v{PT+5}, {KVB}, v{PT+5}")
    for k in range(4):
        a(f"v_xor_b32 v{PT+6}, {2*k}, v{PT+4}")
        a(f"v_lshl_add_u32 v{PT+7+k}, v{PT+6}, 4, v{PT+5}")

def p_xfrags(R):
    a = R.a
    for pas in range(2):
        for s in range(14):
            for nt in ((0, 1) if pas == 0 else (2,)):
                for half in range(2):
                    k = 2*(s & 1) + half
                    off = (14336*nt if pas == 0 else 0) + 128*(s >> 1)
                    R.lds_guard(1)
                    R.lds(f"ds_read_b64 {vr(Xf(s,nt)+2*half,2)}, v{PT+7+k} offset:{off}", "xf")
        if pas == 0:
            R.wait_lg_all()
            for k in range(4): a(f"v_add_u32 v{PT+7+k}, {QB-KVB}, v{PT+7+k}")
    R.wait_lg_all()

def p_qcompute(R, kaps, stream_next, hooks=None):
    a = R.a
    D = cfg.dq; NB = D + 1
    hooks = hooks or {}
    frs = [(kap, mt) for kap in kaps for mt in range(4)]
    def rd(f):
        kap, mt = frs[f]
        if mt == 0: R.wait_vm(f"w{kap}")
        b = PRING + 4*(f % NB)
        area, off = wq_slot(kap)
        ad = (vWqR if area == 'own' else vWqR5) + mt
        R.lds(f"ds_read_b64_tr_b16 {vr(b,2)}, v{ad} offset:{off}", f"f{kap}_{mt}")
        R.lds(f"ds_read_b64_tr_b16 {vr(b+2,2)}, v{ad} offset:{off + 2048}", f"f{kap}_{mt}")
    for f in range(min(D, len(frs))): rd(f)
    for f, (kap, mt) in enumerate(frs):
        J, s = divmod(kap, 14)
        if f + D < len(frs): rd(f + D)
        if stream_next and cfg.j0s5 and kap >= 1 and kap + 4 < 14: wq_dma(R, kap + 4, vWqD, [mt])
        R.wait_lg(f"f{kap}_{mt}")
        if cfg.kst and mt == 0 and kap < 14 and kap % 2 == 0: lstamp(a, 26 + kap // 2)
        for nt in range(3):
            d = Qa(mt, nt)
            c = "0" if s == 0 else vr(d)
            a(f"v_mfma_f32_16x16x32_bf16 {vr(d)}, {vr(PRING + 4*(f % NB))}, {vr(Xf(s,nt))}, {c}")
        if stream_next and not cfg.j0s5 and mt == 3 and kap + NSLOT_Q < 14: wq_dma(R, kap + NSLOT_Q, vWqD)
        if mt == 3 and kap in hooks: hooks[kap]()
    last = kaps[-1]
    if last % 14 == 13:
        if cfg.kst and last == 13: lstamp(a, 33)
        k = 0
        for m2 in range(4):
            a(f"v_xor_b32 v{PT+8}, {32*m2}, v{vQW}")
            for nt in range(3):
                d = Qa(m2, nt)
                t = PT + 2*(k % 4); k += 1
                a(f"v_cvt_pk_bf16_f32 v{t}, v{d}, v{d+1}")
                a(f"v_cvt_pk_bf16_f32 v{t+1}, v{d+2}, v{d+3}")
                R.lds_guard(1)
                R.lds(f"ds_write_b64 v{PT+8}, {vr(t,2)} offset:{2048*nt}", "qw")
        R.wait_lg("qw")

ORING = 0
vWoD = 32
vWoR = 34
vOR = 42
VT = 48
ALT = 208
PUB = [216 + 4*i for i in range(10)] + [20, 24]
def Outa(i, nt): return 64 + (i*3 + nt)*4
def Of(ks, nt): return 160 + (ks*3 + nt)*4

def p_vsetup(R, wide):
    a = R.a
    l, q, g = VT, VT+1, VT+2
    a(f"v_mbcnt_lo_u32_b32 v{l}, -1, 0"); a(f"v_mbcnt_hi_u32_b32 v{l}, -1, v{l}")
    a(f"v_and_b32 v{q}, 15, v{l}"); a(f"v_lshrrev_b32 v{g}, 4, v{l}")
    a(f"s_lshl_b32 s{sT0}, s{sIDX}, 8")
    if wide:
        a(f"v_bfe_u32 v{VT+3}, v{l}, 1, 3"); a(f"v_xor_b32 v{VT+3}, v{VT+3}, v{g}")
        a(f"s_mov_b32 s{sT1}, 896"); a(f"v_mul_lo_u32 v{VT+4}, s{sT1}, v{g}")
        a(f"v_and_b32 v{VT+5}, 1, v{l}"); a(f"v_lshl_add_u32 v{VT+4}, v{VT+5}, 4, v{VT+4}")
        a(f"v_add_u32 v{VT+4}, s{sT0}, v{VT+4}")
        a(f"v_lshl_add_u32 v{vWoD}, v{VT+3}, 5, v{VT+4}")
        a(f"v_xor_b32 v{VT+3}, 4, v{VT+3}"); a(f"v_lshl_add_u32 v{vWoD+1}, v{VT+3}, 5, v{VT+4}")
        a(f"v_lshrrev_b32 v{VT+3}, 2, v{l}"); a(f"v_and_b32 v{VT+4}, 7, v{VT+3}")
        a(f"v_lshlrev_b32 v{VT+5}, 8, v{VT+3}")
    else:
        a(f"v_lshrrev_b32 v{VT+3}, 3, v{l}"); a(f"s_mov_b32 s{sT1}, 896"); a(f"v_mul_lo_u32 v{VT+4}, s{sT1}, v{VT+3}")
        a(f"v_bfe_u32 v{VT+3}, v{l}, 1, 2"); a(f"v_xor_b32 v{VT+3}, v{VT+3}, v{g}")
        a(f"v_lshl_add_u32 v{VT+4}, v{VT+3}, 5, v{VT+4}")
        a(f"v_and_b32 v{VT+5}, 1, v{l}"); a(f"v_lshl_add_u32 v{VT+4}, v{VT+5}, 4, v{VT+4}")
        a(f"v_add_u32 v{vWoD}, s{sT0}, v{VT+4}")
        a(f"v_lshrrev_b32 v{VT+3}, 2, v{l}")
        a(f"v_lshrrev_b32 v{VT+4}, 1, v{VT+3}"); a(f"v_and_b32 v{VT+4}, 3, v{VT+4}")
        a(f"v_lshlrev_b32 v{VT+5}, 7, v{VT+3}")
    a(f"v_and_b32 v{VT+6}, 3, v{l}"); a(f"v_lshl_add_u32 v{VT+5}, v{VT+6}, 3, v{VT+5}")
    a(f"s_lshl_b32 s{sT1}, s{sIDX}, 13")
    for mt in range(8 if wide else 4):
        a(f"v_xor_b32 v{VT+6}, {mt}, v{VT+4}")
        a(f"v_lshl_add_u32 v{VT+7}, v{VT+6}, 5, v{VT+5}")
        a(f"v_add_u32 v{vWoR+mt}, s{sWp}, v{VT+7}")
        a(f"v_add_u32 v{ALT+mt}, s{sT1}, v{VT+7}")
    a(f"v_lshrrev_b32 v{VT+3}, 1, v{q}"); a(f"v_xor_b32 v{VT+3}, v{g}, v{VT+3}")
    a(f"v_lshlrev_b32 v{VT+4}, 7, v{q}"); a(f"v_add_u32 v{VT+4}, {OB}, v{VT+4}")
    a(f"v_lshl_add_u32 v{vOR}, v{VT+3}, 4, v{VT+4}")
    a(f"v_xor_b32 v{VT+3}, 4, v{VT+3}"); a(f"v_lshl_add_u32 v{vOR+1}, v{VT+3}, 4, v{VT+4}")
    a(f"s_lshl_b32 s{sM0}, s{sIDX}, 13")

def wo_slot(kap, wide):
    slot = 8192 if wide else 4096
    special = {14: ('kv', KVA), 15: ('kv', KVB)}
    if kap in special: return special[kap]
    return ('own', (kap % 2)*slot)

def wo_dma(R, kap, wide, ii_list=None):
    a = R.a
    j, ks = divmod(kap, 4); h, s = divmod(ks, 2)
    row0 = 256*h + 32*s
    area, off = wo_slot(kap, wide)
    base = sWp if area == 'own' else sM0
    for ii in (ii_list if ii_list is not None else range(8 if wide else 4)):
        a(f"s_add_u32 m0, s{base}, {off + 1024*ii}")
        rows = 4*ii if wide else 8*ii
        a(f"s_add_u32 s{sT1}, s{sCOL+4+j}, {(row0 + rows)*896}")
        pat = vWoD + ((ii & 1) if wide else 0)
        R.vmem(f"buffer_load_dwordx4 v{pat}, {srd(SRD_WO)}, s{sT1} offen {cfg.w_flags} lds", f"o{kap}")

def p_ofrags(R):
    for k2 in range(4):
        for nt in range(3):
            R.lds_guard(1)
            R.lds(f"ds_read_b128 {vr(Of(k2,nt))}, v{vOR + (k2 & 1)} offset:{6144*(k2 >> 1) + 2048*nt}", f"of{k2}")

vPK0, vPK1, vPV, vPF = 44, 45, 46, 56
def p_kv_setup(R):
    a = R.a
    l, g = VT, VT+2
    a(f"v_mbcnt_lo_u32_b32 v{l}, -1, 0"); a(f"v_mbcnt_hi_u32_b32 v{l}, -1, v{l}"); a(f"v_lshrrev_b32 v{g}, 4, v{l}")
    a(f"v_lshrrev_b32 v{VT+3}, 3, v{l}"); a(f"v_lshlrev_b32 v{VT+3}, 9, v{VT+3}")
    a(f"s_lshl_b32 s{sT1}, s{sIDX}, 15"); a(f"v_add_u32 v{VT+3}, s{sT1}, v{VT+3}")
    a(f"v_and_b32 v{VT+4}, 7, v{l}"); a(f"v_xor_b32 v{VT+5}, v{VT+4}, v{g}")
    a(f"v_lshl_add_u32 v{vPK0}, v{VT+5}, 4, v{VT+3}")
    a(f"v_xor_b32 v{VT+5}, 4, v{VT+5}"); a(f"v_lshl_add_u32 v{vPK1}, v{VT+5}, 4, v{VT+3}")
    a(f"v_lshrrev_b32 v{VT+5}, 1, v{VT+4}"); a(f"v_xor_b32 v{VT+5}, v{VT+5}, v{g}")
    a(f"v_lshl_add_u32 v{VT+5}, v{VT+5}, 5, v{VT+3}")
    a(f"v_and_b32 v{VT+4}, 1, v{l}"); a(f"v_lshl_add_u32 v{vPV}, v{VT+4}, 4, v{VT+5}")
    a(f"v_lshlrev_b32 v{vPF}, 7, v{l}")

def p_issue_KV(R, kind, n):
    a = R.a
    j, w = n >> 1, n & 1
    buf = KVA if w == 0 else KVB
    for ii in range(8):
        a(f"s_add_u32 m0, s{sM0}, {buf + 1024*ii}")
        a(f"s_add_u32 s{sT1}, s{sCOL+j}, {131072*w + 4096*ii}")
        if kind == "K": R.vmem(f"buffer_load_dwordx4 v{vPK0 + (ii & 1)}, {srd(SRD_K)}, s{sT1} offen {cfg.k_flags} lds", f"K{n}")
        else: R.vmem(f"buffer_load_dwordx4 v{vPV}, {srd(SRD_V)}, s{sT1} offen {cfg.v_flags} lds", f"V{n}")

def p_pf_wo(R):
    a = R.a
    if not cfg.pf: return
    a(f"s_mul_i32 s{sT2}, s{sB}, 28672"); a(f"s_lshl_b32 s{sT3}, s{sIDX}, 13"); a(f"s_add_u32 s{sT2}, s{sT2}, s{sT3}")
    R.vmem(f"buffer_load_dword v57, v{vPF}, {srd(SRD_WO)}, s{sT2} offen {cfg.pf_flags}", "pf")

def p_of(R, k2):
    for nt in range(3):
        R.lds_guard(1)
        R.lds(f"ds_read_b128 {vr(Of(k2,nt))}, v{vOR + (k2 & 1)} offset:{6144*(k2 >> 1) + 2048*nt}", f"of{k2}")

def p_ocompute(R, kaps, wide, inter=None, ofr=False):
    a = R.a
    NT = 8 if wide else 4
    D = 4; NB = 5
    rowb = 256 if wide else 128
    inter = inter or {}
    frs = [(kap, mt) for kap in kaps for mt in range(NT)]
    def rd(f):
        kap, mt = frs[f]
        if mt == 0: R.wait_vm(f"o{kap}")
        b = ORING + 4*(f % NB)
        area, off = wo_slot(kap, wide)
        addr = (vWoR if area == 'own' else ALT) + mt
        R.lds_guard(2)
        R.lds(f"ds_read_b64_tr_b16 {vr(b,2)}, v{addr} offset:{off}", f"f{kap}_{mt}")
        R.lds(f"ds_read_b64_tr_b16 {vr(b+2,2)}, v{addr} offset:{off + 16*rowb}", f"f{kap}_{mt}")
    if ofr: p_of(R, 0)
    for f in range(D): rd(f)
    for f, (kap, mt) in enumerate(frs):
        j, ks = divmod(kap, 4)
        if f + D < len(frs): rd(f + D)
        if ofr and f < 3: p_of(R, f + 1)
        for (k2, ii) in inter.get(f, []): wo_dma(R, k2, wide, [ii])
        R.wait_lg(f"f{kap}_{mt}")
        if mt == 0: R.wait_lg(f"of{ks}")
        for nt in range(3):
            d = Outa(mt, nt)
            c = "0" if kap == 0 else vr(d)
            a(f"v_mfma_f32_16x16x32_bf16 {vr(d)}, {vr(ORING + 4*(f % NB))}, {vr(Of(ks,nt))}, {c}")
        if cfg.tst and mt == NT - 1 and kap >= 10: lstamp(a, 26 + kap - 10)

def p_oproj_phase(R, bar, wide):
    a = R.a
    NT = 8 if wide else 4
    nbar = 0
    def b1():
        nonlocal nbar
        bar(); nbar += 1
    b1()
    if cfg.wo_first_after >= 6: wo_dma(R, 0, wide); wo_dma(R, 1, wide)
    b1()
    for j in range(3):
        a.comment(f"---- O projection chunk {j}")
        p_ocompute(R, [4*j, 4*j+1], wide, ofr=True)
        wo_dma(R, 4*j+2, wide); wo_dma(R, 4*j+3, wide)
        b1()
        if j < 2:
            p_ocompute(R, [4*j+2, 4*j+3], wide)
            wo_dma(R, 4*j+4, wide); wo_dma(R, 4*j+5, wide)
        else:
            inter = {f: [(14, f)] for f in range(NT)}
            inter.update({NT + f: [(12, f)] for f in range(NT)})
            p_ocompute(R, [10, 11], wide, inter=inter)
            wo_dma(R, 13, wide)
        b1()
    p_ocompute(R, [12, 13], wide, inter={f: [(15, f)] for f in range(NT)}, ofr=True)
    p_ocompute_last(R, wide)
    return nbar

def p_ocompute_last(R, wide):
    a = R.a
    NT = 8 if wide else 4
    D = 4; NB = 5
    rowb = 256 if wide else 128
    frs = [(kap, 2*ip + t) for ip in range(NT//2) for kap in (14, 15) for t in range(2)]
    def rd(f):
        kap, mt = frs[f]
        if f == 0: R.wait_vm("o14"); R.wait_vm("o15")
        b = ORING + 4*(f % NB)
        area, off = wo_slot(kap, wide)
        addr = (vWoR if area == 'own' else ALT) + mt
        R.lds_guard(2)
        R.lds(f"ds_read_b64_tr_b16 {vr(b,2)}, v{addr} offset:{off}", f"g{f}")
        R.lds(f"ds_read_b64_tr_b16 {vr(b+2,2)}, v{addr} offset:{off + 16*rowb}", f"g{f}")
    a(f"v_mbcnt_lo_u32_b32 v{VT}, -1, 0"); a(f"v_mbcnt_hi_u32_b32 v{VT}, -1, v{VT}"); a(f"v_lshlrev_b32 v{VT}, 4, v{VT}")
    a(f"s_mul_i32 s{sT2}, s2, {PART}"); a(f"s_mul_i32 s{sT3}, s{sIDX}, {12*1024}"); a(f"s_add_u32 s{sT2}, s{sT2}, s{sT3}")
    npub = 0
    def pub_pair(ip):
        nonlocal npub
        for nt in range(3):
            t = PUB[npub]; npub += 1
            d0, d1 = Outa(2*ip, nt), Outa(2*ip+1, nt)
            a(f"v_cvt_pk_bf16_f32 v{t}, v{d0}, v{d0+1}"); a(f"v_cvt_pk_bf16_f32 v{t+1}, v{d0+2}, v{d0+3}")
            a(f"v_cvt_pk_bf16_f32 v{t+2}, v{d1}, v{d1+1}"); a(f"v_cvt_pk_bf16_f32 v{t+3}, v{d1+2}, v{d1+3}")
            a(f"s_add_u32 s{sT1}, s{sT2}, {1024*(ip*3 + nt)}")
            R.vmem(f"buffer_store_dwordx4 {vr(t)}, v{VT}, {srd(SRD_WS)}, s{sT1} offen sc0 sc1", "pub")
    for f in range(D): rd(f)
    for f, (kap, mt) in enumerate(frs):
        ks = kap % 4
        if f + D < len(frs): rd(f + D)
        R.wait_lg(f"g{f}")
        for nt in range(3):
            d = Outa(mt, nt)
            a(f"v_mfma_f32_16x16x32_bf16 {vr(d)}, {vr(ORING + 4*(f % NB))}, {vr(Of(ks,nt))}, {vr(d)}")
        if f % 4 == 1 and f >= 5: pub_pair(f//4 - 1)
    pub_pair(NT//2 - 1)

def p_flag(R):
    a = R.a
    if cfg.tst: lstamp(a, 32)
    R.wait_vm_all()
    if cfg.tst: lstamp(a, 33)
    a(f"s_mul_i32 s{sT0}, s{sGRP}, {FSTR}"); a(f"s_add_u32 s{sT0}, s{sT0}, {FLG}")
    a(f"s_lshl_b32 s{sT1}, s{sG}, 2"); a(f"s_add_u32 s{sT1}, s{sT1}, s{sIDX}"); a(f"s_lshl_b32 s{sT1}, s{sT1}, 2")
    a(f"v_mov_b32 v2, s{sT1}"); a("v_mov_b32 v1, 1")
    a(f"s_mov_b64 s[{sEX}:{sEX+1}], exec")
    a("s_mov_b64 exec, 1")
    a(f"buffer_store_dword v1, v2, {srd(SRD_WS)}, s{sT0} offen sc0 sc1")
    a(f"s_mov_b64 exec, s[{sEX}:{sEX+1}]")

def emit_reduce(a):
    a.label("L_tail")
    if cfg.stamps: stamp(a, 50)
    a(f"s_min_u32 s{sT0}, s{sG}, 2"); a(f"s_mul_i32 s{sT1}, s{sG}, 5"); a(f"s_add_u32 s{sT0}, s{sT0}, s{sT1}")
    a(f"s_cmp_lt_u32 s{sG}, 2"); a(f"s_cselect_b32 s{sT1}, 6, 5")
    a(f"s_cmp_ge_u32 s{sWAVE}, s{sT1}")
    a("s_cbranch_scc1 " + ("L_nogather" if cfg.stamps else ("L_mini" if cfg.mini else "L_end")))
    a(f"s_add_u32 s{sT0}, s{sT0}, s{sWAVE}")
    a("v_mbcnt_lo_u32_b32 v3, -1, 0"); a("v_mbcnt_hi_u32_b32 v3, -1, v3")
    a("v_lshlrev_b32 v6, 4, v3"); a("v_lshlrev_b32 v0, 2, v3")
    a(f"s_mul_i32 s{sT2}, s{sT0}, 171"); a(f"s_lshr_b32 s{sT2}, s{sT2}, 9")
    a(f"s_mul_i32 s{sT3}, s{sT2}, 3"); a(f"s_sub_u32 s{sT3}, s{sT0}, s{sT3}")
    a(f"s_lshl_b32 s{sT3}, s{sT3}, 4"); a(f"s_mul_i32 s{sT1}, s{sB}, 48"); a(f"s_add_u32 s{sT3}, s{sT3}, s{sT1}")
    a(f"s_mul_i32 s{sT3}, s{sT3}, 1792"); a(f"s_lshl_b32 s{sT2}, s{sT2}, 6"); a(f"s_add_u32 s{sT3}, s{sT3}, s{sT2}")
    a(f"s_mul_i32 s{sT1}, s{sBR}, 896"); a(f"s_add_u32 s78, s{sT3}, s{sT1}") if not cfg.lstamps else None
    if cfg.lstamps: a(f"s_mul_i32 s{sT1}, s{sBR}, 896"); a(f"s_add_u32 s100, s{sT3}, s{sT1}")
    sOUT = 100 if cfg.lstamps else 78
    a("v_and_b32 v7, 15, v3"); a(f"s_mov_b32 s{sT1}, 1792"); a(f"v_mul_lo_u32 v7, s{sT1}, v7")
    a("v_bfe_u32 v8, v3, 4, 1"); a("v_lshl_add_u32 v7, v8, 5, v7")
    a("v_lshrrev_b32 v8, 5, v3"); a("v_lshl_add_u32 v7, v8, 4, v7")
    a(f"s_lshl_b32 s{sT1}, s{sB}, 4"); a(f"s_lshl_b32 s{sT2}, s{sBR}, 2"); a(f"s_add_u32 s{sT1}, s{sT1}, s{sT2}")
    a(f"s_mul_i32 s{sT1}, s{sT1}, {PART}"); a(f"s_lshl_b32 s{sT2}, s{sT0}, 10"); a(f"s_add_u32 s{sT3}, s{sT1}, s{sT2}")
    a(f"s_mul_i32 s{sT0}, s{sGRP}, {FSTR}"); a(f"s_add_u32 s{sT0}, s{sT0}, {FLG}")
    a(f"s_mov_b64 s[{sEX}:{sEX+1}], exec")
    a("s_mov_b32 exec_hi, 0")
    a(f"s_mov_b32 s{sT2}, 0")
    a.label("L_poll")
    a(f"buffer_load_dword v4, v0, {srd(SRD_WS)}, s{sT0} offen sc0 sc1")
    a("s_waitcnt vmcnt(0)")
    a("v_cmp_eq_u32 vcc, 1, v4")
    a("s_cmp_eq_u32 vcc_lo, -1")
    a("s_cbranch_scc1 L_poll_done")
    a(f"s_add_u32 s{sT2}, s{sT2}, 1")
    a(f"s_cmp_ge_u32 s{sT2}, 400000")
    a("s_cbranch_scc1 L_poll_done")
    if cfg.sleep: a(f"s_sleep {cfg.sleep}")
    a("s_branch L_poll")
    a.label("L_poll_done")
    a(f"s_mov_b64 exec, s[{sEX}:{sEX+1}]")
    if cfg.stamps: stamp(a, 52)
    for k in range(8):
        gb, gp = k >> 2, k & 3
        a(f"s_add_u32 s{sT2}, s{sT3}, {(gb*8 + gp)*PART}")
        a(f"buffer_load_dwordx4 {vr(64+4*k)}, v6, {srd(SRD_WS)}, s{sT2} offen sc0 sc1")
    acc = 16
    for k in range(8):
        a(f"s_waitcnt vmcnt({7-k})")
        for r in range(4):
            src = 64 + 4*k + r
            if k == 0:
                a(f"v_lshlrev_b32 v{acc+2*r}, 16, v{src}"); a(f"v_and_b32 v{acc+2*r+1}, 0xffff0000, v{src}")
            else:
                t = 8 + 2*(r & 1) + 2
                a(f"v_lshlrev_b32 v{t}, 16, v{src}"); a(f"v_and_b32 v{t+1}, 0xffff0000, v{src}")
                a(f"v_pk_add_f32 {vr(acc+2*r,2)}, {vr(acc+2*r,2)}, {vr(t,2)}")
    for r in range(4):
        a(f"v_cvt_pk_bf16_f32 v{12+r}, v{acc+2*r}, v{acc+2*r+1}")
    a("v_permlane16_swap_b32 v12, v14")
    a("v_permlane16_swap_b32 v13, v15")
    a(f"buffer_store_dwordx4 v[12:15], v7, {srd(SRD_OUT)}, s{sOUT} offen")
    if cfg.stamps:
        a("s_waitcnt vmcnt(0)")
        a.label("L_nogather")
        stamp(a, 53)
        a("s_memtime s[74:75]"); a("s_waitcnt lgkmcnt(0)"); a("v_writelane_b32 v61, s74, 61")
        stamp_store(a)
    if cfg.mini:
        a.label("L_mini")
        a("s_memrealtime s[72:73]"); a("s_waitcnt vmcnt(0) lgkmcnt(0)")
        a("s_memrealtime s[72:73]"); a("s_waitcnt lgkmcnt(0)")
        a("v_mov_b32 v61, 0"); a("v_writelane_b32 v61, s90, 62"); a("v_writelane_b32 v61, s72, 53")
        stamp_store(a)
    a.label("L_end")
    a("s_endpgm")

def build():
    a = Asm()
    if cfg.mini:
        a("s_memrealtime s[90:91]")
    if cfg.stamps:
        a("s_memrealtime s[72:73]"); a("s_memtime s[74:75]"); a("s_waitcnt lgkmcnt(0)")
        a("v_writelane_b32 v61, s72, 62"); a("v_writelane_b32 v61, s74, 60")
    emit_prologue(a)
    cnt = {"n": 0}
    def bar():
        a("s_barrier")
        if cfg.stamps: stamp(a, cnt["n"])
        cnt["n"] += 1
    A = Role(a)
    if cfg.prioA: a(f"s_setprio {cfg.prioA}")
    a_setup(A)
    if cfg.pf_first: a_pf(A, "wq")
    bar()
    if not cfg.pf_first: a_pf(A, "wq")
    a_setup2(A)
    bar()
    a0_flag_zero(A)
    for kap in range(4): wq_dma(A, kap, vWqA)
    a_issue_KV(A, "K", 0)
    a_setup3(A)
    a_pair_init(A)
    A.wait_vm("w3")
    a0_flag_mark(A)
    bar()
    bar()
    a_issue_KV(A, "K", 1)
    A.wait_vm("K0")
    bar()
    a_S(A, 0)
    A.wait_vm("K1")
    bar()
    a_S(A, 1, dma=("K", 2)); A.wait_vm("K2"); bar()
    a_S(A, 2, dma=("K", 3)); A.wait_vm("K3"); bar()
    a_S(A, 3, dma=("K", 4)); A.wait_vm("K4"); bar()
    a_flag_load(A)
    a_issue_KV(A, "K", 5)
    a_flag_check(A)
    bar()
    a_S(A, 4)
    A.wait_vm("K5")
    bar()
    a_S(A, 5)
    bar()
    bar()
    a_S(A, 6)
    bar()
    if cfg.split_sm: a_softmax1(A)
    bar()
    a_S(A, 7)
    bar()
    if not cfg.split_sm: a_softmax1(A)
    a_softmax2(A)
    bar()
    for n in range(8):
        dma = ("V", n+1) if 1 <= n <= 6 else None
        a_PV(A, n, dma)
        if n == 0:
            a_alpha(A); a_pair_addr(A)
        if n % 2 == 0:
            a_rescale(A)
        else:
            a_pair_sync(A, n >> 1)
            a_xfinal(A)
        if 1 <= n < 7: A.wait_vm(f"V{n+1}")
        A.wait_lg_all()
        bar()
    nA = cnt["n"]
    A.wait_vm_all()
    a("s_branch L_tail")
    a.label("L_P")
    cnt["n"] = 0
    P = Role(a)
    stamp_move(a, 39)
    if cfg.stamps: stamp(a, 55)
    if cfg.prioP: a(f"s_setprio {cfg.prioP}")
    P.vm += ["x"]*12
    if cfg.stamps: stamp(a, 56)
    bar()
    p_setup2(P)
    P.wait_vm("x"); bar()
    p_xfrags(P)
    if cfg.j0s5:
        a(f"s_lshl_b32 s{sWq5}, s{sIDX}, 12"); a(f"s_add_u32 s{sWq5}, s{sWq5}, {QB}")
        a(f"s_sub_u32 s{sT0}, s{sWq5}, s{sWp}")
        for mt in range(4): a(f"v_add_u32 v{vWqR5+mt}, s{sT0}, v{vWqR+mt}")
    bar()
    if cfg.j0s5: wq_dma(P, 4, vWqD)
    p_qcompute(P, list(range(14)), True, hooks={cfg.k1_after: bar})
    bar()
    for kap in (14, 15, 16, 17): wq_dma(P, kap, vWqD)
    bar()
    for kaps, nxt in (([14,15], [18,19]), ([16,17,18,19], [20,21,22,23]), ([20,21,22,23], [24,25,26,27]), ([24,25,26,27], [])):
        p_qcompute(P, kaps, False)
        for kap in nxt: wq_dma(P, kap, vWqD)
        bar()
    a(f"s_cmp_eq_u32 s{sIDX}, 3")
    a("s_cbranch_scc1 L_P3")
    base = cnt["n"]
    for wide in (True, False):
        if not wide:
            a.label("L_P3"); cnt["n"] = base
        Pw = Role(a)
        STREG[0] = 39
        stamp_move(a, 47)
        p_vsetup(Pw, wide)
        p_kv_setup(Pw)
        bar()
        p_issue_KV(Pw, "K", 6); bar()
        p_issue_KV(Pw, "K", 7); Pw.wait_vm("K6"); bar()
        bar()
        p_issue_KV(Pw, "V", 0); Pw.wait_vm("K7"); bar()
        bar()
        p_issue_KV(Pw, "V", 1); p_pf_wo(Pw); Pw.wait_vm("V0"); bar()
        Pw.wait_vm("V1")
        nb = p_oproj_phase(Pw, bar, wide)
        assert nb == 8, nb
        if cfg.stamps: stamp(a, 59)
        p_flag(Pw)
        if cfg.stamps: stamp(a, 58)
        assert cnt["n"] == nA, (cnt["n"], nA)
        stamp_move(a, 61)
        if wide: a("s_branch L_tail")
    emit_reduce(a)
    a.finalize()
    return a

HEADER = open("cdna_kernels/" + NAME + ".s.ref").read().split("; Override launch")[0]
def full_text(a):
    s = HEADER
    s += f"; @launch grid=(256,1,1) block=(512,1,1) lds={LDS_BYTES}\n"
    s += f'.amdgcn_target "amdgcn-amd-amdhsa--gfx950"\n.text\n.globl {NAME}_kernel\n.p2align 8\n.type {NAME}_kernel,@function\n{NAME}_kernel:\n'
    s += a.text()
    s += f""".section .rodata,"a"
.p2align 6
.amdhsa_kernel {NAME}_kernel
  .amdhsa_next_free_vgpr 256
  .amdhsa_next_free_sgpr 102
  .amdhsa_accum_offset 256
  .amdhsa_group_segment_fixed_size 0
  .amdhsa_kernarg_size 104
  .amdhsa_user_sgpr_count 2
  .amdhsa_user_sgpr_kernarg_segment_ptr 1
  .amdhsa_system_sgpr_workgroup_id_x 1
.end_amdhsa_kernel
"""
    return s

if __name__ == "__main__":
    out = sys.argv[1] if len(sys.argv) > 1 else "cdna_kernels/" + NAME + ".s"
    for kv in sys.argv[2:]:
        k, v = kv.split("=", 1)
        cur = getattr(cfg, k)
        if isinstance(cur, bool): v = v.lower() in ("1", "true")
        elif isinstance(cur, int): v = int(v)
        setattr(cfg, k, v)
    a = build()
    open(out, "w").write(full_text(a))
    print("wrote", out, "instrs:", sum(1 for i in a.ins if i.kind not in ('none','label')), "nops inserted:", a.nops_inserted)
```

```python
import sys, math, struct
from asmlib import Asm

NAME = "concat_heads__gqa_block_cached__gqa_block_cached__near_ridge"

class Cfg:
    k_flags = "nt"
    v_flags = "nt"
    w_flags = ""
    pf = True
    pf_flags = ""
    stamps = False
    lstamps = False
    mini = False
    prioA = 0
    prioP = 0
    dq = 4
    pf_wo_at = 8
    k1_after = 9
    split_sm = True
    sleep = 0
    interleave = False
    pf_first = False
    wo_first_after = 7
    tst = False
    prio7 = 0
    prio7from = 7
    pkv = True
    unpack = True
    j0s5 = True
    rot = 1
    kst = False
cfg = Cfg()

KVA, KVB = 0, 32768
WB = 65536
QB = 131072
OB = 122880
XB = 135168
STAT = 159744
PFL = 161280
LDS_BYTES = 163840
PART = 43008
FLG = 16 << 20
FSTR = 8448
sWAVE, sIDX, sG, sB, sBR = 3, 4, 5, 6, 7
SRD_K, SRD_V, SRD_WQ, SRD_WO, SRD_X, SRD_OUT, SRD_WS = 8, 12, 16, 20, 24, 28, 32
sDBG = 58
sM0, sWp = 62, 63
sC = 64
sT0, sT1, sT2, sT3 = 66, 67, 68, 69
sEX = 70
sGRP, sXo = 76, 77
sCOL = 36
sJ = 44
def srd(b): return f"s[{b}:{b+3}]"
def vr(b, n=4): return f"v[{b}:{b+n-1}]"
def f32bits(x): return struct.unpack('<I', struct.pack('<f', x))[0]
vL, vQ, vGq = 44, 46, 47

class Role:
    def __init__(self, a): self.a = a; self.vm = []; self.lg = []
    def vmem(self, text, tag): self.a(text); self.vm.append(tag)
    def lds(self, text, tag): self.a(text); self.lg.append(tag)
    def wait_vm(self, tag):
        idx = [i for i, t in enumerate(self.vm) if t == tag]
        if not idx: return
        n = len(self.vm) - 1 - idx[-1]
        assert n <= 63
        self.a(f"s_waitcnt vmcnt({n})"); self.vm = self.vm[idx[-1]+1:]
    def wait_lg(self, tag):
        idx = [i for i, t in enumerate(self.lg) if t == tag]
        if not idx: return
        n = len(self.lg) - 1 - idx[-1]
        assert n <= 15, n
        self.a(f"s_waitcnt lgkmcnt({n})"); self.lg = self.lg[idx[-1]+1:]
    def wait_vm_all(self): self.a("s_waitcnt vmcnt(0)"); self.vm = []
    def wait_lg_all(self): self.a("s_waitcnt lgkmcnt(0)"); self.lg = []
    def lds_guard(self, n_new):
        if len(self.lg) + n_new > 15:
            keep = 15 - n_new
            self.a(f"s_waitcnt lgkmcnt({keep})"); self.lg = self.lg[len(self.lg)-keep:] if keep else []

STREG = [61]
PEND = []
def stamp(a, idx):
    a("s_memrealtime s[72:73]")
    a("s_waitcnt lgkmcnt(0)")
    a(f"v_writelane_b32 v{STREG[0]}, s72, {idx}")
    for (sp, i2) in PEND: a(f"v_writelane_b32 v{STREG[0]}, s{sp}, {i2}")
    PEND.clear()
def lstamp(a, idx):
    if not cfg.lstamps: return
    sp = 78 + 2*len(PEND)
    assert sp <= 98
    a(f"s_memrealtime s[{sp}:{sp+1}]")
    PEND.append((sp, idx))
def stamp_move(a, new):
    if cfg.stamps: a(f"v_mov_b32 v{new}, v{STREG[0]}")
    STREG[0] = new
def stamp_store(a):
    a(f"s_lshl_b32 s{sT0}, s2, 3"); a(f"s_add_u32 s{sT0}, s{sT0}, s{sWAVE}"); a(f"s_lshl_b32 s{sT0}, s{sT0}, 8")
    a("v_mbcnt_lo_u32_b32 v60, -1, 0"); a("v_mbcnt_hi_u32_b32 v60, -1, v60")
    a(f"v_lshlrev_b32 v60, 2, v60"); a(f"v_add_u32 v60, s{sT0}, v60")
    a("s_add_u32 s74, s60, 0x2000000"); a("s_addc_u32 s75, s61, 0")
    a("global_store_dword v60, v61, s[74:75]")
    a("s_waitcnt vmcnt(0)")

def emit_prologue(a):
    a("s_cmp_ge_u32 s2, 256")
    a("s_cbranch_scc1 L_end")
    a("s_load_dwordx16 s[36:51], s[0:1], 0")
    a("s_load_dwordx4 s[52:55], s[0:1], 64")
    a("s_load_dwordx4 s[56:59], s[0:1], 80")
    a("s_load_dwordx2 s[60:61], s[0:1], 96")
    a("v_and_b32 v44, 63, v0")
    a("v_lshrrev_b32 v45, 6, v0")
    a("v_and_b32 v46, 15, v44")
    a("v_lshrrev_b32 v47, 4, v44")
    a(f"v_readfirstlane_b32 s{sWAVE}, v45")
    a(f"s_bfe_u32 s{sBR}, s2, 0x10002")
    a(f"s_and_b32 s{sG}, s2, 3"); a(f"s_lshl_b32 s{sG}, s{sG}, 1")
    a(f"s_bfe_u32 s{sT0}, s2, 0x10003"); a(f"s_or_b32 s{sG}, s{sG}, s{sT0}")
    a(f"s_lshr_b32 s{sB}, s2, 4")
    a(f"s_and_b32 s{sIDX}, s{sWAVE}, 3")
    a(f"s_lshl_b32 s{sGRP}, s{sBR}, 4"); a(f"s_add_u32 s{sGRP}, s{sGRP}, s{sB}")
    a(f"s_mov_b32 s{sC}, 0x{f32bits(math.log2(math.e)/16.0):08x}"); a(f"s_mov_b32 s{sC+1}, s{sC}")
    a("s_waitcnt lgkmcnt(0)")
    if cfg.stamps: stamp(a, 54)
    a(f"s_cmp_eq_u32 s{sBR}, 0")
    for i in range(5):
        a(f"s_cselect_b64 s[{36+2*i}:{37+2*i}], s[{36+2*i}:{37+2*i}], s[{46+2*i}:{47+2*i}]")
    def mk(srdb, ptr, off_s, size):
        if off_s is None:
            a(f"s_mov_b32 s{srdb}, s{ptr}"); a(f"s_and_b32 s{srdb+1}, s{ptr+1}, 0xffff")
        else:
            a(f"s_add_u32 s{srdb}, s{ptr}, s{off_s}")
            a(f"s_addc_u32 s{srdb+1}, s{ptr+1}, 0")
            a(f"s_and_b32 s{srdb+1}, s{srdb+1}, 0xffff")
        if isinstance(size, int): a(f"s_mov_b32 s{srdb+2}, {size}")
        else: a(size)
        a(f"s_mov_b32 s{srdb+3}, 0x20000")
    a(f"s_mul_i32 s{sT1}, s{sB}, 43008")
    mk(SRD_X, 36, sT1, 43008)
    a(f"s_cmp_lt_u32 s{sWAVE}, 4"); a("s_cbranch_scc1 L_nox")
    PX = Role(a); p_setup(PX)
    a.label("L_nox")
    a(f"s_lshl_b32 s{sT1}, s{sG}, 10")
    mk(SRD_WQ, 42, sT1, f"s_sub_u32 s{SRD_WQ+2}, {448*8192}, s{sT1}")
    a(f"s_lshl_b32 s{sT0}, s{sB}, 3"); a(f"s_add_u32 s{sT0}, s{sT0}, s{sG}"); a(f"s_lshl_b32 s{sT0}, s{sT0}, 18")
    mk(SRD_K, 38, sT0, 262144)
    mk(SRD_V, 40, sT0, 262144)
    a(f"s_mul_i32 s{sT1}, s{sG}, 458752")
    mk(SRD_WO, 44, sT1, 458752)
    mk(SRD_OUT, 56, None, 16*48*896*2)
    mk(SRD_WS, 60, None, FLG + 32*FSTR)
    if cfg.rot == 0: a(f"s_mov_b32 s{sT0}, 0")
    elif cfg.rot == 1: a(f"s_and_b32 s{sT0}, s{sB}, 3")
    elif cfg.rot == 2: a(f"s_add_u32 s{sT0}, s{sB}, s{sG}"); a(f"s_and_b32 s{sT0}, s{sT0}, 3")
    elif cfg.rot == 3: a(f"s_and_b32 s{sT0}, s{sB}, 1"); a(f"s_lshl_b32 s{sT0}, s{sT0}, 1")
    for j in range(4):
        a(f"s_add_u32 s{sT1}, s{sT0}, {j}"); a(f"s_and_b32 s{sT1}, s{sT1}, 3")
        a(f"s_lshl_b32 s{sCOL+j}, s{sT1}, 7"); a(f"s_mul_i32 s{sCOL+4+j}, s{sT1}, {64*896}")
    a(f"s_lshr_b32 s{sT2}, s{sIDX}, 1")
    for J in range(2):
        a(f"s_add_u32 s{sT1}, s{sT0}, s{sT2}"); a(f"s_add_u32 s{sT1}, s{sT1}, {2*J}"); a(f"s_and_b32 s{sT1}, s{sT1}, 3")
        a(f"s_lshl_b32 s{sJ+J}, s{sT1}, 7")
    a(f"s_cmp_ge_u32 s{sWAVE}, 4")
    a("s_cbranch_scc1 L_P")

def wq_dma_pattern(a, dst, l, g, t0, t1):
    a(f"v_lshrrev_b32 v{t0}, 3, v{l}"); a(f"v_lshlrev_b32 v{t0}, 13, v{t0}")
    a(f"v_bfe_u32 v{t1}, v{l}, 1, 2"); a(f"v_xor_b32 v{t1}, v{t1}, v{g}")
    a(f"v_lshl_add_u32 v{t0}, v{t1}, 5, v{t0}")
    a(f"v_and_b32 v{t1}, 1, v{l}"); a(f"v_lshl_add_u32 v{t0}, v{t1}, 4, v{t0}")
    a(f"s_and_b32 s{sT0}, s{sIDX}, 1"); a(f"s_lshl_b32 s{sT0}, s{sT0}, 9")
    a(f"v_add_u32 v{dst}, s{sT0}, v{t0}")

NSLOT_Q = 4
def wq_slot(kap):
    if cfg.j0s5 and kap < 14:
        sl = kap % 5
        return ('q', 0) if sl == 4 else ('own', sl*4096)
    return ('own', (kap % NSLOT_Q)*4096)
sWq5 = 47
def wq_dma(R, kap, vpat, ii_list=range(4)):
    a = R.a
    J, s = divmod(kap, 14)
    area, off = wq_slot(kap)
    for ii in ii_list:
        a(f"s_add_u32 m0, s{sWp if area == 'own' else sWq5}, {off + 1024*ii}")
        a(f"s_add_u32 s{sT1}, s{sJ+J}, {(32*s + 8*ii)*8192}")
        R.vmem(f"buffer_load_dwordx4 v{vpat}, {srd(SRD_WQ)}, s{sT1} offen {cfg.w_flags} lds", f"w{kap}")

def S_(t, nt): return 64 + (t*3 + nt)*4
def Qf(s, nt): return (s*3 + nt)*4
KF = 24
vKdE, vKdO, vVd, vWqA = 48, 49, 50, 51

def a_setup(R):
    a = R.a
    a(f"s_lshl_b32 s{sM0}, s{sIDX}, 13")
    a(f"s_lshl_b32 s{sWp}, s{sIDX}, 14"); a(f"s_add_u32 s{sWp}, s{sWp}, {WB}")
    if cfg.pf:
        a(f"v_lshrrev_b32 v52, 3, v{vL}"); a("v_lshlrev_b32 v52, 13, v52")
        a(f"v_and_b32 v53, 7, v{vL}"); a("v_lshl_add_u32 v56, v53, 7, v52")
        a(f"s_mul_i32 s{sT2}, s{sB}, 28"); a(f"s_lshl_b32 s{sT3}, s{sIDX}, 3"); a(f"s_add_u32 s{sT2}, s{sT2}, s{sT3}")
        a(f"s_lshl_b32 s{sT2}, s{sT2}, 13")

def a_pf(R, which):
    a = R.a
    if not cfg.pf: return
    if which == "wq":
        R.vmem(f"buffer_load_dword v63, v56, {srd(SRD_WQ)}, s{sT2} offen {cfg.pf_flags}", "pf")
    else:
        a(f"v_lshlrev_b32 v58, 7, v{vL}")
        a(f"s_mul_i32 s{sT2}, s{sB}, 28672"); a(f"s_lshl_b32 s{sT3}, s{sIDX}, 13"); a(f"s_add_u32 s{sT2}, s{sT2}, s{sT3}")
        R.vmem(f"buffer_load_dword v62, v58, {srd(SRD_WO)}, s{sT2} offen {cfg.pf_flags}", "pf")

def a_setup2(R):
    a = R.a
    wq_dma_pattern(a, vWqA, vL, vGq, 52, 53)
    a(f"v_lshrrev_b32 v52, 3, v{vL}"); a("v_lshlrev_b32 v52, 9, v52")
    a(f"s_lshl_b32 s{sT1}, s{sIDX}, 15"); a(f"v_add_u32 v52, s{sT1}, v52")
    a(f"v_and_b32 v53, 7, v{vL}"); a(f"v_xor_b32 v54, v53, v{vGq}")
    a(f"v_lshl_add_u32 v{vKdE}, v54, 4, v52")
    a("v_xor_b32 v54, 4, v54"); a(f"v_lshl_add_u32 v{vKdO}, v54, 4, v52")
    a("v_lshrrev_b32 v54, 1, v53"); a(f"v_xor_b32 v54, v54, v{vGq}")
    a("v_lshl_add_u32 v54, v54, 5, v52")
    a(f"v_and_b32 v55, 1, v{vL}"); a(f"v_lshl_add_u32 v{vVd}, v55, 4, v54")

def a_setup3(R):
    a = R.a
    a(f"s_lshr_b32 s{sT0}, s{sIDX}, 1")
    a(f"s_and_b32 s{sT1}, s{sIDX}, 1")
    a(f"v_lshrrev_b32 v52, 1, v{vQ}")
    a(f"v_xor_b32 v53, v{vGq}, v52")
    a(f"v_xor_b32 v54, 4, v53")
    a(f"s_lshl_b32 s{sT2}, s{sT1}, 14")
    a(f"v_lshlrev_b32 v55, 7, v{vQ}")
    a(f"v_add_u32 v55, s{sT2}, v55")
    a(f"v_lshl_add_u32 v40, v53, 4, v55")
    a(f"v_lshl_add_u32 v41, v54, 4, v55")
    a(f"s_mul_i32 s{sT2}, s{sT0}, {48*128}")
    a(f"s_add_u32 s{sT2}, s{sT2}, {QB}")
    a(f"v_lshlrev_b32 v55, 7, v{vQ}")
    a(f"v_add_u32 v55, s{sT2}, v55")
    a(f"v_lshl_add_u32 v42, v53, 4, v55")
    a(f"v_lshl_add_u32 v43, v54, 4, v55")

def a_pair_init(R):
    a = R.a
    a(f"s_lshl_b32 s{sT0}, s{sIDX}, 4"); a(f"s_add_u32 s{sT0}, s{sT0}, {PFL}")
    a(f"v_mov_b32 v55, s{sT0}"); a("v_mov_b32 v56, 0")
    R.lds("ds_write_b32 v55, v56", "pf0")
    R.wait_lg_all()

def a_pair_addr(R):
    a = R.a
    a(f"s_lshl_b32 s{sT0}, s{sIDX}, 4"); a(f"s_add_u32 s{sT0}, s{sT0}, {PFL}")
    a(f"v_mov_b32 v55, s{sT0}"); a(f"s_xor_b32 s{sT0}, s{sT0}, 16"); a(f"v_mov_b32 v56, s{sT0}")

def a_pair_sync(R, j):
    a = R.a
    R.wait_lg_all()
    a(f"v_mov_b32 v57, {j+1}")
    a("ds_write_b32 v55, v57")
    a.label(f"L_ps{j}")
    a("ds_read_b32 v57, v56")
    a("s_waitcnt lgkmcnt(0)")
    a(f"v_readfirstlane_b32 s{sT0}, v57")
    a(f"s_cmp_lt_u32 s{sT0}, {j+1}")
    a(f"s_cbranch_scc1 L_ps{j}")

def kv_dma(R, kind, n, ii):
    a = R.a
    j, w = n >> 1, n & 1
    buf = KVA if w == 0 else KVB
    a(f"s_add_u32 m0, s{sM0}, {buf + 1024*ii}")
    a(f"s_add_u32 s{sT1}, s{sCOL+j}, {131072*w + 4096*ii}")
    if kind == "K":
        R.vmem(f"buffer_load_dwordx4 v{vKdE + (ii & 1)}, {srd(SRD_K)}, s{sT1} offen {cfg.k_flags} lds", f"K{n}")
    else:
        R.vmem(f"buffer_load_dwordx4 v{vVd}, {srd(SRD_V)}, s{sT1} offen {cfg.v_flags} lds", f"V{n}")
def a_issue_KV(R, kind, n):
    R.a.comment(f"---- issue {kind} window {n}")
    for ii in range(8): kv_dma(R, kind, n, ii)

def a0_flag_zero(R):
    a = R.a
    a(f"s_or_b32 s{sT0}, s{sG}, s{sIDX}"); a(f"s_cmp_lg_u32 s{sT0}, 0"); a("s_cbranch_scc1 L_fz_skip")
    a(f"s_mul_i32 s{sT0}, s{sGRP}, {FSTR}"); a(f"s_add_u32 s{sT0}, s{sT0}, {FLG}")
    a(f"v_lshlrev_b32 v58, 2, v{vL}"); a("v_mov_b32 v59, 0")
    a(f"s_mov_b64 s[{sEX}:{sEX+1}], exec"); a("s_mov_b32 exec_hi, 0")
    a(f"buffer_store_dword v59, v58, {srd(SRD_WS)}, s{sT0} offen sc0 sc1")
    a(f"s_mov_b64 exec, s[{sEX}:{sEX+1}]")
    a.label("L_fz_skip")

def a0_flag_mark(R):
    a = R.a
    a(f"s_or_b32 s{sT0}, s{sG}, s{sIDX}"); a(f"s_cmp_lg_u32 s{sT0}, 0"); a("s_cbranch_scc1 L_fm_skip")
    a(f"s_lshl_b32 s{sT0}, s{sGRP}, 2"); a(f"v_mov_b32 v58, s{sT0}"); a("v_mov_b32 v59, 1")
    a(f"s_mov_b64 s[{sEX}:{sEX+1}], exec"); a("s_mov_b64 exec, 1")
    a(f"global_store_dword v58, v59, s[{sDBG}:{sDBG+1}] sc0 sc1")
    a(f"s_mov_b64 exec, s[{sEX}:{sEX+1}]")
    a.label("L_fm_skip")

def a_flag_load(R):
    a = R.a
    a(f"s_lshl_b32 s{sT0}, s{sGRP}, 2"); a(f"v_mov_b32 v58, s{sT0}")
    R.vmem(f"global_load_dword v59, v58, s[{sDBG}:{sDBG+1}] sc0 sc1", "chk")
def a_flag_check(R):
    a = R.a
    R.wait_vm("chk")
    a(f"s_mov_b32 s{sT2}, 0")
    a.label("L_fc_poll")
    a(f"v_readfirstlane_b32 s{sT1}, v59")
    a(f"s_cmp_eq_u32 s{sT1}, 1"); a("s_cbranch_scc1 L_fc_skip")
    a(f"s_add_u32 s{sT2}, s{sT2}, 1"); a(f"s_cmp_ge_u32 s{sT2}, 400000"); a("s_cbranch_scc1 L_fc_skip")
    a("s_sleep 2")
    a(f"global_load_dword v59, v58, s[{sDBG}:{sDBG+1}] sc0 sc1")
    a("s_waitcnt vmcnt(0)")
    a("s_branch L_fc_poll")
    a.label("L_fc_skip")

T1, T2 = WB, WB + 32768
def a_S(R, n, dma=None):
    a = R.a
    j, w = n >> 1, n & 1
    buf = KVA if w == 0 else KVB
    if n >= 6:
        if n == 6:
            for s2 in range(2): a(f"v_add_u32 v{40+s2}, {T1}, v{40+s2}")
        buf = 0 if n == 6 else 32768
    if w == 0:
        for s in range(2):
            for nt in range(3):
                R.lds(f"ds_read_b128 {vr(Qf(s,nt))}, v{42+s} offset:{12288*(j & 1) + 2048*nt}", "q")
    frs = [(i, s) for i in range(8) for s in range(2)]
    NB = 4
    def rd(k):
        i, s = frs[k]
        R.lds(f"ds_read_b128 {vr(KF + 4*(k % NB))}, v{40+s} offset:{buf + 2048*i}", f"kf{k}")
    for k in range(NB-1): rd(k)
    if dma and not cfg.interleave:
        for ii in range(8): kv_dma(R, dma[0], dma[1], ii)
        dma = None
    for k, (i, s) in enumerate(frs):
        if k + NB - 1 < len(frs): rd(k + NB - 1)
        if dma and k < 8: kv_dma(R, dma[0], dma[1], k)
        R.wait_lg(f"kf{k}")
        for nt in range(3):
            d = S_(8*w + i, nt)
            c = "0" if (j == 0 and s == 0) else vr(d)
            a(f"v_mfma_f32_16x16x32_bf16 {vr(d)}, {vr(KF + 4*(k % NB))}, {vr(Qf(s,nt))}, {c}")

M1 = (52, 54, 56)
L1 = (53, 55, 57)
BETA = (0, 2, 4); ALO = (6, 8, 10); ALP = (12, 14, 16)
ONES1, ONES2 = 36, 20
def Pf(w, s, nt): return S_(8*w + 2*s, nt)
def Oa(mt, nt): return S_(2*mt + 1, nt)
def XT(i, nt): return S_(9 + 2*i, nt)

def _rowmax(a, tiles, dst, tmp):
    for nt in range(3):
        m = dst[nt]
        vals = [S_(t, nt) + r for t in tiles for r in range(4)]
        a(f"v_max3_f32 v{m}, v{vals[0]}, v{vals[1]}, v{vals[2]}")
        a(f"v_max3_f32 v{tmp}, v{vals[3]}, v{vals[4]}, v{vals[5]}")
        k = 6
        while k + 3 < len(vals):
            a(f"v_max3_f32 v{m}, v{m}, v{vals[k]}, v{vals[k+1]}")
            a(f"v_max3_f32 v{tmp}, v{tmp}, v{vals[k+2]}, v{vals[k+3]}")
            k += 4
        rest = vals[k:]
        assert len(rest) == 2
        a(f"v_max3_f32 v{m}, v{m}, v{rest[0]}, v{rest[1]}")
        a(f"v_max_f32 v{m}, v{m}, v{tmp}")
    for nt in range(3):
        m = dst[nt]
        a(f"v_mov_b32 v{tmp+nt}, v{m}")
    for nt in range(3):
        a(f"v_permlane32_swap_b32 v{tmp+nt}, v{dst[nt]}")
    for nt in range(3):
        a(f"v_max_f32 v{dst[nt]}, v{tmp+nt}, v{dst[nt]}")
    for nt in range(3):
        a(f"v_mov_b32 v{tmp+nt}, v{dst[nt]}")
    for nt in range(3):
        a(f"v_permlane16_swap_b32 v{tmp+nt}, v{dst[nt]}")
    for nt in range(3):
        a(f"v_max_f32 v{dst[nt]}, v{tmp+nt}, v{dst[nt]}")
        a(f"v_mul_f32 v{dst[nt]}, s{sC}, v{dst[nt]}")

def _exppack(a, t0s, mreg):
    for t0 in t0s:
        for nt in range(3):
            m = mreg[nt]
            b0, b1 = S_(t0, nt), S_(t0+1, nt)
            for b in (b0, b0+2, b1, b1+2):
                a(f"v_pk_fma_f32 {vr(b,2)}, {vr(b,2)}, s[{sC}:{sC+1}], {vr(m,2)} op_sel_hi:[1,1,0] neg_lo:[0,0,1] neg_hi:[0,0,1]")
            src = [b0+r for r in range(4)] + [b1+r for r in range(4)]
            for v in src: a(f"v_exp_f32 v{v}, v{v}")
            a(f"v_cvt_pk_bf16_f32 v{b0}, v{src[0]}, v{src[1]}")
            a(f"v_cvt_pk_bf16_f32 v{b0+1}, v{src[2]}, v{src[3]}")
            a(f"v_cvt_pk_bf16_f32 v{b0+2}, v{src[4]}, v{src[5]}")
            a(f"v_cvt_pk_bf16_f32 v{b0+3}, v{src[6]}, v{src[7]}")

def _rowsum(a, w, ones, acc):
    for r in range(4): a(f"v_mov_b32 v{ones+r}, 0x3f803f80")
    for s in range(4):
        for nt in range(3):
            c = "0" if s == 0 else vr(acc(nt))
            a(f"v_mfma_f32_16x16x32_bf16 {vr(acc(nt))}, {vr(ones)}, {vr(Pf(w,s,nt))}, {c}")

def a_softmax1(R):
    a = R.a
    _rowmax(a, range(0, 8), M1, 24)
    _exppack(a, (0, 2, 4, 6), M1)
    _rowsum(a, 0, ONES1, lambda nt: S_(1, nt))
    for nt in range(3): a(f"v_mov_b32 v{L1[nt]}, v{S_(1,nt)}")

def a_softmax2(R):
    a = R.a
    M2 = (24, 26, 28)
    _rowmax(a, range(8, 16), M2, 30)
    for nt in range(3):
        a(f"v_max_f32 v{M2[nt]}, v{M2[nt]}, v{M1[nt]}")
        a(f"v_sub_f32 v{BETA[nt]}, v{M1[nt]}, v{M2[nt]}")
    for nt in range(3): a(f"v_exp_f32 v{BETA[nt]}, v{BETA[nt]}")
    _exppack(a, (8, 10, 12, 14), M2)
    _rowsum(a, 1, ONES2, lambda nt: S_(13, nt))
    a_vaddr(R)
    for nt in range(3):
        a(f"v_fma_f32 v{M2[nt]+1}, v{BETA[nt]}, v{L1[nt]}, v{S_(13,nt)}")
    for nt in range(3):
        R.lds(f"ds_write_b64 v59, {vr(M2[nt],2)} offset:{128*nt}", "st")
    for nt in range(3):
        a(f"v_mov_b32 v{18+2*nt}, v{M2[nt]}"); a(f"v_mov_b32 v{19+2*nt}, v{M2[nt]+1}")
    R.wait_lg_all()

vXW, vXR, vOW = 52, 53, 54
def a_vaddr(R):
    a = R.a
    a(f"s_and_b32 s{sT1}, s{sIDX}, 1")
    a(f"v_lshrrev_b32 v32, 2, v{vL}")
    a(f"v_lshrrev_b32 v33, 1, v32"); a("v_and_b32 v33, 3, v33")
    a(f"s_lshl_b32 s{sT2}, s{sT1}, 14")
    a(f"v_lshlrev_b32 v34, 7, v32"); a(f"v_add_u32 v34, s{sT2}, v34")
    a(f"v_and_b32 v35, 3, v{vL}"); a(f"v_lshl_add_u32 v34, v35, 3, v34")
    a(f"s_lshl_b32 s{sT2}, s{sT1}, 1")
    a(f"v_xor_b32 v33, s{sT2}, v33")
    for mt in range(4):
        a(f"v_xor_b32 v35, {mt}, v33")
        a(f"v_lshl_add_u32 v{40+mt}, v35, 5, v34")
    a(f"s_mul_i32 s{sT0}, s{sIDX}, 384"); a(f"s_add_u32 s{sT0}, s{sT0}, {STAT}")
    a(f"v_lshlrev_b32 v59, 3, v{vQ}"); a(f"v_add_u32 v59, s{sT0}, v59")
    a(f"s_xor_b32 s{sT1}, s{sIDX}, 1"); a(f"s_mul_i32 s{sT1}, s{sT1}, 384"); a(f"s_add_u32 s{sT1}, s{sT1}, {STAT}")
    a(f"v_lshlrev_b32 v60, 3, v{vQ}"); a(f"v_add_u32 v60, s{sT1}, v60")

def a_alpha(R):
    a = R.a
    M2 = (18, 20, 22)
    for nt in range(3):
        R.lds(f"ds_read_b64 v[{32+2*nt}:{33+2*nt}], v60 offset:{128*nt}", "st")
    a(f"s_mul_i32 s{sT2}, s{sIDX}, 6144"); a(f"s_add_u32 s{sT2}, s{sT2}, {XB}")
    a(f"v_lshlrev_b32 v55, 4, v{vL}"); a(f"v_add_u32 v{vXW}, s{sT2}, v55")
    a(f"s_xor_b32 s{sT2}, s{sIDX}, 1"); a(f"s_mul_i32 s{sT2}, s{sT2}, 6144"); a(f"s_add_u32 s{sT2}, s{sT2}, {XB}")
    a(f"v_add_u32 v{vXR}, s{sT2}, v55")
    a(f"s_and_b32 s{sT1}, s{sIDX}, 1")
    a(f"s_lshr_b32 s{sT0}, s{sIDX}, 1"); a(f"s_mul_i32 s{sT2}, s{sT0}, {48*128}"); a(f"s_add_u32 s{sT2}, s{sT2}, {OB}")
    a(f"v_lshlrev_b32 v{vOW}, 7, v{vQ}"); a(f"v_add_u32 v{vOW}, s{sT2}, v{vOW}")
    a(f"s_lshl_b32 s{sT3}, s{sT1}, 2")
    a(f"v_or_b32 v55, s{sT3}, v{vGq}")
    a(f"v_lshrrev_b32 v56, 1, v{vQ}"); a("v_xor_b32 v55, v55, v56")
    a(f"v_lshl_add_u32 v{vOW}, v55, 4, v{vOW}")
    R.wait_lg_all()
    for nt in range(3):
        mo, lo = 32 + 2*nt, 33 + 2*nt
        m, l = M2[nt], M2[nt] + 1
        a(f"v_max_f32 v38, v{m}, v{mo}")
        a(f"v_sub_f32 v{ALO[nt]}, v{m}, v38"); a(f"v_sub_f32 v{ALP[nt]}, v{mo}, v38")
        a(f"v_exp_f32 v{ALO[nt]}, v{ALO[nt]}"); a(f"v_exp_f32 v{ALP[nt]}, v{ALP[nt]}")
        a(f"v_mul_f32 v38, v{l}, v{ALO[nt]}")
        a(f"v_fma_f32 v38, v{lo}, v{ALP[nt]}, v38")
        a("v_rcp_f32 v38, v38")
        a(f"v_mul_f32 v{ALO[nt]}, v{ALO[nt]}, v38"); a(f"v_mul_f32 v{ALP[nt]}, v{ALP[nt]}, v38")

def a_PV(R, n, dma=None):
    a = R.a
    j, w = n >> 1, n & 1
    buf = KVA if w == 0 else KVB
    frs = [(s, mt) for s in range(4) for mt in range(4)]
    if w == 1: frs = frs[:12] + [(3, 2), (3, 3), (3, 0), (3, 1)]
    NB = 4
    def rd(k):
        s, mt = frs[k]
        b = KF + 4*(k % NB)
        R.lds(f"ds_read_b64_tr_b16 {vr(b,2)}, v{40+mt} offset:{buf + 4096*s}", f"vf{k}")
        R.lds(f"ds_read_b64_tr_b16 {vr(b+2,2)}, v{40+mt} offset:{buf + 4096*s + 2048}", f"vf{k}")
    for k in range(NB-1): rd(k)
    if dma and not cfg.interleave:
        for ii in range(8): kv_dma(R, dma[0], dma[1], ii)
        dma = None
    for k, (s, mt) in enumerate(frs):
        if k + NB - 1 < len(frs): rd(k + NB - 1)
        if dma and k < 8: kv_dma(R, dma[0], dma[1], k)
        R.wait_lg(f"vf{k}")
        for nt in range(3):
            d = Oa(mt, nt)
            c = "0" if (w == 0 and s == 0) else vr(d)
            a(f"v_mfma_f32_16x16x32_bf16 {vr(d)}, {vr(KF + 4*(k % NB))}, {vr(Pf(w,s,nt))}, {c}")
        if w == 1 and k >= 14:
            m2 = k - 12
            for nt in range(3):
                R.lds(f"ds_write_b128 v{vXW}, {vr(Oa(m2,nt))} offset:{((m2-2)*3+nt)*1024}", "xw")

def a_rescale(R):
    a = R.a
    for mt in range(4):
        for nt in range(3):
            if cfg.unpack:
                for r in range(4): a(f"v_mul_f32 v{Oa(mt,nt)+r}, v{BETA[nt]}, v{Oa(mt,nt)+r}")
                continue
            for h2 in (0, 2):
                b = Oa(mt, nt) + h2
                a(f"v_pk_mul_f32 {vr(b,2)}, {vr(b,2)}, {vr(BETA[nt],2)} op_sel_hi:[1,0]")

def a_xwrite(R):
    a = R.a
    for mt in (2, 3):
        for nt in range(3):
            R.lds(f"ds_write_b128 v{vXW}, {vr(Oa(mt,nt))} offset:{((mt-2)*3+nt)*1024}", "xw")

def a_xfinal(R, dma=None):
    a = R.a
    for nt in range(3):
        for i in range(2):
            R.lds(f"ds_read_b128 {vr(XT(i,nt))}, v{vXR} offset:{(i*3+nt)*1024}", f"xr{nt}")
    if dma:
        for ii in range(8): kv_dma(R, dma[0], dma[1], ii)
    for nt in range(3):
        for i in range(2):
            if cfg.unpack:
                for r in range(4): a(f"v_mul_f32 v{Oa(i,nt)+r}, v{ALO[nt]}, v{Oa(i,nt)+r}")
                continue
            for h2 in (0, 2):
                b = Oa(i, nt) + h2
                a(f"v_pk_mul_f32 {vr(b,2)}, {vr(b,2)}, {vr(ALO[nt],2)} op_sel_hi:[1,0]")
    for nt in range(3):
        R.wait_lg(f"xr{nt}")
        for i in range(2):
            if cfg.unpack:
                for r in range(4): a(f"v_fma_f32 v{Oa(i,nt)+r}, v{XT(i,nt)+r}, v{ALP[nt]}, v{Oa(i,nt)+r}")
                continue
            for h2 in (0, 2):
                b, x = Oa(i, nt) + h2, XT(i, nt) + h2
                a(f"v_pk_fma_f32 {vr(b,2)}, {vr(x,2)}, {vr(ALP[nt],2)}, {vr(b,2)} op_sel_hi:[1,0,1]")
        d = XT(0, nt)
        a(f"v_cvt_pk_bf16_f32 v{d}, v{Oa(0,nt)}, v{Oa(0,nt)+1}")
        a(f"v_cvt_pk_bf16_f32 v{d+1}, v{Oa(0,nt)+2}, v{Oa(0,nt)+3}")
        a(f"v_cvt_pk_bf16_f32 v{d+2}, v{Oa(1,nt)}, v{Oa(1,nt)+1}")
        a(f"v_cvt_pk_bf16_f32 v{d+3}, v{Oa(1,nt)+2}, v{Oa(1,nt)+3}")
        R.lds(f"ds_write_b128 v{vOW}, {vr(d)} offset:{2048*nt}", "ow")

PRING = 0
vWqD = 20
vWqR = 21
vQW = 25
PT = 26
vWqR5 = 35
def Xf(s, nt): return 40 + (s*3 + nt)*4
def Qa(mt, nt): return 208 + (mt*3 + nt)*4

def p_lane(a):
    a(f"v_mbcnt_lo_u32_b32 v{PT}, -1, 0"); a(f"v_mbcnt_hi_u32_b32 v{PT}, -1, v{PT}")
    a(f"v_and_b32 v{PT+1}, 15, v{PT}"); a(f"v_lshrrev_b32 v{PT+2}, 4, v{PT}")

def p_setup(R):
    a = R.a
    l, q, g = PT, PT+1, PT+2
    p = sIDX
    p_lane(a)
    a(f"s_mul_i32 s{sXo}, s{p}, 896")
    a(f"s_lshr_b32 s{sT0}, s{p}, 1")
    a(f"v_xor_b32 v{PT+3}, s{sT0}, v{l}"); a(f"v_lshlrev_b32 v{PT+3}, 4, v{PT+3}")
    for k in range(4):
        a(f"v_xor_b32 v{PT+4+k}, {(2*k) << 4}, v{PT+3}")
    a(f"s_mov_b64 s[{sEX}:{sEX+1}], exec")
    a("s_mov_b32 exec_hi, 0x00ffffff")
    for ii in range(12):
        base = (KVB + 3584*ii) if ii < 8 else (QB + 3584*(ii-8))
        a(f"s_add_u32 m0, s{sXo}, {base}")
        a(f"s_add_u32 s{sT1}, s{sXo}, {3584*ii}")
        R.vmem(f"buffer_load_dwordx4 v{PT+4 + (ii % 4)}, {srd(SRD_X)}, s{sT1} offen lds", "x")
    a(f"s_mov_b64 exec, s[{sEX}:{sEX+1}]")

def p_setup2(R):
    a = R.a
    l, q, g = PT, PT+1, PT+2
    p = sIDX
    a(f"s_lshl_b32 s{sWp}, s{p}, 14"); a(f"s_add_u32 s{sWp}, s{sWp}, {WB}")
    wq_dma_pattern(a, vWqD, l, g, PT+3, PT+4)
    a(f"v_lshrrev_b32 v{PT+3}, 2, v{l}")
    a(f"v_lshrrev_b32 v{PT+4}, 1, v{PT+3}"); a(f"v_and_b32 v{PT+4}, 3, v{PT+4}")
    a(f"v_lshlrev_b32 v{PT+5}, 7, v{PT+3}"); a(f"v_add_u32 v{PT+5}, s{sWp}, v{PT+5}")
    a(f"v_and_b32 v{PT+6}, 3, v{l}"); a(f"v_lshl_add_u32 v{PT+5}, v{PT+6}, 3, v{PT+5}")
    for mt in range(4):
        a(f"v_xor_b32 v{PT+6}, {mt}, v{PT+4}")
        a(f"v_lshl_add_u32 v{vWqR+mt}, v{PT+6}, 5, v{PT+5}")
    a(f"s_and_b32 s{sT0}, s{sIDX}, 1"); a(f"s_mul_i32 s{sT0}, s{sT0}, {48*128}")
    a(f"s_lshr_b32 s{sT1}, s{sIDX}, 1"); a(f"s_mul_i32 s{sT1}, s{sT1}, 12288")
    a(f"s_add_u32 s{sT0}, s{sT0}, s{sT1}"); a(f"s_add_u32 s{sT0}, s{sT0}, {QB}")
    a(f"v_lshlrev_b32 v{PT+5}, 7, v{q}"); a(f"v_add_u32 v{PT+5}, s{sT0}, v{PT+5}")
    a(f"v_and_b32 v{PT+6}, 1, v{g}"); a(f"v_lshl_add_u32 v{PT+5}, v{PT+6}, 3, v{PT+5}")
    a(f"v_lshrrev_b32 v{PT+6}, 1, v{g}"); a(f"v_lshrrev_b32 v{PT+3}, 1, v{q}"); a(f"v_xor_b32 v{PT+6}, v{PT+6}, v{PT+3}")
    a(f"v_lshl_add_u32 v{vQW}, v{PT+6}, 4, v{PT+5}")
    a(f"v_lshrrev_b32 v{PT+3}, 1, v{q}")
    a(f"v_lshrrev_b32 v{PT+4}, 1, v{g}"); a(f"v_xor_b32 v{PT+4}, v{PT+4}, v{PT+3}")
    a(f"s_mov_b32 s{sT0}, 896"); a(f"v_mul_lo_u32 v{PT+5}, s{sT0}, v{q}")
    a(f"v_and_b32 v{PT+6}, 1, v{g}"); a(f"v_lshl_add_u32 v{PT+5}, v{PT+6}, 3, v{PT+5}")
    a(f"v_add_u32 v{PT+5}, {KVB}, v{PT+5}")
    for k in range(4):
        a(f"v_xor_b32 v{PT+6}, {2*k}, v{PT+4}")
        a(f"v_lshl_add_u32 v{PT+7+k}, v{PT+6}, 4, v{PT+5}")

def p_xfrags(R):
    a = R.a
    for pas in range(2):
        for s in range(14):
            for nt in ((0, 1) if pas == 0 else (2,)):
                for half in range(2):
                    k = 2*(s & 1) + half
                    off = (14336*nt if pas == 0 else 0) + 128*(s >> 1)
                    R.lds_guard(1)
                    R.lds(f"ds_read_b64 {vr(Xf(s,nt)+2*half,2)}, v{PT+7+k} offset:{off}", "xf")
        if pas == 0:
            R.wait_lg_all()
            for k in range(4): a(f"v_add_u32 v{PT+7+k}, {QB-KVB}, v{PT+7+k}")
    R.wait_lg_all()

def p_qcompute(R, kaps, stream_next, hooks=None):
    a = R.a
    D = cfg.dq; NB = D + 1
    hooks = hooks or {}
    frs = [(kap, mt) for kap in kaps for mt in range(4)]
    def rd(f):
        kap, mt = frs[f]
        if mt == 0: R.wait_vm(f"w{kap}")
        b = PRING + 4*(f % NB)
        area, off = wq_slot(kap)
        ad = (vWqR if area == 'own' else vWqR5) + mt
        R.lds(f"ds_read_b64_tr_b16 {vr(b,2)}, v{ad} offset:{off}", f"f{kap}_{mt}")
        R.lds(f"ds_read_b64_tr_b16 {vr(b+2,2)}, v{ad} offset:{off + 2048}", f"f{kap}_{mt}")
    for f in range(min(D, len(frs))): rd(f)
    for f, (kap, mt) in enumerate(frs):
        J, s = divmod(kap, 14)
        if f + D < len(frs): rd(f + D)
        if stream_next and cfg.j0s5 and kap >= 1 and kap + 4 < 14: wq_dma(R, kap + 4, vWqD, [mt])
        R.wait_lg(f"f{kap}_{mt}")
        if cfg.kst and mt == 0 and kap < 14 and kap % 2 == 0: lstamp(a, 26 + kap // 2)
        for nt in range(3):
            d = Qa(mt, nt)
            c = "0" if s == 0 else vr(d)
            a(f"v_mfma_f32_16x16x32_bf16 {vr(d)}, {vr(PRING + 4*(f % NB))}, {vr(Xf(s,nt))}, {c}")
        if stream_next and not cfg.j0s5 and mt == 3 and kap + NSLOT_Q < 14: wq_dma(R, kap + NSLOT_Q, vWqD)
        if mt == 3 and kap in hooks: hooks[kap]()
    last = kaps[-1]
    if last % 14 == 13:
        if cfg.kst and last == 13: lstamp(a, 33)
        k = 0
        for m2 in range(4):
            a(f"v_xor_b32 v{PT+8}, {32*m2}, v{vQW}")
            for nt in range(3):
                d = Qa(m2, nt)
                t = PT + 2*(k % 4); k += 1
                a(f"v_cvt_pk_bf16_f32 v{t}, v{d}, v{d+1}")
                a(f"v_cvt_pk_bf16_f32 v{t+1}, v{d+2}, v{d+3}")
                R.lds_guard(1)
                R.lds(f"ds_write_b64 v{PT+8}, {vr(t,2)} offset:{2048*nt}", "qw")
        R.wait_lg("qw")

ORING = 0
vWoD = 32
vWoR = 34
vOR = 42
VT = 48
ALT = 208
PUB = [216 + 4*i for i in range(10)] + [20, 24]
def Outa(i, nt): return 64 + (i*3 + nt)*4
def Of(ks, nt): return 160 + (ks*3 + nt)*4

def p_vsetup(R, wide):
    a = R.a
    l, q, g = VT, VT+1, VT+2
    a(f"v_mbcnt_lo_u32_b32 v{l}, -1, 0"); a(f"v_mbcnt_hi_u32_b32 v{l}, -1, v{l}")
    a(f"v_and_b32 v{q}, 15, v{l}"); a(f"v_lshrrev_b32 v{g}, 4, v{l}")
    a(f"s_lshl_b32 s{sT0}, s{sIDX}, 8")
    if wide:
        a(f"v_bfe_u32 v{VT+3}, v{l}, 1, 3"); a(f"v_xor_b32 v{VT+3}, v{VT+3}, v{g}")
        a(f"s_mov_b32 s{sT1}, 896"); a(f"v_mul_lo_u32 v{VT+4}, s{sT1}, v{g}")
        a(f"v_and_b32 v{VT+5}, 1, v{l}"); a(f"v_lshl_add_u32 v{VT+4}, v{VT+5}, 4, v{VT+4}")
        a(f"v_add_u32 v{VT+4}, s{sT0}, v{VT+4}")
        a(f"v_lshl_add_u32 v{vWoD}, v{VT+3}, 5, v{VT+4}")
        a(f"v_xor_b32 v{VT+3}, 4, v{VT+3}"); a(f"v_lshl_add_u32 v{vWoD+1}, v{VT+3}, 5, v{VT+4}")
        a(f"v_lshrrev_b32 v{VT+3}, 2, v{l}"); a(f"v_and_b32 v{VT+4}, 7, v{VT+3}")
        a(f"v_lshlrev_b32 v{VT+5}, 8, v{VT+3}")
    else:
        a(f"v_lshrrev_b32 v{VT+3}, 3, v{l}"); a(f"s_mov_b32 s{sT1}, 896"); a(f"v_mul_lo_u32 v{VT+4}, s{sT1}, v{VT+3}")
        a(f"v_bfe_u32 v{VT+3}, v{l}, 1, 2"); a(f"v_xor_b32 v{VT+3}, v{VT+3}, v{g}")
        a(f"v_lshl_add_u32 v{VT+4}, v{VT+3}, 5, v{VT+4}")
        a(f"v_and_b32 v{VT+5}, 1, v{l}"); a(f"v_lshl_add_u32 v{VT+4}, v{VT+5}, 4, v{VT+4}")
        a(f"v_add_u32 v{vWoD}, s{sT0}, v{VT+4}")
        a(f"v_lshrrev_b32 v{VT+3}, 2, v{l}")
        a(f"v_lshrrev_b32 v{VT+4}, 1, v{VT+3}"); a(f"v_and_b32 v{VT+4}, 3, v{VT+4}")
        a(f"v_lshlrev_b32 v{VT+5}, 7, v{VT+3}")
    a(f"v_and_b32 v{VT+6}, 3, v{l}"); a(f"v_lshl_add_u32 v{VT+5}, v{VT+6}, 3, v{VT+5}")
    a(f"s_lshl_b32 s{sT1}, s{sIDX}, 13")
    for mt in range(8 if wide else 4):
        a(f"v_xor_b32 v{VT+6}, {mt}, v{VT+4}")
        a(f"v_lshl_add_u32 v{VT+7}, v{VT+6}, 5, v{VT+5}")
        a(f"v_add_u32 v{vWoR+mt}, s{sWp}, v{VT+7}")
        a(f"v_add_u32 v{ALT+mt}, s{sT1}, v{VT+7}")
    a(f"v_lshrrev_b32 v{VT+3}, 1, v{q}"); a(f"v_xor_b32 v{VT+3}, v{g}, v{VT+3}")
    a(f"v_lshlrev_b32 v{VT+4}, 7, v{q}"); a(f"v_add_u32 v{VT+4}, {OB}, v{VT+4}")
    a(f"v_lshl_add_u32 v{vOR}, v{VT+3}, 4, v{VT+4}")
    a(f"v_xor_b32 v{VT+3}, 4, v{VT+3}"); a(f"v_lshl_add_u32 v{vOR+1}, v{VT+3}, 4, v{VT+4}")
    a(f"s_lshl_b32 s{sM0}, s{sIDX}, 13")

def wo_slot(kap, wide):
    slot = 8192 if wide else 4096
    special = {14: ('kv', KVA), 15: ('kv', KVB)}
    if kap in special: return special[kap]
    return ('own', (kap % 2)*slot)

def wo_dma(R, kap, wide, ii_list=None):
    a = R.a
    j, ks = divmod(kap, 4); h, s = divmod(ks, 2)
    row0 = 256*h + 32*s
    area, off = wo_slot(kap, wide)
    base = sWp if area == 'own' else sM0
    for ii in (ii_list if ii_list is not None else range(8 if wide else 4)):
        a(f"s_add_u32 m0, s{base}, {off + 1024*ii}")
        rows = 4*ii if wide else 8*ii
        a(f"s_add_u32 s{sT1}, s{sCOL+4+j}, {(row0 + rows)*896}")
        pat = vWoD + ((ii & 1) if wide else 0)
        R.vmem(f"buffer_load_dwordx4 v{pat}, {srd(SRD_WO)}, s{sT1} offen {cfg.w_flags} lds", f"o{kap}")

def p_ofrags(R):
    for k2 in range(4):
        for nt in range(3):
            R.lds_guard(1)
            R.lds(f"ds_read_b128 {vr(Of(k2,nt))}, v{vOR + (k2 & 1)} offset:{6144*(k2 >> 1) + 2048*nt}", f"of{k2}")

vPK0, vPK1, vPV, vPF = 44, 45, 46, 56
def p_kv_setup(R, first=False):
    a = R.a
    l, g = VT, VT+2
    a(f"s_lshl_b32 s{sM0}, s{sIDX}, 13")
    a(f"v_mbcnt_lo_u32_b32 v{l}, -1, 0"); a(f"v_mbcnt_hi_u32_b32 v{l}, -1, v{l}"); a(f"v_lshrrev_b32 v{g}, 4, v{l}")
    a(f"v_lshrrev_b32 v{VT+3}, 3, v{l}"); a(f"v_lshlrev_b32 v{VT+3}, 9, v{VT+3}")
    a(f"s_lshl_b32 s{sT1}, s{sIDX}, 15"); a(f"v_add_u32 v{VT+3}, s{sT1}, v{VT+3}")
    a(f"v_and_b32 v{VT+4}, 7, v{l}"); a(f"v_xor_b32 v{VT+5}, v{VT+4}, v{g}")
    a(f"v_lshl_add_u32 v{vPK0}, v{VT+5}, 4, v{VT+3}")
    a(f"v_xor_b32 v{VT+5}, 4, v{VT+5}"); a(f"v_lshl_add_u32 v{vPK1}, v{VT+5}, 4, v{VT+3}")
    a(f"v_lshrrev_b32 v{VT+5}, 1, v{VT+4}"); a(f"v_xor_b32 v{VT+5}, v{VT+5}, v{g}")
    a(f"v_lshl_add_u32 v{VT+5}, v{VT+5}, 5, v{VT+3}")
    a(f"v_and_b32 v{VT+4}, 1, v{l}"); a(f"v_lshl_add_u32 v{vPV}, v{VT+4}, 4, v{VT+5}")
    a(f"v_lshlrev_b32 v{vPF}, 7, v{l}")

def p_issue_KV(R, kind, n):
    a = R.a
    j, w = n >> 1, n & 1
    buf = KVA if w == 0 else KVB
    if kind == "K" and n >= 6: buf = T1 if n == 6 else T2
    for ii in range(8):
        a(f"s_add_u32 m0, s{sM0}, {buf + 1024*ii}")
        a(f"s_add_u32 s{sT1}, s{sCOL+j}, {131072*w + 4096*ii}")
        if kind == "K": R.vmem(f"buffer_load_dwordx4 v{vPK0 + (ii & 1)}, {srd(SRD_K)}, s{sT1} offen {cfg.k_flags} lds", f"K{n}")
        else: R.vmem(f"buffer_load_dwordx4 v{vPV}, {srd(SRD_V)}, s{sT1} offen {cfg.v_flags} lds", f"V{n}")

def p_pf_wo(R):
    a = R.a
    if not cfg.pf: return
    a(f"s_mul_i32 s{sT2}, s{sB}, 28672"); a(f"s_lshl_b32 s{sT3}, s{sIDX}, 13"); a(f"s_add_u32 s{sT2}, s{sT2}, s{sT3}")
    R.vmem(f"buffer_load_dword v57, v{vPF}, {srd(SRD_WO)}, s{sT2} offen {cfg.pf_flags}", "pf")

def p_of(R, k2):
    for nt in range(3):
        R.lds_guard(1)
        R.lds(f"ds_read_b128 {vr(Of(k2,nt))}, v{vOR + (k2 & 1)} offset:{6144*(k2 >> 1) + 2048*nt}", f"of{k2}")

def p_ocompute(R, kaps, wide, inter=None, ofr=False):
    a = R.a
    NT = 8 if wide else 4
    D = 4; NB = 5
    rowb = 256 if wide else 128
    inter = inter or {}
    frs = [(kap, mt) for kap in kaps for mt in range(NT)]
    def rd(f):
        kap, mt = frs[f]
        if mt == 0: R.wait_vm(f"o{kap}")
        b = ORING + 4*(f % NB)
        area, off = wo_slot(kap, wide)
        addr = (vWoR if area == 'own' else ALT) + mt
        R.lds_guard(2)
        R.lds(f"ds_read_b64_tr_b16 {vr(b,2)}, v{addr} offset:{off}", f"f{kap}_{mt}")
        R.lds(f"ds_read_b64_tr_b16 {vr(b+2,2)}, v{addr} offset:{off + 16*rowb}", f"f{kap}_{mt}")
    if ofr: p_of(R, 0)
    for f in range(D): rd(f)
    for f, (kap, mt) in enumerate(frs):
        j, ks = divmod(kap, 4)
        if f + D < len(frs): rd(f + D)
        if ofr and f < 3: p_of(R, f + 1)
        for (k2, ii) in inter.get(f, []): wo_dma(R, k2, wide, [ii])
        R.wait_lg(f"f{kap}_{mt}")
        if mt == 0: R.wait_lg(f"of{ks}")
        for nt in range(3):
            d = Outa(mt, nt)
            c = "0" if kap == 0 else vr(d)
            a(f"v_mfma_f32_16x16x32_bf16 {vr(d)}, {vr(ORING + 4*(f % NB))}, {vr(Of(ks,nt))}, {c}")
        if cfg.tst and mt == NT - 1 and kap >= 10: lstamp(a, 26 + kap - 10)

def p_oproj_phase(R, bar, wide):
    a = R.a
    NT = 8 if wide else 4
    nbar = 0
    def b1():
        nonlocal nbar
        bar(); nbar += 1
    b1()
    if cfg.wo_first_after >= 6: wo_dma(R, 0, wide); wo_dma(R, 1, wide)
    b1()
    for j in range(3):
        a.comment(f"---- O projection chunk {j}")
        p_ocompute(R, [4*j, 4*j+1], wide, ofr=True)
        wo_dma(R, 4*j+2, wide); wo_dma(R, 4*j+3, wide)
        b1()
        if j < 2:
            p_ocompute(R, [4*j+2, 4*j+3], wide)
            wo_dma(R, 4*j+4, wide); wo_dma(R, 4*j+5, wide)
        else:
            inter = {f: [(14, f)] for f in range(NT)}
            inter.update({NT + f: [(12, f)] for f in range(NT)})
            p_ocompute(R, [10, 11], wide, inter=inter)
            wo_dma(R, 13, wide)
        b1()
    p_ocompute(R, [12, 13], wide, inter={f: [(15, f)] for f in range(NT)}, ofr=True)
    p_ocompute_last(R, wide)
    return nbar

def p_ocompute_last(R, wide):
    a = R.a
    NT = 8 if wide else 4
    D = 4; NB = 5
    rowb = 256 if wide else 128
    frs = [(kap, 2*ip + t) for ip in range(NT//2) for kap in (14, 15) for t in range(2)]
    def rd(f):
        kap, mt = frs[f]
        if f == 0: R.wait_vm("o14"); R.wait_vm("o15")
        b = ORING + 4*(f % NB)
        area, off = wo_slot(kap, wide)
        addr = (vWoR if area == 'own' else ALT) + mt
        R.lds_guard(2)
        R.lds(f"ds_read_b64_tr_b16 {vr(b,2)}, v{addr} offset:{off}", f"g{f}")
        R.lds(f"ds_read_b64_tr_b16 {vr(b+2,2)}, v{addr} offset:{off + 16*rowb}", f"g{f}")
    a(f"v_mbcnt_lo_u32_b32 v{VT}, -1, 0"); a(f"v_mbcnt_hi_u32_b32 v{VT}, -1, v{VT}"); a(f"v_lshlrev_b32 v{VT}, 4, v{VT}")
    a(f"s_mul_i32 s{sT2}, s2, {PART}"); a(f"s_mul_i32 s{sT3}, s{sIDX}, {12*1024}"); a(f"s_add_u32 s{sT2}, s{sT2}, s{sT3}")
    npub = 0
    def pub_pair(ip):
        nonlocal npub
        for nt in range(3):
            t = PUB[npub]; npub += 1
            d0, d1 = Outa(2*ip, nt), Outa(2*ip+1, nt)
            a(f"v_cvt_pk_bf16_f32 v{t}, v{d0}, v{d0+1}"); a(f"v_cvt_pk_bf16_f32 v{t+1}, v{d0+2}, v{d0+3}")
            a(f"v_cvt_pk_bf16_f32 v{t+2}, v{d1}, v{d1+1}"); a(f"v_cvt_pk_bf16_f32 v{t+3}, v{d1+2}, v{d1+3}")
            a(f"s_add_u32 s{sT1}, s{sT2}, {1024*(ip*3 + nt)}")
            R.vmem(f"buffer_store_dwordx4 {vr(t)}, v{VT}, {srd(SRD_WS)}, s{sT1} offen sc0 sc1", "pub")
    for f in range(D): rd(f)
    for f, (kap, mt) in enumerate(frs):
        ks = kap % 4
        if f + D < len(frs): rd(f + D)
        R.wait_lg(f"g{f}")
        for nt in range(3):
            d = Outa(mt, nt)
            a(f"v_mfma_f32_16x16x32_bf16 {vr(d)}, {vr(ORING + 4*(f % NB))}, {vr(Of(ks,nt))}, {vr(d)}")
        if f % 4 == 1 and f >= 5: pub_pair(f//4 - 1)
    pub_pair(NT//2 - 1)

def p_flag(R):
    a = R.a
    if cfg.tst: lstamp(a, 32)
    R.wait_vm_all()
    if cfg.tst: lstamp(a, 33)
    a(f"s_mul_i32 s{sT0}, s{sGRP}, {FSTR}"); a(f"s_add_u32 s{sT0}, s{sT0}, {FLG}")
    a(f"s_lshl_b32 s{sT1}, s{sG}, 2"); a(f"s_add_u32 s{sT1}, s{sT1}, s{sIDX}"); a(f"s_lshl_b32 s{sT1}, s{sT1}, 2")
    a(f"v_mov_b32 v2, s{sT1}"); a("v_mov_b32 v1, 1")
    a(f"s_mov_b64 s[{sEX}:{sEX+1}], exec")
    a("s_mov_b64 exec, 1")
    a(f"buffer_store_dword v1, v2, {srd(SRD_WS)}, s{sT0} offen sc0 sc1")
    a(f"s_mov_b64 exec, s[{sEX}:{sEX+1}]")

def emit_reduce(a):
    a.label("L_tail")
    if cfg.stamps: stamp(a, 50)
    a(f"s_min_u32 s{sT0}, s{sG}, 2"); a(f"s_mul_i32 s{sT1}, s{sG}, 5"); a(f"s_add_u32 s{sT0}, s{sT0}, s{sT1}")
    a(f"s_cmp_lt_u32 s{sG}, 2"); a(f"s_cselect_b32 s{sT1}, 6, 5")
    a(f"s_cmp_ge_u32 s{sWAVE}, s{sT1}")
    a("s_cbranch_scc1 " + ("L_nogather" if cfg.stamps else ("L_mini" if cfg.mini else "L_end")))
    a(f"s_add_u32 s{sT0}, s{sT0}, s{sWAVE}")
    a("v_mbcnt_lo_u32_b32 v3, -1, 0"); a("v_mbcnt_hi_u32_b32 v3, -1, v3")
    a("v_lshlrev_b32 v6, 4, v3"); a("v_lshlrev_b32 v0, 2, v3")
    a(f"s_mul_i32 s{sT2}, s{sT0}, 171"); a(f"s_lshr_b32 s{sT2}, s{sT2}, 9")
    a(f"s_mul_i32 s{sT3}, s{sT2}, 3"); a(f"s_sub_u32 s{sT3}, s{sT0}, s{sT3}")
    a(f"s_lshl_b32 s{sT3}, s{sT3}, 4"); a(f"s_mul_i32 s{sT1}, s{sB}, 48"); a(f"s_add_u32 s{sT3}, s{sT3}, s{sT1}")
    a(f"s_mul_i32 s{sT3}, s{sT3}, 1792"); a(f"s_lshl_b32 s{sT2}, s{sT2}, 6"); a(f"s_add_u32 s{sT3}, s{sT3}, s{sT2}")
    a(f"s_mul_i32 s{sT1}, s{sBR}, 896"); a(f"s_add_u32 s78, s{sT3}, s{sT1}") if not cfg.lstamps else None
    if cfg.lstamps: a(f"s_mul_i32 s{sT1}, s{sBR}, 896"); a(f"s_add_u32 s100, s{sT3}, s{sT1}")
    sOUT = 100 if cfg.lstamps else 78
    a("v_and_b32 v7, 15, v3"); a(f"s_mov_b32 s{sT1}, 1792"); a(f"v_mul_lo_u32 v7, s{sT1}, v7")
    a("v_bfe_u32 v8, v3, 4, 1"); a("v_lshl_add_u32 v7, v8, 5, v7")
    a("v_lshrrev_b32 v8, 5, v3"); a("v_lshl_add_u32 v7, v8, 4, v7")
    a(f"s_lshl_b32 s{sT1}, s{sB}, 4"); a(f"s_lshl_b32 s{sT2}, s{sBR}, 2"); a(f"s_add_u32 s{sT1}, s{sT1}, s{sT2}")
    a(f"s_mul_i32 s{sT1}, s{sT1}, {PART}"); a(f"s_lshl_b32 s{sT2}, s{sT0}, 10"); a(f"s_add_u32 s{sT3}, s{sT1}, s{sT2}")
    a(f"s_mul_i32 s{sT0}, s{sGRP}, {FSTR}"); a(f"s_add_u32 s{sT0}, s{sT0}, {FLG}")
    a(f"s_mov_b64 s[{sEX}:{sEX+1}], exec")
    a("s_mov_b32 exec_hi, 0")
    a(f"s_mov_b32 s{sT2}, 0")
    a.label("L_poll")
    a(f"buffer_load_dword v4, v0, {srd(SRD_WS)}, s{sT0} offen sc0 sc1")
    a("s_waitcnt vmcnt(0)")
    a("v_cmp_eq_u32 vcc, 1, v4")
    a("s_cmp_eq_u32 vcc_lo, -1")
    a("s_cbranch_scc1 L_poll_done")
    a(f"s_add_u32 s{sT2}, s{sT2}, 1")
    a(f"s_cmp_ge_u32 s{sT2}, 400000")
    a("s_cbranch_scc1 L_poll_done")
    if cfg.sleep: a(f"s_sleep {cfg.sleep}")
    a("s_branch L_poll")
    a.label("L_poll_done")
    a(f"s_mov_b64 exec, s[{sEX}:{sEX+1}]")
    if cfg.stamps: stamp(a, 52)
    for k in range(8):
        gb, gp = k >> 2, k & 3
        a(f"s_add_u32 s{sT2}, s{sT3}, {(gb*8 + gp)*PART}")
        a(f"buffer_load_dwordx4 {vr(64+4*k)}, v6, {srd(SRD_WS)}, s{sT2} offen sc0 sc1")
    acc = 16
    for k in range(8):
        a(f"s_waitcnt vmcnt({7-k})")
        for r in range(4):
            src = 64 + 4*k + r
            if k == 0:
                a(f"v_lshlrev_b32 v{acc+2*r}, 16, v{src}"); a(f"v_and_b32 v{acc+2*r+1}, 0xffff0000, v{src}")
            else:
                t = 8 + 2*(r & 1) + 2
                a(f"v_lshlrev_b32 v{t}, 16, v{src}"); a(f"v_and_b32 v{t+1}, 0xffff0000, v{src}")
                a(f"v_pk_add_f32 {vr(acc+2*r,2)}, {vr(acc+2*r,2)}, {vr(t,2)}")
    for r in range(4):
        a(f"v_cvt_pk_bf16_f32 v{12+r}, v{acc+2*r}, v{acc+2*r+1}")
    a("v_permlane16_swap_b32 v12, v14")
    a("v_permlane16_swap_b32 v13, v15")
    a(f"buffer_store_dwordx4 v[12:15], v7, {srd(SRD_OUT)}, s{sOUT} offen")
    if cfg.stamps:
        a("s_waitcnt vmcnt(0)")
        a.label("L_nogather")
        stamp(a, 53)
        a("s_memtime s[74:75]"); a("s_waitcnt lgkmcnt(0)"); a("v_writelane_b32 v61, s74, 61")
        stamp_store(a)
    if cfg.mini:
        a.label("L_mini")
        a("s_memrealtime s[72:73]"); a("s_waitcnt vmcnt(0) lgkmcnt(0)")
        a("s_memrealtime s[72:73]"); a("s_waitcnt lgkmcnt(0)")
        a("v_mov_b32 v61, 0"); a("v_writelane_b32 v61, s90, 62"); a("v_writelane_b32 v61, s72, 53")
        stamp_store(a)
    a.label("L_end")
    a("s_endpgm")

def build():
    a = Asm()
    if cfg.mini:
        a("s_memrealtime s[90:91]")
    if cfg.stamps:
        a("s_memrealtime s[72:73]"); a("s_memtime s[74:75]"); a("s_waitcnt lgkmcnt(0)")
        a("v_writelane_b32 v61, s72, 62"); a("v_writelane_b32 v61, s74, 60")
    emit_prologue(a)
    cnt = {"n": 0}
    def bar():
        a("s_barrier")
        if cfg.stamps: stamp(a, cnt["n"])
        cnt["n"] += 1
    A = Role(a)
    if cfg.prioA: a(f"s_setprio {cfg.prioA}")
    a_setup(A)
    if cfg.pf_first: a_pf(A, "wq")
    bar()
    if not cfg.pf_first: a_pf(A, "wq")
    a_setup2(A)
    bar()
    a0_flag_zero(A)
    for kap in range(4): wq_dma(A, kap, vWqA)
    a_issue_KV(A, "K", 0)
    a_setup3(A)
    a_pair_init(A)
    A.wait_vm("w3")
    a0_flag_mark(A)
    bar()
    bar()
    a_issue_KV(A, "K", 1)
    A.wait_vm("K0")
    bar()
    a_S(A, 0)
    A.wait_vm("K1")
    bar()
    a_S(A, 1, dma=("K", 2)); A.wait_vm("K2"); bar()
    a_S(A, 2, dma=("K", 3)); A.wait_vm("K3"); bar()
    a_S(A, 3, dma=("K", 4)); A.wait_vm("K4"); bar()
    a_flag_load(A)
    a_issue_KV(A, "K", 5)
    a_flag_check(A)
    bar()
    a_S(A, 4)
    A.wait_vm("K5")
    bar()
    a_S(A, 5)
    bar()
    a_S(A, 6)
    if cfg.split_sm: a_softmax1(A)
    bar()
    a_S(A, 7)
    if not cfg.split_sm: a_softmax1(A)
    a_softmax2(A)
    bar()
    for n in range(8):
        dma = ("V", n+1) if 1 <= n <= 6 else None
        if cfg.prio7 and n == cfg.prio7from: a(f"s_setprio {cfg.prio7}")
        a_PV(A, n, dma)
        if n == 0:
            a_alpha(A); a_pair_addr(A)
        if n % 2 == 0:
            a_rescale(A)
        else:
            a_pair_sync(A, n >> 1)
            a_xfinal(A)
        if 1 <= n < 7: A.wait_vm(f"V{n+1}")
        A.wait_lg_all()
        bar()
    nA = cnt["n"]
    A.wait_vm_all()
    a("s_branch L_tail")
    a.label("L_P")
    cnt["n"] = 0
    P = Role(a)
    stamp_move(a, 39)
    if cfg.stamps: stamp(a, 55)
    if cfg.prioP: a(f"s_setprio {cfg.prioP}")
    P.vm += ["x"]*12
    if cfg.stamps: stamp(a, 56)
    bar()
    p_setup2(P)
    P.wait_vm("x"); bar()
    p_xfrags(P)
    if cfg.j0s5:
        a(f"s_lshl_b32 s{sWq5}, s{sIDX}, 12"); a(f"s_add_u32 s{sWq5}, s{sWq5}, {QB}")
        a(f"s_sub_u32 s{sT0}, s{sWq5}, s{sWp}")
        for mt in range(4): a(f"v_add_u32 v{vWqR5+mt}, s{sT0}, v{vWqR+mt}")
    bar()
    if cfg.j0s5: wq_dma(P, 4, vWqD)
    p_qcompute(P, list(range(14)), True, hooks={cfg.k1_after: bar})
    bar()
    for kap in (14, 15, 16, 17): wq_dma(P, kap, vWqD)
    bar()
    for kaps, nxt in (([14,15], [18,19]), ([16,17,18,19], [20,21,22,23]), ([20,21,22,23], [24,25,26,27]), ([24,25,26,27], [])):
        p_qcompute(P, kaps, False)
        for kap in nxt: wq_dma(P, kap, vWqD)
        bar()
    a(f"s_cmp_eq_u32 s{sIDX}, 3")
    a("s_cbranch_scc1 L_P3")
    base = cnt["n"]
    for wide in (True, False):
        if not wide:
            a.label("L_P3"); cnt["n"] = base
        Pw = Role(a)
        STREG[0] = 39
        stamp_move(a, 47)
        p_kv_setup(Pw, first=True)
        p_issue_KV(Pw, "K", 6)
        p_vsetup(Pw, wide)
        bar()
        p_issue_KV(Pw, "K", 7); Pw.wait_vm("K6"); bar()
        p_issue_KV(Pw, "V", 0); Pw.wait_vm("K7"); bar()
        p_issue_KV(Pw, "V", 1); p_pf_wo(Pw); Pw.wait_vm("V0"); bar()
        Pw.wait_vm("V1")
        nb = p_oproj_phase(Pw, bar, wide)
        assert nb == 8, nb
        if cfg.stamps: stamp(a, 59)
        p_flag(Pw)
        if cfg.stamps: stamp(a, 58)
        assert cnt["n"] == nA, (cnt["n"], nA)
        stamp_move(a, 61)
        if wide: a("s_branch L_tail")
    emit_reduce(a)
    a.finalize()
    return a

HEADER = open("cdna_kernels/" + NAME + ".s.ref").read().split("; Override launch")[0]
def full_text(a):
    s = HEADER
    s += f"; @launch grid=(256,1,1) block=(512,1,1) lds={LDS_BYTES}\n"
    s += f'.amdgcn_target "amdgcn-amd-amdhsa--gfx950"\n.text\n.globl {NAME}_kernel\n.p2align 8\n.type {NAME}_kernel,@function\n{NAME}_kernel:\n'
    s += a.text()
    s += f""".section .rodata,"a"
.p2align 6
.amdhsa_kernel {NAME}_kernel
  .amdhsa_next_free_vgpr 256
  .amdhsa_next_free_sgpr 102
  .amdhsa_accum_offset 256
  .amdhsa_group_segment_fixed_size 0
  .amdhsa_kernarg_size 104
  .amdhsa_user_sgpr_count 2
  .amdhsa_user_sgpr_kernarg_segment_ptr 1
  .amdhsa_system_sgpr_workgroup_id_x 1
.end_amdhsa_kernel
"""
    return s

if __name__ == "__main__":
    out = sys.argv[1] if len(sys.argv) > 1 else "cdna_kernels/" + NAME + ".s"
    for kv in sys.argv[2:]:
        k, v = kv.split("=", 1)
        cur = getattr(cfg, k)
        if isinstance(cur, bool): v = v.lower() in ("1", "true")
        elif isinstance(cur, int): v = int(v)
        setattr(cfg, k, v)
    a = build()
    open(out, "w").write(full_text(a))
    print("wrote", out, "instrs:", sum(1 for i in a.ins if i.kind not in ('none','label')), "nops inserted:", a.nops_inserted)
```

```python
import sys, math, struct
from asmlib import Asm

NAME = "concat_heads__gqa_block_cached__gqa_block_cached__near_ridge"

class Cfg:
    k_flags = "nt"
    v_flags = "nt"
    w_flags = ""
    pf = True
    pf_flags = ""
    stamps = False
    lstamps = False
    mini = False
    prioA = 0
    prioP = 0
    dq = 4
    pf_wo_at = 8
    k1_after = 9
    split_sm = True
    sleep = 0
    interleave = False
    pf_first = False
    wo_first_after = 7
    tst = False
    prio7 = 0
    prio7from = 7
    pkv = True
    unpack = True
    j0s5 = True
    rot = 1
    kst = False
cfg = Cfg()

KVA, KVB = 0, 32768
WB = 65536
QB = 131072
OB = 122880
XB = 135168
STAT = 159744
PFL = 161280
LDS_BYTES = 163840
PART = 43008
FLG = 16 << 20
FSTR = 8448
sWAVE, sIDX, sG, sB, sBR = 3, 4, 5, 6, 7
SRD_K, SRD_V, SRD_WQ, SRD_WO, SRD_X, SRD_OUT, SRD_WS = 8, 12, 16, 20, 24, 28, 32
sDBG = 58
sM0, sWp = 62, 63
sC = 64
sT0, sT1, sT2, sT3 = 66, 67, 68, 69
sEX = 70
sGRP, sXo = 76, 77
sCOL = 36
sJ = 44
def srd(b): return f"s[{b}:{b+3}]"
def vr(b, n=4): return f"v[{b}:{b+n-1}]"
def f32bits(x): return struct.unpack('<I', struct.pack('<f', x))[0]
vL, vQ, vGq = 44, 46, 47

class Role:
    def __init__(self, a): self.a = a; self.vm = []; self.lg = []
    def vmem(self, text, tag): self.a(text); self.vm.append(tag)
    def lds(self, text, tag): self.a(text); self.lg.append(tag)
    def wait_vm(self, tag):
        idx = [i for i, t in enumerate(self.vm) if t == tag]
        if not idx: return
        n = len(self.vm) - 1 - idx[-1]
        assert n <= 63
        self.a(f"s_waitcnt vmcnt({n})"); self.vm = self.vm[idx[-1]+1:]
    def wait_lg(self, tag):
        idx = [i for i, t in enumerate(self.lg) if t == tag]
        if not idx: return
        n = len(self.lg) - 1 - idx[-1]
        assert n <= 15, n
        self.a(f"s_waitcnt lgkmcnt({n})"); self.lg = self.lg[idx[-1]+1:]
    def wait_vm_all(self): self.a("s_waitcnt vmcnt(0)"); self.vm = []
    def wait_lg_all(self): self.a("s_waitcnt lgkmcnt(0)"); self.lg = []
    def lds_guard(self, n_new):
        if len(self.lg) + n_new > 15:
            keep = 15 - n_new
            self.a(f"s_waitcnt lgkmcnt({keep})"); self.lg = self.lg[len(self.lg)-keep:] if keep else []

STREG = [61]
PEND = []
def stamp(a, idx):
    a("s_memrealtime s[72:73]")
    a("s_waitcnt lgkmcnt(0)")
    a(f"v_writelane_b32 v{STREG[0]}, s72, {idx}")
    for (sp, i2) in PEND: a(f"v_writelane_b32 v{STREG[0]}, s{sp}, {i2}")
    PEND.clear()
def lstamp(a, idx):
    if not cfg.lstamps: return
    sp = 78 + 2*len(PEND)
    assert sp <= 98
    a(f"s_memrealtime s[{sp}:{sp+1}]")
    PEND.append((sp, idx))
def stamp_move(a, new):
    if cfg.stamps: a(f"v_mov_b32 v{new}, v{STREG[0]}")
    STREG[0] = new
def stamp_store(a):
    a(f"s_lshl_b32 s{sT0}, s2, 3"); a(f"s_add_u32 s{sT0}, s{sT0}, s{sWAVE}"); a(f"s_lshl_b32 s{sT0}, s{sT0}, 8")
    a("v_mbcnt_lo_u32_b32 v60, -1, 0"); a("v_mbcnt_hi_u32_b32 v60, -1, v60")
    a(f"v_lshlrev_b32 v60, 2, v60"); a(f"v_add_u32 v60, s{sT0}, v60")
    a("s_add_u32 s74, s60, 0x2000000"); a("s_addc_u32 s75, s61, 0")
    a("global_store_dword v60, v61, s[74:75]")
    a("s_waitcnt vmcnt(0)")

def emit_prologue(a):
    a("s_cmp_ge_u32 s2, 256")
    a("s_cbranch_scc1 L_end")
    a("s_load_dwordx16 s[36:51], s[0:1], 0")
    a("s_load_dwordx4 s[52:55], s[0:1], 64")
    a("s_load_dwordx4 s[56:59], s[0:1], 80")
    a("s_load_dwordx2 s[60:61], s[0:1], 96")
    a("v_and_b32 v44, 63, v0")
    a("v_lshrrev_b32 v45, 6, v0")
    a("v_and_b32 v46, 15, v44")
    a("v_lshrrev_b32 v47, 4, v44")
    a(f"v_readfirstlane_b32 s{sWAVE}, v45")
    a(f"s_bfe_u32 s{sBR}, s2, 0x10002")
    a(f"s_and_b32 s{sG}, s2, 3"); a(f"s_lshl_b32 s{sG}, s{sG}, 1")
    a(f"s_bfe_u32 s{sT0}, s2, 0x10003"); a(f"s_or_b32 s{sG}, s{sG}, s{sT0}")
    a(f"s_lshr_b32 s{sB}, s2, 4")
    a(f"s_and_b32 s{sIDX}, s{sWAVE}, 3")
    a(f"s_lshl_b32 s{sGRP}, s{sBR}, 4"); a(f"s_add_u32 s{sGRP}, s{sGRP}, s{sB}")
    a(f"s_mov_b32 s{sC}, 0x{f32bits(math.log2(math.e)/16.0):08x}"); a(f"s_mov_b32 s{sC+1}, s{sC}")
    a("s_waitcnt lgkmcnt(0)")
    if cfg.stamps: stamp(a, 54)
    a(f"s_cmp_eq_u32 s{sBR}, 0")
    for i in range(5):
        a(f"s_cselect_b64 s[{36+2*i}:{37+2*i}], s[{36+2*i}:{37+2*i}], s[{46+2*i}:{47+2*i}]")
    def mk(srdb, ptr, off_s, size):
        if off_s is None:
            a(f"s_mov_b32 s{srdb}, s{ptr}"); a(f"s_and_b32 s{srdb+1}, s{ptr+1}, 0xffff")
        else:
            a(f"s_add_u32 s{srdb}, s{ptr}, s{off_s}")
            a(f"s_addc_u32 s{srdb+1}, s{ptr+1}, 0")
            a(f"s_and_b32 s{srdb+1}, s{srdb+1}, 0xffff")
        if isinstance(size, int): a(f"s_mov_b32 s{srdb+2}, {size}")
        else: a(size)
        a(f"s_mov_b32 s{srdb+3}, 0x20000")
    a(f"s_mul_i32 s{sT1}, s{sB}, 43008")
    mk(SRD_X, 36, sT1, 43008)
    a(f"s_cmp_lt_u32 s{sWAVE}, 4"); a("s_cbranch_scc1 L_nox")
    PX = Role(a); p_setup(PX)
    a.label("L_nox")
    a(f"s_lshl_b32 s{sT1}, s{sG}, 10")
    mk(SRD_WQ, 42, sT1, f"s_sub_u32 s{SRD_WQ+2}, {448*8192}, s{sT1}")
    a(f"s_lshl_b32 s{sT0}, s{sB}, 3"); a(f"s_add_u32 s{sT0}, s{sT0}, s{sG}"); a(f"s_lshl_b32 s{sT0}, s{sT0}, 18")
    mk(SRD_K, 38, sT0, 262144)
    mk(SRD_V, 40, sT0, 262144)
    a(f"s_mul_i32 s{sT1}, s{sG}, 458752")
    mk(SRD_WO, 44, sT1, 458752)
    mk(SRD_OUT, 56, None, 16*48*896*2)
    mk(SRD_WS, 60, None, FLG + 32*FSTR)
    if cfg.rot == 0: a(f"s_mov_b32 s{sT0}, 0")
    elif cfg.rot == 1: a(f"s_and_b32 s{sT0}, s{sB}, 3")
    elif cfg.rot == 2: a(f"s_add_u32 s{sT0}, s{sB}, s{sG}"); a(f"s_and_b32 s{sT0}, s{sT0}, 3")
    elif cfg.rot == 3: a(f"s_and_b32 s{sT0}, s{sB}, 1"); a(f"s_lshl_b32 s{sT0}, s{sT0}, 1")
    for j in range(4):
        a(f"s_add_u32 s{sT1}, s{sT0}, {j}"); a(f"s_and_b32 s{sT1}, s{sT1}, 3")
        a(f"s_lshl_b32 s{sCOL+j}, s{sT1}, 7"); a(f"s_mul_i32 s{sCOL+4+j}, s{sT1}, {64*896}")
    a(f"s_lshr_b32 s{sT2}, s{sIDX}, 1")
    for J in range(2):
        a(f"s_add_u32 s{sT1}, s{sT0}, s{sT2}"); a(f"s_add_u32 s{sT1}, s{sT1}, {2*J}"); a(f"s_and_b32 s{sT1}, s{sT1}, 3")
        a(f"s_lshl_b32 s{sJ+J}, s{sT1}, 7")
    a(f"s_cmp_ge_u32 s{sWAVE}, 4")
    a("s_cbranch_scc1 L_P")

def wq_dma_pattern(a, dst, l, g, t0, t1):
    a(f"v_lshrrev_b32 v{t0}, 3, v{l}"); a(f"v_lshlrev_b32 v{t0}, 13, v{t0}")
    a(f"v_bfe_u32 v{t1}, v{l}, 1, 2"); a(f"v_xor_b32 v{t1}, v{t1}, v{g}")
    a(f"v_lshl_add_u32 v{t0}, v{t1}, 5, v{t0}")
    a(f"v_and_b32 v{t1}, 1, v{l}"); a(f"v_lshl_add_u32 v{t0}, v{t1}, 4, v{t0}")
    a(f"s_and_b32 s{sT0}, s{sIDX}, 1"); a(f"s_lshl_b32 s{sT0}, s{sT0}, 9")
    a(f"v_add_u32 v{dst}, s{sT0}, v{t0}")

NSLOT_Q = 4
def wq_slot(kap):
    if cfg.j0s5 and kap < 14:
        sl = kap % 5
        return ('q', 0) if sl == 4 else ('own', sl*4096)
    return ('own', (kap % NSLOT_Q)*4096)
sWq5 = 47
def wq_dma(R, kap, vpat, ii_list=range(4)):
    a = R.a
    J, s = divmod(kap, 14)
    area, off = wq_slot(kap)
    for ii in ii_list:
        a(f"s_add_u32 m0, s{sWp if area == 'own' else sWq5}, {off + 1024*ii}")
        a(f"s_add_u32 s{sT1}, s{sJ+J}, {(32*s + 8*ii)*8192}")
        R.vmem(f"buffer_load_dwordx4 v{vpat}, {srd(SRD_WQ)}, s{sT1} offen {cfg.w_flags} lds", f"w{kap}")

def S_(t, nt): return 64 + (t*3 + nt)*4
def Qf(s, nt): return (s*3 + nt)*4
KF = 24
vKdE, vKdO, vVd, vWqA = 48, 49, 50, 51

def a_setup(R):
    a = R.a
    a(f"s_lshl_b32 s{sM0}, s{sIDX}, 13")
    a(f"s_lshl_b32 s{sWp}, s{sIDX}, 14"); a(f"s_add_u32 s{sWp}, s{sWp}, {WB}")
    if cfg.pf:
        a(f"v_lshrrev_b32 v52, 3, v{vL}"); a("v_lshlrev_b32 v52, 13, v52")
        a(f"v_and_b32 v53, 7, v{vL}"); a("v_lshl_add_u32 v56, v53, 7, v52")
        a(f"s_mul_i32 s{sT2}, s{sB}, 28"); a(f"s_lshl_b32 s{sT3}, s{sIDX}, 3"); a(f"s_add_u32 s{sT2}, s{sT2}, s{sT3}")
        a(f"s_lshl_b32 s{sT2}, s{sT2}, 13")

def a_pf(R, which):
    a = R.a
    if not cfg.pf: return
    if which == "wq":
        R.vmem(f"buffer_load_dword v63, v56, {srd(SRD_WQ)}, s{sT2} offen {cfg.pf_flags}", "pf")
    else:
        a(f"v_lshlrev_b32 v58, 7, v{vL}")
        a(f"s_mul_i32 s{sT2}, s{sB}, 28672"); a(f"s_lshl_b32 s{sT3}, s{sIDX}, 13"); a(f"s_add_u32 s{sT2}, s{sT2}, s{sT3}")
        R.vmem(f"buffer_load_dword v62, v58, {srd(SRD_WO)}, s{sT2} offen {cfg.pf_flags}", "pf")

def a_setup2(R):
    a = R.a
    wq_dma_pattern(a, vWqA, vL, vGq, 52, 53)
    a(f"v_lshrrev_b32 v52, 3, v{vL}"); a("v_lshlrev_b32 v52, 9, v52")
    a(f"s_lshl_b32 s{sT1}, s{sIDX}, 15"); a(f"v_add_u32 v52, s{sT1}, v52")
    a(f"v_and_b32 v53, 7, v{vL}"); a(f"v_xor_b32 v54, v53, v{vGq}")
    a(f"v_lshl_add_u32 v{vKdE}, v54, 4, v52")
    a("v_xor_b32 v54, 4, v54"); a(f"v_lshl_add_u32 v{vKdO}, v54, 4, v52")
    a("v_lshrrev_b32 v54, 1, v53"); a(f"v_xor_b32 v54, v54, v{vGq}")
    a("v_lshl_add_u32 v54, v54, 5, v52")
    a(f"v_and_b32 v55, 1, v{vL}"); a(f"v_lshl_add_u32 v{vVd}, v55, 4, v54")

def a_setup3(R):
    a = R.a
    a(f"s_lshr_b32 s{sT0}, s{sIDX}, 1")
    a(f"s_and_b32 s{sT1}, s{sIDX}, 1")
    a(f"v_lshrrev_b32 v52, 1, v{vQ}")
    a(f"v_xor_b32 v53, v{vGq}, v52")
    a(f"v_xor_b32 v54, 4, v53")
    a(f"s_lshl_b32 s{sT2}, s{sT1}, 14")
    a(f"v_lshlrev_b32 v55, 7, v{vQ}")
    a(f"v_add_u32 v55, s{sT2}, v55")
    a(f"v_lshl_add_u32 v40, v53, 4, v55")
    a(f"v_lshl_add_u32 v41, v54, 4, v55")
    a(f"s_mul_i32 s{sT2}, s{sT0}, {48*128}")
    a(f"s_add_u32 s{sT2}, s{sT2}, {QB}")
    a(f"v_lshlrev_b32 v55, 7, v{vQ}")
    a(f"v_add_u32 v55, s{sT2}, v55")
    a(f"v_lshl_add_u32 v42, v53, 4, v55")
    a(f"v_lshl_add_u32 v43, v54, 4, v55")

def a_pair_init(R):
    a = R.a
    a(f"s_lshl_b32 s{sT0}, s{sIDX}, 4"); a(f"s_add_u32 s{sT0}, s{sT0}, {PFL}")
    a(f"v_mov_b32 v55, s{sT0}"); a("v_mov_b32 v56, 0")
    R.lds("ds_write_b32 v55, v56", "pf0")
    R.wait_lg_all()

def a_pair_addr(R):
    a = R.a
    a(f"s_lshl_b32 s{sT0}, s{sIDX}, 4"); a(f"s_add_u32 s{sT0}, s{sT0}, {PFL}")
    a(f"v_mov_b32 v55, s{sT0}"); a(f"s_xor_b32 s{sT0}, s{sT0}, 16"); a(f"v_mov_b32 v56, s{sT0}")

def a_pair_sync(R, j):
    a = R.a
    R.wait_lg_all()
    a(f"v_mov_b32 v57, {j+1}")
    a("ds_write_b32 v55, v57")
    a.label(f"L_ps{j}")
    a("ds_read_b32 v57, v56")
    a("s_waitcnt lgkmcnt(0)")
    a(f"v_readfirstlane_b32 s{sT0}, v57")
    a(f"s_cmp_lt_u32 s{sT0}, {j+1}")
    a(f"s_cbranch_scc1 L_ps{j}")

def kv_dma(R, kind, n, ii):
    a = R.a
    j, w = n >> 1, n & 1
    buf = KVA if w == 0 else KVB
    a(f"s_add_u32 m0, s{sM0}, {buf + 1024*ii}")
    a(f"s_add_u32 s{sT1}, s{sCOL+j}, {131072*w + 4096*ii}")
    if kind == "K":
        R.vmem(f"buffer_load_dwordx4 v{vKdE + (ii & 1)}, {srd(SRD_K)}, s{sT1} offen {cfg.k_flags} lds", f"K{n}")
    else:
        R.vmem(f"buffer_load_dwordx4 v{vVd}, {srd(SRD_V)}, s{sT1} offen {cfg.v_flags} lds", f"V{n}")
def a_issue_KV(R, kind, n):
    R.a.comment(f"---- issue {kind} window {n}")
    for ii in range(8): kv_dma(R, kind, n, ii)

def a0_flag_zero(R):
    a = R.a
    a(f"s_or_b32 s{sT0}, s{sG}, s{sIDX}"); a(f"s_cmp_lg_u32 s{sT0}, 0"); a("s_cbranch_scc1 L_fz_skip")
    a(f"s_mul_i32 s{sT0}, s{sGRP}, {FSTR}"); a(f"s_add_u32 s{sT0}, s{sT0}, {FLG}")
    a(f"v_lshlrev_b32 v58, 2, v{vL}"); a("v_mov_b32 v59, 0")
    a(f"s_mov_b64 s[{sEX}:{sEX+1}], exec"); a("s_mov_b32 exec_hi, 0")
    a(f"buffer_store_dword v59, v58, {srd(SRD_WS)}, s{sT0} offen sc0 sc1")
    a(f"s_mov_b64 exec, s[{sEX}:{sEX+1}]")
    a.label("L_fz_skip")

def a0_flag_mark(R):
    a = R.a
    a(f"s_or_b32 s{sT0}, s{sG}, s{sIDX}"); a(f"s_cmp_lg_u32 s{sT0}, 0"); a("s_cbranch_scc1 L_fm_skip")
    a(f"s_lshl_b32 s{sT0}, s{sGRP}, 2"); a(f"v_mov_b32 v58, s{sT0}"); a("v_mov_b32 v59, 1")
    a(f"s_mov_b64 s[{sEX}:{sEX+1}], exec"); a("s_mov_b64 exec, 1")
    a(f"global_store_dword v58, v59, s[{sDBG}:{sDBG+1}] sc0 sc1")
    a(f"s_mov_b64 exec, s[{sEX}:{sEX+1}]")
    a.label("L_fm_skip")

def a_flag_load(R):
    a = R.a
    a(f"s_lshl_b32 s{sT0}, s{sGRP}, 2"); a(f"v_mov_b32 v58, s{sT0}")
    R.vmem(f"global_load_dword v59, v58, s[{sDBG}:{sDBG+1}] sc0 sc1", "chk")
def a_flag_check(R):
    a = R.a
    R.wait_vm("chk")
    a(f"s_mov_b32 s{sT2}, 0")
    a.label("L_fc_poll")
    a(f"v_readfirstlane_b32 s{sT1}, v59")
    a(f"s_cmp_eq_u32 s{sT1}, 1"); a("s_cbranch_scc1 L_fc_skip")
    a(f"s_add_u32 s{sT2}, s{sT2}, 1"); a(f"s_cmp_ge_u32 s{sT2}, 400000"); a("s_cbranch_scc1 L_fc_skip")
    a("s_sleep 2")
    a(f"global_load_dword v59, v58, s[{sDBG}:{sDBG+1}] sc0 sc1")
    a("s_waitcnt vmcnt(0)")
    a("s_branch L_fc_poll")
    a.label("L_fc_skip")

T1, T2 = WB, WB + 32768
def a_S(R, n, dma=None):
    a = R.a
    j, w = n >> 1, n & 1
    buf = KVA if w == 0 else KVB
    if n >= 6:
        if n == 6:
            for s2 in range(2): a(f"v_add_u32 v{40+s2}, {T1}, v{40+s2}")
        buf = 0 if n == 6 else 32768
    if w == 0:
        for s in range(2):
            for nt in range(3):
                R.lds(f"ds_read_b128 {vr(Qf(s,nt))}, v{42+s} offset:{12288*(j & 1) + 2048*nt}", "q")
    frs = [(i, s) for i in range(8) for s in range(2)]
    NB = 4
    def rd(k):
        i, s = frs[k]
        R.lds(f"ds_read_b128 {vr(KF + 4*(k % NB))}, v{40+s} offset:{buf + 2048*i}", f"kf{k}")
    for k in range(NB-1): rd(k)
    if dma and not cfg.interleave:
        for ii in range(8): kv_dma(R, dma[0], dma[1], ii)
        dma = None
    for k, (i, s) in enumerate(frs):
        if k + NB - 1 < len(frs): rd(k + NB - 1)
        if dma and k < 8: kv_dma(R, dma[0], dma[1], k)
        R.wait_lg(f"kf{k}")
        for nt in range(3):
            d = S_(8*w + i, nt)
            c = "0" if (j == 0 and s == 0) else vr(d)
            a(f"v_mfma_f32_16x16x32_bf16 {vr(d)}, {vr(KF + 4*(k % NB))}, {vr(Qf(s,nt))}, {c}")

M1 = (52, 54, 56)
L1 = (53, 55, 57)
BETA = (0, 2, 4); ALO = (6, 8, 10); ALP = (12, 14, 16)
ONES1, ONES2 = 36, 20
def Pf(w, s, nt): return S_(8*w + 2*s, nt)
def Oa(mt, nt): return S_(2*mt + 1, nt)
def XT(i, nt): return S_(9 + 2*i, nt)

def _rowmax(a, tiles, dst, tmp):
    for nt in range(3):
        m = dst[nt]
        vals = [S_(t, nt) + r for t in tiles for r in range(4)]
        a(f"v_max3_f32 v{m}, v{vals[0]}, v{vals[1]}, v{vals[2]}")
        a(f"v_max3_f32 v{tmp}, v{vals[3]}, v{vals[4]}, v{vals[5]}")
        k = 6
        while k + 3 < len(vals):
            a(f"v_max3_f32 v{m}, v{m}, v{vals[k]}, v{vals[k+1]}")
            a(f"v_max3_f32 v{tmp}, v{tmp}, v{vals[k+2]}, v{vals[k+3]}")
            k += 4
        rest = vals[k:]
        assert len(rest) == 2
        a(f"v_max3_f32 v{m}, v{m}, v{rest[0]}, v{rest[1]}")
        a(f"v_max_f32 v{m}, v{m}, v{tmp}")
    for nt in range(3):
        m = dst[nt]
        a(f"v_mov_b32 v{tmp+nt}, v{m}")
    for nt in range(3):
        a(f"v_permlane32_swap_b32 v{tmp+nt}, v{dst[nt]}")
    for nt in range(3):
        a(f"v_max_f32 v{dst[nt]}, v{tmp+nt}, v{dst[nt]}")
    for nt in range(3):
        a(f"v_mov_b32 v{tmp+nt}, v{dst[nt]}")
    for nt in range(3):
        a(f"v_permlane16_swap_b32 v{tmp+nt}, v{dst[nt]}")
    for nt in range(3):
        a(f"v_max_f32 v{dst[nt]}, v{tmp+nt}, v{dst[nt]}")
        a(f"v_mul_f32 v{dst[nt]}, s{sC}, v{dst[nt]}")

def _exppack(a, t0s, mreg):
    for t0 in t0s:
        for nt in range(3):
            m = mreg[nt]
            b0, b1 = S_(t0, nt), S_(t0+1, nt)
            for b in (b0, b0+2, b1, b1+2):
                a(f"v_pk_fma_f32 {vr(b,2)}, {vr(b,2)}, s[{sC}:{sC+1}], {vr(m,2)} op_sel_hi:[1,1,0] neg_lo:[0,0,1] neg_hi:[0,0,1]")
            src = [b0+r for r in range(4)] + [b1+r for r in range(4)]
            for v in src: a(f"v_exp_f32 v{v}, v{v}")
            a(f"v_cvt_pk_bf16_f32 v{b0}, v{src[0]}, v{src[1]}")
            a(f"v_cvt_pk_bf16_f32 v{b0+1}, v{src[2]}, v{src[3]}")
            a(f"v_cvt_pk_bf16_f32 v{b0+2}, v{src[4]}, v{src[5]}")
            a(f"v_cvt_pk_bf16_f32 v{b0+3}, v{src[6]}, v{src[7]}")

def _rowsum(a, w, ones, acc):
    for r in range(4): a(f"v_mov_b32 v{ones+r}, 0x3f803f80")
    for s in range(4):
        for nt in range(3):
            c = "0" if s == 0 else vr(acc(nt))
            a(f"v_mfma_f32_16x16x32_bf16 {vr(acc(nt))}, {vr(ones)}, {vr(Pf(w,s,nt))}, {c}")

def a_softmax1(R):
    a = R.a
    _rowmax(a, range(0, 8), M1, 24)
    _exppack(a, (0, 2, 4, 6), M1)
    _rowsum(a, 0, ONES1, lambda nt: S_(1, nt))
    for nt in range(3): a(f"v_mov_b32 v{L1[nt]}, v{S_(1,nt)}")

def a_softmax2(R):
    a = R.a
    M2 = (24, 26, 28)
    _rowmax(a, range(8, 16), M2, 30)
    for nt in range(3):
        a(f"v_max_f32 v{M2[nt]}, v{M2[nt]}, v{M1[nt]}")
        a(f"v_sub_f32 v{BETA[nt]}, v{M1[nt]}, v{M2[nt]}")
    for nt in range(3): a(f"v_exp_f32 v{BETA[nt]}, v{BETA[nt]}")
    _exppack(a, (8, 10, 12, 14), M2)
    _rowsum(a, 1, ONES2, lambda nt: S_(13, nt))
    a_vaddr(R)
    for nt in range(3):
        a(f"v_fma_f32 v{M2[nt]+1}, v{BETA[nt]}, v{L1[nt]}, v{S_(13,nt)}")
    for nt in range(3):
        R.lds(f"ds_write_b64 v59, {vr(M2[nt],2)} offset:{128*nt}", "st")
    for nt in range(3):
        a(f"v_mov_b32 v{18+2*nt}, v{M2[nt]}"); a(f"v_mov_b32 v{19+2*nt}, v{M2[nt]+1}")
    R.wait_lg_all()

vXW, vXR, vOW = 52, 53, 54
def a_vaddr(R):
    a = R.a
    a(f"s_and_b32 s{sT1}, s{sIDX}, 1")
    a(f"v_lshrrev_b32 v32, 2, v{vL}")
    a(f"v_lshrrev_b32 v33, 1, v32"); a("v_and_b32 v33, 3, v33")
    a(f"s_lshl_b32 s{sT2}, s{sT1}, 14")
    a(f"v_lshlrev_b32 v34, 7, v32"); a(f"v_add_u32 v34, s{sT2}, v34")
    a(f"v_and_b32 v35, 3, v{vL}"); a(f"v_lshl_add_u32 v34, v35, 3, v34")
    a(f"s_lshl_b32 s{sT2}, s{sT1}, 1")
    a(f"v_xor_b32 v33, s{sT2}, v33")
    for mt in range(4):
        a(f"v_xor_b32 v35, {mt}, v33")
        a(f"v_lshl_add_u32 v{40+mt}, v35, 5, v34")
    a(f"s_mul_i32 s{sT0}, s{sIDX}, 384"); a(f"s_add_u32 s{sT0}, s{sT0}, {STAT}")
    a(f"v_lshlrev_b32 v59, 3, v{vQ}"); a(f"v_add_u32 v59, s{sT0}, v59")
    a(f"s_xor_b32 s{sT1}, s{sIDX}, 1"); a(f"s_mul_i32 s{sT1}, s{sT1}, 384"); a(f"s_add_u32 s{sT1}, s{sT1}, {STAT}")
    a(f"v_lshlrev_b32 v60, 3, v{vQ}"); a(f"v_add_u32 v60, s{sT1}, v60")

def a_alpha(R):
    a = R.a
    M2 = (18, 20, 22)
    for nt in range(3):
        R.lds(f"ds_read_b64 v[{32+2*nt}:{33+2*nt}], v60 offset:{128*nt}", "st")
    a(f"s_mul_i32 s{sT2}, s{sIDX}, 6144"); a(f"s_add_u32 s{sT2}, s{sT2}, {XB}")
    a(f"v_lshlrev_b32 v55, 4, v{vL}"); a(f"v_add_u32 v{vXW}, s{sT2}, v55")
    a(f"s_xor_b32 s{sT2}, s{sIDX}, 1"); a(f"s_mul_i32 s{sT2}, s{sT2}, 6144"); a(f"s_add_u32 s{sT2}, s{sT2}, {XB}")
    a(f"v_add_u32 v{vXR}, s{sT2}, v55")
    a(f"s_and_b32 s{sT1}, s{sIDX}, 1")
    a(f"s_lshr_b32 s{sT0}, s{sIDX}, 1"); a(f"s_mul_i32 s{sT2}, s{sT0}, {48*128}"); a(f"s_add_u32 s{sT2}, s{sT2}, {OB}")
    a(f"v_lshlrev_b32 v{vOW}, 7, v{vQ}"); a(f"v_add_u32 v{vOW}, s{sT2}, v{vOW}")
    a(f"s_lshl_b32 s{sT3}, s{sT1}, 2")
    a(f"v_or_b32 v55, s{sT3}, v{vGq}")
    a(f"v_lshrrev_b32 v56, 1, v{vQ}"); a("v_xor_b32 v55, v55, v56")
    a(f"v_lshl_add_u32 v{vOW}, v55, 4, v{vOW}")
    R.wait_lg_all()
    for nt in range(3):
        mo, lo = 32 + 2*nt, 33 + 2*nt
        m, l = M2[nt], M2[nt] + 1
        a(f"v_max_f32 v38, v{m}, v{mo}")
        a(f"v_sub_f32 v{ALO[nt]}, v{m}, v38"); a(f"v_sub_f32 v{ALP[nt]}, v{mo}, v38")
        a(f"v_exp_f32 v{ALO[nt]}, v{ALO[nt]}"); a(f"v_exp_f32 v{ALP[nt]}, v{ALP[nt]}")
        a(f"v_mul_f32 v38, v{l}, v{ALO[nt]}")
        a(f"v_fma_f32 v38, v{lo}, v{ALP[nt]}, v38")
        a("v_rcp_f32 v38, v38")
        a(f"v_mul_f32 v{ALO[nt]}, v{ALO[nt]}, v38"); a(f"v_mul_f32 v{ALP[nt]}, v{ALP[nt]}, v38")

def a_PV(R, n, dma=None):
    a = R.a
    j, w = n >> 1, n & 1
    buf = KVA if w == 0 else KVB
    frs = [(s, mt) for s in range(4) for mt in range(4)]
    if w == 1: frs = frs[:12] + [(3, 2), (3, 3), (3, 0), (3, 1)]
    NB = 4
    def rd(k):
        s, mt = frs[k]
        b = KF + 4*(k % NB)
        R.lds(f"ds_read_b64_tr_b16 {vr(b,2)}, v{40+mt} offset:{buf + 4096*s}", f"vf{k}")
        R.lds(f"ds_read_b64_tr_b16 {vr(b+2,2)}, v{40+mt} offset:{buf + 4096*s + 2048}", f"vf{k}")
    for k in range(NB-1): rd(k)
    if dma and not cfg.interleave:
        for ii in range(8): kv_dma(R, dma[0], dma[1], ii)
        dma = None
    for k, (s, mt) in enumerate(frs):
        if k + NB - 1 < len(frs): rd(k + NB - 1)
        if dma and k < 8: kv_dma(R, dma[0], dma[1], k)
        R.wait_lg(f"vf{k}")
        for nt in range(3):
            d = Oa(mt, nt)
            c = "0" if (w == 0 and s == 0) else vr(d)
            a(f"v_mfma_f32_16x16x32_bf16 {vr(d)}, {vr(KF + 4*(k % NB))}, {vr(Pf(w,s,nt))}, {c}")
        if w == 1 and k >= 14:
            m2 = k - 12
            for nt in range(3):
                R.lds(f"ds_write_b128 v{vXW}, {vr(Oa(m2,nt))} offset:{((m2-2)*3+nt)*1024}", "xw")

def a_rescale(R):
    a = R.a
    for mt in range(4):
        for nt in range(3):
            if cfg.unpack:
                for r in range(4): a(f"v_mul_f32 v{Oa(mt,nt)+r}, v{BETA[nt]}, v{Oa(mt,nt)+r}")
                continue
            for h2 in (0, 2):
                b = Oa(mt, nt) + h2
                a(f"v_pk_mul_f32 {vr(b,2)}, {vr(b,2)}, {vr(BETA[nt],2)} op_sel_hi:[1,0]")

def a_xwrite(R):
    a = R.a
    for mt in (2, 3):
        for nt in range(3):
            R.lds(f"ds_write_b128 v{vXW}, {vr(Oa(mt,nt))} offset:{((mt-2)*3+nt)*1024}", "xw")

def a_xfinal(R, dma=None):
    a = R.a
    for nt in range(3):
        for i in range(2):
            R.lds(f"ds_read_b128 {vr(XT(i,nt))}, v{vXR} offset:{(i*3+nt)*1024}", f"xr{nt}")
    if dma:
        for ii in range(8): kv_dma(R, dma[0], dma[1], ii)
    for nt in range(3):
        for i in range(2):
            if cfg.unpack:
                for r in range(4): a(f"v_mul_f32 v{Oa(i,nt)+r}, v{ALO[nt]}, v{Oa(i,nt)+r}")
                continue
            for h2 in (0, 2):
                b = Oa(i, nt) + h2
                a(f"v_pk_mul_f32 {vr(b,2)}, {vr(b,2)}, {vr(ALO[nt],2)} op_sel_hi:[1,0]")
    for nt in range(3):
        R.wait_lg(f"xr{nt}")
        for i in range(2):
            if cfg.unpack:
                for r in range(4): a(f"v_fma_f32 v{Oa(i,nt)+r}, v{XT(i,nt)+r}, v{ALP[nt]}, v{Oa(i,nt)+r}")
                continue
            for h2 in (0, 2):
                b, x = Oa(i, nt) + h2, XT(i, nt) + h2
                a(f"v_pk_fma_f32 {vr(b,2)}, {vr(x,2)}, {vr(ALP[nt],2)}, {vr(b,2)} op_sel_hi:[1,0,1]")
        d = XT(0, nt)
        a(f"v_cvt_pk_bf16_f32 v{d}, v{Oa(0,nt)}, v{Oa(0,nt)+1}")
        a(f"v_cvt_pk_bf16_f32 v{d+1}, v{Oa(0,nt)+2}, v{Oa(0,nt)+3}")
        a(f"v_cvt_pk_bf16_f32 v{d+2}, v{Oa(1,nt)}, v{Oa(1,nt)+1}")
        a(f"v_cvt_pk_bf16_f32 v{d+3}, v{Oa(1,nt)+2}, v{Oa(1,nt)+3}")
        R.lds(f"ds_write_b128 v{vOW}, {vr(d)} offset:{2048*nt}", "ow")

PRING = 0
vWqD = 20
vWqR = 21
vQW = 25
PT = 26
vWqR5 = 35
def Xf(s, nt): return 40 + (s*3 + nt)*4
def Qa(mt, nt): return 208 + (mt*3 + nt)*4

def p_lane(a):
    a(f"v_mbcnt_lo_u32_b32 v{PT}, -1, 0"); a(f"v_mbcnt_hi_u32_b32 v{PT}, -1, v{PT}")
    a(f"v_and_b32 v{PT+1}, 15, v{PT}"); a(f"v_lshrrev_b32 v{PT+2}, 4, v{PT}")

def p_setup(R):
    a = R.a
    l, q, g = PT, PT+1, PT+2
    p = sIDX
    p_lane(a)
    a(f"s_mul_i32 s{sXo}, s{p}, 896")
    a(f"s_lshr_b32 s{sT0}, s{p}, 1")
    a(f"v_xor_b32 v{PT+3}, s{sT0}, v{l}"); a(f"v_lshlrev_b32 v{PT+3}, 4, v{PT+3}")
    for k in range(4):
        a(f"v_xor_b32 v{PT+4+k}, {(2*k) << 4}, v{PT+3}")
    a(f"s_mov_b64 s[{sEX}:{sEX+1}], exec")
    a("s_mov_b32 exec_hi, 0x00ffffff")
    for ii in range(12):
        base = (KVB + 3584*ii) if ii < 8 else (QB + 3584*(ii-8))
        a(f"s_add_u32 m0, s{sXo}, {base}")
        a(f"s_add_u32 s{sT1}, s{sXo}, {3584*ii}")
        R.vmem(f"buffer_load_dwordx4 v{PT+4 + (ii % 4)}, {srd(SRD_X)}, s{sT1} offen lds", "x")
    a(f"s_mov_b64 exec, s[{sEX}:{sEX+1}]")

def p_setup2(R):
    a = R.a
    l, q, g = PT, PT+1, PT+2
    p = sIDX
    a(f"s_lshl_b32 s{sWp}, s{p}, 14"); a(f"s_add_u32 s{sWp}, s{sWp}, {WB}")
    wq_dma_pattern(a, vWqD, l, g, PT+3, PT+4)
    a(f"v_lshrrev_b32 v{PT+3}, 2, v{l}")
    a(f"v_lshrrev_b32 v{PT+4}, 1, v{PT+3}"); a(f"v_and_b32 v{PT+4}, 3, v{PT+4}")
    a(f"v_lshlrev_b32 v{PT+5}, 7, v{PT+3}"); a(f"v_add_u32 v{PT+5}, s{sWp}, v{PT+5}")
    a(f"v_and_b32 v{PT+6}, 3, v{l}"); a(f"v_lshl_add_u32 v{PT+5}, v{PT+6}, 3, v{PT+5}")
    for mt in range(4):
        a(f"v_xor_b32 v{PT+6}, {mt}, v{PT+4}")
        a(f"v_lshl_add_u32 v{vWqR+mt}, v{PT+6}, 5, v{PT+5}")
    a(f"s_and_b32 s{sT0}, s{sIDX}, 1"); a(f"s_mul_i32 s{sT0}, s{sT0}, {48*128}")
    a(f"s_lshr_b32 s{sT1}, s{sIDX}, 1"); a(f"s_mul_i32 s{sT1}, s{sT1}, 12288")
    a(f"s_add_u32 s{sT0}, s{sT0}, s{sT1}"); a(f"s_add_u32 s{sT0}, s{sT0}, {QB}")
    a(f"v_lshlrev_b32 v{PT+5}, 7, v{q}"); a(f"v_add_u32 v{PT+5}, s{sT0}, v{PT+5}")
    a(f"v_and_b32 v{PT+6}, 1, v{g}"); a(f"v_lshl_add_u32 v{PT+5}, v{PT+6}, 3, v{PT+5}")
    a(f"v_lshrrev_b32 v{PT+6}, 1, v{g}"); a(f"v_lshrrev_b32 v{PT+3}, 1, v{q}"); a(f"v_xor_b32 v{PT+6}, v{PT+6}, v{PT+3}")
    a(f"v_lshl_add_u32 v{vQW}, v{PT+6}, 4, v{PT+5}")
    a(f"v_lshrrev_b32 v{PT+3}, 1, v{q}")
    a(f"v_lshrrev_b32 v{PT+4}, 1, v{g}"); a(f"v_xor_b32 v{PT+4}, v{PT+4}, v{PT+3}")
    a(f"s_mov_b32 s{sT0}, 896"); a(f"v_mul_lo_u32 v{PT+5}, s{sT0}, v{q}")
    a(f"v_and_b32 v{PT+6}, 1, v{g}"); a(f"v_lshl_add_u32 v{PT+5}, v{PT+6}, 3, v{PT+5}")
    a(f"v_add_u32 v{PT+5}, {KVB}, v{PT+5}")
    for k in range(4):
        a(f"v_xor_b32 v{PT+6}, {2*k}, v{PT+4}")
        a(f"v_lshl_add_u32 v{PT+7+k}, v{PT+6}, 4, v{PT+5}")

def p_xfrags(R):
    a = R.a
    for pas in range(2):
        for s in range(14):
            for nt in ((0, 1) if pas == 0 else (2,)):
                for half in range(2):
                    k = 2*(s & 1) + half
                    off = (14336*nt if pas == 0 else 0) + 128*(s >> 1)
                    R.lds_guard(1)
                    R.lds(f"ds_read_b64 {vr(Xf(s,nt)+2*half,2)}, v{PT+7+k} offset:{off}", "xf")
        if pas == 0:
            R.wait_lg_all()
            for k in range(4): a(f"v_add_u32 v{PT+7+k}, {QB-KVB}, v{PT+7+k}")
    R.wait_lg_all()

def p_qcompute(R, kaps, stream_next, hooks=None):
    a = R.a
    D = cfg.dq; NB = D + 1
    hooks = hooks or {}
    frs = [(kap, mt) for kap in kaps for mt in range(4)]
    def rd(f):
        kap, mt = frs[f]
        if mt == 0: R.wait_vm(f"w{kap}")
        b = PRING + 4*(f % NB)
        area, off = wq_slot(kap)
        ad = (vWqR if area == 'own' else vWqR5) + mt
        R.lds(f"ds_read_b64_tr_b16 {vr(b,2)}, v{ad} offset:{off}", f"f{kap}_{mt}")
        R.lds(f"ds_read_b64_tr_b16 {vr(b+2,2)}, v{ad} offset:{off + 2048}", f"f{kap}_{mt}")
    for f in range(min(D, len(frs))): rd(f)
    for f, (kap, mt) in enumerate(frs):
        J, s = divmod(kap, 14)
        if f + D < len(frs): rd(f + D)
        if stream_next and cfg.j0s5 and kap >= 1 and kap + 4 < 14: wq_dma(R, kap + 4, vWqD, [mt])
        R.wait_lg(f"f{kap}_{mt}")
        if cfg.kst and mt == 0 and kap < 14 and kap % 2 == 0: lstamp(a, 26 + kap // 2)
        for nt in range(3):
            d = Qa(mt, nt)
            c = "0" if s == 0 else vr(d)
            a(f"v_mfma_f32_16x16x32_bf16 {vr(d)}, {vr(PRING + 4*(f % NB))}, {vr(Xf(s,nt))}, {c}")
        if stream_next and not cfg.j0s5 and mt == 3 and kap + NSLOT_Q < 14: wq_dma(R, kap + NSLOT_Q, vWqD)
        if mt == 3 and kap in hooks: hooks[kap]()
    last = kaps[-1]
    if last % 14 == 13:
        if cfg.kst and last == 13: lstamp(a, 33)
        k = 0
        for m2 in range(4):
            a(f"v_xor_b32 v{PT+8}, {32*m2}, v{vQW}")
            for nt in range(3):
                d = Qa(m2, nt)
                t = PT + 2*(k % 4); k += 1
                a(f"v_cvt_pk_bf16_f32 v{t}, v{d}, v{d+1}")
                a(f"v_cvt_pk_bf16_f32 v{t+1}, v{d+2}, v{d+3}")
                R.lds_guard(1)
                R.lds(f"ds_write_b64 v{PT+8}, {vr(t,2)} offset:{2048*nt}", "qw")
        R.wait_lg("qw")

ORING = 0
vWoD = 32
vWoR = 34
vOR = 42
VT = 48
ALT = 208
PUB = [216 + 4*i for i in range(10)] + [20, 24]
def Outa(i, nt): return 64 + (i*3 + nt)*4
def Of(ks, nt): return 160 + (ks*3 + nt)*4

def p_vsetup(R, wide):
    a = R.a
    l, q, g = VT, VT+1, VT+2
    a(f"v_mbcnt_lo_u32_b32 v{l}, -1, 0"); a(f"v_mbcnt_hi_u32_b32 v{l}, -1, v{l}")
    a(f"v_and_b32 v{q}, 15, v{l}"); a(f"v_lshrrev_b32 v{g}, 4, v{l}")
    a(f"s_lshl_b32 s{sT0}, s{sIDX}, 8")
    if wide:
        a(f"v_bfe_u32 v{VT+3}, v{l}, 1, 3"); a(f"v_xor_b32 v{VT+3}, v{VT+3}, v{g}")
        a(f"s_mov_b32 s{sT1}, 896"); a(f"v_mul_lo_u32 v{VT+4}, s{sT1}, v{g}")
        a(f"v_and_b32 v{VT+5}, 1, v{l}"); a(f"v_lshl_add_u32 v{VT+4}, v{VT+5}, 4, v{VT+4}")
        a(f"v_add_u32 v{VT+4}, s{sT0}, v{VT+4}")
        a(f"v_lshl_add_u32 v{vWoD}, v{VT+3}, 5, v{VT+4}")
        a(f"v_xor_b32 v{VT+3}, 4, v{VT+3}"); a(f"v_lshl_add_u32 v{vWoD+1}, v{VT+3}, 5, v{VT+4}")
        a(f"v_lshrrev_b32 v{VT+3}, 2, v{l}"); a(f"v_and_b32 v{VT+4}, 7, v{VT+3}")
        a(f"v_lshlrev_b32 v{VT+5}, 8, v{VT+3}")
    else:
        a(f"v_lshrrev_b32 v{VT+3}, 3, v{l}"); a(f"s_mov_b32 s{sT1}, 896"); a(f"v_mul_lo_u32 v{VT+4}, s{sT1}, v{VT+3}")
        a(f"v_bfe_u32 v{VT+3}, v{l}, 1, 2"); a(f"v_xor_b32 v{VT+3}, v{VT+3}, v{g}")
        a(f"v_lshl_add_u32 v{VT+4}, v{VT+3}, 5, v{VT+4}")
        a(f"v_and_b32 v{VT+5}, 1, v{l}"); a(f"v_lshl_add_u32 v{VT+4}, v{VT+5}, 4, v{VT+4}")
        a(f"v_add_u32 v{vWoD}, s{sT0}, v{VT+4}")
        a(f"v_lshrrev_b32 v{VT+3}, 2, v{l}")
        a(f"v_lshrrev_b32 v{VT+4}, 1, v{VT+3}"); a(f"v_and_b32 v{VT+4}, 3, v{VT+4}")
        a(f"v_lshlrev_b32 v{VT+5}, 7, v{VT+3}")
    a(f"v_and_b32 v{VT+6}, 3, v{l}"); a(f"v_lshl_add_u32 v{VT+5}, v{VT+6}, 3, v{VT+5}")
    a(f"s_lshl_b32 s{sT1}, s{sIDX}, 13")
    for mt in range(8 if wide else 4):
        a(f"v_xor_b32 v{VT+6}, {mt}, v{VT+4}")
        a(f"v_lshl_add_u32 v{VT+7}, v{VT+6}, 5, v{VT+5}")
        a(f"v_add_u32 v{vWoR+mt}, s{sWp}, v{VT+7}")
        a(f"v_add_u32 v{ALT+mt}, s{sT1}, v{VT+7}")
    a(f"v_lshrrev_b32 v{VT+3}, 1, v{q}"); a(f"v_xor_b32 v{VT+3}, v{g}, v{VT+3}")
    a(f"v_lshlrev_b32 v{VT+4}, 7, v{q}"); a(f"v_add_u32 v{VT+4}, {OB}, v{VT+4}")
    a(f"v_lshl_add_u32 v{vOR}, v{VT+3}, 4, v{VT+4}")
    a(f"v_xor_b32 v{VT+3}, 4, v{VT+3}"); a(f"v_lshl_add_u32 v{vOR+1}, v{VT+3}, 4, v{VT+4}")
    a(f"s_lshl_b32 s{sM0}, s{sIDX}, 13")

def wo_slot(kap, wide):
    slot = 8192 if wide else 4096
    special = {14: ('kv', KVA), 15: ('kv', KVB)}
    if kap in special: return special[kap]
    return ('own', (kap % 2)*slot)

def wo_dma(R, kap, wide, ii_list=None):
    a = R.a
    j, ks = divmod(kap, 4); h, s = divmod(ks, 2)
    row0 = 256*h + 32*s
    area, off = wo_slot(kap, wide)
    base = sWp if area == 'own' else sM0
    for ii in (ii_list if ii_list is not None else range(8 if wide else 4)):
        a(f"s_add_u32 m0, s{base}, {off + 1024*ii}")
        rows = 4*ii if wide else 8*ii
        a(f"s_add_u32 s{sT1}, s{sCOL+4+j}, {(row0 + rows)*896}")
        pat = vWoD + ((ii & 1) if wide else 0)
        R.vmem(f"buffer_load_dwordx4 v{pat}, {srd(SRD_WO)}, s{sT1} offen {cfg.w_flags} lds", f"o{kap}")

def p_ofrags(R):
    for k2 in range(4):
        for nt in range(3):
            R.lds_guard(1)
            R.lds(f"ds_read_b128 {vr(Of(k2,nt))}, v{vOR + (k2 & 1)} offset:{6144*(k2 >> 1) + 2048*nt}", f"of{k2}")

vPK0, vPK1, vPV, vPF = 44, 45, 46, 56
def p_kv_setup(R, first=False):
    a = R.a
    l, g = VT, VT+2
    a(f"s_lshl_b32 s{sM0}, s{sIDX}, 13")
    a(f"v_mbcnt_lo_u32_b32 v{l}, -1, 0"); a(f"v_mbcnt_hi_u32_b32 v{l}, -1, v{l}"); a(f"v_lshrrev_b32 v{g}, 4, v{l}")
    a(f"v_lshrrev_b32 v{VT+3}, 3, v{l}"); a(f"v_lshlrev_b32 v{VT+3}, 9, v{VT+3}")
    a(f"s_lshl_b32 s{sT1}, s{sIDX}, 15"); a(f"v_add_u32 v{VT+3}, s{sT1}, v{VT+3}")
    a(f"v_and_b32 v{VT+4}, 7, v{l}"); a(f"v_xor_b32 v{VT+5}, v{VT+4}, v{g}")
    a(f"v_lshl_add_u32 v{vPK0}, v{VT+5}, 4, v{VT+3}")
    a(f"v_xor_b32 v{VT+5}, 4, v{VT+5}"); a(f"v_lshl_add_u32 v{vPK1}, v{VT+5}, 4, v{VT+3}")
    a(f"v_lshrrev_b32 v{VT+5}, 1, v{VT+4}"); a(f"v_xor_b32 v{VT+5}, v{VT+5}, v{g}")
    a(f"v_lshl_add_u32 v{VT+5}, v{VT+5}, 5, v{VT+3}")
    a(f"v_and_b32 v{VT+4}, 1, v{l}"); a(f"v_lshl_add_u32 v{vPV}, v{VT+4}, 4, v{VT+5}")
    a(f"v_lshlrev_b32 v{vPF}, 7, v{l}")

def p_issue_KV(R, kind, n):
    a = R.a
    j, w = n >> 1, n & 1
    buf = KVA if w == 0 else KVB
    if kind == "K" and n >= 6: buf = T1 if n == 6 else T2
    for ii in range(8):
        a(f"s_add_u32 m0, s{sM0}, {buf + 1024*ii}")
        a(f"s_add_u32 s{sT1}, s{sCOL+j}, {131072*w + 4096*ii}")
        if kind == "K": R.vmem(f"buffer_load_dwordx4 v{vPK0 + (ii & 1)}, {srd(SRD_K)}, s{sT1} offen {cfg.k_flags} lds", f"K{n}")
        else: R.vmem(f"buffer_load_dwordx4 v{vPV}, {srd(SRD_V)}, s{sT1} offen {cfg.v_flags} lds", f"V{n}")

def p_pf_wo(R):
    a = R.a
    if not cfg.pf: return
    a(f"s_mul_i32 s{sT2}, s{sB}, 28672"); a(f"s_lshl_b32 s{sT3}, s{sIDX}, 13"); a(f"s_add_u32 s{sT2}, s{sT2}, s{sT3}")
    R.vmem(f"buffer_load_dword v57, v{vPF}, {srd(SRD_WO)}, s{sT2} offen {cfg.pf_flags}", "pf")

def p_of(R, k2):
    for nt in range(3):
        R.lds_guard(1)
        R.lds(f"ds_read_b128 {vr(Of(k2,nt))}, v{vOR + (k2 & 1)} offset:{6144*(k2 >> 1) + 2048*nt}", f"of{k2}")

def p_ocompute(R, kaps, wide, inter=None, ofr=False):
    a = R.a
    NT = 8 if wide else 4
    D = 4; NB = 5
    rowb = 256 if wide else 128
    inter = inter or {}
    frs = [(kap, mt) for kap in kaps for mt in range(NT)]
    def rd(f):
        kap, mt = frs[f]
        if mt == 0: R.wait_vm(f"o{kap}")
        b = ORING + 4*(f % NB)
        area, off = wo_slot(kap, wide)
        addr = (vWoR if area == 'own' else ALT) + mt
        R.lds_guard(2)
        R.lds(f"ds_read_b64_tr_b16 {vr(b,2)}, v{addr} offset:{off}", f"f{kap}_{mt}")
        R.lds(f"ds_read_b64_tr_b16 {vr(b+2,2)}, v{addr} offset:{off + 16*rowb}", f"f{kap}_{mt}")
    if ofr: p_of(R, 0)
    for f in range(D): rd(f)
    for f, (kap, mt) in enumerate(frs):
        j, ks = divmod(kap, 4)
        if f + D < len(frs): rd(f + D)
        if ofr and f < 3: p_of(R, f + 1)
        for (k2, ii) in inter.get(f, []): wo_dma(R, k2, wide, [ii])
        R.wait_lg(f"f{kap}_{mt}")
        if mt == 0: R.wait_lg(f"of{ks}")
        for nt in range(3):
            d = Outa(mt, nt)
            c = "0" if kap == 0 else vr(d)
            a(f"v_mfma_f32_16x16x32_bf16 {vr(d)}, {vr(ORING + 4*(f % NB))}, {vr(Of(ks,nt))}, {c}")
        if cfg.tst and mt == NT - 1 and kap >= 10: lstamp(a, 26 + kap - 10)

def p_oproj_phase(R, bar, wide):
    a = R.a
    NT = 8 if wide else 4
    nbar = 0
    def b1():
        nonlocal nbar
        bar(); nbar += 1
    b1()
    if cfg.wo_first_after >= 6: wo_dma(R, 0, wide); wo_dma(R, 1, wide)
    b1()
    for j in range(3):
        a.comment(f"---- O projection chunk {j}")
        p_ocompute(R, [4*j, 4*j+1], wide, ofr=True)
        wo_dma(R, 4*j+2, wide); wo_dma(R, 4*j+3, wide)
        b1()
        if j < 2:
            p_ocompute(R, [4*j+2, 4*j+3], wide)
            wo_dma(R, 4*j+4, wide); wo_dma(R, 4*j+5, wide)
        else:
            inter = {f: [(14, f)] for f in range(NT)}
            inter.update({NT + f: [(12, f)] for f in range(NT)})
            p_ocompute(R, [10, 11], wide, inter=inter)
            wo_dma(R, 13, wide)
        b1()
    p_ocompute(R, [12, 13], wide, inter={f: [(15, f)] for f in range(NT)}, ofr=True)
    p_ocompute_last(R, wide)
    return nbar

def p_ocompute_last(R, wide):
    a = R.a
    NT = 8 if wide else 4
    D = 4; NB = 5
    rowb = 256 if wide else 128
    frs = [(kap, 2*ip + t) for ip in range(NT//2) for kap in (14, 15) for t in range(2)]
    def rd(f):
        kap, mt = frs[f]
        if f == 0: R.wait_vm("o14"); R.wait_vm("o15")
        b = ORING + 4*(f % NB)
        area, off = wo_slot(kap, wide)
        addr = (vWoR if area == 'own' else ALT) + mt
        R.lds_guard(2)
        R.lds(f"ds_read_b64_tr_b16 {vr(b,2)}, v{addr} offset:{off}", f"g{f}")
        R.lds(f"ds_read_b64_tr_b16 {vr(b+2,2)}, v{addr} offset:{off + 16*rowb}", f"g{f}")
    a(f"v_mbcnt_lo_u32_b32 v{VT}, -1, 0"); a(f"v_mbcnt_hi_u32_b32 v{VT}, -1, v{VT}"); a(f"v_lshlrev_b32 v{VT}, 4, v{VT}")
    a(f"s_mul_i32 s{sT2}, s2, {PART}"); a(f"s_mul_i32 s{sT3}, s{sIDX}, {12*1024}"); a(f"s_add_u32 s{sT2}, s{sT2}, s{sT3}")
    npub = 0
    def pub_pair(ip):
        nonlocal npub
        for nt in range(3):
            t = PUB[npub]; npub += 1
            d0, d1 = Outa(2*ip, nt), Outa(2*ip+1, nt)
            a(f"v_cvt_pk_bf16_f32 v{t}, v{d0}, v{d0+1}"); a(f"v_cvt_pk_bf16_f32 v{t+1}, v{d0+2}, v{d0+3}")
            a(f"v_cvt_pk_bf16_f32 v{t+2}, v{d1}, v{d1+1}"); a(f"v_cvt_pk_bf16_f32 v{t+3}, v{d1+2}, v{d1+3}")
            a(f"s_add_u32 s{sT1}, s{sT2}, {1024*(ip*3 + nt)}")
            R.vmem(f"buffer_store_dwordx4 {vr(t)}, v{VT}, {srd(SRD_WS)}, s{sT1} offen sc0 sc1", "pub")
    for f in range(D): rd(f)
    for f, (kap, mt) in enumerate(frs):
        ks = kap % 4
        if f + D < len(frs): rd(f + D)
        R.wait_lg(f"g{f}")
        for nt in range(3):
            d = Outa(mt, nt)
            a(f"v_mfma_f32_16x16x32_bf16 {vr(d)}, {vr(ORING + 4*(f % NB))}, {vr(Of(ks,nt))}, {vr(d)}")
        if f % 4 == 1 and f >= 5: pub_pair(f//4 - 1)
    pub_pair(NT//2 - 1)

def p_flag(R):
    a = R.a
    if cfg.tst: lstamp(a, 32)
    R.wait_vm_all()
    if cfg.tst: lstamp(a, 33)
    a(f"s_mul_i32 s{sT0}, s{sGRP}, {FSTR}"); a(f"s_add_u32 s{sT0}, s{sT0}, {FLG}")
    a(f"s_lshl_b32 s{sT1}, s{sG}, 2"); a(f"s_add_u32 s{sT1}, s{sT1}, s{sIDX}"); a(f"s_lshl_b32 s{sT1}, s{sT1}, 2")
    a(f"v_mov_b32 v2, s{sT1}"); a("v_mov_b32 v1, 1")
    a(f"s_mov_b64 s[{sEX}:{sEX+1}], exec")
    a("s_mov_b64 exec, 1")
    a(f"buffer_store_dword v1, v2, {srd(SRD_WS)}, s{sT0} offen sc0 sc1")
    a(f"s_mov_b64 exec, s[{sEX}:{sEX+1}]")

def emit_reduce(a):
    a.label("L_tail")
    if cfg.stamps: stamp(a, 50)
    a(f"s_min_u32 s{sT0}, s{sG}, 2"); a(f"s_mul_i32 s{sT1}, s{sG}, 5"); a(f"s_add_u32 s{sT0}, s{sT0}, s{sT1}")
    a(f"s_cmp_lt_u32 s{sG}, 2"); a(f"s_cselect_b32 s{sT1}, 6, 5")
    a(f"s_mov_b32 s80, s{sT1}")
    a(f"s_add_u32 s{sT0}, s{sT0}, s{sWAVE}")
    a("v_mbcnt_lo_u32_b32 v3, -1, 0"); a("v_mbcnt_hi_u32_b32 v3, -1, v3")
    a("v_lshlrev_b32 v6, 4, v3"); a("v_lshlrev_b32 v0, 2, v3")
    a(f"s_mul_i32 s{sT2}, s{sT0}, 171"); a(f"s_lshr_b32 s{sT2}, s{sT2}, 9")
    a(f"s_mul_i32 s{sT3}, s{sT2}, 3"); a(f"s_sub_u32 s{sT3}, s{sT0}, s{sT3}")
    a(f"s_lshl_b32 s{sT3}, s{sT3}, 4"); a(f"s_mul_i32 s{sT1}, s{sB}, 48"); a(f"s_add_u32 s{sT3}, s{sT3}, s{sT1}")
    a(f"s_mul_i32 s{sT3}, s{sT3}, 1792"); a(f"s_lshl_b32 s{sT2}, s{sT2}, 6"); a(f"s_add_u32 s{sT3}, s{sT3}, s{sT2}")
    a(f"s_mul_i32 s{sT1}, s{sBR}, 896"); a(f"s_add_u32 s78, s{sT3}, s{sT1}") if not cfg.lstamps else None
    if cfg.lstamps: a(f"s_mul_i32 s{sT1}, s{sBR}, 896"); a(f"s_add_u32 s100, s{sT3}, s{sT1}")
    sOUT = 100 if cfg.lstamps else 78
    a("v_and_b32 v7, 15, v3"); a(f"s_mov_b32 s{sT1}, 1792"); a(f"v_mul_lo_u32 v7, s{sT1}, v7")
    a("v_bfe_u32 v8, v3, 4, 1"); a("v_lshl_add_u32 v7, v8, 5, v7")
    a("v_lshrrev_b32 v8, 5, v3"); a("v_lshl_add_u32 v7, v8, 4, v7")
    a(f"s_lshl_b32 s{sT1}, s{sB}, 4"); a(f"s_lshl_b32 s{sT2}, s{sBR}, 2"); a(f"s_add_u32 s{sT1}, s{sT1}, s{sT2}")
    a(f"s_mul_i32 s{sT1}, s{sT1}, {PART}"); a(f"s_lshl_b32 s{sT2}, s{sT0}, 10"); a(f"s_add_u32 s{sT3}, s{sT1}, s{sT2}")
    a(f"s_cmp_lg_u32 s{sWAVE}, 0"); a("s_cbranch_scc1 L_nopoll")
    a(f"s_mul_i32 s{sT0}, s{sGRP}, {FSTR}"); a(f"s_add_u32 s{sT0}, s{sT0}, {FLG}")
    a(f"s_mov_b64 s[{sEX}:{sEX+1}], exec")
    a("s_mov_b32 exec_hi, 0")
    a(f"s_mov_b32 s{sT2}, 0")
    a.label("L_poll")
    a(f"buffer_load_dword v4, v0, {srd(SRD_WS)}, s{sT0} offen sc0 sc1")
    a("s_waitcnt vmcnt(0)")
    a("v_cmp_eq_u32 vcc, 1, v4")
    a("s_cmp_eq_u32 vcc_lo, -1")
    a("s_cbranch_scc1 L_poll_done")
    a(f"s_add_u32 s{sT2}, s{sT2}, 1")
    a(f"s_cmp_ge_u32 s{sT2}, 400000")
    a("s_cbranch_scc1 L_poll_done")
    if cfg.sleep: a(f"s_sleep {cfg.sleep}")
    a("s_branch L_poll")
    a.label("L_poll_done")
    a(f"s_mov_b64 exec, s[{sEX}:{sEX+1}]")
    a.label("L_nopoll")
    a("s_barrier")
    a(f"s_cmp_ge_u32 s{sWAVE}, s80")
    a("s_cbranch_scc1 " + ("L_nogather" if cfg.stamps else ("L_mini" if cfg.mini else "L_end")))
    if cfg.stamps: stamp(a, 52)
    for k in range(8):
        gb, gp = k >> 2, k & 3
        a(f"s_add_u32 s{sT2}, s{sT3}, {(gb*8 + gp)*PART}")
        a(f"buffer_load_dwordx4 {vr(64+4*k)}, v6, {srd(SRD_WS)}, s{sT2} offen sc0 sc1")
    acc = 16
    for k in range(8):
        a(f"s_waitcnt vmcnt({7-k})")
        for r in range(4):
            src = 64 + 4*k + r
            if k == 0:
                a(f"v_lshlrev_b32 v{acc+2*r}, 16, v{src}"); a(f"v_and_b32 v{acc+2*r+1}, 0xffff0000, v{src}")
            else:
                t = 8 + 2*(r & 1) + 2
                a(f"v_lshlrev_b32 v{t}, 16, v{src}"); a(f"v_and_b32 v{t+1}, 0xffff0000, v{src}")
                a(f"v_pk_add_f32 {vr(acc+2*r,2)}, {vr(acc+2*r,2)}, {vr(t,2)}")
    for r in range(4):
        a(f"v_cvt_pk_bf16_f32 v{12+r}, v{acc+2*r}, v{acc+2*r+1}")
    a("v_permlane16_swap_b32 v12, v14")
    a("v_permlane16_swap_b32 v13, v15")
    a(f"buffer_store_dwordx4 v[12:15], v7, {srd(SRD_OUT)}, s{sOUT} offen")
    if cfg.stamps:
        a("s_waitcnt vmcnt(0)")
        a.label("L_nogather")
        stamp(a, 53)
        a("s_memtime s[74:75]"); a("s_waitcnt lgkmcnt(0)"); a("v_writelane_b32 v61, s74, 61")
        stamp_store(a)
    if cfg.mini:
        a.label("L_mini")
        a("s_memrealtime s[72:73]"); a("s_waitcnt vmcnt(0) lgkmcnt(0)")
        a("s_memrealtime s[72:73]"); a("s_waitcnt lgkmcnt(0)")
        a("v_mov_b32 v61, 0"); a("v_writelane_b32 v61, s90, 62"); a("v_writelane_b32 v61, s72, 53")
        stamp_store(a)
    a.label("L_end")
    a("s_endpgm")

def build():
    a = Asm()
    if cfg.mini:
        a("s_memrealtime s[90:91]")
    if cfg.stamps:
        a("s_memrealtime s[72:73]"); a("s_memtime s[74:75]"); a("s_waitcnt lgkmcnt(0)")
        a("v_writelane_b32 v61, s72, 62"); a("v_writelane_b32 v61, s74, 60")
    emit_prologue(a)
    cnt = {"n": 0}
    def bar():
        a("s_barrier")
        if cfg.stamps: stamp(a, cnt["n"])
        cnt["n"] += 1
    A = Role(a)
    if cfg.prioA: a(f"s_setprio {cfg.prioA}")
    a_setup(A)
    if cfg.pf_first: a_pf(A, "wq")
    bar()
    if not cfg.pf_first: a_pf(A, "wq")
    a_setup2(A)
    bar()
    a0_flag_zero(A)
    for kap in range(4): wq_dma(A, kap, vWqA)
    a_issue_KV(A, "K", 0)
    a_setup3(A)
    a_pair_init(A)
    A.wait_vm("w3")
    a0_flag_mark(A)
    bar()
    bar()
    a_issue_KV(A, "K", 1)
    A.wait_vm("K0")
    bar()
    a_S(A, 0)
    A.wait_vm("K1")
    bar()
    a_S(A, 1, dma=("K", 2)); A.wait_vm("K2"); bar()
    a_S(A, 2, dma=("K", 3)); A.wait_vm("K3"); bar()
    a_S(A, 3, dma=("K", 4)); A.wait_vm("K4"); bar()
    a_flag_load(A)
    a_issue_KV(A, "K", 5)
    a_flag_check(A)
    bar()
    a_S(A, 4)
    A.wait_vm("K5")
    bar()
    a_S(A, 5)
    bar()
    a_S(A, 6)
    if cfg.split_sm: a_softmax1(A)
    bar()
    a_S(A, 7)
    if not cfg.split_sm: a_softmax1(A)
    a_softmax2(A)
    bar()
    for n in range(8):
        dma = ("V", n+1) if 1 <= n <= 6 else None
        if cfg.prio7 and n == cfg.prio7from: a(f"s_setprio {cfg.prio7}")
        a_PV(A, n, dma)
        if n == 0:
            a_alpha(A); a_pair_addr(A)
        if n % 2 == 0:
            a_rescale(A)
        else:
            a_pair_sync(A, n >> 1)
            a_xfinal(A)
        if 1 <= n < 7: A.wait_vm(f"V{n+1}")
        A.wait_lg_all()
        bar()
    nA = cnt["n"]
    A.wait_vm_all()
    a("s_branch L_tail")
    a.label("L_P")
    cnt["n"] = 0
    P = Role(a)
    stamp_move(a, 39)
    if cfg.stamps: stamp(a, 55)
    if cfg.prioP: a(f"s_setprio {cfg.prioP}")
    P.vm += ["x"]*12
    if cfg.stamps: stamp(a, 56)
    bar()
    p_setup2(P)
    P.wait_vm("x"); bar()
    p_xfrags(P)
    if cfg.j0s5:
        a(f"s_lshl_b32 s{sWq5}, s{sIDX}, 12"); a(f"s_add_u32 s{sWq5}, s{sWq5}, {QB}")
        a(f"s_sub_u32 s{sT0}, s{sWq5}, s{sWp}")
        for mt in range(4): a(f"v_add_u32 v{vWqR5+mt}, s{sT0}, v{vWqR+mt}")
    bar()
    if cfg.j0s5: wq_dma(P, 4, vWqD)
    p_qcompute(P, list(range(14)), True, hooks={cfg.k1_after: bar})
    bar()
    for kap in (14, 15, 16, 17): wq_dma(P, kap, vWqD)
    bar()
    for kaps, nxt in (([14,15], [18,19]), ([16,17,18,19], [20,21,22,23]), ([20,21,22,23], [24,25,26,27]), ([24,25,26,27], [])):
        p_qcompute(P, kaps, False)
        for kap in nxt: wq_dma(P, kap, vWqD)
        bar()
    a(f"s_cmp_eq_u32 s{sIDX}, 3")
    a("s_cbranch_scc1 L_P3")
    base = cnt["n"]
    for wide in (True, False):
        if not wide:
            a.label("L_P3"); cnt["n"] = base
        Pw = Role(a)
        STREG[0] = 39
        stamp_move(a, 47)
        p_kv_setup(Pw, first=True)
        p_issue_KV(Pw, "K", 6)
        p_vsetup(Pw, wide)
        bar()
        p_issue_KV(Pw, "K", 7); Pw.wait_vm("K6"); bar()
        p_issue_KV(Pw, "V", 0); Pw.wait_vm("K7"); bar()
        p_issue_KV(Pw, "V", 1); p_pf_wo(Pw); Pw.wait_vm("V0"); bar()
        Pw.wait_vm("V1")
        nb = p_oproj_phase(Pw, bar, wide)
        assert nb == 8, nb
        if cfg.stamps: stamp(a, 59)
        p_flag(Pw)
        if cfg.stamps: stamp(a, 58)
        assert cnt["n"] == nA, (cnt["n"], nA)
        stamp_move(a, 61)
        if wide: a("s_branch L_tail")
    emit_reduce(a)
    a.finalize()
    return a

HEADER = open("cdna_kernels/" + NAME + ".s.ref").read().split("; Override launch")[0]
def full_text(a):
    s = HEADER
    s += f"; @launch grid=(256,1,1) block=(512,1,1) lds={LDS_BYTES}\n"
    s += f'.amdgcn_target "amdgcn-amd-amdhsa--gfx950"\n.text\n.globl {NAME}_kernel\n.p2align 8\n.type {NAME}_kernel,@function\n{NAME}_kernel:\n'
    s += a.text()
    s += f""".section .rodata,"a"
.p2align 6
.amdhsa_kernel {NAME}_kernel
  .amdhsa_next_free_vgpr 256
  .amdhsa_next_free_sgpr 102
  .amdhsa_accum_offset 256
  .amdhsa_group_segment_fixed_size 0
  .amdhsa_kernarg_size 104
  .amdhsa_user_sgpr_count 2
  .amdhsa_user_sgpr_kernarg_segment_ptr 1
  .amdhsa_system_sgpr_workgroup_id_x 1
.end_amdhsa_kernel
"""
    return s

if __name__ == "__main__":
    out = sys.argv[1] if len(sys.argv) > 1 else "cdna_kernels/" + NAME + ".s"
    for kv in sys.argv[2:]:
        k, v = kv.split("=", 1)
        cur = getattr(cfg, k)
        if isinstance(cur, bool): v = v.lower() in ("1", "true")
        elif isinstance(cur, int): v = int(v)
        setattr(cfg, k, v)
    a = build()
    open(out, "w").write(full_text(a))
    print("wrote", out, "instrs:", sum(1 for i in a.ins if i.kind not in ('none','label')), "nops inserted:", a.nops_inserted)
```

```python
import sys, math, struct
from asmlib import Asm

NAME = "concat_heads__gqa_block_cached__gqa_block_cached__near_ridge"

class Cfg:
    k_flags = "nt"
    v_flags = "nt"
    w_flags = ""
    pf = True
    pf_flags = ""
    stamps = False
    lstamps = False
    mini = False
    prioA = 0
    prioP = 0
    dq = 4
    pf_wo_at = 8
    k1_after = 9
    split_sm = True
    sleep = 0
    interleave = False
    pf_first = False
    wo_first_after = 7
    tst = False
    icpf = True
    prio7 = 0
    prio7from = 7
    pkv = True
    unpack = True
    j0s5 = True
    rot = 1
    kst = False
cfg = Cfg()

KVA, KVB = 0, 32768
WB = 65536
QB = 131072
OB = 122880
XB = 135168
STAT = 159744
PFL = 161280
LDS_BYTES = 163840
PART = 43008
FLG = 16 << 20
FSTR = 8448
sWAVE, sIDX, sG, sB, sBR = 3, 4, 5, 6, 7
SRD_K, SRD_V, SRD_WQ, SRD_WO, SRD_X, SRD_OUT, SRD_WS = 8, 12, 16, 20, 24, 28, 32
sDBG = 58
sM0, sWp = 62, 63
sC = 64
sT0, sT1, sT2, sT3 = 66, 67, 68, 69
sEX = 70
sGRP, sXo = 76, 77
sCOL = 36
sJ = 44
def srd(b): return f"s[{b}:{b+3}]"
def vr(b, n=4): return f"v[{b}:{b+n-1}]"
def f32bits(x): return struct.unpack('<I', struct.pack('<f', x))[0]
vL, vQ, vGq = 44, 46, 47

class Role:
    def __init__(self, a): self.a = a; self.vm = []; self.lg = []
    def vmem(self, text, tag): self.a(text); self.vm.append(tag)
    def lds(self, text, tag): self.a(text); self.lg.append(tag)
    def wait_vm(self, tag):
        idx = [i for i, t in enumerate(self.vm) if t == tag]
        if not idx: return
        n = len(self.vm) - 1 - idx[-1]
        assert n <= 63
        self.a(f"s_waitcnt vmcnt({n})"); self.vm = self.vm[idx[-1]+1:]
    def wait_lg(self, tag):
        idx = [i for i, t in enumerate(self.lg) if t == tag]
        if not idx: return
        n = len(self.lg) - 1 - idx[-1]
        assert n <= 15, n
        self.a(f"s_waitcnt lgkmcnt({n})"); self.lg = self.lg[idx[-1]+1:]
    def wait_vm_all(self): self.a("s_waitcnt vmcnt(0)"); self.vm = []
    def wait_lg_all(self): self.a("s_waitcnt lgkmcnt(0)"); self.lg = []
    def lds_guard(self, n_new):
        if len(self.lg) + n_new > 15:
            keep = 15 - n_new
            self.a(f"s_waitcnt lgkmcnt({keep})"); self.lg = self.lg[len(self.lg)-keep:] if keep else []

STREG = [61]
PEND = []
def stamp(a, idx):
    a("s_memrealtime s[72:73]")
    a("s_waitcnt lgkmcnt(0)")
    a(f"v_writelane_b32 v{STREG[0]}, s72, {idx}")
    for (sp, i2) in PEND: a(f"v_writelane_b32 v{STREG[0]}, s{sp}, {i2}")
    PEND.clear()
def lstamp(a, idx):
    if not cfg.lstamps: return
    sp = 78 + 2*len(PEND)
    assert sp <= 98
    a(f"s_memrealtime s[{sp}:{sp+1}]")
    PEND.append((sp, idx))
def stamp_move(a, new):
    if cfg.stamps: a(f"v_mov_b32 v{new}, v{STREG[0]}")
    STREG[0] = new
def stamp_store(a):
    a(f"s_lshl_b32 s{sT0}, s2, 3"); a(f"s_add_u32 s{sT0}, s{sT0}, s{sWAVE}"); a(f"s_lshl_b32 s{sT0}, s{sT0}, 8")
    a("v_mbcnt_lo_u32_b32 v60, -1, 0"); a("v_mbcnt_hi_u32_b32 v60, -1, v60")
    a(f"v_lshlrev_b32 v60, 2, v60"); a(f"v_add_u32 v60, s{sT0}, v60")
    a("s_add_u32 s74, s60, 0x2000000"); a("s_addc_u32 s75, s61, 0")
    a("global_store_dword v60, v61, s[74:75]")
    a("s_waitcnt vmcnt(0)")

def emit_prologue(a):
    a("s_cmp_ge_u32 s2, 256")
    a("s_cbranch_scc1 L_end")
    a("s_load_dwordx16 s[36:51], s[0:1], 0")
    a("s_load_dwordx4 s[52:55], s[0:1], 64")
    a("s_load_dwordx4 s[56:59], s[0:1], 80")
    a("s_load_dwordx2 s[60:61], s[0:1], 96")
    a("v_and_b32 v44, 63, v0")
    a("v_lshrrev_b32 v45, 6, v0")
    a("v_and_b32 v46, 15, v44")
    a("v_lshrrev_b32 v47, 4, v44")
    a(f"v_readfirstlane_b32 s{sWAVE}, v45")
    a(f"s_bfe_u32 s{sBR}, s2, 0x10002")
    a(f"s_and_b32 s{sG}, s2, 3"); a(f"s_lshl_b32 s{sG}, s{sG}, 1")
    a(f"s_bfe_u32 s{sT0}, s2, 0x10003"); a(f"s_or_b32 s{sG}, s{sG}, s{sT0}")
    a(f"s_lshr_b32 s{sB}, s2, 4")
    a(f"s_and_b32 s{sIDX}, s{sWAVE}, 3")
    a(f"s_lshl_b32 s{sGRP}, s{sBR}, 4"); a(f"s_add_u32 s{sGRP}, s{sGRP}, s{sB}")
    a(f"s_mov_b32 s{sC}, 0x{f32bits(math.log2(math.e)/16.0):08x}"); a(f"s_mov_b32 s{sC+1}, s{sC}")
    a("s_waitcnt lgkmcnt(0)")
    if cfg.stamps: stamp(a, 54)
    a(f"s_cmp_eq_u32 s{sBR}, 0")
    for i in range(5):
        a(f"s_cselect_b64 s[{36+2*i}:{37+2*i}], s[{36+2*i}:{37+2*i}], s[{46+2*i}:{47+2*i}]")
    def mk(srdb, ptr, off_s, size):
        if off_s is None:
            a(f"s_mov_b32 s{srdb}, s{ptr}"); a(f"s_and_b32 s{srdb+1}, s{ptr+1}, 0xffff")
        else:
            a(f"s_add_u32 s{srdb}, s{ptr}, s{off_s}")
            a(f"s_addc_u32 s{srdb+1}, s{ptr+1}, 0")
            a(f"s_and_b32 s{srdb+1}, s{srdb+1}, 0xffff")
        if isinstance(size, int): a(f"s_mov_b32 s{srdb+2}, {size}")
        else: a(size)
        a(f"s_mov_b32 s{srdb+3}, 0x20000")
    a(f"s_mul_i32 s{sT1}, s{sB}, 43008")
    mk(SRD_X, 36, sT1, 43008)
    a(f"s_cmp_lt_u32 s{sWAVE}, 4"); a("s_cbranch_scc1 L_nox")
    PX = Role(a); p_setup(PX)
    a.label("L_nox")
    a(f"s_lshl_b32 s{sT1}, s{sG}, 10")
    mk(SRD_WQ, 42, sT1, f"s_sub_u32 s{SRD_WQ+2}, {448*8192}, s{sT1}")
    a(f"s_lshl_b32 s{sT0}, s{sB}, 3"); a(f"s_add_u32 s{sT0}, s{sT0}, s{sG}"); a(f"s_lshl_b32 s{sT0}, s{sT0}, 18")
    mk(SRD_K, 38, sT0, 262144)
    mk(SRD_V, 40, sT0, 262144)
    a(f"s_mul_i32 s{sT1}, s{sG}, 458752")
    mk(SRD_WO, 44, sT1, 458752)
    mk(SRD_OUT, 56, None, 16*48*896*2)
    mk(SRD_WS, 60, None, FLG + 32*FSTR)
    if cfg.rot == 0: a(f"s_mov_b32 s{sT0}, 0")
    elif cfg.rot == 1: a(f"s_and_b32 s{sT0}, s{sB}, 3")
    elif cfg.rot == 2: a(f"s_add_u32 s{sT0}, s{sB}, s{sG}"); a(f"s_and_b32 s{sT0}, s{sT0}, 3")
    elif cfg.rot == 3: a(f"s_and_b32 s{sT0}, s{sB}, 1"); a(f"s_lshl_b32 s{sT0}, s{sT0}, 1")
    for j in range(4):
        a(f"s_add_u32 s{sT1}, s{sT0}, {j}"); a(f"s_and_b32 s{sT1}, s{sT1}, 3")
        a(f"s_lshl_b32 s{sCOL+j}, s{sT1}, 7"); a(f"s_mul_i32 s{sCOL+4+j}, s{sT1}, {64*896}")
    a(f"s_lshr_b32 s{sT2}, s{sIDX}, 1")
    for J in range(2):
        a(f"s_add_u32 s{sT1}, s{sT0}, s{sT2}"); a(f"s_add_u32 s{sT1}, s{sT1}, {2*J}"); a(f"s_and_b32 s{sT1}, s{sT1}, 3")
        a(f"s_lshl_b32 s{sJ+J}, s{sT1}, 7")
    a(f"s_cmp_ge_u32 s{sWAVE}, 4")
    a("s_cbranch_scc1 L_P")

def wq_dma_pattern(a, dst, l, g, t0, t1):
    a(f"v_lshrrev_b32 v{t0}, 3, v{l}"); a(f"v_lshlrev_b32 v{t0}, 13, v{t0}")
    a(f"v_bfe_u32 v{t1}, v{l}, 1, 2"); a(f"v_xor_b32 v{t1}, v{t1}, v{g}")
    a(f"v_lshl_add_u32 v{t0}, v{t1}, 5, v{t0}")
    a(f"v_and_b32 v{t1}, 1, v{l}"); a(f"v_lshl_add_u32 v{t0}, v{t1}, 4, v{t0}")
    a(f"s_and_b32 s{sT0}, s{sIDX}, 1"); a(f"s_lshl_b32 s{sT0}, s{sT0}, 9")
    a(f"v_add_u32 v{dst}, s{sT0}, v{t0}")

NSLOT_Q = 4
def wq_slot(kap):
    if cfg.j0s5 and kap < 14:
        sl = kap % 5
        return ('q', 0) if sl == 4 else ('own', sl*4096)
    return ('own', (kap % NSLOT_Q)*4096)
sWq5 = 47
def wq_dma(R, kap, vpat, ii_list=range(4)):
    a = R.a
    J, s = divmod(kap, 14)
    area, off = wq_slot(kap)
    for ii in ii_list:
        a(f"s_add_u32 m0, s{sWp if area == 'own' else sWq5}, {off + 1024*ii}")
        a(f"s_add_u32 s{sT1}, s{sJ+J}, {(32*s + 8*ii)*8192}")
        R.vmem(f"buffer_load_dwordx4 v{vpat}, {srd(SRD_WQ)}, s{sT1} offen {cfg.w_flags} lds", f"w{kap}")

def S_(t, nt): return 64 + (t*3 + nt)*4
def Qf(s, nt): return (s*3 + nt)*4
KF = 24
vKdE, vKdO, vVd, vWqA = 48, 49, 50, 51

def a_code_prefetch(R):
    a = R.a
    if not cfg.icpf: return
    a(f"s_cmp_lg_u32 s{sIDX}, 3"); a("s_cbranch_scc1 L_icpf_skip")
    a("s_getpc_b64 s[72:73]")
    a.label("L_icpf_pc")
    a(f"s_sub_u32 s72, s72, L_icpf_pc-{NAME}_kernel"); a("s_subb_u32 s73, s73, 0")
    a(f"s_lshr_b32 s{sT0}, s2, 3"); a(f"s_lshl_b32 s{sT0}, s{sT0}, 11")
    a(f"v_lshlrev_b32 v58, 7, v{vL}"); a(f"v_add_u32 v58, s{sT0}, v58")
    a(f"s_mov_b64 s[{sEX}:{sEX+1}], exec"); a("s_mov_b64 exec, 0xffff")
    a("v_cmp_gt_u32 vcc, CODE_BYTES, v58")
    a("s_and_b64 exec, exec, vcc")
    a("s_cbranch_execz L_icpf_rest")
    a("global_load_dword v60, v58, s[72:73]")
    a.label("L_icpf_rest")
    a(f"s_mov_b64 exec, s[{sEX}:{sEX+1}]")
    a.label("L_icpf_skip")

def a_setup(R):
    a = R.a
    a(f"s_lshl_b32 s{sM0}, s{sIDX}, 13")
    a(f"s_lshl_b32 s{sWp}, s{sIDX}, 14"); a(f"s_add_u32 s{sWp}, s{sWp}, {WB}")
    if cfg.pf:
        a(f"v_lshrrev_b32 v52, 3, v{vL}"); a("v_lshlrev_b32 v52, 13, v52")
        a(f"v_and_b32 v53, 7, v{vL}"); a("v_lshl_add_u32 v56, v53, 7, v52")
        a(f"s_mul_i32 s{sT2}, s{sB}, 28"); a(f"s_lshl_b32 s{sT3}, s{sIDX}, 3"); a(f"s_add_u32 s{sT2}, s{sT2}, s{sT3}")
        a(f"s_lshl_b32 s{sT2}, s{sT2}, 13")

def a_pf(R, which):
    a = R.a
    if not cfg.pf: return
    if which == "wq":
        R.vmem(f"buffer_load_dword v63, v56, {srd(SRD_WQ)}, s{sT2} offen {cfg.pf_flags}", "pf")
    else:
        a(f"v_lshlrev_b32 v58, 7, v{vL}")
        a(f"s_mul_i32 s{sT2}, s{sB}, 28672"); a(f"s_lshl_b32 s{sT3}, s{sIDX}, 13"); a(f"s_add_u32 s{sT2}, s{sT2}, s{sT3}")
        R.vmem(f"buffer_load_dword v62, v58, {srd(SRD_WO)}, s{sT2} offen {cfg.pf_flags}", "pf")

def a_setup2(R):
    a = R.a
    wq_dma_pattern(a, vWqA, vL, vGq, 52, 53)
    a(f"v_lshrrev_b32 v52, 3, v{vL}"); a("v_lshlrev_b32 v52, 9, v52")
    a(f"s_lshl_b32 s{sT1}, s{sIDX}, 15"); a(f"v_add_u32 v52, s{sT1}, v52")
    a(f"v_and_b32 v53, 7, v{vL}"); a(f"v_xor_b32 v54, v53, v{vGq}")
    a(f"v_lshl_add_u32 v{vKdE}, v54, 4, v52")
    a("v_xor_b32 v54, 4, v54"); a(f"v_lshl_add_u32 v{vKdO}, v54, 4, v52")
    a("v_lshrrev_b32 v54, 1, v53"); a(f"v_xor_b32 v54, v54, v{vGq}")
    a("v_lshl_add_u32 v54, v54, 5, v52")
    a(f"v_and_b32 v55, 1, v{vL}"); a(f"v_lshl_add_u32 v{vVd}, v55, 4, v54")

def a_setup3(R):
    a = R.a
    a(f"s_lshr_b32 s{sT0}, s{sIDX}, 1")
    a(f"s_and_b32 s{sT1}, s{sIDX}, 1")
    a(f"v_lshrrev_b32 v52, 1, v{vQ}")
    a(f"v_xor_b32 v53, v{vGq}, v52")
    a(f"v_xor_b32 v54, 4, v53")
    a(f"s_lshl_b32 s{sT2}, s{sT1}, 14")
    a(f"v_lshlrev_b32 v55, 7, v{vQ}")
    a(f"v_add_u32 v55, s{sT2}, v55")
    a(f"v_lshl_add_u32 v40, v53, 4, v55")
    a(f"v_lshl_add_u32 v41, v54, 4, v55")
    a(f"s_mul_i32 s{sT2}, s{sT0}, {48*128}")
    a(f"s_add_u32 s{sT2}, s{sT2}, {QB}")
    a(f"v_lshlrev_b32 v55, 7, v{vQ}")
    a(f"v_add_u32 v55, s{sT2}, v55")
    a(f"v_lshl_add_u32 v42, v53, 4, v55")
    a(f"v_lshl_add_u32 v43, v54, 4, v55")

def a_pair_init(R):
    a = R.a
    a(f"s_lshl_b32 s{sT0}, s{sIDX}, 4"); a(f"s_add_u32 s{sT0}, s{sT0}, {PFL}")
    a(f"v_mov_b32 v55, s{sT0}"); a("v_mov_b32 v56, 0")
    R.lds("ds_write_b32 v55, v56", "pf0")
    R.wait_lg_all()

def a_pair_addr(R):
    a = R.a
    a(f"s_lshl_b32 s{sT0}, s{sIDX}, 4"); a(f"s_add_u32 s{sT0}, s{sT0}, {PFL}")
    a(f"v_mov_b32 v55, s{sT0}"); a(f"s_xor_b32 s{sT0}, s{sT0}, 16"); a(f"v_mov_b32 v56, s{sT0}")

def a_pair_sync(R, j):
    a = R.a
    R.wait_lg_all()
    a(f"v_mov_b32 v57, {j+1}")
    a("ds_write_b32 v55, v57")
    a.label(f"L_ps{j}")
    a("ds_read_b32 v57, v56")
    a("s_waitcnt lgkmcnt(0)")
    a(f"v_readfirstlane_b32 s{sT0}, v57")
    a(f"s_cmp_lt_u32 s{sT0}, {j+1}")
    a(f"s_cbranch_scc1 L_ps{j}")

def kv_dma(R, kind, n, ii):
    a = R.a
    j, w = n >> 1, n & 1
    buf = KVA if w == 0 else KVB
    a(f"s_add_u32 m0, s{sM0}, {buf + 1024*ii}")
    a(f"s_add_u32 s{sT1}, s{sCOL+j}, {131072*w + 4096*ii}")
    if kind == "K":
        R.vmem(f"buffer_load_dwordx4 v{vKdE + (ii & 1)}, {srd(SRD_K)}, s{sT1} offen {cfg.k_flags} lds", f"K{n}")
    else:
        R.vmem(f"buffer_load_dwordx4 v{vVd}, {srd(SRD_V)}, s{sT1} offen {cfg.v_flags} lds", f"V{n}")
def a_issue_KV(R, kind, n):
    R.a.comment(f"---- issue {kind} window {n}")
    for ii in range(8): kv_dma(R, kind, n, ii)

def a0_flag_zero(R):
    a = R.a
    a(f"s_or_b32 s{sT0}, s{sG}, s{sIDX}"); a(f"s_cmp_lg_u32 s{sT0}, 0"); a("s_cbranch_scc1 L_fz_skip")
    a(f"s_mul_i32 s{sT0}, s{sGRP}, {FSTR}"); a(f"s_add_u32 s{sT0}, s{sT0}, {FLG}")
    a(f"v_lshlrev_b32 v58, 2, v{vL}"); a("v_mov_b32 v59, 0")
    a(f"s_mov_b64 s[{sEX}:{sEX+1}], exec"); a("s_mov_b32 exec_hi, 0")
    a(f"buffer_store_dword v59, v58, {srd(SRD_WS)}, s{sT0} offen sc0 sc1")
    a(f"s_mov_b64 exec, s[{sEX}:{sEX+1}]")
    a.label("L_fz_skip")

def a0_flag_mark(R):
    a = R.a
    a(f"s_or_b32 s{sT0}, s{sG}, s{sIDX}"); a(f"s_cmp_lg_u32 s{sT0}, 0"); a("s_cbranch_scc1 L_fm_skip")
    a(f"s_lshl_b32 s{sT0}, s{sGRP}, 2"); a(f"v_mov_b32 v58, s{sT0}"); a("v_mov_b32 v59, 1")
    a(f"s_mov_b64 s[{sEX}:{sEX+1}], exec"); a("s_mov_b64 exec, 1")
    a(f"global_store_dword v58, v59, s[{sDBG}:{sDBG+1}] sc0 sc1")
    a(f"s_mov_b64 exec, s[{sEX}:{sEX+1}]")
    a.label("L_fm_skip")

def a_flag_load(R):
    a = R.a
    a(f"s_lshl_b32 s{sT0}, s{sGRP}, 2"); a(f"v_mov_b32 v58, s{sT0}")
    R.vmem(f"global_load_dword v59, v58, s[{sDBG}:{sDBG+1}] sc0 sc1", "chk")
def a_flag_check(R):
    a = R.a
    R.wait_vm("chk")
    a(f"s_mov_b32 s{sT2}, 0")
    a.label("L_fc_poll")
    a(f"v_readfirstlane_b32 s{sT1}, v59")
    a(f"s_cmp_eq_u32 s{sT1}, 1"); a("s_cbranch_scc1 L_fc_skip")
    a(f"s_add_u32 s{sT2}, s{sT2}, 1"); a(f"s_cmp_ge_u32 s{sT2}, 400000"); a("s_cbranch_scc1 L_fc_skip")
    a("s_sleep 2")
    a(f"global_load_dword v59, v58, s[{sDBG}:{sDBG+1}] sc0 sc1")
    a("s_waitcnt vmcnt(0)")
    a("s_branch L_fc_poll")
    a.label("L_fc_skip")

T1, T2 = WB, WB + 32768
def a_S(R, n, dma=None):
    a = R.a
    j, w = n >> 1, n & 1
    buf = KVA if w == 0 else KVB
    if n >= 6:
        if n == 6:
            for s2 in range(2): a(f"v_add_u32 v{40+s2}, {T1}, v{40+s2}")
        buf = 0 if n == 6 else 32768
    if w == 0:
        for s in range(2):
            for nt in range(3):
                R.lds(f"ds_read_b128 {vr(Qf(s,nt))}, v{42+s} offset:{12288*(j & 1) + 2048*nt}", "q")
    frs = [(i, s) for i in range(8) for s in range(2)]
    NB = 4
    def rd(k):
        i, s = frs[k]
        R.lds(f"ds_read_b128 {vr(KF + 4*(k % NB))}, v{40+s} offset:{buf + 2048*i}", f"kf{k}")
    for k in range(NB-1): rd(k)
    if dma and not cfg.interleave:
        for ii in range(8): kv_dma(R, dma[0], dma[1], ii)
        dma = None
    for k, (i, s) in enumerate(frs):
        if k + NB - 1 < len(frs): rd(k + NB - 1)
        if dma and k < 8: kv_dma(R, dma[0], dma[1], k)
        R.wait_lg(f"kf{k}")
        for nt in range(3):
            d = S_(8*w + i, nt)
            c = "0" if (j == 0 and s == 0) else vr(d)
            a(f"v_mfma_f32_16x16x32_bf16 {vr(d)}, {vr(KF + 4*(k % NB))}, {vr(Qf(s,nt))}, {c}")

M1 = (52, 54, 56)
L1 = (53, 55, 57)
BETA = (0, 2, 4); ALO = (6, 8, 10); ALP = (12, 14, 16)
ONES1, ONES2 = 36, 20
def Pf(w, s, nt): return S_(8*w + 2*s, nt)
def Oa(mt, nt): return S_(2*mt + 1, nt)
def XT(i, nt): return S_(9 + 2*i, nt)

def _rowmax(a, tiles, dst, tmp):
    for nt in range(3):
        m = dst[nt]
        vals = [S_(t, nt) + r for t in tiles for r in range(4)]
        a(f"v_max3_f32 v{m}, v{vals[0]}, v{vals[1]}, v{vals[2]}")
        a(f"v_max3_f32 v{tmp}, v{vals[3]}, v{vals[4]}, v{vals[5]}")
        k = 6
        while k + 3 < len(vals):
            a(f"v_max3_f32 v{m}, v{m}, v{vals[k]}, v{vals[k+1]}")
            a(f"v_max3_f32 v{tmp}, v{tmp}, v{vals[k+2]}, v{vals[k+3]}")
            k += 4
        rest = vals[k:]
        assert len(rest) == 2
        a(f"v_max3_f32 v{m}, v{m}, v{rest[0]}, v{rest[1]}")
        a(f"v_max_f32 v{m}, v{m}, v{tmp}")
    for nt in range(3):
        m = dst[nt]
        a(f"v_mov_b32 v{tmp+nt}, v{m}")
    for nt in range(3):
        a(f"v_permlane32_swap_b32 v{tmp+nt}, v{dst[nt]}")
    for nt in range(3):
        a(f"v_max_f32 v{dst[nt]}, v{tmp+nt}, v{dst[nt]}")
    for nt in range(3):
        a(f"v_mov_b32 v{tmp+nt}, v{dst[nt]}")
    for nt in range(3):
        a(f"v_permlane16_swap_b32 v{tmp+nt}, v{dst[nt]}")
    for nt in range(3):
        a(f"v_max_f32 v{dst[nt]}, v{tmp+nt}, v{dst[nt]}")
        a(f"v_mul_f32 v{dst[nt]}, s{sC}, v{dst[nt]}")

def _exppack(a, t0s, mreg):
    for t0 in t0s:
        for nt in range(3):
            m = mreg[nt]
            b0, b1 = S_(t0, nt), S_(t0+1, nt)
            for b in (b0, b0+2, b1, b1+2):
                a(f"v_pk_fma_f32 {vr(b,2)}, {vr(b,2)}, s[{sC}:{sC+1}], {vr(m,2)} op_sel_hi:[1,1,0] neg_lo:[0,0,1] neg_hi:[0,0,1]")
            src = [b0+r for r in range(4)] + [b1+r for r in range(4)]
            for v in src: a(f"v_exp_f32 v{v}, v{v}")
            a(f"v_cvt_pk_bf16_f32 v{b0}, v{src[0]}, v{src[1]}")
            a(f"v_cvt_pk_bf16_f32 v{b0+1}, v{src[2]}, v{src[3]}")
            a(f"v_cvt_pk_bf16_f32 v{b0+2}, v{src[4]}, v{src[5]}")
            a(f"v_cvt_pk_bf16_f32 v{b0+3}, v{src[6]}, v{src[7]}")

def _rowsum(a, w, ones, acc):
    for r in range(4): a(f"v_mov_b32 v{ones+r}, 0x3f803f80")
    for s in range(4):
        for nt in range(3):
            c = "0" if s == 0 else vr(acc(nt))
            a(f"v_mfma_f32_16x16x32_bf16 {vr(acc(nt))}, {vr(ones)}, {vr(Pf(w,s,nt))}, {c}")

def a_softmax1(R):
    a = R.a
    _rowmax(a, range(0, 8), M1, 24)
    _exppack(a, (0, 2, 4, 6), M1)
    _rowsum(a, 0, ONES1, lambda nt: S_(1, nt))
    for nt in range(3): a(f"v_mov_b32 v{L1[nt]}, v{S_(1,nt)}")

def a_softmax2(R):
    a = R.a
    M2 = (24, 26, 28)
    _rowmax(a, range(8, 16), M2, 30)
    for nt in range(3):
        a(f"v_max_f32 v{M2[nt]}, v{M2[nt]}, v{M1[nt]}")
        a(f"v_sub_f32 v{BETA[nt]}, v{M1[nt]}, v{M2[nt]}")
    for nt in range(3): a(f"v_exp_f32 v{BETA[nt]}, v{BETA[nt]}")
    _exppack(a, (8, 10, 12, 14), M2)
    _rowsum(a, 1, ONES2, lambda nt: S_(13, nt))
    a_vaddr(R)
    for nt in range(3):
        a(f"v_fma_f32 v{M2[nt]+1}, v{BETA[nt]}, v{L1[nt]}, v{S_(13,nt)}")
    for nt in range(3):
        R.lds(f"ds_write_b64 v59, {vr(M2[nt],2)} offset:{128*nt}", "st")
    for nt in range(3):
        a(f"v_mov_b32 v{18+2*nt}, v{M2[nt]}"); a(f"v_mov_b32 v{19+2*nt}, v{M2[nt]+1}")
    R.wait_lg_all()

vXW, vXR, vOW = 52, 53, 54
def a_vaddr(R):
    a = R.a
    a(f"s_and_b32 s{sT1}, s{sIDX}, 1")
    a(f"v_lshrrev_b32 v32, 2, v{vL}")
    a(f"v_lshrrev_b32 v33, 1, v32"); a("v_and_b32 v33, 3, v33")
    a(f"s_lshl_b32 s{sT2}, s{sT1}, 14")
    a(f"v_lshlrev_b32 v34, 7, v32"); a(f"v_add_u32 v34, s{sT2}, v34")
    a(f"v_and_b32 v35, 3, v{vL}"); a(f"v_lshl_add_u32 v34, v35, 3, v34")
    a(f"s_lshl_b32 s{sT2}, s{sT1}, 1")
    a(f"v_xor_b32 v33, s{sT2}, v33")
    for mt in range(4):
        a(f"v_xor_b32 v35, {mt}, v33")
        a(f"v_lshl_add_u32 v{40+mt}, v35, 5, v34")
    a(f"s_mul_i32 s{sT0}, s{sIDX}, 384"); a(f"s_add_u32 s{sT0}, s{sT0}, {STAT}")
    a(f"v_lshlrev_b32 v59, 3, v{vQ}"); a(f"v_add_u32 v59, s{sT0}, v59")
    a(f"s_xor_b32 s{sT1}, s{sIDX}, 1"); a(f"s_mul_i32 s{sT1}, s{sT1}, 384"); a(f"s_add_u32 s{sT1}, s{sT1}, {STAT}")
    a(f"v_lshlrev_b32 v60, 3, v{vQ}"); a(f"v_add_u32 v60, s{sT1}, v60")

def a_alpha(R):
    a = R.a
    M2 = (18, 20, 22)
    for nt in range(3):
        R.lds(f"ds_read_b64 v[{32+2*nt}:{33+2*nt}], v60 offset:{128*nt}", "st")
    a(f"s_mul_i32 s{sT2}, s{sIDX}, 6144"); a(f"s_add_u32 s{sT2}, s{sT2}, {XB}")
    a(f"v_lshlrev_b32 v55, 4, v{vL}"); a(f"v_add_u32 v{vXW}, s{sT2}, v55")
    a(f"s_xor_b32 s{sT2}, s{sIDX}, 1"); a(f"s_mul_i32 s{sT2}, s{sT2}, 6144"); a(f"s_add_u32 s{sT2}, s{sT2}, {XB}")
    a(f"v_add_u32 v{vXR}, s{sT2}, v55")
    a(f"s_and_b32 s{sT1}, s{sIDX}, 1")
    a(f"s_lshr_b32 s{sT0}, s{sIDX}, 1"); a(f"s_mul_i32 s{sT2}, s{sT0}, {48*128}"); a(f"s_add_u32 s{sT2}, s{sT2}, {OB}")
    a(f"v_lshlrev_b32 v{vOW}, 7, v{vQ}"); a(f"v_add_u32 v{vOW}, s{sT2}, v{vOW}")
    a(f"s_lshl_b32 s{sT3}, s{sT1}, 2")
    a(f"v_or_b32 v55, s{sT3}, v{vGq}")
    a(f"v_lshrrev_b32 v56, 1, v{vQ}"); a("v_xor_b32 v55, v55, v56")
    a(f"v_lshl_add_u32 v{vOW}, v55, 4, v{vOW}")
    R.wait_lg_all()
    for nt in range(3):
        mo, lo = 32 + 2*nt, 33 + 2*nt
        m, l = M2[nt], M2[nt] + 1
        a(f"v_max_f32 v38, v{m}, v{mo}")
        a(f"v_sub_f32 v{ALO[nt]}, v{m}, v38"); a(f"v_sub_f32 v{ALP[nt]}, v{mo}, v38")
        a(f"v_exp_f32 v{ALO[nt]}, v{ALO[nt]}"); a(f"v_exp_f32 v{ALP[nt]}, v{ALP[nt]}")
        a(f"v_mul_f32 v38, v{l}, v{ALO[nt]}")
        a(f"v_fma_f32 v38, v{lo}, v{ALP[nt]}, v38")
        a("v_rcp_f32 v38, v38")
        a(f"v_mul_f32 v{ALO[nt]}, v{ALO[nt]}, v38"); a(f"v_mul_f32 v{ALP[nt]}, v{ALP[nt]}, v38")

def a_PV(R, n, dma=None):
    a = R.a
    j, w = n >> 1, n & 1
    buf = KVA if w == 0 else KVB
    frs = [(s, mt) for s in range(4) for mt in range(4)]
    if w == 1: frs = frs[:12] + [(3, 2), (3, 3), (3, 0), (3, 1)]
    NB = 4
    def rd(k):
        s, mt = frs[k]
        b = KF + 4*(k % NB)
        R.lds(f"ds_read_b64_tr_b16 {vr(b,2)}, v{40+mt} offset:{buf + 4096*s}", f"vf{k}")
        R.lds(f"ds_read_b64_tr_b16 {vr(b+2,2)}, v{40+mt} offset:{buf + 4096*s + 2048}", f"vf{k}")
    for k in range(NB-1): rd(k)
    if dma and not cfg.interleave:
        for ii in range(8): kv_dma(R, dma[0], dma[1], ii)
        dma = None
    for k, (s, mt) in enumerate(frs):
        if k + NB - 1 < len(frs): rd(k + NB - 1)
        if dma and k < 8: kv_dma(R, dma[0], dma[1], k)
        R.wait_lg(f"vf{k}")
        for nt in range(3):
            d = Oa(mt, nt)
            c = "0" if (w == 0 and s == 0) else vr(d)
            a(f"v_mfma_f32_16x16x32_bf16 {vr(d)}, {vr(KF + 4*(k % NB))}, {vr(Pf(w,s,nt))}, {c}")
        if w == 1 and k >= 14:
            m2 = k - 12
            for nt in range(3):
                R.lds(f"ds_write_b128 v{vXW}, {vr(Oa(m2,nt))} offset:{((m2-2)*3+nt)*1024}", "xw")

def a_rescale(R):
    a = R.a
    for mt in range(4):
        for nt in range(3):
            if cfg.unpack:
                for r in range(4): a(f"v_mul_f32 v{Oa(mt,nt)+r}, v{BETA[nt]}, v{Oa(mt,nt)+r}")
                continue
            for h2 in (0, 2):
                b = Oa(mt, nt) + h2
                a(f"v_pk_mul_f32 {vr(b,2)}, {vr(b,2)}, {vr(BETA[nt],2)} op_sel_hi:[1,0]")

def a_xwrite(R):
    a = R.a
    for mt in (2, 3):
        for nt in range(3):
            R.lds(f"ds_write_b128 v{vXW}, {vr(Oa(mt,nt))} offset:{((mt-2)*3+nt)*1024}", "xw")

def a_xfinal(R, dma=None):
    a = R.a
    for nt in range(3):
        for i in range(2):
            R.lds(f"ds_read_b128 {vr(XT(i,nt))}, v{vXR} offset:{(i*3+nt)*1024}", f"xr{nt}")
    if dma:
        for ii in range(8): kv_dma(R, dma[0], dma[1], ii)
    for nt in range(3):
        for i in range(2):
            if cfg.unpack:
                for r in range(4): a(f"v_mul_f32 v{Oa(i,nt)+r}, v{ALO[nt]}, v{Oa(i,nt)+r}")
                continue
            for h2 in (0, 2):
                b = Oa(i, nt) + h2
                a(f"v_pk_mul_f32 {vr(b,2)}, {vr(b,2)}, {vr(ALO[nt],2)} op_sel_hi:[1,0]")
    for nt in range(3):
        R.wait_lg(f"xr{nt}")
        for i in range(2):
            if cfg.unpack:
                for r in range(4): a(f"v_fma_f32 v{Oa(i,nt)+r}, v{XT(i,nt)+r}, v{ALP[nt]}, v{Oa(i,nt)+r}")
                continue
            for h2 in (0, 2):
                b, x = Oa(i, nt) + h2, XT(i, nt) + h2
                a(f"v_pk_fma_f32 {vr(b,2)}, {vr(x,2)}, {vr(ALP[nt],2)}, {vr(b,2)} op_sel_hi:[1,0,1]")
        d = XT(0, nt)
        a(f"v_cvt_pk_bf16_f32 v{d}, v{Oa(0,nt)}, v{Oa(0,nt)+1}")
        a(f"v_cvt_pk_bf16_f32 v{d+1}, v{Oa(0,nt)+2}, v{Oa(0,nt)+3}")
        a(f"v_cvt_pk_bf16_f32 v{d+2}, v{Oa(1,nt)}, v{Oa(1,nt)+1}")
        a(f"v_cvt_pk_bf16_f32 v{d+3}, v{Oa(1,nt)+2}, v{Oa(1,nt)+3}")
        R.lds(f"ds_write_b128 v{vOW}, {vr(d)} offset:{2048*nt}", "ow")

PRING = 0
vWqD = 20
vWqR = 21
vQW = 25
PT = 26
vWqR5 = 35
def Xf(s, nt): return 40 + (s*3 + nt)*4
def Qa(mt, nt): return 208 + (mt*3 + nt)*4

def p_lane(a):
    a(f"v_mbcnt_lo_u32_b32 v{PT}, -1, 0"); a(f"v_mbcnt_hi_u32_b32 v{PT}, -1, v{PT}")
    a(f"v_and_b32 v{PT+1}, 15, v{PT}"); a(f"v_lshrrev_b32 v{PT+2}, 4, v{PT}")

def p_setup(R):
    a = R.a
    l, q, g = PT, PT+1, PT+2
    p = sIDX
    p_lane(a)
    a(f"s_mul_i32 s{sXo}, s{p}, 896")
    a(f"s_lshr_b32 s{sT0}, s{p}, 1")
    a(f"v_xor_b32 v{PT+3}, s{sT0}, v{l}"); a(f"v_lshlrev_b32 v{PT+3}, 4, v{PT+3}")
    for k in range(4):
        a(f"v_xor_b32 v{PT+4+k}, {(2*k) << 4}, v{PT+3}")
    a(f"s_mov_b64 s[{sEX}:{sEX+1}], exec")
    a("s_mov_b32 exec_hi, 0x00ffffff")
    for ii in range(12):
        base = (KVB + 3584*ii) if ii < 8 else (QB + 3584*(ii-8))
        a(f"s_add_u32 m0, s{sXo}, {base}")
        a(f"s_add_u32 s{sT1}, s{sXo}, {3584*ii}")
        R.vmem(f"buffer_load_dwordx4 v{PT+4 + (ii % 4)}, {srd(SRD_X)}, s{sT1} offen lds", "x")
    a(f"s_mov_b64 exec, s[{sEX}:{sEX+1}]")

def p_setup2(R):
    a = R.a
    l, q, g = PT, PT+1, PT+2
    p = sIDX
    a(f"s_lshl_b32 s{sWp}, s{p}, 14"); a(f"s_add_u32 s{sWp}, s{sWp}, {WB}")
    wq_dma_pattern(a, vWqD, l, g, PT+3, PT+4)
    a(f"v_lshrrev_b32 v{PT+3}, 2, v{l}")
    a(f"v_lshrrev_b32 v{PT+4}, 1, v{PT+3}"); a(f"v_and_b32 v{PT+4}, 3, v{PT+4}")
    a(f"v_lshlrev_b32 v{PT+5}, 7, v{PT+3}"); a(f"v_add_u32 v{PT+5}, s{sWp}, v{PT+5}")
    a(f"v_and_b32 v{PT+6}, 3, v{l}"); a(f"v_lshl_add_u32 v{PT+5}, v{PT+6}, 3, v{PT+5}")
    for mt in range(4):
        a(f"v_xor_b32 v{PT+6}, {mt}, v{PT+4}")
        a(f"v_lshl_add_u32 v{vWqR+mt}, v{PT+6}, 5, v{PT+5}")
    a(f"s_and_b32 s{sT0}, s{sIDX}, 1"); a(f"s_mul_i32 s{sT0}, s{sT0}, {48*128}")
    a(f"s_lshr_b32 s{sT1}, s{sIDX}, 1"); a(f"s_mul_i32 s{sT1}, s{sT1}, 12288")
    a(f"s_add_u32 s{sT0}, s{sT0}, s{sT1}"); a(f"s_add_u32 s{sT0}, s{sT0}, {QB}")
    a(f"v_lshlrev_b32 v{PT+5}, 7, v{q}"); a(f"v_add_u32 v{PT+5}, s{sT0}, v{PT+5}")
    a(f"v_and_b32 v{PT+6}, 1, v{g}"); a(f"v_lshl_add_u32 v{PT+5}, v{PT+6}, 3, v{PT+5}")
    a(f"v_lshrrev_b32 v{PT+6}, 1, v{g}"); a(f"v_lshrrev_b32 v{PT+3}, 1, v{q}"); a(f"v_xor_b32 v{PT+6}, v{PT+6}, v{PT+3}")
    a(f"v_lshl_add_u32 v{vQW}, v{PT+6}, 4, v{PT+5}")
    a(f"v_lshrrev_b32 v{PT+3}, 1, v{q}")
    a(f"v_lshrrev_b32 v{PT+4}, 1, v{g}"); a(f"v_xor_b32 v{PT+4}, v{PT+4}, v{PT+3}")
    a(f"s_mov_b32 s{sT0}, 896"); a(f"v_mul_lo_u32 v{PT+5}, s{sT0}, v{q}")
    a(f"v_and_b32 v{PT+6}, 1, v{g}"); a(f"v_lshl_add_u32 v{PT+5}, v{PT+6}, 3, v{PT+5}")
    a(f"v_add_u32 v{PT+5}, {KVB}, v{PT+5}")
    for k in range(4):
        a(f"v_xor_b32 v{PT+6}, {2*k}, v{PT+4}")
        a(f"v_lshl_add_u32 v{PT+7+k}, v{PT+6}, 4, v{PT+5}")

def p_xfrags(R):
    a = R.a
    for pas in range(2):
        for s in range(14):
            for nt in ((0, 1) if pas == 0 else (2,)):
                for half in range(2):
                    k = 2*(s & 1) + half
                    off = (14336*nt if pas == 0 else 0) + 128*(s >> 1)
                    R.lds_guard(1)
                    R.lds(f"ds_read_b64 {vr(Xf(s,nt)+2*half,2)}, v{PT+7+k} offset:{off}", "xf")
        if pas == 0:
            R.wait_lg_all()
            for k in range(4): a(f"v_add_u32 v{PT+7+k}, {QB-KVB}, v{PT+7+k}")
    R.wait_lg_all()

def p_qcompute(R, kaps, stream_next, hooks=None):
    a = R.a
    D = cfg.dq; NB = D + 1
    hooks = hooks or {}
    frs = [(kap, mt) for kap in kaps for mt in range(4)]
    def rd(f):
        kap, mt = frs[f]
        if mt == 0: R.wait_vm(f"w{kap}")
        b = PRING + 4*(f % NB)
        area, off = wq_slot(kap)
        ad = (vWqR if area == 'own' else vWqR5) + mt
        R.lds(f"ds_read_b64_tr_b16 {vr(b,2)}, v{ad} offset:{off}", f"f{kap}_{mt}")
        R.lds(f"ds_read_b64_tr_b16 {vr(b+2,2)}, v{ad} offset:{off + 2048}", f"f{kap}_{mt}")
    for f in range(min(D, len(frs))): rd(f)
    for f, (kap, mt) in enumerate(frs):
        J, s = divmod(kap, 14)
        if f + D < len(frs): rd(f + D)
        if stream_next and cfg.j0s5 and kap >= 1 and kap + 4 < 14: wq_dma(R, kap + 4, vWqD, [mt])
        R.wait_lg(f"f{kap}_{mt}")
        if cfg.kst and mt == 0 and kap < 14 and kap % 2 == 0: lstamp(a, 26 + kap // 2)
        for nt in range(3):
            d = Qa(mt, nt)
            c = "0" if s == 0 else vr(d)
            a(f"v_mfma_f32_16x16x32_bf16 {vr(d)}, {vr(PRING + 4*(f % NB))}, {vr(Xf(s,nt))}, {c}")
        if stream_next and not cfg.j0s5 and mt == 3 and kap + NSLOT_Q < 14: wq_dma(R, kap + NSLOT_Q, vWqD)
        if mt == 3 and kap in hooks: hooks[kap]()
    last = kaps[-1]
    if last % 14 == 13:
        if cfg.kst and last == 13: lstamp(a, 33)
        k = 0
        for m2 in range(4):
            a(f"v_xor_b32 v{PT+8}, {32*m2}, v{vQW}")
            for nt in range(3):
                d = Qa(m2, nt)
                t = PT + 2*(k % 4); k += 1
                a(f"v_cvt_pk_bf16_f32 v{t}, v{d}, v{d+1}")
                a(f"v_cvt_pk_bf16_f32 v{t+1}, v{d+2}, v{d+3}")
                R.lds_guard(1)
                R.lds(f"ds_write_b64 v{PT+8}, {vr(t,2)} offset:{2048*nt}", "qw")
        R.wait_lg("qw")

ORING = 0
vWoD = 32
vWoR = 34
vOR = 42
VT = 48
ALT = 208
PUB = [216 + 4*i for i in range(10)] + [20, 24]
def Outa(i, nt): return 64 + (i*3 + nt)*4
def Of(ks, nt): return 160 + (ks*3 + nt)*4

def p_vsetup(R, wide):
    a = R.a
    l, q, g = VT, VT+1, VT+2
    a(f"v_mbcnt_lo_u32_b32 v{l}, -1, 0"); a(f"v_mbcnt_hi_u32_b32 v{l}, -1, v{l}")
    a(f"v_and_b32 v{q}, 15, v{l}"); a(f"v_lshrrev_b32 v{g}, 4, v{l}")
    a(f"s_lshl_b32 s{sT0}, s{sIDX}, 8")
    if wide:
        a(f"v_bfe_u32 v{VT+3}, v{l}, 1, 3"); a(f"v_xor_b32 v{VT+3}, v{VT+3}, v{g}")
        a(f"s_mov_b32 s{sT1}, 896"); a(f"v_mul_lo_u32 v{VT+4}, s{sT1}, v{g}")
        a(f"v_and_b32 v{VT+5}, 1, v{l}"); a(f"v_lshl_add_u32 v{VT+4}, v{VT+5}, 4, v{VT+4}")
        a(f"v_add_u32 v{VT+4}, s{sT0}, v{VT+4}")
        a(f"v_lshl_add_u32 v{vWoD}, v{VT+3}, 5, v{VT+4}")
        a(f"v_xor_b32 v{VT+3}, 4, v{VT+3}"); a(f"v_lshl_add_u32 v{vWoD+1}, v{VT+3}, 5, v{VT+4}")
        a(f"v_lshrrev_b32 v{VT+3}, 2, v{l}"); a(f"v_and_b32 v{VT+4}, 7, v{VT+3}")
        a(f"v_lshlrev_b32 v{VT+5}, 8, v{VT+3}")
    else:
        a(f"v_lshrrev_b32 v{VT+3}, 3, v{l}"); a(f"s_mov_b32 s{sT1}, 896"); a(f"v_mul_lo_u32 v{VT+4}, s{sT1}, v{VT+3}")
        a(f"v_bfe_u32 v{VT+3}, v{l}, 1, 2"); a(f"v_xor_b32 v{VT+3}, v{VT+3}, v{g}")
        a(f"v_lshl_add_u32 v{VT+4}, v{VT+3}, 5, v{VT+4}")
        a(f"v_and_b32 v{VT+5}, 1, v{l}"); a(f"v_lshl_add_u32 v{VT+4}, v{VT+5}, 4, v{VT+4}")
        a(f"v_add_u32 v{vWoD}, s{sT0}, v{VT+4}")
        a(f"v_lshrrev_b32 v{VT+3}, 2, v{l}")
        a(f"v_lshrrev_b32 v{VT+4}, 1, v{VT+3}"); a(f"v_and_b32 v{VT+4}, 3, v{VT+4}")
        a(f"v_lshlrev_b32 v{VT+5}, 7, v{VT+3}")
    a(f"v_and_b32 v{VT+6}, 3, v{l}"); a(f"v_lshl_add_u32 v{VT+5}, v{VT+6}, 3, v{VT+5}")
    a(f"s_lshl_b32 s{sT1}, s{sIDX}, 13")
    for mt in range(8 if wide else 4):
        a(f"v_xor_b32 v{VT+6}, {mt}, v{VT+4}")
        a(f"v_lshl_add_u32 v{VT+7}, v{VT+6}, 5, v{VT+5}")
        a(f"v_add_u32 v{vWoR+mt}, s{sWp}, v{VT+7}")
        a(f"v_add_u32 v{ALT+mt}, s{sT1}, v{VT+7}")
    a(f"v_lshrrev_b32 v{VT+3}, 1, v{q}"); a(f"v_xor_b32 v{VT+3}, v{g}, v{VT+3}")
    a(f"v_lshlrev_b32 v{VT+4}, 7, v{q}"); a(f"v_add_u32 v{VT+4}, {OB}, v{VT+4}")
    a(f"v_lshl_add_u32 v{vOR}, v{VT+3}, 4, v{VT+4}")
    a(f"v_xor_b32 v{VT+3}, 4, v{VT+3}"); a(f"v_lshl_add_u32 v{vOR+1}, v{VT+3}, 4, v{VT+4}")
    a(f"s_lshl_b32 s{sM0}, s{sIDX}, 13")

def wo_slot(kap, wide):
    slot = 8192 if wide else 4096
    special = {14: ('kv', KVA), 15: ('kv', KVB)}
    if kap in special: return special[kap]
    return ('own', (kap % 2)*slot)

def wo_dma(R, kap, wide, ii_list=None):
    a = R.a
    j, ks = divmod(kap, 4); h, s = divmod(ks, 2)
    row0 = 256*h + 32*s
    area, off = wo_slot(kap, wide)
    base = sWp if area == 'own' else sM0
    for ii in (ii_list if ii_list is not None else range(8 if wide else 4)):
        a(f"s_add_u32 m0, s{base}, {off + 1024*ii}")
        rows = 4*ii if wide else 8*ii
        a(f"s_add_u32 s{sT1}, s{sCOL+4+j}, {(row0 + rows)*896}")
        pat = vWoD + ((ii & 1) if wide else 0)
        R.vmem(f"buffer_load_dwordx4 v{pat}, {srd(SRD_WO)}, s{sT1} offen {cfg.w_flags} lds", f"o{kap}")

def p_ofrags(R):
    for k2 in range(4):
        for nt in range(3):
            R.lds_guard(1)
            R.lds(f"ds_read_b128 {vr(Of(k2,nt))}, v{vOR + (k2 & 1)} offset:{6144*(k2 >> 1) + 2048*nt}", f"of{k2}")

vPK0, vPK1, vPV, vPF = 44, 45, 46, 56
def p_kv_setup(R, first=False):
    a = R.a
    l, g = VT, VT+2
    a(f"s_lshl_b32 s{sM0}, s{sIDX}, 13")
    a(f"v_mbcnt_lo_u32_b32 v{l}, -1, 0"); a(f"v_mbcnt_hi_u32_b32 v{l}, -1, v{l}"); a(f"v_lshrrev_b32 v{g}, 4, v{l}")
    a(f"v_lshrrev_b32 v{VT+3}, 3, v{l}"); a(f"v_lshlrev_b32 v{VT+3}, 9, v{VT+3}")
    a(f"s_lshl_b32 s{sT1}, s{sIDX}, 15"); a(f"v_add_u32 v{VT+3}, s{sT1}, v{VT+3}")
    a(f"v_and_b32 v{VT+4}, 7, v{l}"); a(f"v_xor_b32 v{VT+5}, v{VT+4}, v{g}")
    a(f"v_lshl_add_u32 v{vPK0}, v{VT+5}, 4, v{VT+3}")
    a(f"v_xor_b32 v{VT+5}, 4, v{VT+5}"); a(f"v_lshl_add_u32 v{vPK1}, v{VT+5}, 4, v{VT+3}")
    a(f"v_lshrrev_b32 v{VT+5}, 1, v{VT+4}"); a(f"v_xor_b32 v{VT+5}, v{VT+5}, v{g}")
    a(f"v_lshl_add_u32 v{VT+5}, v{VT+5}, 5, v{VT+3}")
    a(f"v_and_b32 v{VT+4}, 1, v{l}"); a(f"v_lshl_add_u32 v{vPV}, v{VT+4}, 4, v{VT+5}")
    a(f"v_lshlrev_b32 v{vPF}, 7, v{l}")

def p_issue_KV(R, kind, n):
    a = R.a
    j, w = n >> 1, n & 1
    buf = KVA if w == 0 else KVB
    if kind == "K" and n >= 6: buf = T1 if n == 6 else T2
    for ii in range(8):
        a(f"s_add_u32 m0, s{sM0}, {buf + 1024*ii}")
        a(f"s_add_u32 s{sT1}, s{sCOL+j}, {131072*w + 4096*ii}")
        if kind == "K": R.vmem(f"buffer_load_dwordx4 v{vPK0 + (ii & 1)}, {srd(SRD_K)}, s{sT1} offen {cfg.k_flags} lds", f"K{n}")
        else: R.vmem(f"buffer_load_dwordx4 v{vPV}, {srd(SRD_V)}, s{sT1} offen {cfg.v_flags} lds", f"V{n}")

def p_pf_wo(R):
    a = R.a
    if not cfg.pf: return
    a(f"s_mul_i32 s{sT2}, s{sB}, 28672"); a(f"s_lshl_b32 s{sT3}, s{sIDX}, 13"); a(f"s_add_u32 s{sT2}, s{sT2}, s{sT3}")
    R.vmem(f"buffer_load_dword v57, v{vPF}, {srd(SRD_WO)}, s{sT2} offen {cfg.pf_flags}", "pf")

def p_of(R, k2):
    for nt in range(3):
        R.lds_guard(1)
        R.lds(f"ds_read_b128 {vr(Of(k2,nt))}, v{vOR + (k2 & 1)} offset:{6144*(k2 >> 1) + 2048*nt}", f"of{k2}")

def p_ocompute(R, kaps, wide, inter=None, ofr=False):
    a = R.a
    NT = 8 if wide else 4
    D = 4; NB = 5
    rowb = 256 if wide else 128
    inter = inter or {}
    frs = [(kap, mt) for kap in kaps for mt in range(NT)]
    def rd(f):
        kap, mt = frs[f]
        if mt == 0: R.wait_vm(f"o{kap}")
        b = ORING + 4*(f % NB)
        area, off = wo_slot(kap, wide)
        addr = (vWoR if area == 'own' else ALT) + mt
        R.lds_guard(2)
        R.lds(f"ds_read_b64_tr_b16 {vr(b,2)}, v{addr} offset:{off}", f"f{kap}_{mt}")
        R.lds(f"ds_read_b64_tr_b16 {vr(b+2,2)}, v{addr} offset:{off + 16*rowb}", f"f{kap}_{mt}")
    if ofr: p_of(R, 0)
    for f in range(D): rd(f)
    for f, (kap, mt) in enumerate(frs):
        j, ks = divmod(kap, 4)
        if f + D < len(frs): rd(f + D)
        if ofr and f < 3: p_of(R, f + 1)
        for (k2, ii) in inter.get(f, []): wo_dma(R, k2, wide, [ii])
        R.wait_lg(f"f{kap}_{mt}")
        if mt == 0: R.wait_lg(f"of{ks}")
        for nt in range(3):
            d = Outa(mt, nt)
            c = "0" if kap == 0 else vr(d)
            a(f"v_mfma_f32_16x16x32_bf16 {vr(d)}, {vr(ORING + 4*(f % NB))}, {vr(Of(ks,nt))}, {c}")
        if cfg.tst and mt == NT - 1 and kap >= 10: lstamp(a, 26 + kap - 10)

def p_oproj_phase(R, bar, wide):
    a = R.a
    NT = 8 if wide else 4
    nbar = 0
    def b1():
        nonlocal nbar
        bar(); nbar += 1
    b1()
    if cfg.wo_first_after >= 6: wo_dma(R, 0, wide); wo_dma(R, 1, wide)
    b1()
    for j in range(3):
        a.comment(f"---- O projection chunk {j}")
        p_ocompute(R, [4*j, 4*j+1], wide, ofr=True)
        wo_dma(R, 4*j+2, wide); wo_dma(R, 4*j+3, wide)
        b1()
        if j < 2:
            p_ocompute(R, [4*j+2, 4*j+3], wide)
            wo_dma(R, 4*j+4, wide); wo_dma(R, 4*j+5, wide)
        else:
            inter = {f: [(14, f)] for f in range(NT)}
            inter.update({NT + f: [(12, f)] for f in range(NT)})
            p_ocompute(R, [10, 11], wide, inter=inter)
            wo_dma(R, 13, wide)
        b1()
    p_ocompute(R, [12, 13], wide, inter={f: [(15, f)] for f in range(NT)}, ofr=True)
    p_ocompute_last(R, wide)
    return nbar

def p_ocompute_last(R, wide):
    a = R.a
    NT = 8 if wide else 4
    D = 4; NB = 5
    rowb = 256 if wide else 128
    frs = [(kap, 2*ip + t) for ip in range(NT//2) for kap in (14, 15) for t in range(2)]
    def rd(f):
        kap, mt = frs[f]
        if f == 0: R.wait_vm("o14"); R.wait_vm("o15")
        b = ORING + 4*(f % NB)
        area, off = wo_slot(kap, wide)
        addr = (vWoR if area == 'own' else ALT) + mt
        R.lds_guard(2)
        R.lds(f"ds_read_b64_tr_b16 {vr(b,2)}, v{addr} offset:{off}", f"g{f}")
        R.lds(f"ds_read_b64_tr_b16 {vr(b+2,2)}, v{addr} offset:{off + 16*rowb}", f"g{f}")
    a(f"v_mbcnt_lo_u32_b32 v{VT}, -1, 0"); a(f"v_mbcnt_hi_u32_b32 v{VT}, -1, v{VT}"); a(f"v_lshlrev_b32 v{VT}, 4, v{VT}")
    a(f"s_mul_i32 s{sT2}, s2, {PART}"); a(f"s_mul_i32 s{sT3}, s{sIDX}, {12*1024}"); a(f"s_add_u32 s{sT2}, s{sT2}, s{sT3}")
    npub = 0
    def pub_pair(ip):
        nonlocal npub
        for nt in range(3):
            t = PUB[npub]; npub += 1
            d0, d1 = Outa(2*ip, nt), Outa(2*ip+1, nt)
            a(f"v_cvt_pk_bf16_f32 v{t}, v{d0}, v{d0+1}"); a(f"v_cvt_pk_bf16_f32 v{t+1}, v{d0+2}, v{d0+3}")
            a(f"v_cvt_pk_bf16_f32 v{t+2}, v{d1}, v{d1+1}"); a(f"v_cvt_pk_bf16_f32 v{t+3}, v{d1+2}, v{d1+3}")
            a(f"s_add_u32 s{sT1}, s{sT2}, {1024*(ip*3 + nt)}")
            R.vmem(f"buffer_store_dwordx4 {vr(t)}, v{VT}, {srd(SRD_WS)}, s{sT1} offen sc0 sc1", "pub")
    for f in range(D): rd(f)
    for f, (kap, mt) in enumerate(frs):
        ks = kap % 4
        if f + D < len(frs): rd(f + D)
        R.wait_lg(f"g{f}")
        for nt in range(3):
            d = Outa(mt, nt)
            a(f"v_mfma_f32_16x16x32_bf16 {vr(d)}, {vr(ORING + 4*(f % NB))}, {vr(Of(ks,nt))}, {vr(d)}")
        if f % 4 == 1 and f >= 5: pub_pair(f//4 - 1)
    pub_pair(NT//2 - 1)

def p_flag(R):
    a = R.a
    if cfg.tst: lstamp(a, 32)
    R.wait_vm_all()
    if cfg.tst: lstamp(a, 33)
    a(f"s_mul_i32 s{sT0}, s{sGRP}, {FSTR}"); a(f"s_add_u32 s{sT0}, s{sT0}, {FLG}")
    a(f"s_lshl_b32 s{sT1}, s{sG}, 2"); a(f"s_add_u32 s{sT1}, s{sT1}, s{sIDX}"); a(f"s_lshl_b32 s{sT1}, s{sT1}, 2")
    a(f"v_mov_b32 v2, s{sT1}"); a("v_mov_b32 v1, 1")
    a(f"s_mov_b64 s[{sEX}:{sEX+1}], exec")
    a("s_mov_b64 exec, 1")
    a(f"buffer_store_dword v1, v2, {srd(SRD_WS)}, s{sT0} offen sc0 sc1")
    a(f"s_mov_b64 exec, s[{sEX}:{sEX+1}]")

def emit_reduce(a):
    a.label("L_tail")
    if cfg.stamps: stamp(a, 50)
    a(f"s_min_u32 s{sT0}, s{sG}, 2"); a(f"s_mul_i32 s{sT1}, s{sG}, 5"); a(f"s_add_u32 s{sT0}, s{sT0}, s{sT1}")
    a(f"s_cmp_lt_u32 s{sG}, 2"); a(f"s_cselect_b32 s{sT1}, 6, 5")
    a(f"s_mov_b32 s80, s{sT1}")
    a(f"s_add_u32 s{sT0}, s{sT0}, s{sWAVE}")
    a("v_mbcnt_lo_u32_b32 v3, -1, 0"); a("v_mbcnt_hi_u32_b32 v3, -1, v3")
    a("v_lshlrev_b32 v6, 4, v3"); a("v_lshlrev_b32 v0, 2, v3")
    a(f"s_mul_i32 s{sT2}, s{sT0}, 171"); a(f"s_lshr_b32 s{sT2}, s{sT2}, 9")
    a(f"s_mul_i32 s{sT3}, s{sT2}, 3"); a(f"s_sub_u32 s{sT3}, s{sT0}, s{sT3}")
    a(f"s_lshl_b32 s{sT3}, s{sT3}, 4"); a(f"s_mul_i32 s{sT1}, s{sB}, 48"); a(f"s_add_u32 s{sT3}, s{sT3}, s{sT1}")
    a(f"s_mul_i32 s{sT3}, s{sT3}, 1792"); a(f"s_lshl_b32 s{sT2}, s{sT2}, 6"); a(f"s_add_u32 s{sT3}, s{sT3}, s{sT2}")
    a(f"s_mul_i32 s{sT1}, s{sBR}, 896"); a(f"s_add_u32 s78, s{sT3}, s{sT1}") if not cfg.lstamps else None
    if cfg.lstamps: a(f"s_mul_i32 s{sT1}, s{sBR}, 896"); a(f"s_add_u32 s100, s{sT3}, s{sT1}")
    sOUT = 100 if cfg.lstamps else 78
    a("v_and_b32 v7, 15, v3"); a(f"s_mov_b32 s{sT1}, 1792"); a(f"v_mul_lo_u32 v7, s{sT1}, v7")
    a("v_bfe_u32 v8, v3, 4, 1"); a("v_lshl_add_u32 v7, v8, 5, v7")
    a("v_lshrrev_b32 v8, 5, v3"); a("v_lshl_add_u32 v7, v8, 4, v7")
    a(f"s_lshl_b32 s{sT1}, s{sB}, 4"); a(f"s_lshl_b32 s{sT2}, s{sBR}, 2"); a(f"s_add_u32 s{sT1}, s{sT1}, s{sT2}")
    a(f"s_mul_i32 s{sT1}, s{sT1}, {PART}"); a(f"s_lshl_b32 s{sT2}, s{sT0}, 10"); a(f"s_add_u32 s{sT3}, s{sT1}, s{sT2}")
    a(f"s_cmp_lg_u32 s{sWAVE}, 0"); a("s_cbranch_scc1 L_nopoll")
    a(f"s_mul_i32 s{sT0}, s{sGRP}, {FSTR}"); a(f"s_add_u32 s{sT0}, s{sT0}, {FLG}")
    a(f"s_mov_b64 s[{sEX}:{sEX+1}], exec")
    a("s_mov_b32 exec_hi, 0")
    a(f"s_mov_b32 s{sT2}, 0")
    a.label("L_poll")
    a(f"buffer_load_dword v4, v0, {srd(SRD_WS)}, s{sT0} offen sc0 sc1")
    a("s_waitcnt vmcnt(0)")
    a("v_cmp_eq_u32 vcc, 1, v4")
    a("s_cmp_eq_u32 vcc_lo, -1")
    a("s_cbranch_scc1 L_poll_done")
    a(f"s_add_u32 s{sT2}, s{sT2}, 1")
    a(f"s_cmp_ge_u32 s{sT2}, 400000")
    a("s_cbranch_scc1 L_poll_done")
    if cfg.sleep: a(f"s_sleep {cfg.sleep}")
    a("s_branch L_poll")
    a.label("L_poll_done")
    a(f"s_mov_b64 exec, s[{sEX}:{sEX+1}]")
    a.label("L_nopoll")
    a("s_barrier")
    a(f"s_cmp_ge_u32 s{sWAVE}, s80")
    a("s_cbranch_scc1 " + ("L_nogather" if cfg.stamps else ("L_mini" if cfg.mini else "L_end")))
    if cfg.stamps: stamp(a, 52)
    for k in range(8):
        gb, gp = k >> 2, k & 3
        a(f"s_add_u32 s{sT2}, s{sT3}, {(gb*8 + gp)*PART}")
        a(f"buffer_load_dwordx4 {vr(64+4*k)}, v6, {srd(SRD_WS)}, s{sT2} offen sc0 sc1")
    acc = 16
    for k in range(8):
        a(f"s_waitcnt vmcnt({7-k})")
        for r in range(4):
            src = 64 + 4*k + r
            if k == 0:
                a(f"v_lshlrev_b32 v{acc+2*r}, 16, v{src}"); a(f"v_and_b32 v{acc+2*r+1}, 0xffff0000, v{src}")
            else:
                t = 8 + 2*(r & 1) + 2
                a(f"v_lshlrev_b32 v{t}, 16, v{src}"); a(f"v_and_b32 v{t+1}, 0xffff0000, v{src}")
                a(f"v_pk_add_f32 {vr(acc+2*r,2)}, {vr(acc+2*r,2)}, {vr(t,2)}")
    for r in range(4):
        a(f"v_cvt_pk_bf16_f32 v{12+r}, v{acc+2*r}, v{acc+2*r+1}")
    a("v_permlane16_swap_b32 v12, v14")
    a("v_permlane16_swap_b32 v13, v15")
    a(f"buffer_store_dwordx4 v[12:15], v7, {srd(SRD_OUT)}, s{sOUT} offen")
    if cfg.stamps:
        a("s_waitcnt vmcnt(0)")
        a.label("L_nogather")
        stamp(a, 53)
        a("s_memtime s[74:75]"); a("s_waitcnt lgkmcnt(0)"); a("v_writelane_b32 v61, s74, 61")
        stamp_store(a)
    if cfg.mini:
        a.label("L_mini")
        a("s_memrealtime s[72:73]"); a("s_waitcnt vmcnt(0) lgkmcnt(0)")
        a("s_memrealtime s[72:73]"); a("s_waitcnt lgkmcnt(0)")
        a("v_mov_b32 v61, 0"); a("v_writelane_b32 v61, s90, 62"); a("v_writelane_b32 v61, s72, 53")
        stamp_store(a)
    a.label("L_end")
    a("s_endpgm")

def build():
    a = Asm()
    if cfg.mini:
        a("s_memrealtime s[90:91]")
    if cfg.stamps:
        a("s_memrealtime s[72:73]"); a("s_memtime s[74:75]"); a("s_waitcnt lgkmcnt(0)")
        a("v_writelane_b32 v61, s72, 62"); a("v_writelane_b32 v61, s74, 60")
    emit_prologue(a)
    cnt = {"n": 0}
    def bar():
        a("s_barrier")
        if cfg.stamps: stamp(a, cnt["n"])
        cnt["n"] += 1
    A = Role(a)
    if cfg.prioA: a(f"s_setprio {cfg.prioA}")
    a_code_prefetch(A)
    a_setup(A)
    if cfg.pf_first: a_pf(A, "wq")
    bar()
    if not cfg.pf_first: a_pf(A, "wq")
    a_setup2(A)
    bar()
    a0_flag_zero(A)
    for kap in range(4): wq_dma(A, kap, vWqA)
    a_issue_KV(A, "K", 0)
    a_setup3(A)
    a_pair_init(A)
    A.wait_vm("w3")
    a0_flag_mark(A)
    bar()
    bar()
    a_issue_KV(A, "K", 1)
    A.wait_vm("K0")
    bar()
    a_S(A, 0)
    A.wait_vm("K1")
    bar()
    a_S(A, 1, dma=("K", 2)); A.wait_vm("K2"); bar()
    a_S(A, 2, dma=("K", 3)); A.wait_vm("K3"); bar()
    a_S(A, 3, dma=("K", 4)); A.wait_vm("K4"); bar()
    a_flag_load(A)
    a_issue_KV(A, "K", 5)
    a_flag_check(A)
    bar()
    a_S(A, 4)
    A.wait_vm("K5")
    bar()
    a_S(A, 5)
    bar()
    a_S(A, 6)
    if cfg.split_sm: a_softmax1(A)
    bar()
    a_S(A, 7)
    if not cfg.split_sm: a_softmax1(A)
    a_softmax2(A)
    bar()
    for n in range(8):
        dma = ("V", n+1) if 1 <= n <= 6 else None
        if cfg.prio7 and n == cfg.prio7from: a(f"s_setprio {cfg.prio7}")
        a_PV(A, n, dma)
        if n == 0:
            a_alpha(A); a_pair_addr(A)
        if n % 2 == 0:
            a_rescale(A)
        else:
            a_pair_sync(A, n >> 1)
            a_xfinal(A)
        if 1 <= n < 7: A.wait_vm(f"V{n+1}")
        A.wait_lg_all()
        bar()
    nA = cnt["n"]
    A.wait_vm_all()
    a("s_branch L_tail")
    a.label("L_P")
    cnt["n"] = 0
    P = Role(a)
    stamp_move(a, 39)
    if cfg.stamps: stamp(a, 55)
    if cfg.prioP: a(f"s_setprio {cfg.prioP}")
    P.vm += ["x"]*12
    if cfg.stamps: stamp(a, 56)
    bar()
    p_setup2(P)
    P.wait_vm("x"); bar()
    p_xfrags(P)
    if cfg.j0s5:
        a(f"s_lshl_b32 s{sWq5}, s{sIDX}, 12"); a(f"s_add_u32 s{sWq5}, s{sWq5}, {QB}")
        a(f"s_sub_u32 s{sT0}, s{sWq5}, s{sWp}")
        for mt in range(4): a(f"v_add_u32 v{vWqR5+mt}, s{sT0}, v{vWqR+mt}")
    bar()
    if cfg.j0s5: wq_dma(P, 4, vWqD)
    p_qcompute(P, list(range(14)), True, hooks={cfg.k1_after: bar})
    bar()
    for kap in (14, 15, 16, 17): wq_dma(P, kap, vWqD)
    bar()
    for kaps, nxt in (([14,15], [18,19]), ([16,17,18,19], [20,21,22,23]), ([20,21,22,23], [24,25,26,27]), ([24,25,26,27], [])):
        p_qcompute(P, kaps, False)
        for kap in nxt: wq_dma(P, kap, vWqD)
        bar()
    a(f"s_cmp_eq_u32 s{sIDX}, 3")
    a("s_cbranch_scc1 L_P3")
    base = cnt["n"]
    for wide in (True, False):
        if not wide:
            a.label("L_P3"); cnt["n"] = base
        Pw = Role(a)
        STREG[0] = 39
        stamp_move(a, 47)
        p_kv_setup(Pw, first=True)
        p_issue_KV(Pw, "K", 6)
        p_vsetup(Pw, wide)
        bar()
        p_issue_KV(Pw, "K", 7); Pw.wait_vm("K6"); bar()
        p_issue_KV(Pw, "V", 0); Pw.wait_vm("K7"); bar()
        p_issue_KV(Pw, "V", 1); p_pf_wo(Pw); Pw.wait_vm("V0"); bar()
        Pw.wait_vm("V1")
        nb = p_oproj_phase(Pw, bar, wide)
        assert nb == 8, nb
        if cfg.stamps: stamp(a, 59)
        p_flag(Pw)
        if cfg.stamps: stamp(a, 58)
        assert cnt["n"] == nA, (cnt["n"], nA)
        stamp_move(a, 61)
        if wide: a("s_branch L_tail")
    emit_reduce(a)
    a.finalize()
    return a

HEADER = open("cdna_kernels/" + NAME + ".s.ref").read().split("; Override launch")[0]
def full_text(a):
    s = HEADER
    s += f"; @launch grid=(256,1,1) block=(512,1,1) lds={LDS_BYTES}\n"
    s += f'.amdgcn_target "amdgcn-amd-amdhsa--gfx950"\n.text\n.globl {NAME}_kernel\n.p2align 8\n.type {NAME}_kernel,@function\n{NAME}_kernel:\n'
    body = a.text()
    if cfg.icpf:
        body = body.replace("  s_endpgm\n", "  s_endpgm\nL_code_end:\n") if body.count("s_endpgm") == 1 else body + "L_code_end:\n"
        body = body.replace("CODE_BYTES", f"L_code_end-{NAME}_kernel")
    s += body
    s += f""".section .rodata,"a"
.p2align 6
.amdhsa_kernel {NAME}_kernel
  .amdhsa_next_free_vgpr 256
  .amdhsa_next_free_sgpr 102
  .amdhsa_accum_offset 256
  .amdhsa_group_segment_fixed_size 0
  .amdhsa_kernarg_size 104
  .amdhsa_user_sgpr_count 2
  .amdhsa_user_sgpr_kernarg_segment_ptr 1
  .amdhsa_system_sgpr_workgroup_id_x 1
.end_amdhsa_kernel
"""
    return s

if __name__ == "__main__":
    out = sys.argv[1] if len(sys.argv) > 1 else "cdna_kernels/" + NAME + ".s"
    for kv in sys.argv[2:]:
        k, v = kv.split("=", 1)
        cur = getattr(cfg, k)
        if isinstance(cur, bool): v = v.lower() in ("1", "true")
        elif isinstance(cur, int): v = int(v)
        setattr(cfg, k, v)
    a = build()
    open(out, "w").write(full_text(a))
    print("wrote", out, "instrs:", sum(1 for i in a.ins if i.kind not in ('none','label')), "nops inserted:", a.nops_inserted)
```

```python
import sys, math, struct
from asmlib import Asm

NAME = "concat_heads__gqa_block_cached__gqa_block_cached__near_ridge"

class Cfg:
    k_flags = "nt"
    v_flags = "nt"
    w_flags = ""
    pf = True
    pf_flags = ""
    stamps = False
    lstamps = False
    mini = False
    prioA = 0
    prioP = 0
    dq = 4
    pf_wo_at = 8
    k1_after = 9
    split_sm = True
    sleep = 0
    interleave = False
    pf_first = False
    wo_first_after = 7
    tst = False
    icpf = True
    prio7 = 0
    prio7from = 7
    pkv = True
    unpack = True
    j0s5 = True
    rot = 1
    kst = False
cfg = Cfg()

KVA, KVB = 0, 32768
WB = 65536
QB = 131072
OB = 122880
XB = 135168
STAT = 159744
PFL = 161280
LDS_BYTES = 163840
PART = 43008
FLG = 16 << 20
FSTR = 8448
sWAVE, sIDX, sG, sB, sBR = 3, 4, 5, 6, 7
SRD_K, SRD_V, SRD_WQ, SRD_WO, SRD_X, SRD_OUT, SRD_WS = 8, 12, 16, 20, 24, 28, 32
sDBG = 58
sM0, sWp = 62, 63
sC = 64
sT0, sT1, sT2, sT3 = 66, 67, 68, 69
sEX = 70
sGRP, sXo = 76, 77
sCOL = 36
sJ = 44
def srd(b): return f"s[{b}:{b+3}]"
def vr(b, n=4): return f"v[{b}:{b+n-1}]"
def f32bits(x): return struct.unpack('<I', struct.pack('<f', x))[0]
vL, vQ, vGq = 44, 46, 47

class Role:
    def __init__(self, a): self.a = a; self.vm = []; self.lg = []
    def vmem(self, text, tag): self.a(text); self.vm.append(tag)
    def lds(self, text, tag): self.a(text); self.lg.append(tag)
    def wait_vm(self, tag):
        idx = [i for i, t in enumerate(self.vm) if t == tag]
        if not idx: return
        n = len(self.vm) - 1 - idx[-1]
        assert n <= 63
        self.a(f"s_waitcnt vmcnt({n})"); self.vm = self.vm[idx[-1]+1:]
    def wait_lg(self, tag):
        idx = [i for i, t in enumerate(self.lg) if t == tag]
        if not idx: return
        n = len(self.lg) - 1 - idx[-1]
        assert n <= 15, n
        self.a(f"s_waitcnt lgkmcnt({n})"); self.lg = self.lg[idx[-1]+1:]
    def wait_vm_all(self): self.a("s_waitcnt vmcnt(0)"); self.vm = []
    def wait_lg_all(self): self.a("s_waitcnt lgkmcnt(0)"); self.lg = []
    def lds_guard(self, n_new):
        if len(self.lg) + n_new > 15:
            keep = 15 - n_new
            self.a(f"s_waitcnt lgkmcnt({keep})"); self.lg = self.lg[len(self.lg)-keep:] if keep else []

STREG = [61]
PEND = []
def stamp(a, idx):
    a("s_memrealtime s[72:73]")
    a("s_waitcnt lgkmcnt(0)")
    a(f"v_writelane_b32 v{STREG[0]}, s72, {idx}")
    for (sp, i2) in PEND: a(f"v_writelane_b32 v{STREG[0]}, s{sp}, {i2}")
    PEND.clear()
def lstamp(a, idx):
    if not cfg.lstamps: return
    sp = 78 + 2*len(PEND)
    assert sp <= 98
    a(f"s_memrealtime s[{sp}:{sp+1}]")
    PEND.append((sp, idx))
def stamp_move(a, new):
    if cfg.stamps: a(f"v_mov_b32 v{new}, v{STREG[0]}")
    STREG[0] = new
def stamp_store(a):
    a(f"s_lshl_b32 s{sT0}, s2, 3"); a(f"s_add_u32 s{sT0}, s{sT0}, s{sWAVE}"); a(f"s_lshl_b32 s{sT0}, s{sT0}, 8")
    a("v_mbcnt_lo_u32_b32 v60, -1, 0"); a("v_mbcnt_hi_u32_b32 v60, -1, v60")
    a(f"v_lshlrev_b32 v60, 2, v60"); a(f"v_add_u32 v60, s{sT0}, v60")
    a("s_add_u32 s74, s60, 0x2000000"); a("s_addc_u32 s75, s61, 0")
    a("global_store_dword v60, v61, s[74:75]")
    a("s_waitcnt vmcnt(0)")

def emit_prologue(a):
    a("s_cmp_ge_u32 s2, 256")
    a("s_cbranch_scc1 L_end")
    a("s_load_dwordx16 s[36:51], s[0:1], 0")
    a("s_load_dwordx4 s[52:55], s[0:1], 64")
    a("s_load_dwordx4 s[56:59], s[0:1], 80")
    a("s_load_dwordx2 s[60:61], s[0:1], 96")
    a("v_and_b32 v44, 63, v0")
    a("v_lshrrev_b32 v45, 6, v0")
    a("v_and_b32 v46, 15, v44")
    a("v_lshrrev_b32 v47, 4, v44")
    a(f"v_readfirstlane_b32 s{sWAVE}, v45")
    a(f"s_bfe_u32 s{sBR}, s2, 0x10002")
    a(f"s_and_b32 s{sG}, s2, 3"); a(f"s_lshl_b32 s{sG}, s{sG}, 1")
    a(f"s_bfe_u32 s{sT0}, s2, 0x10003"); a(f"s_or_b32 s{sG}, s{sG}, s{sT0}")
    a(f"s_lshr_b32 s{sB}, s2, 4")
    a(f"s_and_b32 s{sIDX}, s{sWAVE}, 3")
    a(f"s_lshl_b32 s{sGRP}, s{sBR}, 4"); a(f"s_add_u32 s{sGRP}, s{sGRP}, s{sB}")
    a(f"s_mov_b32 s{sC}, 0x{f32bits(math.log2(math.e)/16.0):08x}"); a(f"s_mov_b32 s{sC+1}, s{sC}")
    a_code_prefetch(Role(a))
    a("s_waitcnt lgkmcnt(0)")
    if cfg.stamps: stamp(a, 54)
    a(f"s_cmp_eq_u32 s{sBR}, 0")
    for i in range(5):
        a(f"s_cselect_b64 s[{36+2*i}:{37+2*i}], s[{36+2*i}:{37+2*i}], s[{46+2*i}:{47+2*i}]")
    def mk(srdb, ptr, off_s, size):
        if off_s is None:
            a(f"s_mov_b32 s{srdb}, s{ptr}"); a(f"s_and_b32 s{srdb+1}, s{ptr+1}, 0xffff")
        else:
            a(f"s_add_u32 s{srdb}, s{ptr}, s{off_s}")
            a(f"s_addc_u32 s{srdb+1}, s{ptr+1}, 0")
            a(f"s_and_b32 s{srdb+1}, s{srdb+1}, 0xffff")
        if isinstance(size, int): a(f"s_mov_b32 s{srdb+2}, {size}")
        else: a(size)
        a(f"s_mov_b32 s{srdb+3}, 0x20000")
    a(f"s_mul_i32 s{sT1}, s{sB}, 43008")
    mk(SRD_X, 36, sT1, 43008)
    a(f"s_cmp_lt_u32 s{sWAVE}, 4"); a("s_cbranch_scc1 L_nox")
    PX = Role(a); p_setup(PX)
    a.label("L_nox")
    a(f"s_lshl_b32 s{sT1}, s{sG}, 10")
    mk(SRD_WQ, 42, sT1, f"s_sub_u32 s{SRD_WQ+2}, {448*8192}, s{sT1}")
    a(f"s_lshl_b32 s{sT0}, s{sB}, 3"); a(f"s_add_u32 s{sT0}, s{sT0}, s{sG}"); a(f"s_lshl_b32 s{sT0}, s{sT0}, 18")
    mk(SRD_K, 38, sT0, 262144)
    mk(SRD_V, 40, sT0, 262144)
    a(f"s_mul_i32 s{sT1}, s{sG}, 458752")
    mk(SRD_WO, 44, sT1, 458752)
    mk(SRD_OUT, 56, None, 16*48*896*2)
    mk(SRD_WS, 60, None, FLG + 32*FSTR)
    if cfg.rot == 0: a(f"s_mov_b32 s{sT0}, 0")
    elif cfg.rot == 1: a(f"s_and_b32 s{sT0}, s{sB}, 3")
    elif cfg.rot == 2: a(f"s_add_u32 s{sT0}, s{sB}, s{sG}"); a(f"s_and_b32 s{sT0}, s{sT0}, 3")
    elif cfg.rot == 3: a(f"s_and_b32 s{sT0}, s{sB}, 1"); a(f"s_lshl_b32 s{sT0}, s{sT0}, 1")
    for j in range(4):
        a(f"s_add_u32 s{sT1}, s{sT0}, {j}"); a(f"s_and_b32 s{sT1}, s{sT1}, 3")
        a(f"s_lshl_b32 s{sCOL+j}, s{sT1}, 7"); a(f"s_mul_i32 s{sCOL+4+j}, s{sT1}, {64*896}")
    a(f"s_lshr_b32 s{sT2}, s{sIDX}, 1")
    for J in range(2):
        a(f"s_add_u32 s{sT1}, s{sT0}, s{sT2}"); a(f"s_add_u32 s{sT1}, s{sT1}, {2*J}"); a(f"s_and_b32 s{sT1}, s{sT1}, 3")
        a(f"s_lshl_b32 s{sJ+J}, s{sT1}, 7")
    a(f"s_cmp_ge_u32 s{sWAVE}, 4")
    a("s_cbranch_scc1 L_P")

def wq_dma_pattern(a, dst, l, g, t0, t1):
    a(f"v_lshrrev_b32 v{t0}, 3, v{l}"); a(f"v_lshlrev_b32 v{t0}, 13, v{t0}")
    a(f"v_bfe_u32 v{t1}, v{l}, 1, 2"); a(f"v_xor_b32 v{t1}, v{t1}, v{g}")
    a(f"v_lshl_add_u32 v{t0}, v{t1}, 5, v{t0}")
    a(f"v_and_b32 v{t1}, 1, v{l}"); a(f"v_lshl_add_u32 v{t0}, v{t1}, 4, v{t0}")
    a(f"s_and_b32 s{sT0}, s{sIDX}, 1"); a(f"s_lshl_b32 s{sT0}, s{sT0}, 9")
    a(f"v_add_u32 v{dst}, s{sT0}, v{t0}")

NSLOT_Q = 4
def wq_slot(kap):
    if cfg.j0s5 and kap < 14:
        sl = kap % 5
        return ('q', 0) if sl == 4 else ('own', sl*4096)
    return ('own', (kap % NSLOT_Q)*4096)
sWq5 = 47
def wq_dma(R, kap, vpat, ii_list=range(4)):
    a = R.a
    J, s = divmod(kap, 14)
    area, off = wq_slot(kap)
    for ii in ii_list:
        a(f"s_add_u32 m0, s{sWp if area == 'own' else sWq5}, {off + 1024*ii}")
        a(f"s_add_u32 s{sT1}, s{sJ+J}, {(32*s + 8*ii)*8192}")
        R.vmem(f"buffer_load_dwordx4 v{vpat}, {srd(SRD_WQ)}, s{sT1} offen {cfg.w_flags} lds", f"w{kap}")

def S_(t, nt): return 64 + (t*3 + nt)*4
def Qf(s, nt): return (s*3 + nt)*4
KF = 24
vKdE, vKdO, vVd, vWqA = 48, 49, 50, 51

def a_code_prefetch(R):
    a = R.a
    if not cfg.icpf: return
    a(f"s_cmp_lg_u32 s{sWAVE}, 3"); a("s_cbranch_scc1 L_icpf_skip")
    a("s_getpc_b64 s[72:73]")
    a.label("L_icpf_pc")
    a(f"s_sub_u32 s72, s72, L_icpf_pc-{NAME}_kernel"); a("s_subb_u32 s73, s73, 0")
    a(f"s_lshr_b32 s{sT0}, s2, 3"); a(f"s_lshl_b32 s{sT0}, s{sT0}, 11")
    a(f"v_lshlrev_b32 v58, 7, v{vL}"); a(f"v_add_u32 v58, s{sT0}, v58")
    a(f"s_mov_b64 s[{sEX}:{sEX+1}], exec"); a("s_mov_b64 exec, 0xffff")
    a("v_cmp_gt_u32 vcc, CODE_BYTES, v58")
    a("s_and_b64 exec, exec, vcc")
    a("s_cbranch_execz L_icpf_rest")
    a("global_load_dword v60, v58, s[72:73]")
    a.label("L_icpf_rest")
    a(f"s_mov_b64 exec, s[{sEX}:{sEX+1}]")
    a.label("L_icpf_skip")

def a_setup(R):
    a = R.a
    a(f"s_lshl_b32 s{sM0}, s{sIDX}, 13")
    a(f"s_lshl_b32 s{sWp}, s{sIDX}, 14"); a(f"s_add_u32 s{sWp}, s{sWp}, {WB}")
    if cfg.pf:
        a(f"v_lshrrev_b32 v52, 3, v{vL}"); a("v_lshlrev_b32 v52, 13, v52")
        a(f"v_and_b32 v53, 7, v{vL}"); a("v_lshl_add_u32 v56, v53, 7, v52")
        a(f"s_mul_i32 s{sT2}, s{sB}, 28"); a(f"s_lshl_b32 s{sT3}, s{sIDX}, 3"); a(f"s_add_u32 s{sT2}, s{sT2}, s{sT3}")
        a(f"s_lshl_b32 s{sT2}, s{sT2}, 13")

def a_pf(R, which):
    a = R.a
    if not cfg.pf: return
    if which == "wq":
        R.vmem(f"buffer_load_dword v63, v56, {srd(SRD_WQ)}, s{sT2} offen {cfg.pf_flags}", "pf")
    else:
        a(f"v_lshlrev_b32 v58, 7, v{vL}")
        a(f"s_mul_i32 s{sT2}, s{sB}, 28672"); a(f"s_lshl_b32 s{sT3}, s{sIDX}, 13"); a(f"s_add_u32 s{sT2}, s{sT2}, s{sT3}")
        R.vmem(f"buffer_load_dword v62, v58, {srd(SRD_WO)}, s{sT2} offen {cfg.pf_flags}", "pf")

def a_setup2(R):
    a = R.a
    wq_dma_pattern(a, vWqA, vL, vGq, 52, 53)
    a(f"v_lshrrev_b32 v52, 3, v{vL}"); a("v_lshlrev_b32 v52, 9, v52")
    a(f"s_lshl_b32 s{sT1}, s{sIDX}, 15"); a(f"v_add_u32 v52, s{sT1}, v52")
    a(f"v_and_b32 v53, 7, v{vL}"); a(f"v_xor_b32 v54, v53, v{vGq}")
    a(f"v_lshl_add_u32 v{vKdE}, v54, 4, v52")
    a("v_xor_b32 v54, 4, v54"); a(f"v_lshl_add_u32 v{vKdO}, v54, 4, v52")
    a("v_lshrrev_b32 v54, 1, v53"); a(f"v_xor_b32 v54, v54, v{vGq}")
    a("v_lshl_add_u32 v54, v54, 5, v52")
    a(f"v_and_b32 v55, 1, v{vL}"); a(f"v_lshl_add_u32 v{vVd}, v55, 4, v54")

def a_setup3(R):
    a = R.a
    a(f"s_lshr_b32 s{sT0}, s{sIDX}, 1")
    a(f"s_and_b32 s{sT1}, s{sIDX}, 1")
    a(f"v_lshrrev_b32 v52, 1, v{vQ}")
    a(f"v_xor_b32 v53, v{vGq}, v52")
    a(f"v_xor_b32 v54, 4, v53")
    a(f"s_lshl_b32 s{sT2}, s{sT1}, 14")
    a(f"v_lshlrev_b32 v55, 7, v{vQ}")
    a(f"v_add_u32 v55, s{sT2}, v55")
    a(f"v_lshl_add_u32 v40, v53, 4, v55")
    a(f"v_lshl_add_u32 v41, v54, 4, v55")
    a(f"s_mul_i32 s{sT2}, s{sT0}, {48*128}")
    a(f"s_add_u32 s{sT2}, s{sT2}, {QB}")
    a(f"v_lshlrev_b32 v55, 7, v{vQ}")
    a(f"v_add_u32 v55, s{sT2}, v55")
    a(f"v_lshl_add_u32 v42, v53, 4, v55")
    a(f"v_lshl_add_u32 v43, v54, 4, v55")

def a_pair_init(R):
    a = R.a
    a(f"s_lshl_b32 s{sT0}, s{sIDX}, 4"); a(f"s_add_u32 s{sT0}, s{sT0}, {PFL}")
    a(f"v_mov_b32 v55, s{sT0}"); a("v_mov_b32 v56, 0")
    R.lds("ds_write_b32 v55, v56", "pf0")
    R.wait_lg_all()

def a_pair_addr(R):
    a = R.a
    a(f"s_lshl_b32 s{sT0}, s{sIDX}, 4"); a(f"s_add_u32 s{sT0}, s{sT0}, {PFL}")
    a(f"v_mov_b32 v55, s{sT0}"); a(f"s_xor_b32 s{sT0}, s{sT0}, 16"); a(f"v_mov_b32 v56, s{sT0}")

def a_pair_sync(R, j):
    a = R.a
    R.wait_lg_all()
    a(f"v_mov_b32 v57, {j+1}")
    a("ds_write_b32 v55, v57")
    a.label(f"L_ps{j}")
    a("ds_read_b32 v57, v56")
    a("s_waitcnt lgkmcnt(0)")
    a(f"v_readfirstlane_b32 s{sT0}, v57")
    a(f"s_cmp_lt_u32 s{sT0}, {j+1}")
    a(f"s_cbranch_scc1 L_ps{j}")

def kv_dma(R, kind, n, ii):
    a = R.a
    j, w = n >> 1, n & 1
    buf = KVA if w == 0 else KVB
    a(f"s_add_u32 m0, s{sM0}, {buf + 1024*ii}")
    a(f"s_add_u32 s{sT1}, s{sCOL+j}, {131072*w + 4096*ii}")
    if kind == "K":
        R.vmem(f"buffer_load_dwordx4 v{vKdE + (ii & 1)}, {srd(SRD_K)}, s{sT1} offen {cfg.k_flags} lds", f"K{n}")
    else:
        R.vmem(f"buffer_load_dwordx4 v{vVd}, {srd(SRD_V)}, s{sT1} offen {cfg.v_flags} lds", f"V{n}")
def a_issue_KV(R, kind, n):
    R.a.comment(f"---- issue {kind} window {n}")
    for ii in range(8): kv_dma(R, kind, n, ii)

def a0_flag_zero(R):
    a = R.a
    a(f"s_or_b32 s{sT0}, s{sG}, s{sIDX}"); a(f"s_cmp_lg_u32 s{sT0}, 0"); a("s_cbranch_scc1 L_fz_skip")
    a(f"s_mul_i32 s{sT0}, s{sGRP}, {FSTR}"); a(f"s_add_u32 s{sT0}, s{sT0}, {FLG}")
    a(f"v_lshlrev_b32 v58, 2, v{vL}"); a("v_mov_b32 v59, 0")
    a(f"s_mov_b64 s[{sEX}:{sEX+1}], exec"); a("s_mov_b32 exec_hi, 0")
    a(f"buffer_store_dword v59, v58, {srd(SRD_WS)}, s{sT0} offen sc0 sc1")
    a(f"s_mov_b64 exec, s[{sEX}:{sEX+1}]")
    a.label("L_fz_skip")

def a0_flag_mark(R):
    a = R.a
    a(f"s_or_b32 s{sT0}, s{sG}, s{sIDX}"); a(f"s_cmp_lg_u32 s{sT0}, 0"); a("s_cbranch_scc1 L_fm_skip")
    a(f"s_lshl_b32 s{sT0}, s{sGRP}, 2"); a(f"v_mov_b32 v58, s{sT0}"); a("v_mov_b32 v59, 1")
    a(f"s_mov_b64 s[{sEX}:{sEX+1}], exec"); a("s_mov_b64 exec, 1")
    a(f"global_store_dword v58, v59, s[{sDBG}:{sDBG+1}] sc0 sc1")
    a(f"s_mov_b64 exec, s[{sEX}:{sEX+1}]")
    a.label("L_fm_skip")

def a_flag_load(R):
    a = R.a
    a(f"s_lshl_b32 s{sT0}, s{sGRP}, 2"); a(f"v_mov_b32 v58, s{sT0}")
    R.vmem(f"global_load_dword v59, v58, s[{sDBG}:{sDBG+1}] sc0 sc1", "chk")
def a_flag_check(R):
    a = R.a
    R.wait_vm("chk")
    a(f"s_mov_b32 s{sT2}, 0")
    a.label("L_fc_poll")
    a(f"v_readfirstlane_b32 s{sT1}, v59")
    a(f"s_cmp_eq_u32 s{sT1}, 1"); a("s_cbranch_scc1 L_fc_skip")
    a(f"s_add_u32 s{sT2}, s{sT2}, 1"); a(f"s_cmp_ge_u32 s{sT2}, 400000"); a("s_cbranch_scc1 L_fc_skip")
    a("s_sleep 2")
    a(f"global_load_dword v59, v58, s[{sDBG}:{sDBG+1}] sc0 sc1")
    a("s_waitcnt vmcnt(0)")
    a("s_branch L_fc_poll")
    a.label("L_fc_skip")

T1, T2 = WB, WB + 32768
def a_S(R, n, dma=None):
    a = R.a
    j, w = n >> 1, n & 1
    buf = KVA if w == 0 else KVB
    if n >= 6:
        if n == 6:
            for s2 in range(2): a(f"v_add_u32 v{40+s2}, {T1}, v{40+s2}")
        buf = 0 if n == 6 else 32768
    if w == 0:
        for s in range(2):
            for nt in range(3):
                R.lds(f"ds_read_b128 {vr(Qf(s,nt))}, v{42+s} offset:{12288*(j & 1) + 2048*nt}", "q")
    frs = [(i, s) for i in range(8) for s in range(2)]
    NB = 4
    def rd(k):
        i, s = frs[k]
        R.lds(f"ds_read_b128 {vr(KF + 4*(k % NB))}, v{40+s} offset:{buf + 2048*i}", f"kf{k}")
    for k in range(NB-1): rd(k)
    if dma and not cfg.interleave:
        for ii in range(8): kv_dma(R, dma[0], dma[1], ii)
        dma = None
    for k, (i, s) in enumerate(frs):
        if k + NB - 1 < len(frs): rd(k + NB - 1)
        if dma and k < 8: kv_dma(R, dma[0], dma[1], k)
        R.wait_lg(f"kf{k}")
        for nt in range(3):
            d = S_(8*w + i, nt)
            c = "0" if (j == 0 and s == 0) else vr(d)
            a(f"v_mfma_f32_16x16x32_bf16 {vr(d)}, {vr(KF + 4*(k % NB))}, {vr(Qf(s,nt))}, {c}")

M1 = (52, 54, 56)
L1 = (53, 55, 57)
BETA = (0, 2, 4); ALO = (6, 8, 10); ALP = (12, 14, 16)
ONES1, ONES2 = 36, 20
def Pf(w, s, nt): return S_(8*w + 2*s, nt)
def Oa(mt, nt): return S_(2*mt + 1, nt)
def XT(i, nt): return S_(9 + 2*i, nt)

def _rowmax(a, tiles, dst, tmp):
    for nt in range(3):
        m = dst[nt]
        vals = [S_(t, nt) + r for t in tiles for r in range(4)]
        a(f"v_max3_f32 v{m}, v{vals[0]}, v{vals[1]}, v{vals[2]}")
        a(f"v_max3_f32 v{tmp}, v{vals[3]}, v{vals[4]}, v{vals[5]}")
        k = 6
        while k + 3 < len(vals):
            a(f"v_max3_f32 v{m}, v{m}, v{vals[k]}, v{vals[k+1]}")
            a(f"v_max3_f32 v{tmp}, v{tmp}, v{vals[k+2]}, v{vals[k+3]}")
            k += 4
        rest = vals[k:]
        assert len(rest) == 2
        a(f"v_max3_f32 v{m}, v{m}, v{rest[0]}, v{rest[1]}")
        a(f"v_max_f32 v{m}, v{m}, v{tmp}")
    for nt in range(3):
        m = dst[nt]
        a(f"v_mov_b32 v{tmp+nt}, v{m}")
    for nt in range(3):
        a(f"v_permlane32_swap_b32 v{tmp+nt}, v{dst[nt]}")
    for nt in range(3):
        a(f"v_max_f32 v{dst[nt]}, v{tmp+nt}, v{dst[nt]}")
    for nt in range(3):
        a(f"v_mov_b32 v{tmp+nt}, v{dst[nt]}")
    for nt in range(3):
        a(f"v_permlane16_swap_b32 v{tmp+nt}, v{dst[nt]}")
    for nt in range(3):
        a(f"v_max_f32 v{dst[nt]}, v{tmp+nt}, v{dst[nt]}")
        a(f"v_mul_f32 v{dst[nt]}, s{sC}, v{dst[nt]}")

def _exppack(a, t0s, mreg):
    for t0 in t0s:
        for nt in range(3):
            m = mreg[nt]
            b0, b1 = S_(t0, nt), S_(t0+1, nt)
            for b in (b0, b0+2, b1, b1+2):
                a(f"v_pk_fma_f32 {vr(b,2)}, {vr(b,2)}, s[{sC}:{sC+1}], {vr(m,2)} op_sel_hi:[1,1,0] neg_lo:[0,0,1] neg_hi:[0,0,1]")
            src = [b0+r for r in range(4)] + [b1+r for r in range(4)]
            for v in src: a(f"v_exp_f32 v{v}, v{v}")
            a(f"v_cvt_pk_bf16_f32 v{b0}, v{src[0]}, v{src[1]}")
            a(f"v_cvt_pk_bf16_f32 v{b0+1}, v{src[2]}, v{src[3]}")
            a(f"v_cvt_pk_bf16_f32 v{b0+2}, v{src[4]}, v{src[5]}")
            a(f"v_cvt_pk_bf16_f32 v{b0+3}, v{src[6]}, v{src[7]}")

def _rowsum(a, w, ones, acc):
    for r in range(4): a(f"v_mov_b32 v{ones+r}, 0x3f803f80")
    for s in range(4):
        for nt in range(3):
            c = "0" if s == 0 else vr(acc(nt))
            a(f"v_mfma_f32_16x16x32_bf16 {vr(acc(nt))}, {vr(ones)}, {vr(Pf(w,s,nt))}, {c}")

def a_softmax1(R):
    a = R.a
    _rowmax(a, range(0, 8), M1, 24)
    _exppack(a, (0, 2, 4, 6), M1)
    _rowsum(a, 0, ONES1, lambda nt: S_(1, nt))
    for nt in range(3): a(f"v_mov_b32 v{L1[nt]}, v{S_(1,nt)}")

def a_softmax2(R):
    a = R.a
    M2 = (24, 26, 28)
    _rowmax(a, range(8, 16), M2, 30)
    for nt in range(3):
        a(f"v_max_f32 v{M2[nt]}, v{M2[nt]}, v{M1[nt]}")
        a(f"v_sub_f32 v{BETA[nt]}, v{M1[nt]}, v{M2[nt]}")
    for nt in range(3): a(f"v_exp_f32 v{BETA[nt]}, v{BETA[nt]}")
    _exppack(a, (8, 10, 12, 14), M2)
    _rowsum(a, 1, ONES2, lambda nt: S_(13, nt))
    a_vaddr(R)
    for nt in range(3):
        a(f"v_fma_f32 v{M2[nt]+1}, v{BETA[nt]}, v{L1[nt]}, v{S_(13,nt)}")
    for nt in range(3):
        R.lds(f"ds_write_b64 v59, {vr(M2[nt],2)} offset:{128*nt}", "st")
    for nt in range(3):
        a(f"v_mov_b32 v{18+2*nt}, v{M2[nt]}"); a(f"v_mov_b32 v{19+2*nt}, v{M2[nt]+1}")
    R.wait_lg_all()

vXW, vXR, vOW = 52, 53, 54
def a_vaddr(R):
    a = R.a
    a(f"s_and_b32 s{sT1}, s{sIDX}, 1")
    a(f"v_lshrrev_b32 v32, 2, v{vL}")
    a(f"v_lshrrev_b32 v33, 1, v32"); a("v_and_b32 v33, 3, v33")
    a(f"s_lshl_b32 s{sT2}, s{sT1}, 14")
    a(f"v_lshlrev_b32 v34, 7, v32"); a(f"v_add_u32 v34, s{sT2}, v34")
    a(f"v_and_b32 v35, 3, v{vL}"); a(f"v_lshl_add_u32 v34, v35, 3, v34")
    a(f"s_lshl_b32 s{sT2}, s{sT1}, 1")
    a(f"v_xor_b32 v33, s{sT2}, v33")
    for mt in range(4):
        a(f"v_xor_b32 v35, {mt}, v33")
        a(f"v_lshl_add_u32 v{40+mt}, v35, 5, v34")
    a(f"s_mul_i32 s{sT0}, s{sIDX}, 384"); a(f"s_add_u32 s{sT0}, s{sT0}, {STAT}")
    a(f"v_lshlrev_b32 v59, 3, v{vQ}"); a(f"v_add_u32 v59, s{sT0}, v59")
    a(f"s_xor_b32 s{sT1}, s{sIDX}, 1"); a(f"s_mul_i32 s{sT1}, s{sT1}, 384"); a(f"s_add_u32 s{sT1}, s{sT1}, {STAT}")
    a(f"v_lshlrev_b32 v60, 3, v{vQ}"); a(f"v_add_u32 v60, s{sT1}, v60")

def a_alpha(R):
    a = R.a
    M2 = (18, 20, 22)
    for nt in range(3):
        R.lds(f"ds_read_b64 v[{32+2*nt}:{33+2*nt}], v60 offset:{128*nt}", "st")
    a(f"s_mul_i32 s{sT2}, s{sIDX}, 6144"); a(f"s_add_u32 s{sT2}, s{sT2}, {XB}")
    a(f"v_lshlrev_b32 v55, 4, v{vL}"); a(f"v_add_u32 v{vXW}, s{sT2}, v55")
    a(f"s_xor_b32 s{sT2}, s{sIDX}, 1"); a(f"s_mul_i32 s{sT2}, s{sT2}, 6144"); a(f"s_add_u32 s{sT2}, s{sT2}, {XB}")
    a(f"v_add_u32 v{vXR}, s{sT2}, v55")
    a(f"s_and_b32 s{sT1}, s{sIDX}, 1")
    a(f"s_lshr_b32 s{sT0}, s{sIDX}, 1"); a(f"s_mul_i32 s{sT2}, s{sT0}, {48*128}"); a(f"s_add_u32 s{sT2}, s{sT2}, {OB}")
    a(f"v_lshlrev_b32 v{vOW}, 7, v{vQ}"); a(f"v_add_u32 v{vOW}, s{sT2}, v{vOW}")
    a(f"s_lshl_b32 s{sT3}, s{sT1}, 2")
    a(f"v_or_b32 v55, s{sT3}, v{vGq}")
    a(f"v_lshrrev_b32 v56, 1, v{vQ}"); a("v_xor_b32 v55, v55, v56")
    a(f"v_lshl_add_u32 v{vOW}, v55, 4, v{vOW}")
    R.wait_lg_all()
    for nt in range(3):
        mo, lo = 32 + 2*nt, 33 + 2*nt
        m, l = M2[nt], M2[nt] + 1
        a(f"v_max_f32 v38, v{m}, v{mo}")
        a(f"v_sub_f32 v{ALO[nt]}, v{m}, v38"); a(f"v_sub_f32 v{ALP[nt]}, v{mo}, v38")
        a(f"v_exp_f32 v{ALO[nt]}, v{ALO[nt]}"); a(f"v_exp_f32 v{ALP[nt]}, v{ALP[nt]}")
        a(f"v_mul_f32 v38, v{l}, v{ALO[nt]}")
        a(f"v_fma_f32 v38, v{lo}, v{ALP[nt]}, v38")
        a("v_rcp_f32 v38, v38")
        a(f"v_mul_f32 v{ALO[nt]}, v{ALO[nt]}, v38"); a(f"v_mul_f32 v{ALP[nt]}, v{ALP[nt]}, v38")

def a_PV(R, n, dma=None):
    a = R.a
    j, w = n >> 1, n & 1
    buf = KVA if w == 0 else KVB
    frs = [(s, mt) for s in range(4) for mt in range(4)]
    if w == 1: frs = frs[:12] + [(3, 2), (3, 3), (3, 0), (3, 1)]
    NB = 4
    def rd(k):
        s, mt = frs[k]
        b = KF + 4*(k % NB)
        R.lds(f"ds_read_b64_tr_b16 {vr(b,2)}, v{40+mt} offset:{buf + 4096*s}", f"vf{k}")
        R.lds(f"ds_read_b64_tr_b16 {vr(b+2,2)}, v{40+mt} offset:{buf + 4096*s + 2048}", f"vf{k}")
    for k in range(NB-1): rd(k)
    if dma and not cfg.interleave:
        for ii in range(8): kv_dma(R, dma[0], dma[1], ii)
        dma = None
    for k, (s, mt) in enumerate(frs):
        if k + NB - 1 < len(frs): rd(k + NB - 1)
        if dma and k < 8: kv_dma(R, dma[0], dma[1], k)
        R.wait_lg(f"vf{k}")
        for nt in range(3):
            d = Oa(mt, nt)
            c = "0" if (w == 0 and s == 0) else vr(d)
            a(f"v_mfma_f32_16x16x32_bf16 {vr(d)}, {vr(KF + 4*(k % NB))}, {vr(Pf(w,s,nt))}, {c}")
        if w == 1 and k >= 14:
            m2 = k - 12
            for nt in range(3):
                R.lds(f"ds_write_b128 v{vXW}, {vr(Oa(m2,nt))} offset:{((m2-2)*3+nt)*1024}", "xw")

def a_rescale(R):
    a = R.a
    for mt in range(4):
        for nt in range(3):
            if cfg.unpack:
                for r in range(4): a(f"v_mul_f32 v{Oa(mt,nt)+r}, v{BETA[nt]}, v{Oa(mt,nt)+r}")
                continue
            for h2 in (0, 2):
                b = Oa(mt, nt) + h2
                a(f"v_pk_mul_f32 {vr(b,2)}, {vr(b,2)}, {vr(BETA[nt],2)} op_sel_hi:[1,0]")

def a_xwrite(R):
    a = R.a
    for mt in (2, 3):
        for nt in range(3):
            R.lds(f"ds_write_b128 v{vXW}, {vr(Oa(mt,nt))} offset:{((mt-2)*3+nt)*1024}", "xw")

def a_xfinal(R, dma=None):
    a = R.a
    for nt in range(3):
        for i in range(2):
            R.lds(f"ds_read_b128 {vr(XT(i,nt))}, v{vXR} offset:{(i*3+nt)*1024}", f"xr{nt}")
    if dma:
        for ii in range(8): kv_dma(R, dma[0], dma[1], ii)
    for nt in range(3):
        for i in range(2):
            if cfg.unpack:
                for r in range(4): a(f"v_mul_f32 v{Oa(i,nt)+r}, v{ALO[nt]}, v{Oa(i,nt)+r}")
                continue
            for h2 in (0, 2):
                b = Oa(i, nt) + h2
                a(f"v_pk_mul_f32 {vr(b,2)}, {vr(b,2)}, {vr(ALO[nt],2)} op_sel_hi:[1,0]")
    for nt in range(3):
        R.wait_lg(f"xr{nt}")
        for i in range(2):
            if cfg.unpack:
                for r in range(4): a(f"v_fma_f32 v{Oa(i,nt)+r}, v{XT(i,nt)+r}, v{ALP[nt]}, v{Oa(i,nt)+r}")
                continue
            for h2 in (0, 2):
                b, x = Oa(i, nt) + h2, XT(i, nt) + h2
                a(f"v_pk_fma_f32 {vr(b,2)}, {vr(x,2)}, {vr(ALP[nt],2)}, {vr(b,2)} op_sel_hi:[1,0,1]")
        d = XT(0, nt)
        a(f"v_cvt_pk_bf16_f32 v{d}, v{Oa(0,nt)}, v{Oa(0,nt)+1}")
        a(f"v_cvt_pk_bf16_f32 v{d+1}, v{Oa(0,nt)+2}, v{Oa(0,nt)+3}")
        a(f"v_cvt_pk_bf16_f32 v{d+2}, v{Oa(1,nt)}, v{Oa(1,nt)+1}")
        a(f"v_cvt_pk_bf16_f32 v{d+3}, v{Oa(1,nt)+2}, v{Oa(1,nt)+3}")
        R.lds(f"ds_write_b128 v{vOW}, {vr(d)} offset:{2048*nt}", "ow")

PRING = 0
vWqD = 20
vWqR = 21
vQW = 25
PT = 26
vWqR5 = 35
def Xf(s, nt): return 40 + (s*3 + nt)*4
def Qa(mt, nt): return 208 + (mt*3 + nt)*4

def p_lane(a):
    a(f"v_mbcnt_lo_u32_b32 v{PT}, -1, 0"); a(f"v_mbcnt_hi_u32_b32 v{PT}, -1, v{PT}")
    a(f"v_and_b32 v{PT+1}, 15, v{PT}"); a(f"v_lshrrev_b32 v{PT+2}, 4, v{PT}")

def p_setup(R):
    a = R.a
    l, q, g = PT, PT+1, PT+2
    p = sIDX
    p_lane(a)
    a(f"s_mul_i32 s{sXo}, s{p}, 896")
    a(f"s_lshr_b32 s{sT0}, s{p}, 1")
    a(f"v_xor_b32 v{PT+3}, s{sT0}, v{l}"); a(f"v_lshlrev_b32 v{PT+3}, 4, v{PT+3}")
    for k in range(4):
        a(f"v_xor_b32 v{PT+4+k}, {(2*k) << 4}, v{PT+3}")
    a(f"s_mov_b64 s[{sEX}:{sEX+1}], exec")
    a("s_mov_b32 exec_hi, 0x00ffffff")
    for ii in range(12):
        base = (KVB + 3584*ii) if ii < 8 else (QB + 3584*(ii-8))
        a(f"s_add_u32 m0, s{sXo}, {base}")
        a(f"s_add_u32 s{sT1}, s{sXo}, {3584*ii}")
        R.vmem(f"buffer_load_dwordx4 v{PT+4 + (ii % 4)}, {srd(SRD_X)}, s{sT1} offen lds", "x")
    a(f"s_mov_b64 exec, s[{sEX}:{sEX+1}]")

def p_setup2(R):
    a = R.a
    l, q, g = PT, PT+1, PT+2
    p = sIDX
    a(f"s_lshl_b32 s{sWp}, s{p}, 14"); a(f"s_add_u32 s{sWp}, s{sWp}, {WB}")
    wq_dma_pattern(a, vWqD, l, g, PT+3, PT+4)
    a(f"v_lshrrev_b32 v{PT+3}, 2, v{l}")
    a(f"v_lshrrev_b32 v{PT+4}, 1, v{PT+3}"); a(f"v_and_b32 v{PT+4}, 3, v{PT+4}")
    a(f"v_lshlrev_b32 v{PT+5}, 7, v{PT+3}"); a(f"v_add_u32 v{PT+5}, s{sWp}, v{PT+5}")
    a(f"v_and_b32 v{PT+6}, 3, v{l}"); a(f"v_lshl_add_u32 v{PT+5}, v{PT+6}, 3, v{PT+5}")
    for mt in range(4):
        a(f"v_xor_b32 v{PT+6}, {mt}, v{PT+4}")
        a(f"v_lshl_add_u32 v{vWqR+mt}, v{PT+6}, 5, v{PT+5}")
    a(f"s_and_b32 s{sT0}, s{sIDX}, 1"); a(f"s_mul_i32 s{sT0}, s{sT0}, {48*128}")
    a(f"s_lshr_b32 s{sT1}, s{sIDX}, 1"); a(f"s_mul_i32 s{sT1}, s{sT1}, 12288")
    a(f"s_add_u32 s{sT0}, s{sT0}, s{sT1}"); a(f"s_add_u32 s{sT0}, s{sT0}, {QB}")
    a(f"v_lshlrev_b32 v{PT+5}, 7, v{q}"); a(f"v_add_u32 v{PT+5}, s{sT0}, v{PT+5}")
    a(f"v_and_b32 v{PT+6}, 1, v{g}"); a(f"v_lshl_add_u32 v{PT+5}, v{PT+6}, 3, v{PT+5}")
    a(f"v_lshrrev_b32 v{PT+6}, 1, v{g}"); a(f"v_lshrrev_b32 v{PT+3}, 1, v{q}"); a(f"v_xor_b32 v{PT+6}, v{PT+6}, v{PT+3}")
    a(f"v_lshl_add_u32 v{vQW}, v{PT+6}, 4, v{PT+5}")
    a(f"v_lshrrev_b32 v{PT+3}, 1, v{q}")
    a(f"v_lshrrev_b32 v{PT+4}, 1, v{g}"); a(f"v_xor_b32 v{PT+4}, v{PT+4}, v{PT+3}")
    a(f"s_mov_b32 s{sT0}, 896"); a(f"v_mul_lo_u32 v{PT+5}, s{sT0}, v{q}")
    a(f"v_and_b32 v{PT+6}, 1, v{g}"); a(f"v_lshl_add_u32 v{PT+5}, v{PT+6}, 3, v{PT+5}")
    a(f"v_add_u32 v{PT+5}, {KVB}, v{PT+5}")
    for k in range(4):
        a(f"v_xor_b32 v{PT+6}, {2*k}, v{PT+4}")
        a(f"v_lshl_add_u32 v{PT+7+k}, v{PT+6}, 4, v{PT+5}")

def p_xfrags(R):
    a = R.a
    for pas in range(2):
        for s in range(14):
            for nt in ((0, 1) if pas == 0 else (2,)):
                for half in range(2):
                    k = 2*(s & 1) + half
                    off = (14336*nt if pas == 0 else 0) + 128*(s >> 1)
                    R.lds_guard(1)
                    R.lds(f"ds_read_b64 {vr(Xf(s,nt)+2*half,2)}, v{PT+7+k} offset:{off}", "xf")
        if pas == 0:
            R.wait_lg_all()
            for k in range(4): a(f"v_add_u32 v{PT+7+k}, {QB-KVB}, v{PT+7+k}")
    R.wait_lg_all()

def p_qcompute(R, kaps, stream_next, hooks=None):
    a = R.a
    D = cfg.dq; NB = D + 1
    hooks = hooks or {}
    frs = [(kap, mt) for kap in kaps for mt in range(4)]
    def rd(f):
        kap, mt = frs[f]
        if mt == 0: R.wait_vm(f"w{kap}")
        b = PRING + 4*(f % NB)
        area, off = wq_slot(kap)
        ad = (vWqR if area == 'own' else vWqR5) + mt
        R.lds(f"ds_read_b64_tr_b16 {vr(b,2)}, v{ad} offset:{off}", f"f{kap}_{mt}")
        R.lds(f"ds_read_b64_tr_b16 {vr(b+2,2)}, v{ad} offset:{off + 2048}", f"f{kap}_{mt}")
    for f in range(min(D, len(frs))): rd(f)
    for f, (kap, mt) in enumerate(frs):
        J, s = divmod(kap, 14)
        if f + D < len(frs): rd(f + D)
        if stream_next and cfg.j0s5 and kap >= 1 and kap + 4 < 14: wq_dma(R, kap + 4, vWqD, [mt])
        R.wait_lg(f"f{kap}_{mt}")
        if cfg.kst and mt == 0 and kap < 14 and kap % 2 == 0: lstamp(a, 26 + kap // 2)
        for nt in range(3):
            d = Qa(mt, nt)
            c = "0" if s == 0 else vr(d)
            a(f"v_mfma_f32_16x16x32_bf16 {vr(d)}, {vr(PRING + 4*(f % NB))}, {vr(Xf(s,nt))}, {c}")
        if stream_next and not cfg.j0s5 and mt == 3 and kap + NSLOT_Q < 14: wq_dma(R, kap + NSLOT_Q, vWqD)
        if mt == 3 and kap in hooks: hooks[kap]()
    last = kaps[-1]
    if last % 14 == 13:
        if cfg.kst and last == 13: lstamp(a, 33)
        k = 0
        for m2 in range(4):
            a(f"v_xor_b32 v{PT+8}, {32*m2}, v{vQW}")
            for nt in range(3):
                d = Qa(m2, nt)
                t = PT + 2*(k % 4); k += 1
                a(f"v_cvt_pk_bf16_f32 v{t}, v{d}, v{d+1}")
                a(f"v_cvt_pk_bf16_f32 v{t+1}, v{d+2}, v{d+3}")
                R.lds_guard(1)
                R.lds(f"ds_write_b64 v{PT+8}, {vr(t,2)} offset:{2048*nt}", "qw")
        R.wait_lg("qw")

ORING = 0
vWoD = 32
vWoR = 34
vOR = 42
VT = 48
ALT = 208
PUB = [216 + 4*i for i in range(10)] + [20, 24]
def Outa(i, nt): return 64 + (i*3 + nt)*4
def Of(ks, nt): return 160 + (ks*3 + nt)*4

def p_vsetup(R, wide):
    a = R.a
    l, q, g = VT, VT+1, VT+2
    a(f"v_mbcnt_lo_u32_b32 v{l}, -1, 0"); a(f"v_mbcnt_hi_u32_b32 v{l}, -1, v{l}")
    a(f"v_and_b32 v{q}, 15, v{l}"); a(f"v_lshrrev_b32 v{g}, 4, v{l}")
    a(f"s_lshl_b32 s{sT0}, s{sIDX}, 8")
    if wide:
        a(f"v_bfe_u32 v{VT+3}, v{l}, 1, 3"); a(f"v_xor_b32 v{VT+3}, v{VT+3}, v{g}")
        a(f"s_mov_b32 s{sT1}, 896"); a(f"v_mul_lo_u32 v{VT+4}, s{sT1}, v{g}")
        a(f"v_and_b32 v{VT+5}, 1, v{l}"); a(f"v_lshl_add_u32 v{VT+4}, v{VT+5}, 4, v{VT+4}")
        a(f"v_add_u32 v{VT+4}, s{sT0}, v{VT+4}")
        a(f"v_lshl_add_u32 v{vWoD}, v{VT+3}, 5, v{VT+4}")
        a(f"v_xor_b32 v{VT+3}, 4, v{VT+3}"); a(f"v_lshl_add_u32 v{vWoD+1}, v{VT+3}, 5, v{VT+4}")
        a(f"v_lshrrev_b32 v{VT+3}, 2, v{l}"); a(f"v_and_b32 v{VT+4}, 7, v{VT+3}")
        a(f"v_lshlrev_b32 v{VT+5}, 8, v{VT+3}")
    else:
        a(f"v_lshrrev_b32 v{VT+3}, 3, v{l}"); a(f"s_mov_b32 s{sT1}, 896"); a(f"v_mul_lo_u32 v{VT+4}, s{sT1}, v{VT+3}")
        a(f"v_bfe_u32 v{VT+3}, v{l}, 1, 2"); a(f"v_xor_b32 v{VT+3}, v{VT+3}, v{g}")
        a(f"v_lshl_add_u32 v{VT+4}, v{VT+3}, 5, v{VT+4}")
        a(f"v_and_b32 v{VT+5}, 1, v{l}"); a(f"v_lshl_add_u32 v{VT+4}, v{VT+5}, 4, v{VT+4}")
        a(f"v_add_u32 v{vWoD}, s{sT0}, v{VT+4}")
        a(f"v_lshrrev_b32 v{VT+3}, 2, v{l}")
        a(f"v_lshrrev_b32 v{VT+4}, 1, v{VT+3}"); a(f"v_and_b32 v{VT+4}, 3, v{VT+4}")
        a(f"v_lshlrev_b32 v{VT+5}, 7, v{VT+3}")
    a(f"v_and_b32 v{VT+6}, 3, v{l}"); a(f"v_lshl_add_u32 v{VT+5}, v{VT+6}, 3, v{VT+5}")
    a(f"s_lshl_b32 s{sT1}, s{sIDX}, 13")
    for mt in range(8 if wide else 4):
        a(f"v_xor_b32 v{VT+6}, {mt}, v{VT+4}")
        a(f"v_lshl_add_u32 v{VT+7}, v{VT+6}, 5, v{VT+5}")
        a(f"v_add_u32 v{vWoR+mt}, s{sWp}, v{VT+7}")
        a(f"v_add_u32 v{ALT+mt}, s{sT1}, v{VT+7}")
    a(f"v_lshrrev_b32 v{VT+3}, 1, v{q}"); a(f"v_xor_b32 v{VT+3}, v{g}, v{VT+3}")
    a(f"v_lshlrev_b32 v{VT+4}, 7, v{q}"); a(f"v_add_u32 v{VT+4}, {OB}, v{VT+4}")
    a(f"v_lshl_add_u32 v{vOR}, v{VT+3}, 4, v{VT+4}")
    a(f"v_xor_b32 v{VT+3}, 4, v{VT+3}"); a(f"v_lshl_add_u32 v{vOR+1}, v{VT+3}, 4, v{VT+4}")
    a(f"s_lshl_b32 s{sM0}, s{sIDX}, 13")

def wo_slot(kap, wide):
    slot = 8192 if wide else 4096
    special = {14: ('kv', KVA), 15: ('kv', KVB)}
    if kap in special: return special[kap]
    return ('own', (kap % 2)*slot)

def wo_dma(R, kap, wide, ii_list=None):
    a = R.a
    j, ks = divmod(kap, 4); h, s = divmod(ks, 2)
    row0 = 256*h + 32*s
    area, off = wo_slot(kap, wide)
    base = sWp if area == 'own' else sM0
    for ii in (ii_list if ii_list is not None else range(8 if wide else 4)):
        a(f"s_add_u32 m0, s{base}, {off + 1024*ii}")
        rows = 4*ii if wide else 8*ii
        a(f"s_add_u32 s{sT1}, s{sCOL+4+j}, {(row0 + rows)*896}")
        pat = vWoD + ((ii & 1) if wide else 0)
        R.vmem(f"buffer_load_dwordx4 v{pat}, {srd(SRD_WO)}, s{sT1} offen {cfg.w_flags} lds", f"o{kap}")

def p_ofrags(R):
    for k2 in range(4):
        for nt in range(3):
            R.lds_guard(1)
            R.lds(f"ds_read_b128 {vr(Of(k2,nt))}, v{vOR + (k2 & 1)} offset:{6144*(k2 >> 1) + 2048*nt}", f"of{k2}")

vPK0, vPK1, vPV, vPF = 44, 45, 46, 56
def p_kv_setup(R, first=False):
    a = R.a
    l, g = VT, VT+2
    a(f"s_lshl_b32 s{sM0}, s{sIDX}, 13")
    a(f"v_mbcnt_lo_u32_b32 v{l}, -1, 0"); a(f"v_mbcnt_hi_u32_b32 v{l}, -1, v{l}"); a(f"v_lshrrev_b32 v{g}, 4, v{l}")
    a(f"v_lshrrev_b32 v{VT+3}, 3, v{l}"); a(f"v_lshlrev_b32 v{VT+3}, 9, v{VT+3}")
    a(f"s_lshl_b32 s{sT1}, s{sIDX}, 15"); a(f"v_add_u32 v{VT+3}, s{sT1}, v{VT+3}")
    a(f"v_and_b32 v{VT+4}, 7, v{l}"); a(f"v_xor_b32 v{VT+5}, v{VT+4}, v{g}")
    a(f"v_lshl_add_u32 v{vPK0}, v{VT+5}, 4, v{VT+3}")
    a(f"v_xor_b32 v{VT+5}, 4, v{VT+5}"); a(f"v_lshl_add_u32 v{vPK1}, v{VT+5}, 4, v{VT+3}")
    a(f"v_lshrrev_b32 v{VT+5}, 1, v{VT+4}"); a(f"v_xor_b32 v{VT+5}, v{VT+5}, v{g}")
    a(f"v_lshl_add_u32 v{VT+5}, v{VT+5}, 5, v{VT+3}")
    a(f"v_and_b32 v{VT+4}, 1, v{l}"); a(f"v_lshl_add_u32 v{vPV}, v{VT+4}, 4, v{VT+5}")
    a(f"v_lshlrev_b32 v{vPF}, 7, v{l}")

def p_issue_KV(R, kind, n):
    a = R.a
    j, w = n >> 1, n & 1
    buf = KVA if w == 0 else KVB
    if kind == "K" and n >= 6: buf = T1 if n == 6 else T2
    for ii in range(8):
        a(f"s_add_u32 m0, s{sM0}, {buf + 1024*ii}")
        a(f"s_add_u32 s{sT1}, s{sCOL+j}, {131072*w + 4096*ii}")
        if kind == "K": R.vmem(f"buffer_load_dwordx4 v{vPK0 + (ii & 1)}, {srd(SRD_K)}, s{sT1} offen {cfg.k_flags} lds", f"K{n}")
        else: R.vmem(f"buffer_load_dwordx4 v{vPV}, {srd(SRD_V)}, s{sT1} offen {cfg.v_flags} lds", f"V{n}")

def p_pf_wo(R):
    a = R.a
    if not cfg.pf: return
    a(f"s_mul_i32 s{sT2}, s{sB}, 28672"); a(f"s_lshl_b32 s{sT3}, s{sIDX}, 13"); a(f"s_add_u32 s{sT2}, s{sT2}, s{sT3}")
    R.vmem(f"buffer_load_dword v57, v{vPF}, {srd(SRD_WO)}, s{sT2} offen {cfg.pf_flags}", "pf")

def p_of(R, k2):
    for nt in range(3):
        R.lds_guard(1)
        R.lds(f"ds_read_b128 {vr(Of(k2,nt))}, v{vOR + (k2 & 1)} offset:{6144*(k2 >> 1) + 2048*nt}", f"of{k2}")

def p_ocompute(R, kaps, wide, inter=None, ofr=False):
    a = R.a
    NT = 8 if wide else 4
    D = 4; NB = 5
    rowb = 256 if wide else 128
    inter = inter or {}
    frs = [(kap, mt) for kap in kaps for mt in range(NT)]
    def rd(f):
        kap, mt = frs[f]
        if mt == 0: R.wait_vm(f"o{kap}")
        b = ORING + 4*(f % NB)
        area, off = wo_slot(kap, wide)
        addr = (vWoR if area == 'own' else ALT) + mt
        R.lds_guard(2)
        R.lds(f"ds_read_b64_tr_b16 {vr(b,2)}, v{addr} offset:{off}", f"f{kap}_{mt}")
        R.lds(f"ds_read_b64_tr_b16 {vr(b+2,2)}, v{addr} offset:{off + 16*rowb}", f"f{kap}_{mt}")
    if ofr: p_of(R, 0)
    for f in range(D): rd(f)
    for f, (kap, mt) in enumerate(frs):
        j, ks = divmod(kap, 4)
        if f + D < len(frs): rd(f + D)
        if ofr and f < 3: p_of(R, f + 1)
        for (k2, ii) in inter.get(f, []): wo_dma(R, k2, wide, [ii])
        R.wait_lg(f"f{kap}_{mt}")
        if mt == 0: R.wait_lg(f"of{ks}")
        for nt in range(3):
            d = Outa(mt, nt)
            c = "0" if kap == 0 else vr(d)
            a(f"v_mfma_f32_16x16x32_bf16 {vr(d)}, {vr(ORING + 4*(f % NB))}, {vr(Of(ks,nt))}, {c}")
        if cfg.tst and mt == NT - 1 and kap >= 10: lstamp(a, 26 + kap - 10)

def p_oproj_phase(R, bar, wide):
    a = R.a
    NT = 8 if wide else 4
    nbar = 0
    def b1():
        nonlocal nbar
        bar(); nbar += 1
    b1()
    if cfg.wo_first_after >= 6: wo_dma(R, 0, wide); wo_dma(R, 1, wide)
    b1()
    for j in range(3):
        a.comment(f"---- O projection chunk {j}")
        p_ocompute(R, [4*j, 4*j+1], wide, ofr=True)
        wo_dma(R, 4*j+2, wide); wo_dma(R, 4*j+3, wide)
        b1()
        if j < 2:
            p_ocompute(R, [4*j+2, 4*j+3], wide)
            wo_dma(R, 4*j+4, wide); wo_dma(R, 4*j+5, wide)
        else:
            inter = {f: [(14, f)] for f in range(NT)}
            inter.update({NT + f: [(12, f)] for f in range(NT)})
            p_ocompute(R, [10, 11], wide, inter=inter)
            wo_dma(R, 13, wide)
        b1()
    p_ocompute(R, [12, 13], wide, inter={f: [(15, f)] for f in range(NT)}, ofr=True)
    p_ocompute_last(R, wide)
    return nbar

def p_ocompute_last(R, wide):
    a = R.a
    NT = 8 if wide else 4
    D = 4; NB = 5
    rowb = 256 if wide else 128
    frs = [(kap, 2*ip + t) for ip in range(NT//2) for kap in (14, 15) for t in range(2)]
    def rd(f):
        kap, mt = frs[f]
        if f == 0: R.wait_vm("o14"); R.wait_vm("o15")
        b = ORING + 4*(f % NB)
        area, off = wo_slot(kap, wide)
        addr = (vWoR if area == 'own' else ALT) + mt
        R.lds_guard(2)
        R.lds(f"ds_read_b64_tr_b16 {vr(b,2)}, v{addr} offset:{off}", f"g{f}")
        R.lds(f"ds_read_b64_tr_b16 {vr(b+2,2)}, v{addr} offset:{off + 16*rowb}", f"g{f}")
    a(f"v_mbcnt_lo_u32_b32 v{VT}, -1, 0"); a(f"v_mbcnt_hi_u32_b32 v{VT}, -1, v{VT}"); a(f"v_lshlrev_b32 v{VT}, 4, v{VT}")
    a(f"s_mul_i32 s{sT2}, s2, {PART}"); a(f"s_mul_i32 s{sT3}, s{sIDX}, {12*1024}"); a(f"s_add_u32 s{sT2}, s{sT2}, s{sT3}")
    npub = 0
    def pub_pair(ip):
        nonlocal npub
        for nt in range(3):
            t = PUB[npub]; npub += 1
            d0, d1 = Outa(2*ip, nt), Outa(2*ip+1, nt)
            a(f"v_cvt_pk_bf16_f32 v{t}, v{d0}, v{d0+1}"); a(f"v_cvt_pk_bf16_f32 v{t+1}, v{d0+2}, v{d0+3}")
            a(f"v_cvt_pk_bf16_f32 v{t+2}, v{d1}, v{d1+1}"); a(f"v_cvt_pk_bf16_f32 v{t+3}, v{d1+2}, v{d1+3}")
            a(f"s_add_u32 s{sT1}, s{sT2}, {1024*(ip*3 + nt)}")
            R.vmem(f"buffer_store_dwordx4 {vr(t)}, v{VT}, {srd(SRD_WS)}, s{sT1} offen sc0 sc1", "pub")
    for f in range(D): rd(f)
    for f, (kap, mt) in enumerate(frs):
        ks = kap % 4
        if f + D < len(frs): rd(f + D)
        R.wait_lg(f"g{f}")
        for nt in range(3):
            d = Outa(mt, nt)
            a(f"v_mfma_f32_16x16x32_bf16 {vr(d)}, {vr(ORING + 4*(f % NB))}, {vr(Of(ks,nt))}, {vr(d)}")
        if f % 4 == 1 and f >= 5: pub_pair(f//4 - 1)
    pub_pair(NT//2 - 1)

def p_flag(R):
    a = R.a
    if cfg.tst: lstamp(a, 32)
    R.wait_vm_all()
    if cfg.tst: lstamp(a, 33)
    a(f"s_mul_i32 s{sT0}, s{sGRP}, {FSTR}"); a(f"s_add_u32 s{sT0}, s{sT0}, {FLG}")
    a(f"s_lshl_b32 s{sT1}, s{sG}, 2"); a(f"s_add_u32 s{sT1}, s{sT1}, s{sIDX}"); a(f"s_lshl_b32 s{sT1}, s{sT1}, 2")
    a(f"v_mov_b32 v2, s{sT1}"); a("v_mov_b32 v1, 1")
    a(f"s_mov_b64 s[{sEX}:{sEX+1}], exec")
    a("s_mov_b64 exec, 1")
    a(f"buffer_store_dword v1, v2, {srd(SRD_WS)}, s{sT0} offen sc0 sc1")
    a(f"s_mov_b64 exec, s[{sEX}:{sEX+1}]")

def emit_reduce(a):
    a.label("L_tail")
    if cfg.stamps: stamp(a, 50)
    a(f"s_min_u32 s{sT0}, s{sG}, 2"); a(f"s_mul_i32 s{sT1}, s{sG}, 5"); a(f"s_add_u32 s{sT0}, s{sT0}, s{sT1}")
    a(f"s_cmp_lt_u32 s{sG}, 2"); a(f"s_cselect_b32 s{sT1}, 6, 5")
    a(f"s_mov_b32 s80, s{sT1}")
    a(f"s_add_u32 s{sT0}, s{sT0}, s{sWAVE}")
    a("v_mbcnt_lo_u32_b32 v3, -1, 0"); a("v_mbcnt_hi_u32_b32 v3, -1, v3")
    a("v_lshlrev_b32 v6, 4, v3"); a("v_lshlrev_b32 v0, 2, v3")
    a(f"s_mul_i32 s{sT2}, s{sT0}, 171"); a(f"s_lshr_b32 s{sT2}, s{sT2}, 9")
    a(f"s_mul_i32 s{sT3}, s{sT2}, 3"); a(f"s_sub_u32 s{sT3}, s{sT0}, s{sT3}")
    a(f"s_lshl_b32 s{sT3}, s{sT3}, 4"); a(f"s_mul_i32 s{sT1}, s{sB}, 48"); a(f"s_add_u32 s{sT3}, s{sT3}, s{sT1}")
    a(f"s_mul_i32 s{sT3}, s{sT3}, 1792"); a(f"s_lshl_b32 s{sT2}, s{sT2}, 6"); a(f"s_add_u32 s{sT3}, s{sT3}, s{sT2}")
    a(f"s_mul_i32 s{sT1}, s{sBR}, 896"); a(f"s_add_u32 s78, s{sT3}, s{sT1}") if not cfg.lstamps else None
    if cfg.lstamps: a(f"s_mul_i32 s{sT1}, s{sBR}, 896"); a(f"s_add_u32 s100, s{sT3}, s{sT1}")
    sOUT = 100 if cfg.lstamps else 78
    a("v_and_b32 v7, 15, v3"); a(f"s_mov_b32 s{sT1}, 1792"); a(f"v_mul_lo_u32 v7, s{sT1}, v7")
    a("v_bfe_u32 v8, v3, 4, 1"); a("v_lshl_add_u32 v7, v8, 5, v7")
    a("v_lshrrev_b32 v8, 5, v3"); a("v_lshl_add_u32 v7, v8, 4, v7")
    a(f"s_lshl_b32 s{sT1}, s{sB}, 4"); a(f"s_lshl_b32 s{sT2}, s{sBR}, 2"); a(f"s_add_u32 s{sT1}, s{sT1}, s{sT2}")
    a(f"s_mul_i32 s{sT1}, s{sT1}, {PART}"); a(f"s_lshl_b32 s{sT2}, s{sT0}, 10"); a(f"s_add_u32 s{sT3}, s{sT1}, s{sT2}")
    a(f"s_cmp_lg_u32 s{sWAVE}, 0"); a("s_cbranch_scc1 L_nopoll")
    a(f"s_mul_i32 s{sT0}, s{sGRP}, {FSTR}"); a(f"s_add_u32 s{sT0}, s{sT0}, {FLG}")
    a(f"s_mov_b64 s[{sEX}:{sEX+1}], exec")
    a("s_mov_b32 exec_hi, 0")
    a(f"s_mov_b32 s{sT2}, 0")
    a.label("L_poll")
    a(f"buffer_load_dword v4, v0, {srd(SRD_WS)}, s{sT0} offen sc0 sc1")
    a("s_waitcnt vmcnt(0)")
    a("v_cmp_eq_u32 vcc, 1, v4")
    a("s_cmp_eq_u32 vcc_lo, -1")
    a("s_cbranch_scc1 L_poll_done")
    a(f"s_add_u32 s{sT2}, s{sT2}, 1")
    a(f"s_cmp_ge_u32 s{sT2}, 400000")
    a("s_cbranch_scc1 L_poll_done")
    if cfg.sleep: a(f"s_sleep {cfg.sleep}")
    a("s_branch L_poll")
    a.label("L_poll_done")
    a(f"s_mov_b64 exec, s[{sEX}:{sEX+1}]")
    a.label("L_nopoll")
    a("s_barrier")
    a(f"s_cmp_ge_u32 s{sWAVE}, s80")
    a("s_cbranch_scc1 " + ("L_nogather" if cfg.stamps else ("L_mini" if cfg.mini else "L_end")))
    if cfg.stamps: stamp(a, 52)
    for k in range(8):
        gb, gp = k >> 2, k & 3
        a(f"s_add_u32 s{sT2}, s{sT3}, {(gb*8 + gp)*PART}")
        a(f"buffer_load_dwordx4 {vr(64+4*k)}, v6, {srd(SRD_WS)}, s{sT2} offen sc0 sc1")
    acc = 16
    for k in range(8):
        a(f"s_waitcnt vmcnt({7-k})")
        for r in range(4):
            src = 64 + 4*k + r
            if k == 0:
                a(f"v_lshlrev_b32 v{acc+2*r}, 16, v{src}"); a(f"v_and_b32 v{acc+2*r+1}, 0xffff0000, v{src}")
            else:
                t = 8 + 2*(r & 1) + 2
                a(f"v_lshlrev_b32 v{t}, 16, v{src}"); a(f"v_and_b32 v{t+1}, 0xffff0000, v{src}")
                a(f"v_pk_add_f32 {vr(acc+2*r,2)}, {vr(acc+2*r,2)}, {vr(t,2)}")
    for r in range(4):
        a(f"v_cvt_pk_bf16_f32 v{12+r}, v{acc+2*r}, v{acc+2*r+1}")
    a("v_permlane16_swap_b32 v12, v14")
    a("v_permlane16_swap_b32 v13, v15")
    a(f"buffer_store_dwordx4 v[12:15], v7, {srd(SRD_OUT)}, s{sOUT} offen")
    if cfg.stamps:
        a("s_waitcnt vmcnt(0)")
        a.label("L_nogather")
        stamp(a, 53)
        a("s_memtime s[74:75]"); a("s_waitcnt lgkmcnt(0)"); a("v_writelane_b32 v61, s74, 61")
        stamp_store(a)
    if cfg.mini:
        a.label("L_mini")
        a("s_memrealtime s[72:73]"); a("s_waitcnt vmcnt(0) lgkmcnt(0)")
        a("s_memrealtime s[72:73]"); a("s_waitcnt lgkmcnt(0)")
        a("v_mov_b32 v61, 0"); a("v_writelane_b32 v61, s90, 62"); a("v_writelane_b32 v61, s72, 53")
        stamp_store(a)
    a.label("L_end")
    a("s_endpgm")

def build():
    a = Asm()
    if cfg.mini:
        a("s_memrealtime s[90:91]")
    if cfg.stamps:
        a("s_memrealtime s[72:73]"); a("s_memtime s[74:75]"); a("s_waitcnt lgkmcnt(0)")
        a("v_writelane_b32 v61, s72, 62"); a("v_writelane_b32 v61, s74, 60")
    emit_prologue(a)
    cnt = {"n": 0}
    def bar():
        a("s_barrier")
        if cfg.stamps: stamp(a, cnt["n"])
        cnt["n"] += 1
    A = Role(a)
    if cfg.prioA: a(f"s_setprio {cfg.prioA}")
    a_setup(A)
    if cfg.pf_first: a_pf(A, "wq")
    bar()
    if not cfg.pf_first: a_pf(A, "wq")
    a_setup2(A)
    bar()
    a0_flag_zero(A)
    for kap in range(4): wq_dma(A, kap, vWqA)
    a_issue_KV(A, "K", 0)
    a_setup3(A)
    a_pair_init(A)
    A.wait_vm("w3")
    a0_flag_mark(A)
    bar()
    bar()
    a_issue_KV(A, "K", 1)
    A.wait_vm("K0")
    bar()
    a_S(A, 0)
    A.wait_vm("K1")
    bar()
    a_S(A, 1, dma=("K", 2)); A.wait_vm("K2"); bar()
    a_S(A, 2, dma=("K", 3)); A.wait_vm("K3"); bar()
    a_S(A, 3, dma=("K", 4)); A.wait_vm("K4"); bar()
    a_flag_load(A)
    a_issue_KV(A, "K", 5)
    a_flag_check(A)
    bar()
    a_S(A, 4)
    A.wait_vm("K5")
    bar()
    a_S(A, 5)
    bar()
    a_S(A, 6)
    if cfg.split_sm: a_softmax1(A)
    bar()
    a_S(A, 7)
    if not cfg.split_sm: a_softmax1(A)
    a_softmax2(A)
    bar()
    for n in range(8):
        dma = ("V", n+1) if 1 <= n <= 6 else None
        if cfg.prio7 and n == cfg.prio7from: a(f"s_setprio {cfg.prio7}")
        a_PV(A, n, dma)
        if n == 0:
            a_alpha(A); a_pair_addr(A)
        if n % 2 == 0:
            a_rescale(A)
        else:
            a_pair_sync(A, n >> 1)
            a_xfinal(A)
        if 1 <= n < 7: A.wait_vm(f"V{n+1}")
        A.wait_lg_all()
        bar()
    nA = cnt["n"]
    A.wait_vm_all()
    a("s_branch L_tail")
    a.label("L_P")
    cnt["n"] = 0
    P = Role(a)
    stamp_move(a, 39)
    if cfg.stamps: stamp(a, 55)
    if cfg.prioP: a(f"s_setprio {cfg.prioP}")
    P.vm += ["x"]*12
    if cfg.stamps: stamp(a, 56)
    bar()
    p_setup2(P)
    P.wait_vm("x"); bar()
    p_xfrags(P)
    if cfg.j0s5:
        a(f"s_lshl_b32 s{sWq5}, s{sIDX}, 12"); a(f"s_add_u32 s{sWq5}, s{sWq5}, {QB}")
        a(f"s_sub_u32 s{sT0}, s{sWq5}, s{sWp}")
        for mt in range(4): a(f"v_add_u32 v{vWqR5+mt}, s{sT0}, v{vWqR+mt}")
    bar()
    if cfg.j0s5: wq_dma(P, 4, vWqD)
    p_qcompute(P, list(range(14)), True, hooks={cfg.k1_after: bar})
    bar()
    for kap in (14, 15, 16, 17): wq_dma(P, kap, vWqD)
    bar()
    for kaps, nxt in (([14,15], [18,19]), ([16,17,18,19], [20,21,22,23]), ([20,21,22,23], [24,25,26,27]), ([24,25,26,27], [])):
        p_qcompute(P, kaps, False)
        for kap in nxt: wq_dma(P, kap, vWqD)
        bar()
    a(f"s_cmp_eq_u32 s{sIDX}, 3")
    a("s_cbranch_scc1 L_P3")
    base = cnt["n"]
    for wide in (True, False):
        if not wide:
            a.label("L_P3"); cnt["n"] = base
        Pw = Role(a)
        STREG[0] = 39
        stamp_move(a, 47)
        p_kv_setup(Pw, first=True)
        p_issue_KV(Pw, "K", 6)
        p_vsetup(Pw, wide)
        bar()
        p_issue_KV(Pw, "K", 7); Pw.wait_vm("K6"); bar()
        p_issue_KV(Pw, "V", 0); Pw.wait_vm("K7"); bar()
        p_issue_KV(Pw, "V", 1); p_pf_wo(Pw); Pw.wait_vm("V0"); bar()
        Pw.wait_vm("V1")
        nb = p_oproj_phase(Pw, bar, wide)
        assert nb == 8, nb
        if cfg.stamps: stamp(a, 59)
        p_flag(Pw)
        if cfg.stamps: stamp(a, 58)
        assert cnt["n"] == nA, (cnt["n"], nA)
        stamp_move(a, 61)
        if wide: a("s_branch L_tail")
    emit_reduce(a)
    a.finalize()
    return a

HEADER = open("cdna_kernels/" + NAME + ".s.ref").read().split("; Override launch")[0]
def full_text(a):
    s = HEADER
    s += f"; @launch grid=(256,1,1) block=(512,1,1) lds={LDS_BYTES}\n"
    s += f'.amdgcn_target "amdgcn-amd-amdhsa--gfx950"\n.text\n.globl {NAME}_kernel\n.p2align 8\n.type {NAME}_kernel,@function\n{NAME}_kernel:\n'
    body = a.text()
    if cfg.icpf:
        body = body.replace("  s_endpgm\n", "  s_endpgm\nL_code_end:\n") if body.count("s_endpgm") == 1 else body + "L_code_end:\n"
        body = body.replace("CODE_BYTES", f"L_code_end-{NAME}_kernel")
    s += body
    s += f""".section .rodata,"a"
.p2align 6
.amdhsa_kernel {NAME}_kernel
  .amdhsa_next_free_vgpr 256
  .amdhsa_next_free_sgpr 102
  .amdhsa_accum_offset 256
  .amdhsa_group_segment_fixed_size 0
  .amdhsa_kernarg_size 104
  .amdhsa_user_sgpr_count 2
  .amdhsa_user_sgpr_kernarg_segment_ptr 1
  .amdhsa_system_sgpr_workgroup_id_x 1
.end_amdhsa_kernel
"""
    return s

if __name__ == "__main__":
    out = sys.argv[1] if len(sys.argv) > 1 else "cdna_kernels/" + NAME + ".s"
    for kv in sys.argv[2:]:
        k, v = kv.split("=", 1)
        cur = getattr(cfg, k)
        if isinstance(cur, bool): v = v.lower() in ("1", "true")
        elif isinstance(cur, int): v = int(v)
        setattr(cfg, k, v)
    a = build()
    open(out, "w").write(full_text(a))
    print("wrote", out, "instrs:", sum(1 for i in a.ins if i.kind not in ('none','label')), "nops inserted:", a.nops_inserted)
```

```python
import sys, math, struct
from asmlib import Asm

NAME = "concat_heads__gqa_block_cached__gqa_block_cached__near_ridge"

class Cfg:
    k_flags = "nt"
    v_flags = "nt"
    w_flags = ""
    pf = True
    pf_flags = ""
    stamps = False
    lstamps = False
    mini = False
    prioA = 0
    prioP = 0
    dq = 4
    pf_wo_at = 8
    k1_after = 9
    split_sm = True
    sleep = 0
    interleave = False
    pf_first = False
    wo_first_after = 7
    tst = False
    p7prio = 0
    d14first = False
    tlbw = True
    icpf = True
    prio7 = 0
    prio7from = 7
    pkv = True
    unpack = True
    j0s5 = True
    rot = 1
    kst = False
cfg = Cfg()

KVA, KVB = 0, 32768
WB = 65536
QB = 131072
OB = 122880
XB = 135168
STAT = 159744
PFL = 161280
LDS_BYTES = 163840
PART = 43008
FLG = 16 << 20
FSTR = 8448
sWAVE, sIDX, sG, sB, sBR = 3, 4, 5, 6, 7
SRD_K, SRD_V, SRD_WQ, SRD_WO, SRD_X, SRD_OUT, SRD_WS = 8, 12, 16, 20, 24, 28, 32
sDBG = 58
sM0, sWp = 62, 63
sC = 64
sT0, sT1, sT2, sT3 = 66, 67, 68, 69
sEX = 70
sGRP, sXo = 76, 77
sCOL = 36
sJ = 44
def srd(b): return f"s[{b}:{b+3}]"
def vr(b, n=4): return f"v[{b}:{b+n-1}]"
def f32bits(x): return struct.unpack('<I', struct.pack('<f', x))[0]
vL, vQ, vGq = 44, 46, 47

class Role:
    def __init__(self, a): self.a = a; self.vm = []; self.lg = []
    def vmem(self, text, tag): self.a(text); self.vm.append(tag)
    def lds(self, text, tag): self.a(text); self.lg.append(tag)
    def wait_vm(self, tag):
        idx = [i for i, t in enumerate(self.vm) if t == tag]
        if not idx: return
        n = len(self.vm) - 1 - idx[-1]
        assert n <= 63
        self.a(f"s_waitcnt vmcnt({n})"); self.vm = self.vm[idx[-1]+1:]
    def wait_lg(self, tag):
        idx = [i for i, t in enumerate(self.lg) if t == tag]
        if not idx: return
        n = len(self.lg) - 1 - idx[-1]
        assert n <= 15, n
        self.a(f"s_waitcnt lgkmcnt({n})"); self.lg = self.lg[idx[-1]+1:]
    def wait_vm_all(self): self.a("s_waitcnt vmcnt(0)"); self.vm = []
    def wait_lg_all(self): self.a("s_waitcnt lgkmcnt(0)"); self.lg = []
    def lds_guard(self, n_new):
        if len(self.lg) + n_new > 15:
            keep = 15 - n_new
            self.a(f"s_waitcnt lgkmcnt({keep})"); self.lg = self.lg[len(self.lg)-keep:] if keep else []

STREG = [61]
PEND = []
def stamp(a, idx):
    a("s_memrealtime s[72:73]")
    a("s_waitcnt lgkmcnt(0)")
    a(f"v_writelane_b32 v{STREG[0]}, s72, {idx}")
    for (sp, i2) in PEND: a(f"v_writelane_b32 v{STREG[0]}, s{sp}, {i2}")
    PEND.clear()
def lstamp(a, idx):
    if not cfg.lstamps: return
    sp = 78 + 2*len(PEND)
    assert sp <= 98
    a(f"s_memrealtime s[{sp}:{sp+1}]")
    PEND.append((sp, idx))
def stamp_move(a, new):
    if cfg.stamps: a(f"v_mov_b32 v{new}, v{STREG[0]}")
    STREG[0] = new
def stamp_store(a):
    a(f"s_lshl_b32 s{sT0}, s2, 3"); a(f"s_add_u32 s{sT0}, s{sT0}, s{sWAVE}"); a(f"s_lshl_b32 s{sT0}, s{sT0}, 8")
    a("v_mbcnt_lo_u32_b32 v60, -1, 0"); a("v_mbcnt_hi_u32_b32 v60, -1, v60")
    a(f"v_lshlrev_b32 v60, 2, v60"); a(f"v_add_u32 v60, s{sT0}, v60")
    a("s_add_u32 s74, s60, 0x2000000"); a("s_addc_u32 s75, s61, 0")
    a("global_store_dword v60, v61, s[74:75]")
    a("s_waitcnt vmcnt(0)")

def emit_prologue(a):
    a("s_cmp_ge_u32 s2, 256")
    a("s_cbranch_scc1 L_end")
    a("s_load_dwordx16 s[36:51], s[0:1], 0")
    a("s_load_dwordx4 s[52:55], s[0:1], 64")
    a("s_load_dwordx4 s[56:59], s[0:1], 80")
    a("s_load_dwordx2 s[60:61], s[0:1], 96")
    a("v_and_b32 v44, 63, v0")
    a("v_lshrrev_b32 v45, 6, v0")
    a("v_and_b32 v46, 15, v44")
    a("v_lshrrev_b32 v47, 4, v44")
    a(f"v_readfirstlane_b32 s{sWAVE}, v45")
    a(f"s_bfe_u32 s{sBR}, s2, 0x10002")
    a(f"s_and_b32 s{sG}, s2, 3"); a(f"s_lshl_b32 s{sG}, s{sG}, 1")
    a(f"s_bfe_u32 s{sT0}, s2, 0x10003"); a(f"s_or_b32 s{sG}, s{sG}, s{sT0}")
    a(f"s_lshr_b32 s{sB}, s2, 4")
    a(f"s_and_b32 s{sIDX}, s{sWAVE}, 3")
    a(f"s_lshl_b32 s{sGRP}, s{sBR}, 4"); a(f"s_add_u32 s{sGRP}, s{sGRP}, s{sB}")
    a(f"s_mov_b32 s{sC}, 0x{f32bits(math.log2(math.e)/16.0):08x}"); a(f"s_mov_b32 s{sC+1}, s{sC}")
    a_code_prefetch(Role(a))
    a("s_waitcnt lgkmcnt(0)")
    if cfg.stamps: stamp(a, 54)
    a(f"s_cmp_eq_u32 s{sBR}, 0")
    for i in range(5):
        a(f"s_cselect_b64 s[{36+2*i}:{37+2*i}], s[{36+2*i}:{37+2*i}], s[{46+2*i}:{47+2*i}]")
    def mk(srdb, ptr, off_s, size):
        if off_s is None:
            a(f"s_mov_b32 s{srdb}, s{ptr}"); a(f"s_and_b32 s{srdb+1}, s{ptr+1}, 0xffff")
        else:
            a(f"s_add_u32 s{srdb}, s{ptr}, s{off_s}")
            a(f"s_addc_u32 s{srdb+1}, s{ptr+1}, 0")
            a(f"s_and_b32 s{srdb+1}, s{srdb+1}, 0xffff")
        if isinstance(size, int): a(f"s_mov_b32 s{srdb+2}, {size}")
        else: a(size)
        a(f"s_mov_b32 s{srdb+3}, 0x20000")
    a(f"s_mul_i32 s{sT1}, s{sB}, 43008")
    mk(SRD_X, 36, sT1, 43008)
    a(f"s_cmp_lt_u32 s{sWAVE}, 4"); a("s_cbranch_scc1 L_nox")
    PX = Role(a); p_setup(PX)
    a.label("L_nox")
    a(f"s_lshl_b32 s{sT1}, s{sG}, 10")
    mk(SRD_WQ, 42, sT1, f"s_sub_u32 s{SRD_WQ+2}, {448*8192}, s{sT1}")
    a(f"s_lshl_b32 s{sT0}, s{sB}, 3"); a(f"s_add_u32 s{sT0}, s{sT0}, s{sG}"); a(f"s_lshl_b32 s{sT0}, s{sT0}, 18")
    mk(SRD_K, 38, sT0, 262144)
    mk(SRD_V, 40, sT0, 262144)
    a(f"s_mul_i32 s{sT1}, s{sG}, 458752")
    mk(SRD_WO, 44, sT1, 458752)
    mk(SRD_OUT, 56, None, 16*48*896*2)
    mk(SRD_WS, 60, None, FLG + 32*FSTR)
    if cfg.rot == 0: a(f"s_mov_b32 s{sT0}, 0")
    elif cfg.rot == 1: a(f"s_and_b32 s{sT0}, s{sB}, 3")
    elif cfg.rot == 2: a(f"s_add_u32 s{sT0}, s{sB}, s{sG}"); a(f"s_and_b32 s{sT0}, s{sT0}, 3")
    elif cfg.rot == 3: a(f"s_and_b32 s{sT0}, s{sB}, 1"); a(f"s_lshl_b32 s{sT0}, s{sT0}, 1")
    for j in range(4):
        a(f"s_add_u32 s{sT1}, s{sT0}, {j}"); a(f"s_and_b32 s{sT1}, s{sT1}, 3")
        a(f"s_lshl_b32 s{sCOL+j}, s{sT1}, 7"); a(f"s_mul_i32 s{sCOL+4+j}, s{sT1}, {64*896}")
    a(f"s_lshr_b32 s{sT2}, s{sIDX}, 1")
    for J in range(2):
        a(f"s_add_u32 s{sT1}, s{sT0}, s{sT2}"); a(f"s_add_u32 s{sT1}, s{sT1}, {2*J}"); a(f"s_and_b32 s{sT1}, s{sT1}, 3")
        a(f"s_lshl_b32 s{sJ+J}, s{sT1}, 7")
    a(f"s_cmp_ge_u32 s{sWAVE}, 4")
    a("s_cbranch_scc1 L_P")

def wq_dma_pattern(a, dst, l, g, t0, t1):
    a(f"v_lshrrev_b32 v{t0}, 3, v{l}"); a(f"v_lshlrev_b32 v{t0}, 13, v{t0}")
    a(f"v_bfe_u32 v{t1}, v{l}, 1, 2"); a(f"v_xor_b32 v{t1}, v{t1}, v{g}")
    a(f"v_lshl_add_u32 v{t0}, v{t1}, 5, v{t0}")
    a(f"v_and_b32 v{t1}, 1, v{l}"); a(f"v_lshl_add_u32 v{t0}, v{t1}, 4, v{t0}")
    a(f"s_and_b32 s{sT0}, s{sIDX}, 1"); a(f"s_lshl_b32 s{sT0}, s{sT0}, 9")
    a(f"v_add_u32 v{dst}, s{sT0}, v{t0}")

NSLOT_Q = 4
def wq_slot(kap):
    if cfg.j0s5 and kap < 14:
        sl = kap % 5
        return ('q', 0) if sl == 4 else ('own', sl*4096)
    return ('own', (kap % NSLOT_Q)*4096)
sWq5 = 47
def wq_dma(R, kap, vpat, ii_list=range(4)):
    a = R.a
    J, s = divmod(kap, 14)
    area, off = wq_slot(kap)
    for ii in ii_list:
        a(f"s_add_u32 m0, s{sWp if area == 'own' else sWq5}, {off + 1024*ii}")
        a(f"s_add_u32 s{sT1}, s{sJ+J}, {(32*s + 8*ii)*8192}")
        R.vmem(f"buffer_load_dwordx4 v{vpat}, {srd(SRD_WQ)}, s{sT1} offen {cfg.w_flags} lds", f"w{kap}")

def S_(t, nt): return 64 + (t*3 + nt)*4
def Qf(s, nt): return (s*3 + nt)*4
KF = 24
vKdE, vKdO, vVd, vWqA = 48, 49, 50, 51

def a_code_prefetch(R):
    a = R.a
    if not cfg.icpf: return
    a(f"s_cmp_lg_u32 s{sWAVE}, 3"); a("s_cbranch_scc1 L_icpf_skip")
    a("s_getpc_b64 s[72:73]")
    a.label("L_icpf_pc")
    a(f"s_sub_u32 s72, s72, L_icpf_pc-{NAME}_kernel"); a("s_subb_u32 s73, s73, 0")
    a(f"s_lshr_b32 s{sT0}, s2, 3"); a(f"s_lshl_b32 s{sT0}, s{sT0}, 11")
    a(f"v_lshlrev_b32 v58, 7, v{vL}"); a(f"v_add_u32 v58, s{sT0}, v58")
    a(f"s_mov_b64 s[{sEX}:{sEX+1}], exec"); a("s_mov_b64 exec, 0xffff")
    a("v_cmp_gt_u32 vcc, CODE_BYTES, v58")
    a("s_and_b64 exec, exec, vcc")
    a("s_cbranch_execz L_icpf_rest")
    a("global_load_dword v60, v58, s[72:73]")
    a.label("L_icpf_rest")
    a(f"s_mov_b64 exec, s[{sEX}:{sEX+1}]")
    a.label("L_icpf_skip")

def a_setup(R):
    a = R.a
    a(f"s_lshl_b32 s{sM0}, s{sIDX}, 13")
    a(f"s_lshl_b32 s{sWp}, s{sIDX}, 14"); a(f"s_add_u32 s{sWp}, s{sWp}, {WB}")
    if cfg.pf:
        a(f"v_lshrrev_b32 v52, 3, v{vL}"); a("v_lshlrev_b32 v52, 13, v52")
        a(f"v_and_b32 v53, 7, v{vL}"); a("v_lshl_add_u32 v56, v53, 7, v52")
        a(f"s_mul_i32 s{sT2}, s{sB}, 28"); a(f"s_lshl_b32 s{sT3}, s{sIDX}, 3"); a(f"s_add_u32 s{sT2}, s{sT2}, s{sT3}")
        a(f"s_lshl_b32 s{sT2}, s{sT2}, 13")

def a_pf(R, which):
    a = R.a
    if not cfg.pf: return
    if which == "wq":
        R.vmem(f"buffer_load_dword v63, v56, {srd(SRD_WQ)}, s{sT2} offen {cfg.pf_flags}", "pf")
    else:
        a(f"v_lshlrev_b32 v58, 7, v{vL}")
        a(f"s_mul_i32 s{sT2}, s{sB}, 28672"); a(f"s_lshl_b32 s{sT3}, s{sIDX}, 13"); a(f"s_add_u32 s{sT2}, s{sT2}, s{sT3}")
        R.vmem(f"buffer_load_dword v62, v58, {srd(SRD_WO)}, s{sT2} offen {cfg.pf_flags}", "pf")

def a_setup2(R):
    a = R.a
    wq_dma_pattern(a, vWqA, vL, vGq, 52, 53)
    a(f"v_lshrrev_b32 v52, 3, v{vL}"); a("v_lshlrev_b32 v52, 9, v52")
    a(f"s_lshl_b32 s{sT1}, s{sIDX}, 15"); a(f"v_add_u32 v52, s{sT1}, v52")
    a(f"v_and_b32 v53, 7, v{vL}"); a(f"v_xor_b32 v54, v53, v{vGq}")
    a(f"v_lshl_add_u32 v{vKdE}, v54, 4, v52")
    a("v_xor_b32 v54, 4, v54"); a(f"v_lshl_add_u32 v{vKdO}, v54, 4, v52")
    a("v_lshrrev_b32 v54, 1, v53"); a(f"v_xor_b32 v54, v54, v{vGq}")
    a("v_lshl_add_u32 v54, v54, 5, v52")
    a(f"v_and_b32 v55, 1, v{vL}"); a(f"v_lshl_add_u32 v{vVd}, v55, 4, v54")

def a_setup3(R):
    a = R.a
    a(f"s_lshr_b32 s{sT0}, s{sIDX}, 1")
    a(f"s_and_b32 s{sT1}, s{sIDX}, 1")
    a(f"v_lshrrev_b32 v52, 1, v{vQ}")
    a(f"v_xor_b32 v53, v{vGq}, v52")
    a(f"v_xor_b32 v54, 4, v53")
    a(f"s_lshl_b32 s{sT2}, s{sT1}, 14")
    a(f"v_lshlrev_b32 v55, 7, v{vQ}")
    a(f"v_add_u32 v55, s{sT2}, v55")
    a(f"v_lshl_add_u32 v40, v53, 4, v55")
    a(f"v_lshl_add_u32 v41, v54, 4, v55")
    a(f"s_mul_i32 s{sT2}, s{sT0}, {48*128}")
    a(f"s_add_u32 s{sT2}, s{sT2}, {QB}")
    a(f"v_lshlrev_b32 v55, 7, v{vQ}")
    a(f"v_add_u32 v55, s{sT2}, v55")
    a(f"v_lshl_add_u32 v42, v53, 4, v55")
    a(f"v_lshl_add_u32 v43, v54, 4, v55")

def a_pair_init(R):
    a = R.a
    a(f"s_lshl_b32 s{sT0}, s{sIDX}, 4"); a(f"s_add_u32 s{sT0}, s{sT0}, {PFL}")
    a(f"v_mov_b32 v55, s{sT0}"); a("v_mov_b32 v56, 0")
    R.lds("ds_write_b32 v55, v56", "pf0")
    R.wait_lg_all()

def a_pair_addr(R):
    a = R.a
    a(f"s_lshl_b32 s{sT0}, s{sIDX}, 4"); a(f"s_add_u32 s{sT0}, s{sT0}, {PFL}")
    a(f"v_mov_b32 v55, s{sT0}"); a(f"s_xor_b32 s{sT0}, s{sT0}, 16"); a(f"v_mov_b32 v56, s{sT0}")

def a_pair_sync(R, j):
    a = R.a
    R.wait_lg_all()
    a(f"v_mov_b32 v57, {j+1}")
    a("ds_write_b32 v55, v57")
    a.label(f"L_ps{j}")
    a("ds_read_b32 v57, v56")
    a("s_waitcnt lgkmcnt(0)")
    a(f"v_readfirstlane_b32 s{sT0}, v57")
    a(f"s_cmp_lt_u32 s{sT0}, {j+1}")
    a(f"s_cbranch_scc1 L_ps{j}")

def kv_dma(R, kind, n, ii):
    a = R.a
    j, w = n >> 1, n & 1
    buf = KVA if w == 0 else KVB
    a(f"s_add_u32 m0, s{sM0}, {buf + 1024*ii}")
    a(f"s_add_u32 s{sT1}, s{sCOL+j}, {131072*w + 4096*ii}")
    if kind == "K":
        R.vmem(f"buffer_load_dwordx4 v{vKdE + (ii & 1)}, {srd(SRD_K)}, s{sT1} offen {cfg.k_flags} lds", f"K{n}")
    else:
        R.vmem(f"buffer_load_dwordx4 v{vVd}, {srd(SRD_V)}, s{sT1} offen {cfg.v_flags} lds", f"V{n}")
def a_issue_KV(R, kind, n):
    R.a.comment(f"---- issue {kind} window {n}")
    for ii in range(8): kv_dma(R, kind, n, ii)

def a0_flag_zero(R):
    a = R.a
    a(f"s_or_b32 s{sT0}, s{sG}, s{sIDX}"); a(f"s_cmp_lg_u32 s{sT0}, 0"); a("s_cbranch_scc1 L_fz_skip")
    a(f"s_mul_i32 s{sT0}, s{sGRP}, {FSTR}"); a(f"s_add_u32 s{sT0}, s{sT0}, {FLG}")
    a(f"v_lshlrev_b32 v58, 2, v{vL}"); a("v_mov_b32 v59, 0")
    a(f"s_mov_b64 s[{sEX}:{sEX+1}], exec"); a("s_mov_b32 exec_hi, 0")
    a(f"buffer_store_dword v59, v58, {srd(SRD_WS)}, s{sT0} offen sc0 sc1")
    a(f"s_mov_b64 exec, s[{sEX}:{sEX+1}]")
    a.label("L_fz_skip")

def a0_flag_mark(R):
    a = R.a
    a(f"s_or_b32 s{sT0}, s{sG}, s{sIDX}"); a(f"s_cmp_lg_u32 s{sT0}, 0"); a("s_cbranch_scc1 L_fm_skip")
    a(f"s_lshl_b32 s{sT0}, s{sGRP}, 2"); a(f"v_mov_b32 v58, s{sT0}"); a("v_mov_b32 v59, 1")
    a(f"s_mov_b64 s[{sEX}:{sEX+1}], exec"); a("s_mov_b64 exec, 1")
    a(f"global_store_dword v58, v59, s[{sDBG}:{sDBG+1}] sc0 sc1")
    a(f"s_mov_b64 exec, s[{sEX}:{sEX+1}]")
    a.label("L_fm_skip")

def a_flag_load(R):
    a = R.a
    a(f"s_lshl_b32 s{sT0}, s{sGRP}, 2"); a(f"v_mov_b32 v58, s{sT0}")
    R.vmem(f"global_load_dword v59, v58, s[{sDBG}:{sDBG+1}] sc0 sc1", "chk")
def a_flag_check(R):
    a = R.a
    R.wait_vm("chk")
    a(f"s_mov_b32 s{sT2}, 0")
    a.label("L_fc_poll")
    a(f"v_readfirstlane_b32 s{sT1}, v59")
    a(f"s_cmp_eq_u32 s{sT1}, 1"); a("s_cbranch_scc1 L_fc_skip")
    a(f"s_add_u32 s{sT2}, s{sT2}, 1"); a(f"s_cmp_ge_u32 s{sT2}, 400000"); a("s_cbranch_scc1 L_fc_skip")
    a("s_sleep 2")
    a(f"global_load_dword v59, v58, s[{sDBG}:{sDBG+1}] sc0 sc1")
    a("s_waitcnt vmcnt(0)")
    a("s_branch L_fc_poll")
    a.label("L_fc_skip")

T1, T2 = WB, WB + 32768
def a_S(R, n, dma=None):
    a = R.a
    j, w = n >> 1, n & 1
    buf = KVA if w == 0 else KVB
    if n >= 6:
        if n == 6:
            for s2 in range(2): a(f"v_add_u32 v{40+s2}, {T1}, v{40+s2}")
        buf = 0 if n == 6 else 32768
    if w == 0:
        for s in range(2):
            for nt in range(3):
                R.lds(f"ds_read_b128 {vr(Qf(s,nt))}, v{42+s} offset:{12288*(j & 1) + 2048*nt}", "q")
    frs = [(i, s) for i in range(8) for s in range(2)]
    NB = 4
    def rd(k):
        i, s = frs[k]
        R.lds(f"ds_read_b128 {vr(KF + 4*(k % NB))}, v{40+s} offset:{buf + 2048*i}", f"kf{k}")
    for k in range(NB-1): rd(k)
    if dma and not cfg.interleave:
        for ii in range(8): kv_dma(R, dma[0], dma[1], ii)
        dma = None
    for k, (i, s) in enumerate(frs):
        if k + NB - 1 < len(frs): rd(k + NB - 1)
        if dma and k < 8: kv_dma(R, dma[0], dma[1], k)
        R.wait_lg(f"kf{k}")
        for nt in range(3):
            d = S_(8*w + i, nt)
            c = "0" if (j == 0 and s == 0) else vr(d)
            a(f"v_mfma_f32_16x16x32_bf16 {vr(d)}, {vr(KF + 4*(k % NB))}, {vr(Qf(s,nt))}, {c}")

M1 = (52, 54, 56)
L1 = (53, 55, 57)
BETA = (0, 2, 4); ALO = (6, 8, 10); ALP = (12, 14, 16)
ONES1, ONES2 = 36, 20
def Pf(w, s, nt): return S_(8*w + 2*s, nt)
def Oa(mt, nt): return S_(2*mt + 1, nt)
def XT(i, nt): return S_(9 + 2*i, nt)

def _rowmax(a, tiles, dst, tmp):
    for nt in range(3):
        m = dst[nt]
        vals = [S_(t, nt) + r for t in tiles for r in range(4)]
        a(f"v_max3_f32 v{m}, v{vals[0]}, v{vals[1]}, v{vals[2]}")
        a(f"v_max3_f32 v{tmp}, v{vals[3]}, v{vals[4]}, v{vals[5]}")
        k = 6
        while k + 3 < len(vals):
            a(f"v_max3_f32 v{m}, v{m}, v{vals[k]}, v{vals[k+1]}")
            a(f"v_max3_f32 v{tmp}, v{tmp}, v{vals[k+2]}, v{vals[k+3]}")
            k += 4
        rest = vals[k:]
        assert len(rest) == 2
        a(f"v_max3_f32 v{m}, v{m}, v{rest[0]}, v{rest[1]}")
        a(f"v_max_f32 v{m}, v{m}, v{tmp}")
    for nt in range(3):
        m = dst[nt]
        a(f"v_mov_b32 v{tmp+nt}, v{m}")
    for nt in range(3):
        a(f"v_permlane32_swap_b32 v{tmp+nt}, v{dst[nt]}")
    for nt in range(3):
        a(f"v_max_f32 v{dst[nt]}, v{tmp+nt}, v{dst[nt]}")
    for nt in range(3):
        a(f"v_mov_b32 v{tmp+nt}, v{dst[nt]}")
    for nt in range(3):
        a(f"v_permlane16_swap_b32 v{tmp+nt}, v{dst[nt]}")
    for nt in range(3):
        a(f"v_max_f32 v{dst[nt]}, v{tmp+nt}, v{dst[nt]}")
        a(f"v_mul_f32 v{dst[nt]}, s{sC}, v{dst[nt]}")

def _exppack(a, t0s, mreg):
    for t0 in t0s:
        for nt in range(3):
            m = mreg[nt]
            b0, b1 = S_(t0, nt), S_(t0+1, nt)
            for b in (b0, b0+2, b1, b1+2):
                a(f"v_pk_fma_f32 {vr(b,2)}, {vr(b,2)}, s[{sC}:{sC+1}], {vr(m,2)} op_sel_hi:[1,1,0] neg_lo:[0,0,1] neg_hi:[0,0,1]")
            src = [b0+r for r in range(4)] + [b1+r for r in range(4)]
            for v in src: a(f"v_exp_f32 v{v}, v{v}")
            a(f"v_cvt_pk_bf16_f32 v{b0}, v{src[0]}, v{src[1]}")
            a(f"v_cvt_pk_bf16_f32 v{b0+1}, v{src[2]}, v{src[3]}")
            a(f"v_cvt_pk_bf16_f32 v{b0+2}, v{src[4]}, v{src[5]}")
            a(f"v_cvt_pk_bf16_f32 v{b0+3}, v{src[6]}, v{src[7]}")

def _rowsum(a, w, ones, acc):
    for r in range(4): a(f"v_mov_b32 v{ones+r}, 0x3f803f80")
    for s in range(4):
        for nt in range(3):
            c = "0" if s == 0 else vr(acc(nt))
            a(f"v_mfma_f32_16x16x32_bf16 {vr(acc(nt))}, {vr(ones)}, {vr(Pf(w,s,nt))}, {c}")

def a_softmax1(R):
    a = R.a
    _rowmax(a, range(0, 8), M1, 24)
    _exppack(a, (0, 2, 4, 6), M1)
    _rowsum(a, 0, ONES1, lambda nt: S_(1, nt))
    for nt in range(3): a(f"v_mov_b32 v{L1[nt]}, v{S_(1,nt)}")

def a_softmax2(R):
    a = R.a
    M2 = (24, 26, 28)
    _rowmax(a, range(8, 16), M2, 30)
    for nt in range(3):
        a(f"v_max_f32 v{M2[nt]}, v{M2[nt]}, v{M1[nt]}")
        a(f"v_sub_f32 v{BETA[nt]}, v{M1[nt]}, v{M2[nt]}")
    for nt in range(3): a(f"v_exp_f32 v{BETA[nt]}, v{BETA[nt]}")
    _exppack(a, (8, 10, 12, 14), M2)
    _rowsum(a, 1, ONES2, lambda nt: S_(13, nt))
    a_vaddr(R)
    for nt in range(3):
        a(f"v_fma_f32 v{M2[nt]+1}, v{BETA[nt]}, v{L1[nt]}, v{S_(13,nt)}")
    for nt in range(3):
        R.lds(f"ds_write_b64 v59, {vr(M2[nt],2)} offset:{128*nt}", "st")
    for nt in range(3):
        a(f"v_mov_b32 v{18+2*nt}, v{M2[nt]}"); a(f"v_mov_b32 v{19+2*nt}, v{M2[nt]+1}")
    R.wait_lg_all()

vXW, vXR, vOW = 52, 53, 54
def a_vaddr(R):
    a = R.a
    a(f"s_and_b32 s{sT1}, s{sIDX}, 1")
    a(f"v_lshrrev_b32 v32, 2, v{vL}")
    a(f"v_lshrrev_b32 v33, 1, v32"); a("v_and_b32 v33, 3, v33")
    a(f"s_lshl_b32 s{sT2}, s{sT1}, 14")
    a(f"v_lshlrev_b32 v34, 7, v32"); a(f"v_add_u32 v34, s{sT2}, v34")
    a(f"v_and_b32 v35, 3, v{vL}"); a(f"v_lshl_add_u32 v34, v35, 3, v34")
    a(f"s_lshl_b32 s{sT2}, s{sT1}, 1")
    a(f"v_xor_b32 v33, s{sT2}, v33")
    for mt in range(4):
        a(f"v_xor_b32 v35, {mt}, v33")
        a(f"v_lshl_add_u32 v{40+mt}, v35, 5, v34")
    a(f"s_mul_i32 s{sT0}, s{sIDX}, 384"); a(f"s_add_u32 s{sT0}, s{sT0}, {STAT}")
    a(f"v_lshlrev_b32 v59, 3, v{vQ}"); a(f"v_add_u32 v59, s{sT0}, v59")
    a(f"s_xor_b32 s{sT1}, s{sIDX}, 1"); a(f"s_mul_i32 s{sT1}, s{sT1}, 384"); a(f"s_add_u32 s{sT1}, s{sT1}, {STAT}")
    a(f"v_lshlrev_b32 v60, 3, v{vQ}"); a(f"v_add_u32 v60, s{sT1}, v60")

def a_alpha(R):
    a = R.a
    M2 = (18, 20, 22)
    for nt in range(3):
        R.lds(f"ds_read_b64 v[{32+2*nt}:{33+2*nt}], v60 offset:{128*nt}", "st")
    a(f"s_mul_i32 s{sT2}, s{sIDX}, 6144"); a(f"s_add_u32 s{sT2}, s{sT2}, {XB}")
    a(f"v_lshlrev_b32 v55, 4, v{vL}"); a(f"v_add_u32 v{vXW}, s{sT2}, v55")
    a(f"s_xor_b32 s{sT2}, s{sIDX}, 1"); a(f"s_mul_i32 s{sT2}, s{sT2}, 6144"); a(f"s_add_u32 s{sT2}, s{sT2}, {XB}")
    a(f"v_add_u32 v{vXR}, s{sT2}, v55")
    a(f"s_and_b32 s{sT1}, s{sIDX}, 1")
    a(f"s_lshr_b32 s{sT0}, s{sIDX}, 1"); a(f"s_mul_i32 s{sT2}, s{sT0}, {48*128}"); a(f"s_add_u32 s{sT2}, s{sT2}, {OB}")
    a(f"v_lshlrev_b32 v{vOW}, 7, v{vQ}"); a(f"v_add_u32 v{vOW}, s{sT2}, v{vOW}")
    a(f"s_lshl_b32 s{sT3}, s{sT1}, 2")
    a(f"v_or_b32 v55, s{sT3}, v{vGq}")
    a(f"v_lshrrev_b32 v56, 1, v{vQ}"); a("v_xor_b32 v55, v55, v56")
    a(f"v_lshl_add_u32 v{vOW}, v55, 4, v{vOW}")
    R.wait_lg_all()
    for nt in range(3):
        mo, lo = 32 + 2*nt, 33 + 2*nt
        m, l = M2[nt], M2[nt] + 1
        a(f"v_max_f32 v38, v{m}, v{mo}")
        a(f"v_sub_f32 v{ALO[nt]}, v{m}, v38"); a(f"v_sub_f32 v{ALP[nt]}, v{mo}, v38")
        a(f"v_exp_f32 v{ALO[nt]}, v{ALO[nt]}"); a(f"v_exp_f32 v{ALP[nt]}, v{ALP[nt]}")
        a(f"v_mul_f32 v38, v{l}, v{ALO[nt]}")
        a(f"v_fma_f32 v38, v{lo}, v{ALP[nt]}, v38")
        a("v_rcp_f32 v38, v38")
        a(f"v_mul_f32 v{ALO[nt]}, v{ALO[nt]}, v38"); a(f"v_mul_f32 v{ALP[nt]}, v{ALP[nt]}, v38")

def a_PV(R, n, dma=None):
    a = R.a
    j, w = n >> 1, n & 1
    buf = KVA if w == 0 else KVB
    frs = [(s, mt) for s in range(4) for mt in range(4)]
    if w == 1: frs = frs[:12] + [(3, 2), (3, 3), (3, 0), (3, 1)]
    NB = 4
    def rd(k):
        s, mt = frs[k]
        b = KF + 4*(k % NB)
        R.lds(f"ds_read_b64_tr_b16 {vr(b,2)}, v{40+mt} offset:{buf + 4096*s}", f"vf{k}")
        R.lds(f"ds_read_b64_tr_b16 {vr(b+2,2)}, v{40+mt} offset:{buf + 4096*s + 2048}", f"vf{k}")
    for k in range(NB-1): rd(k)
    if dma and not cfg.interleave:
        for ii in range(8): kv_dma(R, dma[0], dma[1], ii)
        dma = None
    for k, (s, mt) in enumerate(frs):
        if k + NB - 1 < len(frs): rd(k + NB - 1)
        if dma and k < 8: kv_dma(R, dma[0], dma[1], k)
        R.wait_lg(f"vf{k}")
        for nt in range(3):
            d = Oa(mt, nt)
            c = "0" if (w == 0 and s == 0) else vr(d)
            a(f"v_mfma_f32_16x16x32_bf16 {vr(d)}, {vr(KF + 4*(k % NB))}, {vr(Pf(w,s,nt))}, {c}")
        if w == 1 and k >= 14:
            m2 = k - 12
            for nt in range(3):
                R.lds(f"ds_write_b128 v{vXW}, {vr(Oa(m2,nt))} offset:{((m2-2)*3+nt)*1024}", "xw")

def a_rescale(R):
    a = R.a
    for mt in range(4):
        for nt in range(3):
            if cfg.unpack:
                for r in range(4): a(f"v_mul_f32 v{Oa(mt,nt)+r}, v{BETA[nt]}, v{Oa(mt,nt)+r}")
                continue
            for h2 in (0, 2):
                b = Oa(mt, nt) + h2
                a(f"v_pk_mul_f32 {vr(b,2)}, {vr(b,2)}, {vr(BETA[nt],2)} op_sel_hi:[1,0]")

def a_xwrite(R):
    a = R.a
    for mt in (2, 3):
        for nt in range(3):
            R.lds(f"ds_write_b128 v{vXW}, {vr(Oa(mt,nt))} offset:{((mt-2)*3+nt)*1024}", "xw")

def a_xfinal(R, dma=None):
    a = R.a
    for nt in range(3):
        for i in range(2):
            R.lds(f"ds_read_b128 {vr(XT(i,nt))}, v{vXR} offset:{(i*3+nt)*1024}", f"xr{nt}")
    if dma:
        for ii in range(8): kv_dma(R, dma[0], dma[1], ii)
    for nt in range(3):
        for i in range(2):
            if cfg.unpack:
                for r in range(4): a(f"v_mul_f32 v{Oa(i,nt)+r}, v{ALO[nt]}, v{Oa(i,nt)+r}")
                continue
            for h2 in (0, 2):
                b = Oa(i, nt) + h2
                a(f"v_pk_mul_f32 {vr(b,2)}, {vr(b,2)}, {vr(ALO[nt],2)} op_sel_hi:[1,0]")
    for nt in range(3):
        R.wait_lg(f"xr{nt}")
        for i in range(2):
            if cfg.unpack:
                for r in range(4): a(f"v_fma_f32 v{Oa(i,nt)+r}, v{XT(i,nt)+r}, v{ALP[nt]}, v{Oa(i,nt)+r}")
                continue
            for h2 in (0, 2):
                b, x = Oa(i, nt) + h2, XT(i, nt) + h2
                a(f"v_pk_fma_f32 {vr(b,2)}, {vr(x,2)}, {vr(ALP[nt],2)}, {vr(b,2)} op_sel_hi:[1,0,1]")
        d = XT(0, nt)
        a(f"v_cvt_pk_bf16_f32 v{d}, v{Oa(0,nt)}, v{Oa(0,nt)+1}")
        a(f"v_cvt_pk_bf16_f32 v{d+1}, v{Oa(0,nt)+2}, v{Oa(0,nt)+3}")
        a(f"v_cvt_pk_bf16_f32 v{d+2}, v{Oa(1,nt)}, v{Oa(1,nt)+1}")
        a(f"v_cvt_pk_bf16_f32 v{d+3}, v{Oa(1,nt)+2}, v{Oa(1,nt)+3}")
        R.lds(f"ds_write_b128 v{vOW}, {vr(d)} offset:{2048*nt}", "ow")

PRING = 0
vWqD = 20
vWqR = 21
vQW = 25
PT = 26
vWqR5 = 35
def Xf(s, nt): return 40 + (s*3 + nt)*4
def Qa(mt, nt): return 208 + (mt*3 + nt)*4

def p_lane(a):
    a(f"v_mbcnt_lo_u32_b32 v{PT}, -1, 0"); a(f"v_mbcnt_hi_u32_b32 v{PT}, -1, v{PT}")
    a(f"v_and_b32 v{PT+1}, 15, v{PT}"); a(f"v_lshrrev_b32 v{PT+2}, 4, v{PT}")

def p_setup(R):
    a = R.a
    l, q, g = PT, PT+1, PT+2
    p = sIDX
    p_lane(a)
    a(f"s_mul_i32 s{sXo}, s{p}, 896")
    a(f"s_lshr_b32 s{sT0}, s{p}, 1")
    a(f"v_xor_b32 v{PT+3}, s{sT0}, v{l}"); a(f"v_lshlrev_b32 v{PT+3}, 4, v{PT+3}")
    for k in range(4):
        a(f"v_xor_b32 v{PT+4+k}, {(2*k) << 4}, v{PT+3}")
    a(f"s_mov_b64 s[{sEX}:{sEX+1}], exec")
    a("s_mov_b32 exec_hi, 0x00ffffff")
    for ii in range(12):
        base = (KVB + 3584*ii) if ii < 8 else (QB + 3584*(ii-8))
        a(f"s_add_u32 m0, s{sXo}, {base}")
        a(f"s_add_u32 s{sT1}, s{sXo}, {3584*ii}")
        R.vmem(f"buffer_load_dwordx4 v{PT+4 + (ii % 4)}, {srd(SRD_X)}, s{sT1} offen lds", "x")
    a(f"s_mov_b64 exec, s[{sEX}:{sEX+1}]")

def p_setup2(R):
    a = R.a
    l, q, g = PT, PT+1, PT+2
    p = sIDX
    a(f"s_lshl_b32 s{sWp}, s{p}, 14"); a(f"s_add_u32 s{sWp}, s{sWp}, {WB}")
    wq_dma_pattern(a, vWqD, l, g, PT+3, PT+4)
    a(f"v_lshrrev_b32 v{PT+3}, 2, v{l}")
    a(f"v_lshrrev_b32 v{PT+4}, 1, v{PT+3}"); a(f"v_and_b32 v{PT+4}, 3, v{PT+4}")
    a(f"v_lshlrev_b32 v{PT+5}, 7, v{PT+3}"); a(f"v_add_u32 v{PT+5}, s{sWp}, v{PT+5}")
    a(f"v_and_b32 v{PT+6}, 3, v{l}"); a(f"v_lshl_add_u32 v{PT+5}, v{PT+6}, 3, v{PT+5}")
    for mt in range(4):
        a(f"v_xor_b32 v{PT+6}, {mt}, v{PT+4}")
        a(f"v_lshl_add_u32 v{vWqR+mt}, v{PT+6}, 5, v{PT+5}")
    a(f"s_and_b32 s{sT0}, s{sIDX}, 1"); a(f"s_mul_i32 s{sT0}, s{sT0}, {48*128}")
    a(f"s_lshr_b32 s{sT1}, s{sIDX}, 1"); a(f"s_mul_i32 s{sT1}, s{sT1}, 12288")
    a(f"s_add_u32 s{sT0}, s{sT0}, s{sT1}"); a(f"s_add_u32 s{sT0}, s{sT0}, {QB}")
    a(f"v_lshlrev_b32 v{PT+5}, 7, v{q}"); a(f"v_add_u32 v{PT+5}, s{sT0}, v{PT+5}")
    a(f"v_and_b32 v{PT+6}, 1, v{g}"); a(f"v_lshl_add_u32 v{PT+5}, v{PT+6}, 3, v{PT+5}")
    a(f"v_lshrrev_b32 v{PT+6}, 1, v{g}"); a(f"v_lshrrev_b32 v{PT+3}, 1, v{q}"); a(f"v_xor_b32 v{PT+6}, v{PT+6}, v{PT+3}")
    a(f"v_lshl_add_u32 v{vQW}, v{PT+6}, 4, v{PT+5}")
    a(f"v_lshrrev_b32 v{PT+3}, 1, v{q}")
    a(f"v_lshrrev_b32 v{PT+4}, 1, v{g}"); a(f"v_xor_b32 v{PT+4}, v{PT+4}, v{PT+3}")
    a(f"s_mov_b32 s{sT0}, 896"); a(f"v_mul_lo_u32 v{PT+5}, s{sT0}, v{q}")
    a(f"v_and_b32 v{PT+6}, 1, v{g}"); a(f"v_lshl_add_u32 v{PT+5}, v{PT+6}, 3, v{PT+5}")
    a(f"v_add_u32 v{PT+5}, {KVB}, v{PT+5}")
    for k in range(4):
        a(f"v_xor_b32 v{PT+6}, {2*k}, v{PT+4}")
        a(f"v_lshl_add_u32 v{PT+7+k}, v{PT+6}, 4, v{PT+5}")

def p_xfrags(R):
    a = R.a
    for pas in range(2):
        for s in range(14):
            for nt in ((0, 1) if pas == 0 else (2,)):
                for half in range(2):
                    k = 2*(s & 1) + half
                    off = (14336*nt if pas == 0 else 0) + 128*(s >> 1)
                    R.lds_guard(1)
                    R.lds(f"ds_read_b64 {vr(Xf(s,nt)+2*half,2)}, v{PT+7+k} offset:{off}", "xf")
        if pas == 0:
            R.wait_lg_all()
            for k in range(4): a(f"v_add_u32 v{PT+7+k}, {QB-KVB}, v{PT+7+k}")
    R.wait_lg_all()

def p_qcompute(R, kaps, stream_next, hooks=None):
    a = R.a
    D = cfg.dq; NB = D + 1
    hooks = hooks or {}
    frs = [(kap, mt) for kap in kaps for mt in range(4)]
    def rd(f):
        kap, mt = frs[f]
        if mt == 0: R.wait_vm(f"w{kap}")
        b = PRING + 4*(f % NB)
        area, off = wq_slot(kap)
        ad = (vWqR if area == 'own' else vWqR5) + mt
        R.lds(f"ds_read_b64_tr_b16 {vr(b,2)}, v{ad} offset:{off}", f"f{kap}_{mt}")
        R.lds(f"ds_read_b64_tr_b16 {vr(b+2,2)}, v{ad} offset:{off + 2048}", f"f{kap}_{mt}")
    for f in range(min(D, len(frs))): rd(f)
    for f, (kap, mt) in enumerate(frs):
        J, s = divmod(kap, 14)
        if f + D < len(frs): rd(f + D)
        if stream_next and cfg.j0s5 and kap >= 1 and kap + 4 < 14: wq_dma(R, kap + 4, vWqD, [mt])
        R.wait_lg(f"f{kap}_{mt}")
        if cfg.kst and mt == 0 and kap < 14 and kap % 2 == 0: lstamp(a, 26 + kap // 2)
        for nt in range(3):
            d = Qa(mt, nt)
            c = "0" if s == 0 else vr(d)
            a(f"v_mfma_f32_16x16x32_bf16 {vr(d)}, {vr(PRING + 4*(f % NB))}, {vr(Xf(s,nt))}, {c}")
        if stream_next and not cfg.j0s5 and mt == 3 and kap + NSLOT_Q < 14: wq_dma(R, kap + NSLOT_Q, vWqD)
        if mt == 3 and kap in hooks: hooks[kap]()
    last = kaps[-1]
    if last % 14 == 13:
        if cfg.kst and last == 13: lstamp(a, 33)
        k = 0
        for m2 in range(4):
            a(f"v_xor_b32 v{PT+8}, {32*m2}, v{vQW}")
            for nt in range(3):
                d = Qa(m2, nt)
                t = PT + 2*(k % 4); k += 1
                a(f"v_cvt_pk_bf16_f32 v{t}, v{d}, v{d+1}")
                a(f"v_cvt_pk_bf16_f32 v{t+1}, v{d+2}, v{d+3}")
                R.lds_guard(1)
                R.lds(f"ds_write_b64 v{PT+8}, {vr(t,2)} offset:{2048*nt}", "qw")
        R.wait_lg("qw")

ORING = 0
vWoD = 32
vWoR = 34
vOR = 42
VT = 48
ALT = 208
PUB = [216 + 4*i for i in range(10)] + [20, 24]
def Outa(i, nt): return 64 + (i*3 + nt)*4
def Of(ks, nt): return 160 + (ks*3 + nt)*4

def p_vsetup(R, wide):
    a = R.a
    l, q, g = VT, VT+1, VT+2
    a(f"v_mbcnt_lo_u32_b32 v{l}, -1, 0"); a(f"v_mbcnt_hi_u32_b32 v{l}, -1, v{l}")
    a(f"v_and_b32 v{q}, 15, v{l}"); a(f"v_lshrrev_b32 v{g}, 4, v{l}")
    a(f"s_lshl_b32 s{sT0}, s{sIDX}, 8")
    if wide:
        a(f"v_bfe_u32 v{VT+3}, v{l}, 1, 3"); a(f"v_xor_b32 v{VT+3}, v{VT+3}, v{g}")
        a(f"s_mov_b32 s{sT1}, 896"); a(f"v_mul_lo_u32 v{VT+4}, s{sT1}, v{g}")
        a(f"v_and_b32 v{VT+5}, 1, v{l}"); a(f"v_lshl_add_u32 v{VT+4}, v{VT+5}, 4, v{VT+4}")
        a(f"v_add_u32 v{VT+4}, s{sT0}, v{VT+4}")
        a(f"v_lshl_add_u32 v{vWoD}, v{VT+3}, 5, v{VT+4}")
        a(f"v_xor_b32 v{VT+3}, 4, v{VT+3}"); a(f"v_lshl_add_u32 v{vWoD+1}, v{VT+3}, 5, v{VT+4}")
        a(f"v_lshrrev_b32 v{VT+3}, 2, v{l}"); a(f"v_and_b32 v{VT+4}, 7, v{VT+3}")
        a(f"v_lshlrev_b32 v{VT+5}, 8, v{VT+3}")
    else:
        a(f"v_lshrrev_b32 v{VT+3}, 3, v{l}"); a(f"s_mov_b32 s{sT1}, 896"); a(f"v_mul_lo_u32 v{VT+4}, s{sT1}, v{VT+3}")
        a(f"v_bfe_u32 v{VT+3}, v{l}, 1, 2"); a(f"v_xor_b32 v{VT+3}, v{VT+3}, v{g}")
        a(f"v_lshl_add_u32 v{VT+4}, v{VT+3}, 5, v{VT+4}")
        a(f"v_and_b32 v{VT+5}, 1, v{l}"); a(f"v_lshl_add_u32 v{VT+4}, v{VT+5}, 4, v{VT+4}")
        a(f"v_add_u32 v{vWoD}, s{sT0}, v{VT+4}")
        a(f"v_lshrrev_b32 v{VT+3}, 2, v{l}")
        a(f"v_lshrrev_b32 v{VT+4}, 1, v{VT+3}"); a(f"v_and_b32 v{VT+4}, 3, v{VT+4}")
        a(f"v_lshlrev_b32 v{VT+5}, 7, v{VT+3}")
    a(f"v_and_b32 v{VT+6}, 3, v{l}"); a(f"v_lshl_add_u32 v{VT+5}, v{VT+6}, 3, v{VT+5}")
    a(f"s_lshl_b32 s{sT1}, s{sIDX}, 13")
    for mt in range(8 if wide else 4):
        a(f"v_xor_b32 v{VT+6}, {mt}, v{VT+4}")
        a(f"v_lshl_add_u32 v{VT+7}, v{VT+6}, 5, v{VT+5}")
        a(f"v_add_u32 v{vWoR+mt}, s{sWp}, v{VT+7}")
        a(f"v_add_u32 v{ALT+mt}, s{sT1}, v{VT+7}")
    a(f"v_lshrrev_b32 v{VT+3}, 1, v{q}"); a(f"v_xor_b32 v{VT+3}, v{g}, v{VT+3}")
    a(f"v_lshlrev_b32 v{VT+4}, 7, v{q}"); a(f"v_add_u32 v{VT+4}, {OB}, v{VT+4}")
    a(f"v_lshl_add_u32 v{vOR}, v{VT+3}, 4, v{VT+4}")
    a(f"v_xor_b32 v{VT+3}, 4, v{VT+3}"); a(f"v_lshl_add_u32 v{vOR+1}, v{VT+3}, 4, v{VT+4}")
    a(f"s_lshl_b32 s{sM0}, s{sIDX}, 13")

def wo_slot(kap, wide):
    slot = 8192 if wide else 4096
    special = {14: ('kv', KVA), 15: ('kv', KVB)}
    if kap in special: return special[kap]
    return ('own', (kap % 2)*slot)

def wo_dma(R, kap, wide, ii_list=None):
    a = R.a
    j, ks = divmod(kap, 4); h, s = divmod(ks, 2)
    row0 = 256*h + 32*s
    area, off = wo_slot(kap, wide)
    base = sWp if area == 'own' else sM0
    for ii in (ii_list if ii_list is not None else range(8 if wide else 4)):
        a(f"s_add_u32 m0, s{base}, {off + 1024*ii}")
        rows = 4*ii if wide else 8*ii
        a(f"s_add_u32 s{sT1}, s{sCOL+4+j}, {(row0 + rows)*896}")
        pat = vWoD + ((ii & 1) if wide else 0)
        R.vmem(f"buffer_load_dwordx4 v{pat}, {srd(SRD_WO)}, s{sT1} offen {cfg.w_flags} lds", f"o{kap}")

def p_ofrags(R):
    for k2 in range(4):
        for nt in range(3):
            R.lds_guard(1)
            R.lds(f"ds_read_b128 {vr(Of(k2,nt))}, v{vOR + (k2 & 1)} offset:{6144*(k2 >> 1) + 2048*nt}", f"of{k2}")

vPK0, vPK1, vPV, vPF = 44, 45, 46, 56
def p_kv_setup(R, first=False):
    a = R.a
    l, g = VT, VT+2
    a(f"s_lshl_b32 s{sM0}, s{sIDX}, 13")
    a(f"v_mbcnt_lo_u32_b32 v{l}, -1, 0"); a(f"v_mbcnt_hi_u32_b32 v{l}, -1, v{l}"); a(f"v_lshrrev_b32 v{g}, 4, v{l}")
    a(f"v_lshrrev_b32 v{VT+3}, 3, v{l}"); a(f"v_lshlrev_b32 v{VT+3}, 9, v{VT+3}")
    a(f"s_lshl_b32 s{sT1}, s{sIDX}, 15"); a(f"v_add_u32 v{VT+3}, s{sT1}, v{VT+3}")
    a(f"v_and_b32 v{VT+4}, 7, v{l}"); a(f"v_xor_b32 v{VT+5}, v{VT+4}, v{g}")
    a(f"v_lshl_add_u32 v{vPK0}, v{VT+5}, 4, v{VT+3}")
    a(f"v_xor_b32 v{VT+5}, 4, v{VT+5}"); a(f"v_lshl_add_u32 v{vPK1}, v{VT+5}, 4, v{VT+3}")
    a(f"v_lshrrev_b32 v{VT+5}, 1, v{VT+4}"); a(f"v_xor_b32 v{VT+5}, v{VT+5}, v{g}")
    a(f"v_lshl_add_u32 v{VT+5}, v{VT+5}, 5, v{VT+3}")
    a(f"v_and_b32 v{VT+4}, 1, v{l}"); a(f"v_lshl_add_u32 v{vPV}, v{VT+4}, 4, v{VT+5}")
    a(f"v_lshlrev_b32 v{vPF}, 7, v{l}")

def p_issue_KV(R, kind, n):
    a = R.a
    j, w = n >> 1, n & 1
    buf = KVA if w == 0 else KVB
    if kind == "K" and n >= 6: buf = T1 if n == 6 else T2
    for ii in range(8):
        a(f"s_add_u32 m0, s{sM0}, {buf + 1024*ii}")
        a(f"s_add_u32 s{sT1}, s{sCOL+j}, {131072*w + 4096*ii}")
        if kind == "K": R.vmem(f"buffer_load_dwordx4 v{vPK0 + (ii & 1)}, {srd(SRD_K)}, s{sT1} offen {cfg.k_flags} lds", f"K{n}")
        else: R.vmem(f"buffer_load_dwordx4 v{vPV}, {srd(SRD_V)}, s{sT1} offen {cfg.v_flags} lds", f"V{n}")

def p_tlb_warm(R):
    a = R.a
    if not cfg.tlbw: return
    a(f"s_lshl_b32 s{sT0}, s{sB}, 4"); a(f"s_lshl_b32 s{sT1}, s{sBR}, 2"); a(f"s_add_u32 s{sT0}, s{sT0}, s{sT1}")
    a(f"s_mul_i32 s{sT0}, s{sT0}, {PART}")
    a(f"v_mov_b32 v58, s{sT0}")
    a(f"s_add_u32 s{sT1}, s{sT0}, {11*PART + PART - 4}"); a(f"v_writelane_b32 v58, s{sT1}, 1")
    a(f"s_mul_i32 s{sT1}, s2, {PART}"); a(f"v_writelane_b32 v58, s{sT1}, 2")
    a(f"s_mul_i32 s{sT1}, s{sGRP}, {FSTR}"); a(f"s_add_u32 s{sT1}, s{sT1}, {FLG}"); a(f"v_writelane_b32 v58, s{sT1}, 3")
    a(f"s_mul_i32 s{sT2}, s{sB}, {48*1792}")
    a(f"s_mov_b64 s[{sEX}:{sEX+1}], exec"); a("s_mov_b64 exec, 0xf")
    R.vmem(f"buffer_load_dword v59, v58, {srd(SRD_WS)}, 0 offen sc0 sc1", "tlb")
    a("s_mov_b64 exec, 1"); a("v_mov_b32 v60, 0")
    R.vmem(f"buffer_load_dword v59, v60, {srd(SRD_OUT)}, s{sT2} offen sc0 sc1", "tlb")
    a(f"s_mov_b64 exec, s[{sEX}:{sEX+1}]")

def p_pf_wo(R):
    a = R.a
    if not cfg.pf: return
    a(f"s_mul_i32 s{sT2}, s{sB}, 28672"); a(f"s_lshl_b32 s{sT3}, s{sIDX}, 13"); a(f"s_add_u32 s{sT2}, s{sT2}, s{sT3}")
    R.vmem(f"buffer_load_dword v57, v{vPF}, {srd(SRD_WO)}, s{sT2} offen {cfg.pf_flags}", "pf")

def p_of(R, k2):
    for nt in range(3):
        R.lds_guard(1)
        R.lds(f"ds_read_b128 {vr(Of(k2,nt))}, v{vOR + (k2 & 1)} offset:{6144*(k2 >> 1) + 2048*nt}", f"of{k2}")

def p_ocompute(R, kaps, wide, inter=None, ofr=False):
    a = R.a
    NT = 8 if wide else 4
    D = 4; NB = 5
    rowb = 256 if wide else 128
    inter = inter or {}
    frs = [(kap, mt) for kap in kaps for mt in range(NT)]
    def rd(f):
        kap, mt = frs[f]
        if mt == 0: R.wait_vm(f"o{kap}")
        b = ORING + 4*(f % NB)
        area, off = wo_slot(kap, wide)
        addr = (vWoR if area == 'own' else ALT) + mt
        R.lds_guard(2)
        R.lds(f"ds_read_b64_tr_b16 {vr(b,2)}, v{addr} offset:{off}", f"f{kap}_{mt}")
        R.lds(f"ds_read_b64_tr_b16 {vr(b+2,2)}, v{addr} offset:{off + 16*rowb}", f"f{kap}_{mt}")
    if ofr: p_of(R, 0)
    for f in range(D): rd(f)
    for f, (kap, mt) in enumerate(frs):
        j, ks = divmod(kap, 4)
        if f + D < len(frs): rd(f + D)
        if ofr and f < 3: p_of(R, f + 1)
        for (k2, ii) in inter.get(f, []): wo_dma(R, k2, wide, [ii])
        R.wait_lg(f"f{kap}_{mt}")
        if mt == 0: R.wait_lg(f"of{ks}")
        for nt in range(3):
            d = Outa(mt, nt)
            c = "0" if kap == 0 else vr(d)
            a(f"v_mfma_f32_16x16x32_bf16 {vr(d)}, {vr(ORING + 4*(f % NB))}, {vr(Of(ks,nt))}, {c}")
        if cfg.tst and mt == NT - 1 and kap >= 10: lstamp(a, 26 + kap - 10)

def p_oproj_phase(R, bar, wide):
    a = R.a
    NT = 8 if wide else 4
    nbar = 0
    def b1():
        nonlocal nbar
        bar(); nbar += 1
    b1()
    if cfg.wo_first_after >= 6: wo_dma(R, 0, wide); wo_dma(R, 1, wide)
    b1()
    for j in range(3):
        a.comment(f"---- O projection chunk {j}")
        p_ocompute(R, [4*j, 4*j+1], wide, ofr=True)
        wo_dma(R, 4*j+2, wide); wo_dma(R, 4*j+3, wide)
        b1()
        if j < 2:
            p_ocompute(R, [4*j+2, 4*j+3], wide)
            wo_dma(R, 4*j+4, wide); wo_dma(R, 4*j+5, wide)
        else:
            if cfg.p7prio: a(f"s_setprio {cfg.p7prio}")
            if cfg.d14first:
                wo_dma(R, 14, wide); inter = {}
            else:
                inter = {f: [(14, f)] for f in range(NT)}
            inter.update({NT + f: [(12, f)] for f in range(NT)})
            p_ocompute(R, [10, 11], wide, inter=inter)
            wo_dma(R, 13, wide)
        b1()
    p_ocompute(R, [12, 13], wide, inter={f: [(15, f)] for f in range(NT)}, ofr=True)
    p_ocompute_last(R, wide)
    return nbar

def p_ocompute_last(R, wide):
    a = R.a
    NT = 8 if wide else 4
    D = 4; NB = 5
    rowb = 256 if wide else 128
    frs = [(kap, 2*ip + t) for ip in range(NT//2) for kap in (14, 15) for t in range(2)]
    def rd(f):
        kap, mt = frs[f]
        if f == 0: R.wait_vm("o14"); R.wait_vm("o15")
        b = ORING + 4*(f % NB)
        area, off = wo_slot(kap, wide)
        addr = (vWoR if area == 'own' else ALT) + mt
        R.lds_guard(2)
        R.lds(f"ds_read_b64_tr_b16 {vr(b,2)}, v{addr} offset:{off}", f"g{f}")
        R.lds(f"ds_read_b64_tr_b16 {vr(b+2,2)}, v{addr} offset:{off + 16*rowb}", f"g{f}")
    a(f"v_mbcnt_lo_u32_b32 v{VT}, -1, 0"); a(f"v_mbcnt_hi_u32_b32 v{VT}, -1, v{VT}"); a(f"v_lshlrev_b32 v{VT}, 4, v{VT}")
    a(f"s_mul_i32 s{sT2}, s2, {PART}"); a(f"s_mul_i32 s{sT3}, s{sIDX}, {12*1024}"); a(f"s_add_u32 s{sT2}, s{sT2}, s{sT3}")
    npub = 0
    def pub_pair(ip):
        nonlocal npub
        for nt in range(3):
            t = PUB[npub]; npub += 1
            d0, d1 = Outa(2*ip, nt), Outa(2*ip+1, nt)
            a(f"v_cvt_pk_bf16_f32 v{t}, v{d0}, v{d0+1}"); a(f"v_cvt_pk_bf16_f32 v{t+1}, v{d0+2}, v{d0+3}")
            a(f"v_cvt_pk_bf16_f32 v{t+2}, v{d1}, v{d1+1}"); a(f"v_cvt_pk_bf16_f32 v{t+3}, v{d1+2}, v{d1+3}")
            a(f"s_add_u32 s{sT1}, s{sT2}, {1024*(ip*3 + nt)}")
            R.vmem(f"buffer_store_dwordx4 {vr(t)}, v{VT}, {srd(SRD_WS)}, s{sT1} offen sc0 sc1", "pub")
    for f in range(D): rd(f)
    for f, (kap, mt) in enumerate(frs):
        ks = kap % 4
        if f + D < len(frs): rd(f + D)
        R.wait_lg(f"g{f}")
        for nt in range(3):
            d = Outa(mt, nt)
            a(f"v_mfma_f32_16x16x32_bf16 {vr(d)}, {vr(ORING + 4*(f % NB))}, {vr(Of(ks,nt))}, {vr(d)}")
        if f % 4 == 1 and f >= 5: pub_pair(f//4 - 1)
    pub_pair(NT//2 - 1)

def p_flag(R):
    a = R.a
    if cfg.tst: lstamp(a, 32)
    R.wait_vm_all()
    if cfg.tst: lstamp(a, 33)
    a(f"s_mul_i32 s{sT0}, s{sGRP}, {FSTR}"); a(f"s_add_u32 s{sT0}, s{sT0}, {FLG}")
    a(f"s_lshl_b32 s{sT1}, s{sG}, 2"); a(f"s_add_u32 s{sT1}, s{sT1}, s{sIDX}"); a(f"s_lshl_b32 s{sT1}, s{sT1}, 2")
    a(f"v_mov_b32 v2, s{sT1}"); a("v_mov_b32 v1, 1")
    a(f"s_mov_b64 s[{sEX}:{sEX+1}], exec")
    a("s_mov_b64 exec, 1")
    a(f"buffer_store_dword v1, v2, {srd(SRD_WS)}, s{sT0} offen sc0 sc1")
    a(f"s_mov_b64 exec, s[{sEX}:{sEX+1}]")

def emit_reduce(a):
    a.label("L_tail")
    if cfg.stamps: stamp(a, 50)
    a(f"s_min_u32 s{sT0}, s{sG}, 2"); a(f"s_mul_i32 s{sT1}, s{sG}, 5"); a(f"s_add_u32 s{sT0}, s{sT0}, s{sT1}")
    a(f"s_cmp_lt_u32 s{sG}, 2"); a(f"s_cselect_b32 s{sT1}, 6, 5")
    a(f"s_mov_b32 s80, s{sT1}")
    a(f"s_add_u32 s{sT0}, s{sT0}, s{sWAVE}")
    a("v_mbcnt_lo_u32_b32 v3, -1, 0"); a("v_mbcnt_hi_u32_b32 v3, -1, v3")
    a("v_lshlrev_b32 v6, 4, v3"); a("v_lshlrev_b32 v0, 2, v3")
    a(f"s_mul_i32 s{sT2}, s{sT0}, 171"); a(f"s_lshr_b32 s{sT2}, s{sT2}, 9")
    a(f"s_mul_i32 s{sT3}, s{sT2}, 3"); a(f"s_sub_u32 s{sT3}, s{sT0}, s{sT3}")
    a(f"s_lshl_b32 s{sT3}, s{sT3}, 4"); a(f"s_mul_i32 s{sT1}, s{sB}, 48"); a(f"s_add_u32 s{sT3}, s{sT3}, s{sT1}")
    a(f"s_mul_i32 s{sT3}, s{sT3}, 1792"); a(f"s_lshl_b32 s{sT2}, s{sT2}, 6"); a(f"s_add_u32 s{sT3}, s{sT3}, s{sT2}")
    a(f"s_mul_i32 s{sT1}, s{sBR}, 896"); a(f"s_add_u32 s78, s{sT3}, s{sT1}") if not cfg.lstamps else None
    if cfg.lstamps: a(f"s_mul_i32 s{sT1}, s{sBR}, 896"); a(f"s_add_u32 s100, s{sT3}, s{sT1}")
    sOUT = 100 if cfg.lstamps else 78
    a("v_and_b32 v7, 15, v3"); a(f"s_mov_b32 s{sT1}, 1792"); a(f"v_mul_lo_u32 v7, s{sT1}, v7")
    a("v_bfe_u32 v8, v3, 4, 1"); a("v_lshl_add_u32 v7, v8, 5, v7")
    a("v_lshrrev_b32 v8, 5, v3"); a("v_lshl_add_u32 v7, v8, 4, v7")
    a(f"s_lshl_b32 s{sT1}, s{sB}, 4"); a(f"s_lshl_b32 s{sT2}, s{sBR}, 2"); a(f"s_add_u32 s{sT1}, s{sT1}, s{sT2}")
    a(f"s_mul_i32 s{sT1}, s{sT1}, {PART}"); a(f"s_lshl_b32 s{sT2}, s{sT0}, 10"); a(f"s_add_u32 s{sT3}, s{sT1}, s{sT2}")
    a(f"s_cmp_lg_u32 s{sWAVE}, 0"); a("s_cbranch_scc1 L_nopoll")
    a(f"s_mul_i32 s{sT0}, s{sGRP}, {FSTR}"); a(f"s_add_u32 s{sT0}, s{sT0}, {FLG}")
    a(f"s_mov_b64 s[{sEX}:{sEX+1}], exec")
    a("s_mov_b32 exec_hi, 0")
    a(f"s_mov_b32 s{sT2}, 0")
    a.label("L_poll")
    a(f"buffer_load_dword v4, v0, {srd(SRD_WS)}, s{sT0} offen sc0 sc1")
    a("s_waitcnt vmcnt(0)")
    a("v_cmp_eq_u32 vcc, 1, v4")
    a("s_cmp_eq_u32 vcc_lo, -1")
    a("s_cbranch_scc1 L_poll_done")
    a(f"s_add_u32 s{sT2}, s{sT2}, 1")
    a(f"s_cmp_ge_u32 s{sT2}, 400000")
    a("s_cbranch_scc1 L_poll_done")
    if cfg.sleep: a(f"s_sleep {cfg.sleep}")
    a("s_branch L_poll")
    a.label("L_poll_done")
    a(f"s_mov_b64 exec, s[{sEX}:{sEX+1}]")
    a.label("L_nopoll")
    a("s_barrier")
    a(f"s_cmp_ge_u32 s{sWAVE}, s80")
    a("s_cbranch_scc1 " + ("L_nogather" if cfg.stamps else ("L_mini" if cfg.mini else "L_end")))
    if cfg.stamps: stamp(a, 52)
    for k in range(8):
        gb, gp = k >> 2, k & 3
        a(f"s_add_u32 s{sT2}, s{sT3}, {(gb*8 + gp)*PART}")
        a(f"buffer_load_dwordx4 {vr(64+4*k)}, v6, {srd(SRD_WS)}, s{sT2} offen sc0 sc1")
    acc = 16
    for k in range(8):
        a(f"s_waitcnt vmcnt({7-k})")
        for r in range(4):
            src = 64 + 4*k + r
            if k == 0:
                a(f"v_lshlrev_b32 v{acc+2*r}, 16, v{src}"); a(f"v_and_b32 v{acc+2*r+1}, 0xffff0000, v{src}")
            else:
                t = 8 + 2*(r & 1) + 2
                a(f"v_lshlrev_b32 v{t}, 16, v{src}"); a(f"v_and_b32 v{t+1}, 0xffff0000, v{src}")
                a(f"v_pk_add_f32 {vr(acc+2*r,2)}, {vr(acc+2*r,2)}, {vr(t,2)}")
    for r in range(4):
        a(f"v_cvt_pk_bf16_f32 v{12+r}, v{acc+2*r}, v{acc+2*r+1}")
    a("v_permlane16_swap_b32 v12, v14")
    a("v_permlane16_swap_b32 v13, v15")
    a(f"buffer_store_dwordx4 v[12:15], v7, {srd(SRD_OUT)}, s{sOUT} offen")
    if cfg.stamps:
        a("s_waitcnt vmcnt(0)")
        a.label("L_nogather")
        stamp(a, 53)
        a("s_memtime s[74:75]"); a("s_waitcnt lgkmcnt(0)"); a("v_writelane_b32 v61, s74, 61")
        stamp_store(a)
    if cfg.mini:
        a.label("L_mini")
        a("s_memrealtime s[72:73]"); a("s_waitcnt vmcnt(0) lgkmcnt(0)")
        a("s_memrealtime s[72:73]"); a("s_waitcnt lgkmcnt(0)")
        a("v_mov_b32 v61, 0"); a("v_writelane_b32 v61, s90, 62"); a("v_writelane_b32 v61, s72, 53")
        stamp_store(a)
    a.label("L_end")
    a("s_endpgm")

def build():
    a = Asm()
    if cfg.mini:
        a("s_memrealtime s[90:91]")
    if cfg.stamps:
        a("s_memrealtime s[72:73]"); a("s_memtime s[74:75]"); a("s_waitcnt lgkmcnt(0)")
        a("v_writelane_b32 v61, s72, 62"); a("v_writelane_b32 v61, s74, 60")
    emit_prologue(a)
    cnt = {"n": 0}
    def bar():
        a("s_barrier")
        if cfg.stamps: stamp(a, cnt["n"])
        cnt["n"] += 1
    A = Role(a)
    if cfg.prioA: a(f"s_setprio {cfg.prioA}")
    a_setup(A)
    if cfg.pf_first: a_pf(A, "wq")
    bar()
    if not cfg.pf_first: a_pf(A, "wq")
    a_setup2(A)
    bar()
    a0_flag_zero(A)
    for kap in range(4): wq_dma(A, kap, vWqA)
    a_issue_KV(A, "K", 0)
    a_setup3(A)
    a_pair_init(A)
    A.wait_vm("w3")
    a0_flag_mark(A)
    bar()
    bar()
    a_issue_KV(A, "K", 1)
    A.wait_vm("K0")
    bar()
    a_S(A, 0)
    A.wait_vm("K1")
    bar()
    a_S(A, 1, dma=("K", 2)); A.wait_vm("K2"); bar()
    a_S(A, 2, dma=("K", 3)); A.wait_vm("K3"); bar()
    a_S(A, 3, dma=("K", 4)); A.wait_vm("K4"); bar()
    a_flag_load(A)
    a_issue_KV(A, "K", 5)
    a_flag_check(A)
    bar()
    a_S(A, 4)
    A.wait_vm("K5")
    bar()
    a_S(A, 5)
    bar()
    a_S(A, 6)
    if cfg.split_sm: a_softmax1(A)
    bar()
    a_S(A, 7)
    if not cfg.split_sm: a_softmax1(A)
    a_softmax2(A)
    bar()
    for n in range(8):
        dma = ("V", n+1) if 1 <= n <= 6 else None
        if cfg.prio7 and n == cfg.prio7from: a(f"s_setprio {cfg.prio7}")
        a_PV(A, n, dma)
        if n == 0:
            a_alpha(A); a_pair_addr(A)
        if n % 2 == 0:
            a_rescale(A)
        else:
            a_pair_sync(A, n >> 1)
            a_xfinal(A)
        if 1 <= n < 7: A.wait_vm(f"V{n+1}")
        A.wait_lg_all()
        bar()
    nA = cnt["n"]
    A.wait_vm_all()
    a("s_branch L_tail")
    a.label("L_P")
    cnt["n"] = 0
    P = Role(a)
    stamp_move(a, 39)
    if cfg.stamps: stamp(a, 55)
    if cfg.prioP: a(f"s_setprio {cfg.prioP}")
    P.vm += ["x"]*12
    if cfg.stamps: stamp(a, 56)
    bar()
    p_setup2(P)
    P.wait_vm("x"); bar()
    p_xfrags(P)
    if cfg.j0s5:
        a(f"s_lshl_b32 s{sWq5}, s{sIDX}, 12"); a(f"s_add_u32 s{sWq5}, s{sWq5}, {QB}")
        a(f"s_sub_u32 s{sT0}, s{sWq5}, s{sWp}")
        for mt in range(4): a(f"v_add_u32 v{vWqR5+mt}, s{sT0}, v{vWqR+mt}")
    bar()
    if cfg.j0s5: wq_dma(P, 4, vWqD)
    p_qcompute(P, list(range(14)), True, hooks={cfg.k1_after: bar})
    bar()
    for kap in (14, 15, 16, 17): wq_dma(P, kap, vWqD)
    bar()
    for kaps, nxt in (([14,15], [18,19]), ([16,17,18,19], [20,21,22,23]), ([20,21,22,23], [24,25,26,27]), ([24,25,26,27], [])):
        p_qcompute(P, kaps, False)
        for kap in nxt: wq_dma(P, kap, vWqD)
        bar()
    a(f"s_cmp_eq_u32 s{sIDX}, 3")
    a("s_cbranch_scc1 L_P3")
    base = cnt["n"]
    for wide in (True, False):
        if not wide:
            a.label("L_P3"); cnt["n"] = base
        Pw = Role(a)
        STREG[0] = 39
        stamp_move(a, 47)
        p_kv_setup(Pw, first=True)
        p_issue_KV(Pw, "K", 6)
        p_vsetup(Pw, wide)
        bar()
        p_issue_KV(Pw, "K", 7); Pw.wait_vm("K6"); bar()
        p_issue_KV(Pw, "V", 0); Pw.wait_vm("K7"); bar()
        p_issue_KV(Pw, "V", 1); p_pf_wo(Pw); p_tlb_warm(Pw); Pw.wait_vm("V0"); bar()
        Pw.wait_vm("V1")
        nb = p_oproj_phase(Pw, bar, wide)
        assert nb == 8, nb
        if cfg.stamps: stamp(a, 59)
        p_flag(Pw)
        if cfg.stamps: stamp(a, 58)
        assert cnt["n"] == nA, (cnt["n"], nA)
        stamp_move(a, 61)
        if wide: a("s_branch L_tail")
    emit_reduce(a)
    a.finalize()
    return a

HEADER = open("cdna_kernels/" + NAME + ".s.ref").read().split("; Override launch")[0]
def full_text(a):
    s = HEADER
    s += f"; @launch grid=(256,1,1) block=(512,1,1) lds={LDS_BYTES}\n"
    s += f'.amdgcn_target "amdgcn-amd-amdhsa--gfx950"\n.text\n.globl {NAME}_kernel\n.p2align 8\n.type {NAME}_kernel,@function\n{NAME}_kernel:\n'
    body = a.text()
    if cfg.icpf:
        body = body.replace("  s_endpgm\n", "  s_endpgm\nL_code_end:\n") if body.count("s_endpgm") == 1 else body + "L_code_end:\n"
        body = body.replace("CODE_BYTES", f"L_code_end-{NAME}_kernel")
    s += body
    s += f""".section .rodata,"a"
.p2align 6
.amdhsa_kernel {NAME}_kernel
  .amdhsa_next_free_vgpr 256
  .amdhsa_next_free_sgpr 102
  .amdhsa_accum_offset 256
  .amdhsa_group_segment_fixed_size 0
  .amdhsa_kernarg_size 104
  .amdhsa_user_sgpr_count 2
  .amdhsa_user_sgpr_kernarg_segment_ptr 1
  .amdhsa_system_sgpr_workgroup_id_x 1
.end_amdhsa_kernel
"""
    return s

if __name__ == "__main__":
    out = sys.argv[1] if len(sys.argv) > 1 else "cdna_kernels/" + NAME + ".s"
    for kv in sys.argv[2:]:
        k, v = kv.split("=", 1)
        cur = getattr(cfg, k)
        if isinstance(cur, bool): v = v.lower() in ("1", "true")
        elif isinstance(cur, int): v = int(v)
        setattr(cfg, k, v)
    a = build()
    open(out, "w").write(full_text(a))
    print("wrote", out, "instrs:", sum(1 for i in a.ins if i.kind not in ('none','label')), "nops inserted:", a.nops_inserted)
```

```python
import sys, math, struct
from asmlib import Asm

NAME = "concat_heads__gqa_block_cached__gqa_block_cached__near_ridge"

class Cfg:
    k_flags = "nt"
    v_flags = "nt"
    w_flags = ""
    pf = True
    pf_flags = ""
    stamps = False
    lstamps = False
    mini = False
    prioA = 0
    prioP = 0
    dq = 4
    pf_wo_at = 8
    k1_after = 9
    split_sm = True
    sleep = 0
    interleave = False
    pf_first = False
    wo_first_after = 7
    tst = False
    pvprio = 0
    pkprio = 0
    p7prio = 0
    d14first = False
    tlbw = True
    icpf = True
    prio7 = 0
    prio7from = 7
    pkv = True
    unpack = True
    j0s5 = True
    rot = 1
    kst = False
cfg = Cfg()

KVA, KVB = 0, 32768
WB = 65536
QB = 131072
OB = 122880
XB = 135168
STAT = 159744
PFL = 161280
LDS_BYTES = 163840
PART = 43008
FLG = 16 << 20
FSTR = 8448
sWAVE, sIDX, sG, sB, sBR = 3, 4, 5, 6, 7
SRD_K, SRD_V, SRD_WQ, SRD_WO, SRD_X, SRD_OUT, SRD_WS = 8, 12, 16, 20, 24, 28, 32
sDBG = 58
sM0, sWp = 62, 63
sC = 64
sT0, sT1, sT2, sT3 = 66, 67, 68, 69
sEX = 70
sGRP, sXo = 76, 77
sCOL = 36
sJ = 44
def srd(b): return f"s[{b}:{b+3}]"
def vr(b, n=4): return f"v[{b}:{b+n-1}]"
def f32bits(x): return struct.unpack('<I', struct.pack('<f', x))[0]
vL, vQ, vGq = 44, 46, 47

class Role:
    def __init__(self, a): self.a = a; self.vm = []; self.lg = []
    def vmem(self, text, tag): self.a(text); self.vm.append(tag)
    def lds(self, text, tag): self.a(text); self.lg.append(tag)
    def wait_vm(self, tag):
        idx = [i for i, t in enumerate(self.vm) if t == tag]
        if not idx: return
        n = len(self.vm) - 1 - idx[-1]
        assert n <= 63
        self.a(f"s_waitcnt vmcnt({n})"); self.vm = self.vm[idx[-1]+1:]
    def wait_lg(self, tag):
        idx = [i for i, t in enumerate(self.lg) if t == tag]
        if not idx: return
        n = len(self.lg) - 1 - idx[-1]
        assert n <= 15, n
        self.a(f"s_waitcnt lgkmcnt({n})"); self.lg = self.lg[idx[-1]+1:]
    def wait_vm_all(self): self.a("s_waitcnt vmcnt(0)"); self.vm = []
    def wait_lg_all(self): self.a("s_waitcnt lgkmcnt(0)"); self.lg = []
    def lds_guard(self, n_new):
        if len(self.lg) + n_new > 15:
            keep = 15 - n_new
            self.a(f"s_waitcnt lgkmcnt({keep})"); self.lg = self.lg[len(self.lg)-keep:] if keep else []

STREG = [61]
PEND = []
def stamp(a, idx):
    a("s_memrealtime s[72:73]")
    a("s_waitcnt lgkmcnt(0)")
    a(f"v_writelane_b32 v{STREG[0]}, s72, {idx}")
    for (sp, i2) in PEND: a(f"v_writelane_b32 v{STREG[0]}, s{sp}, {i2}")
    PEND.clear()
def lstamp(a, idx):
    if not cfg.lstamps: return
    sp = 78 + 2*len(PEND)
    assert sp <= 98
    a(f"s_memrealtime s[{sp}:{sp+1}]")
    PEND.append((sp, idx))
def stamp_move(a, new):
    if cfg.stamps: a(f"v_mov_b32 v{new}, v{STREG[0]}")
    STREG[0] = new
def stamp_store(a):
    a(f"s_lshl_b32 s{sT0}, s2, 3"); a(f"s_add_u32 s{sT0}, s{sT0}, s{sWAVE}"); a(f"s_lshl_b32 s{sT0}, s{sT0}, 8")
    a("v_mbcnt_lo_u32_b32 v60, -1, 0"); a("v_mbcnt_hi_u32_b32 v60, -1, v60")
    a(f"v_lshlrev_b32 v60, 2, v60"); a(f"v_add_u32 v60, s{sT0}, v60")
    a("s_add_u32 s74, s60, 0x2000000"); a("s_addc_u32 s75, s61, 0")
    a("global_store_dword v60, v61, s[74:75]")
    a("s_waitcnt vmcnt(0)")

def emit_prologue(a):
    a("s_cmp_ge_u32 s2, 256")
    a("s_cbranch_scc1 L_end")
    a("s_load_dwordx16 s[36:51], s[0:1], 0")
    a("s_load_dwordx4 s[52:55], s[0:1], 64")
    a("s_load_dwordx4 s[56:59], s[0:1], 80")
    a("s_load_dwordx2 s[60:61], s[0:1], 96")
    a("v_and_b32 v44, 63, v0")
    a("v_lshrrev_b32 v45, 6, v0")
    a("v_and_b32 v46, 15, v44")
    a("v_lshrrev_b32 v47, 4, v44")
    a(f"v_readfirstlane_b32 s{sWAVE}, v45")
    a(f"s_bfe_u32 s{sBR}, s2, 0x10002")
    a(f"s_and_b32 s{sG}, s2, 3"); a(f"s_lshl_b32 s{sG}, s{sG}, 1")
    a(f"s_bfe_u32 s{sT0}, s2, 0x10003"); a(f"s_or_b32 s{sG}, s{sG}, s{sT0}")
    a(f"s_lshr_b32 s{sB}, s2, 4")
    a(f"s_and_b32 s{sIDX}, s{sWAVE}, 3")
    a(f"s_lshl_b32 s{sGRP}, s{sBR}, 4"); a(f"s_add_u32 s{sGRP}, s{sGRP}, s{sB}")
    a(f"s_mov_b32 s{sC}, 0x{f32bits(math.log2(math.e)/16.0):08x}"); a(f"s_mov_b32 s{sC+1}, s{sC}")
    a_code_prefetch(Role(a))
    a("s_waitcnt lgkmcnt(0)")
    if cfg.stamps: stamp(a, 54)
    a(f"s_cmp_eq_u32 s{sBR}, 0")
    for i in range(5):
        a(f"s_cselect_b64 s[{36+2*i}:{37+2*i}], s[{36+2*i}:{37+2*i}], s[{46+2*i}:{47+2*i}]")
    def mk(srdb, ptr, off_s, size):
        if off_s is None:
            a(f"s_mov_b32 s{srdb}, s{ptr}"); a(f"s_and_b32 s{srdb+1}, s{ptr+1}, 0xffff")
        else:
            a(f"s_add_u32 s{srdb}, s{ptr}, s{off_s}")
            a(f"s_addc_u32 s{srdb+1}, s{ptr+1}, 0")
            a(f"s_and_b32 s{srdb+1}, s{srdb+1}, 0xffff")
        if isinstance(size, int): a(f"s_mov_b32 s{srdb+2}, {size}")
        else: a(size)
        a(f"s_mov_b32 s{srdb+3}, 0x20000")
    a(f"s_mul_i32 s{sT1}, s{sB}, 43008")
    mk(SRD_X, 36, sT1, 43008)
    a(f"s_cmp_lt_u32 s{sWAVE}, 4"); a("s_cbranch_scc1 L_nox")
    PX = Role(a); p_setup(PX)
    a.label("L_nox")
    a(f"s_lshl_b32 s{sT1}, s{sG}, 10")
    mk(SRD_WQ, 42, sT1, f"s_sub_u32 s{SRD_WQ+2}, {448*8192}, s{sT1}")
    a(f"s_lshl_b32 s{sT0}, s{sB}, 3"); a(f"s_add_u32 s{sT0}, s{sT0}, s{sG}"); a(f"s_lshl_b32 s{sT0}, s{sT0}, 18")
    mk(SRD_K, 38, sT0, 262144)
    mk(SRD_V, 40, sT0, 262144)
    a(f"s_mul_i32 s{sT1}, s{sG}, 458752")
    mk(SRD_WO, 44, sT1, 458752)
    mk(SRD_OUT, 56, None, 16*48*896*2)
    mk(SRD_WS, 60, None, FLG + 32*FSTR)
    if cfg.rot == 0: a(f"s_mov_b32 s{sT0}, 0")
    elif cfg.rot == 1: a(f"s_and_b32 s{sT0}, s{sB}, 3")
    elif cfg.rot == 2: a(f"s_add_u32 s{sT0}, s{sB}, s{sG}"); a(f"s_and_b32 s{sT0}, s{sT0}, 3")
    elif cfg.rot == 3: a(f"s_and_b32 s{sT0}, s{sB}, 1"); a(f"s_lshl_b32 s{sT0}, s{sT0}, 1")
    for j in range(4):
        a(f"s_add_u32 s{sT1}, s{sT0}, {j}"); a(f"s_and_b32 s{sT1}, s{sT1}, 3")
        a(f"s_lshl_b32 s{sCOL+j}, s{sT1}, 7"); a(f"s_mul_i32 s{sCOL+4+j}, s{sT1}, {64*896}")
    a(f"s_lshr_b32 s{sT2}, s{sIDX}, 1")
    for J in range(2):
        a(f"s_add_u32 s{sT1}, s{sT0}, s{sT2}"); a(f"s_add_u32 s{sT1}, s{sT1}, {2*J}"); a(f"s_and_b32 s{sT1}, s{sT1}, 3")
        a(f"s_lshl_b32 s{sJ+J}, s{sT1}, 7")
    a(f"s_cmp_ge_u32 s{sWAVE}, 4")
    a("s_cbranch_scc1 L_P")

def wq_dma_pattern(a, dst, l, g, t0, t1):
    a(f"v_lshrrev_b32 v{t0}, 3, v{l}"); a(f"v_lshlrev_b32 v{t0}, 13, v{t0}")
    a(f"v_bfe_u32 v{t1}, v{l}, 1, 2"); a(f"v_xor_b32 v{t1}, v{t1}, v{g}")
    a(f"v_lshl_add_u32 v{t0}, v{t1}, 5, v{t0}")
    a(f"v_and_b32 v{t1}, 1, v{l}"); a(f"v_lshl_add_u32 v{t0}, v{t1}, 4, v{t0}")
    a(f"s_and_b32 s{sT0}, s{sIDX}, 1"); a(f"s_lshl_b32 s{sT0}, s{sT0}, 9")
    a(f"v_add_u32 v{dst}, s{sT0}, v{t0}")

NSLOT_Q = 4
def wq_slot(kap):
    if cfg.j0s5 and kap < 14:
        sl = kap % 5
        return ('q', 0) if sl == 4 else ('own', sl*4096)
    return ('own', (kap % NSLOT_Q)*4096)
sWq5 = 47
def wq_dma(R, kap, vpat, ii_list=range(4)):
    a = R.a
    J, s = divmod(kap, 14)
    area, off = wq_slot(kap)
    for ii in ii_list:
        a(f"s_add_u32 m0, s{sWp if area == 'own' else sWq5}, {off + 1024*ii}")
        a(f"s_add_u32 s{sT1}, s{sJ+J}, {(32*s + 8*ii)*8192}")
        R.vmem(f"buffer_load_dwordx4 v{vpat}, {srd(SRD_WQ)}, s{sT1} offen {cfg.w_flags} lds", f"w{kap}")

def S_(t, nt): return 64 + (t*3 + nt)*4
def Qf(s, nt): return (s*3 + nt)*4
KF = 24
vKdE, vKdO, vVd, vWqA = 48, 49, 50, 51

def a_code_prefetch(R):
    a = R.a
    if not cfg.icpf: return
    a(f"s_cmp_lg_u32 s{sWAVE}, 3"); a("s_cbranch_scc1 L_icpf_skip")
    a("s_getpc_b64 s[72:73]")
    a.label("L_icpf_pc")
    a(f"s_sub_u32 s72, s72, L_icpf_pc-{NAME}_kernel"); a("s_subb_u32 s73, s73, 0")
    a(f"s_lshr_b32 s{sT0}, s2, 3"); a(f"s_lshl_b32 s{sT0}, s{sT0}, 11")
    a(f"v_lshlrev_b32 v58, 7, v{vL}"); a(f"v_add_u32 v58, s{sT0}, v58")
    a(f"s_mov_b64 s[{sEX}:{sEX+1}], exec"); a("s_mov_b64 exec, 0xffff")
    a("v_cmp_gt_u32 vcc, CODE_BYTES, v58")
    a("s_and_b64 exec, exec, vcc")
    a("s_cbranch_execz L_icpf_rest")
    a("global_load_dword v60, v58, s[72:73]")
    a.label("L_icpf_rest")
    a(f"s_mov_b64 exec, s[{sEX}:{sEX+1}]")
    a.label("L_icpf_skip")

def a_setup(R):
    a = R.a
    a(f"s_lshl_b32 s{sM0}, s{sIDX}, 13")
    a(f"s_lshl_b32 s{sWp}, s{sIDX}, 14"); a(f"s_add_u32 s{sWp}, s{sWp}, {WB}")
    if cfg.pf:
        a(f"v_lshrrev_b32 v52, 3, v{vL}"); a("v_lshlrev_b32 v52, 13, v52")
        a(f"v_and_b32 v53, 7, v{vL}"); a("v_lshl_add_u32 v56, v53, 7, v52")
        a(f"s_mul_i32 s{sT2}, s{sB}, 28"); a(f"s_lshl_b32 s{sT3}, s{sIDX}, 3"); a(f"s_add_u32 s{sT2}, s{sT2}, s{sT3}")
        a(f"s_lshl_b32 s{sT2}, s{sT2}, 13")

def a_pf(R, which):
    a = R.a
    if not cfg.pf: return
    if which == "wq":
        R.vmem(f"buffer_load_dword v63, v56, {srd(SRD_WQ)}, s{sT2} offen {cfg.pf_flags}", "pf")
    else:
        a(f"v_lshlrev_b32 v58, 7, v{vL}")
        a(f"s_mul_i32 s{sT2}, s{sB}, 28672"); a(f"s_lshl_b32 s{sT3}, s{sIDX}, 13"); a(f"s_add_u32 s{sT2}, s{sT2}, s{sT3}")
        R.vmem(f"buffer_load_dword v62, v58, {srd(SRD_WO)}, s{sT2} offen {cfg.pf_flags}", "pf")

def a_setup2(R):
    a = R.a
    wq_dma_pattern(a, vWqA, vL, vGq, 52, 53)
    a(f"v_lshrrev_b32 v52, 3, v{vL}"); a("v_lshlrev_b32 v52, 9, v52")
    a(f"s_lshl_b32 s{sT1}, s{sIDX}, 15"); a(f"v_add_u32 v52, s{sT1}, v52")
    a(f"v_and_b32 v53, 7, v{vL}"); a(f"v_xor_b32 v54, v53, v{vGq}")
    a(f"v_lshl_add_u32 v{vKdE}, v54, 4, v52")
    a("v_xor_b32 v54, 4, v54"); a(f"v_lshl_add_u32 v{vKdO}, v54, 4, v52")
    a("v_lshrrev_b32 v54, 1, v53"); a(f"v_xor_b32 v54, v54, v{vGq}")
    a("v_lshl_add_u32 v54, v54, 5, v52")
    a(f"v_and_b32 v55, 1, v{vL}"); a(f"v_lshl_add_u32 v{vVd}, v55, 4, v54")

def a_setup3(R):
    a = R.a
    a(f"s_lshr_b32 s{sT0}, s{sIDX}, 1")
    a(f"s_and_b32 s{sT1}, s{sIDX}, 1")
    a(f"v_lshrrev_b32 v52, 1, v{vQ}")
    a(f"v_xor_b32 v53, v{vGq}, v52")
    a(f"v_xor_b32 v54, 4, v53")
    a(f"s_lshl_b32 s{sT2}, s{sT1}, 14")
    a(f"v_lshlrev_b32 v55, 7, v{vQ}")
    a(f"v_add_u32 v55, s{sT2}, v55")
    a(f"v_lshl_add_u32 v40, v53, 4, v55")
    a(f"v_lshl_add_u32 v41, v54, 4, v55")
    a(f"s_mul_i32 s{sT2}, s{sT0}, {48*128}")
    a(f"s_add_u32 s{sT2}, s{sT2}, {QB}")
    a(f"v_lshlrev_b32 v55, 7, v{vQ}")
    a(f"v_add_u32 v55, s{sT2}, v55")
    a(f"v_lshl_add_u32 v42, v53, 4, v55")
    a(f"v_lshl_add_u32 v43, v54, 4, v55")

def a_pair_init(R):
    a = R.a
    a(f"s_lshl_b32 s{sT0}, s{sIDX}, 4"); a(f"s_add_u32 s{sT0}, s{sT0}, {PFL}")
    a(f"v_mov_b32 v55, s{sT0}"); a("v_mov_b32 v56, 0")
    R.lds("ds_write_b32 v55, v56", "pf0")
    R.wait_lg_all()

def a_pair_addr(R):
    a = R.a
    a(f"s_lshl_b32 s{sT0}, s{sIDX}, 4"); a(f"s_add_u32 s{sT0}, s{sT0}, {PFL}")
    a(f"v_mov_b32 v55, s{sT0}"); a(f"s_xor_b32 s{sT0}, s{sT0}, 16"); a(f"v_mov_b32 v56, s{sT0}")

def a_pair_sync(R, j):
    a = R.a
    R.wait_lg_all()
    a(f"v_mov_b32 v57, {j+1}")
    a("ds_write_b32 v55, v57")
    a.label(f"L_ps{j}")
    a("ds_read_b32 v57, v56")
    a("s_waitcnt lgkmcnt(0)")
    a(f"v_readfirstlane_b32 s{sT0}, v57")
    a(f"s_cmp_lt_u32 s{sT0}, {j+1}")
    a(f"s_cbranch_scc1 L_ps{j}")

def kv_dma(R, kind, n, ii):
    a = R.a
    j, w = n >> 1, n & 1
    buf = KVA if w == 0 else KVB
    a(f"s_add_u32 m0, s{sM0}, {buf + 1024*ii}")
    a(f"s_add_u32 s{sT1}, s{sCOL+j}, {131072*w + 4096*ii}")
    if kind == "K":
        R.vmem(f"buffer_load_dwordx4 v{vKdE + (ii & 1)}, {srd(SRD_K)}, s{sT1} offen {cfg.k_flags} lds", f"K{n}")
    else:
        R.vmem(f"buffer_load_dwordx4 v{vVd}, {srd(SRD_V)}, s{sT1} offen {cfg.v_flags} lds", f"V{n}")
def a_issue_KV(R, kind, n):
    R.a.comment(f"---- issue {kind} window {n}")
    for ii in range(8): kv_dma(R, kind, n, ii)

def a0_flag_zero(R):
    a = R.a
    a(f"s_or_b32 s{sT0}, s{sG}, s{sIDX}"); a(f"s_cmp_lg_u32 s{sT0}, 0"); a("s_cbranch_scc1 L_fz_skip")
    a(f"s_mul_i32 s{sT0}, s{sGRP}, {FSTR}"); a(f"s_add_u32 s{sT0}, s{sT0}, {FLG}")
    a(f"v_lshlrev_b32 v58, 2, v{vL}"); a("v_mov_b32 v59, 0")
    a(f"s_mov_b64 s[{sEX}:{sEX+1}], exec"); a("s_mov_b32 exec_hi, 0")
    a(f"buffer_store_dword v59, v58, {srd(SRD_WS)}, s{sT0} offen sc0 sc1")
    a(f"s_mov_b64 exec, s[{sEX}:{sEX+1}]")
    a.label("L_fz_skip")

def a0_flag_mark(R):
    a = R.a
    a(f"s_or_b32 s{sT0}, s{sG}, s{sIDX}"); a(f"s_cmp_lg_u32 s{sT0}, 0"); a("s_cbranch_scc1 L_fm_skip")
    a(f"s_lshl_b32 s{sT0}, s{sGRP}, 2"); a(f"v_mov_b32 v58, s{sT0}"); a("v_mov_b32 v59, 1")
    a(f"s_mov_b64 s[{sEX}:{sEX+1}], exec"); a("s_mov_b64 exec, 1")
    a(f"global_store_dword v58, v59, s[{sDBG}:{sDBG+1}] sc0 sc1")
    a(f"s_mov_b64 exec, s[{sEX}:{sEX+1}]")
    a.label("L_fm_skip")

def a_flag_load(R):
    a = R.a
    a(f"s_lshl_b32 s{sT0}, s{sGRP}, 2"); a(f"v_mov_b32 v58, s{sT0}")
    R.vmem(f"global_load_dword v59, v58, s[{sDBG}:{sDBG+1}] sc0 sc1", "chk")
def a_flag_check(R):
    a = R.a
    R.wait_vm("chk")
    a(f"s_mov_b32 s{sT2}, 0")
    a.label("L_fc_poll")
    a(f"v_readfirstlane_b32 s{sT1}, v59")
    a(f"s_cmp_eq_u32 s{sT1}, 1"); a("s_cbranch_scc1 L_fc_skip")
    a(f"s_add_u32 s{sT2}, s{sT2}, 1"); a(f"s_cmp_ge_u32 s{sT2}, 400000"); a("s_cbranch_scc1 L_fc_skip")
    a("s_sleep 2")
    a(f"global_load_dword v59, v58, s[{sDBG}:{sDBG+1}] sc0 sc1")
    a("s_waitcnt vmcnt(0)")
    a("s_branch L_fc_poll")
    a.label("L_fc_skip")

T1, T2 = WB, WB + 32768
def a_S(R, n, dma=None):
    a = R.a
    j, w = n >> 1, n & 1
    buf = KVA if w == 0 else KVB
    if n >= 6:
        if n == 6:
            for s2 in range(2): a(f"v_add_u32 v{40+s2}, {T1}, v{40+s2}")
        buf = 0 if n == 6 else 32768
    if w == 0:
        for s in range(2):
            for nt in range(3):
                R.lds(f"ds_read_b128 {vr(Qf(s,nt))}, v{42+s} offset:{12288*(j & 1) + 2048*nt}", "q")
    frs = [(i, s) for i in range(8) for s in range(2)]
    NB = 4
    def rd(k):
        i, s = frs[k]
        R.lds(f"ds_read_b128 {vr(KF + 4*(k % NB))}, v{40+s} offset:{buf + 2048*i}", f"kf{k}")
    for k in range(NB-1): rd(k)
    if dma and not cfg.interleave:
        for ii in range(8): kv_dma(R, dma[0], dma[1], ii)
        dma = None
    for k, (i, s) in enumerate(frs):
        if k + NB - 1 < len(frs): rd(k + NB - 1)
        if dma and k < 8: kv_dma(R, dma[0], dma[1], k)
        R.wait_lg(f"kf{k}")
        for nt in range(3):
            d = S_(8*w + i, nt)
            c = "0" if (j == 0 and s == 0) else vr(d)
            a(f"v_mfma_f32_16x16x32_bf16 {vr(d)}, {vr(KF + 4*(k % NB))}, {vr(Qf(s,nt))}, {c}")

M1 = (52, 54, 56)
L1 = (53, 55, 57)
BETA = (0, 2, 4); ALO = (6, 8, 10); ALP = (12, 14, 16)
ONES1, ONES2 = 36, 20
def Pf(w, s, nt): return S_(8*w + 2*s, nt)
def Oa(mt, nt): return S_(2*mt + 1, nt)
def XT(i, nt): return S_(9 + 2*i, nt)

def _rowmax(a, tiles, dst, tmp):
    for nt in range(3):
        m = dst[nt]
        vals = [S_(t, nt) + r for t in tiles for r in range(4)]
        a(f"v_max3_f32 v{m}, v{vals[0]}, v{vals[1]}, v{vals[2]}")
        a(f"v_max3_f32 v{tmp}, v{vals[3]}, v{vals[4]}, v{vals[5]}")
        k = 6
        while k + 3 < len(vals):
            a(f"v_max3_f32 v{m}, v{m}, v{vals[k]}, v{vals[k+1]}")
            a(f"v_max3_f32 v{tmp}, v{tmp}, v{vals[k+2]}, v{vals[k+3]}")
            k += 4
        rest = vals[k:]
        assert len(rest) == 2
        a(f"v_max3_f32 v{m}, v{m}, v{rest[0]}, v{rest[1]}")
        a(f"v_max_f32 v{m}, v{m}, v{tmp}")
    for nt in range(3):
        m = dst[nt]
        a(f"v_mov_b32 v{tmp+nt}, v{m}")
    for nt in range(3):
        a(f"v_permlane32_swap_b32 v{tmp+nt}, v{dst[nt]}")
    for nt in range(3):
        a(f"v_max_f32 v{dst[nt]}, v{tmp+nt}, v{dst[nt]}")
    for nt in range(3):
        a(f"v_mov_b32 v{tmp+nt}, v{dst[nt]}")
    for nt in range(3):
        a(f"v_permlane16_swap_b32 v{tmp+nt}, v{dst[nt]}")
    for nt in range(3):
        a(f"v_max_f32 v{dst[nt]}, v{tmp+nt}, v{dst[nt]}")
        a(f"v_mul_f32 v{dst[nt]}, s{sC}, v{dst[nt]}")

def _exppack(a, t0s, mreg):
    for t0 in t0s:
        for nt in range(3):
            m = mreg[nt]
            b0, b1 = S_(t0, nt), S_(t0+1, nt)
            for b in (b0, b0+2, b1, b1+2):
                a(f"v_pk_fma_f32 {vr(b,2)}, {vr(b,2)}, s[{sC}:{sC+1}], {vr(m,2)} op_sel_hi:[1,1,0] neg_lo:[0,0,1] neg_hi:[0,0,1]")
            src = [b0+r for r in range(4)] + [b1+r for r in range(4)]
            for v in src: a(f"v_exp_f32 v{v}, v{v}")
            a(f"v_cvt_pk_bf16_f32 v{b0}, v{src[0]}, v{src[1]}")
            a(f"v_cvt_pk_bf16_f32 v{b0+1}, v{src[2]}, v{src[3]}")
            a(f"v_cvt_pk_bf16_f32 v{b0+2}, v{src[4]}, v{src[5]}")
            a(f"v_cvt_pk_bf16_f32 v{b0+3}, v{src[6]}, v{src[7]}")

def _rowsum(a, w, ones, acc):
    for r in range(4): a(f"v_mov_b32 v{ones+r}, 0x3f803f80")
    for s in range(4):
        for nt in range(3):
            c = "0" if s == 0 else vr(acc(nt))
            a(f"v_mfma_f32_16x16x32_bf16 {vr(acc(nt))}, {vr(ones)}, {vr(Pf(w,s,nt))}, {c}")

def a_softmax1(R):
    a = R.a
    _rowmax(a, range(0, 8), M1, 24)
    _exppack(a, (0, 2, 4, 6), M1)
    _rowsum(a, 0, ONES1, lambda nt: S_(1, nt))
    for nt in range(3): a(f"v_mov_b32 v{L1[nt]}, v{S_(1,nt)}")

def a_softmax2(R):
    a = R.a
    M2 = (24, 26, 28)
    _rowmax(a, range(8, 16), M2, 30)
    for nt in range(3):
        a(f"v_max_f32 v{M2[nt]}, v{M2[nt]}, v{M1[nt]}")
        a(f"v_sub_f32 v{BETA[nt]}, v{M1[nt]}, v{M2[nt]}")
    for nt in range(3): a(f"v_exp_f32 v{BETA[nt]}, v{BETA[nt]}")
    _exppack(a, (8, 10, 12, 14), M2)
    _rowsum(a, 1, ONES2, lambda nt: S_(13, nt))
    a_vaddr(R)
    for nt in range(3):
        a(f"v_fma_f32 v{M2[nt]+1}, v{BETA[nt]}, v{L1[nt]}, v{S_(13,nt)}")
    for nt in range(3):
        R.lds(f"ds_write_b64 v59, {vr(M2[nt],2)} offset:{128*nt}", "st")
    for nt in range(3):
        a(f"v_mov_b32 v{18+2*nt}, v{M2[nt]}"); a(f"v_mov_b32 v{19+2*nt}, v{M2[nt]+1}")
    R.wait_lg_all()

vXW, vXR, vOW = 52, 53, 54
def a_vaddr(R):
    a = R.a
    a(f"s_and_b32 s{sT1}, s{sIDX}, 1")
    a(f"v_lshrrev_b32 v32, 2, v{vL}")
    a(f"v_lshrrev_b32 v33, 1, v32"); a("v_and_b32 v33, 3, v33")
    a(f"s_lshl_b32 s{sT2}, s{sT1}, 14")
    a(f"v_lshlrev_b32 v34, 7, v32"); a(f"v_add_u32 v34, s{sT2}, v34")
    a(f"v_and_b32 v35, 3, v{vL}"); a(f"v_lshl_add_u32 v34, v35, 3, v34")
    a(f"s_lshl_b32 s{sT2}, s{sT1}, 1")
    a(f"v_xor_b32 v33, s{sT2}, v33")
    for mt in range(4):
        a(f"v_xor_b32 v35, {mt}, v33")
        a(f"v_lshl_add_u32 v{40+mt}, v35, 5, v34")
    a(f"s_mul_i32 s{sT0}, s{sIDX}, 384"); a(f"s_add_u32 s{sT0}, s{sT0}, {STAT}")
    a(f"v_lshlrev_b32 v59, 3, v{vQ}"); a(f"v_add_u32 v59, s{sT0}, v59")
    a(f"s_xor_b32 s{sT1}, s{sIDX}, 1"); a(f"s_mul_i32 s{sT1}, s{sT1}, 384"); a(f"s_add_u32 s{sT1}, s{sT1}, {STAT}")
    a(f"v_lshlrev_b32 v60, 3, v{vQ}"); a(f"v_add_u32 v60, s{sT1}, v60")

def a_alpha(R):
    a = R.a
    M2 = (18, 20, 22)
    for nt in range(3):
        R.lds(f"ds_read_b64 v[{32+2*nt}:{33+2*nt}], v60 offset:{128*nt}", "st")
    a(f"s_mul_i32 s{sT2}, s{sIDX}, 6144"); a(f"s_add_u32 s{sT2}, s{sT2}, {XB}")
    a(f"v_lshlrev_b32 v55, 4, v{vL}"); a(f"v_add_u32 v{vXW}, s{sT2}, v55")
    a(f"s_xor_b32 s{sT2}, s{sIDX}, 1"); a(f"s_mul_i32 s{sT2}, s{sT2}, 6144"); a(f"s_add_u32 s{sT2}, s{sT2}, {XB}")
    a(f"v_add_u32 v{vXR}, s{sT2}, v55")
    a(f"s_and_b32 s{sT1}, s{sIDX}, 1")
    a(f"s_lshr_b32 s{sT0}, s{sIDX}, 1"); a(f"s_mul_i32 s{sT2}, s{sT0}, {48*128}"); a(f"s_add_u32 s{sT2}, s{sT2}, {OB}")
    a(f"v_lshlrev_b32 v{vOW}, 7, v{vQ}"); a(f"v_add_u32 v{vOW}, s{sT2}, v{vOW}")
    a(f"s_lshl_b32 s{sT3}, s{sT1}, 2")
    a(f"v_or_b32 v55, s{sT3}, v{vGq}")
    a(f"v_lshrrev_b32 v56, 1, v{vQ}"); a("v_xor_b32 v55, v55, v56")
    a(f"v_lshl_add_u32 v{vOW}, v55, 4, v{vOW}")
    R.wait_lg_all()
    for nt in range(3):
        mo, lo = 32 + 2*nt, 33 + 2*nt
        m, l = M2[nt], M2[nt] + 1
        a(f"v_max_f32 v38, v{m}, v{mo}")
        a(f"v_sub_f32 v{ALO[nt]}, v{m}, v38"); a(f"v_sub_f32 v{ALP[nt]}, v{mo}, v38")
        a(f"v_exp_f32 v{ALO[nt]}, v{ALO[nt]}"); a(f"v_exp_f32 v{ALP[nt]}, v{ALP[nt]}")
        a(f"v_mul_f32 v38, v{l}, v{ALO[nt]}")
        a(f"v_fma_f32 v38, v{lo}, v{ALP[nt]}, v38")
        a("v_rcp_f32 v38, v38")
        a(f"v_mul_f32 v{ALO[nt]}, v{ALO[nt]}, v38"); a(f"v_mul_f32 v{ALP[nt]}, v{ALP[nt]}, v38")

def a_PV(R, n, dma=None):
    a = R.a
    j, w = n >> 1, n & 1
    buf = KVA if w == 0 else KVB
    frs = [(s, mt) for s in range(4) for mt in range(4)]
    if w == 1: frs = frs[:12] + [(3, 2), (3, 3), (3, 0), (3, 1)]
    NB = 4
    def rd(k):
        s, mt = frs[k]
        b = KF + 4*(k % NB)
        R.lds(f"ds_read_b64_tr_b16 {vr(b,2)}, v{40+mt} offset:{buf + 4096*s}", f"vf{k}")
        R.lds(f"ds_read_b64_tr_b16 {vr(b+2,2)}, v{40+mt} offset:{buf + 4096*s + 2048}", f"vf{k}")
    for k in range(NB-1): rd(k)
    if dma and not cfg.interleave:
        for ii in range(8): kv_dma(R, dma[0], dma[1], ii)
        dma = None
    for k, (s, mt) in enumerate(frs):
        if k + NB - 1 < len(frs): rd(k + NB - 1)
        if dma and k < 8: kv_dma(R, dma[0], dma[1], k)
        R.wait_lg(f"vf{k}")
        for nt in range(3):
            d = Oa(mt, nt)
            c = "0" if (w == 0 and s == 0) else vr(d)
            a(f"v_mfma_f32_16x16x32_bf16 {vr(d)}, {vr(KF + 4*(k % NB))}, {vr(Pf(w,s,nt))}, {c}")
        if w == 1 and k >= 14:
            m2 = k - 12
            for nt in range(3):
                R.lds(f"ds_write_b128 v{vXW}, {vr(Oa(m2,nt))} offset:{((m2-2)*3+nt)*1024}", "xw")

def a_rescale(R):
    a = R.a
    for mt in range(4):
        for nt in range(3):
            if cfg.unpack:
                for r in range(4): a(f"v_mul_f32 v{Oa(mt,nt)+r}, v{BETA[nt]}, v{Oa(mt,nt)+r}")
                continue
            for h2 in (0, 2):
                b = Oa(mt, nt) + h2
                a(f"v_pk_mul_f32 {vr(b,2)}, {vr(b,2)}, {vr(BETA[nt],2)} op_sel_hi:[1,0]")

def a_xwrite(R):
    a = R.a
    for mt in (2, 3):
        for nt in range(3):
            R.lds(f"ds_write_b128 v{vXW}, {vr(Oa(mt,nt))} offset:{((mt-2)*3+nt)*1024}", "xw")

def a_xfinal(R, dma=None):
    a = R.a
    for nt in range(3):
        for i in range(2):
            R.lds(f"ds_read_b128 {vr(XT(i,nt))}, v{vXR} offset:{(i*3+nt)*1024}", f"xr{nt}")
    if dma:
        for ii in range(8): kv_dma(R, dma[0], dma[1], ii)
    for nt in range(3):
        for i in range(2):
            if cfg.unpack:
                for r in range(4): a(f"v_mul_f32 v{Oa(i,nt)+r}, v{ALO[nt]}, v{Oa(i,nt)+r}")
                continue
            for h2 in (0, 2):
                b = Oa(i, nt) + h2
                a(f"v_pk_mul_f32 {vr(b,2)}, {vr(b,2)}, {vr(ALO[nt],2)} op_sel_hi:[1,0]")
    for nt in range(3):
        R.wait_lg(f"xr{nt}")
        for i in range(2):
            if cfg.unpack:
                for r in range(4): a(f"v_fma_f32 v{Oa(i,nt)+r}, v{XT(i,nt)+r}, v{ALP[nt]}, v{Oa(i,nt)+r}")
                continue
            for h2 in (0, 2):
                b, x = Oa(i, nt) + h2, XT(i, nt) + h2
                a(f"v_pk_fma_f32 {vr(b,2)}, {vr(x,2)}, {vr(ALP[nt],2)}, {vr(b,2)} op_sel_hi:[1,0,1]")
        d = XT(0, nt)
        a(f"v_cvt_pk_bf16_f32 v{d}, v{Oa(0,nt)}, v{Oa(0,nt)+1}")
        a(f"v_cvt_pk_bf16_f32 v{d+1}, v{Oa(0,nt)+2}, v{Oa(0,nt)+3}")
        a(f"v_cvt_pk_bf16_f32 v{d+2}, v{Oa(1,nt)}, v{Oa(1,nt)+1}")
        a(f"v_cvt_pk_bf16_f32 v{d+3}, v{Oa(1,nt)+2}, v{Oa(1,nt)+3}")
        R.lds(f"ds_write_b128 v{vOW}, {vr(d)} offset:{2048*nt}", "ow")

PRING = 0
vWqD = 20
vWqR = 21
vQW = 25
PT = 26
vWqR5 = 35
def Xf(s, nt): return 40 + (s*3 + nt)*4
def Qa(mt, nt): return 208 + (mt*3 + nt)*4

def p_lane(a):
    a(f"v_mbcnt_lo_u32_b32 v{PT}, -1, 0"); a(f"v_mbcnt_hi_u32_b32 v{PT}, -1, v{PT}")
    a(f"v_and_b32 v{PT+1}, 15, v{PT}"); a(f"v_lshrrev_b32 v{PT+2}, 4, v{PT}")

def p_setup(R):
    a = R.a
    l, q, g = PT, PT+1, PT+2
    p = sIDX
    p_lane(a)
    a(f"s_mul_i32 s{sXo}, s{p}, 896")
    a(f"s_lshr_b32 s{sT0}, s{p}, 1")
    a(f"v_xor_b32 v{PT+3}, s{sT0}, v{l}"); a(f"v_lshlrev_b32 v{PT+3}, 4, v{PT+3}")
    for k in range(4):
        a(f"v_xor_b32 v{PT+4+k}, {(2*k) << 4}, v{PT+3}")
    a(f"s_mov_b64 s[{sEX}:{sEX+1}], exec")
    a("s_mov_b32 exec_hi, 0x00ffffff")
    for ii in range(12):
        base = (KVB + 3584*ii) if ii < 8 else (QB + 3584*(ii-8))
        a(f"s_add_u32 m0, s{sXo}, {base}")
        a(f"s_add_u32 s{sT1}, s{sXo}, {3584*ii}")
        R.vmem(f"buffer_load_dwordx4 v{PT+4 + (ii % 4)}, {srd(SRD_X)}, s{sT1} offen lds", "x")
    a(f"s_mov_b64 exec, s[{sEX}:{sEX+1}]")

def p_setup2(R):
    a = R.a
    l, q, g = PT, PT+1, PT+2
    p = sIDX
    a(f"s_lshl_b32 s{sWp}, s{p}, 14"); a(f"s_add_u32 s{sWp}, s{sWp}, {WB}")
    wq_dma_pattern(a, vWqD, l, g, PT+3, PT+4)
    a(f"v_lshrrev_b32 v{PT+3}, 2, v{l}")
    a(f"v_lshrrev_b32 v{PT+4}, 1, v{PT+3}"); a(f"v_and_b32 v{PT+4}, 3, v{PT+4}")
    a(f"v_lshlrev_b32 v{PT+5}, 7, v{PT+3}"); a(f"v_add_u32 v{PT+5}, s{sWp}, v{PT+5}")
    a(f"v_and_b32 v{PT+6}, 3, v{l}"); a(f"v_lshl_add_u32 v{PT+5}, v{PT+6}, 3, v{PT+5}")
    for mt in range(4):
        a(f"v_xor_b32 v{PT+6}, {mt}, v{PT+4}")
        a(f"v_lshl_add_u32 v{vWqR+mt}, v{PT+6}, 5, v{PT+5}")
    a(f"s_and_b32 s{sT0}, s{sIDX}, 1"); a(f"s_mul_i32 s{sT0}, s{sT0}, {48*128}")
    a(f"s_lshr_b32 s{sT1}, s{sIDX}, 1"); a(f"s_mul_i32 s{sT1}, s{sT1}, 12288")
    a(f"s_add_u32 s{sT0}, s{sT0}, s{sT1}"); a(f"s_add_u32 s{sT0}, s{sT0}, {QB}")
    a(f"v_lshlrev_b32 v{PT+5}, 7, v{q}"); a(f"v_add_u32 v{PT+5}, s{sT0}, v{PT+5}")
    a(f"v_and_b32 v{PT+6}, 1, v{g}"); a(f"v_lshl_add_u32 v{PT+5}, v{PT+6}, 3, v{PT+5}")
    a(f"v_lshrrev_b32 v{PT+6}, 1, v{g}"); a(f"v_lshrrev_b32 v{PT+3}, 1, v{q}"); a(f"v_xor_b32 v{PT+6}, v{PT+6}, v{PT+3}")
    a(f"v_lshl_add_u32 v{vQW}, v{PT+6}, 4, v{PT+5}")
    a(f"v_lshrrev_b32 v{PT+3}, 1, v{q}")
    a(f"v_lshrrev_b32 v{PT+4}, 1, v{g}"); a(f"v_xor_b32 v{PT+4}, v{PT+4}, v{PT+3}")
    a(f"s_mov_b32 s{sT0}, 896"); a(f"v_mul_lo_u32 v{PT+5}, s{sT0}, v{q}")
    a(f"v_and_b32 v{PT+6}, 1, v{g}"); a(f"v_lshl_add_u32 v{PT+5}, v{PT+6}, 3, v{PT+5}")
    a(f"v_add_u32 v{PT+5}, {KVB}, v{PT+5}")
    for k in range(4):
        a(f"v_xor_b32 v{PT+6}, {2*k}, v{PT+4}")
        a(f"v_lshl_add_u32 v{PT+7+k}, v{PT+6}, 4, v{PT+5}")

def p_xfrags(R):
    a = R.a
    for pas in range(2):
        for s in range(14):
            for nt in ((0, 1) if pas == 0 else (2,)):
                for half in range(2):
                    k = 2*(s & 1) + half
                    off = (14336*nt if pas == 0 else 0) + 128*(s >> 1)
                    R.lds_guard(1)
                    R.lds(f"ds_read_b64 {vr(Xf(s,nt)+2*half,2)}, v{PT+7+k} offset:{off}", "xf")
        if pas == 0:
            R.wait_lg_all()
            for k in range(4): a(f"v_add_u32 v{PT+7+k}, {QB-KVB}, v{PT+7+k}")
    R.wait_lg_all()

def p_qcompute(R, kaps, stream_next, hooks=None):
    a = R.a
    D = cfg.dq; NB = D + 1
    hooks = hooks or {}
    frs = [(kap, mt) for kap in kaps for mt in range(4)]
    def rd(f):
        kap, mt = frs[f]
        if mt == 0: R.wait_vm(f"w{kap}")
        b = PRING + 4*(f % NB)
        area, off = wq_slot(kap)
        ad = (vWqR if area == 'own' else vWqR5) + mt
        R.lds(f"ds_read_b64_tr_b16 {vr(b,2)}, v{ad} offset:{off}", f"f{kap}_{mt}")
        R.lds(f"ds_read_b64_tr_b16 {vr(b+2,2)}, v{ad} offset:{off + 2048}", f"f{kap}_{mt}")
    for f in range(min(D, len(frs))): rd(f)
    for f, (kap, mt) in enumerate(frs):
        J, s = divmod(kap, 14)
        if f + D < len(frs): rd(f + D)
        if stream_next and cfg.j0s5 and kap >= 1 and kap + 4 < 14: wq_dma(R, kap + 4, vWqD, [mt])
        R.wait_lg(f"f{kap}_{mt}")
        if cfg.kst and mt == 0 and kap < 14 and kap % 2 == 0: lstamp(a, 26 + kap // 2)
        for nt in range(3):
            d = Qa(mt, nt)
            c = "0" if s == 0 else vr(d)
            a(f"v_mfma_f32_16x16x32_bf16 {vr(d)}, {vr(PRING + 4*(f % NB))}, {vr(Xf(s,nt))}, {c}")
        if stream_next and not cfg.j0s5 and mt == 3 and kap + NSLOT_Q < 14: wq_dma(R, kap + NSLOT_Q, vWqD)
        if mt == 3 and kap in hooks: hooks[kap]()
    last = kaps[-1]
    if last % 14 == 13:
        if cfg.kst and last == 13: lstamp(a, 33)
        k = 0
        for m2 in range(4):
            a(f"v_xor_b32 v{PT+8}, {32*m2}, v{vQW}")
            for nt in range(3):
                d = Qa(m2, nt)
                t = PT + 2*(k % 4); k += 1
                a(f"v_cvt_pk_bf16_f32 v{t}, v{d}, v{d+1}")
                a(f"v_cvt_pk_bf16_f32 v{t+1}, v{d+2}, v{d+3}")
                R.lds_guard(1)
                R.lds(f"ds_write_b64 v{PT+8}, {vr(t,2)} offset:{2048*nt}", "qw")
        R.wait_lg("qw")

ORING = 0
vWoD = 32
vWoR = 34
vOR = 42
VT = 48
ALT = 208
PUB = [216 + 4*i for i in range(10)] + [20, 24]
def Outa(i, nt): return 64 + (i*3 + nt)*4
def Of(ks, nt): return 160 + (ks*3 + nt)*4

def p_vsetup(R, wide):
    a = R.a
    l, q, g = VT, VT+1, VT+2
    a(f"v_mbcnt_lo_u32_b32 v{l}, -1, 0"); a(f"v_mbcnt_hi_u32_b32 v{l}, -1, v{l}")
    a(f"v_and_b32 v{q}, 15, v{l}"); a(f"v_lshrrev_b32 v{g}, 4, v{l}")
    a(f"s_lshl_b32 s{sT0}, s{sIDX}, 8")
    if wide:
        a(f"v_bfe_u32 v{VT+3}, v{l}, 1, 3"); a(f"v_xor_b32 v{VT+3}, v{VT+3}, v{g}")
        a(f"s_mov_b32 s{sT1}, 896"); a(f"v_mul_lo_u32 v{VT+4}, s{sT1}, v{g}")
        a(f"v_and_b32 v{VT+5}, 1, v{l}"); a(f"v_lshl_add_u32 v{VT+4}, v{VT+5}, 4, v{VT+4}")
        a(f"v_add_u32 v{VT+4}, s{sT0}, v{VT+4}")
        a(f"v_lshl_add_u32 v{vWoD}, v{VT+3}, 5, v{VT+4}")
        a(f"v_xor_b32 v{VT+3}, 4, v{VT+3}"); a(f"v_lshl_add_u32 v{vWoD+1}, v{VT+3}, 5, v{VT+4}")
        a(f"v_lshrrev_b32 v{VT+3}, 2, v{l}"); a(f"v_and_b32 v{VT+4}, 7, v{VT+3}")
        a(f"v_lshlrev_b32 v{VT+5}, 8, v{VT+3}")
    else:
        a(f"v_lshrrev_b32 v{VT+3}, 3, v{l}"); a(f"s_mov_b32 s{sT1}, 896"); a(f"v_mul_lo_u32 v{VT+4}, s{sT1}, v{VT+3}")
        a(f"v_bfe_u32 v{VT+3}, v{l}, 1, 2"); a(f"v_xor_b32 v{VT+3}, v{VT+3}, v{g}")
        a(f"v_lshl_add_u32 v{VT+4}, v{VT+3}, 5, v{VT+4}")
        a(f"v_and_b32 v{VT+5}, 1, v{l}"); a(f"v_lshl_add_u32 v{VT+4}, v{VT+5}, 4, v{VT+4}")
        a(f"v_add_u32 v{vWoD}, s{sT0}, v{VT+4}")
        a(f"v_lshrrev_b32 v{VT+3}, 2, v{l}")
        a(f"v_lshrrev_b32 v{VT+4}, 1, v{VT+3}"); a(f"v_and_b32 v{VT+4}, 3, v{VT+4}")
        a(f"v_lshlrev_b32 v{VT+5}, 7, v{VT+3}")
    a(f"v_and_b32 v{VT+6}, 3, v{l}"); a(f"v_lshl_add_u32 v{VT+5}, v{VT+6}, 3, v{VT+5}")
    a(f"s_lshl_b32 s{sT1}, s{sIDX}, 13")
    for mt in range(8 if wide else 4):
        a(f"v_xor_b32 v{VT+6}, {mt}, v{VT+4}")
        a(f"v_lshl_add_u32 v{VT+7}, v{VT+6}, 5, v{VT+5}")
        a(f"v_add_u32 v{vWoR+mt}, s{sWp}, v{VT+7}")
        a(f"v_add_u32 v{ALT+mt}, s{sT1}, v{VT+7}")
    a(f"v_lshrrev_b32 v{VT+3}, 1, v{q}"); a(f"v_xor_b32 v{VT+3}, v{g}, v{VT+3}")
    a(f"v_lshlrev_b32 v{VT+4}, 7, v{q}"); a(f"v_add_u32 v{VT+4}, {OB}, v{VT+4}")
    a(f"v_lshl_add_u32 v{vOR}, v{VT+3}, 4, v{VT+4}")
    a(f"v_xor_b32 v{VT+3}, 4, v{VT+3}"); a(f"v_lshl_add_u32 v{vOR+1}, v{VT+3}, 4, v{VT+4}")
    a(f"s_lshl_b32 s{sM0}, s{sIDX}, 13")

def wo_slot(kap, wide):
    slot = 8192 if wide else 4096
    special = {14: ('kv', KVA), 15: ('kv', KVB)}
    if kap in special: return special[kap]
    return ('own', (kap % 2)*slot)

def wo_dma(R, kap, wide, ii_list=None):
    a = R.a
    j, ks = divmod(kap, 4); h, s = divmod(ks, 2)
    row0 = 256*h + 32*s
    area, off = wo_slot(kap, wide)
    base = sWp if area == 'own' else sM0
    for ii in (ii_list if ii_list is not None else range(8 if wide else 4)):
        a(f"s_add_u32 m0, s{base}, {off + 1024*ii}")
        rows = 4*ii if wide else 8*ii
        a(f"s_add_u32 s{sT1}, s{sCOL+4+j}, {(row0 + rows)*896}")
        pat = vWoD + ((ii & 1) if wide else 0)
        R.vmem(f"buffer_load_dwordx4 v{pat}, {srd(SRD_WO)}, s{sT1} offen {cfg.w_flags} lds", f"o{kap}")

def p_ofrags(R):
    for k2 in range(4):
        for nt in range(3):
            R.lds_guard(1)
            R.lds(f"ds_read_b128 {vr(Of(k2,nt))}, v{vOR + (k2 & 1)} offset:{6144*(k2 >> 1) + 2048*nt}", f"of{k2}")

vPK0, vPK1, vPV, vPF = 44, 45, 46, 56
def p_kv_setup(R, first=False):
    a = R.a
    l, g = VT, VT+2
    a(f"s_lshl_b32 s{sM0}, s{sIDX}, 13")
    a(f"v_mbcnt_lo_u32_b32 v{l}, -1, 0"); a(f"v_mbcnt_hi_u32_b32 v{l}, -1, v{l}"); a(f"v_lshrrev_b32 v{g}, 4, v{l}")
    a(f"v_lshrrev_b32 v{VT+3}, 3, v{l}"); a(f"v_lshlrev_b32 v{VT+3}, 9, v{VT+3}")
    a(f"s_lshl_b32 s{sT1}, s{sIDX}, 15"); a(f"v_add_u32 v{VT+3}, s{sT1}, v{VT+3}")
    a(f"v_and_b32 v{VT+4}, 7, v{l}"); a(f"v_xor_b32 v{VT+5}, v{VT+4}, v{g}")
    a(f"v_lshl_add_u32 v{vPK0}, v{VT+5}, 4, v{VT+3}")
    a(f"v_xor_b32 v{VT+5}, 4, v{VT+5}"); a(f"v_lshl_add_u32 v{vPK1}, v{VT+5}, 4, v{VT+3}")
    a(f"v_lshrrev_b32 v{VT+5}, 1, v{VT+4}"); a(f"v_xor_b32 v{VT+5}, v{VT+5}, v{g}")
    a(f"v_lshl_add_u32 v{VT+5}, v{VT+5}, 5, v{VT+3}")
    a(f"v_and_b32 v{VT+4}, 1, v{l}"); a(f"v_lshl_add_u32 v{vPV}, v{VT+4}, 4, v{VT+5}")
    a(f"v_lshlrev_b32 v{vPF}, 7, v{l}")

def p_issue_KV(R, kind, n):
    a = R.a
    j, w = n >> 1, n & 1
    buf = KVA if w == 0 else KVB
    if kind == "K" and n >= 6: buf = T1 if n == 6 else T2
    for ii in range(8):
        a(f"s_add_u32 m0, s{sM0}, {buf + 1024*ii}")
        a(f"s_add_u32 s{sT1}, s{sCOL+j}, {131072*w + 4096*ii}")
        if kind == "K": R.vmem(f"buffer_load_dwordx4 v{vPK0 + (ii & 1)}, {srd(SRD_K)}, s{sT1} offen {cfg.k_flags} lds", f"K{n}")
        else: R.vmem(f"buffer_load_dwordx4 v{vPV}, {srd(SRD_V)}, s{sT1} offen {cfg.v_flags} lds", f"V{n}")

def p_tlb_warm(R):
    a = R.a
    if not cfg.tlbw: return
    a(f"s_lshl_b32 s{sT0}, s{sB}, 4"); a(f"s_lshl_b32 s{sT1}, s{sBR}, 2"); a(f"s_add_u32 s{sT0}, s{sT0}, s{sT1}")
    a(f"s_mul_i32 s{sT0}, s{sT0}, {PART}")
    a(f"v_mov_b32 v58, s{sT0}")
    a(f"s_add_u32 s{sT1}, s{sT0}, {11*PART + PART - 4}"); a(f"v_writelane_b32 v58, s{sT1}, 1")
    a(f"s_mul_i32 s{sT1}, s2, {PART}"); a(f"v_writelane_b32 v58, s{sT1}, 2")
    a(f"s_mul_i32 s{sT1}, s{sGRP}, {FSTR}"); a(f"s_add_u32 s{sT1}, s{sT1}, {FLG}"); a(f"v_writelane_b32 v58, s{sT1}, 3")
    a(f"s_mul_i32 s{sT2}, s{sB}, {48*1792}")
    a(f"s_mov_b64 s[{sEX}:{sEX+1}], exec"); a("s_mov_b64 exec, 0xf")
    R.vmem(f"buffer_load_dword v59, v58, {srd(SRD_WS)}, 0 offen sc0 sc1", "tlb")
    a("s_mov_b64 exec, 1"); a("v_mov_b32 v60, 0")
    R.vmem(f"buffer_load_dword v59, v60, {srd(SRD_OUT)}, s{sT2} offen sc0 sc1", "tlb")
    a(f"s_mov_b64 exec, s[{sEX}:{sEX+1}]")

def p_pf_wo(R):
    a = R.a
    if not cfg.pf: return
    a(f"s_mul_i32 s{sT2}, s{sB}, 28672"); a(f"s_lshl_b32 s{sT3}, s{sIDX}, 13"); a(f"s_add_u32 s{sT2}, s{sT2}, s{sT3}")
    R.vmem(f"buffer_load_dword v57, v{vPF}, {srd(SRD_WO)}, s{sT2} offen {cfg.pf_flags}", "pf")

def p_of(R, k2):
    for nt in range(3):
        R.lds_guard(1)
        R.lds(f"ds_read_b128 {vr(Of(k2,nt))}, v{vOR + (k2 & 1)} offset:{6144*(k2 >> 1) + 2048*nt}", f"of{k2}")

def p_ocompute(R, kaps, wide, inter=None, ofr=False):
    a = R.a
    NT = 8 if wide else 4
    D = 4; NB = 5
    rowb = 256 if wide else 128
    inter = inter or {}
    frs = [(kap, mt) for kap in kaps for mt in range(NT)]
    def rd(f):
        kap, mt = frs[f]
        if mt == 0: R.wait_vm(f"o{kap}")
        b = ORING + 4*(f % NB)
        area, off = wo_slot(kap, wide)
        addr = (vWoR if area == 'own' else ALT) + mt
        R.lds_guard(2)
        R.lds(f"ds_read_b64_tr_b16 {vr(b,2)}, v{addr} offset:{off}", f"f{kap}_{mt}")
        R.lds(f"ds_read_b64_tr_b16 {vr(b+2,2)}, v{addr} offset:{off + 16*rowb}", f"f{kap}_{mt}")
    if ofr: p_of(R, 0)
    for f in range(D): rd(f)
    for f, (kap, mt) in enumerate(frs):
        j, ks = divmod(kap, 4)
        if f + D < len(frs): rd(f + D)
        if ofr and f < 3: p_of(R, f + 1)
        for (k2, ii) in inter.get(f, []): wo_dma(R, k2, wide, [ii])
        R.wait_lg(f"f{kap}_{mt}")
        if mt == 0: R.wait_lg(f"of{ks}")
        for nt in range(3):
            d = Outa(mt, nt)
            c = "0" if kap == 0 else vr(d)
            a(f"v_mfma_f32_16x16x32_bf16 {vr(d)}, {vr(ORING + 4*(f % NB))}, {vr(Of(ks,nt))}, {c}")
        if cfg.tst and mt == NT - 1 and kap >= 10: lstamp(a, 26 + kap - 10)

def p_oproj_phase(R, bar, wide):
    a = R.a
    NT = 8 if wide else 4
    nbar = 0
    def b1():
        nonlocal nbar
        bar(); nbar += 1
    b1()
    if cfg.wo_first_after >= 6: wo_dma(R, 0, wide); wo_dma(R, 1, wide)
    b1()
    if cfg.pvprio: a(f"s_setprio {cfg.pvprio}")
    for j in range(3):
        a.comment(f"---- O projection chunk {j}")
        p_ocompute(R, [4*j, 4*j+1], wide, ofr=True)
        wo_dma(R, 4*j+2, wide); wo_dma(R, 4*j+3, wide)
        b1()
        if j < 2:
            p_ocompute(R, [4*j+2, 4*j+3], wide)
            wo_dma(R, 4*j+4, wide); wo_dma(R, 4*j+5, wide)
        else:
            if cfg.p7prio: a(f"s_setprio {cfg.p7prio}")
            if cfg.d14first:
                wo_dma(R, 14, wide); inter = {}
            else:
                inter = {f: [(14, f)] for f in range(NT)}
            inter.update({NT + f: [(12, f)] for f in range(NT)})
            p_ocompute(R, [10, 11], wide, inter=inter)
            wo_dma(R, 13, wide)
        b1()
    p_ocompute(R, [12, 13], wide, inter={f: [(15, f)] for f in range(NT)}, ofr=True)
    p_ocompute_last(R, wide)
    return nbar

def p_ocompute_last(R, wide):
    a = R.a
    NT = 8 if wide else 4
    D = 4; NB = 5
    rowb = 256 if wide else 128
    frs = [(kap, 2*ip + t) for ip in range(NT//2) for kap in (14, 15) for t in range(2)]
    def rd(f):
        kap, mt = frs[f]
        if f == 0: R.wait_vm("o14"); R.wait_vm("o15")
        b = ORING + 4*(f % NB)
        area, off = wo_slot(kap, wide)
        addr = (vWoR if area == 'own' else ALT) + mt
        R.lds_guard(2)
        R.lds(f"ds_read_b64_tr_b16 {vr(b,2)}, v{addr} offset:{off}", f"g{f}")
        R.lds(f"ds_read_b64_tr_b16 {vr(b+2,2)}, v{addr} offset:{off + 16*rowb}", f"g{f}")
    a(f"v_mbcnt_lo_u32_b32 v{VT}, -1, 0"); a(f"v_mbcnt_hi_u32_b32 v{VT}, -1, v{VT}"); a(f"v_lshlrev_b32 v{VT}, 4, v{VT}")
    a(f"s_mul_i32 s{sT2}, s2, {PART}"); a(f"s_mul_i32 s{sT3}, s{sIDX}, {12*1024}"); a(f"s_add_u32 s{sT2}, s{sT2}, s{sT3}")
    npub = 0
    def pub_pair(ip):
        nonlocal npub
        for nt in range(3):
            t = PUB[npub]; npub += 1
            d0, d1 = Outa(2*ip, nt), Outa(2*ip+1, nt)
            a(f"v_cvt_pk_bf16_f32 v{t}, v{d0}, v{d0+1}"); a(f"v_cvt_pk_bf16_f32 v{t+1}, v{d0+2}, v{d0+3}")
            a(f"v_cvt_pk_bf16_f32 v{t+2}, v{d1}, v{d1+1}"); a(f"v_cvt_pk_bf16_f32 v{t+3}, v{d1+2}, v{d1+3}")
            a(f"s_add_u32 s{sT1}, s{sT2}, {1024*(ip*3 + nt)}")
            R.vmem(f"buffer_store_dwordx4 {vr(t)}, v{VT}, {srd(SRD_WS)}, s{sT1} offen sc0 sc1", "pub")
    for f in range(D): rd(f)
    for f, (kap, mt) in enumerate(frs):
        ks = kap % 4
        if f + D < len(frs): rd(f + D)
        R.wait_lg(f"g{f}")
        for nt in range(3):
            d = Outa(mt, nt)
            a(f"v_mfma_f32_16x16x32_bf16 {vr(d)}, {vr(ORING + 4*(f % NB))}, {vr(Of(ks,nt))}, {vr(d)}")
        if f % 4 == 1 and f >= 5: pub_pair(f//4 - 1)
    pub_pair(NT//2 - 1)

def p_flag(R):
    a = R.a
    if cfg.tst: lstamp(a, 32)
    R.wait_vm_all()
    if cfg.tst: lstamp(a, 33)
    a(f"s_mul_i32 s{sT0}, s{sGRP}, {FSTR}"); a(f"s_add_u32 s{sT0}, s{sT0}, {FLG}")
    a(f"s_lshl_b32 s{sT1}, s{sG}, 2"); a(f"s_add_u32 s{sT1}, s{sT1}, s{sIDX}"); a(f"s_lshl_b32 s{sT1}, s{sT1}, 2")
    a(f"v_mov_b32 v2, s{sT1}"); a("v_mov_b32 v1, 1")
    a(f"s_mov_b64 s[{sEX}:{sEX+1}], exec")
    a("s_mov_b64 exec, 1")
    a(f"buffer_store_dword v1, v2, {srd(SRD_WS)}, s{sT0} offen sc0 sc1")
    a(f"s_mov_b64 exec, s[{sEX}:{sEX+1}]")

def emit_reduce(a):
    a.label("L_tail")
    if cfg.stamps: stamp(a, 50)
    a(f"s_min_u32 s{sT0}, s{sG}, 2"); a(f"s_mul_i32 s{sT1}, s{sG}, 5"); a(f"s_add_u32 s{sT0}, s{sT0}, s{sT1}")
    a(f"s_cmp_lt_u32 s{sG}, 2"); a(f"s_cselect_b32 s{sT1}, 6, 5")
    a(f"s_mov_b32 s80, s{sT1}")
    a(f"s_add_u32 s{sT0}, s{sT0}, s{sWAVE}")
    a("v_mbcnt_lo_u32_b32 v3, -1, 0"); a("v_mbcnt_hi_u32_b32 v3, -1, v3")
    a("v_lshlrev_b32 v6, 4, v3"); a("v_lshlrev_b32 v0, 2, v3")
    a(f"s_mul_i32 s{sT2}, s{sT0}, 171"); a(f"s_lshr_b32 s{sT2}, s{sT2}, 9")
    a(f"s_mul_i32 s{sT3}, s{sT2}, 3"); a(f"s_sub_u32 s{sT3}, s{sT0}, s{sT3}")
    a(f"s_lshl_b32 s{sT3}, s{sT3}, 4"); a(f"s_mul_i32 s{sT1}, s{sB}, 48"); a(f"s_add_u32 s{sT3}, s{sT3}, s{sT1}")
    a(f"s_mul_i32 s{sT3}, s{sT3}, 1792"); a(f"s_lshl_b32 s{sT2}, s{sT2}, 6"); a(f"s_add_u32 s{sT3}, s{sT3}, s{sT2}")
    a(f"s_mul_i32 s{sT1}, s{sBR}, 896"); a(f"s_add_u32 s78, s{sT3}, s{sT1}") if not cfg.lstamps else None
    if cfg.lstamps: a(f"s_mul_i32 s{sT1}, s{sBR}, 896"); a(f"s_add_u32 s100, s{sT3}, s{sT1}")
    sOUT = 100 if cfg.lstamps else 78
    a("v_and_b32 v7, 15, v3"); a(f"s_mov_b32 s{sT1}, 1792"); a(f"v_mul_lo_u32 v7, s{sT1}, v7")
    a("v_bfe_u32 v8, v3, 4, 1"); a("v_lshl_add_u32 v7, v8, 5, v7")
    a("v_lshrrev_b32 v8, 5, v3"); a("v_lshl_add_u32 v7, v8, 4, v7")
    a(f"s_lshl_b32 s{sT1}, s{sB}, 4"); a(f"s_lshl_b32 s{sT2}, s{sBR}, 2"); a(f"s_add_u32 s{sT1}, s{sT1}, s{sT2}")
    a(f"s_mul_i32 s{sT1}, s{sT1}, {PART}"); a(f"s_lshl_b32 s{sT2}, s{sT0}, 10"); a(f"s_add_u32 s{sT3}, s{sT1}, s{sT2}")
    a(f"s_cmp_lg_u32 s{sWAVE}, 0"); a("s_cbranch_scc1 L_nopoll")
    a(f"s_mul_i32 s{sT0}, s{sGRP}, {FSTR}"); a(f"s_add_u32 s{sT0}, s{sT0}, {FLG}")
    a(f"s_mov_b64 s[{sEX}:{sEX+1}], exec")
    a("s_mov_b32 exec_hi, 0")
    a(f"s_mov_b32 s{sT2}, 0")
    a.label("L_poll")
    a(f"buffer_load_dword v4, v0, {srd(SRD_WS)}, s{sT0} offen sc0 sc1")
    a("s_waitcnt vmcnt(0)")
    a("v_cmp_eq_u32 vcc, 1, v4")
    a("s_cmp_eq_u32 vcc_lo, -1")
    a("s_cbranch_scc1 L_poll_done")
    a(f"s_add_u32 s{sT2}, s{sT2}, 1")
    a(f"s_cmp_ge_u32 s{sT2}, 400000")
    a("s_cbranch_scc1 L_poll_done")
    if cfg.sleep: a(f"s_sleep {cfg.sleep}")
    a("s_branch L_poll")
    a.label("L_poll_done")
    a(f"s_mov_b64 exec, s[{sEX}:{sEX+1}]")
    a.label("L_nopoll")
    a("s_barrier")
    a(f"s_cmp_ge_u32 s{sWAVE}, s80")
    a("s_cbranch_scc1 " + ("L_nogather" if cfg.stamps else ("L_mini" if cfg.mini else "L_end")))
    if cfg.stamps: stamp(a, 52)
    for k in range(8):
        gb, gp = k >> 2, k & 3
        a(f"s_add_u32 s{sT2}, s{sT3}, {(gb*8 + gp)*PART}")
        a(f"buffer_load_dwordx4 {vr(64+4*k)}, v6, {srd(SRD_WS)}, s{sT2} offen sc0 sc1")
    acc = 16
    for k in range(8):
        a(f"s_waitcnt vmcnt({7-k})")
        for r in range(4):
            src = 64 + 4*k + r
            if k == 0:
                a(f"v_lshlrev_b32 v{acc+2*r}, 16, v{src}"); a(f"v_and_b32 v{acc+2*r+1}, 0xffff0000, v{src}")
            else:
                t = 8 + 2*(r & 1) + 2
                a(f"v_lshlrev_b32 v{t}, 16, v{src}"); a(f"v_and_b32 v{t+1}, 0xffff0000, v{src}")
                a(f"v_pk_add_f32 {vr(acc+2*r,2)}, {vr(acc+2*r,2)}, {vr(t,2)}")
    for r in range(4):
        a(f"v_cvt_pk_bf16_f32 v{12+r}, v{acc+2*r}, v{acc+2*r+1}")
    a("v_permlane16_swap_b32 v12, v14")
    a("v_permlane16_swap_b32 v13, v15")
    a(f"buffer_store_dwordx4 v[12:15], v7, {srd(SRD_OUT)}, s{sOUT} offen")
    if cfg.stamps:
        a("s_waitcnt vmcnt(0)")
        a.label("L_nogather")
        stamp(a, 53)
        a("s_memtime s[74:75]"); a("s_waitcnt lgkmcnt(0)"); a("v_writelane_b32 v61, s74, 61")
        stamp_store(a)
    if cfg.mini:
        a.label("L_mini")
        a("s_memrealtime s[72:73]"); a("s_waitcnt vmcnt(0) lgkmcnt(0)")
        a("s_memrealtime s[72:73]"); a("s_waitcnt lgkmcnt(0)")
        a("v_mov_b32 v61, 0"); a("v_writelane_b32 v61, s90, 62"); a("v_writelane_b32 v61, s72, 53")
        stamp_store(a)
    a.label("L_end")
    a("s_endpgm")

def build():
    a = Asm()
    if cfg.mini:
        a("s_memrealtime s[90:91]")
    if cfg.stamps:
        a("s_memrealtime s[72:73]"); a("s_memtime s[74:75]"); a("s_waitcnt lgkmcnt(0)")
        a("v_writelane_b32 v61, s72, 62"); a("v_writelane_b32 v61, s74, 60")
    emit_prologue(a)
    cnt = {"n": 0}
    def bar():
        a("s_barrier")
        if cfg.stamps: stamp(a, cnt["n"])
        cnt["n"] += 1
    A = Role(a)
    if cfg.prioA: a(f"s_setprio {cfg.prioA}")
    a_setup(A)
    if cfg.pf_first: a_pf(A, "wq")
    bar()
    if not cfg.pf_first: a_pf(A, "wq")
    a_setup2(A)
    bar()
    a0_flag_zero(A)
    for kap in range(4): wq_dma(A, kap, vWqA)
    a_issue_KV(A, "K", 0)
    a_setup3(A)
    a_pair_init(A)
    A.wait_vm("w3")
    a0_flag_mark(A)
    bar()
    bar()
    a_issue_KV(A, "K", 1)
    A.wait_vm("K0")
    bar()
    a_S(A, 0)
    A.wait_vm("K1")
    bar()
    a_S(A, 1, dma=("K", 2)); A.wait_vm("K2"); bar()
    a_S(A, 2, dma=("K", 3)); A.wait_vm("K3"); bar()
    a_S(A, 3, dma=("K", 4)); A.wait_vm("K4"); bar()
    a_flag_load(A)
    a_issue_KV(A, "K", 5)
    a_flag_check(A)
    bar()
    a_S(A, 4)
    A.wait_vm("K5")
    bar()
    a_S(A, 5)
    bar()
    a_S(A, 6)
    if cfg.split_sm: a_softmax1(A)
    bar()
    a_S(A, 7)
    if not cfg.split_sm: a_softmax1(A)
    a_softmax2(A)
    bar()
    for n in range(8):
        dma = ("V", n+1) if 1 <= n <= 6 else None
        if cfg.prio7 and n == cfg.prio7from: a(f"s_setprio {cfg.prio7}")
        a_PV(A, n, dma)
        if n == 0:
            a_alpha(A); a_pair_addr(A)
        if n % 2 == 0:
            a_rescale(A)
        else:
            a_pair_sync(A, n >> 1)
            a_xfinal(A)
        if 1 <= n < 7: A.wait_vm(f"V{n+1}")
        A.wait_lg_all()
        bar()
    nA = cnt["n"]
    A.wait_vm_all()
    a("s_branch L_tail")
    a.label("L_P")
    cnt["n"] = 0
    P = Role(a)
    stamp_move(a, 39)
    if cfg.stamps: stamp(a, 55)
    if cfg.prioP: a(f"s_setprio {cfg.prioP}")
    P.vm += ["x"]*12
    if cfg.stamps: stamp(a, 56)
    bar()
    p_setup2(P)
    P.wait_vm("x"); bar()
    p_xfrags(P)
    if cfg.j0s5:
        a(f"s_lshl_b32 s{sWq5}, s{sIDX}, 12"); a(f"s_add_u32 s{sWq5}, s{sWq5}, {QB}")
        a(f"s_sub_u32 s{sT0}, s{sWq5}, s{sWp}")
        for mt in range(4): a(f"v_add_u32 v{vWqR5+mt}, s{sT0}, v{vWqR+mt}")
    bar()
    if cfg.j0s5: wq_dma(P, 4, vWqD)
    p_qcompute(P, list(range(14)), True, hooks={cfg.k1_after: bar})
    bar()
    if cfg.pkprio: a(f"s_setprio {cfg.pkprio}")
    for kap in (14, 15, 16, 17): wq_dma(P, kap, vWqD)
    bar()
    for kaps, nxt in (([14,15], [18,19]), ([16,17,18,19], [20,21,22,23]), ([20,21,22,23], [24,25,26,27]), ([24,25,26,27], [])):
        p_qcompute(P, kaps, False)
        for kap in nxt: wq_dma(P, kap, vWqD)
        bar()
    if cfg.pkprio: a("s_setprio 0")
    a(f"s_cmp_eq_u32 s{sIDX}, 3")
    a("s_cbranch_scc1 L_P3")
    base = cnt["n"]
    for wide in (True, False):
        if not wide:
            a.label("L_P3"); cnt["n"] = base
        Pw = Role(a)
        STREG[0] = 39
        stamp_move(a, 47)
        p_kv_setup(Pw, first=True)
        p_issue_KV(Pw, "K", 6)
        p_vsetup(Pw, wide)
        bar()
        p_issue_KV(Pw, "K", 7); Pw.wait_vm("K6"); bar()
        p_issue_KV(Pw, "V", 0); Pw.wait_vm("K7"); bar()
        p_issue_KV(Pw, "V", 1); p_pf_wo(Pw); p_tlb_warm(Pw); Pw.wait_vm("V0"); bar()
        Pw.wait_vm("V1")
        nb = p_oproj_phase(Pw, bar, wide)
        assert nb == 8, nb
        if cfg.stamps: stamp(a, 59)
        p_flag(Pw)
        if cfg.stamps: stamp(a, 58)
        assert cnt["n"] == nA, (cnt["n"], nA)
        stamp_move(a, 61)
        if wide: a("s_branch L_tail")
    emit_reduce(a)
    a.finalize()
    return a

HEADER = open("cdna_kernels/" + NAME + ".s.ref").read().split("; Override launch")[0]
def full_text(a):
    s = HEADER
    s += f"; @launch grid=(256,1,1) block=(512,1,1) lds={LDS_BYTES}\n"
    s += f'.amdgcn_target "amdgcn-amd-amdhsa--gfx950"\n.text\n.globl {NAME}_kernel\n.p2align 8\n.type {NAME}_kernel,@function\n{NAME}_kernel:\n'
    body = a.text()
    if cfg.icpf:
        body = body.replace("  s_endpgm\n", "  s_endpgm\nL_code_end:\n") if body.count("s_endpgm") == 1 else body + "L_code_end:\n"
        body = body.replace("CODE_BYTES", f"L_code_end-{NAME}_kernel")
    s += body
    s += f""".section .rodata,"a"
.p2align 6
.amdhsa_kernel {NAME}_kernel
  .amdhsa_next_free_vgpr 256
  .amdhsa_next_free_sgpr 102
  .amdhsa_accum_offset 256
  .amdhsa_group_segment_fixed_size 0
  .amdhsa_kernarg_size 104
  .amdhsa_user_sgpr_count 2
  .amdhsa_user_sgpr_kernarg_segment_ptr 1
  .amdhsa_system_sgpr_workgroup_id_x 1
.end_amdhsa_kernel
"""
    return s

if __name__ == "__main__":
    out = sys.argv[1] if len(sys.argv) > 1 else "cdna_kernels/" + NAME + ".s"
    for kv in sys.argv[2:]:
        k, v = kv.split("=", 1)
        cur = getattr(cfg, k)
        if isinstance(cur, bool): v = v.lower() in ("1", "true")
        elif isinstance(cur, int): v = int(v)
        setattr(cfg, k, v)
    a = build()
    open(out, "w").write(full_text(a))
    print("wrote", out, "instrs:", sum(1 for i in a.ins if i.kind not in ('none','label')), "nops inserted:", a.nops_inserted)
```

```python
import sys, math, struct
from asmlib import Asm

NAME = "concat_heads__gqa_block_cached__gqa_block_cached__near_ridge"

class Cfg:
    k_flags = "nt"
    v_flags = "nt"
    w_flags = ""
    pf = True
    pf_flags = ""
    stamps = False
    lstamps = False
    mini = False
    prioA = 0
    prioP = 0
    dq = 4
    pf_wo_at = 8
    k1_after = 9
    split_sm = True
    sleep = 0
    interleave = False
    pf_first = False
    wo_first_after = 7
    tst = False
    pvprio = 0
    pkprio = 0
    p7prio = 0
    d14first = False
    tlbw = True
    icpf = True
    prio7 = 0
    prio7from = 7
    pkv = True
    unpack = True
    j0s5 = True
    rot = 1
    kst = False
cfg = Cfg()

KVA, KVB = 0, 32768
WB = 65536
QB = 131072
OB = 122880
XB = 135168
STAT = 159744
PFL = 161280
LDS_BYTES = 163840
PART = 43008
FLG = 16 << 20
FSTR = 8448
sWAVE, sIDX, sG, sB, sBR = 3, 4, 5, 6, 7
SRD_K, SRD_V, SRD_WQ, SRD_WO, SRD_X, SRD_OUT, SRD_WS = 8, 12, 16, 20, 24, 28, 32
sDBG = 58
sM0, sWp = 62, 63
sC = 64
sT0, sT1, sT2, sT3 = 66, 67, 68, 69
sEX = 70
sGRP, sXo = 76, 77
sCOL = 36
sJ = 44
def srd(b): return f"s[{b}:{b+3}]"
def vr(b, n=4): return f"v[{b}:{b+n-1}]"
def f32bits(x): return struct.unpack('<I', struct.pack('<f', x))[0]
vL, vQ, vGq = 44, 46, 47

class Role:
    def __init__(self, a): self.a = a; self.vm = []; self.lg = []
    def vmem(self, text, tag): self.a(text); self.vm.append(tag)
    def lds(self, text, tag): self.a(text); self.lg.append(tag)
    def wait_vm(self, tag):
        idx = [i for i, t in enumerate(self.vm) if t == tag]
        if not idx: return
        n = len(self.vm) - 1 - idx[-1]
        assert n <= 63
        self.a(f"s_waitcnt vmcnt({n})"); self.vm = self.vm[idx[-1]+1:]
    def wait_lg(self, tag):
        idx = [i for i, t in enumerate(self.lg) if t == tag]
        if not idx: return
        n = len(self.lg) - 1 - idx[-1]
        assert n <= 15, n
        self.a(f"s_waitcnt lgkmcnt({n})"); self.lg = self.lg[idx[-1]+1:]
    def wait_vm_all(self): self.a("s_waitcnt vmcnt(0)"); self.vm = []
    def wait_lg_all(self): self.a("s_waitcnt lgkmcnt(0)"); self.lg = []
    def lds_guard(self, n_new):
        if len(self.lg) + n_new > 15:
            keep = 15 - n_new
            self.a(f"s_waitcnt lgkmcnt({keep})"); self.lg = self.lg[len(self.lg)-keep:] if keep else []

STREG = [61]
PEND = []
def stamp(a, idx):
    a("s_memrealtime s[72:73]")
    a("s_waitcnt lgkmcnt(0)")
    a(f"v_writelane_b32 v{STREG[0]}, s72, {idx}")
    for (sp, i2) in PEND: a(f"v_writelane_b32 v{STREG[0]}, s{sp}, {i2}")
    PEND.clear()
def lstamp(a, idx):
    if not cfg.lstamps: return
    sp = 78 + 2*len(PEND)
    assert sp <= 98
    a(f"s_memrealtime s[{sp}:{sp+1}]")
    PEND.append((sp, idx))
def stamp_move(a, new):
    if cfg.stamps: a(f"v_mov_b32 v{new}, v{STREG[0]}")
    STREG[0] = new
def stamp_store(a):
    a(f"s_lshl_b32 s{sT0}, s2, 3"); a(f"s_add_u32 s{sT0}, s{sT0}, s{sWAVE}"); a(f"s_lshl_b32 s{sT0}, s{sT0}, 8")
    a("v_mbcnt_lo_u32_b32 v60, -1, 0"); a("v_mbcnt_hi_u32_b32 v60, -1, v60")
    a(f"v_lshlrev_b32 v60, 2, v60"); a(f"v_add_u32 v60, s{sT0}, v60")
    a("s_add_u32 s74, s60, 0x2000000"); a("s_addc_u32 s75, s61, 0")
    a("global_store_dword v60, v61, s[74:75]")
    a("s_waitcnt vmcnt(0)")

def emit_prologue(a):
    a("s_cmp_ge_u32 s2, 256")
    a("s_cbranch_scc1 L_end")
    a("s_load_dwordx16 s[36:51], s[0:1], 0")
    a("s_load_dwordx4 s[52:55], s[0:1], 64")
    a("s_load_dwordx4 s[56:59], s[0:1], 80")
    a("s_load_dwordx2 s[60:61], s[0:1], 96")
    a("v_and_b32 v44, 63, v0")
    a("v_lshrrev_b32 v45, 6, v0")
    a("v_and_b32 v46, 15, v44")
    a("v_lshrrev_b32 v47, 4, v44")
    a(f"v_readfirstlane_b32 s{sWAVE}, v45")
    a(f"s_bfe_u32 s{sBR}, s2, 0x10002")
    a(f"s_and_b32 s{sG}, s2, 3"); a(f"s_lshl_b32 s{sG}, s{sG}, 1")
    a(f"s_bfe_u32 s{sT0}, s2, 0x10003"); a(f"s_or_b32 s{sG}, s{sG}, s{sT0}")
    a(f"s_lshr_b32 s{sB}, s2, 4")
    a(f"s_and_b32 s{sIDX}, s{sWAVE}, 3")
    a(f"s_lshl_b32 s{sGRP}, s{sBR}, 4"); a(f"s_add_u32 s{sGRP}, s{sGRP}, s{sB}")
    a(f"s_mov_b32 s{sC}, 0x{f32bits(math.log2(math.e)/16.0):08x}"); a(f"s_mov_b32 s{sC+1}, s{sC}")
    a_code_prefetch(Role(a))
    a("s_waitcnt lgkmcnt(0)")
    if cfg.stamps: stamp(a, 54)
    a(f"s_cmp_eq_u32 s{sBR}, 0")
    for i in range(5):
        a(f"s_cselect_b64 s[{36+2*i}:{37+2*i}], s[{36+2*i}:{37+2*i}], s[{46+2*i}:{47+2*i}]")
    def mk(srdb, ptr, off_s, size):
        if off_s is None:
            a(f"s_mov_b32 s{srdb}, s{ptr}"); a(f"s_and_b32 s{srdb+1}, s{ptr+1}, 0xffff")
        else:
            a(f"s_add_u32 s{srdb}, s{ptr}, s{off_s}")
            a(f"s_addc_u32 s{srdb+1}, s{ptr+1}, 0")
            a(f"s_and_b32 s{srdb+1}, s{srdb+1}, 0xffff")
        if isinstance(size, int): a(f"s_mov_b32 s{srdb+2}, {size}")
        else: a(size)
        a(f"s_mov_b32 s{srdb+3}, 0x20000")
    a(f"s_mul_i32 s{sT1}, s{sB}, 43008")
    mk(SRD_X, 36, sT1, 43008)
    a(f"s_cmp_lt_u32 s{sWAVE}, 4"); a("s_cbranch_scc1 L_nox")
    PX = Role(a); p_setup(PX)
    a.label("L_nox")
    a(f"s_lshl_b32 s{sT1}, s{sG}, 10")
    mk(SRD_WQ, 42, sT1, f"s_sub_u32 s{SRD_WQ+2}, {448*8192}, s{sT1}")
    a(f"s_lshl_b32 s{sT0}, s{sB}, 3"); a(f"s_add_u32 s{sT0}, s{sT0}, s{sG}"); a(f"s_lshl_b32 s{sT0}, s{sT0}, 18")
    mk(SRD_K, 38, sT0, 262144)
    mk(SRD_V, 40, sT0, 262144)
    a(f"s_mul_i32 s{sT1}, s{sG}, 458752")
    mk(SRD_WO, 44, sT1, 458752)
    mk(SRD_OUT, 56, None, 16*48*896*2)
    mk(SRD_WS, 60, None, FLG + 32*FSTR)
    if cfg.rot == 0: a(f"s_mov_b32 s{sT0}, 0")
    elif cfg.rot == 1: a(f"s_and_b32 s{sT0}, s{sB}, 3")
    elif cfg.rot == 2: a(f"s_add_u32 s{sT0}, s{sB}, s{sG}"); a(f"s_and_b32 s{sT0}, s{sT0}, 3")
    elif cfg.rot == 3: a(f"s_and_b32 s{sT0}, s{sB}, 1"); a(f"s_lshl_b32 s{sT0}, s{sT0}, 1")
    for j in range(4):
        a(f"s_add_u32 s{sT1}, s{sT0}, {j}"); a(f"s_and_b32 s{sT1}, s{sT1}, 3")
        a(f"s_lshl_b32 s{sCOL+j}, s{sT1}, 7"); a(f"s_mul_i32 s{sCOL+4+j}, s{sT1}, {64*896}")
    a(f"s_lshr_b32 s{sT2}, s{sIDX}, 1")
    for J in range(2):
        a(f"s_add_u32 s{sT1}, s{sT0}, s{sT2}"); a(f"s_add_u32 s{sT1}, s{sT1}, {2*J}"); a(f"s_and_b32 s{sT1}, s{sT1}, 3")
        a(f"s_lshl_b32 s{sJ+J}, s{sT1}, 7")
    a(f"s_cmp_ge_u32 s{sWAVE}, 4")
    a("s_cbranch_scc1 L_P")

def wq_dma_pattern(a, dst, l, g, t0, t1):
    a(f"v_lshrrev_b32 v{t0}, 3, v{l}"); a(f"v_lshlrev_b32 v{t0}, 13, v{t0}")
    a(f"v_bfe_u32 v{t1}, v{l}, 1, 2"); a(f"v_xor_b32 v{t1}, v{t1}, v{g}")
    a(f"v_lshl_add_u32 v{t0}, v{t1}, 5, v{t0}")
    a(f"v_and_b32 v{t1}, 1, v{l}"); a(f"v_lshl_add_u32 v{t0}, v{t1}, 4, v{t0}")
    a(f"s_and_b32 s{sT0}, s{sIDX}, 1"); a(f"s_lshl_b32 s{sT0}, s{sT0}, 9")
    a(f"v_add_u32 v{dst}, s{sT0}, v{t0}")

NSLOT_Q = 4
def wq_slot(kap):
    if cfg.j0s5 and kap < 14:
        sl = kap % 5
        return ('q', 0) if sl == 4 else ('own', sl*4096)
    return ('own', (kap % NSLOT_Q)*4096)
sWq5 = 47
def wq_dma(R, kap, vpat, ii_list=range(4)):
    a = R.a
    J, s = divmod(kap, 14)
    area, off = wq_slot(kap)
    for ii in ii_list:
        a(f"s_add_u32 m0, s{sWp if area == 'own' else sWq5}, {off + 1024*ii}")
        a(f"s_add_u32 s{sT1}, s{sJ+J}, {(32*s + 8*ii)*8192}")
        R.vmem(f"buffer_load_dwordx4 v{vpat}, {srd(SRD_WQ)}, s{sT1} offen {cfg.w_flags} lds", f"w{kap}")

def S_(t, nt): return 64 + (t*3 + nt)*4
def Qf(s, nt): return (s*3 + nt)*4
KF = 24
vKdE, vKdO, vVd, vWqA = 48, 49, 50, 51

def a_code_prefetch(R):
    a = R.a
    if not cfg.icpf: return
    a(f"s_cmp_lg_u32 s{sWAVE}, 3"); a("s_cbranch_scc1 L_icpf_skip")
    a("s_getpc_b64 s[72:73]")
    a.label("L_icpf_pc")
    a(f"s_sub_u32 s72, s72, L_icpf_pc-{NAME}_kernel"); a("s_subb_u32 s73, s73, 0")
    a(f"s_lshr_b32 s{sT0}, s2, 3"); a(f"s_lshl_b32 s{sT0}, s{sT0}, 11")
    a(f"v_lshlrev_b32 v58, 7, v{vL}"); a(f"v_add_u32 v58, s{sT0}, v58")
    a(f"s_mov_b64 s[{sEX}:{sEX+1}], exec"); a("s_mov_b64 exec, 0xffff")
    a("v_cmp_gt_u32 vcc, CODE_BYTES, v58")
    a("s_and_b64 exec, exec, vcc")
    a("s_cbranch_execz L_icpf_rest")
    a("global_load_dword v60, v58, s[72:73]")
    a.label("L_icpf_rest")
    a(f"s_mov_b64 exec, s[{sEX}:{sEX+1}]")
    a.label("L_icpf_skip")

def a_setup(R):
    a = R.a
    a(f"s_lshl_b32 s{sM0}, s{sIDX}, 13")
    a(f"s_lshl_b32 s{sWp}, s{sIDX}, 14"); a(f"s_add_u32 s{sWp}, s{sWp}, {WB}")
    if cfg.pf:
        a(f"v_lshrrev_b32 v52, 3, v{vL}"); a("v_lshlrev_b32 v52, 13, v52")
        a(f"v_and_b32 v53, 7, v{vL}"); a("v_lshl_add_u32 v56, v53, 7, v52")
        a(f"s_mul_i32 s{sT2}, s{sB}, 28"); a(f"s_lshl_b32 s{sT3}, s{sIDX}, 3"); a(f"s_add_u32 s{sT2}, s{sT2}, s{sT3}")
        a(f"s_lshl_b32 s{sT2}, s{sT2}, 13")

def a_pf(R, which):
    a = R.a
    if not cfg.pf: return
    if which == "wq":
        R.vmem(f"buffer_load_dword v63, v56, {srd(SRD_WQ)}, s{sT2} offen {cfg.pf_flags}", "pf")
    else:
        a(f"v_lshlrev_b32 v58, 7, v{vL}")
        a(f"s_mul_i32 s{sT2}, s{sB}, 28672"); a(f"s_lshl_b32 s{sT3}, s{sIDX}, 13"); a(f"s_add_u32 s{sT2}, s{sT2}, s{sT3}")
        R.vmem(f"buffer_load_dword v62, v58, {srd(SRD_WO)}, s{sT2} offen {cfg.pf_flags}", "pf")

def a_setup2(R):
    a = R.a
    wq_dma_pattern(a, vWqA, vL, vGq, 52, 53)
    a(f"v_lshrrev_b32 v52, 3, v{vL}"); a("v_lshlrev_b32 v52, 9, v52")
    a(f"s_lshl_b32 s{sT1}, s{sIDX}, 15"); a(f"v_add_u32 v52, s{sT1}, v52")
    a(f"v_and_b32 v53, 7, v{vL}"); a(f"v_xor_b32 v54, v53, v{vGq}")
    a(f"v_lshl_add_u32 v{vKdE}, v54, 4, v52")
    a("v_xor_b32 v54, 4, v54"); a(f"v_lshl_add_u32 v{vKdO}, v54, 4, v52")
    a("v_lshrrev_b32 v54, 1, v53"); a(f"v_xor_b32 v54, v54, v{vGq}")
    a("v_lshl_add_u32 v54, v54, 5, v52")
    a(f"v_and_b32 v55, 1, v{vL}"); a(f"v_lshl_add_u32 v{vVd}, v55, 4, v54")

def a_setup3(R):
    a = R.a
    a(f"s_lshr_b32 s{sT0}, s{sIDX}, 1")
    a(f"s_and_b32 s{sT1}, s{sIDX}, 1")
    a(f"v_lshrrev_b32 v52, 1, v{vQ}")
    a(f"v_xor_b32 v53, v{vGq}, v52")
    a(f"v_xor_b32 v54, 4, v53")
    a(f"s_lshl_b32 s{sT2}, s{sT1}, 14")
    a(f"v_lshlrev_b32 v55, 7, v{vQ}")
    a(f"v_add_u32 v55, s{sT2}, v55")
    a(f"v_lshl_add_u32 v40, v53, 4, v55")
    a(f"v_lshl_add_u32 v41, v54, 4, v55")
    a(f"s_mul_i32 s{sT2}, s{sT0}, {48*128}")
    a(f"s_add_u32 s{sT2}, s{sT2}, {QB}")
    a(f"v_lshlrev_b32 v55, 7, v{vQ}")
    a(f"v_add_u32 v55, s{sT2}, v55")
    a(f"v_lshl_add_u32 v42, v53, 4, v55")
    a(f"v_lshl_add_u32 v43, v54, 4, v55")

def a_pair_init(R):
    a = R.a
    a(f"s_lshl_b32 s{sT0}, s{sIDX}, 4"); a(f"s_add_u32 s{sT0}, s{sT0}, {PFL}")
    a(f"v_mov_b32 v55, s{sT0}"); a("v_mov_b32 v56, 0")
    R.lds("ds_write_b32 v55, v56", "pf0")
    R.wait_lg_all()

def a_pair_addr(R):
    a = R.a
    a(f"s_lshl_b32 s{sT0}, s{sIDX}, 4"); a(f"s_add_u32 s{sT0}, s{sT0}, {PFL}")
    a(f"v_mov_b32 v55, s{sT0}"); a(f"s_xor_b32 s{sT0}, s{sT0}, 16"); a(f"v_mov_b32 v56, s{sT0}")

def a_pair_sync(R, j):
    a = R.a
    R.wait_lg_all()
    a(f"v_mov_b32 v57, {j+1}")
    a("ds_write_b32 v55, v57")
    a.label(f"L_ps{j}")
    a("ds_read_b32 v57, v56")
    a("s_waitcnt lgkmcnt(0)")
    a(f"v_readfirstlane_b32 s{sT0}, v57")
    a(f"s_cmp_lt_u32 s{sT0}, {j+1}")
    a(f"s_cbranch_scc1 L_ps{j}")

def kv_dma(R, kind, n, ii):
    a = R.a
    j, w = n >> 1, n & 1
    buf = KVA if w == 0 else KVB
    a(f"s_add_u32 m0, s{sM0}, {buf + 1024*ii}")
    a(f"s_add_u32 s{sT1}, s{sCOL+j}, {131072*w + 4096*ii}")
    if kind == "K":
        R.vmem(f"buffer_load_dwordx4 v{vKdE + (ii & 1)}, {srd(SRD_K)}, s{sT1} offen {cfg.k_flags} lds", f"K{n}")
    else:
        R.vmem(f"buffer_load_dwordx4 v{vVd}, {srd(SRD_V)}, s{sT1} offen {cfg.v_flags} lds", f"V{n}")
def a_issue_KV(R, kind, n):
    R.a.comment(f"---- issue {kind} window {n}")
    for ii in range(8): kv_dma(R, kind, n, ii)

def a0_flag_zero(R):
    a = R.a
    a(f"s_or_b32 s{sT0}, s{sG}, s{sIDX}"); a(f"s_cmp_lg_u32 s{sT0}, 0"); a("s_cbranch_scc1 L_fz_skip")
    a(f"s_mul_i32 s{sT0}, s{sGRP}, {FSTR}"); a(f"s_add_u32 s{sT0}, s{sT0}, {FLG}")
    a(f"v_lshlrev_b32 v58, 2, v{vL}"); a("v_mov_b32 v59, 0")
    a(f"s_mov_b64 s[{sEX}:{sEX+1}], exec"); a("s_mov_b32 exec_hi, 0")
    a(f"buffer_store_dword v59, v58, {srd(SRD_WS)}, s{sT0} offen sc0 sc1")
    a(f"s_mov_b64 exec, s[{sEX}:{sEX+1}]")
    a.label("L_fz_skip")

def a0_flag_mark(R):
    a = R.a
    a(f"s_or_b32 s{sT0}, s{sG}, s{sIDX}"); a(f"s_cmp_lg_u32 s{sT0}, 0"); a("s_cbranch_scc1 L_fm_skip")
    a(f"s_lshl_b32 s{sT0}, s{sGRP}, 2"); a(f"v_mov_b32 v58, s{sT0}"); a("v_mov_b32 v59, 1")
    a(f"s_mov_b64 s[{sEX}:{sEX+1}], exec"); a("s_mov_b64 exec, 1")
    a(f"global_store_dword v58, v59, s[{sDBG}:{sDBG+1}] sc0 sc1")
    a(f"s_mov_b64 exec, s[{sEX}:{sEX+1}]")
    a.label("L_fm_skip")

def a_flag_load(R):
    a = R.a
    a(f"s_lshl_b32 s{sT0}, s{sGRP}, 2"); a(f"v_mov_b32 v58, s{sT0}")
    R.vmem(f"global_load_dword v59, v58, s[{sDBG}:{sDBG+1}] sc0 sc1", "chk")
def a_flag_check(R):
    a = R.a
    R.wait_vm("chk")
    a(f"s_mov_b32 s{sT2}, 0")
    a.label("L_fc_poll")
    a(f"v_readfirstlane_b32 s{sT1}, v59")
    a(f"s_cmp_eq_u32 s{sT1}, 1"); a("s_cbranch_scc1 L_fc_skip")
    a(f"s_add_u32 s{sT2}, s{sT2}, 1"); a(f"s_cmp_ge_u32 s{sT2}, 400000"); a("s_cbranch_scc1 L_fc_skip")
    a("s_sleep 2")
    a(f"global_load_dword v59, v58, s[{sDBG}:{sDBG+1}] sc0 sc1")
    a("s_waitcnt vmcnt(0)")
    a("s_branch L_fc_poll")
    a.label("L_fc_skip")

T1, T2 = WB, WB + 32768
def a_S(R, n, dma=None):
    a = R.a
    j, w = n >> 1, n & 1
    buf = KVA if w == 0 else KVB
    if n >= 6:
        if n == 6:
            for s2 in range(2): a(f"v_add_u32 v{40+s2}, {T1}, v{40+s2}")
        buf = 0 if n == 6 else 32768
    if w == 0:
        for s in range(2):
            for nt in range(3):
                R.lds(f"ds_read_b128 {vr(Qf(s,nt))}, v{42+s} offset:{12288*(j & 1) + 2048*nt}", "q")
    frs = [(i, s) for i in range(8) for s in range(2)]
    NB = 4
    def rd(k):
        i, s = frs[k]
        R.lds(f"ds_read_b128 {vr(KF + 4*(k % NB))}, v{40+s} offset:{buf + 2048*i}", f"kf{k}")
    for k in range(NB-1): rd(k)
    if dma and not cfg.interleave:
        for ii in range(8): kv_dma(R, dma[0], dma[1], ii)
        dma = None
    for k, (i, s) in enumerate(frs):
        if k + NB - 1 < len(frs): rd(k + NB - 1)
        if dma and k < 8: kv_dma(R, dma[0], dma[1], k)
        R.wait_lg(f"kf{k}")
        for nt in range(3):
            d = S_(8*w + i, nt)
            c = "0" if (j == 0 and s == 0) else vr(d)
            a(f"v_mfma_f32_16x16x32_bf16 {vr(d)}, {vr(KF + 4*(k % NB))}, {vr(Qf(s,nt))}, {c}")

M1 = (52, 54, 56)
L1 = (53, 55, 57)
BETA = (0, 2, 4); ALO = (6, 8, 10); ALP = (12, 14, 16)
ONES1, ONES2 = 36, 20
def Pf(w, s, nt): return S_(8*w + 2*s, nt)
def Oa(mt, nt): return S_(2*mt + 1, nt)
def XT(i, nt): return S_(9 + 2*i, nt)

def _rowmax(a, tiles, dst, tmp):
    for nt in range(3):
        m = dst[nt]
        vals = [S_(t, nt) + r for t in tiles for r in range(4)]
        a(f"v_max3_f32 v{m}, v{vals[0]}, v{vals[1]}, v{vals[2]}")
        a(f"v_max3_f32 v{tmp}, v{vals[3]}, v{vals[4]}, v{vals[5]}")
        k = 6
        while k + 3 < len(vals):
            a(f"v_max3_f32 v{m}, v{m}, v{vals[k]}, v{vals[k+1]}")
            a(f"v_max3_f32 v{tmp}, v{tmp}, v{vals[k+2]}, v{vals[k+3]}")
            k += 4
        rest = vals[k:]
        assert len(rest) == 2
        a(f"v_max3_f32 v{m}, v{m}, v{rest[0]}, v{rest[1]}")
        a(f"v_max_f32 v{m}, v{m}, v{tmp}")
    for nt in range(3):
        m = dst[nt]
        a(f"v_mov_b32 v{tmp+nt}, v{m}")
    for nt in range(3):
        a(f"v_permlane32_swap_b32 v{tmp+nt}, v{dst[nt]}")
    for nt in range(3):
        a(f"v_max_f32 v{dst[nt]}, v{tmp+nt}, v{dst[nt]}")
    for nt in range(3):
        a(f"v_mov_b32 v{tmp+nt}, v{dst[nt]}")
    for nt in range(3):
        a(f"v_permlane16_swap_b32 v{tmp+nt}, v{dst[nt]}")
    for nt in range(3):
        a(f"v_max_f32 v{dst[nt]}, v{tmp+nt}, v{dst[nt]}")
        a(f"v_mul_f32 v{dst[nt]}, s{sC}, v{dst[nt]}")

def _exppack(a, t0s, mreg):
    for t0 in t0s:
        for nt in range(3):
            m = mreg[nt]
            b0, b1 = S_(t0, nt), S_(t0+1, nt)
            for b in (b0, b0+2, b1, b1+2):
                a(f"v_pk_fma_f32 {vr(b,2)}, {vr(b,2)}, s[{sC}:{sC+1}], {vr(m,2)} op_sel_hi:[1,1,0] neg_lo:[0,0,1] neg_hi:[0,0,1]")
            src = [b0+r for r in range(4)] + [b1+r for r in range(4)]
            for v in src: a(f"v_exp_f32 v{v}, v{v}")
            a(f"v_cvt_pk_bf16_f32 v{b0}, v{src[0]}, v{src[1]}")
            a(f"v_cvt_pk_bf16_f32 v{b0+1}, v{src[2]}, v{src[3]}")
            a(f"v_cvt_pk_bf16_f32 v{b0+2}, v{src[4]}, v{src[5]}")
            a(f"v_cvt_pk_bf16_f32 v{b0+3}, v{src[6]}, v{src[7]}")

def _rowsum(a, w, ones, acc):
    for r in range(4): a(f"v_mov_b32 v{ones+r}, 0x3f803f80")
    for s in range(4):
        for nt in range(3):
            c = "0" if s == 0 else vr(acc(nt))
            a(f"v_mfma_f32_16x16x32_bf16 {vr(acc(nt))}, {vr(ones)}, {vr(Pf(w,s,nt))}, {c}")

def a_softmax1(R):
    a = R.a
    _rowmax(a, range(0, 8), M1, 24)
    _exppack(a, (0, 2, 4, 6), M1)
    _rowsum(a, 0, ONES1, lambda nt: S_(1, nt))
    for nt in range(3): a(f"v_mov_b32 v{L1[nt]}, v{S_(1,nt)}")

def a_softmax2(R):
    a = R.a
    M2 = (24, 26, 28)
    _rowmax(a, range(8, 16), M2, 30)
    for nt in range(3):
        a(f"v_max_f32 v{M2[nt]}, v{M2[nt]}, v{M1[nt]}")
        a(f"v_sub_f32 v{BETA[nt]}, v{M1[nt]}, v{M2[nt]}")
    for nt in range(3): a(f"v_exp_f32 v{BETA[nt]}, v{BETA[nt]}")
    _exppack(a, (8, 10, 12, 14), M2)
    _rowsum(a, 1, ONES2, lambda nt: S_(13, nt))
    a_vaddr(R)
    for nt in range(3):
        a(f"v_fma_f32 v{M2[nt]+1}, v{BETA[nt]}, v{L1[nt]}, v{S_(13,nt)}")
    for nt in range(3):
        R.lds(f"ds_write_b64 v59, {vr(M2[nt],2)} offset:{128*nt}", "st")
    for nt in range(3):
        a(f"v_mov_b32 v{18+2*nt}, v{M2[nt]}"); a(f"v_mov_b32 v{19+2*nt}, v{M2[nt]+1}")
    R.wait_lg_all()

vXW, vXR, vOW = 52, 53, 54
def a_vaddr(R):
    a = R.a
    a(f"s_and_b32 s{sT1}, s{sIDX}, 1")
    a(f"v_lshrrev_b32 v32, 2, v{vL}")
    a(f"v_lshrrev_b32 v33, 1, v32"); a("v_and_b32 v33, 3, v33")
    a(f"s_lshl_b32 s{sT2}, s{sT1}, 14")
    a(f"v_lshlrev_b32 v34, 7, v32"); a(f"v_add_u32 v34, s{sT2}, v34")
    a(f"v_and_b32 v35, 3, v{vL}"); a(f"v_lshl_add_u32 v34, v35, 3, v34")
    a(f"s_lshl_b32 s{sT2}, s{sT1}, 1")
    a(f"v_xor_b32 v33, s{sT2}, v33")
    for mt in range(4):
        a(f"v_xor_b32 v35, {mt}, v33")
        a(f"v_lshl_add_u32 v{40+mt}, v35, 5, v34")
    a(f"s_mul_i32 s{sT0}, s{sIDX}, 384"); a(f"s_add_u32 s{sT0}, s{sT0}, {STAT}")
    a(f"v_lshlrev_b32 v59, 3, v{vQ}"); a(f"v_add_u32 v59, s{sT0}, v59")
    a(f"s_xor_b32 s{sT1}, s{sIDX}, 1"); a(f"s_mul_i32 s{sT1}, s{sT1}, 384"); a(f"s_add_u32 s{sT1}, s{sT1}, {STAT}")
    a(f"v_lshlrev_b32 v60, 3, v{vQ}"); a(f"v_add_u32 v60, s{sT1}, v60")

def a_alpha(R):
    a = R.a
    M2 = (18, 20, 22)
    for nt in range(3):
        R.lds(f"ds_read_b64 v[{32+2*nt}:{33+2*nt}], v60 offset:{128*nt}", "st")
    a(f"s_mul_i32 s{sT2}, s{sIDX}, 6144"); a(f"s_add_u32 s{sT2}, s{sT2}, {XB}")
    a(f"v_lshlrev_b32 v55, 4, v{vL}"); a(f"v_add_u32 v{vXW}, s{sT2}, v55")
    a(f"s_xor_b32 s{sT2}, s{sIDX}, 1"); a(f"s_mul_i32 s{sT2}, s{sT2}, 6144"); a(f"s_add_u32 s{sT2}, s{sT2}, {XB}")
    a(f"v_add_u32 v{vXR}, s{sT2}, v55")
    a(f"s_and_b32 s{sT1}, s{sIDX}, 1")
    a(f"s_lshr_b32 s{sT0}, s{sIDX}, 1"); a(f"s_mul_i32 s{sT2}, s{sT0}, {48*128}"); a(f"s_add_u32 s{sT2}, s{sT2}, {OB}")
    a(f"v_lshlrev_b32 v{vOW}, 7, v{vQ}"); a(f"v_add_u32 v{vOW}, s{sT2}, v{vOW}")
    a(f"s_lshl_b32 s{sT3}, s{sT1}, 2")
    a(f"v_or_b32 v55, s{sT3}, v{vGq}")
    a(f"v_lshrrev_b32 v56, 1, v{vQ}"); a("v_xor_b32 v55, v55, v56")
    a(f"v_lshl_add_u32 v{vOW}, v55, 4, v{vOW}")
    R.wait_lg_all()
    for nt in range(3):
        mo, lo = 32 + 2*nt, 33 + 2*nt
        m, l = M2[nt], M2[nt] + 1
        a(f"v_max_f32 v38, v{m}, v{mo}")
        a(f"v_sub_f32 v{ALO[nt]}, v{m}, v38"); a(f"v_sub_f32 v{ALP[nt]}, v{mo}, v38")
        a(f"v_exp_f32 v{ALO[nt]}, v{ALO[nt]}"); a(f"v_exp_f32 v{ALP[nt]}, v{ALP[nt]}")
        a(f"v_mul_f32 v38, v{l}, v{ALO[nt]}")
        a(f"v_fma_f32 v38, v{lo}, v{ALP[nt]}, v38")
        a("v_rcp_f32 v38, v38")
        a(f"v_mul_f32 v{ALO[nt]}, v{ALO[nt]}, v38"); a(f"v_mul_f32 v{ALP[nt]}, v{ALP[nt]}, v38")

def a_PV(R, n, dma=None):
    a = R.a
    j, w = n >> 1, n & 1
    buf = KVA if w == 0 else KVB
    frs = [(s, mt) for s in range(4) for mt in range(4)]
    if w == 1: frs = frs[:12] + [(3, 2), (3, 3), (3, 0), (3, 1)]
    NB = 4
    def rd(k):
        s, mt = frs[k]
        b = KF + 4*(k % NB)
        R.lds(f"ds_read_b64_tr_b16 {vr(b,2)}, v{40+mt} offset:{buf + 4096*s}", f"vf{k}")
        R.lds(f"ds_read_b64_tr_b16 {vr(b+2,2)}, v{40+mt} offset:{buf + 4096*s + 2048}", f"vf{k}")
    for k in range(NB-1): rd(k)
    if dma and not cfg.interleave:
        for ii in range(8): kv_dma(R, dma[0], dma[1], ii)
        dma = None
    for k, (s, mt) in enumerate(frs):
        if k + NB - 1 < len(frs): rd(k + NB - 1)
        if dma and k < 8: kv_dma(R, dma[0], dma[1], k)
        R.wait_lg(f"vf{k}")
        for nt in range(3):
            d = Oa(mt, nt)
            c = "0" if (w == 0 and s == 0) else vr(d)
            a(f"v_mfma_f32_16x16x32_bf16 {vr(d)}, {vr(KF + 4*(k % NB))}, {vr(Pf(w,s,nt))}, {c}")
        if w == 1 and k >= 14:
            m2 = k - 12
            for nt in range(3):
                R.lds(f"ds_write_b128 v{vXW}, {vr(Oa(m2,nt))} offset:{((m2-2)*3+nt)*1024}", "xw")

def a_rescale(R):
    a = R.a
    for mt in range(4):
        for nt in range(3):
            if cfg.unpack:
                for r in range(4): a(f"v_mul_f32 v{Oa(mt,nt)+r}, v{BETA[nt]}, v{Oa(mt,nt)+r}")
                continue
            for h2 in (0, 2):
                b = Oa(mt, nt) + h2
                a(f"v_pk_mul_f32 {vr(b,2)}, {vr(b,2)}, {vr(BETA[nt],2)} op_sel_hi:[1,0]")

def a_xwrite(R):
    a = R.a
    for mt in (2, 3):
        for nt in range(3):
            R.lds(f"ds_write_b128 v{vXW}, {vr(Oa(mt,nt))} offset:{((mt-2)*3+nt)*1024}", "xw")

def a_xfinal(R, dma=None):
    a = R.a
    for nt in range(3):
        for i in range(2):
            R.lds(f"ds_read_b128 {vr(XT(i,nt))}, v{vXR} offset:{(i*3+nt)*1024}", f"xr{nt}")
    if dma:
        for ii in range(8): kv_dma(R, dma[0], dma[1], ii)
    for nt in range(3):
        for i in range(2):
            if cfg.unpack:
                for r in range(4): a(f"v_mul_f32 v{Oa(i,nt)+r}, v{ALO[nt]}, v{Oa(i,nt)+r}")
                continue
            for h2 in (0, 2):
                b = Oa(i, nt) + h2
                a(f"v_pk_mul_f32 {vr(b,2)}, {vr(b,2)}, {vr(ALO[nt],2)} op_sel_hi:[1,0]")
    for nt in range(3):
        R.wait_lg(f"xr{nt}")
        for i in range(2):
            if cfg.unpack:
                for r in range(4): a(f"v_fma_f32 v{Oa(i,nt)+r}, v{XT(i,nt)+r}, v{ALP[nt]}, v{Oa(i,nt)+r}")
                continue
            for h2 in (0, 2):
                b, x = Oa(i, nt) + h2, XT(i, nt) + h2
                a(f"v_pk_fma_f32 {vr(b,2)}, {vr(x,2)}, {vr(ALP[nt],2)}, {vr(b,2)} op_sel_hi:[1,0,1]")
        d = XT(0, nt)
        a(f"v_cvt_pk_bf16_f32 v{d}, v{Oa(0,nt)}, v{Oa(0,nt)+1}")
        a(f"v_cvt_pk_bf16_f32 v{d+1}, v{Oa(0,nt)+2}, v{Oa(0,nt)+3}")
        a(f"v_cvt_pk_bf16_f32 v{d+2}, v{Oa(1,nt)}, v{Oa(1,nt)+1}")
        a(f"v_cvt_pk_bf16_f32 v{d+3}, v{Oa(1,nt)+2}, v{Oa(1,nt)+3}")
        R.lds(f"ds_write_b128 v{vOW}, {vr(d)} offset:{2048*nt}", "ow")

PRING = 0
vWqD = 20
vWqR = 21
vQW = 25
PT = 26
vWqR5 = 35
def Xf(s, nt): return 40 + (s*3 + nt)*4
def Qa(mt, nt): return 208 + (mt*3 + nt)*4

def p_lane(a):
    a(f"v_mbcnt_lo_u32_b32 v{PT}, -1, 0"); a(f"v_mbcnt_hi_u32_b32 v{PT}, -1, v{PT}")
    a(f"v_and_b32 v{PT+1}, 15, v{PT}"); a(f"v_lshrrev_b32 v{PT+2}, 4, v{PT}")

def p_setup(R):
    a = R.a
    l, q, g = PT, PT+1, PT+2
    p = sIDX
    p_lane(a)
    a(f"s_mul_i32 s{sXo}, s{p}, 896")
    a(f"s_lshr_b32 s{sT0}, s{p}, 1")
    a(f"v_xor_b32 v{PT+3}, s{sT0}, v{l}"); a(f"v_lshlrev_b32 v{PT+3}, 4, v{PT+3}")
    for k in range(4):
        a(f"v_xor_b32 v{PT+4+k}, {(2*k) << 4}, v{PT+3}")
    a(f"s_mov_b64 s[{sEX}:{sEX+1}], exec")
    a("s_mov_b32 exec_hi, 0x00ffffff")
    for ii in range(12):
        base = (KVB + 3584*ii) if ii < 8 else (QB + 3584*(ii-8))
        a(f"s_add_u32 m0, s{sXo}, {base}")
        a(f"s_add_u32 s{sT1}, s{sXo}, {3584*ii}")
        R.vmem(f"buffer_load_dwordx4 v{PT+4 + (ii % 4)}, {srd(SRD_X)}, s{sT1} offen lds", "x")
    a(f"s_mov_b64 exec, s[{sEX}:{sEX+1}]")

def p_setup2(R):
    a = R.a
    l, q, g = PT, PT+1, PT+2
    p = sIDX
    a(f"s_lshl_b32 s{sWp}, s{p}, 14"); a(f"s_add_u32 s{sWp}, s{sWp}, {WB}")
    wq_dma_pattern(a, vWqD, l, g, PT+3, PT+4)
    a(f"v_lshrrev_b32 v{PT+3}, 2, v{l}")
    a(f"v_lshrrev_b32 v{PT+4}, 1, v{PT+3}"); a(f"v_and_b32 v{PT+4}, 3, v{PT+4}")
    a(f"v_lshlrev_b32 v{PT+5}, 7, v{PT+3}"); a(f"v_add_u32 v{PT+5}, s{sWp}, v{PT+5}")
    a(f"v_and_b32 v{PT+6}, 3, v{l}"); a(f"v_lshl_add_u32 v{PT+5}, v{PT+6}, 3, v{PT+5}")
    for mt in range(4):
        a(f"v_xor_b32 v{PT+6}, {mt}, v{PT+4}")
        a(f"v_lshl_add_u32 v{vWqR+mt}, v{PT+6}, 5, v{PT+5}")
    a(f"s_and_b32 s{sT0}, s{sIDX}, 1"); a(f"s_mul_i32 s{sT0}, s{sT0}, {48*128}")
    a(f"s_lshr_b32 s{sT1}, s{sIDX}, 1"); a(f"s_mul_i32 s{sT1}, s{sT1}, 12288")
    a(f"s_add_u32 s{sT0}, s{sT0}, s{sT1}"); a(f"s_add_u32 s{sT0}, s{sT0}, {QB}")
    a(f"v_lshlrev_b32 v{PT+5}, 7, v{q}"); a(f"v_add_u32 v{PT+5}, s{sT0}, v{PT+5}")
    a(f"v_and_b32 v{PT+6}, 1, v{g}"); a(f"v_lshl_add_u32 v{PT+5}, v{PT+6}, 3, v{PT+5}")
    a(f"v_lshrrev_b32 v{PT+6}, 1, v{g}"); a(f"v_lshrrev_b32 v{PT+3}, 1, v{q}"); a(f"v_xor_b32 v{PT+6}, v{PT+6}, v{PT+3}")
    a(f"v_lshl_add_u32 v{vQW}, v{PT+6}, 4, v{PT+5}")
    a(f"v_lshrrev_b32 v{PT+3}, 1, v{q}")
    a(f"v_lshrrev_b32 v{PT+4}, 1, v{g}"); a(f"v_xor_b32 v{PT+4}, v{PT+4}, v{PT+3}")
    a(f"s_mov_b32 s{sT0}, 896"); a(f"v_mul_lo_u32 v{PT+5}, s{sT0}, v{q}")
    a(f"v_and_b32 v{PT+6}, 1, v{g}"); a(f"v_lshl_add_u32 v{PT+5}, v{PT+6}, 3, v{PT+5}")
    a(f"v_add_u32 v{PT+5}, {KVB}, v{PT+5}")
    for k in range(4):
        a(f"v_xor_b32 v{PT+6}, {2*k}, v{PT+4}")
        a(f"v_lshl_add_u32 v{PT+7+k}, v{PT+6}, 4, v{PT+5}")

def p_xfrags(R):
    a = R.a
    for pas in range(2):
        for s in range(14):
            for nt in ((0, 1) if pas == 0 else (2,)):
                for half in range(2):
                    k = 2*(s & 1) + half
                    off = (14336*nt if pas == 0 else 0) + 128*(s >> 1)
                    R.lds_guard(1)
                    R.lds(f"ds_read_b64 {vr(Xf(s,nt)+2*half,2)}, v{PT+7+k} offset:{off}", "xf")
        if pas == 0:
            R.wait_lg_all()
            for k in range(4): a(f"v_add_u32 v{PT+7+k}, {QB-KVB}, v{PT+7+k}")
    R.wait_lg_all()

def p_qcompute(R, kaps, stream_next, hooks=None):
    a = R.a
    D = cfg.dq; NB = D + 1
    hooks = hooks or {}
    frs = [(kap, mt) for kap in kaps for mt in range(4)]
    def rd(f):
        kap, mt = frs[f]
        if mt == 0: R.wait_vm(f"w{kap}")
        b = PRING + 4*(f % NB)
        area, off = wq_slot(kap)
        ad = (vWqR if area == 'own' else vWqR5) + mt
        R.lds(f"ds_read_b64_tr_b16 {vr(b,2)}, v{ad} offset:{off}", f"f{kap}_{mt}")
        R.lds(f"ds_read_b64_tr_b16 {vr(b+2,2)}, v{ad} offset:{off + 2048}", f"f{kap}_{mt}")
    for f in range(min(D, len(frs))): rd(f)
    for f, (kap, mt) in enumerate(frs):
        J, s = divmod(kap, 14)
        if f + D < len(frs): rd(f + D)
        if stream_next and cfg.j0s5 and kap >= 1 and kap + 4 < 14: wq_dma(R, kap + 4, vWqD, [mt])
        R.wait_lg(f"f{kap}_{mt}")
        if cfg.kst and mt == 0 and kap < 14 and kap % 2 == 0: lstamp(a, 26 + kap // 2)
        for nt in range(3):
            d = Qa(mt, nt)
            c = "0" if s == 0 else vr(d)
            a(f"v_mfma_f32_16x16x32_bf16 {vr(d)}, {vr(PRING + 4*(f % NB))}, {vr(Xf(s,nt))}, {c}")
        if stream_next and not cfg.j0s5 and mt == 3 and kap + NSLOT_Q < 14: wq_dma(R, kap + NSLOT_Q, vWqD)
        if mt == 3 and kap in hooks: hooks[kap]()
    last = kaps[-1]
    if last % 14 == 13:
        if cfg.kst and last == 13: lstamp(a, 33)
        k = 0
        for m2 in range(4):
            a(f"v_xor_b32 v{PT+8}, {32*m2}, v{vQW}")
            for nt in range(3):
                d = Qa(m2, nt)
                t = PT + 2*(k % 4); k += 1
                a(f"v_cvt_pk_bf16_f32 v{t}, v{d}, v{d+1}")
                a(f"v_cvt_pk_bf16_f32 v{t+1}, v{d+2}, v{d+3}")
                R.lds_guard(1)
                R.lds(f"ds_write_b64 v{PT+8}, {vr(t,2)} offset:{2048*nt}", "qw")
        R.wait_lg("qw")

ORING = 0
vWoD = 32
vWoR = 34
vOR = 42
VT = 48
ALT = 208
PUB = [216 + 4*i for i in range(10)] + [20, 24]
def Outa(i, nt): return 64 + (i*3 + nt)*4
def Of(ks, nt): return 160 + (ks*3 + nt)*4

def p_vsetup(R, wide):
    a = R.a
    l, q, g = VT, VT+1, VT+2
    a(f"v_mbcnt_lo_u32_b32 v{l}, -1, 0"); a(f"v_mbcnt_hi_u32_b32 v{l}, -1, v{l}")
    a(f"v_and_b32 v{q}, 15, v{l}"); a(f"v_lshrrev_b32 v{g}, 4, v{l}")
    a(f"s_lshl_b32 s{sT0}, s{sIDX}, 8")
    if wide:
        a(f"v_bfe_u32 v{VT+3}, v{l}, 1, 3"); a(f"v_xor_b32 v{VT+3}, v{VT+3}, v{g}")
        a(f"s_mov_b32 s{sT1}, 896"); a(f"v_mul_lo_u32 v{VT+4}, s{sT1}, v{g}")
        a(f"v_and_b32 v{VT+5}, 1, v{l}"); a(f"v_lshl_add_u32 v{VT+4}, v{VT+5}, 4, v{VT+4}")
        a(f"v_add_u32 v{VT+4}, s{sT0}, v{VT+4}")
        a(f"v_lshl_add_u32 v{vWoD}, v{VT+3}, 5, v{VT+4}")
        a(f"v_xor_b32 v{VT+3}, 4, v{VT+3}"); a(f"v_lshl_add_u32 v{vWoD+1}, v{VT+3}, 5, v{VT+4}")
        a(f"v_lshrrev_b32 v{VT+3}, 2, v{l}"); a(f"v_and_b32 v{VT+4}, 7, v{VT+3}")
        a(f"v_lshlrev_b32 v{VT+5}, 8, v{VT+3}")
    else:
        a(f"v_lshrrev_b32 v{VT+3}, 3, v{l}"); a(f"s_mov_b32 s{sT1}, 896"); a(f"v_mul_lo_u32 v{VT+4}, s{sT1}, v{VT+3}")
        a(f"v_bfe_u32 v{VT+3}, v{l}, 1, 2"); a(f"v_xor_b32 v{VT+3}, v{VT+3}, v{g}")
        a(f"v_lshl_add_u32 v{VT+4}, v{VT+3}, 5, v{VT+4}")
        a(f"v_and_b32 v{VT+5}, 1, v{l}"); a(f"v_lshl_add_u32 v{VT+4}, v{VT+5}, 4, v{VT+4}")
        a(f"v_add_u32 v{vWoD}, s{sT0}, v{VT+4}")
        a(f"v_lshrrev_b32 v{VT+3}, 2, v{l}")
        a(f"v_lshrrev_b32 v{VT+4}, 1, v{VT+3}"); a(f"v_and_b32 v{VT+4}, 3, v{VT+4}")
        a(f"v_lshlrev_b32 v{VT+5}, 7, v{VT+3}")
    a(f"v_and_b32 v{VT+6}, 3, v{l}"); a(f"v_lshl_add_u32 v{VT+5}, v{VT+6}, 3, v{VT+5}")
    a(f"s_lshl_b32 s{sT1}, s{sIDX}, 13")
    for mt in range(8 if wide else 4):
        a(f"v_xor_b32 v{VT+6}, {mt}, v{VT+4}")
        a(f"v_lshl_add_u32 v{VT+7}, v{VT+6}, 5, v{VT+5}")
        a(f"v_add_u32 v{vWoR+mt}, s{sWp}, v{VT+7}")
        a(f"v_add_u32 v{ALT+mt}, s{sT1}, v{VT+7}")
    a(f"v_lshrrev_b32 v{VT+3}, 1, v{q}"); a(f"v_xor_b32 v{VT+3}, v{g}, v{VT+3}")
    a(f"v_lshlrev_b32 v{VT+4}, 7, v{q}"); a(f"v_add_u32 v{VT+4}, {OB}, v{VT+4}")
    a(f"v_lshl_add_u32 v{vOR}, v{VT+3}, 4, v{VT+4}")
    a(f"v_xor_b32 v{VT+3}, 4, v{VT+3}"); a(f"v_lshl_add_u32 v{vOR+1}, v{VT+3}, 4, v{VT+4}")
    a(f"s_lshl_b32 s{sM0}, s{sIDX}, 13")

def wo_slot(kap, wide):
    slot = 8192 if wide else 4096
    special = {14: ('kv', KVA), 15: ('kv', KVB)}
    if kap in special: return special[kap]
    return ('own', (kap % 2)*slot)

def wo_dma(R, kap, wide, ii_list=None):
    a = R.a
    j, ks = divmod(kap, 4); h, s = divmod(ks, 2)
    row0 = 256*h + 32*s
    area, off = wo_slot(kap, wide)
    base = sWp if area == 'own' else sM0
    for ii in (ii_list if ii_list is not None else range(8 if wide else 4)):
        a(f"s_add_u32 m0, s{base}, {off + 1024*ii}")
        rows = 4*ii if wide else 8*ii
        a(f"s_add_u32 s{sT1}, s{sCOL+4+j}, {(row0 + rows)*896}")
        pat = vWoD + ((ii & 1) if wide else 0)
        R.vmem(f"buffer_load_dwordx4 v{pat}, {srd(SRD_WO)}, s{sT1} offen {cfg.w_flags} lds", f"o{kap}")

def p_ofrags(R):
    for k2 in range(4):
        for nt in range(3):
            R.lds_guard(1)
            R.lds(f"ds_read_b128 {vr(Of(k2,nt))}, v{vOR + (k2 & 1)} offset:{6144*(k2 >> 1) + 2048*nt}", f"of{k2}")

vPK0, vPK1, vPV, vPF = 44, 45, 46, 56
def p_kv_setup(R, first=False):
    a = R.a
    l, g = VT, VT+2
    a(f"s_lshl_b32 s{sM0}, s{sIDX}, 13")
    a(f"v_mbcnt_lo_u32_b32 v{l}, -1, 0"); a(f"v_mbcnt_hi_u32_b32 v{l}, -1, v{l}"); a(f"v_lshrrev_b32 v{g}, 4, v{l}")
    a(f"v_lshrrev_b32 v{VT+3}, 3, v{l}"); a(f"v_lshlrev_b32 v{VT+3}, 9, v{VT+3}")
    a(f"s_lshl_b32 s{sT1}, s{sIDX}, 15"); a(f"v_add_u32 v{VT+3}, s{sT1}, v{VT+3}")
    a(f"v_and_b32 v{VT+4}, 7, v{l}"); a(f"v_xor_b32 v{VT+5}, v{VT+4}, v{g}")
    a(f"v_lshl_add_u32 v{vPK0}, v{VT+5}, 4, v{VT+3}")
    a(f"v_xor_b32 v{VT+5}, 4, v{VT+5}"); a(f"v_lshl_add_u32 v{vPK1}, v{VT+5}, 4, v{VT+3}")
    a(f"v_lshrrev_b32 v{VT+5}, 1, v{VT+4}"); a(f"v_xor_b32 v{VT+5}, v{VT+5}, v{g}")
    a(f"v_lshl_add_u32 v{VT+5}, v{VT+5}, 5, v{VT+3}")
    a(f"v_and_b32 v{VT+4}, 1, v{l}"); a(f"v_lshl_add_u32 v{vPV}, v{VT+4}, 4, v{VT+5}")
    a(f"v_lshlrev_b32 v{vPF}, 7, v{l}")

def p_issue_KV(R, kind, n):
    a = R.a
    j, w = n >> 1, n & 1
    buf = KVA if w == 0 else KVB
    if kind == "K" and n >= 6: buf = T1 if n == 6 else T2
    for ii in range(8):
        a(f"s_add_u32 m0, s{sM0}, {buf + 1024*ii}")
        a(f"s_add_u32 s{sT1}, s{sCOL+j}, {131072*w + 4096*ii}")
        if kind == "K": R.vmem(f"buffer_load_dwordx4 v{vPK0 + (ii & 1)}, {srd(SRD_K)}, s{sT1} offen {cfg.k_flags} lds", f"K{n}")
        else: R.vmem(f"buffer_load_dwordx4 v{vPV}, {srd(SRD_V)}, s{sT1} offen {cfg.v_flags} lds", f"V{n}")

def p_tlb_warm(R):
    a = R.a
    if not cfg.tlbw: return
    a(f"s_lshl_b32 s{sT0}, s{sB}, 4"); a(f"s_lshl_b32 s{sT1}, s{sBR}, 2"); a(f"s_add_u32 s{sT0}, s{sT0}, s{sT1}")
    a(f"s_mul_i32 s{sT0}, s{sT0}, {PART}")
    a(f"v_mov_b32 v58, s{sT0}")
    a(f"s_add_u32 s{sT1}, s{sT0}, {11*PART + PART - 4}"); a(f"v_writelane_b32 v58, s{sT1}, 1")
    a(f"s_mul_i32 s{sT1}, s2, {PART}"); a(f"v_writelane_b32 v58, s{sT1}, 2")
    a(f"s_mul_i32 s{sT1}, s{sGRP}, {FSTR}"); a(f"s_add_u32 s{sT1}, s{sT1}, {FLG}"); a(f"v_writelane_b32 v58, s{sT1}, 3")
    a(f"s_mul_i32 s{sT2}, s{sB}, {48*1792}")
    a(f"s_mov_b64 s[{sEX}:{sEX+1}], exec"); a("s_mov_b64 exec, 0xf")
    R.vmem(f"buffer_load_dword v59, v58, {srd(SRD_WS)}, 0 offen sc0 sc1", "tlb")
    a("s_mov_b64 exec, 1"); a("v_mov_b32 v60, 0")
    R.vmem(f"buffer_load_dword v59, v60, {srd(SRD_OUT)}, s{sT2} offen sc0 sc1", "tlb")
    a(f"s_mov_b64 exec, s[{sEX}:{sEX+1}]")

def p_pf_wo(R):
    a = R.a
    if not cfg.pf: return
    a(f"s_mul_i32 s{sT2}, s{sB}, 28672"); a(f"s_lshl_b32 s{sT3}, s{sIDX}, 13"); a(f"s_add_u32 s{sT2}, s{sT2}, s{sT3}")
    R.vmem(f"buffer_load_dword v57, v{vPF}, {srd(SRD_WO)}, s{sT2} offen {cfg.pf_flags}", "pf")

def p_of(R, k2):
    for nt in range(3):
        R.lds_guard(1)
        R.lds(f"ds_read_b128 {vr(Of(k2,nt))}, v{vOR + (k2 & 1)} offset:{6144*(k2 >> 1) + 2048*nt}", f"of{k2}")

def p_ocompute(R, kaps, wide, inter=None, ofr=False):
    a = R.a
    NT = 8 if wide else 4
    D = 4; NB = 5
    rowb = 256 if wide else 128
    inter = inter or {}
    frs = [(kap, mt) for kap in kaps for mt in range(NT)]
    def rd(f):
        kap, mt = frs[f]
        if mt == 0: R.wait_vm(f"o{kap}")
        b = ORING + 4*(f % NB)
        area, off = wo_slot(kap, wide)
        addr = (vWoR if area == 'own' else ALT) + mt
        R.lds_guard(2)
        R.lds(f"ds_read_b64_tr_b16 {vr(b,2)}, v{addr} offset:{off}", f"f{kap}_{mt}")
        R.lds(f"ds_read_b64_tr_b16 {vr(b+2,2)}, v{addr} offset:{off + 16*rowb}", f"f{kap}_{mt}")
    if ofr: p_of(R, 0)
    for f in range(D): rd(f)
    for f, (kap, mt) in enumerate(frs):
        j, ks = divmod(kap, 4)
        if f + D < len(frs): rd(f + D)
        if ofr and f < 3: p_of(R, f + 1)
        for (k2, ii) in inter.get(f, []): wo_dma(R, k2, wide, [ii])
        R.wait_lg(f"f{kap}_{mt}")
        if mt == 0: R.wait_lg(f"of{ks}")
        for nt in range(3):
            d = Outa(mt, nt)
            c = "0" if kap == 0 else vr(d)
            a(f"v_mfma_f32_16x16x32_bf16 {vr(d)}, {vr(ORING + 4*(f % NB))}, {vr(Of(ks,nt))}, {c}")
        if cfg.tst and mt == NT - 1 and kap >= 10: lstamp(a, 26 + kap - 10)

def p_oproj_phase(R, bar, wide):
    a = R.a
    NT = 8 if wide else 4
    nbar = 0
    def b1():
        nonlocal nbar
        bar(); nbar += 1
    b1()
    if cfg.wo_first_after >= 6: wo_dma(R, 0, wide); wo_dma(R, 1, wide)
    b1()
    if cfg.pvprio: a(f"s_setprio {cfg.pvprio}")
    for j in range(3):
        a.comment(f"---- O projection chunk {j}")
        p_ocompute(R, [4*j, 4*j+1], wide, ofr=True)
        wo_dma(R, 4*j+2, wide); wo_dma(R, 4*j+3, wide)
        b1()
        if j < 2:
            p_ocompute(R, [4*j+2, 4*j+3], wide)
            wo_dma(R, 4*j+4, wide); wo_dma(R, 4*j+5, wide)
        else:
            if cfg.p7prio: a(f"s_setprio {cfg.p7prio}")
            if cfg.d14first:
                wo_dma(R, 14, wide); inter = {}
            else:
                inter = {f: [(14, f)] for f in range(NT)}
            inter.update({NT + f: [(12, f)] for f in range(NT)})
            p_ocompute(R, [10, 11], wide, inter=inter)
            wo_dma(R, 13, wide)
        b1()
    p_ocompute(R, [12, 13], wide, inter={f: [(15, f)] for f in range(NT)}, ofr=True)
    p_ocompute_last(R, wide)
    return nbar

def p_ocompute_last(R, wide):
    a = R.a
    NT = 8 if wide else 4
    D = 4; NB = 5
    rowb = 256 if wide else 128
    frs = [(kap, 2*ip + t) for ip in range(NT//2) for kap in (14, 15) for t in range(2)]
    def rd(f):
        kap, mt = frs[f]
        if f == 0: R.wait_vm("o14"); R.wait_vm("o15")
        b = ORING + 4*(f % NB)
        area, off = wo_slot(kap, wide)
        addr = (vWoR if area == 'own' else ALT) + mt
        R.lds_guard(2)
        R.lds(f"ds_read_b64_tr_b16 {vr(b,2)}, v{addr} offset:{off}", f"g{f}")
        R.lds(f"ds_read_b64_tr_b16 {vr(b+2,2)}, v{addr} offset:{off + 16*rowb}", f"g{f}")
    a(f"v_mbcnt_lo_u32_b32 v{VT}, -1, 0"); a(f"v_mbcnt_hi_u32_b32 v{VT}, -1, v{VT}"); a(f"v_lshlrev_b32 v{VT}, 4, v{VT}")
    a(f"s_mul_i32 s{sT2}, s2, {PART}"); a(f"s_mul_i32 s{sT3}, s{sIDX}, {12*1024}"); a(f"s_add_u32 s{sT2}, s{sT2}, s{sT3}")
    npub = 0
    def pub_pair(ip):
        nonlocal npub
        for nt in range(3):
            t = PUB[npub]; npub += 1
            d0, d1 = Outa(2*ip, nt), Outa(2*ip+1, nt)
            a(f"v_cvt_pk_bf16_f32 v{t}, v{d0}, v{d0+1}"); a(f"v_cvt_pk_bf16_f32 v{t+1}, v{d0+2}, v{d0+3}")
            a(f"v_cvt_pk_bf16_f32 v{t+2}, v{d1}, v{d1+1}"); a(f"v_cvt_pk_bf16_f32 v{t+3}, v{d1+2}, v{d1+3}")
            a(f"s_add_u32 s{sT1}, s{sT2}, {1024*(ip*3 + nt)}")
            R.vmem(f"buffer_store_dwordx4 {vr(t)}, v{VT}, {srd(SRD_WS)}, s{sT1} offen sc0 sc1", "pub")
    for f in range(D): rd(f)
    for f, (kap, mt) in enumerate(frs):
        ks = kap % 4
        if f + D < len(frs): rd(f + D)
        R.wait_lg(f"g{f}")
        for nt in range(3):
            d = Outa(mt, nt)
            a(f"v_mfma_f32_16x16x32_bf16 {vr(d)}, {vr(ORING + 4*(f % NB))}, {vr(Of(ks,nt))}, {vr(d)}")
        if f % 4 == 1 and f >= 5: pub_pair(f//4 - 1)
    pub_pair(NT//2 - 1)

def p_flag(R):
    a = R.a
    if cfg.tst: lstamp(a, 32)
    R.wait_vm_all()
    if cfg.tst: lstamp(a, 33)
    a(f"s_mul_i32 s{sT0}, s{sGRP}, {FSTR}"); a(f"s_add_u32 s{sT0}, s{sT0}, {FLG}")
    a(f"s_lshl_b32 s{sT1}, s{sG}, 2"); a(f"s_add_u32 s{sT1}, s{sT1}, s{sIDX}"); a(f"s_lshl_b32 s{sT1}, s{sT1}, 2")
    a(f"v_mov_b32 v2, s{sT1}"); a("v_mov_b32 v1, 1")
    a(f"s_mov_b64 s[{sEX}:{sEX+1}], exec")
    a("s_mov_b64 exec, 1")
    a(f"buffer_store_dword v1, v2, {srd(SRD_WS)}, s{sT0} offen sc0 sc1")
    a(f"s_mov_b64 exec, s[{sEX}:{sEX+1}]")

def emit_reduce(a):
    a.label("L_tail")
    if cfg.stamps: stamp(a, 50)
    a(f"s_min_u32 s{sT0}, s{sG}, 2"); a(f"s_mul_i32 s{sT1}, s{sG}, 5"); a(f"s_add_u32 s{sT0}, s{sT0}, s{sT1}")
    a(f"s_cmp_lt_u32 s{sG}, 2"); a(f"s_cselect_b32 s{sT1}, 6, 5")
    a(f"s_mov_b32 s80, s{sT1}")
    a(f"s_add_u32 s{sT0}, s{sT0}, s{sWAVE}")
    a("v_mbcnt_lo_u32_b32 v3, -1, 0"); a("v_mbcnt_hi_u32_b32 v3, -1, v3")
    a("v_lshlrev_b32 v6, 4, v3"); a("v_lshlrev_b32 v0, 2, v3")
    a(f"s_mul_i32 s{sT2}, s{sT0}, 171"); a(f"s_lshr_b32 s{sT2}, s{sT2}, 9")
    a(f"s_mul_i32 s{sT3}, s{sT2}, 3"); a(f"s_sub_u32 s{sT3}, s{sT0}, s{sT3}")
    a(f"s_lshl_b32 s{sT3}, s{sT3}, 4"); a(f"s_mul_i32 s{sT1}, s{sB}, 48"); a(f"s_add_u32 s{sT3}, s{sT3}, s{sT1}")
    a(f"s_mul_i32 s{sT3}, s{sT3}, 1792"); a(f"s_lshl_b32 s{sT2}, s{sT2}, 6"); a(f"s_add_u32 s{sT3}, s{sT3}, s{sT2}")
    a(f"s_mul_i32 s{sT1}, s{sBR}, 896"); a(f"s_add_u32 s78, s{sT3}, s{sT1}") if not cfg.lstamps else None
    if cfg.lstamps: a(f"s_mul_i32 s{sT1}, s{sBR}, 896"); a(f"s_add_u32 s100, s{sT3}, s{sT1}")
    sOUT = 100 if cfg.lstamps else 78
    a("v_and_b32 v7, 15, v3"); a(f"s_mov_b32 s{sT1}, 1792"); a(f"v_mul_lo_u32 v7, s{sT1}, v7")
    a("v_bfe_u32 v8, v3, 4, 1"); a("v_lshl_add_u32 v7, v8, 5, v7")
    a("v_lshrrev_b32 v8, 5, v3"); a("v_lshl_add_u32 v7, v8, 4, v7")
    a(f"s_lshl_b32 s{sT1}, s{sB}, 4"); a(f"s_lshl_b32 s{sT2}, s{sBR}, 2"); a(f"s_add_u32 s{sT1}, s{sT1}, s{sT2}")
    a(f"s_mul_i32 s{sT1}, s{sT1}, {PART}"); a(f"s_lshl_b32 s{sT2}, s{sT0}, 10"); a(f"s_add_u32 s{sT3}, s{sT1}, s{sT2}")
    a(f"s_cmp_lg_u32 s{sWAVE}, 0"); a("s_cbranch_scc1 L_nopoll")
    a(f"s_mul_i32 s{sT0}, s{sGRP}, {FSTR}"); a(f"s_add_u32 s{sT0}, s{sT0}, {FLG}")
    a(f"s_mov_b64 s[{sEX}:{sEX+1}], exec")
    a("s_mov_b32 exec_hi, 0")
    a(f"s_mov_b32 s{sT2}, 0")
    a.label("L_poll")
    a(f"buffer_load_dword v4, v0, {srd(SRD_WS)}, s{sT0} offen sc0 sc1")
    a("s_waitcnt vmcnt(0)")
    a("v_cmp_eq_u32 vcc, 1, v4")
    a("s_cmp_eq_u32 vcc_lo, -1")
    a("s_cbranch_scc1 L_poll_done")
    a(f"s_add_u32 s{sT2}, s{sT2}, 1")
    a(f"s_cmp_ge_u32 s{sT2}, 400000")
    a("s_cbranch_scc1 L_poll_done")
    if cfg.sleep: a(f"s_sleep {cfg.sleep}")
    a("s_branch L_poll")
    a.label("L_poll_done")
    a(f"s_mov_b64 exec, s[{sEX}:{sEX+1}]")
    a.label("L_nopoll")
    a("s_barrier")
    a(f"s_cmp_ge_u32 s{sWAVE}, s80")
    a("s_cbranch_scc1 " + ("L_nogather" if cfg.stamps else ("L_mini" if cfg.mini else "L_end")))
    if cfg.stamps: stamp(a, 52)
    for k in range(8):
        gb, gp = k >> 2, k & 3
        a(f"s_add_u32 s{sT2}, s{sT3}, {(gb*8 + gp)*PART}")
        a(f"buffer_load_dwordx4 {vr(64+4*k)}, v6, {srd(SRD_WS)}, s{sT2} offen sc0 sc1")
    acc = 16
    for k in range(8):
        a(f"s_waitcnt vmcnt({7-k})")
        for r in range(4):
            src = 64 + 4*k + r
            if k == 0:
                a(f"v_lshlrev_b32 v{acc+2*r}, 16, v{src}"); a(f"v_and_b32 v{acc+2*r+1}, 0xffff0000, v{src}")
            else:
                t = 8 + 2*(r & 1) + 2
                a(f"v_lshlrev_b32 v{t}, 16, v{src}"); a(f"v_and_b32 v{t+1}, 0xffff0000, v{src}")
                a(f"v_pk_add_f32 {vr(acc+2*r,2)}, {vr(acc+2*r,2)}, {vr(t,2)}")
    for r in range(4):
        a(f"v_cvt_pk_bf16_f32 v{12+r}, v{acc+2*r}, v{acc+2*r+1}")
    a("v_permlane16_swap_b32 v12, v14")
    a("v_permlane16_swap_b32 v13, v15")
    a(f"buffer_store_dwordx4 v[12:15], v7, {srd(SRD_OUT)}, s{sOUT} offen")
    if cfg.stamps:
        a("s_waitcnt vmcnt(0)")
        a.label("L_nogather")
        stamp(a, 53)
        a("s_memtime s[74:75]"); a("s_waitcnt lgkmcnt(0)"); a("v_writelane_b32 v61, s74, 61")
        stamp_store(a)
    if cfg.mini:
        a.label("L_mini")
        a("s_memrealtime s[72:73]"); a("s_waitcnt vmcnt(0) lgkmcnt(0)")
        a("s_memrealtime s[72:73]"); a("s_waitcnt lgkmcnt(0)")
        a("v_mov_b32 v61, 0"); a("v_writelane_b32 v61, s90, 62"); a("v_writelane_b32 v61, s72, 53")
        stamp_store(a)
    a.label("L_end")
    a("s_endpgm")

def build():
    a = Asm()
    if cfg.mini:
        a("s_memrealtime s[90:91]")
    if cfg.stamps:
        a("s_memrealtime s[72:73]"); a("s_memtime s[74:75]"); a("s_waitcnt lgkmcnt(0)")
        a("v_writelane_b32 v61, s72, 62"); a("v_writelane_b32 v61, s74, 60")
    emit_prologue(a)
    cnt = {"n": 0}
    def bar():
        a("s_barrier")
        if cfg.stamps: stamp(a, cnt["n"])
        cnt["n"] += 1
    A = Role(a)
    if cfg.prioA: a(f"s_setprio {cfg.prioA}")
    a_setup(A)
    if cfg.pf_first: a_pf(A, "wq")
    bar()
    if not cfg.pf_first: a_pf(A, "wq")
    a_setup2(A)
    bar()
    a0_flag_zero(A)
    for kap in range(4): wq_dma(A, kap, vWqA)
    a_issue_KV(A, "K", 0)
    a_setup3(A)
    a_pair_init(A)
    A.wait_vm("w3")
    a0_flag_mark(A)
    bar()
    bar()
    a_issue_KV(A, "K", 1)
    A.wait_vm("K0")
    bar()
    a_S(A, 0)
    A.wait_vm("K1")
    bar()
    a_S(A, 1, dma=("K", 2)); A.wait_vm("K2"); bar()
    a_flag_load(A)
    a_S(A, 2, dma=("K", 3)); A.wait_vm("K3"); a_flag_check(A); bar()
    a_S(A, 3, dma=("K", 4)); A.wait_vm("K4"); bar()
    a_issue_KV(A, "K", 5)
    bar()
    a_S(A, 4)
    A.wait_vm("K5")
    bar()
    a_S(A, 5)
    bar()
    a_S(A, 6)
    if cfg.split_sm: a_softmax1(A)
    bar()
    a_S(A, 7)
    if not cfg.split_sm: a_softmax1(A)
    a_softmax2(A)
    bar()
    for n in range(8):
        dma = ("V", n+1) if 1 <= n <= 6 else None
        if cfg.prio7 and n == cfg.prio7from: a(f"s_setprio {cfg.prio7}")
        a_PV(A, n, dma)
        if n == 0:
            a_alpha(A); a_pair_addr(A)
        if n % 2 == 0:
            a_rescale(A)
        else:
            a_pair_sync(A, n >> 1)
            a_xfinal(A)
        if 1 <= n < 7: A.wait_vm(f"V{n+1}")
        A.wait_lg_all()
        bar()
    nA = cnt["n"]
    A.wait_vm_all()
    a("s_branch L_tail")
    a.label("L_P")
    cnt["n"] = 0
    P = Role(a)
    stamp_move(a, 39)
    if cfg.stamps: stamp(a, 55)
    if cfg.prioP: a(f"s_setprio {cfg.prioP}")
    P.vm += ["x"]*12
    if cfg.stamps: stamp(a, 56)
    bar()
    p_setup2(P)
    P.wait_vm("x"); bar()
    p_xfrags(P)
    if cfg.j0s5:
        a(f"s_lshl_b32 s{sWq5}, s{sIDX}, 12"); a(f"s_add_u32 s{sWq5}, s{sWq5}, {QB}")
        a(f"s_sub_u32 s{sT0}, s{sWq5}, s{sWp}")
        for mt in range(4): a(f"v_add_u32 v{vWqR5+mt}, s{sT0}, v{vWqR+mt}")
    bar()
    if cfg.j0s5: wq_dma(P, 4, vWqD)
    p_qcompute(P, list(range(14)), True, hooks={cfg.k1_after: bar})
    bar()
    if cfg.pkprio: a(f"s_setprio {cfg.pkprio}")
    for kap in (14, 15, 16, 17): wq_dma(P, kap, vWqD)
    bar()
    for kaps, nxt in (([14,15], [18,19]), ([16,17,18,19], [20,21,22,23]), ([20,21,22,23], [24,25,26,27]), ([24,25,26,27], [])):
        p_qcompute(P, kaps, False)
        for kap in nxt: wq_dma(P, kap, vWqD)
        bar()
    if cfg.pkprio: a("s_setprio 0")
    a(f"s_cmp_eq_u32 s{sIDX}, 3")
    a("s_cbranch_scc1 L_P3")
    base = cnt["n"]
    for wide in (True, False):
        if not wide:
            a.label("L_P3"); cnt["n"] = base
        Pw = Role(a)
        STREG[0] = 39
        stamp_move(a, 47)
        p_kv_setup(Pw, first=True)
        p_issue_KV(Pw, "K", 6)
        p_vsetup(Pw, wide)
        bar()
        p_issue_KV(Pw, "K", 7); Pw.wait_vm("K6"); bar()
        p_issue_KV(Pw, "V", 0); Pw.wait_vm("K7"); bar()
        p_issue_KV(Pw, "V", 1); p_pf_wo(Pw); p_tlb_warm(Pw); Pw.wait_vm("V0"); bar()
        Pw.wait_vm("V1")
        nb = p_oproj_phase(Pw, bar, wide)
        assert nb == 8, nb
        if cfg.stamps: stamp(a, 59)
        p_flag(Pw)
        if cfg.stamps: stamp(a, 58)
        assert cnt["n"] == nA, (cnt["n"], nA)
        stamp_move(a, 61)
        if wide: a("s_branch L_tail")
    emit_reduce(a)
    a.finalize()
    return a

HEADER = open("cdna_kernels/" + NAME + ".s.ref").read().split("; Override launch")[0]
def full_text(a):
    s = HEADER
    s += f"; @launch grid=(256,1,1) block=(512,1,1) lds={LDS_BYTES}\n"
    s += f'.amdgcn_target "amdgcn-amd-amdhsa--gfx950"\n.text\n.globl {NAME}_kernel\n.p2align 8\n.type {NAME}_kernel,@function\n{NAME}_kernel:\n'
    body = a.text()
    if cfg.icpf:
        body = body.replace("  s_endpgm\n", "  s_endpgm\nL_code_end:\n") if body.count("s_endpgm") == 1 else body + "L_code_end:\n"
        body = body.replace("CODE_BYTES", f"L_code_end-{NAME}_kernel")
    s += body
    s += f""".section .rodata,"a"
.p2align 6
.amdhsa_kernel {NAME}_kernel
  .amdhsa_next_free_vgpr 256
  .amdhsa_next_free_sgpr 102
  .amdhsa_accum_offset 256
  .amdhsa_group_segment_fixed_size 0
  .amdhsa_kernarg_size 104
  .amdhsa_user_sgpr_count 2
  .amdhsa_user_sgpr_kernarg_segment_ptr 1
  .amdhsa_system_sgpr_workgroup_id_x 1
.end_amdhsa_kernel
"""
    return s

if __name__ == "__main__":
    out = sys.argv[1] if len(sys.argv) > 1 else "cdna_kernels/" + NAME + ".s"
    for kv in sys.argv[2:]:
        k, v = kv.split("=", 1)
        cur = getattr(cfg, k)
        if isinstance(cur, bool): v = v.lower() in ("1", "true")
        elif isinstance(cur, int): v = int(v)
        setattr(cfg, k, v)
    a = build()
    open(out, "w").write(full_text(a))
    print("wrote", out, "instrs:", sum(1 for i in a.ins if i.kind not in ('none','label')), "nops inserted:", a.nops_inserted)
```

```python
import sys, math, struct
from asmlib import Asm

NAME = "concat_heads__gqa_block_cached__gqa_block_cached__near_ridge"

class Cfg:
    k_flags = "nt"
    v_flags = "nt"
    w_flags = ""
    pf = True
    pf_flags = ""
    stamps = False
    lstamps = False
    mini = False
    prioA = 0
    prioP = 0
    dq = 4
    pf_wo_at = 8
    k1_after = 9
    split_sm = True
    sleep = 0
    interleave = False
    pf_first = False
    wo_first_after = 7
    tst = False
    pvprio = 0
    pkprio = 0
    p7prio = 0
    d14first = False
    tlbw = True
    icpf = True
    prio7 = 0
    prio7from = 7
    pkv = True
    unpack = True
    j0s5 = True
    rot = 1
    kst = False
cfg = Cfg()

KVA, KVB = 0, 32768
WB = 65536
QB = 131072
OB = 122880
XB = 135168
STAT = 159744
PFL = 161280
LDS_BYTES = 163840
PART = 43008
FLG = 16 << 20
FSTR = 8448
sWAVE, sIDX, sG, sB, sBR = 3, 4, 5, 6, 7
SRD_K, SRD_V, SRD_WQ, SRD_WO, SRD_X, SRD_OUT, SRD_WS = 8, 12, 16, 20, 24, 28, 32
sDBG = 58
sM0, sWp = 62, 63
sC = 64
sT0, sT1, sT2, sT3 = 66, 67, 68, 69
sEX = 70
sGRP, sXo = 76, 77
sCOL = 36
sJ = 44
def srd(b): return f"s[{b}:{b+3}]"
def vr(b, n=4): return f"v[{b}:{b+n-1}]"
def f32bits(x): return struct.unpack('<I', struct.pack('<f', x))[0]
vL, vQ, vGq = 44, 46, 47

class Role:
    def __init__(self, a): self.a = a; self.vm = []; self.lg = []
    def vmem(self, text, tag): self.a(text); self.vm.append(tag)
    def lds(self, text, tag): self.a(text); self.lg.append(tag)
    def wait_vm(self, tag):
        idx = [i for i, t in enumerate(self.vm) if t == tag]
        if not idx: return
        n = len(self.vm) - 1 - idx[-1]
        assert n <= 63
        self.a(f"s_waitcnt vmcnt({n})"); self.vm = self.vm[idx[-1]+1:]
    def wait_lg(self, tag):
        idx = [i for i, t in enumerate(self.lg) if t == tag]
        if not idx: return
        n = len(self.lg) - 1 - idx[-1]
        assert n <= 15, n
        self.a(f"s_waitcnt lgkmcnt({n})"); self.lg = self.lg[idx[-1]+1:]
    def wait_vm_all(self): self.a("s_waitcnt vmcnt(0)"); self.vm = []
    def wait_lg_all(self): self.a("s_waitcnt lgkmcnt(0)"); self.lg = []
    def lds_guard(self, n_new):
        if len(self.lg) + n_new > 15:
            keep = 15 - n_new
            self.a(f"s_waitcnt lgkmcnt({keep})"); self.lg = self.lg[len(self.lg)-keep:] if keep else []

STREG = [61]
PEND = []
def stamp(a, idx):
    a("s_memrealtime s[72:73]")
    a("s_waitcnt lgkmcnt(0)")
    a(f"v_writelane_b32 v{STREG[0]}, s72, {idx}")
    for (sp, i2) in PEND: a(f"v_writelane_b32 v{STREG[0]}, s{sp}, {i2}")
    PEND.clear()
def lstamp(a, idx):
    if not cfg.lstamps: return
    sp = 78 + 2*len(PEND)
    assert sp <= 98
    a(f"s_memrealtime s[{sp}:{sp+1}]")
    PEND.append((sp, idx))
def stamp_move(a, new):
    if cfg.stamps: a(f"v_mov_b32 v{new}, v{STREG[0]}")
    STREG[0] = new
def stamp_store(a):
    a(f"s_lshl_b32 s{sT0}, s2, 3"); a(f"s_add_u32 s{sT0}, s{sT0}, s{sWAVE}"); a(f"s_lshl_b32 s{sT0}, s{sT0}, 8")
    a("v_mbcnt_lo_u32_b32 v60, -1, 0"); a("v_mbcnt_hi_u32_b32 v60, -1, v60")
    a(f"v_lshlrev_b32 v60, 2, v60"); a(f"v_add_u32 v60, s{sT0}, v60")
    a("s_add_u32 s74, s60, 0x2000000"); a("s_addc_u32 s75, s61, 0")
    a("global_store_dword v60, v61, s[74:75]")
    a("s_waitcnt vmcnt(0)")

def emit_prologue(a):
    a("s_cmp_ge_u32 s2, 256")
    a("s_cbranch_scc1 L_end")
    a("s_load_dwordx16 s[36:51], s[0:1], 0")
    a("s_load_dwordx4 s[52:55], s[0:1], 64")
    a("s_load_dwordx4 s[56:59], s[0:1], 80")
    a("s_load_dwordx2 s[60:61], s[0:1], 96")
    a("v_and_b32 v44, 63, v0")
    a("v_lshrrev_b32 v45, 6, v0")
    a("v_and_b32 v46, 15, v44")
    a("v_lshrrev_b32 v47, 4, v44")
    a(f"v_readfirstlane_b32 s{sWAVE}, v45")
    a(f"s_bfe_u32 s{sBR}, s2, 0x10002")
    a(f"s_and_b32 s{sG}, s2, 3"); a(f"s_lshl_b32 s{sG}, s{sG}, 1")
    a(f"s_bfe_u32 s{sT0}, s2, 0x10003"); a(f"s_or_b32 s{sG}, s{sG}, s{sT0}")
    a(f"s_lshr_b32 s{sB}, s2, 4")
    a(f"s_and_b32 s{sIDX}, s{sWAVE}, 3")
    a(f"s_lshl_b32 s{sGRP}, s{sBR}, 4"); a(f"s_add_u32 s{sGRP}, s{sGRP}, s{sB}")
    a(f"s_mov_b32 s{sC}, 0x{f32bits(math.log2(math.e)/16.0):08x}"); a(f"s_mov_b32 s{sC+1}, s{sC}")
    a_code_prefetch(Role(a))
    p_setup_pre(a)
    a("s_waitcnt lgkmcnt(0)")
    if cfg.stamps: stamp(a, 54)
    a(f"s_cmp_eq_u32 s{sBR}, 0")
    a("s_cselect_b64 s[36:37], s[36:37], s[46:47]")
    def mk(srdb, ptr, off_s, size):
        if off_s is None:
            a(f"s_mov_b32 s{srdb}, s{ptr}"); a(f"s_and_b32 s{srdb+1}, s{ptr+1}, 0xffff")
        else:
            a(f"s_add_u32 s{srdb}, s{ptr}, s{off_s}")
            a(f"s_addc_u32 s{srdb+1}, s{ptr+1}, 0")
            a(f"s_and_b32 s{srdb+1}, s{srdb+1}, 0xffff")
        if isinstance(size, int): a(f"s_mov_b32 s{srdb+2}, {size}")
        else: a(size)
        a(f"s_mov_b32 s{srdb+3}, 0x20000")
    a(f"s_mul_i32 s{sT1}, s{sB}, 43008")
    mk(SRD_X, 36, sT1, 43008)
    a(f"s_cmp_lt_u32 s{sWAVE}, 4"); a("s_cbranch_scc1 L_nox")
    PX = Role(a); p_setup(PX)
    a.label("L_nox")
    a(f"s_cmp_eq_u32 s{sBR}, 0")
    for i in range(1, 5):
        a(f"s_cselect_b64 s[{36+2*i}:{37+2*i}], s[{36+2*i}:{37+2*i}], s[{46+2*i}:{47+2*i}]")
    a(f"s_lshl_b32 s{sT1}, s{sG}, 10")
    mk(SRD_WQ, 42, sT1, f"s_sub_u32 s{SRD_WQ+2}, {448*8192}, s{sT1}")
    a(f"s_lshl_b32 s{sT0}, s{sB}, 3"); a(f"s_add_u32 s{sT0}, s{sT0}, s{sG}"); a(f"s_lshl_b32 s{sT0}, s{sT0}, 18")
    mk(SRD_K, 38, sT0, 262144)
    mk(SRD_V, 40, sT0, 262144)
    a(f"s_mul_i32 s{sT1}, s{sG}, 458752")
    mk(SRD_WO, 44, sT1, 458752)
    mk(SRD_OUT, 56, None, 16*48*896*2)
    mk(SRD_WS, 60, None, FLG + 32*FSTR)
    if cfg.rot == 0:
        for j in range(4):
            a(f"s_movk_i32 s{sCOL+j}, {128*j}"); a(f"s_mov_b32 s{sCOL+4+j}, {64*j*896}")
        a(f"s_lshr_b32 s{sT2}, s{sIDX}, 1"); a(f"s_lshl_b32 s{sJ}, s{sT2}, 7"); a(f"s_add_u32 s{sJ+1}, s{sJ}, 256")
    else:
        if cfg.rot == 0: a(f"s_mov_b32 s{sT0}, 0")
        elif cfg.rot == 1: a(f"s_and_b32 s{sT0}, s{sB}, 3")
        elif cfg.rot == 2: a(f"s_add_u32 s{sT0}, s{sB}, s{sG}"); a(f"s_and_b32 s{sT0}, s{sT0}, 3")
        elif cfg.rot == 3: a(f"s_and_b32 s{sT0}, s{sB}, 1"); a(f"s_lshl_b32 s{sT0}, s{sT0}, 1")
        for j in range(4):
            a(f"s_add_u32 s{sT1}, s{sT0}, {j}"); a(f"s_and_b32 s{sT1}, s{sT1}, 3")
            a(f"s_lshl_b32 s{sCOL+j}, s{sT1}, 7"); a(f"s_mul_i32 s{sCOL+4+j}, s{sT1}, {64*896}")
        a(f"s_lshr_b32 s{sT2}, s{sIDX}, 1")
        for J in range(2):
            a(f"s_add_u32 s{sT1}, s{sT0}, s{sT2}"); a(f"s_add_u32 s{sT1}, s{sT1}, {2*J}"); a(f"s_and_b32 s{sT1}, s{sT1}, 3")
            a(f"s_lshl_b32 s{sJ+J}, s{sT1}, 7")
    a(f"s_cmp_ge_u32 s{sWAVE}, 4")
    a("s_cbranch_scc1 L_P")

def wq_dma_pattern(a, dst, l, g, t0, t1):
    a(f"v_lshrrev_b32 v{t0}, 3, v{l}"); a(f"v_lshlrev_b32 v{t0}, 13, v{t0}")
    a(f"v_bfe_u32 v{t1}, v{l}, 1, 2"); a(f"v_xor_b32 v{t1}, v{t1}, v{g}")
    a(f"v_lshl_add_u32 v{t0}, v{t1}, 5, v{t0}")
    a(f"v_and_b32 v{t1}, 1, v{l}"); a(f"v_lshl_add_u32 v{t0}, v{t1}, 4, v{t0}")
    a(f"s_and_b32 s{sT0}, s{sIDX}, 1"); a(f"s_lshl_b32 s{sT0}, s{sT0}, 9")
    a(f"v_add_u32 v{dst}, s{sT0}, v{t0}")

NSLOT_Q = 4
def wq_slot(kap):
    if cfg.j0s5 and kap < 14:
        sl = kap % 5
        return ('q', 0) if sl == 4 else ('own', sl*4096)
    return ('own', (kap % NSLOT_Q)*4096)
sWq5 = 47
def wq_dma(R, kap, vpat, ii_list=range(4)):
    a = R.a
    J, s = divmod(kap, 14)
    area, off = wq_slot(kap)
    for ii in ii_list:
        a(f"s_add_u32 m0, s{sWp if area == 'own' else sWq5}, {off + 1024*ii}")
        a(f"s_add_u32 s{sT1}, s{sJ+J}, {(32*s + 8*ii)*8192}")
        R.vmem(f"buffer_load_dwordx4 v{vpat}, {srd(SRD_WQ)}, s{sT1} offen {cfg.w_flags} lds", f"w{kap}")

def S_(t, nt): return 64 + (t*3 + nt)*4
def Qf(s, nt): return (s*3 + nt)*4
KF = 24
vKdE, vKdO, vVd, vWqA = 48, 49, 50, 51

def a_code_prefetch(R):
    a = R.a
    if not cfg.icpf: return
    a(f"s_cmp_lg_u32 s{sWAVE}, 3"); a("s_cbranch_scc1 L_icpf_skip")
    a("s_getpc_b64 s[72:73]")
    a.label("L_icpf_pc")
    a(f"s_sub_u32 s72, s72, L_icpf_pc-{NAME}_kernel"); a("s_subb_u32 s73, s73, 0")
    a(f"s_lshr_b32 s{sT0}, s2, 3"); a(f"s_lshl_b32 s{sT0}, s{sT0}, 11")
    a(f"v_lshlrev_b32 v58, 7, v{vL}"); a(f"v_add_u32 v58, s{sT0}, v58")
    a(f"s_mov_b64 s[{sEX}:{sEX+1}], exec"); a("s_mov_b64 exec, 0xffff")
    a("v_cmp_gt_u32 vcc, CODE_BYTES, v58")
    a("s_and_b64 exec, exec, vcc")
    a("s_cbranch_execz L_icpf_rest")
    a("global_load_dword v60, v58, s[72:73]")
    a.label("L_icpf_rest")
    a(f"s_mov_b64 exec, s[{sEX}:{sEX+1}]")
    a.label("L_icpf_skip")

def a_setup(R):
    a = R.a
    a(f"s_lshl_b32 s{sM0}, s{sIDX}, 13")
    a(f"s_lshl_b32 s{sWp}, s{sIDX}, 14"); a(f"s_add_u32 s{sWp}, s{sWp}, {WB}")
    if cfg.pf:
        a(f"v_lshrrev_b32 v52, 3, v{vL}"); a("v_lshlrev_b32 v52, 13, v52")
        a(f"v_and_b32 v53, 7, v{vL}"); a("v_lshl_add_u32 v56, v53, 7, v52")
        a(f"s_mul_i32 s{sT2}, s{sB}, 28"); a(f"s_lshl_b32 s{sT3}, s{sIDX}, 3"); a(f"s_add_u32 s{sT2}, s{sT2}, s{sT3}")
        a(f"s_lshl_b32 s{sT2}, s{sT2}, 13")

def a_pf(R, which):
    a = R.a
    if not cfg.pf: return
    if which == "wq":
        a(f"s_cmp_eq_u32 s{sIDX}, 3"); a("s_cselect_b32 exec_hi, 0, -1")
        R.vmem(f"buffer_load_dword v63, v56, {srd(SRD_WQ)}, s{sT2} offen {cfg.pf_flags}", "pf")
        a("s_mov_b32 exec_hi, -1")
    else:
        a(f"v_lshlrev_b32 v58, 7, v{vL}")
        a(f"s_mul_i32 s{sT2}, s{sB}, 28672"); a(f"s_lshl_b32 s{sT3}, s{sIDX}, 13"); a(f"s_add_u32 s{sT2}, s{sT2}, s{sT3}")
        R.vmem(f"buffer_load_dword v62, v58, {srd(SRD_WO)}, s{sT2} offen {cfg.pf_flags}", "pf")

def a_setup2(R):
    a = R.a
    wq_dma_pattern(a, vWqA, vL, vGq, 52, 53)
    a(f"v_lshrrev_b32 v52, 3, v{vL}"); a("v_lshlrev_b32 v52, 9, v52")
    a(f"s_lshl_b32 s{sT1}, s{sIDX}, 15"); a(f"v_add_u32 v52, s{sT1}, v52")
    a(f"v_and_b32 v53, 7, v{vL}"); a(f"v_xor_b32 v54, v53, v{vGq}")
    a(f"v_lshl_add_u32 v{vKdE}, v54, 4, v52")
    a("v_xor_b32 v54, 4, v54"); a(f"v_lshl_add_u32 v{vKdO}, v54, 4, v52")
    a("v_lshrrev_b32 v54, 1, v53"); a(f"v_xor_b32 v54, v54, v{vGq}")
    a("v_lshl_add_u32 v54, v54, 5, v52")
    a(f"v_and_b32 v55, 1, v{vL}"); a(f"v_lshl_add_u32 v{vVd}, v55, 4, v54")

def a_setup3(R):
    a = R.a
    a(f"s_lshr_b32 s{sT0}, s{sIDX}, 1")
    a(f"s_and_b32 s{sT1}, s{sIDX}, 1")
    a(f"v_lshrrev_b32 v52, 1, v{vQ}")
    a(f"v_xor_b32 v53, v{vGq}, v52")
    a(f"v_xor_b32 v54, 4, v53")
    a(f"s_lshl_b32 s{sT2}, s{sT1}, 14")
    a(f"v_lshlrev_b32 v55, 7, v{vQ}")
    a(f"v_add_u32 v55, s{sT2}, v55")
    a(f"v_lshl_add_u32 v40, v53, 4, v55")
    a(f"v_lshl_add_u32 v41, v54, 4, v55")
    a(f"s_mul_i32 s{sT2}, s{sT0}, {48*128}")
    a(f"s_add_u32 s{sT2}, s{sT2}, {QB}")
    a(f"v_lshlrev_b32 v55, 7, v{vQ}")
    a(f"v_add_u32 v55, s{sT2}, v55")
    a(f"v_lshl_add_u32 v42, v53, 4, v55")
    a(f"v_lshl_add_u32 v43, v54, 4, v55")

def a_pair_init(R):
    a = R.a
    a(f"s_lshl_b32 s{sT0}, s{sIDX}, 4"); a(f"s_add_u32 s{sT0}, s{sT0}, {PFL}")
    a(f"v_mov_b32 v55, s{sT0}"); a("v_mov_b32 v56, 0")
    R.lds("ds_write_b32 v55, v56", "pf0")
    R.wait_lg_all()

def a_pair_addr(R):
    a = R.a
    a(f"s_lshl_b32 s{sT0}, s{sIDX}, 4"); a(f"s_add_u32 s{sT0}, s{sT0}, {PFL}")
    a(f"v_mov_b32 v55, s{sT0}"); a(f"s_xor_b32 s{sT0}, s{sT0}, 16"); a(f"v_mov_b32 v56, s{sT0}")

def a_pair_sync(R, j):
    a = R.a
    R.wait_lg_all()
    a(f"v_mov_b32 v57, {j+1}")
    a("ds_write_b32 v55, v57")
    a.label(f"L_ps{j}")
    a("ds_read_b32 v57, v56")
    a("s_waitcnt lgkmcnt(0)")
    a(f"v_readfirstlane_b32 s{sT0}, v57")
    a(f"s_cmp_lt_u32 s{sT0}, {j+1}")
    a(f"s_cbranch_scc1 L_ps{j}")

def kv_dma(R, kind, n, ii):
    a = R.a
    j, w = n >> 1, n & 1
    buf = KVA if w == 0 else KVB
    a(f"s_add_u32 m0, s{sM0}, {buf + 1024*ii}")
    a(f"s_add_u32 s{sT1}, s{sCOL+j}, {131072*w + 4096*ii}")
    if kind == "K":
        R.vmem(f"buffer_load_dwordx4 v{vKdE + (ii & 1)}, {srd(SRD_K)}, s{sT1} offen {cfg.k_flags} lds", f"K{n}")
    else:
        R.vmem(f"buffer_load_dwordx4 v{vVd}, {srd(SRD_V)}, s{sT1} offen {cfg.v_flags} lds", f"V{n}")
def a_issue_KV(R, kind, n):
    R.a.comment(f"---- issue {kind} window {n}")
    for ii in range(8): kv_dma(R, kind, n, ii)

def a0_flag_zero(R):
    a = R.a
    a(f"s_or_b32 s{sT0}, s{sG}, s{sIDX}"); a(f"s_cmp_lg_u32 s{sT0}, 0"); a("s_cbranch_scc1 L_fz_skip")
    a(f"s_mul_i32 s{sT0}, s{sGRP}, {FSTR}"); a(f"s_add_u32 s{sT0}, s{sT0}, {FLG}")
    a(f"v_lshlrev_b32 v58, 2, v{vL}"); a("v_mov_b32 v59, 0")
    a(f"s_mov_b64 s[{sEX}:{sEX+1}], exec"); a("s_mov_b32 exec_hi, 0")
    a(f"buffer_store_dword v59, v58, {srd(SRD_WS)}, s{sT0} offen sc0 sc1")
    a(f"s_mov_b64 exec, s[{sEX}:{sEX+1}]")
    a.label("L_fz_skip")

def a0_flag_mark(R):
    a = R.a
    a(f"s_or_b32 s{sT0}, s{sG}, s{sIDX}"); a(f"s_cmp_lg_u32 s{sT0}, 0"); a("s_cbranch_scc1 L_fm_skip")
    a(f"s_lshl_b32 s{sT0}, s{sGRP}, 2"); a(f"v_mov_b32 v58, s{sT0}"); a("v_mov_b32 v59, 1")
    a(f"s_mov_b64 s[{sEX}:{sEX+1}], exec"); a("s_mov_b64 exec, 1")
    a(f"global_store_dword v58, v59, s[{sDBG}:{sDBG+1}] sc0 sc1")
    a(f"s_mov_b64 exec, s[{sEX}:{sEX+1}]")
    a.label("L_fm_skip")

def a_flag_load(R):
    a = R.a
    a(f"s_lshl_b32 s{sT0}, s{sGRP}, 2"); a(f"v_mov_b32 v58, s{sT0}")
    R.vmem(f"global_load_dword v59, v58, s[{sDBG}:{sDBG+1}] sc0 sc1", "chk")
def a_flag_check(R):
    a = R.a
    R.wait_vm("chk")
    a(f"s_mov_b32 s{sT2}, 0")
    a.label("L_fc_poll")
    a(f"v_readfirstlane_b32 s{sT1}, v59")
    a(f"s_cmp_eq_u32 s{sT1}, 1"); a("s_cbranch_scc1 L_fc_skip")
    a(f"s_add_u32 s{sT2}, s{sT2}, 1"); a(f"s_cmp_ge_u32 s{sT2}, 400000"); a("s_cbranch_scc1 L_fc_skip")
    a("s_sleep 2")
    a(f"global_load_dword v59, v58, s[{sDBG}:{sDBG+1}] sc0 sc1")
    a("s_waitcnt vmcnt(0)")
    a("s_branch L_fc_poll")
    a.label("L_fc_skip")

T1, T2 = WB, WB + 32768
def a_S(R, n, dma=None):
    a = R.a
    j, w = n >> 1, n & 1
    buf = KVA if w == 0 else KVB
    if n >= 6:
        if n == 6:
            for s2 in range(2): a(f"v_add_u32 v{40+s2}, {T1}, v{40+s2}")
        buf = 0 if n == 6 else 32768
    if w == 0:
        for s in range(2):
            for nt in range(3):
                R.lds(f"ds_read_b128 {vr(Qf(s,nt))}, v{42+s} offset:{12288*(j & 1) + 2048*nt}", "q")
    frs = [(i, s) for i in range(8) for s in range(2)]
    NB = 4
    def rd(k):
        i, s = frs[k]
        R.lds(f"ds_read_b128 {vr(KF + 4*(k % NB))}, v{40+s} offset:{buf + 2048*i}", f"kf{k}")
    for k in range(NB-1): rd(k)
    if dma and not cfg.interleave:
        for ii in range(8): kv_dma(R, dma[0], dma[1], ii)
        dma = None
    for k, (i, s) in enumerate(frs):
        if k + NB - 1 < len(frs): rd(k + NB - 1)
        if dma and k < 8: kv_dma(R, dma[0], dma[1], k)
        R.wait_lg(f"kf{k}")
        for nt in range(3):
            d = S_(8*w + i, nt)
            c = "0" if (j == 0 and s == 0) else vr(d)
            a(f"v_mfma_f32_16x16x32_bf16 {vr(d)}, {vr(KF + 4*(k % NB))}, {vr(Qf(s,nt))}, {c}")

M1 = (52, 54, 56)
L1 = (53, 55, 57)
BETA = (0, 2, 4); ALO = (6, 8, 10); ALP = (12, 14, 16)
ONES1, ONES2 = 36, 20
def Pf(w, s, nt): return S_(8*w + 2*s, nt)
def Oa(mt, nt): return S_(2*mt + 1, nt)
def XT(i, nt): return S_(9 + 2*i, nt)

def _rowmax(a, tiles, dst, tmp):
    for nt in range(3):
        m = dst[nt]
        vals = [S_(t, nt) + r for t in tiles for r in range(4)]
        a(f"v_max3_f32 v{m}, v{vals[0]}, v{vals[1]}, v{vals[2]}")
        a(f"v_max3_f32 v{tmp}, v{vals[3]}, v{vals[4]}, v{vals[5]}")
        k = 6
        while k + 3 < len(vals):
            a(f"v_max3_f32 v{m}, v{m}, v{vals[k]}, v{vals[k+1]}")
            a(f"v_max3_f32 v{tmp}, v{tmp}, v{vals[k+2]}, v{vals[k+3]}")
            k += 4
        rest = vals[k:]
        assert len(rest) == 2
        a(f"v_max3_f32 v{m}, v{m}, v{rest[0]}, v{rest[1]}")
        a(f"v_max_f32 v{m}, v{m}, v{tmp}")
    for nt in range(3):
        m = dst[nt]
        a(f"v_mov_b32 v{tmp+nt}, v{m}")
    for nt in range(3):
        a(f"v_permlane32_swap_b32 v{tmp+nt}, v{dst[nt]}")
    for nt in range(3):
        a(f"v_max_f32 v{dst[nt]}, v{tmp+nt}, v{dst[nt]}")
    for nt in range(3):
        a(f"v_mov_b32 v{tmp+nt}, v{dst[nt]}")
    for nt in range(3):
        a(f"v_permlane16_swap_b32 v{tmp+nt}, v{dst[nt]}")
    for nt in range(3):
        a(f"v_max_f32 v{dst[nt]}, v{tmp+nt}, v{dst[nt]}")
        a(f"v_mul_f32 v{dst[nt]}, s{sC}, v{dst[nt]}")

def _exppack(a, t0s, mreg):
    for t0 in t0s:
        for nt in range(3):
            m = mreg[nt]
            b0, b1 = S_(t0, nt), S_(t0+1, nt)
            for b in (b0, b0+2, b1, b1+2):
                a(f"v_pk_fma_f32 {vr(b,2)}, {vr(b,2)}, s[{sC}:{sC+1}], {vr(m,2)} op_sel_hi:[1,1,0] neg_lo:[0,0,1] neg_hi:[0,0,1]")
            src = [b0+r for r in range(4)] + [b1+r for r in range(4)]
            for v in src: a(f"v_exp_f32 v{v}, v{v}")
            a(f"v_cvt_pk_bf16_f32 v{b0}, v{src[0]}, v{src[1]}")
            a(f"v_cvt_pk_bf16_f32 v{b0+1}, v{src[2]}, v{src[3]}")
            a(f"v_cvt_pk_bf16_f32 v{b0+2}, v{src[4]}, v{src[5]}")
            a(f"v_cvt_pk_bf16_f32 v{b0+3}, v{src[6]}, v{src[7]}")

def _rowsum(a, w, ones, acc):
    for r in range(4): a(f"v_mov_b32 v{ones+r}, 0x3f803f80")
    for s in range(4):
        for nt in range(3):
            c = "0" if s == 0 else vr(acc(nt))
            a(f"v_mfma_f32_16x16x32_bf16 {vr(acc(nt))}, {vr(ones)}, {vr(Pf(w,s,nt))}, {c}")

def a_softmax1(R):
    a = R.a
    _rowmax(a, range(0, 8), M1, 24)
    _exppack(a, (0, 2, 4, 6), M1)
    _rowsum(a, 0, ONES1, lambda nt: S_(1, nt))
    for nt in range(3): a(f"v_mov_b32 v{L1[nt]}, v{S_(1,nt)}")

def a_softmax2(R):
    a = R.a
    M2 = (24, 26, 28)
    _rowmax(a, range(8, 16), M2, 30)
    for nt in range(3):
        a(f"v_max_f32 v{M2[nt]}, v{M2[nt]}, v{M1[nt]}")
        a(f"v_sub_f32 v{BETA[nt]}, v{M1[nt]}, v{M2[nt]}")
    for nt in range(3): a(f"v_exp_f32 v{BETA[nt]}, v{BETA[nt]}")
    _exppack(a, (8, 10, 12, 14), M2)
    _rowsum(a, 1, ONES2, lambda nt: S_(13, nt))
    a_vaddr(R)
    for nt in range(3):
        a(f"v_fma_f32 v{M2[nt]+1}, v{BETA[nt]}, v{L1[nt]}, v{S_(13,nt)}")
    for nt in range(3):
        R.lds(f"ds_write_b64 v59, {vr(M2[nt],2)} offset:{128*nt}", "st")
    for nt in range(3):
        a(f"v_mov_b32 v{18+2*nt}, v{M2[nt]}"); a(f"v_mov_b32 v{19+2*nt}, v{M2[nt]+1}")
    R.wait_lg_all()

vXW, vXR, vOW = 52, 53, 54
def a_vaddr(R):
    a = R.a
    a(f"s_and_b32 s{sT1}, s{sIDX}, 1")
    a(f"v_lshrrev_b32 v32, 2, v{vL}")
    a(f"v_lshrrev_b32 v33, 1, v32"); a("v_and_b32 v33, 3, v33")
    a(f"s_lshl_b32 s{sT2}, s{sT1}, 14")
    a(f"v_lshlrev_b32 v34, 7, v32"); a(f"v_add_u32 v34, s{sT2}, v34")
    a(f"v_and_b32 v35, 3, v{vL}"); a(f"v_lshl_add_u32 v34, v35, 3, v34")
    a(f"s_lshl_b32 s{sT2}, s{sT1}, 1")
    a(f"v_xor_b32 v33, s{sT2}, v33")
    for mt in range(4):
        a(f"v_xor_b32 v35, {mt}, v33")
        a(f"v_lshl_add_u32 v{40+mt}, v35, 5, v34")
    a(f"s_mul_i32 s{sT0}, s{sIDX}, 384"); a(f"s_add_u32 s{sT0}, s{sT0}, {STAT}")
    a(f"v_lshlrev_b32 v59, 3, v{vQ}"); a(f"v_add_u32 v59, s{sT0}, v59")
    a(f"s_xor_b32 s{sT1}, s{sIDX}, 1"); a(f"s_mul_i32 s{sT1}, s{sT1}, 384"); a(f"s_add_u32 s{sT1}, s{sT1}, {STAT}")
    a(f"v_lshlrev_b32 v60, 3, v{vQ}"); a(f"v_add_u32 v60, s{sT1}, v60")

def a_alpha(R):
    a = R.a
    M2 = (18, 20, 22)
    for nt in range(3):
        R.lds(f"ds_read_b64 v[{32+2*nt}:{33+2*nt}], v60 offset:{128*nt}", "st")
    a(f"s_mul_i32 s{sT2}, s{sIDX}, 6144"); a(f"s_add_u32 s{sT2}, s{sT2}, {XB}")
    a(f"v_lshlrev_b32 v55, 4, v{vL}"); a(f"v_add_u32 v{vXW}, s{sT2}, v55")
    a(f"s_xor_b32 s{sT2}, s{sIDX}, 1"); a(f"s_mul_i32 s{sT2}, s{sT2}, 6144"); a(f"s_add_u32 s{sT2}, s{sT2}, {XB}")
    a(f"v_add_u32 v{vXR}, s{sT2}, v55")
    a(f"s_and_b32 s{sT1}, s{sIDX}, 1")
    a(f"s_lshr_b32 s{sT0}, s{sIDX}, 1"); a(f"s_mul_i32 s{sT2}, s{sT0}, {48*128}"); a(f"s_add_u32 s{sT2}, s{sT2}, {OB}")
    a(f"v_lshlrev_b32 v{vOW}, 7, v{vQ}"); a(f"v_add_u32 v{vOW}, s{sT2}, v{vOW}")
    a(f"s_lshl_b32 s{sT3}, s{sT1}, 2")
    a(f"v_or_b32 v55, s{sT3}, v{vGq}")
    a(f"v_lshrrev_b32 v56, 1, v{vQ}"); a("v_xor_b32 v55, v55, v56")
    a(f"v_lshl_add_u32 v{vOW}, v55, 4, v{vOW}")
    R.wait_lg_all()
    for nt in range(3):
        mo, lo = 32 + 2*nt, 33 + 2*nt
        m, l = M2[nt], M2[nt] + 1
        a(f"v_max_f32 v38, v{m}, v{mo}")
        a(f"v_sub_f32 v{ALO[nt]}, v{m}, v38"); a(f"v_sub_f32 v{ALP[nt]}, v{mo}, v38")
        a(f"v_exp_f32 v{ALO[nt]}, v{ALO[nt]}"); a(f"v_exp_f32 v{ALP[nt]}, v{ALP[nt]}")
        a(f"v_mul_f32 v38, v{l}, v{ALO[nt]}")
        a(f"v_fma_f32 v38, v{lo}, v{ALP[nt]}, v38")
        a("v_rcp_f32 v38, v38")
        a(f"v_mul_f32 v{ALO[nt]}, v{ALO[nt]}, v38"); a(f"v_mul_f32 v{ALP[nt]}, v{ALP[nt]}, v38")

def a_PV(R, n, dma=None):
    a = R.a
    j, w = n >> 1, n & 1
    buf = KVA if w == 0 else KVB
    frs = [(s, mt) for s in range(4) for mt in range(4)]
    if w == 1: frs = frs[:12] + [(3, 2), (3, 3), (3, 0), (3, 1)]
    NB = 4
    def rd(k):
        s, mt = frs[k]
        b = KF + 4*(k % NB)
        R.lds(f"ds_read_b64_tr_b16 {vr(b,2)}, v{40+mt} offset:{buf + 4096*s}", f"vf{k}")
        R.lds(f"ds_read_b64_tr_b16 {vr(b+2,2)}, v{40+mt} offset:{buf + 4096*s + 2048}", f"vf{k}")
    for k in range(NB-1): rd(k)
    if dma and not cfg.interleave:
        for ii in range(8): kv_dma(R, dma[0], dma[1], ii)
        dma = None
    for k, (s, mt) in enumerate(frs):
        if k + NB - 1 < len(frs): rd(k + NB - 1)
        if dma and k < 8: kv_dma(R, dma[0], dma[1], k)
        R.wait_lg(f"vf{k}")
        for nt in range(3):
            d = Oa(mt, nt)
            c = "0" if (w == 0 and s == 0) else vr(d)
            a(f"v_mfma_f32_16x16x32_bf16 {vr(d)}, {vr(KF + 4*(k % NB))}, {vr(Pf(w,s,nt))}, {c}")
        if w == 1 and k >= 14:
            m2 = k - 12
            for nt in range(3):
                R.lds(f"ds_write_b128 v{vXW}, {vr(Oa(m2,nt))} offset:{((m2-2)*3+nt)*1024}", "xw")

def a_rescale(R):
    a = R.a
    for mt in range(4):
        for nt in range(3):
            if cfg.unpack:
                for r in range(4): a(f"v_mul_f32 v{Oa(mt,nt)+r}, v{BETA[nt]}, v{Oa(mt,nt)+r}")
                continue
            for h2 in (0, 2):
                b = Oa(mt, nt) + h2
                a(f"v_pk_mul_f32 {vr(b,2)}, {vr(b,2)}, {vr(BETA[nt],2)} op_sel_hi:[1,0]")

def a_xwrite(R):
    a = R.a
    for mt in (2, 3):
        for nt in range(3):
            R.lds(f"ds_write_b128 v{vXW}, {vr(Oa(mt,nt))} offset:{((mt-2)*3+nt)*1024}", "xw")

def a_xfinal(R, dma=None):
    a = R.a
    for nt in range(3):
        for i in range(2):
            R.lds(f"ds_read_b128 {vr(XT(i,nt))}, v{vXR} offset:{(i*3+nt)*1024}", f"xr{nt}")
    if dma:
        for ii in range(8): kv_dma(R, dma[0], dma[1], ii)
    for nt in range(3):
        for i in range(2):
            if cfg.unpack:
                for r in range(4): a(f"v_mul_f32 v{Oa(i,nt)+r}, v{ALO[nt]}, v{Oa(i,nt)+r}")
                continue
            for h2 in (0, 2):
                b = Oa(i, nt) + h2
                a(f"v_pk_mul_f32 {vr(b,2)}, {vr(b,2)}, {vr(ALO[nt],2)} op_sel_hi:[1,0]")
    for nt in range(3):
        R.wait_lg(f"xr{nt}")
        for i in range(2):
            if cfg.unpack:
                for r in range(4): a(f"v_fma_f32 v{Oa(i,nt)+r}, v{XT(i,nt)+r}, v{ALP[nt]}, v{Oa(i,nt)+r}")
                continue
            for h2 in (0, 2):
                b, x = Oa(i, nt) + h2, XT(i, nt) + h2
                a(f"v_pk_fma_f32 {vr(b,2)}, {vr(x,2)}, {vr(ALP[nt],2)}, {vr(b,2)} op_sel_hi:[1,0,1]")
        d = XT(0, nt)
        a(f"v_cvt_pk_bf16_f32 v{d}, v{Oa(0,nt)}, v{Oa(0,nt)+1}")
        a(f"v_cvt_pk_bf16_f32 v{d+1}, v{Oa(0,nt)+2}, v{Oa(0,nt)+3}")
        a(f"v_cvt_pk_bf16_f32 v{d+2}, v{Oa(1,nt)}, v{Oa(1,nt)+1}")
        a(f"v_cvt_pk_bf16_f32 v{d+3}, v{Oa(1,nt)+2}, v{Oa(1,nt)+3}")
        R.lds(f"ds_write_b128 v{vOW}, {vr(d)} offset:{2048*nt}", "ow")

PRING = 0
vWqD = 20
vWqR = 21
vQW = 25
PT = 26
vWqR5 = 35
def Xf(s, nt): return 40 + (s*3 + nt)*4
def Qa(mt, nt): return 208 + (mt*3 + nt)*4

def p_lane(a):
    a(f"v_mbcnt_lo_u32_b32 v{PT}, -1, 0"); a(f"v_mbcnt_hi_u32_b32 v{PT}, -1, v{PT}")
    a(f"v_and_b32 v{PT+1}, 15, v{PT}"); a(f"v_lshrrev_b32 v{PT+2}, 4, v{PT}")

def p_setup_pre(a):
    l, q, g = PT, PT+1, PT+2
    p = sIDX
    p_lane(a)
    a(f"s_mul_i32 s{sXo}, s{p}, 896")
    a(f"s_lshr_b32 s{sT0}, s{p}, 1")
    a(f"v_xor_b32 v{PT+3}, s{sT0}, v{l}"); a(f"v_lshlrev_b32 v{PT+3}, 4, v{PT+3}")
    for k in range(4):
        a(f"v_xor_b32 v{PT+4+k}, {(2*k) << 4}, v{PT+3}")

def p_setup(R):
    a = R.a
    a(f"s_mov_b64 s[{sEX}:{sEX+1}], exec")
    a("s_mov_b32 exec_hi, 0x00ffffff")
    for ii in range(12):
        base = (KVB + 3584*ii) if ii < 8 else (QB + 3584*(ii-8))
        a(f"s_add_u32 m0, s{sXo}, {base}")
        a(f"s_add_u32 s{sT1}, s{sXo}, {3584*ii}")
        R.vmem(f"buffer_load_dwordx4 v{PT+4 + (ii % 4)}, {srd(SRD_X)}, s{sT1} offen lds", "x")
    a(f"s_mov_b64 exec, s[{sEX}:{sEX+1}]")

def p_setup2(R):
    a = R.a
    l, q, g = PT, PT+1, PT+2
    p = sIDX
    a(f"s_lshl_b32 s{sWp}, s{p}, 14"); a(f"s_add_u32 s{sWp}, s{sWp}, {WB}")
    wq_dma_pattern(a, vWqD, l, g, PT+3, PT+4)
    a(f"v_lshrrev_b32 v{PT+3}, 2, v{l}")
    a(f"v_lshrrev_b32 v{PT+4}, 1, v{PT+3}"); a(f"v_and_b32 v{PT+4}, 3, v{PT+4}")
    a(f"v_lshlrev_b32 v{PT+5}, 7, v{PT+3}"); a(f"v_add_u32 v{PT+5}, s{sWp}, v{PT+5}")
    a(f"v_and_b32 v{PT+6}, 3, v{l}"); a(f"v_lshl_add_u32 v{PT+5}, v{PT+6}, 3, v{PT+5}")
    for mt in range(4):
        a(f"v_xor_b32 v{PT+6}, {mt}, v{PT+4}")
        a(f"v_lshl_add_u32 v{vWqR+mt}, v{PT+6}, 5, v{PT+5}")
    a(f"s_and_b32 s{sT0}, s{sIDX}, 1"); a(f"s_mul_i32 s{sT0}, s{sT0}, {48*128}")
    a(f"s_lshr_b32 s{sT1}, s{sIDX}, 1"); a(f"s_mul_i32 s{sT1}, s{sT1}, 12288")
    a(f"s_add_u32 s{sT0}, s{sT0}, s{sT1}"); a(f"s_add_u32 s{sT0}, s{sT0}, {QB}")
    a(f"v_lshlrev_b32 v{PT+5}, 7, v{q}"); a(f"v_add_u32 v{PT+5}, s{sT0}, v{PT+5}")
    a(f"v_and_b32 v{PT+6}, 1, v{g}"); a(f"v_lshl_add_u32 v{PT+5}, v{PT+6}, 3, v{PT+5}")
    a(f"v_lshrrev_b32 v{PT+6}, 1, v{g}"); a(f"v_lshrrev_b32 v{PT+3}, 1, v{q}"); a(f"v_xor_b32 v{PT+6}, v{PT+6}, v{PT+3}")
    a(f"v_lshl_add_u32 v{vQW}, v{PT+6}, 4, v{PT+5}")
    a(f"v_lshrrev_b32 v{PT+3}, 1, v{q}")
    a(f"v_lshrrev_b32 v{PT+4}, 1, v{g}"); a(f"v_xor_b32 v{PT+4}, v{PT+4}, v{PT+3}")
    a(f"s_mov_b32 s{sT0}, 896"); a(f"v_mul_lo_u32 v{PT+5}, s{sT0}, v{q}")
    a(f"v_and_b32 v{PT+6}, 1, v{g}"); a(f"v_lshl_add_u32 v{PT+5}, v{PT+6}, 3, v{PT+5}")
    a(f"v_add_u32 v{PT+5}, {KVB}, v{PT+5}")
    for k in range(4):
        a(f"v_xor_b32 v{PT+6}, {2*k}, v{PT+4}")
        a(f"v_lshl_add_u32 v{PT+7+k}, v{PT+6}, 4, v{PT+5}")

def p_xfrags(R):
    a = R.a
    for pas in range(2):
        for s in range(14):
            for nt in ((0, 1) if pas == 0 else (2,)):
                for half in range(2):
                    k = 2*(s & 1) + half
                    off = (14336*nt if pas == 0 else 0) + 128*(s >> 1)
                    R.lds_guard(1)
                    R.lds(f"ds_read_b64 {vr(Xf(s,nt)+2*half,2)}, v{PT+7+k} offset:{off}", "xf")
        if pas == 0:
            R.wait_lg_all()
            for k in range(4): a(f"v_add_u32 v{PT+7+k}, {QB-KVB}, v{PT+7+k}")
    R.wait_lg_all()

def p_qcompute(R, kaps, stream_next, hooks=None):
    a = R.a
    D = cfg.dq; NB = D + 1
    hooks = hooks or {}
    frs = [(kap, mt) for kap in kaps for mt in range(4)]
    def rd(f):
        kap, mt = frs[f]
        if mt == 0: R.wait_vm(f"w{kap}")
        b = PRING + 4*(f % NB)
        area, off = wq_slot(kap)
        ad = (vWqR if area == 'own' else vWqR5) + mt
        R.lds(f"ds_read_b64_tr_b16 {vr(b,2)}, v{ad} offset:{off}", f"f{kap}_{mt}")
        R.lds(f"ds_read_b64_tr_b16 {vr(b+2,2)}, v{ad} offset:{off + 2048}", f"f{kap}_{mt}")
    for f in range(min(D, len(frs))): rd(f)
    for f, (kap, mt) in enumerate(frs):
        J, s = divmod(kap, 14)
        if f + D < len(frs): rd(f + D)
        if stream_next and cfg.j0s5 and kap >= 1 and kap + 4 < 14: wq_dma(R, kap + 4, vWqD, [mt])
        R.wait_lg(f"f{kap}_{mt}")
        if cfg.kst and mt == 0 and kap < 14 and kap % 2 == 0: lstamp(a, 26 + kap // 2)
        for nt in range(3):
            d = Qa(mt, nt)
            c = "0" if s == 0 else vr(d)
            a(f"v_mfma_f32_16x16x32_bf16 {vr(d)}, {vr(PRING + 4*(f % NB))}, {vr(Xf(s,nt))}, {c}")
        if stream_next and not cfg.j0s5 and mt == 3 and kap + NSLOT_Q < 14: wq_dma(R, kap + NSLOT_Q, vWqD)
        if mt == 3 and kap in hooks: hooks[kap]()
    last = kaps[-1]
    if last % 14 == 13:
        if cfg.kst and last == 13: lstamp(a, 33)
        k = 0
        for m2 in range(4):
            a(f"v_xor_b32 v{PT+8}, {32*m2}, v{vQW}")
            for nt in range(3):
                d = Qa(m2, nt)
                t = PT + 2*(k % 4); k += 1
                a(f"v_cvt_pk_bf16_f32 v{t}, v{d}, v{d+1}")
                a(f"v_cvt_pk_bf16_f32 v{t+1}, v{d+2}, v{d+3}")
                R.lds_guard(1)
                R.lds(f"ds_write_b64 v{PT+8}, {vr(t,2)} offset:{2048*nt}", "qw")
        R.wait_lg("qw")

ORING = 0
vWoD = 32
vWoR = 34
vOR = 42
VT = 48
ALT = 208
PUB = [216 + 4*i for i in range(10)] + [20, 24]
def Outa(i, nt): return 64 + (i*3 + nt)*4
def Of(ks, nt): return 160 + (ks*3 + nt)*4

def p_vsetup(R, wide):
    a = R.a
    l, q, g = VT, VT+1, VT+2
    a(f"v_mbcnt_lo_u32_b32 v{l}, -1, 0"); a(f"v_mbcnt_hi_u32_b32 v{l}, -1, v{l}")
    a(f"v_and_b32 v{q}, 15, v{l}"); a(f"v_lshrrev_b32 v{g}, 4, v{l}")
    a(f"s_lshl_b32 s{sT0}, s{sIDX}, 8")
    if wide:
        a(f"v_bfe_u32 v{VT+3}, v{l}, 1, 3"); a(f"v_xor_b32 v{VT+3}, v{VT+3}, v{g}")
        a(f"s_mov_b32 s{sT1}, 896"); a(f"v_mul_lo_u32 v{VT+4}, s{sT1}, v{g}")
        a(f"v_and_b32 v{VT+5}, 1, v{l}"); a(f"v_lshl_add_u32 v{VT+4}, v{VT+5}, 4, v{VT+4}")
        a(f"v_add_u32 v{VT+4}, s{sT0}, v{VT+4}")
        a(f"v_lshl_add_u32 v{vWoD}, v{VT+3}, 5, v{VT+4}")
        a(f"v_xor_b32 v{VT+3}, 4, v{VT+3}"); a(f"v_lshl_add_u32 v{vWoD+1}, v{VT+3}, 5, v{VT+4}")
        a(f"v_lshrrev_b32 v{VT+3}, 2, v{l}"); a(f"v_and_b32 v{VT+4}, 7, v{VT+3}")
        a(f"v_lshlrev_b32 v{VT+5}, 8, v{VT+3}")
    else:
        a(f"v_lshrrev_b32 v{VT+3}, 3, v{l}"); a(f"s_mov_b32 s{sT1}, 896"); a(f"v_mul_lo_u32 v{VT+4}, s{sT1}, v{VT+3}")
        a(f"v_bfe_u32 v{VT+3}, v{l}, 1, 2"); a(f"v_xor_b32 v{VT+3}, v{VT+3}, v{g}")
        a(f"v_lshl_add_u32 v{VT+4}, v{VT+3}, 5, v{VT+4}")
        a(f"v_and_b32 v{VT+5}, 1, v{l}"); a(f"v_lshl_add_u32 v{VT+4}, v{VT+5}, 4, v{VT+4}")
        a(f"v_add_u32 v{vWoD}, s{sT0}, v{VT+4}")
        a(f"v_lshrrev_b32 v{VT+3}, 2, v{l}")
        a(f"v_lshrrev_b32 v{VT+4}, 1, v{VT+3}"); a(f"v_and_b32 v{VT+4}, 3, v{VT+4}")
        a(f"v_lshlrev_b32 v{VT+5}, 7, v{VT+3}")
    a(f"v_and_b32 v{VT+6}, 3, v{l}"); a(f"v_lshl_add_u32 v{VT+5}, v{VT+6}, 3, v{VT+5}")
    a(f"s_lshl_b32 s{sT1}, s{sIDX}, 13")
    for mt in range(8 if wide else 4):
        a(f"v_xor_b32 v{VT+6}, {mt}, v{VT+4}")
        a(f"v_lshl_add_u32 v{VT+7}, v{VT+6}, 5, v{VT+5}")
        a(f"v_add_u32 v{vWoR+mt}, s{sWp}, v{VT+7}")
        a(f"v_add_u32 v{ALT+mt}, s{sT1}, v{VT+7}")
    a(f"v_lshrrev_b32 v{VT+3}, 1, v{q}"); a(f"v_xor_b32 v{VT+3}, v{g}, v{VT+3}")
    a(f"v_lshlrev_b32 v{VT+4}, 7, v{q}"); a(f"v_add_u32 v{VT+4}, {OB}, v{VT+4}")
    a(f"v_lshl_add_u32 v{vOR}, v{VT+3}, 4, v{VT+4}")
    a(f"v_xor_b32 v{VT+3}, 4, v{VT+3}"); a(f"v_lshl_add_u32 v{vOR+1}, v{VT+3}, 4, v{VT+4}")
    a(f"s_lshl_b32 s{sM0}, s{sIDX}, 13")

def wo_slot(kap, wide):
    slot = 8192 if wide else 4096
    special = {14: ('kv', KVA), 15: ('kv', KVB)}
    if kap in special: return special[kap]
    return ('own', (kap % 2)*slot)

def wo_dma(R, kap, wide, ii_list=None):
    a = R.a
    j, ks = divmod(kap, 4); h, s = divmod(ks, 2)
    row0 = 256*h + 32*s
    area, off = wo_slot(kap, wide)
    base = sWp if area == 'own' else sM0
    for ii in (ii_list if ii_list is not None else range(8 if wide else 4)):
        a(f"s_add_u32 m0, s{base}, {off + 1024*ii}")
        rows = 4*ii if wide else 8*ii
        a(f"s_add_u32 s{sT1}, s{sCOL+4+j}, {(row0 + rows)*896}")
        pat = vWoD + ((ii & 1) if wide else 0)
        R.vmem(f"buffer_load_dwordx4 v{pat}, {srd(SRD_WO)}, s{sT1} offen {cfg.w_flags} lds", f"o{kap}")

def p_ofrags(R):
    for k2 in range(4):
        for nt in range(3):
            R.lds_guard(1)
            R.lds(f"ds_read_b128 {vr(Of(k2,nt))}, v{vOR + (k2 & 1)} offset:{6144*(k2 >> 1) + 2048*nt}", f"of{k2}")

vPK0, vPK1, vPV, vPF = 44, 45, 46, 56
def p_kv_setup(R, first=False):
    a = R.a
    l, g = VT, VT+2
    a(f"s_lshl_b32 s{sM0}, s{sIDX}, 13")
    a(f"v_mbcnt_lo_u32_b32 v{l}, -1, 0"); a(f"v_mbcnt_hi_u32_b32 v{l}, -1, v{l}"); a(f"v_lshrrev_b32 v{g}, 4, v{l}")
    a(f"v_lshrrev_b32 v{VT+3}, 3, v{l}"); a(f"v_lshlrev_b32 v{VT+3}, 9, v{VT+3}")
    a(f"s_lshl_b32 s{sT1}, s{sIDX}, 15"); a(f"v_add_u32 v{VT+3}, s{sT1}, v{VT+3}")
    a(f"v_and_b32 v{VT+4}, 7, v{l}"); a(f"v_xor_b32 v{VT+5}, v{VT+4}, v{g}")
    a(f"v_lshl_add_u32 v{vPK0}, v{VT+5}, 4, v{VT+3}")
    a(f"v_xor_b32 v{VT+5}, 4, v{VT+5}"); a(f"v_lshl_add_u32 v{vPK1}, v{VT+5}, 4, v{VT+3}")
    a(f"v_lshrrev_b32 v{VT+5}, 1, v{VT+4}"); a(f"v_xor_b32 v{VT+5}, v{VT+5}, v{g}")
    a(f"v_lshl_add_u32 v{VT+5}, v{VT+5}, 5, v{VT+3}")
    a(f"v_and_b32 v{VT+4}, 1, v{l}"); a(f"v_lshl_add_u32 v{vPV}, v{VT+4}, 4, v{VT+5}")
    a(f"v_lshlrev_b32 v{vPF}, 7, v{l}")

def p_issue_KV(R, kind, n):
    a = R.a
    j, w = n >> 1, n & 1
    buf = KVA if w == 0 else KVB
    if kind == "K" and n >= 6: buf = T1 if n == 6 else T2
    for ii in range(8):
        a(f"s_add_u32 m0, s{sM0}, {buf + 1024*ii}")
        a(f"s_add_u32 s{sT1}, s{sCOL+j}, {131072*w + 4096*ii}")
        if kind == "K": R.vmem(f"buffer_load_dwordx4 v{vPK0 + (ii & 1)}, {srd(SRD_K)}, s{sT1} offen {cfg.k_flags} lds", f"K{n}")
        else: R.vmem(f"buffer_load_dwordx4 v{vPV}, {srd(SRD_V)}, s{sT1} offen {cfg.v_flags} lds", f"V{n}")

def p_tlb_warm(R):
    a = R.a
    if not cfg.tlbw: return
    a(f"s_lshl_b32 s{sT0}, s{sB}, 4"); a(f"s_lshl_b32 s{sT1}, s{sBR}, 2"); a(f"s_add_u32 s{sT0}, s{sT0}, s{sT1}")
    a(f"s_mul_i32 s{sT0}, s{sT0}, {PART}")
    a(f"v_mov_b32 v58, s{sT0}")
    a(f"s_add_u32 s{sT1}, s{sT0}, {11*PART + PART - 4}"); a(f"v_writelane_b32 v58, s{sT1}, 1")
    a(f"s_mul_i32 s{sT1}, s2, {PART}"); a(f"v_writelane_b32 v58, s{sT1}, 2")
    a(f"s_mul_i32 s{sT1}, s{sGRP}, {FSTR}"); a(f"s_add_u32 s{sT1}, s{sT1}, {FLG}"); a(f"v_writelane_b32 v58, s{sT1}, 3")
    a(f"s_mul_i32 s{sT2}, s{sB}, {48*1792}")
    a(f"s_mov_b64 s[{sEX}:{sEX+1}], exec"); a("s_mov_b64 exec, 0xf")
    R.vmem(f"buffer_load_dword v59, v58, {srd(SRD_WS)}, 0 offen sc0 sc1", "tlb")
    a("s_mov_b64 exec, 1"); a("v_mov_b32 v60, 0")
    R.vmem(f"buffer_load_dword v59, v60, {srd(SRD_OUT)}, s{sT2} offen sc0 sc1", "tlb")
    a(f"s_mov_b64 exec, s[{sEX}:{sEX+1}]")

def p_pf_wo(R):
    a = R.a
    if not cfg.pf: return
    a(f"s_mul_i32 s{sT2}, s{sB}, 28672"); a(f"s_lshl_b32 s{sT3}, s{sIDX}, 13"); a(f"s_add_u32 s{sT2}, s{sT2}, s{sT3}")
    a(f"s_cmp_eq_u32 s{sIDX}, 3"); a("s_cselect_b32 exec_hi, 0, -1")
    R.vmem(f"buffer_load_dword v57, v{vPF}, {srd(SRD_WO)}, s{sT2} offen {cfg.pf_flags}", "pf")
    a("s_mov_b32 exec_hi, -1")

def p_of(R, k2):
    for nt in range(3):
        R.lds_guard(1)
        R.lds(f"ds_read_b128 {vr(Of(k2,nt))}, v{vOR + (k2 & 1)} offset:{6144*(k2 >> 1) + 2048*nt}", f"of{k2}")

def p_ocompute(R, kaps, wide, inter=None, ofr=False):
    a = R.a
    NT = 8 if wide else 4
    D = 4; NB = 5
    rowb = 256 if wide else 128
    inter = inter or {}
    frs = [(kap, mt) for kap in kaps for mt in range(NT)]
    def rd(f):
        kap, mt = frs[f]
        if mt == 0: R.wait_vm(f"o{kap}")
        b = ORING + 4*(f % NB)
        area, off = wo_slot(kap, wide)
        addr = (vWoR if area == 'own' else ALT) + mt
        R.lds_guard(2)
        R.lds(f"ds_read_b64_tr_b16 {vr(b,2)}, v{addr} offset:{off}", f"f{kap}_{mt}")
        R.lds(f"ds_read_b64_tr_b16 {vr(b+2,2)}, v{addr} offset:{off + 16*rowb}", f"f{kap}_{mt}")
    if ofr: p_of(R, 0)
    for f in range(D): rd(f)
    for f, (kap, mt) in enumerate(frs):
        j, ks = divmod(kap, 4)
        if f + D < len(frs): rd(f + D)
        if ofr and f < 3: p_of(R, f + 1)
        for (k2, ii) in inter.get(f, []): wo_dma(R, k2, wide, [ii])
        R.wait_lg(f"f{kap}_{mt}")
        if mt == 0: R.wait_lg(f"of{ks}")
        for nt in range(3):
            d = Outa(mt, nt)
            c = "0" if kap == 0 else vr(d)
            a(f"v_mfma_f32_16x16x32_bf16 {vr(d)}, {vr(ORING + 4*(f % NB))}, {vr(Of(ks,nt))}, {c}")
        if cfg.tst and mt == NT - 1 and kap >= 10: lstamp(a, 26 + kap - 10)

def p_oproj_phase(R, bar, wide):
    a = R.a
    NT = 8 if wide else 4
    nbar = 0
    def b1():
        nonlocal nbar
        bar(); nbar += 1
    b1()
    if cfg.wo_first_after >= 6: wo_dma(R, 0, wide); wo_dma(R, 1, wide)
    b1()
    if cfg.pvprio: a(f"s_setprio {cfg.pvprio}")
    for j in range(3):
        a.comment(f"---- O projection chunk {j}")
        p_ocompute(R, [4*j, 4*j+1], wide, ofr=True)
        wo_dma(R, 4*j+2, wide); wo_dma(R, 4*j+3, wide)
        b1()
        if j < 2:
            p_ocompute(R, [4*j+2, 4*j+3], wide)
            wo_dma(R, 4*j+4, wide); wo_dma(R, 4*j+5, wide)
        else:
            if cfg.p7prio: a(f"s_setprio {cfg.p7prio}")
            if cfg.d14first:
                wo_dma(R, 14, wide); inter = {}
            else:
                inter = {f: [(14, f)] for f in range(NT)}
            inter.update({NT + f: [(12, f)] for f in range(NT)})
            p_ocompute(R, [10, 11], wide, inter=inter)
            wo_dma(R, 13, wide)
        b1()
    p_ocompute(R, [12, 13], wide, inter={f: [(15, f)] for f in range(NT)}, ofr=True)
    p_ocompute_last(R, wide)
    return nbar

def p_ocompute_last(R, wide):
    a = R.a
    NT = 8 if wide else 4
    D = 4; NB = 5
    rowb = 256 if wide else 128
    frs = [(kap, 2*ip + t) for ip in range(NT//2) for kap in (14, 15) for t in range(2)]
    def rd(f):
        kap, mt = frs[f]
        if f == 0: R.wait_vm("o14"); R.wait_vm("o15")
        b = ORING + 4*(f % NB)
        area, off = wo_slot(kap, wide)
        addr = (vWoR if area == 'own' else ALT) + mt
        R.lds_guard(2)
        R.lds(f"ds_read_b64_tr_b16 {vr(b,2)}, v{addr} offset:{off}", f"g{f}")
        R.lds(f"ds_read_b64_tr_b16 {vr(b+2,2)}, v{addr} offset:{off + 16*rowb}", f"g{f}")
    a(f"v_mbcnt_lo_u32_b32 v{VT}, -1, 0"); a(f"v_mbcnt_hi_u32_b32 v{VT}, -1, v{VT}"); a(f"v_lshlrev_b32 v{VT}, 4, v{VT}")
    a(f"s_mul_i32 s{sT2}, s2, {PART}"); a(f"s_mul_i32 s{sT3}, s{sIDX}, {12*1024}"); a(f"s_add_u32 s{sT2}, s{sT2}, s{sT3}")
    npub = 0
    def pub_pair(ip):
        nonlocal npub
        for nt in range(3):
            t = PUB[npub]; npub += 1
            d0, d1 = Outa(2*ip, nt), Outa(2*ip+1, nt)
            a(f"v_cvt_pk_bf16_f32 v{t}, v{d0}, v{d0+1}"); a(f"v_cvt_pk_bf16_f32 v{t+1}, v{d0+2}, v{d0+3}")
            a(f"v_cvt_pk_bf16_f32 v{t+2}, v{d1}, v{d1+1}"); a(f"v_cvt_pk_bf16_f32 v{t+3}, v{d1+2}, v{d1+3}")
            a(f"s_add_u32 s{sT1}, s{sT2}, {1024*(ip*3 + nt)}")
            R.vmem(f"buffer_store_dwordx4 {vr(t)}, v{VT}, {srd(SRD_WS)}, s{sT1} offen sc0 sc1", "pub")
    for f in range(D): rd(f)
    for f, (kap, mt) in enumerate(frs):
        ks = kap % 4
        if f + D < len(frs): rd(f + D)
        R.wait_lg(f"g{f}")
        for nt in range(3):
            d = Outa(mt, nt)
            a(f"v_mfma_f32_16x16x32_bf16 {vr(d)}, {vr(ORING + 4*(f % NB))}, {vr(Of(ks,nt))}, {vr(d)}")
        if f % 4 == 1 and f >= 5: pub_pair(f//4 - 1)
    pub_pair(NT//2 - 1)

def p_flag(R):
    a = R.a
    if cfg.tst: lstamp(a, 32)
    R.wait_vm_all()
    if cfg.tst: lstamp(a, 33)
    a(f"s_mul_i32 s{sT0}, s{sGRP}, {FSTR}"); a(f"s_add_u32 s{sT0}, s{sT0}, {FLG}")
    a(f"s_lshl_b32 s{sT1}, s{sG}, 2"); a(f"s_add_u32 s{sT1}, s{sT1}, s{sIDX}"); a(f"s_lshl_b32 s{sT1}, s{sT1}, 2")
    a(f"v_mov_b32 v2, s{sT1}"); a("v_mov_b32 v1, 1")
    a(f"s_mov_b64 s[{sEX}:{sEX+1}], exec")
    a("s_mov_b64 exec, 1")
    a(f"buffer_store_dword v1, v2, {srd(SRD_WS)}, s{sT0} offen sc0 sc1")
    a(f"s_mov_b64 exec, s[{sEX}:{sEX+1}]")

def emit_reduce(a):
    a.label("L_tail")
    if cfg.stamps: stamp(a, 50)
    a(f"s_min_u32 s{sT0}, s{sG}, 2"); a(f"s_mul_i32 s{sT1}, s{sG}, 5"); a(f"s_add_u32 s{sT0}, s{sT0}, s{sT1}")
    a(f"s_cmp_lt_u32 s{sG}, 2"); a(f"s_cselect_b32 s{sT1}, 6, 5")
    a(f"s_mov_b32 s80, s{sT1}")
    a(f"s_add_u32 s{sT0}, s{sT0}, s{sWAVE}")
    a("v_mbcnt_lo_u32_b32 v3, -1, 0"); a("v_mbcnt_hi_u32_b32 v3, -1, v3")
    a("v_lshlrev_b32 v6, 4, v3"); a("v_lshlrev_b32 v0, 2, v3")
    a(f"s_mul_i32 s{sT2}, s{sT0}, 171"); a(f"s_lshr_b32 s{sT2}, s{sT2}, 9")
    a(f"s_mul_i32 s{sT3}, s{sT2}, 3"); a(f"s_sub_u32 s{sT3}, s{sT0}, s{sT3}")
    a(f"s_lshl_b32 s{sT3}, s{sT3}, 4"); a(f"s_mul_i32 s{sT1}, s{sB}, 48"); a(f"s_add_u32 s{sT3}, s{sT3}, s{sT1}")
    a(f"s_mul_i32 s{sT3}, s{sT3}, 1792"); a(f"s_lshl_b32 s{sT2}, s{sT2}, 6"); a(f"s_add_u32 s{sT3}, s{sT3}, s{sT2}")
    a(f"s_mul_i32 s{sT1}, s{sBR}, 896"); a(f"s_add_u32 s78, s{sT3}, s{sT1}") if not cfg.lstamps else None
    if cfg.lstamps: a(f"s_mul_i32 s{sT1}, s{sBR}, 896"); a(f"s_add_u32 s100, s{sT3}, s{sT1}")
    sOUT = 100 if cfg.lstamps else 78
    a("v_and_b32 v7, 15, v3"); a(f"s_mov_b32 s{sT1}, 1792"); a(f"v_mul_lo_u32 v7, s{sT1}, v7")
    a("v_bfe_u32 v8, v3, 4, 1"); a("v_lshl_add_u32 v7, v8, 5, v7")
    a("v_lshrrev_b32 v8, 5, v3"); a("v_lshl_add_u32 v7, v8, 4, v7")
    a(f"s_lshl_b32 s{sT1}, s{sB}, 4"); a(f"s_lshl_b32 s{sT2}, s{sBR}, 2"); a(f"s_add_u32 s{sT1}, s{sT1}, s{sT2}")
    a(f"s_mul_i32 s{sT1}, s{sT1}, {PART}"); a(f"s_lshl_b32 s{sT2}, s{sT0}, 10"); a(f"s_add_u32 s{sT3}, s{sT1}, s{sT2}")
    a(f"s_cmp_lg_u32 s{sWAVE}, 0"); a("s_cbranch_scc1 L_nopoll")
    a(f"s_mul_i32 s{sT0}, s{sGRP}, {FSTR}"); a(f"s_add_u32 s{sT0}, s{sT0}, {FLG}")
    a(f"s_mov_b64 s[{sEX}:{sEX+1}], exec")
    a("s_mov_b32 exec_hi, 0")
    a(f"s_mov_b32 s{sT2}, 0")
    a.label("L_poll")
    a(f"buffer_load_dword v4, v0, {srd(SRD_WS)}, s{sT0} offen sc0 sc1")
    a("s_waitcnt vmcnt(0)")
    a("v_cmp_eq_u32 vcc, 1, v4")
    a("s_cmp_eq_u32 vcc_lo, -1")
    a("s_cbranch_scc1 L_poll_done")
    a(f"s_add_u32 s{sT2}, s{sT2}, 1")
    a(f"s_cmp_ge_u32 s{sT2}, 400000")
    a("s_cbranch_scc1 L_poll_done")
    if cfg.sleep: a(f"s_sleep {cfg.sleep}")
    a("s_branch L_poll")
    a.label("L_poll_done")
    a(f"s_mov_b64 exec, s[{sEX}:{sEX+1}]")
    a.label("L_nopoll")
    a("s_barrier")
    a(f"s_cmp_ge_u32 s{sWAVE}, s80")
    a("s_cbranch_scc1 " + ("L_nogather" if cfg.stamps else ("L_mini" if cfg.mini else "L_end")))
    if cfg.stamps: stamp(a, 52)
    for k in range(8):
        gb, gp = k >> 2, k & 3
        a(f"s_add_u32 s{sT2}, s{sT3}, {(gb*8 + gp)*PART}")
        a(f"buffer_load_dwordx4 {vr(64+4*k)}, v6, {srd(SRD_WS)}, s{sT2} offen sc0 sc1")
    acc = 16
    for k in range(8):
        a(f"s_waitcnt vmcnt({7-k})")
        for r in range(4):
            src = 64 + 4*k + r
            if k == 0:
                a(f"v_lshlrev_b32 v{acc+2*r}, 16, v{src}"); a(f"v_and_b32 v{acc+2*r+1}, 0xffff0000, v{src}")
            else:
                t = 8 + 2*(r & 1) + 2
                a(f"v_lshlrev_b32 v{t}, 16, v{src}"); a(f"v_and_b32 v{t+1}, 0xffff0000, v{src}")
                a(f"v_pk_add_f32 {vr(acc+2*r,2)}, {vr(acc+2*r,2)}, {vr(t,2)}")
    for r in range(4):
        a(f"v_cvt_pk_bf16_f32 v{12+r}, v{acc+2*r}, v{acc+2*r+1}")
    a("v_permlane16_swap_b32 v12, v14")
    a("v_permlane16_swap_b32 v13, v15")
    a(f"buffer_store_dwordx4 v[12:15], v7, {srd(SRD_OUT)}, s{sOUT} offen")
    if cfg.stamps:
        a("s_waitcnt vmcnt(0)")
        a.label("L_nogather")
        stamp(a, 53)
        a("s_memtime s[74:75]"); a("s_waitcnt lgkmcnt(0)"); a("v_writelane_b32 v61, s74, 61")
        stamp_store(a)
    if cfg.mini:
        a.label("L_mini")
        a("s_memrealtime s[72:73]"); a("s_waitcnt vmcnt(0) lgkmcnt(0)")
        a("s_memrealtime s[72:73]"); a("s_waitcnt lgkmcnt(0)")
        a("v_mov_b32 v61, 0"); a("v_writelane_b32 v61, s90, 62"); a("v_writelane_b32 v61, s72, 53")
        stamp_store(a)
    a.label("L_end")
    a("s_endpgm")

def build():
    a = Asm()
    if cfg.mini:
        a("s_memrealtime s[90:91]")
    if cfg.stamps:
        a("s_memrealtime s[72:73]"); a("s_memtime s[74:75]"); a("s_waitcnt lgkmcnt(0)")
        a("v_writelane_b32 v61, s72, 62"); a("v_writelane_b32 v61, s74, 60")
    emit_prologue(a)
    cnt = {"n": 0}
    def bar():
        a("s_barrier")
        if cfg.stamps: stamp(a, cnt["n"])
        cnt["n"] += 1
    A = Role(a)
    if cfg.prioA: a(f"s_setprio {cfg.prioA}")
    a_setup(A)
    if cfg.pf_first: a_pf(A, "wq")
    bar()
    if not cfg.pf_first: a_pf(A, "wq")
    a_setup2(A)
    bar()
    a0_flag_zero(A)
    for kap in range(4): wq_dma(A, kap, vWqA)
    a_issue_KV(A, "K", 0)
    a_setup3(A)
    a_pair_init(A)
    A.wait_vm("w3")
    a0_flag_mark(A)
    bar()
    bar()
    a_issue_KV(A, "K", 1)
    A.wait_vm("K0")
    bar()
    a_S(A, 0)
    A.wait_vm("K1")
    bar()
    a_S(A, 1, dma=("K", 2)); A.wait_vm("K2"); bar()
    a_flag_load(A)
    a_S(A, 2, dma=("K", 3)); A.wait_vm("K3"); a_flag_check(A); bar()
    a_S(A, 3, dma=("K", 4)); A.wait_vm("K4"); bar()
    a_issue_KV(A, "K", 5)
    bar()
    a_S(A, 4)
    A.wait_vm("K5")
    bar()
    a_S(A, 5)
    bar()
    a_S(A, 6)
    if cfg.split_sm: a_softmax1(A)
    bar()
    a_S(A, 7)
    if not cfg.split_sm: a_softmax1(A)
    a_softmax2(A)
    bar()
    for n in range(8):
        dma = ("V", n+1) if 1 <= n <= 6 else None
        if cfg.prio7 and n == cfg.prio7from: a(f"s_setprio {cfg.prio7}")
        a_PV(A, n, dma)
        if n == 0:
            a_alpha(A); a_pair_addr(A)
        if n % 2 == 0:
            a_rescale(A)
        else:
            a_pair_sync(A, n >> 1)
            a_xfinal(A)
        if 1 <= n < 7: A.wait_vm(f"V{n+1}")
        A.wait_lg_all()
        bar()
    nA = cnt["n"]
    A.wait_vm_all()
    a("s_branch L_tail")
    a.label("L_P")
    cnt["n"] = 0
    P = Role(a)
    stamp_move(a, 39)
    if cfg.stamps: stamp(a, 55)
    if cfg.prioP: a(f"s_setprio {cfg.prioP}")
    P.vm += ["x"]*12
    if cfg.stamps: stamp(a, 56)
    bar()
    p_setup2(P)
    P.wait_vm("x"); bar()
    p_xfrags(P)
    if cfg.j0s5:
        a(f"s_lshl_b32 s{sWq5}, s{sIDX}, 12"); a(f"s_add_u32 s{sWq5}, s{sWq5}, {QB}")
        a(f"s_sub_u32 s{sT0}, s{sWq5}, s{sWp}")
        for mt in range(4): a(f"v_add_u32 v{vWqR5+mt}, s{sT0}, v{vWqR+mt}")
    bar()
    if cfg.j0s5: wq_dma(P, 4, vWqD)
    p_qcompute(P, list(range(14)), True, hooks={cfg.k1_after: bar})
    bar()
    if cfg.pkprio: a(f"s_setprio {cfg.pkprio}")
    for kap in (14, 15, 16, 17): wq_dma(P, kap, vWqD)
    bar()
    for kaps, nxt in (([14,15], [18,19]), ([16,17,18,19], [20,21,22,23]), ([20,21,22,23], [24,25,26,27]), ([24,25,26,27], [])):
        p_qcompute(P, kaps, False)
        for kap in nxt: wq_dma(P, kap, vWqD)
        bar()
    if cfg.pkprio: a("s_setprio 0")
    a(f"s_cmp_eq_u32 s{sIDX}, 3")
    a("s_cbranch_scc1 L_P3")
    base = cnt["n"]
    for wide in (True, False):
        if not wide:
            a.label("L_P3"); cnt["n"] = base
        Pw = Role(a)
        STREG[0] = 39
        stamp_move(a, 47)
        p_kv_setup(Pw, first=True)
        p_issue_KV(Pw, "K", 6)
        p_vsetup(Pw, wide)
        bar()
        p_issue_KV(Pw, "K", 7); Pw.wait_vm("K6"); bar()
        p_issue_KV(Pw, "V", 0); Pw.wait_vm("K7"); bar()
        p_issue_KV(Pw, "V", 1); p_pf_wo(Pw); p_tlb_warm(Pw); Pw.wait_vm("V0"); bar()
        Pw.wait_vm("V1")
        nb = p_oproj_phase(Pw, bar, wide)
        assert nb == 8, nb
        if cfg.stamps: stamp(a, 59)
        p_flag(Pw)
        if cfg.stamps: stamp(a, 58)
        assert cnt["n"] == nA, (cnt["n"], nA)
        stamp_move(a, 61)
        if wide: a("s_branch L_tail")
    emit_reduce(a)
    a.finalize()
    return a

HEADER = open("cdna_kernels/" + NAME + ".s.ref").read().split("; Override launch")[0]
def full_text(a):
    s = HEADER
    s += f"; @launch grid=(256,1,1) block=(512,1,1) lds={LDS_BYTES}\n"
    s += f'.amdgcn_target "amdgcn-amd-amdhsa--gfx950"\n.text\n.globl {NAME}_kernel\n.p2align 8\n.type {NAME}_kernel,@function\n{NAME}_kernel:\n'
    body = a.text()
    if cfg.icpf:
        body = body.replace("  s_endpgm\n", "  s_endpgm\nL_code_end:\n") if body.count("s_endpgm") == 1 else body + "L_code_end:\n"
        body = body.replace("CODE_BYTES", f"L_code_end-{NAME}_kernel")
    s += body
    s += f""".section .rodata,"a"
.p2align 6
.amdhsa_kernel {NAME}_kernel
  .amdhsa_next_free_vgpr 256
  .amdhsa_next_free_sgpr 102
  .amdhsa_accum_offset 256
  .amdhsa_group_segment_fixed_size 0
  .amdhsa_kernarg_size 104
  .amdhsa_user_sgpr_count 2
  .amdhsa_user_sgpr_kernarg_segment_ptr 1
  .amdhsa_system_sgpr_workgroup_id_x 1
.end_amdhsa_kernel
"""
    return s

if __name__ == "__main__":
    out = sys.argv[1] if len(sys.argv) > 1 else "cdna_kernels/" + NAME + ".s"
    for kv in sys.argv[2:]:
        k, v = kv.split("=", 1)
        cur = getattr(cfg, k)
        if isinstance(cur, bool): v = v.lower() in ("1", "true")
        elif isinstance(cur, int): v = int(v)
        setattr(cfg, k, v)
    a = build()
    open(out, "w").write(full_text(a))
    print("wrote", out, "instrs:", sum(1 for i in a.ins if i.kind not in ('none','label')), "nops inserted:", a.nops_inserted)
```

```python
import sys, math, struct
from asmlib import Asm

NAME = "concat_heads__gqa_block_cached__gqa_block_cached__near_ridge"

class Cfg:
    k_flags = "nt"
    v_flags = "nt"
    w_flags = ""
    pf = True
    pf_flags = ""
    stamps = False
    lstamps = False
    mini = False
    prioA = 0
    prioP = 0
    dq = 4
    pf_wo_at = 8
    k1_after = 9
    split_sm = True
    sleep = 0
    interleave = False
    pf_first = False
    wo_first_after = 7
    tst = False
    latepoll = True
    pvprio = 0
    pkprio = 0
    p7prio = 0
    d14first = False
    tlbw = True
    icpf = True
    prio7 = 0
    prio7from = 7
    pkv = True
    unpack = True
    j0s5 = True
    rot = 1
    kst = False
cfg = Cfg()

KVA, KVB = 0, 32768
WB = 65536
QB = 131072
OB = 122880
XB = 135168
STAT = 159744
PFL = 161280
LDS_BYTES = 163840
PART = 43008
FLG = 16 << 20
FSTR = 8448
sWAVE, sIDX, sG, sB, sBR = 3, 4, 5, 6, 7
SRD_K, SRD_V, SRD_WQ, SRD_WO, SRD_X, SRD_OUT, SRD_WS = 8, 12, 16, 20, 24, 28, 32
sDBG = 58
sM0, sWp = 62, 63
sC = 64
sT0, sT1, sT2, sT3 = 66, 67, 68, 69
sEX = 70
sGRP, sXo = 76, 77
sCOL = 36
sJ = 44
def srd(b): return f"s[{b}:{b+3}]"
def vr(b, n=4): return f"v[{b}:{b+n-1}]"
def f32bits(x): return struct.unpack('<I', struct.pack('<f', x))[0]
vL, vQ, vGq = 44, 46, 47

class Role:
    def __init__(self, a): self.a = a; self.vm = []; self.lg = []
    def vmem(self, text, tag): self.a(text); self.vm.append(tag)
    def lds(self, text, tag): self.a(text); self.lg.append(tag)
    def wait_vm(self, tag):
        idx = [i for i, t in enumerate(self.vm) if t == tag]
        if not idx: return
        n = len(self.vm) - 1 - idx[-1]
        assert n <= 63
        self.a(f"s_waitcnt vmcnt({n})"); self.vm = self.vm[idx[-1]+1:]
    def wait_lg(self, tag):
        idx = [i for i, t in enumerate(self.lg) if t == tag]
        if not idx: return
        n = len(self.lg) - 1 - idx[-1]
        assert n <= 15, n
        self.a(f"s_waitcnt lgkmcnt({n})"); self.lg = self.lg[idx[-1]+1:]
    def wait_vm_all(self): self.a("s_waitcnt vmcnt(0)"); self.vm = []
    def wait_lg_all(self): self.a("s_waitcnt lgkmcnt(0)"); self.lg = []
    def lds_guard(self, n_new):
        if len(self.lg) + n_new > 15:
            keep = 15 - n_new
            self.a(f"s_waitcnt lgkmcnt({keep})"); self.lg = self.lg[len(self.lg)-keep:] if keep else []

STREG = [61]
PEND = []
def stamp(a, idx):
    a("s_memrealtime s[72:73]")
    a("s_waitcnt lgkmcnt(0)")
    a(f"v_writelane_b32 v{STREG[0]}, s72, {idx}")
    for (sp, i2) in PEND: a(f"v_writelane_b32 v{STREG[0]}, s{sp}, {i2}")
    PEND.clear()
def lstamp(a, idx):
    if not cfg.lstamps: return
    sp = 78 + 2*len(PEND)
    assert sp <= 98
    a(f"s_memrealtime s[{sp}:{sp+1}]")
    PEND.append((sp, idx))
def stamp_move(a, new):
    if cfg.stamps: a(f"v_mov_b32 v{new}, v{STREG[0]}")
    STREG[0] = new
def stamp_store(a):
    a(f"s_lshl_b32 s{sT0}, s2, 3"); a(f"s_add_u32 s{sT0}, s{sT0}, s{sWAVE}"); a(f"s_lshl_b32 s{sT0}, s{sT0}, 8")
    a("v_mbcnt_lo_u32_b32 v60, -1, 0"); a("v_mbcnt_hi_u32_b32 v60, -1, v60")
    a(f"v_lshlrev_b32 v60, 2, v60"); a(f"v_add_u32 v60, s{sT0}, v60")
    a("s_add_u32 s74, s60, 0x2000000"); a("s_addc_u32 s75, s61, 0")
    a("global_store_dword v60, v61, s[74:75]")
    a("s_waitcnt vmcnt(0)")

def emit_prologue(a):
    a("s_cmp_ge_u32 s2, 256")
    a("s_cbranch_scc1 L_end")
    a("s_load_dwordx16 s[36:51], s[0:1], 0")
    a("s_load_dwordx4 s[52:55], s[0:1], 64")
    a("s_load_dwordx4 s[56:59], s[0:1], 80")
    a("s_load_dwordx2 s[60:61], s[0:1], 96")
    a("v_and_b32 v44, 63, v0")
    a("v_lshrrev_b32 v45, 6, v0")
    a("v_and_b32 v46, 15, v44")
    a("v_lshrrev_b32 v47, 4, v44")
    a(f"v_readfirstlane_b32 s{sWAVE}, v45")
    a(f"s_bfe_u32 s{sBR}, s2, 0x10002")
    a(f"s_and_b32 s{sG}, s2, 3"); a(f"s_lshl_b32 s{sG}, s{sG}, 1")
    a(f"s_bfe_u32 s{sT0}, s2, 0x10003"); a(f"s_or_b32 s{sG}, s{sG}, s{sT0}")
    a(f"s_lshr_b32 s{sB}, s2, 4")
    a(f"s_and_b32 s{sIDX}, s{sWAVE}, 3")
    a(f"s_lshl_b32 s{sGRP}, s{sBR}, 4"); a(f"s_add_u32 s{sGRP}, s{sGRP}, s{sB}")
    a(f"s_mov_b32 s{sC}, 0x{f32bits(math.log2(math.e)/16.0):08x}"); a(f"s_mov_b32 s{sC+1}, s{sC}")
    a_code_prefetch(Role(a))
    p_setup_pre(a)
    a("s_waitcnt lgkmcnt(0)")
    if cfg.stamps: stamp(a, 54)
    a(f"s_cmp_eq_u32 s{sBR}, 0")
    a("s_cselect_b64 s[36:37], s[36:37], s[46:47]")
    def mk(srdb, ptr, off_s, size):
        if off_s is None:
            a(f"s_mov_b32 s{srdb}, s{ptr}"); a(f"s_and_b32 s{srdb+1}, s{ptr+1}, 0xffff")
        else:
            a(f"s_add_u32 s{srdb}, s{ptr}, s{off_s}")
            a(f"s_addc_u32 s{srdb+1}, s{ptr+1}, 0")
            a(f"s_and_b32 s{srdb+1}, s{srdb+1}, 0xffff")
        if isinstance(size, int): a(f"s_mov_b32 s{srdb+2}, {size}")
        else: a(size)
        a(f"s_mov_b32 s{srdb+3}, 0x20000")
    a(f"s_mul_i32 s{sT1}, s{sB}, 43008")
    mk(SRD_X, 36, sT1, 43008)
    a(f"s_cmp_lt_u32 s{sWAVE}, 4"); a("s_cbranch_scc1 L_nox")
    PX = Role(a); p_setup(PX)
    a.label("L_nox")
    a(f"s_cmp_eq_u32 s{sBR}, 0")
    for i in range(1, 5):
        a(f"s_cselect_b64 s[{36+2*i}:{37+2*i}], s[{36+2*i}:{37+2*i}], s[{46+2*i}:{47+2*i}]")
    a(f"s_lshl_b32 s{sT1}, s{sG}, 10")
    mk(SRD_WQ, 42, sT1, f"s_sub_u32 s{SRD_WQ+2}, {448*8192}, s{sT1}")
    a(f"s_lshl_b32 s{sT0}, s{sB}, 3"); a(f"s_add_u32 s{sT0}, s{sT0}, s{sG}"); a(f"s_lshl_b32 s{sT0}, s{sT0}, 18")
    mk(SRD_K, 38, sT0, 262144)
    mk(SRD_V, 40, sT0, 262144)
    a(f"s_mul_i32 s{sT1}, s{sG}, 458752")
    mk(SRD_WO, 44, sT1, 458752)
    mk(SRD_OUT, 56, None, 16*48*896*2)
    mk(SRD_WS, 60, None, FLG + 32*FSTR)
    if cfg.rot == 0:
        for j in range(4):
            a(f"s_movk_i32 s{sCOL+j}, {128*j}"); a(f"s_mov_b32 s{sCOL+4+j}, {64*j*896}")
        a(f"s_lshr_b32 s{sT2}, s{sIDX}, 1"); a(f"s_lshl_b32 s{sJ}, s{sT2}, 7"); a(f"s_add_u32 s{sJ+1}, s{sJ}, 256")
    else:
        if cfg.rot == 0: a(f"s_mov_b32 s{sT0}, 0")
        elif cfg.rot == 1: a(f"s_and_b32 s{sT0}, s{sB}, 3")
        elif cfg.rot == 2: a(f"s_add_u32 s{sT0}, s{sB}, s{sG}"); a(f"s_and_b32 s{sT0}, s{sT0}, 3")
        elif cfg.rot == 3: a(f"s_and_b32 s{sT0}, s{sB}, 1"); a(f"s_lshl_b32 s{sT0}, s{sT0}, 1")
        for j in range(4):
            a(f"s_add_u32 s{sT1}, s{sT0}, {j}"); a(f"s_and_b32 s{sT1}, s{sT1}, 3")
            a(f"s_lshl_b32 s{sCOL+j}, s{sT1}, 7"); a(f"s_mul_i32 s{sCOL+4+j}, s{sT1}, {64*896}")
        a(f"s_lshr_b32 s{sT2}, s{sIDX}, 1")
        for J in range(2):
            a(f"s_add_u32 s{sT1}, s{sT0}, s{sT2}"); a(f"s_add_u32 s{sT1}, s{sT1}, {2*J}"); a(f"s_and_b32 s{sT1}, s{sT1}, 3")
            a(f"s_lshl_b32 s{sJ+J}, s{sT1}, 7")
    a(f"s_cmp_ge_u32 s{sWAVE}, 4")
    a("s_cbranch_scc1 L_P")

def wq_dma_pattern(a, dst, l, g, t0, t1):
    a(f"v_lshrrev_b32 v{t0}, 3, v{l}"); a(f"v_lshlrev_b32 v{t0}, 13, v{t0}")
    a(f"v_bfe_u32 v{t1}, v{l}, 1, 2"); a(f"v_xor_b32 v{t1}, v{t1}, v{g}")
    a(f"v_lshl_add_u32 v{t0}, v{t1}, 5, v{t0}")
    a(f"v_and_b32 v{t1}, 1, v{l}"); a(f"v_lshl_add_u32 v{t0}, v{t1}, 4, v{t0}")
    a(f"s_and_b32 s{sT0}, s{sIDX}, 1"); a(f"s_lshl_b32 s{sT0}, s{sT0}, 9")
    a(f"v_add_u32 v{dst}, s{sT0}, v{t0}")

NSLOT_Q = 4
def wq_slot(kap):
    if cfg.j0s5 and kap < 14:
        sl = kap % 5
        return ('q', 0) if sl == 4 else ('own', sl*4096)
    return ('own', (kap % NSLOT_Q)*4096)
sWq5 = 47
def wq_dma(R, kap, vpat, ii_list=range(4)):
    a = R.a
    J, s = divmod(kap, 14)
    area, off = wq_slot(kap)
    for ii in ii_list:
        a(f"s_add_u32 m0, s{sWp if area == 'own' else sWq5}, {off + 1024*ii}")
        a(f"s_add_u32 s{sT1}, s{sJ+J}, {(32*s + 8*ii)*8192}")
        R.vmem(f"buffer_load_dwordx4 v{vpat}, {srd(SRD_WQ)}, s{sT1} offen {cfg.w_flags} lds", f"w{kap}")

def S_(t, nt): return 64 + (t*3 + nt)*4
def Qf(s, nt): return (s*3 + nt)*4
KF = 24
vKdE, vKdO, vVd, vWqA = 48, 49, 50, 51

def a_code_prefetch(R):
    a = R.a
    if not cfg.icpf: return
    a(f"s_cmp_lg_u32 s{sWAVE}, 3"); a("s_cbranch_scc1 L_icpf_skip")
    a("s_getpc_b64 s[72:73]")
    a.label("L_icpf_pc")
    a(f"s_sub_u32 s72, s72, L_icpf_pc-{NAME}_kernel"); a("s_subb_u32 s73, s73, 0")
    a(f"s_lshr_b32 s{sT0}, s2, 3"); a(f"s_lshl_b32 s{sT0}, s{sT0}, 11")
    a(f"v_lshlrev_b32 v58, 7, v{vL}"); a(f"v_add_u32 v58, s{sT0}, v58")
    a(f"s_mov_b64 s[{sEX}:{sEX+1}], exec"); a("s_mov_b64 exec, 0xffff")
    a("v_cmp_gt_u32 vcc, CODE_BYTES, v58")
    a("s_and_b64 exec, exec, vcc")
    a("s_cbranch_execz L_icpf_rest")
    a("global_load_dword v60, v58, s[72:73]")
    a.label("L_icpf_rest")
    a(f"s_mov_b64 exec, s[{sEX}:{sEX+1}]")
    a.label("L_icpf_skip")

def a_setup(R):
    a = R.a
    a(f"s_lshl_b32 s{sM0}, s{sIDX}, 13")
    a(f"s_lshl_b32 s{sWp}, s{sIDX}, 14"); a(f"s_add_u32 s{sWp}, s{sWp}, {WB}")
    if cfg.pf:
        a(f"v_lshrrev_b32 v52, 3, v{vL}"); a("v_lshlrev_b32 v52, 13, v52")
        a(f"v_and_b32 v53, 7, v{vL}"); a("v_lshl_add_u32 v56, v53, 7, v52")
        a(f"s_mul_i32 s{sT2}, s{sB}, 28"); a(f"s_lshl_b32 s{sT3}, s{sIDX}, 3"); a(f"s_add_u32 s{sT2}, s{sT2}, s{sT3}")
        a(f"s_lshl_b32 s{sT2}, s{sT2}, 13")

def a_pf(R, which):
    a = R.a
    if not cfg.pf: return
    if which == "wq":
        a(f"s_cmp_eq_u32 s{sIDX}, 3"); a("s_cselect_b32 exec_hi, 0, -1")
        R.vmem(f"buffer_load_dword v63, v56, {srd(SRD_WQ)}, s{sT2} offen {cfg.pf_flags}", "pf")
        a("s_mov_b32 exec_hi, -1")
    else:
        a(f"v_lshlrev_b32 v58, 7, v{vL}")
        a(f"s_mul_i32 s{sT2}, s{sB}, 28672"); a(f"s_lshl_b32 s{sT3}, s{sIDX}, 13"); a(f"s_add_u32 s{sT2}, s{sT2}, s{sT3}")
        R.vmem(f"buffer_load_dword v62, v58, {srd(SRD_WO)}, s{sT2} offen {cfg.pf_flags}", "pf")

def a_setup2(R):
    a = R.a
    wq_dma_pattern(a, vWqA, vL, vGq, 52, 53)
    a(f"v_lshrrev_b32 v52, 3, v{vL}"); a("v_lshlrev_b32 v52, 9, v52")
    a(f"s_lshl_b32 s{sT1}, s{sIDX}, 15"); a(f"v_add_u32 v52, s{sT1}, v52")
    a(f"v_and_b32 v53, 7, v{vL}"); a(f"v_xor_b32 v54, v53, v{vGq}")
    a(f"v_lshl_add_u32 v{vKdE}, v54, 4, v52")
    a("v_xor_b32 v54, 4, v54"); a(f"v_lshl_add_u32 v{vKdO}, v54, 4, v52")
    a("v_lshrrev_b32 v54, 1, v53"); a(f"v_xor_b32 v54, v54, v{vGq}")
    a("v_lshl_add_u32 v54, v54, 5, v52")
    a(f"v_and_b32 v55, 1, v{vL}"); a(f"v_lshl_add_u32 v{vVd}, v55, 4, v54")

def a_setup3(R):
    a = R.a
    a(f"s_lshr_b32 s{sT0}, s{sIDX}, 1")
    a(f"s_and_b32 s{sT1}, s{sIDX}, 1")
    a(f"v_lshrrev_b32 v52, 1, v{vQ}")
    a(f"v_xor_b32 v53, v{vGq}, v52")
    a(f"v_xor_b32 v54, 4, v53")
    a(f"s_lshl_b32 s{sT2}, s{sT1}, 14")
    a(f"v_lshlrev_b32 v55, 7, v{vQ}")
    a(f"v_add_u32 v55, s{sT2}, v55")
    a(f"v_lshl_add_u32 v40, v53, 4, v55")
    a(f"v_lshl_add_u32 v41, v54, 4, v55")
    a(f"s_mul_i32 s{sT2}, s{sT0}, {48*128}")
    a(f"s_add_u32 s{sT2}, s{sT2}, {QB}")
    a(f"v_lshlrev_b32 v55, 7, v{vQ}")
    a(f"v_add_u32 v55, s{sT2}, v55")
    a(f"v_lshl_add_u32 v42, v53, 4, v55")
    a(f"v_lshl_add_u32 v43, v54, 4, v55")

def a_pair_init(R):
    a = R.a
    a(f"s_lshl_b32 s{sT0}, s{sIDX}, 4"); a(f"s_add_u32 s{sT0}, s{sT0}, {PFL}")
    a(f"v_mov_b32 v55, s{sT0}"); a("v_mov_b32 v56, 0")
    R.lds("ds_write_b32 v55, v56", "pf0")
    R.wait_lg_all()

def a_pair_addr(R):
    a = R.a
    a(f"s_lshl_b32 s{sT0}, s{sIDX}, 4"); a(f"s_add_u32 s{sT0}, s{sT0}, {PFL}")
    a(f"v_mov_b32 v55, s{sT0}"); a(f"s_xor_b32 s{sT0}, s{sT0}, 16"); a(f"v_mov_b32 v56, s{sT0}")

def a_pair_sync(R, j):
    a = R.a
    R.wait_lg_all()
    a(f"v_mov_b32 v57, {j+1}")
    a("ds_write_b32 v55, v57")
    a.label(f"L_ps{j}")
    a("ds_read_b32 v57, v56")
    a("s_waitcnt lgkmcnt(0)")
    a(f"v_readfirstlane_b32 s{sT0}, v57")
    a(f"s_cmp_lt_u32 s{sT0}, {j+1}")
    a(f"s_cbranch_scc1 L_ps{j}")

def kv_dma(R, kind, n, ii):
    a = R.a
    j, w = n >> 1, n & 1
    buf = KVA if w == 0 else KVB
    a(f"s_add_u32 m0, s{sM0}, {buf + 1024*ii}")
    a(f"s_add_u32 s{sT1}, s{sCOL+j}, {131072*w + 4096*ii}")
    if kind == "K":
        R.vmem(f"buffer_load_dwordx4 v{vKdE + (ii & 1)}, {srd(SRD_K)}, s{sT1} offen {cfg.k_flags} lds", f"K{n}")
    else:
        R.vmem(f"buffer_load_dwordx4 v{vVd}, {srd(SRD_V)}, s{sT1} offen {cfg.v_flags} lds", f"V{n}")
def a_issue_KV(R, kind, n):
    R.a.comment(f"---- issue {kind} window {n}")
    for ii in range(8): kv_dma(R, kind, n, ii)

def a0_flag_zero(R):
    a = R.a
    a(f"s_or_b32 s{sT0}, s{sG}, s{sIDX}"); a(f"s_cmp_lg_u32 s{sT0}, 0"); a("s_cbranch_scc1 L_fz_skip")
    a(f"s_mul_i32 s{sT0}, s{sGRP}, {FSTR}"); a(f"s_add_u32 s{sT0}, s{sT0}, {FLG}")
    a(f"v_lshlrev_b32 v58, 2, v{vL}"); a("v_mov_b32 v59, 0")
    a(f"s_mov_b64 s[{sEX}:{sEX+1}], exec"); a("s_mov_b32 exec_hi, 0")
    a(f"buffer_store_dword v59, v58, {srd(SRD_WS)}, s{sT0} offen sc0 sc1")
    a(f"s_mov_b64 exec, s[{sEX}:{sEX+1}]")
    a.label("L_fz_skip")

def a0_flag_mark(R):
    a = R.a
    a(f"s_or_b32 s{sT0}, s{sG}, s{sIDX}"); a(f"s_cmp_lg_u32 s{sT0}, 0"); a("s_cbranch_scc1 L_fm_skip")
    a(f"s_lshl_b32 s{sT0}, s{sGRP}, 2"); a(f"v_mov_b32 v58, s{sT0}"); a("v_mov_b32 v59, 1")
    a(f"s_mov_b64 s[{sEX}:{sEX+1}], exec"); a("s_mov_b64 exec, 1")
    a(f"global_store_dword v58, v59, s[{sDBG}:{sDBG+1}] sc0 sc1")
    a(f"s_mov_b64 exec, s[{sEX}:{sEX+1}]")
    a.label("L_fm_skip")

def a_flag_load(R):
    a = R.a
    a(f"s_lshl_b32 s{sT0}, s{sGRP}, 2"); a(f"v_mov_b32 v58, s{sT0}")
    R.vmem(f"global_load_dword v59, v58, s[{sDBG}:{sDBG+1}] sc0 sc1", "chk")
def a_flag_check(R):
    a = R.a
    R.wait_vm("chk")
    a(f"s_mov_b32 s{sT2}, 0")
    a.label("L_fc_poll")
    a(f"v_readfirstlane_b32 s{sT1}, v59")
    a(f"s_cmp_eq_u32 s{sT1}, 1"); a("s_cbranch_scc1 L_fc_skip")
    a(f"s_add_u32 s{sT2}, s{sT2}, 1"); a(f"s_cmp_ge_u32 s{sT2}, 400000"); a("s_cbranch_scc1 L_fc_skip")
    a("s_sleep 2")
    a(f"global_load_dword v59, v58, s[{sDBG}:{sDBG+1}] sc0 sc1")
    a("s_waitcnt vmcnt(0)")
    a("s_branch L_fc_poll")
    a.label("L_fc_skip")

T1, T2 = WB, WB + 32768
def a_S(R, n, dma=None):
    a = R.a
    j, w = n >> 1, n & 1
    buf = KVA if w == 0 else KVB
    if n >= 6:
        if n == 6:
            for s2 in range(2): a(f"v_add_u32 v{40+s2}, {T1}, v{40+s2}")
        buf = 0 if n == 6 else 32768
    if w == 0:
        for s in range(2):
            for nt in range(3):
                R.lds(f"ds_read_b128 {vr(Qf(s,nt))}, v{42+s} offset:{12288*(j & 1) + 2048*nt}", "q")
    frs = [(i, s) for i in range(8) for s in range(2)]
    NB = 4
    def rd(k):
        i, s = frs[k]
        R.lds(f"ds_read_b128 {vr(KF + 4*(k % NB))}, v{40+s} offset:{buf + 2048*i}", f"kf{k}")
    for k in range(NB-1): rd(k)
    if dma and not cfg.interleave:
        for ii in range(8): kv_dma(R, dma[0], dma[1], ii)
        dma = None
    for k, (i, s) in enumerate(frs):
        if k + NB - 1 < len(frs): rd(k + NB - 1)
        if dma and k < 8: kv_dma(R, dma[0], dma[1], k)
        R.wait_lg(f"kf{k}")
        for nt in range(3):
            d = S_(8*w + i, nt)
            c = "0" if (j == 0 and s == 0) else vr(d)
            a(f"v_mfma_f32_16x16x32_bf16 {vr(d)}, {vr(KF + 4*(k % NB))}, {vr(Qf(s,nt))}, {c}")

M1 = (52, 54, 56)
L1 = (53, 55, 57)
BETA = (0, 2, 4); ALO = (6, 8, 10); ALP = (12, 14, 16)
ONES1, ONES2 = 36, 20
def Pf(w, s, nt): return S_(8*w + 2*s, nt)
def Oa(mt, nt): return S_(2*mt + 1, nt)
def XT(i, nt): return S_(9 + 2*i, nt)

def _rowmax(a, tiles, dst, tmp):
    for nt in range(3):
        m = dst[nt]
        vals = [S_(t, nt) + r for t in tiles for r in range(4)]
        a(f"v_max3_f32 v{m}, v{vals[0]}, v{vals[1]}, v{vals[2]}")
        a(f"v_max3_f32 v{tmp}, v{vals[3]}, v{vals[4]}, v{vals[5]}")
        k = 6
        while k + 3 < len(vals):
            a(f"v_max3_f32 v{m}, v{m}, v{vals[k]}, v{vals[k+1]}")
            a(f"v_max3_f32 v{tmp}, v{tmp}, v{vals[k+2]}, v{vals[k+3]}")
            k += 4
        rest = vals[k:]
        assert len(rest) == 2
        a(f"v_max3_f32 v{m}, v{m}, v{rest[0]}, v{rest[1]}")
        a(f"v_max_f32 v{m}, v{m}, v{tmp}")
    for nt in range(3):
        m = dst[nt]
        a(f"v_mov_b32 v{tmp+nt}, v{m}")
    for nt in range(3):
        a(f"v_permlane32_swap_b32 v{tmp+nt}, v{dst[nt]}")
    for nt in range(3):
        a(f"v_max_f32 v{dst[nt]}, v{tmp+nt}, v{dst[nt]}")
    for nt in range(3):
        a(f"v_mov_b32 v{tmp+nt}, v{dst[nt]}")
    for nt in range(3):
        a(f"v_permlane16_swap_b32 v{tmp+nt}, v{dst[nt]}")
    for nt in range(3):
        a(f"v_max_f32 v{dst[nt]}, v{tmp+nt}, v{dst[nt]}")
        a(f"v_mul_f32 v{dst[nt]}, s{sC}, v{dst[nt]}")

def _exppack(a, t0s, mreg):
    for t0 in t0s:
        for nt in range(3):
            m = mreg[nt]
            b0, b1 = S_(t0, nt), S_(t0+1, nt)
            for b in (b0, b0+2, b1, b1+2):
                a(f"v_pk_fma_f32 {vr(b,2)}, {vr(b,2)}, s[{sC}:{sC+1}], {vr(m,2)} op_sel_hi:[1,1,0] neg_lo:[0,0,1] neg_hi:[0,0,1]")
            src = [b0+r for r in range(4)] + [b1+r for r in range(4)]
            for v in src: a(f"v_exp_f32 v{v}, v{v}")
            a(f"v_cvt_pk_bf16_f32 v{b0}, v{src[0]}, v{src[1]}")
            a(f"v_cvt_pk_bf16_f32 v{b0+1}, v{src[2]}, v{src[3]}")
            a(f"v_cvt_pk_bf16_f32 v{b0+2}, v{src[4]}, v{src[5]}")
            a(f"v_cvt_pk_bf16_f32 v{b0+3}, v{src[6]}, v{src[7]}")

def _rowsum(a, w, ones, acc):
    for r in range(4): a(f"v_mov_b32 v{ones+r}, 0x3f803f80")
    for s in range(4):
        for nt in range(3):
            c = "0" if s == 0 else vr(acc(nt))
            a(f"v_mfma_f32_16x16x32_bf16 {vr(acc(nt))}, {vr(ones)}, {vr(Pf(w,s,nt))}, {c}")

def a_softmax1(R):
    a = R.a
    _rowmax(a, range(0, 8), M1, 24)
    _exppack(a, (0, 2, 4, 6), M1)
    _rowsum(a, 0, ONES1, lambda nt: S_(1, nt))
    for nt in range(3): a(f"v_mov_b32 v{L1[nt]}, v{S_(1,nt)}")

def a_softmax2(R):
    a = R.a
    M2 = (24, 26, 28)
    _rowmax(a, range(8, 16), M2, 30)
    for nt in range(3):
        a(f"v_max_f32 v{M2[nt]}, v{M2[nt]}, v{M1[nt]}")
        a(f"v_sub_f32 v{BETA[nt]}, v{M1[nt]}, v{M2[nt]}")
    for nt in range(3): a(f"v_exp_f32 v{BETA[nt]}, v{BETA[nt]}")
    _exppack(a, (8, 10, 12, 14), M2)
    _rowsum(a, 1, ONES2, lambda nt: S_(13, nt))
    a_vaddr(R)
    for nt in range(3):
        a(f"v_fma_f32 v{M2[nt]+1}, v{BETA[nt]}, v{L1[nt]}, v{S_(13,nt)}")
    for nt in range(3):
        R.lds(f"ds_write_b64 v59, {vr(M2[nt],2)} offset:{128*nt}", "st")
    for nt in range(3):
        a(f"v_mov_b32 v{18+2*nt}, v{M2[nt]}"); a(f"v_mov_b32 v{19+2*nt}, v{M2[nt]+1}")
    R.wait_lg_all()

vXW, vXR, vOW = 52, 53, 54
def a_vaddr(R):
    a = R.a
    a(f"s_and_b32 s{sT1}, s{sIDX}, 1")
    a(f"v_lshrrev_b32 v32, 2, v{vL}")
    a(f"v_lshrrev_b32 v33, 1, v32"); a("v_and_b32 v33, 3, v33")
    a(f"s_lshl_b32 s{sT2}, s{sT1}, 14")
    a(f"v_lshlrev_b32 v34, 7, v32"); a(f"v_add_u32 v34, s{sT2}, v34")
    a(f"v_and_b32 v35, 3, v{vL}"); a(f"v_lshl_add_u32 v34, v35, 3, v34")
    a(f"s_lshl_b32 s{sT2}, s{sT1}, 1")
    a(f"v_xor_b32 v33, s{sT2}, v33")
    for mt in range(4):
        a(f"v_xor_b32 v35, {mt}, v33")
        a(f"v_lshl_add_u32 v{40+mt}, v35, 5, v34")
    a(f"s_mul_i32 s{sT0}, s{sIDX}, 384"); a(f"s_add_u32 s{sT0}, s{sT0}, {STAT}")
    a(f"v_lshlrev_b32 v59, 3, v{vQ}"); a(f"v_add_u32 v59, s{sT0}, v59")
    a(f"s_xor_b32 s{sT1}, s{sIDX}, 1"); a(f"s_mul_i32 s{sT1}, s{sT1}, 384"); a(f"s_add_u32 s{sT1}, s{sT1}, {STAT}")
    a(f"v_lshlrev_b32 v60, 3, v{vQ}"); a(f"v_add_u32 v60, s{sT1}, v60")

def a_alpha(R):
    a = R.a
    M2 = (18, 20, 22)
    for nt in range(3):
        R.lds(f"ds_read_b64 v[{32+2*nt}:{33+2*nt}], v60 offset:{128*nt}", "st")
    a(f"s_mul_i32 s{sT2}, s{sIDX}, 6144"); a(f"s_add_u32 s{sT2}, s{sT2}, {XB}")
    a(f"v_lshlrev_b32 v55, 4, v{vL}"); a(f"v_add_u32 v{vXW}, s{sT2}, v55")
    a(f"s_xor_b32 s{sT2}, s{sIDX}, 1"); a(f"s_mul_i32 s{sT2}, s{sT2}, 6144"); a(f"s_add_u32 s{sT2}, s{sT2}, {XB}")
    a(f"v_add_u32 v{vXR}, s{sT2}, v55")
    a(f"s_and_b32 s{sT1}, s{sIDX}, 1")
    a(f"s_lshr_b32 s{sT0}, s{sIDX}, 1"); a(f"s_mul_i32 s{sT2}, s{sT0}, {48*128}"); a(f"s_add_u32 s{sT2}, s{sT2}, {OB}")
    a(f"v_lshlrev_b32 v{vOW}, 7, v{vQ}"); a(f"v_add_u32 v{vOW}, s{sT2}, v{vOW}")
    a(f"s_lshl_b32 s{sT3}, s{sT1}, 2")
    a(f"v_or_b32 v55, s{sT3}, v{vGq}")
    a(f"v_lshrrev_b32 v56, 1, v{vQ}"); a("v_xor_b32 v55, v55, v56")
    a(f"v_lshl_add_u32 v{vOW}, v55, 4, v{vOW}")
    R.wait_lg_all()
    for nt in range(3):
        mo, lo = 32 + 2*nt, 33 + 2*nt
        m, l = M2[nt], M2[nt] + 1
        a(f"v_max_f32 v38, v{m}, v{mo}")
        a(f"v_sub_f32 v{ALO[nt]}, v{m}, v38"); a(f"v_sub_f32 v{ALP[nt]}, v{mo}, v38")
        a(f"v_exp_f32 v{ALO[nt]}, v{ALO[nt]}"); a(f"v_exp_f32 v{ALP[nt]}, v{ALP[nt]}")
        a(f"v_mul_f32 v38, v{l}, v{ALO[nt]}")
        a(f"v_fma_f32 v38, v{lo}, v{ALP[nt]}, v38")
        a("v_rcp_f32 v38, v38")
        a(f"v_mul_f32 v{ALO[nt]}, v{ALO[nt]}, v38"); a(f"v_mul_f32 v{ALP[nt]}, v{ALP[nt]}, v38")

def a_PV(R, n, dma=None):
    a = R.a
    j, w = n >> 1, n & 1
    buf = KVA if w == 0 else KVB
    frs = [(s, mt) for s in range(4) for mt in range(4)]
    if w == 1: frs = frs[:12] + [(3, 2), (3, 3), (3, 0), (3, 1)]
    NB = 4
    def rd(k):
        s, mt = frs[k]
        b = KF + 4*(k % NB)
        R.lds(f"ds_read_b64_tr_b16 {vr(b,2)}, v{40+mt} offset:{buf + 4096*s}", f"vf{k}")
        R.lds(f"ds_read_b64_tr_b16 {vr(b+2,2)}, v{40+mt} offset:{buf + 4096*s + 2048}", f"vf{k}")
    for k in range(NB-1): rd(k)
    if dma and not cfg.interleave:
        for ii in range(8): kv_dma(R, dma[0], dma[1], ii)
        dma = None
    for k, (s, mt) in enumerate(frs):
        if k + NB - 1 < len(frs): rd(k + NB - 1)
        if dma and k < 8: kv_dma(R, dma[0], dma[1], k)
        R.wait_lg(f"vf{k}")
        for nt in range(3):
            d = Oa(mt, nt)
            c = "0" if (w == 0 and s == 0) else vr(d)
            a(f"v_mfma_f32_16x16x32_bf16 {vr(d)}, {vr(KF + 4*(k % NB))}, {vr(Pf(w,s,nt))}, {c}")
        if w == 1 and k >= 14:
            m2 = k - 12
            for nt in range(3):
                R.lds(f"ds_write_b128 v{vXW}, {vr(Oa(m2,nt))} offset:{((m2-2)*3+nt)*1024}", "xw")

def a_rescale(R):
    a = R.a
    for mt in range(4):
        for nt in range(3):
            if cfg.unpack:
                for r in range(4): a(f"v_mul_f32 v{Oa(mt,nt)+r}, v{BETA[nt]}, v{Oa(mt,nt)+r}")
                continue
            for h2 in (0, 2):
                b = Oa(mt, nt) + h2
                a(f"v_pk_mul_f32 {vr(b,2)}, {vr(b,2)}, {vr(BETA[nt],2)} op_sel_hi:[1,0]")

def a_xwrite(R):
    a = R.a
    for mt in (2, 3):
        for nt in range(3):
            R.lds(f"ds_write_b128 v{vXW}, {vr(Oa(mt,nt))} offset:{((mt-2)*3+nt)*1024}", "xw")

def a_xfinal(R, dma=None):
    a = R.a
    for nt in range(3):
        for i in range(2):
            R.lds(f"ds_read_b128 {vr(XT(i,nt))}, v{vXR} offset:{(i*3+nt)*1024}", f"xr{nt}")
    if dma:
        for ii in range(8): kv_dma(R, dma[0], dma[1], ii)
    for nt in range(3):
        for i in range(2):
            if cfg.unpack:
                for r in range(4): a(f"v_mul_f32 v{Oa(i,nt)+r}, v{ALO[nt]}, v{Oa(i,nt)+r}")
                continue
            for h2 in (0, 2):
                b = Oa(i, nt) + h2
                a(f"v_pk_mul_f32 {vr(b,2)}, {vr(b,2)}, {vr(ALO[nt],2)} op_sel_hi:[1,0]")
    for nt in range(3):
        R.wait_lg(f"xr{nt}")
        for i in range(2):
            if cfg.unpack:
                for r in range(4): a(f"v_fma_f32 v{Oa(i,nt)+r}, v{XT(i,nt)+r}, v{ALP[nt]}, v{Oa(i,nt)+r}")
                continue
            for h2 in (0, 2):
                b, x = Oa(i, nt) + h2, XT(i, nt) + h2
                a(f"v_pk_fma_f32 {vr(b,2)}, {vr(x,2)}, {vr(ALP[nt],2)}, {vr(b,2)} op_sel_hi:[1,0,1]")
        d = XT(0, nt)
        a(f"v_cvt_pk_bf16_f32 v{d}, v{Oa(0,nt)}, v{Oa(0,nt)+1}")
        a(f"v_cvt_pk_bf16_f32 v{d+1}, v{Oa(0,nt)+2}, v{Oa(0,nt)+3}")
        a(f"v_cvt_pk_bf16_f32 v{d+2}, v{Oa(1,nt)}, v{Oa(1,nt)+1}")
        a(f"v_cvt_pk_bf16_f32 v{d+3}, v{Oa(1,nt)+2}, v{Oa(1,nt)+3}")
        R.lds(f"ds_write_b128 v{vOW}, {vr(d)} offset:{2048*nt}", "ow")

PRING = 0
vWqD = 20
vWqR = 21
vQW = 25
PT = 26
vWqR5 = 35
def Xf(s, nt): return 40 + (s*3 + nt)*4
def Qa(mt, nt): return 208 + (mt*3 + nt)*4

def p_lane(a):
    a(f"v_mbcnt_lo_u32_b32 v{PT}, -1, 0"); a(f"v_mbcnt_hi_u32_b32 v{PT}, -1, v{PT}")
    a(f"v_and_b32 v{PT+1}, 15, v{PT}"); a(f"v_lshrrev_b32 v{PT+2}, 4, v{PT}")

def p_setup_pre(a):
    l, q, g = PT, PT+1, PT+2
    p = sIDX
    p_lane(a)
    a(f"s_mul_i32 s{sXo}, s{p}, 896")
    a(f"s_lshr_b32 s{sT0}, s{p}, 1")
    a(f"v_xor_b32 v{PT+3}, s{sT0}, v{l}"); a(f"v_lshlrev_b32 v{PT+3}, 4, v{PT+3}")
    for k in range(4):
        a(f"v_xor_b32 v{PT+4+k}, {(2*k) << 4}, v{PT+3}")

def p_setup(R):
    a = R.a
    a(f"s_mov_b64 s[{sEX}:{sEX+1}], exec")
    a("s_mov_b32 exec_hi, 0x00ffffff")
    for ii in range(12):
        base = (KVB + 3584*ii) if ii < 8 else (QB + 3584*(ii-8))
        a(f"s_add_u32 m0, s{sXo}, {base}")
        a(f"s_add_u32 s{sT1}, s{sXo}, {3584*ii}")
        R.vmem(f"buffer_load_dwordx4 v{PT+4 + (ii % 4)}, {srd(SRD_X)}, s{sT1} offen lds", "x")
    a(f"s_mov_b64 exec, s[{sEX}:{sEX+1}]")

def p_setup2(R):
    a = R.a
    l, q, g = PT, PT+1, PT+2
    p = sIDX
    a(f"s_lshl_b32 s{sWp}, s{p}, 14"); a(f"s_add_u32 s{sWp}, s{sWp}, {WB}")
    wq_dma_pattern(a, vWqD, l, g, PT+3, PT+4)
    a(f"v_lshrrev_b32 v{PT+3}, 2, v{l}")
    a(f"v_lshrrev_b32 v{PT+4}, 1, v{PT+3}"); a(f"v_and_b32 v{PT+4}, 3, v{PT+4}")
    a(f"v_lshlrev_b32 v{PT+5}, 7, v{PT+3}"); a(f"v_add_u32 v{PT+5}, s{sWp}, v{PT+5}")
    a(f"v_and_b32 v{PT+6}, 3, v{l}"); a(f"v_lshl_add_u32 v{PT+5}, v{PT+6}, 3, v{PT+5}")
    for mt in range(4):
        a(f"v_xor_b32 v{PT+6}, {mt}, v{PT+4}")
        a(f"v_lshl_add_u32 v{vWqR+mt}, v{PT+6}, 5, v{PT+5}")
    a(f"s_and_b32 s{sT0}, s{sIDX}, 1"); a(f"s_mul_i32 s{sT0}, s{sT0}, {48*128}")
    a(f"s_lshr_b32 s{sT1}, s{sIDX}, 1"); a(f"s_mul_i32 s{sT1}, s{sT1}, 12288")
    a(f"s_add_u32 s{sT0}, s{sT0}, s{sT1}"); a(f"s_add_u32 s{sT0}, s{sT0}, {QB}")
    a(f"v_lshlrev_b32 v{PT+5}, 7, v{q}"); a(f"v_add_u32 v{PT+5}, s{sT0}, v{PT+5}")
    a(f"v_and_b32 v{PT+6}, 1, v{g}"); a(f"v_lshl_add_u32 v{PT+5}, v{PT+6}, 3, v{PT+5}")
    a(f"v_lshrrev_b32 v{PT+6}, 1, v{g}"); a(f"v_lshrrev_b32 v{PT+3}, 1, v{q}"); a(f"v_xor_b32 v{PT+6}, v{PT+6}, v{PT+3}")
    a(f"v_lshl_add_u32 v{vQW}, v{PT+6}, 4, v{PT+5}")
    a(f"v_lshrrev_b32 v{PT+3}, 1, v{q}")
    a(f"v_lshrrev_b32 v{PT+4}, 1, v{g}"); a(f"v_xor_b32 v{PT+4}, v{PT+4}, v{PT+3}")
    a(f"s_mov_b32 s{sT0}, 896"); a(f"v_mul_lo_u32 v{PT+5}, s{sT0}, v{q}")
    a(f"v_and_b32 v{PT+6}, 1, v{g}"); a(f"v_lshl_add_u32 v{PT+5}, v{PT+6}, 3, v{PT+5}")
    a(f"v_add_u32 v{PT+5}, {KVB}, v{PT+5}")
    for k in range(4):
        a(f"v_xor_b32 v{PT+6}, {2*k}, v{PT+4}")
        a(f"v_lshl_add_u32 v{PT+7+k}, v{PT+6}, 4, v{PT+5}")

def p_xfrags(R):
    a = R.a
    for pas in range(2):
        for s in range(14):
            for nt in ((0, 1) if pas == 0 else (2,)):
                for half in range(2):
                    k = 2*(s & 1) + half
                    off = (14336*nt if pas == 0 else 0) + 128*(s >> 1)
                    R.lds_guard(1)
                    R.lds(f"ds_read_b64 {vr(Xf(s,nt)+2*half,2)}, v{PT+7+k} offset:{off}", "xf")
        if pas == 0:
            R.wait_lg_all()
            for k in range(4): a(f"v_add_u32 v{PT+7+k}, {QB-KVB}, v{PT+7+k}")
    R.wait_lg_all()

def p_qcompute(R, kaps, stream_next, hooks=None):
    a = R.a
    D = cfg.dq; NB = D + 1
    hooks = hooks or {}
    frs = [(kap, mt) for kap in kaps for mt in range(4)]
    def rd(f):
        kap, mt = frs[f]
        if mt == 0: R.wait_vm(f"w{kap}")
        b = PRING + 4*(f % NB)
        area, off = wq_slot(kap)
        ad = (vWqR if area == 'own' else vWqR5) + mt
        R.lds(f"ds_read_b64_tr_b16 {vr(b,2)}, v{ad} offset:{off}", f"f{kap}_{mt}")
        R.lds(f"ds_read_b64_tr_b16 {vr(b+2,2)}, v{ad} offset:{off + 2048}", f"f{kap}_{mt}")
    for f in range(min(D, len(frs))): rd(f)
    for f, (kap, mt) in enumerate(frs):
        J, s = divmod(kap, 14)
        if f + D < len(frs): rd(f + D)
        if stream_next and cfg.j0s5 and kap >= 1 and kap + 4 < 14: wq_dma(R, kap + 4, vWqD, [mt])
        R.wait_lg(f"f{kap}_{mt}")
        if cfg.kst and mt == 0 and kap < 14 and kap % 2 == 0: lstamp(a, 26 + kap // 2)
        for nt in range(3):
            d = Qa(mt, nt)
            c = "0" if s == 0 else vr(d)
            a(f"v_mfma_f32_16x16x32_bf16 {vr(d)}, {vr(PRING + 4*(f % NB))}, {vr(Xf(s,nt))}, {c}")
        if stream_next and not cfg.j0s5 and mt == 3 and kap + NSLOT_Q < 14: wq_dma(R, kap + NSLOT_Q, vWqD)
        if mt == 3 and kap in hooks: hooks[kap]()
    last = kaps[-1]
    if last % 14 == 13:
        if cfg.kst and last == 13: lstamp(a, 33)
        k = 0
        for m2 in range(4):
            a(f"v_xor_b32 v{PT+8}, {32*m2}, v{vQW}")
            for nt in range(3):
                d = Qa(m2, nt)
                t = PT + 2*(k % 4); k += 1
                a(f"v_cvt_pk_bf16_f32 v{t}, v{d}, v{d+1}")
                a(f"v_cvt_pk_bf16_f32 v{t+1}, v{d+2}, v{d+3}")
                R.lds_guard(1)
                R.lds(f"ds_write_b64 v{PT+8}, {vr(t,2)} offset:{2048*nt}", "qw")
        R.wait_lg("qw")

ORING = 0
vWoD = 32
vWoR = 34
vOR = 42
VT = 48
ALT = 208
PUB = [216 + 4*i for i in range(10)] + [20, 24]
def Outa(i, nt): return 64 + (i*3 + nt)*4
def Of(ks, nt): return 160 + (ks*3 + nt)*4

def p_vsetup(R, wide):
    a = R.a
    l, q, g = VT, VT+1, VT+2
    a(f"v_mbcnt_lo_u32_b32 v{l}, -1, 0"); a(f"v_mbcnt_hi_u32_b32 v{l}, -1, v{l}")
    a(f"v_and_b32 v{q}, 15, v{l}"); a(f"v_lshrrev_b32 v{g}, 4, v{l}")
    a(f"s_lshl_b32 s{sT0}, s{sIDX}, 8")
    if wide:
        a(f"v_bfe_u32 v{VT+3}, v{l}, 1, 3"); a(f"v_xor_b32 v{VT+3}, v{VT+3}, v{g}")
        a(f"s_mov_b32 s{sT1}, 896"); a(f"v_mul_lo_u32 v{VT+4}, s{sT1}, v{g}")
        a(f"v_and_b32 v{VT+5}, 1, v{l}"); a(f"v_lshl_add_u32 v{VT+4}, v{VT+5}, 4, v{VT+4}")
        a(f"v_add_u32 v{VT+4}, s{sT0}, v{VT+4}")
        a(f"v_lshl_add_u32 v{vWoD}, v{VT+3}, 5, v{VT+4}")
        a(f"v_xor_b32 v{VT+3}, 4, v{VT+3}"); a(f"v_lshl_add_u32 v{vWoD+1}, v{VT+3}, 5, v{VT+4}")
        a(f"v_lshrrev_b32 v{VT+3}, 2, v{l}"); a(f"v_and_b32 v{VT+4}, 7, v{VT+3}")
        a(f"v_lshlrev_b32 v{VT+5}, 8, v{VT+3}")
    else:
        a(f"v_lshrrev_b32 v{VT+3}, 3, v{l}"); a(f"s_mov_b32 s{sT1}, 896"); a(f"v_mul_lo_u32 v{VT+4}, s{sT1}, v{VT+3}")
        a(f"v_bfe_u32 v{VT+3}, v{l}, 1, 2"); a(f"v_xor_b32 v{VT+3}, v{VT+3}, v{g}")
        a(f"v_lshl_add_u32 v{VT+4}, v{VT+3}, 5, v{VT+4}")
        a(f"v_and_b32 v{VT+5}, 1, v{l}"); a(f"v_lshl_add_u32 v{VT+4}, v{VT+5}, 4, v{VT+4}")
        a(f"v_add_u32 v{vWoD}, s{sT0}, v{VT+4}")
        a(f"v_lshrrev_b32 v{VT+3}, 2, v{l}")
        a(f"v_lshrrev_b32 v{VT+4}, 1, v{VT+3}"); a(f"v_and_b32 v{VT+4}, 3, v{VT+4}")
        a(f"v_lshlrev_b32 v{VT+5}, 7, v{VT+3}")
    a(f"v_and_b32 v{VT+6}, 3, v{l}"); a(f"v_lshl_add_u32 v{VT+5}, v{VT+6}, 3, v{VT+5}")
    a(f"s_lshl_b32 s{sT1}, s{sIDX}, 13")
    for mt in range(8 if wide else 4):
        a(f"v_xor_b32 v{VT+6}, {mt}, v{VT+4}")
        a(f"v_lshl_add_u32 v{VT+7}, v{VT+6}, 5, v{VT+5}")
        a(f"v_add_u32 v{vWoR+mt}, s{sWp}, v{VT+7}")
        a(f"v_add_u32 v{ALT+mt}, s{sT1}, v{VT+7}")
    a(f"v_lshrrev_b32 v{VT+3}, 1, v{q}"); a(f"v_xor_b32 v{VT+3}, v{g}, v{VT+3}")
    a(f"v_lshlrev_b32 v{VT+4}, 7, v{q}"); a(f"v_add_u32 v{VT+4}, {OB}, v{VT+4}")
    a(f"v_lshl_add_u32 v{vOR}, v{VT+3}, 4, v{VT+4}")
    a(f"v_xor_b32 v{VT+3}, 4, v{VT+3}"); a(f"v_lshl_add_u32 v{vOR+1}, v{VT+3}, 4, v{VT+4}")
    a(f"s_lshl_b32 s{sM0}, s{sIDX}, 13")

def wo_slot(kap, wide):
    slot = 8192 if wide else 4096
    special = {14: ('kv', KVA), 15: ('kv', KVB)}
    if kap in special: return special[kap]
    return ('own', (kap % 2)*slot)

def wo_dma(R, kap, wide, ii_list=None):
    a = R.a
    j, ks = divmod(kap, 4); h, s = divmod(ks, 2)
    row0 = 256*h + 32*s
    area, off = wo_slot(kap, wide)
    base = sWp if area == 'own' else sM0
    for ii in (ii_list if ii_list is not None else range(8 if wide else 4)):
        a(f"s_add_u32 m0, s{base}, {off + 1024*ii}")
        rows = 4*ii if wide else 8*ii
        a(f"s_add_u32 s{sT1}, s{sCOL+4+j}, {(row0 + rows)*896}")
        pat = vWoD + ((ii & 1) if wide else 0)
        R.vmem(f"buffer_load_dwordx4 v{pat}, {srd(SRD_WO)}, s{sT1} offen {cfg.w_flags} lds", f"o{kap}")

def p_ofrags(R):
    for k2 in range(4):
        for nt in range(3):
            R.lds_guard(1)
            R.lds(f"ds_read_b128 {vr(Of(k2,nt))}, v{vOR + (k2 & 1)} offset:{6144*(k2 >> 1) + 2048*nt}", f"of{k2}")

vPK0, vPK1, vPV, vPF = 44, 45, 46, 56
def p_kv_setup(R, first=False):
    a = R.a
    l, g = VT, VT+2
    a(f"s_lshl_b32 s{sM0}, s{sIDX}, 13")
    a(f"v_mbcnt_lo_u32_b32 v{l}, -1, 0"); a(f"v_mbcnt_hi_u32_b32 v{l}, -1, v{l}"); a(f"v_lshrrev_b32 v{g}, 4, v{l}")
    a(f"v_lshrrev_b32 v{VT+3}, 3, v{l}"); a(f"v_lshlrev_b32 v{VT+3}, 9, v{VT+3}")
    a(f"s_lshl_b32 s{sT1}, s{sIDX}, 15"); a(f"v_add_u32 v{VT+3}, s{sT1}, v{VT+3}")
    a(f"v_and_b32 v{VT+4}, 7, v{l}"); a(f"v_xor_b32 v{VT+5}, v{VT+4}, v{g}")
    a(f"v_lshl_add_u32 v{vPK0}, v{VT+5}, 4, v{VT+3}")
    a(f"v_xor_b32 v{VT+5}, 4, v{VT+5}"); a(f"v_lshl_add_u32 v{vPK1}, v{VT+5}, 4, v{VT+3}")
    a(f"v_lshrrev_b32 v{VT+5}, 1, v{VT+4}"); a(f"v_xor_b32 v{VT+5}, v{VT+5}, v{g}")
    a(f"v_lshl_add_u32 v{VT+5}, v{VT+5}, 5, v{VT+3}")
    a(f"v_and_b32 v{VT+4}, 1, v{l}"); a(f"v_lshl_add_u32 v{vPV}, v{VT+4}, 4, v{VT+5}")
    a(f"v_lshlrev_b32 v{vPF}, 7, v{l}")

def p_issue_KV(R, kind, n):
    a = R.a
    j, w = n >> 1, n & 1
    buf = KVA if w == 0 else KVB
    if kind == "K" and n >= 6: buf = T1 if n == 6 else T2
    for ii in range(8):
        a(f"s_add_u32 m0, s{sM0}, {buf + 1024*ii}")
        a(f"s_add_u32 s{sT1}, s{sCOL+j}, {131072*w + 4096*ii}")
        if kind == "K": R.vmem(f"buffer_load_dwordx4 v{vPK0 + (ii & 1)}, {srd(SRD_K)}, s{sT1} offen {cfg.k_flags} lds", f"K{n}")
        else: R.vmem(f"buffer_load_dwordx4 v{vPV}, {srd(SRD_V)}, s{sT1} offen {cfg.v_flags} lds", f"V{n}")

def p_tlb_warm(R):
    a = R.a
    if not cfg.tlbw: return
    a(f"s_lshl_b32 s{sT0}, s{sB}, 4"); a(f"s_lshl_b32 s{sT1}, s{sBR}, 2"); a(f"s_add_u32 s{sT0}, s{sT0}, s{sT1}")
    a(f"s_mul_i32 s{sT0}, s{sT0}, {PART}")
    a(f"v_mov_b32 v58, s{sT0}")
    a(f"s_add_u32 s{sT1}, s{sT0}, {11*PART + PART - 4}"); a(f"v_writelane_b32 v58, s{sT1}, 1")
    a(f"s_mul_i32 s{sT1}, s2, {PART}"); a(f"v_writelane_b32 v58, s{sT1}, 2")
    a(f"s_mul_i32 s{sT1}, s{sGRP}, {FSTR}"); a(f"s_add_u32 s{sT1}, s{sT1}, {FLG}"); a(f"v_writelane_b32 v58, s{sT1}, 3")
    a(f"s_mul_i32 s{sT2}, s{sB}, {48*1792}")
    a(f"s_mov_b64 s[{sEX}:{sEX+1}], exec"); a("s_mov_b64 exec, 0xf")
    R.vmem(f"buffer_load_dword v59, v58, {srd(SRD_WS)}, 0 offen sc0 sc1", "tlb")
    a("s_mov_b64 exec, 1"); a("v_mov_b32 v60, 0")
    R.vmem(f"buffer_load_dword v59, v60, {srd(SRD_OUT)}, s{sT2} offen sc0 sc1", "tlb")
    a(f"s_mov_b64 exec, s[{sEX}:{sEX+1}]")

def p_pf_wo(R):
    a = R.a
    if not cfg.pf: return
    a(f"s_mul_i32 s{sT2}, s{sB}, 28672"); a(f"s_lshl_b32 s{sT3}, s{sIDX}, 13"); a(f"s_add_u32 s{sT2}, s{sT2}, s{sT3}")
    a(f"s_cmp_eq_u32 s{sIDX}, 3"); a("s_cselect_b32 exec_hi, 0, -1")
    R.vmem(f"buffer_load_dword v57, v{vPF}, {srd(SRD_WO)}, s{sT2} offen {cfg.pf_flags}", "pf")
    a("s_mov_b32 exec_hi, -1")

def p_of(R, k2):
    for nt in range(3):
        R.lds_guard(1)
        R.lds(f"ds_read_b128 {vr(Of(k2,nt))}, v{vOR + (k2 & 1)} offset:{6144*(k2 >> 1) + 2048*nt}", f"of{k2}")

def p_ocompute(R, kaps, wide, inter=None, ofr=False):
    a = R.a
    NT = 8 if wide else 4
    D = 4; NB = 5
    rowb = 256 if wide else 128
    inter = inter or {}
    frs = [(kap, mt) for kap in kaps for mt in range(NT)]
    def rd(f):
        kap, mt = frs[f]
        if mt == 0: R.wait_vm(f"o{kap}")
        b = ORING + 4*(f % NB)
        area, off = wo_slot(kap, wide)
        addr = (vWoR if area == 'own' else ALT) + mt
        R.lds_guard(2)
        R.lds(f"ds_read_b64_tr_b16 {vr(b,2)}, v{addr} offset:{off}", f"f{kap}_{mt}")
        R.lds(f"ds_read_b64_tr_b16 {vr(b+2,2)}, v{addr} offset:{off + 16*rowb}", f"f{kap}_{mt}")
    if ofr: p_of(R, 0)
    for f in range(D): rd(f)
    for f, (kap, mt) in enumerate(frs):
        j, ks = divmod(kap, 4)
        if f + D < len(frs): rd(f + D)
        if ofr and f < 3: p_of(R, f + 1)
        for (k2, ii) in inter.get(f, []): wo_dma(R, k2, wide, [ii])
        R.wait_lg(f"f{kap}_{mt}")
        if mt == 0: R.wait_lg(f"of{ks}")
        for nt in range(3):
            d = Outa(mt, nt)
            c = "0" if kap == 0 else vr(d)
            a(f"v_mfma_f32_16x16x32_bf16 {vr(d)}, {vr(ORING + 4*(f % NB))}, {vr(Of(ks,nt))}, {c}")
        if cfg.tst and mt == NT - 1 and kap >= 10: lstamp(a, 26 + kap - 10)

def p_oproj_phase(R, bar, wide):
    a = R.a
    NT = 8 if wide else 4
    nbar = 0
    def b1():
        nonlocal nbar
        bar(); nbar += 1
    b1()
    if cfg.wo_first_after >= 6: wo_dma(R, 0, wide); wo_dma(R, 1, wide)
    b1()
    if cfg.pvprio: a(f"s_setprio {cfg.pvprio}")
    for j in range(3):
        a.comment(f"---- O projection chunk {j}")
        p_ocompute(R, [4*j, 4*j+1], wide, ofr=True)
        wo_dma(R, 4*j+2, wide); wo_dma(R, 4*j+3, wide)
        b1()
        if j < 2:
            p_ocompute(R, [4*j+2, 4*j+3], wide)
            wo_dma(R, 4*j+4, wide); wo_dma(R, 4*j+5, wide)
        else:
            if cfg.p7prio: a(f"s_setprio {cfg.p7prio}")
            if cfg.d14first:
                wo_dma(R, 14, wide); inter = {}
            else:
                inter = {f: [(14, f)] for f in range(NT)}
            inter.update({NT + f: [(12, f)] for f in range(NT)})
            p_ocompute(R, [10, 11], wide, inter=inter)
            wo_dma(R, 13, wide)
        b1()
    p_ocompute(R, [12, 13], wide, inter={f: [(15, f)] for f in range(NT)}, ofr=True)
    p_ocompute_last(R, wide)
    return nbar

def p_ocompute_last(R, wide):
    a = R.a
    NT = 8 if wide else 4
    D = 4; NB = 5
    rowb = 256 if wide else 128
    frs = [(kap, 2*ip + t) for ip in range(NT//2) for kap in (14, 15) for t in range(2)]
    def rd(f):
        kap, mt = frs[f]
        if f == 0: R.wait_vm("o14"); R.wait_vm("o15")
        b = ORING + 4*(f % NB)
        area, off = wo_slot(kap, wide)
        addr = (vWoR if area == 'own' else ALT) + mt
        R.lds_guard(2)
        R.lds(f"ds_read_b64_tr_b16 {vr(b,2)}, v{addr} offset:{off}", f"g{f}")
        R.lds(f"ds_read_b64_tr_b16 {vr(b+2,2)}, v{addr} offset:{off + 16*rowb}", f"g{f}")
    a(f"v_mbcnt_lo_u32_b32 v{VT}, -1, 0"); a(f"v_mbcnt_hi_u32_b32 v{VT}, -1, v{VT}"); a(f"v_lshlrev_b32 v{VT}, 4, v{VT}")
    a(f"s_mul_i32 s{sT2}, s2, {PART}"); a(f"s_mul_i32 s{sT3}, s{sIDX}, {12*1024}"); a(f"s_add_u32 s{sT2}, s{sT2}, s{sT3}")
    npub = 0
    def pub_pair(ip):
        nonlocal npub
        for nt in range(3):
            t = PUB[npub]; npub += 1
            d0, d1 = Outa(2*ip, nt), Outa(2*ip+1, nt)
            a(f"v_cvt_pk_bf16_f32 v{t}, v{d0}, v{d0+1}"); a(f"v_cvt_pk_bf16_f32 v{t+1}, v{d0+2}, v{d0+3}")
            a(f"v_cvt_pk_bf16_f32 v{t+2}, v{d1}, v{d1+1}"); a(f"v_cvt_pk_bf16_f32 v{t+3}, v{d1+2}, v{d1+3}")
            a(f"s_add_u32 s{sT1}, s{sT2}, {1024*(ip*3 + nt)}")
            R.vmem(f"buffer_store_dwordx4 {vr(t)}, v{VT}, {srd(SRD_WS)}, s{sT1} offen sc0 sc1", "pub")
    for f in range(D): rd(f)
    for f, (kap, mt) in enumerate(frs):
        ks = kap % 4
        if f + D < len(frs): rd(f + D)
        R.wait_lg(f"g{f}")
        for nt in range(3):
            d = Outa(mt, nt)
            a(f"v_mfma_f32_16x16x32_bf16 {vr(d)}, {vr(ORING + 4*(f % NB))}, {vr(Of(ks,nt))}, {vr(d)}")
        if f % 4 == 1 and f >= 5: pub_pair(f//4 - 1)
    pub_pair(NT//2 - 1)

def p_flag(R):
    a = R.a
    if cfg.tst: lstamp(a, 32)
    R.wait_vm_all()
    if cfg.tst: lstamp(a, 33)
    a(f"s_mul_i32 s{sT0}, s{sGRP}, {FSTR}"); a(f"s_add_u32 s{sT0}, s{sT0}, {FLG}")
    a(f"s_lshl_b32 s{sT1}, s{sG}, 2"); a(f"s_add_u32 s{sT1}, s{sT1}, s{sIDX}"); a(f"s_lshl_b32 s{sT1}, s{sT1}, 2")
    a(f"v_mov_b32 v2, s{sT1}"); a("v_mov_b32 v1, 1")
    a(f"s_mov_b64 s[{sEX}:{sEX+1}], exec")
    a("s_mov_b64 exec, 1")
    a(f"buffer_store_dword v1, v2, {srd(SRD_WS)}, s{sT0} offen sc0 sc1")
    a(f"s_mov_b64 exec, s[{sEX}:{sEX+1}]")

def emit_reduce(a):
    a.label("L_tail")
    if cfg.stamps: stamp(a, 50)
    a(f"s_min_u32 s{sT0}, s{sG}, 2"); a(f"s_mul_i32 s{sT1}, s{sG}, 5"); a(f"s_add_u32 s{sT0}, s{sT0}, s{sT1}")
    a(f"s_cmp_lt_u32 s{sG}, 2"); a(f"s_cselect_b32 s{sT1}, 6, 5")
    a(f"s_mov_b32 s80, s{sT1}")
    a(f"s_add_u32 s{sT0}, s{sT0}, s{sWAVE}")
    a("v_mbcnt_lo_u32_b32 v3, -1, 0"); a("v_mbcnt_hi_u32_b32 v3, -1, v3")
    a("v_lshlrev_b32 v6, 4, v3"); a("v_lshlrev_b32 v0, 2, v3")
    a(f"s_mul_i32 s{sT2}, s{sT0}, 171"); a(f"s_lshr_b32 s{sT2}, s{sT2}, 9")
    a(f"s_mul_i32 s{sT3}, s{sT2}, 3"); a(f"s_sub_u32 s{sT3}, s{sT0}, s{sT3}")
    a(f"s_lshl_b32 s{sT3}, s{sT3}, 4"); a(f"s_mul_i32 s{sT1}, s{sB}, 48"); a(f"s_add_u32 s{sT3}, s{sT3}, s{sT1}")
    a(f"s_mul_i32 s{sT3}, s{sT3}, 1792"); a(f"s_lshl_b32 s{sT2}, s{sT2}, 6"); a(f"s_add_u32 s{sT3}, s{sT3}, s{sT2}")
    a(f"s_mul_i32 s{sT1}, s{sBR}, 896"); a(f"s_add_u32 s78, s{sT3}, s{sT1}") if not cfg.lstamps else None
    if cfg.lstamps: a(f"s_mul_i32 s{sT1}, s{sBR}, 896"); a(f"s_add_u32 s100, s{sT3}, s{sT1}")
    sOUT = 100 if cfg.lstamps else 78
    a("v_and_b32 v7, 15, v3"); a(f"s_mov_b32 s{sT1}, 1792"); a(f"v_mul_lo_u32 v7, s{sT1}, v7")
    a("v_bfe_u32 v8, v3, 4, 1"); a("v_lshl_add_u32 v7, v8, 5, v7")
    a("v_lshrrev_b32 v8, 5, v3"); a("v_lshl_add_u32 v7, v8, 4, v7")
    a(f"s_lshl_b32 s{sT1}, s{sB}, 4"); a(f"s_lshl_b32 s{sT2}, s{sBR}, 2"); a(f"s_add_u32 s{sT1}, s{sT1}, s{sT2}")
    a(f"s_mul_i32 s{sT1}, s{sT1}, {PART}"); a(f"s_lshl_b32 s{sT2}, s{sT0}, 10"); a(f"s_add_u32 s{sT3}, s{sT1}, s{sT2}")
    if cfg.latepoll: a("s_barrier")
    a(f"s_cmp_lg_u32 s{sWAVE}, 0"); a("s_cbranch_scc1 L_nopoll")
    a(f"s_mul_i32 s{sT0}, s{sGRP}, {FSTR}"); a(f"s_add_u32 s{sT0}, s{sT0}, {FLG}")
    a(f"s_mov_b64 s[{sEX}:{sEX+1}], exec")
    a("s_mov_b32 exec_hi, 0")
    a(f"s_mov_b32 s{sT2}, 0")
    a.label("L_poll")
    a(f"buffer_load_dword v4, v0, {srd(SRD_WS)}, s{sT0} offen sc0 sc1")
    a("s_waitcnt vmcnt(0)")
    a("v_cmp_eq_u32 vcc, 1, v4")
    a("s_cmp_eq_u32 vcc_lo, -1")
    a("s_cbranch_scc1 L_poll_done")
    a(f"s_add_u32 s{sT2}, s{sT2}, 1")
    a(f"s_cmp_ge_u32 s{sT2}, 400000")
    a("s_cbranch_scc1 L_poll_done")
    if cfg.sleep: a(f"s_sleep {cfg.sleep}")
    a("s_branch L_poll")
    a.label("L_poll_done")
    a(f"s_mov_b64 exec, s[{sEX}:{sEX+1}]")
    a.label("L_nopoll")
    a("s_barrier")
    a(f"s_cmp_ge_u32 s{sWAVE}, s80")
    a("s_cbranch_scc1 " + ("L_nogather" if cfg.stamps else ("L_mini" if cfg.mini else "L_end")))
    if cfg.stamps: stamp(a, 52)
    for k in range(8):
        gb, gp = k >> 2, k & 3
        a(f"s_add_u32 s{sT2}, s{sT3}, {(gb*8 + gp)*PART}")
        a(f"buffer_load_dwordx4 {vr(64+4*k)}, v6, {srd(SRD_WS)}, s{sT2} offen sc0 sc1")
    acc = 16
    for k in range(8):
        a(f"s_waitcnt vmcnt({7-k})")
        for r in range(4):
            src = 64 + 4*k + r
            if k == 0:
                a(f"v_lshlrev_b32 v{acc+2*r}, 16, v{src}"); a(f"v_and_b32 v{acc+2*r+1}, 0xffff0000, v{src}")
            else:
                t = 8 + 2*(r & 1) + 2
                a(f"v_lshlrev_b32 v{t}, 16, v{src}"); a(f"v_and_b32 v{t+1}, 0xffff0000, v{src}")
                a(f"v_pk_add_f32 {vr(acc+2*r,2)}, {vr(acc+2*r,2)}, {vr(t,2)}")
    for r in range(4):
        a(f"v_cvt_pk_bf16_f32 v{12+r}, v{acc+2*r}, v{acc+2*r+1}")
    a("v_permlane16_swap_b32 v12, v14")
    a("v_permlane16_swap_b32 v13, v15")
    a(f"buffer_store_dwordx4 v[12:15], v7, {srd(SRD_OUT)}, s{sOUT} offen")
    if cfg.stamps:
        a("s_waitcnt vmcnt(0)")
        a.label("L_nogather")
        stamp(a, 53)
        a("s_memtime s[74:75]"); a("s_waitcnt lgkmcnt(0)"); a("v_writelane_b32 v61, s74, 61")
        stamp_store(a)
    if cfg.mini:
        a.label("L_mini")
        a("s_memrealtime s[72:73]"); a("s_waitcnt vmcnt(0) lgkmcnt(0)")
        a("s_memrealtime s[72:73]"); a("s_waitcnt lgkmcnt(0)")
        a("v_mov_b32 v61, 0"); a("v_writelane_b32 v61, s90, 62"); a("v_writelane_b32 v61, s72, 53")
        stamp_store(a)
    a.label("L_end")
    a("s_endpgm")

def build():
    a = Asm()
    if cfg.mini:
        a("s_memrealtime s[90:91]")
    if cfg.stamps:
        a("s_memrealtime s[72:73]"); a("s_memtime s[74:75]"); a("s_waitcnt lgkmcnt(0)")
        a("v_writelane_b32 v61, s72, 62"); a("v_writelane_b32 v61, s74, 60")
    emit_prologue(a)
    cnt = {"n": 0}
    def bar():
        a("s_barrier")
        if cfg.stamps: stamp(a, cnt["n"])
        cnt["n"] += 1
    A = Role(a)
    if cfg.prioA: a(f"s_setprio {cfg.prioA}")
    a_setup(A)
    if cfg.pf_first: a_pf(A, "wq")
    bar()
    if not cfg.pf_first: a_pf(A, "wq")
    a_setup2(A)
    bar()
    a0_flag_zero(A)
    for kap in range(4): wq_dma(A, kap, vWqA)
    a_issue_KV(A, "K", 0)
    a_setup3(A)
    a_pair_init(A)
    A.wait_vm("w3")
    a0_flag_mark(A)
    bar()
    bar()
    a_issue_KV(A, "K", 1)
    A.wait_vm("K0")
    bar()
    a_S(A, 0)
    A.wait_vm("K1")
    bar()
    a_S(A, 1, dma=("K", 2)); A.wait_vm("K2"); bar()
    a_flag_load(A)
    a_S(A, 2, dma=("K", 3)); A.wait_vm("K3"); a_flag_check(A); bar()
    a_S(A, 3, dma=("K", 4)); A.wait_vm("K4"); bar()
    a_issue_KV(A, "K", 5)
    bar()
    a_S(A, 4)
    A.wait_vm("K5")
    bar()
    a_S(A, 5)
    bar()
    a_S(A, 6)
    if cfg.split_sm: a_softmax1(A)
    bar()
    a_S(A, 7)
    if not cfg.split_sm: a_softmax1(A)
    a_softmax2(A)
    bar()
    for n in range(8):
        dma = ("V", n+1) if 1 <= n <= 6 else None
        if cfg.prio7 and n == cfg.prio7from: a(f"s_setprio {cfg.prio7}")
        a_PV(A, n, dma)
        if n == 0:
            a_alpha(A); a_pair_addr(A)
        if n % 2 == 0:
            a_rescale(A)
        else:
            a_pair_sync(A, n >> 1)
            a_xfinal(A)
        if 1 <= n < 7: A.wait_vm(f"V{n+1}")
        A.wait_lg_all()
        bar()
    nA = cnt["n"]
    A.wait_vm_all()
    a("s_branch L_tail")
    a.label("L_P")
    cnt["n"] = 0
    P = Role(a)
    stamp_move(a, 39)
    if cfg.stamps: stamp(a, 55)
    if cfg.prioP: a(f"s_setprio {cfg.prioP}")
    P.vm += ["x"]*12
    if cfg.stamps: stamp(a, 56)
    bar()
    p_setup2(P)
    P.wait_vm("x"); bar()
    p_xfrags(P)
    if cfg.j0s5:
        a(f"s_lshl_b32 s{sWq5}, s{sIDX}, 12"); a(f"s_add_u32 s{sWq5}, s{sWq5}, {QB}")
        a(f"s_sub_u32 s{sT0}, s{sWq5}, s{sWp}")
        for mt in range(4): a(f"v_add_u32 v{vWqR5+mt}, s{sT0}, v{vWqR+mt}")
    bar()
    if cfg.j0s5: wq_dma(P, 4, vWqD)
    p_qcompute(P, list(range(14)), True, hooks={cfg.k1_after: bar})
    bar()
    if cfg.pkprio: a(f"s_setprio {cfg.pkprio}")
    for kap in (14, 15, 16, 17): wq_dma(P, kap, vWqD)
    bar()
    for kaps, nxt in (([14,15], [18,19]), ([16,17,18,19], [20,21,22,23]), ([20,21,22,23], [24,25,26,27]), ([24,25,26,27], [])):
        p_qcompute(P, kaps, False)
        for kap in nxt: wq_dma(P, kap, vWqD)
        bar()
    if cfg.pkprio: a("s_setprio 0")
    a(f"s_cmp_eq_u32 s{sIDX}, 3")
    a("s_cbranch_scc1 L_P3")
    base = cnt["n"]
    for wide in (True, False):
        if not wide:
            a.label("L_P3"); cnt["n"] = base
        Pw = Role(a)
        STREG[0] = 39
        stamp_move(a, 47)
        p_kv_setup(Pw, first=True)
        p_issue_KV(Pw, "K", 6)
        p_vsetup(Pw, wide)
        bar()
        p_issue_KV(Pw, "K", 7); Pw.wait_vm("K6"); bar()
        p_issue_KV(Pw, "V", 0); Pw.wait_vm("K7"); bar()
        p_issue_KV(Pw, "V", 1); p_pf_wo(Pw); p_tlb_warm(Pw); Pw.wait_vm("V0"); bar()
        Pw.wait_vm("V1")
        nb = p_oproj_phase(Pw, bar, wide)
        assert nb == 8, nb
        if cfg.stamps: stamp(a, 59)
        p_flag(Pw)
        if cfg.stamps: stamp(a, 58)
        assert cnt["n"] == nA, (cnt["n"], nA)
        stamp_move(a, 61)
        if wide: a("s_branch L_tail")
    emit_reduce(a)
    a.finalize()
    return a

HEADER = open("cdna_kernels/" + NAME + ".s.ref").read().split("; Override launch")[0]
def full_text(a):
    s = HEADER
    s += f"; @launch grid=(256,1,1) block=(512,1,1) lds={LDS_BYTES}\n"
    s += f'.amdgcn_target "amdgcn-amd-amdhsa--gfx950"\n.text\n.globl {NAME}_kernel\n.p2align 8\n.type {NAME}_kernel,@function\n{NAME}_kernel:\n'
    body = a.text()
    if cfg.icpf:
        body = body.replace("  s_endpgm\n", "  s_endpgm\nL_code_end:\n") if body.count("s_endpgm") == 1 else body + "L_code_end:\n"
        body = body.replace("CODE_BYTES", f"L_code_end-{NAME}_kernel")
    s += body
    s += f""".section .rodata,"a"
.p2align 6
.amdhsa_kernel {NAME}_kernel
  .amdhsa_next_free_vgpr 256
  .amdhsa_next_free_sgpr 102
  .amdhsa_accum_offset 256
  .amdhsa_group_segment_fixed_size 0
  .amdhsa_kernarg_size 104
  .amdhsa_user_sgpr_count 2
  .amdhsa_user_sgpr_kernarg_segment_ptr 1
  .amdhsa_system_sgpr_workgroup_id_x 1
.end_amdhsa_kernel
"""
    return s

if __name__ == "__main__":
    out = sys.argv[1] if len(sys.argv) > 1 else "cdna_kernels/" + NAME + ".s"
    for kv in sys.argv[2:]:
        k, v = kv.split("=", 1)
        cur = getattr(cfg, k)
        if isinstance(cur, bool): v = v.lower() in ("1", "true")
        elif isinstance(cur, int): v = int(v)
        setattr(cfg, k, v)
    a = build()
    open(out, "w").write(full_text(a))
    print("wrote", out, "instrs:", sum(1 for i in a.ins if i.kind not in ('none','label')), "nops inserted:", a.nops_inserted)
```

```python
import sys, math, struct
from asmlib import Asm

NAME = "concat_heads__gqa_block_cached__gqa_block_cached__near_ridge"

class Cfg:
    k_flags = "nt"
    v_flags = "nt"
    w_flags = ""
    pf = True
    pf_flags = ""
    stamps = False
    lstamps = False
    mini = False
    prioA = 0
    prioP = 0
    dq = 4
    pf_wo_at = 8
    k1_after = 9
    split_sm = True
    sleep = 0
    interleave = False
    pf_first = False
    wo_first_after = 7
    tst = False
    pv_all = True
    latepoll = True
    pvprio = 0
    pkprio = 0
    p7prio = 0
    d14first = False
    tlbw = True
    icpf = True
    prio7 = 0
    prio7from = 7
    pkv = True
    unpack = True
    j0s5 = True
    rot = 1
    kst = False
cfg = Cfg()

KVA, KVB = 0, 32768
WB = 65536
QB = 131072
OB = 122880
XB = 135168
STAT = 159744
PFL = 161280
LDS_BYTES = 163840
PART = 43008
FLG = 16 << 20
FSTR = 8448
sWAVE, sIDX, sG, sB, sBR = 3, 4, 5, 6, 7
SRD_K, SRD_V, SRD_WQ, SRD_WO, SRD_X, SRD_OUT, SRD_WS = 8, 12, 16, 20, 24, 28, 32
sDBG = 58
sM0, sWp = 62, 63
sC = 64
sT0, sT1, sT2, sT3 = 66, 67, 68, 69
sEX = 70
sGRP, sXo = 76, 77
sCOL = 36
sJ = 44
def srd(b): return f"s[{b}:{b+3}]"
def vr(b, n=4): return f"v[{b}:{b+n-1}]"
def f32bits(x): return struct.unpack('<I', struct.pack('<f', x))[0]
vL, vQ, vGq = 44, 46, 47

class Role:
    def __init__(self, a): self.a = a; self.vm = []; self.lg = []
    def vmem(self, text, tag): self.a(text); self.vm.append(tag)
    def lds(self, text, tag): self.a(text); self.lg.append(tag)
    def wait_vm(self, tag):
        idx = [i for i, t in enumerate(self.vm) if t == tag]
        if not idx: return
        n = len(self.vm) - 1 - idx[-1]
        assert n <= 63
        self.a(f"s_waitcnt vmcnt({n})"); self.vm = self.vm[idx[-1]+1:]
    def wait_lg(self, tag):
        idx = [i for i, t in enumerate(self.lg) if t == tag]
        if not idx: return
        n = len(self.lg) - 1 - idx[-1]
        assert n <= 15, n
        self.a(f"s_waitcnt lgkmcnt({n})"); self.lg = self.lg[idx[-1]+1:]
    def wait_vm_all(self): self.a("s_waitcnt vmcnt(0)"); self.vm = []
    def wait_lg_all(self): self.a("s_waitcnt lgkmcnt(0)"); self.lg = []
    def lds_guard(self, n_new):
        if len(self.lg) + n_new > 15:
            keep = 15 - n_new
            self.a(f"s_waitcnt lgkmcnt({keep})"); self.lg = self.lg[len(self.lg)-keep:] if keep else []

STREG = [61]
PEND = []
def stamp(a, idx):
    a("s_memrealtime s[72:73]")
    a("s_waitcnt lgkmcnt(0)")
    a(f"v_writelane_b32 v{STREG[0]}, s72, {idx}")
    for (sp, i2) in PEND: a(f"v_writelane_b32 v{STREG[0]}, s{sp}, {i2}")
    PEND.clear()
def lstamp(a, idx):
    if not cfg.lstamps: return
    sp = 78 + 2*len(PEND)
    assert sp <= 98
    a(f"s_memrealtime s[{sp}:{sp+1}]")
    PEND.append((sp, idx))
def stamp_move(a, new):
    if cfg.stamps: a(f"v_mov_b32 v{new}, v{STREG[0]}")
    STREG[0] = new
def stamp_store(a):
    a(f"s_lshl_b32 s{sT0}, s2, 3"); a(f"s_add_u32 s{sT0}, s{sT0}, s{sWAVE}"); a(f"s_lshl_b32 s{sT0}, s{sT0}, 8")
    a("v_mbcnt_lo_u32_b32 v60, -1, 0"); a("v_mbcnt_hi_u32_b32 v60, -1, v60")
    a(f"v_lshlrev_b32 v60, 2, v60"); a(f"v_add_u32 v60, s{sT0}, v60")
    a("s_add_u32 s74, s60, 0x2000000"); a("s_addc_u32 s75, s61, 0")
    a("global_store_dword v60, v61, s[74:75]")
    a("s_waitcnt vmcnt(0)")

def emit_prologue(a):
    a("s_cmp_ge_u32 s2, 256")
    a("s_cbranch_scc1 L_end")
    a("s_load_dwordx16 s[36:51], s[0:1], 0")
    a("s_load_dwordx4 s[52:55], s[0:1], 64")
    a("s_load_dwordx4 s[56:59], s[0:1], 80")
    a("s_load_dwordx2 s[60:61], s[0:1], 96")
    a("v_and_b32 v44, 63, v0")
    a("v_lshrrev_b32 v45, 6, v0")
    a("v_and_b32 v46, 15, v44")
    a("v_lshrrev_b32 v47, 4, v44")
    a(f"v_readfirstlane_b32 s{sWAVE}, v45")
    a(f"s_bfe_u32 s{sBR}, s2, 0x10002")
    a(f"s_and_b32 s{sG}, s2, 3"); a(f"s_lshl_b32 s{sG}, s{sG}, 1")
    a(f"s_bfe_u32 s{sT0}, s2, 0x10003"); a(f"s_or_b32 s{sG}, s{sG}, s{sT0}")
    a(f"s_lshr_b32 s{sB}, s2, 4")
    a(f"s_and_b32 s{sIDX}, s{sWAVE}, 3")
    a(f"s_lshl_b32 s{sGRP}, s{sBR}, 4"); a(f"s_add_u32 s{sGRP}, s{sGRP}, s{sB}")
    a(f"s_mov_b32 s{sC}, 0x{f32bits(math.log2(math.e)/16.0):08x}"); a(f"s_mov_b32 s{sC+1}, s{sC}")
    a_code_prefetch(Role(a))
    p_setup_pre(a)
    a("s_waitcnt lgkmcnt(0)")
    if cfg.stamps: stamp(a, 54)
    a(f"s_cmp_eq_u32 s{sBR}, 0")
    a("s_cselect_b64 s[36:37], s[36:37], s[46:47]")
    def mk(srdb, ptr, off_s, size):
        if off_s is None:
            a(f"s_mov_b32 s{srdb}, s{ptr}"); a(f"s_and_b32 s{srdb+1}, s{ptr+1}, 0xffff")
        else:
            a(f"s_add_u32 s{srdb}, s{ptr}, s{off_s}")
            a(f"s_addc_u32 s{srdb+1}, s{ptr+1}, 0")
            a(f"s_and_b32 s{srdb+1}, s{srdb+1}, 0xffff")
        if isinstance(size, int): a(f"s_mov_b32 s{srdb+2}, {size}")
        else: a(size)
        a(f"s_mov_b32 s{srdb+3}, 0x20000")
    a(f"s_mul_i32 s{sT1}, s{sB}, 43008")
    mk(SRD_X, 36, sT1, 43008)
    a(f"s_cmp_lt_u32 s{sWAVE}, 4"); a("s_cbranch_scc1 L_nox")
    PX = Role(a); p_setup(PX)
    a.label("L_nox")
    a(f"s_cmp_eq_u32 s{sBR}, 0")
    for i in range(1, 5):
        a(f"s_cselect_b64 s[{36+2*i}:{37+2*i}], s[{36+2*i}:{37+2*i}], s[{46+2*i}:{47+2*i}]")
    a(f"s_lshl_b32 s{sT1}, s{sG}, 10")
    mk(SRD_WQ, 42, sT1, f"s_sub_u32 s{SRD_WQ+2}, {448*8192}, s{sT1}")
    a(f"s_lshl_b32 s{sT0}, s{sB}, 3"); a(f"s_add_u32 s{sT0}, s{sT0}, s{sG}"); a(f"s_lshl_b32 s{sT0}, s{sT0}, 18")
    mk(SRD_K, 38, sT0, 262144)
    mk(SRD_V, 40, sT0, 262144)
    a(f"s_mul_i32 s{sT1}, s{sG}, 458752")
    mk(SRD_WO, 44, sT1, 458752)
    mk(SRD_OUT, 56, None, 16*48*896*2)
    mk(SRD_WS, 60, None, FLG + 32*FSTR)
    if cfg.rot == 0:
        for j in range(4):
            a(f"s_movk_i32 s{sCOL+j}, {128*j}"); a(f"s_mov_b32 s{sCOL+4+j}, {64*j*896}")
        a(f"s_lshr_b32 s{sT2}, s{sIDX}, 1"); a(f"s_lshl_b32 s{sJ}, s{sT2}, 7"); a(f"s_add_u32 s{sJ+1}, s{sJ}, 256")
    else:
        if cfg.rot == 0: a(f"s_mov_b32 s{sT0}, 0")
        elif cfg.rot == 1: a(f"s_and_b32 s{sT0}, s{sB}, 3")
        elif cfg.rot == 2: a(f"s_add_u32 s{sT0}, s{sB}, s{sG}"); a(f"s_and_b32 s{sT0}, s{sT0}, 3")
        elif cfg.rot == 3: a(f"s_and_b32 s{sT0}, s{sB}, 1"); a(f"s_lshl_b32 s{sT0}, s{sT0}, 1")
        for j in range(4):
            a(f"s_add_u32 s{sT1}, s{sT0}, {j}"); a(f"s_and_b32 s{sT1}, s{sT1}, 3")
            a(f"s_lshl_b32 s{sCOL+j}, s{sT1}, 7"); a(f"s_mul_i32 s{sCOL+4+j}, s{sT1}, {64*896}")
        a(f"s_lshr_b32 s{sT2}, s{sIDX}, 1")
        for J in range(2):
            a(f"s_add_u32 s{sT1}, s{sT0}, s{sT2}"); a(f"s_add_u32 s{sT1}, s{sT1}, {2*J}"); a(f"s_and_b32 s{sT1}, s{sT1}, 3")
            a(f"s_lshl_b32 s{sJ+J}, s{sT1}, 7")
    a(f"s_cmp_ge_u32 s{sWAVE}, 4")
    a("s_cbranch_scc1 L_P")

def wq_dma_pattern(a, dst, l, g, t0, t1):
    a(f"v_lshrrev_b32 v{t0}, 3, v{l}"); a(f"v_lshlrev_b32 v{t0}, 13, v{t0}")
    a(f"v_bfe_u32 v{t1}, v{l}, 1, 2"); a(f"v_xor_b32 v{t1}, v{t1}, v{g}")
    a(f"v_lshl_add_u32 v{t0}, v{t1}, 5, v{t0}")
    a(f"v_and_b32 v{t1}, 1, v{l}"); a(f"v_lshl_add_u32 v{t0}, v{t1}, 4, v{t0}")
    a(f"s_and_b32 s{sT0}, s{sIDX}, 1"); a(f"s_lshl_b32 s{sT0}, s{sT0}, 9")
    a(f"v_add_u32 v{dst}, s{sT0}, v{t0}")

NSLOT_Q = 4
def wq_slot(kap):
    if cfg.j0s5 and kap < 14:
        sl = kap % 5
        return ('q', 0) if sl == 4 else ('own', sl*4096)
    return ('own', (kap % NSLOT_Q)*4096)
sWq5 = 47
def wq_dma(R, kap, vpat, ii_list=range(4)):
    a = R.a
    J, s = divmod(kap, 14)
    area, off = wq_slot(kap)
    for ii in ii_list:
        a(f"s_add_u32 m0, s{sWp if area == 'own' else sWq5}, {off + 1024*ii}")
        a(f"s_add_u32 s{sT1}, s{sJ+J}, {(32*s + 8*ii)*8192}")
        R.vmem(f"buffer_load_dwordx4 v{vpat}, {srd(SRD_WQ)}, s{sT1} offen {cfg.w_flags} lds", f"w{kap}")

def S_(t, nt): return 64 + (t*3 + nt)*4
def Qf(s, nt): return (s*3 + nt)*4
KF = 24
vKdE, vKdO, vVd, vWqA = 48, 49, 50, 51

def a_code_prefetch(R):
    a = R.a
    if not cfg.icpf: return
    a(f"s_cmp_lg_u32 s{sWAVE}, 3"); a("s_cbranch_scc1 L_icpf_skip")
    a("s_getpc_b64 s[72:73]")
    a.label("L_icpf_pc")
    a(f"s_sub_u32 s72, s72, L_icpf_pc-{NAME}_kernel"); a("s_subb_u32 s73, s73, 0")
    a(f"s_lshr_b32 s{sT0}, s2, 3"); a(f"s_lshl_b32 s{sT0}, s{sT0}, 11")
    a(f"v_lshlrev_b32 v58, 7, v{vL}"); a(f"v_add_u32 v58, s{sT0}, v58")
    a(f"s_mov_b64 s[{sEX}:{sEX+1}], exec"); a("s_mov_b64 exec, 0xffff")
    a("v_cmp_gt_u32 vcc, CODE_BYTES, v58")
    a("s_and_b64 exec, exec, vcc")
    a("s_cbranch_execz L_icpf_rest")
    a("global_load_dword v60, v58, s[72:73]")
    a.label("L_icpf_rest")
    a(f"s_mov_b64 exec, s[{sEX}:{sEX+1}]")
    a.label("L_icpf_skip")

def a_setup(R):
    a = R.a
    a(f"s_lshl_b32 s{sM0}, s{sIDX}, 13")
    a(f"s_lshl_b32 s{sWp}, s{sIDX}, 14"); a(f"s_add_u32 s{sWp}, s{sWp}, {WB}")
    if cfg.pf:
        a(f"v_lshrrev_b32 v52, 3, v{vL}"); a("v_lshlrev_b32 v52, 13, v52")
        a(f"v_and_b32 v53, 7, v{vL}"); a("v_lshl_add_u32 v56, v53, 7, v52")
        a(f"s_mul_i32 s{sT2}, s{sB}, 28"); a(f"s_lshl_b32 s{sT3}, s{sIDX}, 3"); a(f"s_add_u32 s{sT2}, s{sT2}, s{sT3}")
        a(f"s_lshl_b32 s{sT2}, s{sT2}, 13")

def a_pf(R, which):
    a = R.a
    if not cfg.pf: return
    if which == "wq":
        a(f"s_cmp_eq_u32 s{sIDX}, 3"); a("s_cselect_b32 exec_hi, 0, -1")
        R.vmem(f"buffer_load_dword v63, v56, {srd(SRD_WQ)}, s{sT2} offen {cfg.pf_flags}", "pf")
        a("s_mov_b32 exec_hi, -1")
    else:
        a(f"v_lshlrev_b32 v58, 7, v{vL}")
        a(f"s_mul_i32 s{sT2}, s{sB}, 28672"); a(f"s_lshl_b32 s{sT3}, s{sIDX}, 13"); a(f"s_add_u32 s{sT2}, s{sT2}, s{sT3}")
        R.vmem(f"buffer_load_dword v62, v58, {srd(SRD_WO)}, s{sT2} offen {cfg.pf_flags}", "pf")

def a_setup2(R):
    a = R.a
    wq_dma_pattern(a, vWqA, vL, vGq, 52, 53)
    a(f"v_lshrrev_b32 v52, 3, v{vL}"); a("v_lshlrev_b32 v52, 9, v52")
    a(f"s_lshl_b32 s{sT1}, s{sIDX}, 15"); a(f"v_add_u32 v52, s{sT1}, v52")
    a(f"v_and_b32 v53, 7, v{vL}"); a(f"v_xor_b32 v54, v53, v{vGq}")
    a(f"v_lshl_add_u32 v{vKdE}, v54, 4, v52")
    a("v_xor_b32 v54, 4, v54"); a(f"v_lshl_add_u32 v{vKdO}, v54, 4, v52")
    a("v_lshrrev_b32 v54, 1, v53"); a(f"v_xor_b32 v54, v54, v{vGq}")
    a("v_lshl_add_u32 v54, v54, 5, v52")
    a(f"v_and_b32 v55, 1, v{vL}"); a(f"v_lshl_add_u32 v{vVd}, v55, 4, v54")

def a_setup3(R):
    a = R.a
    a(f"s_lshr_b32 s{sT0}, s{sIDX}, 1")
    a(f"s_and_b32 s{sT1}, s{sIDX}, 1")
    a(f"v_lshrrev_b32 v52, 1, v{vQ}")
    a(f"v_xor_b32 v53, v{vGq}, v52")
    a(f"v_xor_b32 v54, 4, v53")
    a(f"s_lshl_b32 s{sT2}, s{sT1}, 14")
    a(f"v_lshlrev_b32 v55, 7, v{vQ}")
    a(f"v_add_u32 v55, s{sT2}, v55")
    a(f"v_lshl_add_u32 v40, v53, 4, v55")
    a(f"v_lshl_add_u32 v41, v54, 4, v55")
    a(f"s_mul_i32 s{sT2}, s{sT0}, {48*128}")
    a(f"s_add_u32 s{sT2}, s{sT2}, {QB}")
    a(f"v_lshlrev_b32 v55, 7, v{vQ}")
    a(f"v_add_u32 v55, s{sT2}, v55")
    a(f"v_lshl_add_u32 v42, v53, 4, v55")
    a(f"v_lshl_add_u32 v43, v54, 4, v55")

def a_pair_init(R):
    a = R.a
    a(f"s_lshl_b32 s{sT0}, s{sIDX}, 4"); a(f"s_add_u32 s{sT0}, s{sT0}, {PFL}")
    a(f"v_mov_b32 v55, s{sT0}"); a("v_mov_b32 v56, 0")
    R.lds("ds_write_b32 v55, v56", "pf0")
    R.wait_lg_all()

def a_pair_addr(R):
    a = R.a
    a(f"s_lshl_b32 s{sT0}, s{sIDX}, 4"); a(f"s_add_u32 s{sT0}, s{sT0}, {PFL}")
    a(f"v_mov_b32 v55, s{sT0}"); a(f"s_xor_b32 s{sT0}, s{sT0}, 16"); a(f"v_mov_b32 v56, s{sT0}")

def a_pair_sync(R, j):
    a = R.a
    R.wait_lg_all()
    a(f"v_mov_b32 v57, {j+1}")
    a("ds_write_b32 v55, v57")
    a.label(f"L_ps{j}")
    a("ds_read_b32 v57, v56")
    a("s_waitcnt lgkmcnt(0)")
    a(f"v_readfirstlane_b32 s{sT0}, v57")
    a(f"s_cmp_lt_u32 s{sT0}, {j+1}")
    a(f"s_cbranch_scc1 L_ps{j}")

def kv_dma(R, kind, n, ii):
    a = R.a
    j, w = n >> 1, n & 1
    buf = KVA if w == 0 else KVB
    a(f"s_add_u32 m0, s{sM0}, {buf + 1024*ii}")
    a(f"s_add_u32 s{sT1}, s{sCOL+j}, {131072*w + 4096*ii}")
    if kind == "K":
        R.vmem(f"buffer_load_dwordx4 v{vKdE + (ii & 1)}, {srd(SRD_K)}, s{sT1} offen {cfg.k_flags} lds", f"K{n}")
    else:
        R.vmem(f"buffer_load_dwordx4 v{vVd}, {srd(SRD_V)}, s{sT1} offen {cfg.v_flags} lds", f"V{n}")
def a_issue_KV(R, kind, n):
    R.a.comment(f"---- issue {kind} window {n}")
    for ii in range(8): kv_dma(R, kind, n, ii)

def a0_flag_zero(R):
    a = R.a
    a(f"s_or_b32 s{sT0}, s{sG}, s{sIDX}"); a(f"s_cmp_lg_u32 s{sT0}, 0"); a("s_cbranch_scc1 L_fz_skip")
    a(f"s_mul_i32 s{sT0}, s{sGRP}, {FSTR}"); a(f"s_add_u32 s{sT0}, s{sT0}, {FLG}")
    a(f"v_lshlrev_b32 v58, 2, v{vL}"); a("v_mov_b32 v59, 0")
    a(f"s_mov_b64 s[{sEX}:{sEX+1}], exec"); a("s_mov_b32 exec_hi, 0")
    a(f"buffer_store_dword v59, v58, {srd(SRD_WS)}, s{sT0} offen sc0 sc1")
    a(f"s_mov_b64 exec, s[{sEX}:{sEX+1}]")
    a.label("L_fz_skip")

def a0_flag_mark(R):
    a = R.a
    a(f"s_or_b32 s{sT0}, s{sG}, s{sIDX}"); a(f"s_cmp_lg_u32 s{sT0}, 0"); a("s_cbranch_scc1 L_fm_skip")
    a(f"s_lshl_b32 s{sT0}, s{sGRP}, 2"); a(f"v_mov_b32 v58, s{sT0}"); a("v_mov_b32 v59, 1")
    a(f"s_mov_b64 s[{sEX}:{sEX+1}], exec"); a("s_mov_b64 exec, 1")
    a(f"global_store_dword v58, v59, s[{sDBG}:{sDBG+1}] sc0 sc1")
    a(f"s_mov_b64 exec, s[{sEX}:{sEX+1}]")
    a.label("L_fm_skip")

def a_flag_load(R):
    a = R.a
    a(f"s_lshl_b32 s{sT0}, s{sGRP}, 2"); a(f"v_mov_b32 v58, s{sT0}")
    R.vmem(f"global_load_dword v59, v58, s[{sDBG}:{sDBG+1}] sc0 sc1", "chk")
def a_flag_check(R):
    a = R.a
    R.wait_vm("chk")
    a(f"s_mov_b32 s{sT2}, 0")
    a.label("L_fc_poll")
    a(f"v_readfirstlane_b32 s{sT1}, v59")
    a(f"s_cmp_eq_u32 s{sT1}, 1"); a("s_cbranch_scc1 L_fc_skip")
    a(f"s_add_u32 s{sT2}, s{sT2}, 1"); a(f"s_cmp_ge_u32 s{sT2}, 400000"); a("s_cbranch_scc1 L_fc_skip")
    a("s_sleep 2")
    a(f"global_load_dword v59, v58, s[{sDBG}:{sDBG+1}] sc0 sc1")
    a("s_waitcnt vmcnt(0)")
    a("s_branch L_fc_poll")
    a.label("L_fc_skip")

T1, T2 = WB, WB + 32768
def a_S(R, n, dma=None):
    a = R.a
    j, w = n >> 1, n & 1
    buf = KVA if w == 0 else KVB
    if n >= 6:
        if n == 6:
            for s2 in range(2): a(f"v_add_u32 v{40+s2}, {T1}, v{40+s2}")
        buf = 0 if n == 6 else 32768
    if w == 0:
        for s in range(2):
            for nt in range(3):
                R.lds(f"ds_read_b128 {vr(Qf(s,nt))}, v{42+s} offset:{12288*(j & 1) + 2048*nt}", "q")
    frs = [(i, s) for i in range(8) for s in range(2)]
    NB = 4
    def rd(k):
        i, s = frs[k]
        R.lds(f"ds_read_b128 {vr(KF + 4*(k % NB))}, v{40+s} offset:{buf + 2048*i}", f"kf{k}")
    for k in range(NB-1): rd(k)
    if dma and not cfg.interleave:
        for ii in range(8): kv_dma(R, dma[0], dma[1], ii)
        dma = None
    for k, (i, s) in enumerate(frs):
        if k + NB - 1 < len(frs): rd(k + NB - 1)
        if dma and k < 8: kv_dma(R, dma[0], dma[1], k)
        R.wait_lg(f"kf{k}")
        for nt in range(3):
            d = S_(8*w + i, nt)
            c = "0" if (j == 0 and s == 0) else vr(d)
            a(f"v_mfma_f32_16x16x32_bf16 {vr(d)}, {vr(KF + 4*(k % NB))}, {vr(Qf(s,nt))}, {c}")

M1 = (52, 54, 56)
L1 = (53, 55, 57)
BETA = (0, 2, 4); ALO = (6, 8, 10); ALP = (12, 14, 16)
ONES1, ONES2 = 36, 20
def Pf(w, s, nt): return S_(8*w + 2*s, nt)
def Oa(mt, nt): return S_(2*mt + 1, nt)
def XT(i, nt): return S_(9 + 2*i, nt)

def _rowmax(a, tiles, dst, tmp):
    for nt in range(3):
        m = dst[nt]
        vals = [S_(t, nt) + r for t in tiles for r in range(4)]
        a(f"v_max3_f32 v{m}, v{vals[0]}, v{vals[1]}, v{vals[2]}")
        a(f"v_max3_f32 v{tmp}, v{vals[3]}, v{vals[4]}, v{vals[5]}")
        k = 6
        while k + 3 < len(vals):
            a(f"v_max3_f32 v{m}, v{m}, v{vals[k]}, v{vals[k+1]}")
            a(f"v_max3_f32 v{tmp}, v{tmp}, v{vals[k+2]}, v{vals[k+3]}")
            k += 4
        rest = vals[k:]
        assert len(rest) == 2
        a(f"v_max3_f32 v{m}, v{m}, v{rest[0]}, v{rest[1]}")
        a(f"v_max_f32 v{m}, v{m}, v{tmp}")
    for nt in range(3):
        m = dst[nt]
        a(f"v_mov_b32 v{tmp+nt}, v{m}")
    for nt in range(3):
        a(f"v_permlane32_swap_b32 v{tmp+nt}, v{dst[nt]}")
    for nt in range(3):
        a(f"v_max_f32 v{dst[nt]}, v{tmp+nt}, v{dst[nt]}")
    for nt in range(3):
        a(f"v_mov_b32 v{tmp+nt}, v{dst[nt]}")
    for nt in range(3):
        a(f"v_permlane16_swap_b32 v{tmp+nt}, v{dst[nt]}")
    for nt in range(3):
        a(f"v_max_f32 v{dst[nt]}, v{tmp+nt}, v{dst[nt]}")
        a(f"v_mul_f32 v{dst[nt]}, s{sC}, v{dst[nt]}")

def _exppack(a, t0s, mreg):
    for t0 in t0s:
        for nt in range(3):
            m = mreg[nt]
            b0, b1 = S_(t0, nt), S_(t0+1, nt)
            for b in (b0, b0+2, b1, b1+2):
                a(f"v_pk_fma_f32 {vr(b,2)}, {vr(b,2)}, s[{sC}:{sC+1}], {vr(m,2)} op_sel_hi:[1,1,0] neg_lo:[0,0,1] neg_hi:[0,0,1]")
            src = [b0+r for r in range(4)] + [b1+r for r in range(4)]
            for v in src: a(f"v_exp_f32 v{v}, v{v}")
            a(f"v_cvt_pk_bf16_f32 v{b0}, v{src[0]}, v{src[1]}")
            a(f"v_cvt_pk_bf16_f32 v{b0+1}, v{src[2]}, v{src[3]}")
            a(f"v_cvt_pk_bf16_f32 v{b0+2}, v{src[4]}, v{src[5]}")
            a(f"v_cvt_pk_bf16_f32 v{b0+3}, v{src[6]}, v{src[7]}")

def _rowsum(a, w, ones, acc):
    for r in range(4): a(f"v_mov_b32 v{ones+r}, 0x3f803f80")
    for s in range(4):
        for nt in range(3):
            c = "0" if s == 0 else vr(acc(nt))
            a(f"v_mfma_f32_16x16x32_bf16 {vr(acc(nt))}, {vr(ones)}, {vr(Pf(w,s,nt))}, {c}")

def a_softmax1(R):
    a = R.a
    _rowmax(a, range(0, 8), M1, 24)
    _exppack(a, (0, 2, 4, 6), M1)
    _rowsum(a, 0, ONES1, lambda nt: S_(1, nt))
    for nt in range(3): a(f"v_mov_b32 v{L1[nt]}, v{S_(1,nt)}")

def a_softmax2(R):
    a = R.a
    M2 = (24, 26, 28)
    _rowmax(a, range(8, 16), M2, 30)
    for nt in range(3):
        a(f"v_max_f32 v{M2[nt]}, v{M2[nt]}, v{M1[nt]}")
        a(f"v_sub_f32 v{BETA[nt]}, v{M1[nt]}, v{M2[nt]}")
    for nt in range(3): a(f"v_exp_f32 v{BETA[nt]}, v{BETA[nt]}")
    _exppack(a, (8, 10, 12, 14), M2)
    _rowsum(a, 1, ONES2, lambda nt: S_(13, nt))
    a_vaddr(R)
    for nt in range(3):
        a(f"v_fma_f32 v{M2[nt]+1}, v{BETA[nt]}, v{L1[nt]}, v{S_(13,nt)}")
    for nt in range(3):
        R.lds(f"ds_write_b64 v59, {vr(M2[nt],2)} offset:{128*nt}", "st")
    for nt in range(3):
        a(f"v_mov_b32 v{18+2*nt}, v{M2[nt]}"); a(f"v_mov_b32 v{19+2*nt}, v{M2[nt]+1}")
    R.wait_lg_all()

vXW, vXR, vOW = 52, 53, 54
def a_vaddr(R):
    a = R.a
    a(f"s_and_b32 s{sT1}, s{sIDX}, 1")
    a(f"v_lshrrev_b32 v32, 2, v{vL}")
    a(f"v_lshrrev_b32 v33, 1, v32"); a("v_and_b32 v33, 3, v33")
    a(f"s_lshl_b32 s{sT2}, s{sT1}, 14")
    a(f"v_lshlrev_b32 v34, 7, v32"); a(f"v_add_u32 v34, s{sT2}, v34")
    a(f"v_and_b32 v35, 3, v{vL}"); a(f"v_lshl_add_u32 v34, v35, 3, v34")
    a(f"s_lshl_b32 s{sT2}, s{sT1}, 1")
    a(f"v_xor_b32 v33, s{sT2}, v33")
    for mt in range(4):
        a(f"v_xor_b32 v35, {mt}, v33")
        a(f"v_lshl_add_u32 v{40+mt}, v35, 5, v34")
    a(f"s_mul_i32 s{sT0}, s{sIDX}, 384"); a(f"s_add_u32 s{sT0}, s{sT0}, {STAT}")
    a(f"v_lshlrev_b32 v59, 3, v{vQ}"); a(f"v_add_u32 v59, s{sT0}, v59")
    a(f"s_xor_b32 s{sT1}, s{sIDX}, 1"); a(f"s_mul_i32 s{sT1}, s{sT1}, 384"); a(f"s_add_u32 s{sT1}, s{sT1}, {STAT}")
    a(f"v_lshlrev_b32 v60, 3, v{vQ}"); a(f"v_add_u32 v60, s{sT1}, v60")

def a_alpha(R):
    a = R.a
    M2 = (18, 20, 22)
    for nt in range(3):
        R.lds(f"ds_read_b64 v[{32+2*nt}:{33+2*nt}], v60 offset:{128*nt}", "st")
    a(f"s_mul_i32 s{sT2}, s{sIDX}, 6144"); a(f"s_add_u32 s{sT2}, s{sT2}, {XB}")
    a(f"v_lshlrev_b32 v55, 4, v{vL}"); a(f"v_add_u32 v{vXW}, s{sT2}, v55")
    a(f"s_xor_b32 s{sT2}, s{sIDX}, 1"); a(f"s_mul_i32 s{sT2}, s{sT2}, 6144"); a(f"s_add_u32 s{sT2}, s{sT2}, {XB}")
    a(f"v_add_u32 v{vXR}, s{sT2}, v55")
    a(f"s_and_b32 s{sT1}, s{sIDX}, 1")
    a(f"s_lshr_b32 s{sT0}, s{sIDX}, 1"); a(f"s_mul_i32 s{sT2}, s{sT0}, {48*128}"); a(f"s_add_u32 s{sT2}, s{sT2}, {OB}")
    a(f"v_lshlrev_b32 v{vOW}, 7, v{vQ}"); a(f"v_add_u32 v{vOW}, s{sT2}, v{vOW}")
    a(f"s_lshl_b32 s{sT3}, s{sT1}, 2")
    a(f"v_or_b32 v55, s{sT3}, v{vGq}")
    a(f"v_lshrrev_b32 v56, 1, v{vQ}"); a("v_xor_b32 v55, v55, v56")
    a(f"v_lshl_add_u32 v{vOW}, v55, 4, v{vOW}")
    R.wait_lg_all()
    for nt in range(3):
        mo, lo = 32 + 2*nt, 33 + 2*nt
        m, l = M2[nt], M2[nt] + 1
        a(f"v_max_f32 v38, v{m}, v{mo}")
        a(f"v_sub_f32 v{ALO[nt]}, v{m}, v38"); a(f"v_sub_f32 v{ALP[nt]}, v{mo}, v38")
        a(f"v_exp_f32 v{ALO[nt]}, v{ALO[nt]}"); a(f"v_exp_f32 v{ALP[nt]}, v{ALP[nt]}")
        a(f"v_mul_f32 v38, v{l}, v{ALO[nt]}")
        a(f"v_fma_f32 v38, v{lo}, v{ALP[nt]}, v38")
        a("v_rcp_f32 v38, v38")
        a(f"v_mul_f32 v{ALO[nt]}, v{ALO[nt]}, v38"); a(f"v_mul_f32 v{ALP[nt]}, v{ALP[nt]}, v38")

def a_PV(R, n, dma=None):
    a = R.a
    j, w = n >> 1, n & 1
    buf = KVA if w == 0 else KVB
    frs = [(s, mt) for s in range(4) for mt in range(4)]
    if w == 1: frs = frs[:12] + [(3, 2), (3, 3), (3, 0), (3, 1)]
    NB = 4
    def rd(k):
        s, mt = frs[k]
        b = KF + 4*(k % NB)
        R.lds(f"ds_read_b64_tr_b16 {vr(b,2)}, v{40+mt} offset:{buf + 4096*s}", f"vf{k}")
        R.lds(f"ds_read_b64_tr_b16 {vr(b+2,2)}, v{40+mt} offset:{buf + 4096*s + 2048}", f"vf{k}")
    for k in range(NB-1): rd(k)
    if dma and not cfg.interleave:
        for ii in range(8): kv_dma(R, dma[0], dma[1], ii)
        dma = None
    for k, (s, mt) in enumerate(frs):
        if k + NB - 1 < len(frs): rd(k + NB - 1)
        if dma and k < 8: kv_dma(R, dma[0], dma[1], k)
        R.wait_lg(f"vf{k}")
        for nt in range(3):
            d = Oa(mt, nt)
            c = "0" if (w == 0 and s == 0) else vr(d)
            a(f"v_mfma_f32_16x16x32_bf16 {vr(d)}, {vr(KF + 4*(k % NB))}, {vr(Pf(w,s,nt))}, {c}")
        if w == 1 and k >= 14:
            m2 = k - 12
            for nt in range(3):
                R.lds(f"ds_write_b128 v{vXW}, {vr(Oa(m2,nt))} offset:{((m2-2)*3+nt)*1024}", "xw")

def a_rescale(R):
    a = R.a
    for mt in range(4):
        for nt in range(3):
            if cfg.unpack:
                for r in range(4): a(f"v_mul_f32 v{Oa(mt,nt)+r}, v{BETA[nt]}, v{Oa(mt,nt)+r}")
                continue
            for h2 in (0, 2):
                b = Oa(mt, nt) + h2
                a(f"v_pk_mul_f32 {vr(b,2)}, {vr(b,2)}, {vr(BETA[nt],2)} op_sel_hi:[1,0]")

def a_xwrite(R):
    a = R.a
    for mt in (2, 3):
        for nt in range(3):
            R.lds(f"ds_write_b128 v{vXW}, {vr(Oa(mt,nt))} offset:{((mt-2)*3+nt)*1024}", "xw")

def a_xfinal(R, dma=None):
    a = R.a
    for nt in range(3):
        for i in range(2):
            R.lds(f"ds_read_b128 {vr(XT(i,nt))}, v{vXR} offset:{(i*3+nt)*1024}", f"xr{nt}")
    if dma:
        for ii in range(8): kv_dma(R, dma[0], dma[1], ii)
    for nt in range(3):
        for i in range(2):
            if cfg.unpack:
                for r in range(4): a(f"v_mul_f32 v{Oa(i,nt)+r}, v{ALO[nt]}, v{Oa(i,nt)+r}")
                continue
            for h2 in (0, 2):
                b = Oa(i, nt) + h2
                a(f"v_pk_mul_f32 {vr(b,2)}, {vr(b,2)}, {vr(ALO[nt],2)} op_sel_hi:[1,0]")
    for nt in range(3):
        R.wait_lg(f"xr{nt}")
        for i in range(2):
            if cfg.unpack:
                for r in range(4): a(f"v_fma_f32 v{Oa(i,nt)+r}, v{XT(i,nt)+r}, v{ALP[nt]}, v{Oa(i,nt)+r}")
                continue
            for h2 in (0, 2):
                b, x = Oa(i, nt) + h2, XT(i, nt) + h2
                a(f"v_pk_fma_f32 {vr(b,2)}, {vr(x,2)}, {vr(ALP[nt],2)}, {vr(b,2)} op_sel_hi:[1,0,1]")
        d = XT(0, nt)
        a(f"v_cvt_pk_bf16_f32 v{d}, v{Oa(0,nt)}, v{Oa(0,nt)+1}")
        a(f"v_cvt_pk_bf16_f32 v{d+1}, v{Oa(0,nt)+2}, v{Oa(0,nt)+3}")
        a(f"v_cvt_pk_bf16_f32 v{d+2}, v{Oa(1,nt)}, v{Oa(1,nt)+1}")
        a(f"v_cvt_pk_bf16_f32 v{d+3}, v{Oa(1,nt)+2}, v{Oa(1,nt)+3}")
        R.lds(f"ds_write_b128 v{vOW}, {vr(d)} offset:{2048*nt}", "ow")

PRING = 0
vWqD = 20
vWqR = 21
vQW = 25
PT = 26
vWqR5 = 35
def Xf(s, nt): return 40 + (s*3 + nt)*4
def Qa(mt, nt): return 208 + (mt*3 + nt)*4

def p_lane(a):
    a(f"v_mbcnt_lo_u32_b32 v{PT}, -1, 0"); a(f"v_mbcnt_hi_u32_b32 v{PT}, -1, v{PT}")
    a(f"v_and_b32 v{PT+1}, 15, v{PT}"); a(f"v_lshrrev_b32 v{PT+2}, 4, v{PT}")

def p_setup_pre(a):
    l, q, g = PT, PT+1, PT+2
    p = sIDX
    p_lane(a)
    a(f"s_mul_i32 s{sXo}, s{p}, 896")
    a(f"s_lshr_b32 s{sT0}, s{p}, 1")
    a(f"v_xor_b32 v{PT+3}, s{sT0}, v{l}"); a(f"v_lshlrev_b32 v{PT+3}, 4, v{PT+3}")
    for k in range(4):
        a(f"v_xor_b32 v{PT+4+k}, {(2*k) << 4}, v{PT+3}")

def p_setup(R):
    a = R.a
    a(f"s_mov_b64 s[{sEX}:{sEX+1}], exec")
    a("s_mov_b32 exec_hi, 0x00ffffff")
    for ii in range(12):
        base = (KVB + 3584*ii) if ii < 8 else (QB + 3584*(ii-8))
        a(f"s_add_u32 m0, s{sXo}, {base}")
        a(f"s_add_u32 s{sT1}, s{sXo}, {3584*ii}")
        R.vmem(f"buffer_load_dwordx4 v{PT+4 + (ii % 4)}, {srd(SRD_X)}, s{sT1} offen lds", "x")
    a(f"s_mov_b64 exec, s[{sEX}:{sEX+1}]")

def p_setup2(R):
    a = R.a
    l, q, g = PT, PT+1, PT+2
    p = sIDX
    a(f"s_lshl_b32 s{sWp}, s{p}, 14"); a(f"s_add_u32 s{sWp}, s{sWp}, {WB}")
    wq_dma_pattern(a, vWqD, l, g, PT+3, PT+4)
    a(f"v_lshrrev_b32 v{PT+3}, 2, v{l}")
    a(f"v_lshrrev_b32 v{PT+4}, 1, v{PT+3}"); a(f"v_and_b32 v{PT+4}, 3, v{PT+4}")
    a(f"v_lshlrev_b32 v{PT+5}, 7, v{PT+3}"); a(f"v_add_u32 v{PT+5}, s{sWp}, v{PT+5}")
    a(f"v_and_b32 v{PT+6}, 3, v{l}"); a(f"v_lshl_add_u32 v{PT+5}, v{PT+6}, 3, v{PT+5}")
    for mt in range(4):
        a(f"v_xor_b32 v{PT+6}, {mt}, v{PT+4}")
        a(f"v_lshl_add_u32 v{vWqR+mt}, v{PT+6}, 5, v{PT+5}")
    a(f"s_and_b32 s{sT0}, s{sIDX}, 1"); a(f"s_mul_i32 s{sT0}, s{sT0}, {48*128}")
    a(f"s_lshr_b32 s{sT1}, s{sIDX}, 1"); a(f"s_mul_i32 s{sT1}, s{sT1}, 12288")
    a(f"s_add_u32 s{sT0}, s{sT0}, s{sT1}"); a(f"s_add_u32 s{sT0}, s{sT0}, {QB}")
    a(f"v_lshlrev_b32 v{PT+5}, 7, v{q}"); a(f"v_add_u32 v{PT+5}, s{sT0}, v{PT+5}")
    a(f"v_and_b32 v{PT+6}, 1, v{g}"); a(f"v_lshl_add_u32 v{PT+5}, v{PT+6}, 3, v{PT+5}")
    a(f"v_lshrrev_b32 v{PT+6}, 1, v{g}"); a(f"v_lshrrev_b32 v{PT+3}, 1, v{q}"); a(f"v_xor_b32 v{PT+6}, v{PT+6}, v{PT+3}")
    a(f"v_lshl_add_u32 v{vQW}, v{PT+6}, 4, v{PT+5}")
    a(f"v_lshrrev_b32 v{PT+3}, 1, v{q}")
    a(f"v_lshrrev_b32 v{PT+4}, 1, v{g}"); a(f"v_xor_b32 v{PT+4}, v{PT+4}, v{PT+3}")
    a(f"s_mov_b32 s{sT0}, 896"); a(f"v_mul_lo_u32 v{PT+5}, s{sT0}, v{q}")
    a(f"v_and_b32 v{PT+6}, 1, v{g}"); a(f"v_lshl_add_u32 v{PT+5}, v{PT+6}, 3, v{PT+5}")
    a(f"v_add_u32 v{PT+5}, {KVB}, v{PT+5}")
    for k in range(4):
        a(f"v_xor_b32 v{PT+6}, {2*k}, v{PT+4}")
        a(f"v_lshl_add_u32 v{PT+7+k}, v{PT+6}, 4, v{PT+5}")

def p_xfrags(R):
    a = R.a
    for pas in range(2):
        for s in range(14):
            for nt in ((0, 1) if pas == 0 else (2,)):
                for half in range(2):
                    k = 2*(s & 1) + half
                    off = (14336*nt if pas == 0 else 0) + 128*(s >> 1)
                    R.lds_guard(1)
                    R.lds(f"ds_read_b64 {vr(Xf(s,nt)+2*half,2)}, v{PT+7+k} offset:{off}", "xf")
        if pas == 0:
            R.wait_lg_all()
            for k in range(4): a(f"v_add_u32 v{PT+7+k}, {QB-KVB}, v{PT+7+k}")
    R.wait_lg_all()

def p_qcompute(R, kaps, stream_next, hooks=None):
    a = R.a
    D = cfg.dq; NB = D + 1
    hooks = hooks or {}
    frs = [(kap, mt) for kap in kaps for mt in range(4)]
    def rd(f):
        kap, mt = frs[f]
        if mt == 0: R.wait_vm(f"w{kap}")
        b = PRING + 4*(f % NB)
        area, off = wq_slot(kap)
        ad = (vWqR if area == 'own' else vWqR5) + mt
        R.lds(f"ds_read_b64_tr_b16 {vr(b,2)}, v{ad} offset:{off}", f"f{kap}_{mt}")
        R.lds(f"ds_read_b64_tr_b16 {vr(b+2,2)}, v{ad} offset:{off + 2048}", f"f{kap}_{mt}")
    for f in range(min(D, len(frs))): rd(f)
    for f, (kap, mt) in enumerate(frs):
        J, s = divmod(kap, 14)
        if f + D < len(frs): rd(f + D)
        if stream_next and cfg.j0s5 and kap >= 1 and kap + 4 < 14: wq_dma(R, kap + 4, vWqD, [mt])
        R.wait_lg(f"f{kap}_{mt}")
        if cfg.kst and mt == 0 and kap < 14 and kap % 2 == 0: lstamp(a, 26 + kap // 2)
        for nt in range(3):
            d = Qa(mt, nt)
            c = "0" if s == 0 else vr(d)
            a(f"v_mfma_f32_16x16x32_bf16 {vr(d)}, {vr(PRING + 4*(f % NB))}, {vr(Xf(s,nt))}, {c}")
        if stream_next and not cfg.j0s5 and mt == 3 and kap + NSLOT_Q < 14: wq_dma(R, kap + NSLOT_Q, vWqD)
        if mt == 3 and kap in hooks: hooks[kap]()
    last = kaps[-1]
    if last % 14 == 13:
        if cfg.kst and last == 13: lstamp(a, 33)
        k = 0
        for m2 in range(4):
            a(f"v_xor_b32 v{PT+8}, {32*m2}, v{vQW}")
            for nt in range(3):
                d = Qa(m2, nt)
                t = PT + 2*(k % 4); k += 1
                a(f"v_cvt_pk_bf16_f32 v{t}, v{d}, v{d+1}")
                a(f"v_cvt_pk_bf16_f32 v{t+1}, v{d+2}, v{d+3}")
                R.lds_guard(1)
                R.lds(f"ds_write_b64 v{PT+8}, {vr(t,2)} offset:{2048*nt}", "qw")
        R.wait_lg("qw")

ORING = 0
vWoD = 32
vWoR = 34
vOR = 42
VT = 48
ALT = 208
PUB = [216 + 4*i for i in range(10)] + [20, 24]
def Outa(i, nt): return 64 + (i*3 + nt)*4
def Of(ks, nt): return 160 + (ks*3 + nt)*4

def p_vsetup(R, wide):
    a = R.a
    l, q, g = VT, VT+1, VT+2
    a(f"v_mbcnt_lo_u32_b32 v{l}, -1, 0"); a(f"v_mbcnt_hi_u32_b32 v{l}, -1, v{l}")
    a(f"v_and_b32 v{q}, 15, v{l}"); a(f"v_lshrrev_b32 v{g}, 4, v{l}")
    a(f"s_lshl_b32 s{sT0}, s{sIDX}, 8")
    if wide:
        a(f"v_bfe_u32 v{VT+3}, v{l}, 1, 3"); a(f"v_xor_b32 v{VT+3}, v{VT+3}, v{g}")
        a(f"s_mov_b32 s{sT1}, 896"); a(f"v_mul_lo_u32 v{VT+4}, s{sT1}, v{g}")
        a(f"v_and_b32 v{VT+5}, 1, v{l}"); a(f"v_lshl_add_u32 v{VT+4}, v{VT+5}, 4, v{VT+4}")
        a(f"v_add_u32 v{VT+4}, s{sT0}, v{VT+4}")
        a(f"v_lshl_add_u32 v{vWoD}, v{VT+3}, 5, v{VT+4}")
        a(f"v_xor_b32 v{VT+3}, 4, v{VT+3}"); a(f"v_lshl_add_u32 v{vWoD+1}, v{VT+3}, 5, v{VT+4}")
        a(f"v_lshrrev_b32 v{VT+3}, 2, v{l}"); a(f"v_and_b32 v{VT+4}, 7, v{VT+3}")
        a(f"v_lshlrev_b32 v{VT+5}, 8, v{VT+3}")
    else:
        a(f"v_lshrrev_b32 v{VT+3}, 3, v{l}"); a(f"s_mov_b32 s{sT1}, 896"); a(f"v_mul_lo_u32 v{VT+4}, s{sT1}, v{VT+3}")
        a(f"v_bfe_u32 v{VT+3}, v{l}, 1, 2"); a(f"v_xor_b32 v{VT+3}, v{VT+3}, v{g}")
        a(f"v_lshl_add_u32 v{VT+4}, v{VT+3}, 5, v{VT+4}")
        a(f"v_and_b32 v{VT+5}, 1, v{l}"); a(f"v_lshl_add_u32 v{VT+4}, v{VT+5}, 4, v{VT+4}")
        a(f"v_add_u32 v{vWoD}, s{sT0}, v{VT+4}")
        a(f"v_lshrrev_b32 v{VT+3}, 2, v{l}")
        a(f"v_lshrrev_b32 v{VT+4}, 1, v{VT+3}"); a(f"v_and_b32 v{VT+4}, 3, v{VT+4}")
        a(f"v_lshlrev_b32 v{VT+5}, 7, v{VT+3}")
    a(f"v_and_b32 v{VT+6}, 3, v{l}"); a(f"v_lshl_add_u32 v{VT+5}, v{VT+6}, 3, v{VT+5}")
    a(f"s_lshl_b32 s{sT1}, s{sIDX}, 13")
    for mt in range(8 if wide else 4):
        a(f"v_xor_b32 v{VT+6}, {mt}, v{VT+4}")
        a(f"v_lshl_add_u32 v{VT+7}, v{VT+6}, 5, v{VT+5}")
        a(f"v_add_u32 v{vWoR+mt}, s{sWp}, v{VT+7}")
        a(f"v_add_u32 v{ALT+mt}, s{sT1}, v{VT+7}")
    a(f"v_lshrrev_b32 v{VT+3}, 1, v{q}"); a(f"v_xor_b32 v{VT+3}, v{g}, v{VT+3}")
    a(f"v_lshlrev_b32 v{VT+4}, 7, v{q}"); a(f"v_add_u32 v{VT+4}, {OB}, v{VT+4}")
    a(f"v_lshl_add_u32 v{vOR}, v{VT+3}, 4, v{VT+4}")
    a(f"v_xor_b32 v{VT+3}, 4, v{VT+3}"); a(f"v_lshl_add_u32 v{vOR+1}, v{VT+3}, 4, v{VT+4}")
    a(f"s_lshl_b32 s{sM0}, s{sIDX}, 13")

def wo_slot(kap, wide):
    slot = 8192 if wide else 4096
    special = {14: ('kv', KVA), 15: ('kv', KVB)}
    if kap in special: return special[kap]
    return ('own', (kap % 2)*slot)

def wo_dma(R, kap, wide, ii_list=None):
    a = R.a
    j, ks = divmod(kap, 4); h, s = divmod(ks, 2)
    row0 = 256*h + 32*s
    area, off = wo_slot(kap, wide)
    base = sWp if area == 'own' else sM0
    for ii in (ii_list if ii_list is not None else range(8 if wide else 4)):
        a(f"s_add_u32 m0, s{base}, {off + 1024*ii}")
        rows = 4*ii if wide else 8*ii
        a(f"s_add_u32 s{sT1}, s{sCOL+4+j}, {(row0 + rows)*896}")
        pat = vWoD + ((ii & 1) if wide else 0)
        R.vmem(f"buffer_load_dwordx4 v{pat}, {srd(SRD_WO)}, s{sT1} offen {cfg.w_flags} lds", f"o{kap}")

def p_ofrags(R):
    for k2 in range(4):
        for nt in range(3):
            R.lds_guard(1)
            R.lds(f"ds_read_b128 {vr(Of(k2,nt))}, v{vOR + (k2 & 1)} offset:{6144*(k2 >> 1) + 2048*nt}", f"of{k2}")

vPK0, vPK1, vPV, vPF = 44, 45, 46, 56
def p_kv_setup(R, first=False):
    a = R.a
    l, g = VT, VT+2
    a(f"s_lshl_b32 s{sM0}, s{sIDX}, 13")
    a(f"v_mbcnt_lo_u32_b32 v{l}, -1, 0"); a(f"v_mbcnt_hi_u32_b32 v{l}, -1, v{l}"); a(f"v_lshrrev_b32 v{g}, 4, v{l}")
    a(f"v_lshrrev_b32 v{VT+3}, 3, v{l}"); a(f"v_lshlrev_b32 v{VT+3}, 9, v{VT+3}")
    a(f"s_lshl_b32 s{sT1}, s{sIDX}, 15"); a(f"v_add_u32 v{VT+3}, s{sT1}, v{VT+3}")
    a(f"v_and_b32 v{VT+4}, 7, v{l}"); a(f"v_xor_b32 v{VT+5}, v{VT+4}, v{g}")
    a(f"v_lshl_add_u32 v{vPK0}, v{VT+5}, 4, v{VT+3}")
    a(f"v_xor_b32 v{VT+5}, 4, v{VT+5}"); a(f"v_lshl_add_u32 v{vPK1}, v{VT+5}, 4, v{VT+3}")
    a(f"v_lshrrev_b32 v{VT+5}, 1, v{VT+4}"); a(f"v_xor_b32 v{VT+5}, v{VT+5}, v{g}")
    a(f"v_lshl_add_u32 v{VT+5}, v{VT+5}, 5, v{VT+3}")
    a(f"v_and_b32 v{VT+4}, 1, v{l}"); a(f"v_lshl_add_u32 v{vPV}, v{VT+4}, 4, v{VT+5}")
    a(f"v_lshlrev_b32 v{vPF}, 7, v{l}")

def p_issue_KV(R, kind, n):
    a = R.a
    j, w = n >> 1, n & 1
    buf = KVA if w == 0 else KVB
    if kind == "K" and n >= 6: buf = T1 if n == 6 else T2
    for ii in range(8):
        a(f"s_add_u32 m0, s{sM0}, {buf + 1024*ii}")
        a(f"s_add_u32 s{sT1}, s{sCOL+j}, {131072*w + 4096*ii}")
        if kind == "K": R.vmem(f"buffer_load_dwordx4 v{vPK0 + (ii & 1)}, {srd(SRD_K)}, s{sT1} offen {cfg.k_flags} lds", f"K{n}")
        else: R.vmem(f"buffer_load_dwordx4 v{vPV}, {srd(SRD_V)}, s{sT1} offen {cfg.v_flags} lds", f"V{n}")

def p_tlb_warm(R):
    a = R.a
    if not cfg.tlbw: return
    a(f"s_lshl_b32 s{sT0}, s{sB}, 4"); a(f"s_lshl_b32 s{sT1}, s{sBR}, 2"); a(f"s_add_u32 s{sT0}, s{sT0}, s{sT1}")
    a(f"s_mul_i32 s{sT0}, s{sT0}, {PART}")
    a(f"v_mov_b32 v58, s{sT0}")
    a(f"s_add_u32 s{sT1}, s{sT0}, {11*PART + PART - 4}"); a(f"v_writelane_b32 v58, s{sT1}, 1")
    a(f"s_mul_i32 s{sT1}, s2, {PART}"); a(f"v_writelane_b32 v58, s{sT1}, 2")
    a(f"s_mul_i32 s{sT1}, s{sGRP}, {FSTR}"); a(f"s_add_u32 s{sT1}, s{sT1}, {FLG}"); a(f"v_writelane_b32 v58, s{sT1}, 3")
    a(f"s_mul_i32 s{sT2}, s{sB}, {48*1792}")
    a(f"s_mov_b64 s[{sEX}:{sEX+1}], exec"); a("s_mov_b64 exec, 0xf")
    R.vmem(f"buffer_load_dword v59, v58, {srd(SRD_WS)}, 0 offen sc0 sc1", "tlb")
    a("s_mov_b64 exec, 1"); a("v_mov_b32 v60, 0")
    R.vmem(f"buffer_load_dword v59, v60, {srd(SRD_OUT)}, s{sT2} offen sc0 sc1", "tlb")
    a(f"s_mov_b64 exec, s[{sEX}:{sEX+1}]")

def p_pf_wo(R):
    a = R.a
    if not cfg.pf: return
    a(f"s_mul_i32 s{sT2}, s{sB}, 28672"); a(f"s_lshl_b32 s{sT3}, s{sIDX}, 13"); a(f"s_add_u32 s{sT2}, s{sT2}, s{sT3}")
    a(f"s_cmp_eq_u32 s{sIDX}, 3"); a("s_cselect_b32 exec_hi, 0, -1")
    R.vmem(f"buffer_load_dword v57, v{vPF}, {srd(SRD_WO)}, s{sT2} offen {cfg.pf_flags}", "pf")
    a("s_mov_b32 exec_hi, -1")

def p_of(R, k2):
    for nt in range(3):
        R.lds_guard(1)
        R.lds(f"ds_read_b128 {vr(Of(k2,nt))}, v{vOR + (k2 & 1)} offset:{6144*(k2 >> 1) + 2048*nt}", f"of{k2}")

def p_ocompute(R, kaps, wide, inter=None, ofr=False):
    a = R.a
    NT = 8 if wide else 4
    D = 4; NB = 5
    rowb = 256 if wide else 128
    inter = inter or {}
    frs = [(kap, mt) for kap in kaps for mt in range(NT)]
    def rd(f):
        kap, mt = frs[f]
        if mt == 0: R.wait_vm(f"o{kap}")
        b = ORING + 4*(f % NB)
        area, off = wo_slot(kap, wide)
        addr = (vWoR if area == 'own' else ALT) + mt
        R.lds_guard(2)
        R.lds(f"ds_read_b64_tr_b16 {vr(b,2)}, v{addr} offset:{off}", f"f{kap}_{mt}")
        R.lds(f"ds_read_b64_tr_b16 {vr(b+2,2)}, v{addr} offset:{off + 16*rowb}", f"f{kap}_{mt}")
    if ofr: p_of(R, 0)
    for f in range(D): rd(f)
    for f, (kap, mt) in enumerate(frs):
        j, ks = divmod(kap, 4)
        if f + D < len(frs): rd(f + D)
        if ofr and f < 3: p_of(R, f + 1)
        for (k2, ii) in inter.get(f, []): wo_dma(R, k2, wide, [ii])
        R.wait_lg(f"f{kap}_{mt}")
        if mt == 0: R.wait_lg(f"of{ks}")
        for nt in range(3):
            d = Outa(mt, nt)
            c = "0" if kap == 0 else vr(d)
            a(f"v_mfma_f32_16x16x32_bf16 {vr(d)}, {vr(ORING + 4*(f % NB))}, {vr(Of(ks,nt))}, {c}")
        if cfg.tst and mt == NT - 1 and kap >= 10: lstamp(a, 26 + kap - 10)

def p_oproj_phase(R, bar, wide):
    a = R.a
    NT = 8 if wide else 4
    nbar = 0
    def b1():
        nonlocal nbar
        if cfg.pv_all and 1 <= nbar <= 6: R.wait_vm(f"V{nbar+1}")
        bar(); nbar += 1
        if cfg.pv_all and 1 <= nbar <= 6: p_issue_KV(R, "V", nbar + 1)
    b1()
    if cfg.wo_first_after >= 6: wo_dma(R, 0, wide); wo_dma(R, 1, wide)
    b1()
    if cfg.pvprio: a(f"s_setprio {cfg.pvprio}")
    for j in range(3):
        a.comment(f"---- O projection chunk {j}")
        p_ocompute(R, [4*j, 4*j+1], wide, ofr=True)
        wo_dma(R, 4*j+2, wide); wo_dma(R, 4*j+3, wide)
        b1()
        if j < 2:
            p_ocompute(R, [4*j+2, 4*j+3], wide)
            wo_dma(R, 4*j+4, wide); wo_dma(R, 4*j+5, wide)
        else:
            if cfg.p7prio: a(f"s_setprio {cfg.p7prio}")
            if cfg.d14first:
                wo_dma(R, 14, wide); inter = {}
            else:
                inter = {f: [(14, f)] for f in range(NT)}
            inter.update({NT + f: [(12, f)] for f in range(NT)})
            p_ocompute(R, [10, 11], wide, inter=inter)
            wo_dma(R, 13, wide)
        b1()
    p_ocompute(R, [12, 13], wide, inter={f: [(15, f)] for f in range(NT)}, ofr=True)
    p_ocompute_last(R, wide)
    return nbar

def p_ocompute_last(R, wide):
    a = R.a
    NT = 8 if wide else 4
    D = 4; NB = 5
    rowb = 256 if wide else 128
    frs = [(kap, 2*ip + t) for ip in range(NT//2) for kap in (14, 15) for t in range(2)]
    def rd(f):
        kap, mt = frs[f]
        if f == 0: R.wait_vm("o14"); R.wait_vm("o15")
        b = ORING + 4*(f % NB)
        area, off = wo_slot(kap, wide)
        addr = (vWoR if area == 'own' else ALT) + mt
        R.lds_guard(2)
        R.lds(f"ds_read_b64_tr_b16 {vr(b,2)}, v{addr} offset:{off}", f"g{f}")
        R.lds(f"ds_read_b64_tr_b16 {vr(b+2,2)}, v{addr} offset:{off + 16*rowb}", f"g{f}")
    a(f"v_mbcnt_lo_u32_b32 v{VT}, -1, 0"); a(f"v_mbcnt_hi_u32_b32 v{VT}, -1, v{VT}"); a(f"v_lshlrev_b32 v{VT}, 4, v{VT}")
    a(f"s_mul_i32 s{sT2}, s2, {PART}"); a(f"s_mul_i32 s{sT3}, s{sIDX}, {12*1024}"); a(f"s_add_u32 s{sT2}, s{sT2}, s{sT3}")
    npub = 0
    def pub_pair(ip):
        nonlocal npub
        for nt in range(3):
            t = PUB[npub]; npub += 1
            d0, d1 = Outa(2*ip, nt), Outa(2*ip+1, nt)
            a(f"v_cvt_pk_bf16_f32 v{t}, v{d0}, v{d0+1}"); a(f"v_cvt_pk_bf16_f32 v{t+1}, v{d0+2}, v{d0+3}")
            a(f"v_cvt_pk_bf16_f32 v{t+2}, v{d1}, v{d1+1}"); a(f"v_cvt_pk_bf16_f32 v{t+3}, v{d1+2}, v{d1+3}")
            a(f"s_add_u32 s{sT1}, s{sT2}, {1024*(ip*3 + nt)}")
            R.vmem(f"buffer_store_dwordx4 {vr(t)}, v{VT}, {srd(SRD_WS)}, s{sT1} offen sc0 sc1", "pub")
    for f in range(D): rd(f)
    for f, (kap, mt) in enumerate(frs):
        ks = kap % 4
        if f + D < len(frs): rd(f + D)
        R.wait_lg(f"g{f}")
        for nt in range(3):
            d = Outa(mt, nt)
            a(f"v_mfma_f32_16x16x32_bf16 {vr(d)}, {vr(ORING + 4*(f % NB))}, {vr(Of(ks,nt))}, {vr(d)}")
        if f % 4 == 1 and f >= 5: pub_pair(f//4 - 1)
    pub_pair(NT//2 - 1)

def p_flag(R):
    a = R.a
    if cfg.tst: lstamp(a, 32)
    R.wait_vm_all()
    if cfg.tst: lstamp(a, 33)
    a(f"s_mul_i32 s{sT0}, s{sGRP}, {FSTR}"); a(f"s_add_u32 s{sT0}, s{sT0}, {FLG}")
    a(f"s_lshl_b32 s{sT1}, s{sG}, 2"); a(f"s_add_u32 s{sT1}, s{sT1}, s{sIDX}"); a(f"s_lshl_b32 s{sT1}, s{sT1}, 2")
    a(f"v_mov_b32 v2, s{sT1}"); a("v_mov_b32 v1, 1")
    a(f"s_mov_b64 s[{sEX}:{sEX+1}], exec")
    a("s_mov_b64 exec, 1")
    a(f"buffer_store_dword v1, v2, {srd(SRD_WS)}, s{sT0} offen sc0 sc1")
    a(f"s_mov_b64 exec, s[{sEX}:{sEX+1}]")

def emit_reduce(a):
    a.label("L_tail")
    if cfg.stamps: stamp(a, 50)
    a(f"s_min_u32 s{sT0}, s{sG}, 2"); a(f"s_mul_i32 s{sT1}, s{sG}, 5"); a(f"s_add_u32 s{sT0}, s{sT0}, s{sT1}")
    a(f"s_cmp_lt_u32 s{sG}, 2"); a(f"s_cselect_b32 s{sT1}, 6, 5")
    a(f"s_mov_b32 s80, s{sT1}")
    a(f"s_add_u32 s{sT0}, s{sT0}, s{sWAVE}")
    a("v_mbcnt_lo_u32_b32 v3, -1, 0"); a("v_mbcnt_hi_u32_b32 v3, -1, v3")
    a("v_lshlrev_b32 v6, 4, v3"); a("v_lshlrev_b32 v0, 2, v3")
    a(f"s_mul_i32 s{sT2}, s{sT0}, 171"); a(f"s_lshr_b32 s{sT2}, s{sT2}, 9")
    a(f"s_mul_i32 s{sT3}, s{sT2}, 3"); a(f"s_sub_u32 s{sT3}, s{sT0}, s{sT3}")
    a(f"s_lshl_b32 s{sT3}, s{sT3}, 4"); a(f"s_mul_i32 s{sT1}, s{sB}, 48"); a(f"s_add_u32 s{sT3}, s{sT3}, s{sT1}")
    a(f"s_mul_i32 s{sT3}, s{sT3}, 1792"); a(f"s_lshl_b32 s{sT2}, s{sT2}, 6"); a(f"s_add_u32 s{sT3}, s{sT3}, s{sT2}")
    a(f"s_mul_i32 s{sT1}, s{sBR}, 896"); a(f"s_add_u32 s78, s{sT3}, s{sT1}") if not cfg.lstamps else None
    if cfg.lstamps: a(f"s_mul_i32 s{sT1}, s{sBR}, 896"); a(f"s_add_u32 s100, s{sT3}, s{sT1}")
    sOUT = 100 if cfg.lstamps else 78
    a("v_and_b32 v7, 15, v3"); a(f"s_mov_b32 s{sT1}, 1792"); a(f"v_mul_lo_u32 v7, s{sT1}, v7")
    a("v_bfe_u32 v8, v3, 4, 1"); a("v_lshl_add_u32 v7, v8, 5, v7")
    a("v_lshrrev_b32 v8, 5, v3"); a("v_lshl_add_u32 v7, v8, 4, v7")
    a(f"s_lshl_b32 s{sT1}, s{sB}, 4"); a(f"s_lshl_b32 s{sT2}, s{sBR}, 2"); a(f"s_add_u32 s{sT1}, s{sT1}, s{sT2}")
    a(f"s_mul_i32 s{sT1}, s{sT1}, {PART}"); a(f"s_lshl_b32 s{sT2}, s{sT0}, 10"); a(f"s_add_u32 s{sT3}, s{sT1}, s{sT2}")
    if cfg.latepoll: a("s_barrier")
    a(f"s_cmp_lg_u32 s{sWAVE}, 0"); a("s_cbranch_scc1 L_nopoll")
    a(f"s_mul_i32 s{sT0}, s{sGRP}, {FSTR}"); a(f"s_add_u32 s{sT0}, s{sT0}, {FLG}")
    a(f"s_mov_b64 s[{sEX}:{sEX+1}], exec")
    a("s_mov_b32 exec_hi, 0")
    a(f"s_mov_b32 s{sT2}, 0")
    a.label("L_poll")
    a(f"buffer_load_dword v4, v0, {srd(SRD_WS)}, s{sT0} offen sc0 sc1")
    a("s_waitcnt vmcnt(0)")
    a("v_cmp_eq_u32 vcc, 1, v4")
    a("s_cmp_eq_u32 vcc_lo, -1")
    a("s_cbranch_scc1 L_poll_done")
    a(f"s_add_u32 s{sT2}, s{sT2}, 1")
    a(f"s_cmp_ge_u32 s{sT2}, 400000")
    a("s_cbranch_scc1 L_poll_done")
    if cfg.sleep: a(f"s_sleep {cfg.sleep}")
    a("s_branch L_poll")
    a.label("L_poll_done")
    a(f"s_mov_b64 exec, s[{sEX}:{sEX+1}]")
    a.label("L_nopoll")
    a("s_barrier")
    a(f"s_cmp_ge_u32 s{sWAVE}, s80")
    a("s_cbranch_scc1 " + ("L_nogather" if cfg.stamps else ("L_mini" if cfg.mini else "L_end")))
    if cfg.stamps: stamp(a, 52)
    for k in range(8):
        gb, gp = k >> 2, k & 3
        a(f"s_add_u32 s{sT2}, s{sT3}, {(gb*8 + gp)*PART}")
        a(f"buffer_load_dwordx4 {vr(64+4*k)}, v6, {srd(SRD_WS)}, s{sT2} offen sc0 sc1")
    acc = 16
    for k in range(8):
        a(f"s_waitcnt vmcnt({7-k})")
        for r in range(4):
            src = 64 + 4*k + r
            if k == 0:
                a(f"v_lshlrev_b32 v{acc+2*r}, 16, v{src}"); a(f"v_and_b32 v{acc+2*r+1}, 0xffff0000, v{src}")
            else:
                t = 8 + 2*(r & 1) + 2
                a(f"v_lshlrev_b32 v{t}, 16, v{src}"); a(f"v_and_b32 v{t+1}, 0xffff0000, v{src}")
                a(f"v_pk_add_f32 {vr(acc+2*r,2)}, {vr(acc+2*r,2)}, {vr(t,2)}")
    for r in range(4):
        a(f"v_cvt_pk_bf16_f32 v{12+r}, v{acc+2*r}, v{acc+2*r+1}")
    a("v_permlane16_swap_b32 v12, v14")
    a("v_permlane16_swap_b32 v13, v15")
    a(f"buffer_store_dwordx4 v[12:15], v7, {srd(SRD_OUT)}, s{sOUT} offen")
    if cfg.stamps:
        a("s_waitcnt vmcnt(0)")
        a.label("L_nogather")
        stamp(a, 53)
        a("s_memtime s[74:75]"); a("s_waitcnt lgkmcnt(0)"); a("v_writelane_b32 v61, s74, 61")
        stamp_store(a)
    if cfg.mini:
        a.label("L_mini")
        a("s_memrealtime s[72:73]"); a("s_waitcnt vmcnt(0) lgkmcnt(0)")
        a("s_memrealtime s[72:73]"); a("s_waitcnt lgkmcnt(0)")
        a("v_mov_b32 v61, 0"); a("v_writelane_b32 v61, s90, 62"); a("v_writelane_b32 v61, s72, 53")
        stamp_store(a)
    a.label("L_end")
    a("s_endpgm")

def build():
    a = Asm()
    if cfg.mini:
        a("s_memrealtime s[90:91]")
    if cfg.stamps:
        a("s_memrealtime s[72:73]"); a("s_memtime s[74:75]"); a("s_waitcnt lgkmcnt(0)")
        a("v_writelane_b32 v61, s72, 62"); a("v_writelane_b32 v61, s74, 60")
    emit_prologue(a)
    cnt = {"n": 0}
    def bar():
        a("s_barrier")
        if cfg.stamps: stamp(a, cnt["n"])
        cnt["n"] += 1
    A = Role(a)
    if cfg.prioA: a(f"s_setprio {cfg.prioA}")
    a_setup(A)
    if cfg.pf_first: a_pf(A, "wq")
    bar()
    if not cfg.pf_first: a_pf(A, "wq")
    a_setup2(A)
    bar()
    a0_flag_zero(A)
    for kap in range(4): wq_dma(A, kap, vWqA)
    a_issue_KV(A, "K", 0)
    a_setup3(A)
    a_pair_init(A)
    A.wait_vm("w3")
    a0_flag_mark(A)
    bar()
    bar()
    a_issue_KV(A, "K", 1)
    A.wait_vm("K0")
    bar()
    a_S(A, 0)
    A.wait_vm("K1")
    bar()
    a_S(A, 1, dma=("K", 2)); A.wait_vm("K2"); bar()
    a_flag_load(A)
    a_S(A, 2, dma=("K", 3)); A.wait_vm("K3"); a_flag_check(A); bar()
    a_S(A, 3, dma=("K", 4)); A.wait_vm("K4"); bar()
    a_issue_KV(A, "K", 5)
    bar()
    a_S(A, 4)
    A.wait_vm("K5")
    bar()
    a_S(A, 5)
    bar()
    a_S(A, 6)
    if cfg.split_sm: a_softmax1(A)
    bar()
    a_S(A, 7)
    if not cfg.split_sm: a_softmax1(A)
    a_softmax2(A)
    bar()
    for n in range(8):
        dma = ("V", n+1) if (1 <= n <= 6 and not cfg.pv_all) else None
        if cfg.prio7 and n == cfg.prio7from: a(f"s_setprio {cfg.prio7}")
        a_PV(A, n, dma)
        if n == 0:
            a_alpha(A); a_pair_addr(A)
        if n % 2 == 0:
            a_rescale(A)
        else:
            a_pair_sync(A, n >> 1)
            a_xfinal(A)
        if 1 <= n < 7 and not cfg.pv_all: A.wait_vm(f"V{n+1}")
        A.wait_lg_all()
        bar()
    nA = cnt["n"]
    A.wait_vm_all()
    a("s_branch L_tail")
    a.label("L_P")
    cnt["n"] = 0
    P = Role(a)
    stamp_move(a, 39)
    if cfg.stamps: stamp(a, 55)
    if cfg.prioP: a(f"s_setprio {cfg.prioP}")
    P.vm += ["x"]*12
    if cfg.stamps: stamp(a, 56)
    bar()
    p_setup2(P)
    P.wait_vm("x"); bar()
    p_xfrags(P)
    if cfg.j0s5:
        a(f"s_lshl_b32 s{sWq5}, s{sIDX}, 12"); a(f"s_add_u32 s{sWq5}, s{sWq5}, {QB}")
        a(f"s_sub_u32 s{sT0}, s{sWq5}, s{sWp}")
        for mt in range(4): a(f"v_add_u32 v{vWqR5+mt}, s{sT0}, v{vWqR+mt}")
    bar()
    if cfg.j0s5: wq_dma(P, 4, vWqD)
    p_qcompute(P, list(range(14)), True, hooks={cfg.k1_after: bar})
    bar()
    if cfg.pkprio: a(f"s_setprio {cfg.pkprio}")
    for kap in (14, 15, 16, 17): wq_dma(P, kap, vWqD)
    bar()
    for kaps, nxt in (([14,15], [18,19]), ([16,17,18,19], [20,21,22,23]), ([20,21,22,23], [24,25,26,27]), ([24,25,26,27], [])):
        p_qcompute(P, kaps, False)
        for kap in nxt: wq_dma(P, kap, vWqD)
        bar()
    if cfg.pkprio: a("s_setprio 0")
    a(f"s_cmp_eq_u32 s{sIDX}, 3")
    a("s_cbranch_scc1 L_P3")
    base = cnt["n"]
    for wide in (True, False):
        if not wide:
            a.label("L_P3"); cnt["n"] = base
        Pw = Role(a)
        STREG[0] = 39
        stamp_move(a, 47)
        p_kv_setup(Pw, first=True)
        p_issue_KV(Pw, "K", 6)
        p_vsetup(Pw, wide)
        bar()
        p_issue_KV(Pw, "K", 7); Pw.wait_vm("K6"); bar()
        p_issue_KV(Pw, "V", 0); Pw.wait_vm("K7"); bar()
        p_issue_KV(Pw, "V", 1); p_pf_wo(Pw); p_tlb_warm(Pw); Pw.wait_vm("V0"); bar()
        Pw.wait_vm("V1")
        nb = p_oproj_phase(Pw, bar, wide)
        assert nb == 8, nb
        if cfg.stamps: stamp(a, 59)
        p_flag(Pw)
        if cfg.stamps: stamp(a, 58)
        assert cnt["n"] == nA, (cnt["n"], nA)
        stamp_move(a, 61)
        if wide: a("s_branch L_tail")
    emit_reduce(a)
    a.finalize()
    return a

HEADER = open("cdna_kernels/" + NAME + ".s.ref").read().split("; Override launch")[0]
def full_text(a):
    s = HEADER
    s += f"; @launch grid=(256,1,1) block=(512,1,1) lds={LDS_BYTES}\n"
    s += f'.amdgcn_target "amdgcn-amd-amdhsa--gfx950"\n.text\n.globl {NAME}_kernel\n.p2align 8\n.type {NAME}_kernel,@function\n{NAME}_kernel:\n'
    body = a.text()
    if cfg.icpf:
        body = body.replace("  s_endpgm\n", "  s_endpgm\nL_code_end:\n") if body.count("s_endpgm") == 1 else body + "L_code_end:\n"
        body = body.replace("CODE_BYTES", f"L_code_end-{NAME}_kernel")
    s += body
    s += f""".section .rodata,"a"
.p2align 6
.amdhsa_kernel {NAME}_kernel
  .amdhsa_next_free_vgpr 256
  .amdhsa_next_free_sgpr 102
  .amdhsa_accum_offset 256
  .amdhsa_group_segment_fixed_size 0
  .amdhsa_kernarg_size 104
  .amdhsa_user_sgpr_count 2
  .amdhsa_user_sgpr_kernarg_segment_ptr 1
  .amdhsa_system_sgpr_workgroup_id_x 1
.end_amdhsa_kernel
"""
    return s

if __name__ == "__main__":
    out = sys.argv[1] if len(sys.argv) > 1 else "cdna_kernels/" + NAME + ".s"
    for kv in sys.argv[2:]:
        k, v = kv.split("=", 1)
        cur = getattr(cfg, k)
        if isinstance(cur, bool): v = v.lower() in ("1", "true")
        elif isinstance(cur, int): v = int(v)
        setattr(cfg, k, v)
    a = build()
    open(out, "w").write(full_text(a))
    print("wrote", out, "instrs:", sum(1 for i in a.ins if i.kind not in ('none','label')), "nops inserted:", a.nops_inserted)
```

```python
import sys, math, struct
from asmlib import Asm

NAME = "concat_heads__gqa_block_cached__gqa_block_cached__near_ridge"

class Cfg:
    k_flags = "nt"
    v_flags = "nt"
    w_flags = ""
    pf = True
    pf_flags = ""
    stamps = False
    lstamps = False
    mini = False
    prioA = 0
    prioP = 0
    dq = 4
    pf_wo_at = 8
    k1_after = 9
    split_sm = True
    sleep = 0
    interleave = False
    pf_first = False
    wo_first_after = 7
    tst = False
    altprio = True
    pv_all = True
    latepoll = True
    pvprio = 0
    pkprio = 0
    p7prio = 0
    d14first = False
    tlbw = True
    icpf = True
    prio7 = 0
    prio7from = 7
    pkv = True
    unpack = True
    j0s5 = True
    rot = 1
    kst = False
cfg = Cfg()

KVA, KVB = 0, 32768
WB = 65536
QB = 131072
OB = 122880
XB = 135168
STAT = 159744
PFL = 161280
LDS_BYTES = 163840
PART = 43008
FLG = 16 << 20
FSTR = 8448
sWAVE, sIDX, sG, sB, sBR = 3, 4, 5, 6, 7
SRD_K, SRD_V, SRD_WQ, SRD_WO, SRD_X, SRD_OUT, SRD_WS = 8, 12, 16, 20, 24, 28, 32
sDBG = 58
sM0, sWp = 62, 63
sC = 64
sT0, sT1, sT2, sT3 = 66, 67, 68, 69
sEX = 70
sGRP, sXo = 76, 77
sCOL = 36
sJ = 44
def srd(b): return f"s[{b}:{b+3}]"
def vr(b, n=4): return f"v[{b}:{b+n-1}]"
def f32bits(x): return struct.unpack('<I', struct.pack('<f', x))[0]
vL, vQ, vGq = 44, 46, 47

class Role:
    def __init__(self, a): self.a = a; self.vm = []; self.lg = []
    def vmem(self, text, tag): self.a(text); self.vm.append(tag)
    def lds(self, text, tag): self.a(text); self.lg.append(tag)
    def wait_vm(self, tag):
        idx = [i for i, t in enumerate(self.vm) if t == tag]
        if not idx: return
        n = len(self.vm) - 1 - idx[-1]
        assert n <= 63
        self.a(f"s_waitcnt vmcnt({n})"); self.vm = self.vm[idx[-1]+1:]
    def wait_lg(self, tag):
        idx = [i for i, t in enumerate(self.lg) if t == tag]
        if not idx: return
        n = len(self.lg) - 1 - idx[-1]
        assert n <= 15, n
        self.a(f"s_waitcnt lgkmcnt({n})"); self.lg = self.lg[idx[-1]+1:]
    def wait_vm_all(self): self.a("s_waitcnt vmcnt(0)"); self.vm = []
    def wait_lg_all(self): self.a("s_waitcnt lgkmcnt(0)"); self.lg = []
    def lds_guard(self, n_new):
        if len(self.lg) + n_new > 15:
            keep = 15 - n_new
            self.a(f"s_waitcnt lgkmcnt({keep})"); self.lg = self.lg[len(self.lg)-keep:] if keep else []

STREG = [61]
PEND = []
def stamp(a, idx):
    a("s_memrealtime s[72:73]")
    a("s_waitcnt lgkmcnt(0)")
    a(f"v_writelane_b32 v{STREG[0]}, s72, {idx}")
    for (sp, i2) in PEND: a(f"v_writelane_b32 v{STREG[0]}, s{sp}, {i2}")
    PEND.clear()
def lstamp(a, idx):
    if not cfg.lstamps: return
    sp = 78 + 2*len(PEND)
    assert sp <= 98
    a(f"s_memrealtime s[{sp}:{sp+1}]")
    PEND.append((sp, idx))
def stamp_move(a, new):
    if cfg.stamps: a(f"v_mov_b32 v{new}, v{STREG[0]}")
    STREG[0] = new
def stamp_store(a):
    a(f"s_lshl_b32 s{sT0}, s2, 3"); a(f"s_add_u32 s{sT0}, s{sT0}, s{sWAVE}"); a(f"s_lshl_b32 s{sT0}, s{sT0}, 8")
    a("v_mbcnt_lo_u32_b32 v60, -1, 0"); a("v_mbcnt_hi_u32_b32 v60, -1, v60")
    a(f"v_lshlrev_b32 v60, 2, v60"); a(f"v_add_u32 v60, s{sT0}, v60")
    a("s_add_u32 s74, s60, 0x2000000"); a("s_addc_u32 s75, s61, 0")
    a("global_store_dword v60, v61, s[74:75]")
    a("s_waitcnt vmcnt(0)")

def emit_prologue(a):
    a("s_cmp_ge_u32 s2, 256")
    a("s_cbranch_scc1 L_end")
    a("s_load_dwordx16 s[36:51], s[0:1], 0")
    a("s_load_dwordx4 s[52:55], s[0:1], 64")
    a("s_load_dwordx4 s[56:59], s[0:1], 80")
    a("s_load_dwordx2 s[60:61], s[0:1], 96")
    a("v_and_b32 v44, 63, v0")
    a("v_lshrrev_b32 v45, 6, v0")
    a("v_and_b32 v46, 15, v44")
    a("v_lshrrev_b32 v47, 4, v44")
    a(f"v_readfirstlane_b32 s{sWAVE}, v45")
    a(f"s_bfe_u32 s{sBR}, s2, 0x10002")
    a(f"s_and_b32 s{sG}, s2, 3"); a(f"s_lshl_b32 s{sG}, s{sG}, 1")
    a(f"s_bfe_u32 s{sT0}, s2, 0x10003"); a(f"s_or_b32 s{sG}, s{sG}, s{sT0}")
    a(f"s_lshr_b32 s{sB}, s2, 4")
    a(f"s_and_b32 s{sIDX}, s{sWAVE}, 3")
    a(f"s_lshl_b32 s{sGRP}, s{sBR}, 4"); a(f"s_add_u32 s{sGRP}, s{sGRP}, s{sB}")
    a(f"s_mov_b32 s{sC}, 0x{f32bits(math.log2(math.e)/16.0):08x}"); a(f"s_mov_b32 s{sC+1}, s{sC}")
    a_code_prefetch(Role(a))
    p_setup_pre(a)
    a("s_waitcnt lgkmcnt(0)")
    if cfg.stamps: stamp(a, 54)
    a(f"s_cmp_eq_u32 s{sBR}, 0")
    a("s_cselect_b64 s[36:37], s[36:37], s[46:47]")
    def mk(srdb, ptr, off_s, size):
        if off_s is None:
            a(f"s_mov_b32 s{srdb}, s{ptr}"); a(f"s_and_b32 s{srdb+1}, s{ptr+1}, 0xffff")
        else:
            a(f"s_add_u32 s{srdb}, s{ptr}, s{off_s}")
            a(f"s_addc_u32 s{srdb+1}, s{ptr+1}, 0")
            a(f"s_and_b32 s{srdb+1}, s{srdb+1}, 0xffff")
        if isinstance(size, int): a(f"s_mov_b32 s{srdb+2}, {size}")
        else: a(size)
        a(f"s_mov_b32 s{srdb+3}, 0x20000")
    a(f"s_mul_i32 s{sT1}, s{sB}, 43008")
    mk(SRD_X, 36, sT1, 43008)
    a(f"s_cmp_lt_u32 s{sWAVE}, 4"); a("s_cbranch_scc1 L_nox")
    PX = Role(a); p_setup(PX)
    a.label("L_nox")
    a(f"s_cmp_eq_u32 s{sBR}, 0")
    for i in range(1, 5):
        a(f"s_cselect_b64 s[{36+2*i}:{37+2*i}], s[{36+2*i}:{37+2*i}], s[{46+2*i}:{47+2*i}]")
    a(f"s_lshl_b32 s{sT1}, s{sG}, 10")
    mk(SRD_WQ, 42, sT1, f"s_sub_u32 s{SRD_WQ+2}, {448*8192}, s{sT1}")
    a(f"s_lshl_b32 s{sT0}, s{sB}, 3"); a(f"s_add_u32 s{sT0}, s{sT0}, s{sG}"); a(f"s_lshl_b32 s{sT0}, s{sT0}, 18")
    mk(SRD_K, 38, sT0, 262144)
    mk(SRD_V, 40, sT0, 262144)
    a(f"s_mul_i32 s{sT1}, s{sG}, 458752")
    mk(SRD_WO, 44, sT1, 458752)
    mk(SRD_OUT, 56, None, 16*48*896*2)
    mk(SRD_WS, 60, None, FLG + 32*FSTR)
    if cfg.rot == 0:
        for j in range(4):
            a(f"s_movk_i32 s{sCOL+j}, {128*j}"); a(f"s_mov_b32 s{sCOL+4+j}, {64*j*896}")
        a(f"s_lshr_b32 s{sT2}, s{sIDX}, 1"); a(f"s_lshl_b32 s{sJ}, s{sT2}, 7"); a(f"s_add_u32 s{sJ+1}, s{sJ}, 256")
    else:
        if cfg.rot == 0: a(f"s_mov_b32 s{sT0}, 0")
        elif cfg.rot == 1: a(f"s_and_b32 s{sT0}, s{sB}, 3")
        elif cfg.rot == 2: a(f"s_add_u32 s{sT0}, s{sB}, s{sG}"); a(f"s_and_b32 s{sT0}, s{sT0}, 3")
        elif cfg.rot == 3: a(f"s_and_b32 s{sT0}, s{sB}, 1"); a(f"s_lshl_b32 s{sT0}, s{sT0}, 1")
        for j in range(4):
            a(f"s_add_u32 s{sT1}, s{sT0}, {j}"); a(f"s_and_b32 s{sT1}, s{sT1}, 3")
            a(f"s_lshl_b32 s{sCOL+j}, s{sT1}, 7"); a(f"s_mul_i32 s{sCOL+4+j}, s{sT1}, {64*896}")
        a(f"s_lshr_b32 s{sT2}, s{sIDX}, 1")
        for J in range(2):
            a(f"s_add_u32 s{sT1}, s{sT0}, s{sT2}"); a(f"s_add_u32 s{sT1}, s{sT1}, {2*J}"); a(f"s_and_b32 s{sT1}, s{sT1}, 3")
            a(f"s_lshl_b32 s{sJ+J}, s{sT1}, 7")
    a(f"s_cmp_ge_u32 s{sWAVE}, 4")
    a("s_cbranch_scc1 L_P")

def wq_dma_pattern(a, dst, l, g, t0, t1):
    a(f"v_lshrrev_b32 v{t0}, 3, v{l}"); a(f"v_lshlrev_b32 v{t0}, 13, v{t0}")
    a(f"v_bfe_u32 v{t1}, v{l}, 1, 2"); a(f"v_xor_b32 v{t1}, v{t1}, v{g}")
    a(f"v_lshl_add_u32 v{t0}, v{t1}, 5, v{t0}")
    a(f"v_and_b32 v{t1}, 1, v{l}"); a(f"v_lshl_add_u32 v{t0}, v{t1}, 4, v{t0}")
    a(f"s_and_b32 s{sT0}, s{sIDX}, 1"); a(f"s_lshl_b32 s{sT0}, s{sT0}, 9")
    a(f"v_add_u32 v{dst}, s{sT0}, v{t0}")

NSLOT_Q = 4
def wq_slot(kap):
    if cfg.j0s5 and kap < 14:
        sl = kap % 5
        return ('q', 0) if sl == 4 else ('own', sl*4096)
    return ('own', (kap % NSLOT_Q)*4096)
sWq5 = 47
def wq_dma(R, kap, vpat, ii_list=range(4)):
    a = R.a
    J, s = divmod(kap, 14)
    area, off = wq_slot(kap)
    for ii in ii_list:
        a(f"s_add_u32 m0, s{sWp if area == 'own' else sWq5}, {off + 1024*ii}")
        a(f"s_add_u32 s{sT1}, s{sJ+J}, {(32*s + 8*ii)*8192}")
        R.vmem(f"buffer_load_dwordx4 v{vpat}, {srd(SRD_WQ)}, s{sT1} offen {cfg.w_flags} lds", f"w{kap}")

def S_(t, nt): return 64 + (t*3 + nt)*4
def Qf(s, nt): return (s*3 + nt)*4
KF = 24
vKdE, vKdO, vVd, vWqA = 48, 49, 50, 51

def a_code_prefetch(R):
    a = R.a
    if not cfg.icpf: return
    a(f"s_cmp_lg_u32 s{sWAVE}, 3"); a("s_cbranch_scc1 L_icpf_skip")
    a("s_getpc_b64 s[72:73]")
    a.label("L_icpf_pc")
    a(f"s_sub_u32 s72, s72, L_icpf_pc-{NAME}_kernel"); a("s_subb_u32 s73, s73, 0")
    a(f"s_lshr_b32 s{sT0}, s2, 3"); a(f"s_lshl_b32 s{sT0}, s{sT0}, 11")
    a(f"v_lshlrev_b32 v58, 7, v{vL}"); a(f"v_add_u32 v58, s{sT0}, v58")
    a(f"s_mov_b64 s[{sEX}:{sEX+1}], exec"); a("s_mov_b64 exec, 0xffff")
    a("v_cmp_gt_u32 vcc, CODE_BYTES, v58")
    a("s_and_b64 exec, exec, vcc")
    a("s_cbranch_execz L_icpf_rest")
    a("global_load_dword v60, v58, s[72:73]")
    a.label("L_icpf_rest")
    a(f"s_mov_b64 exec, s[{sEX}:{sEX+1}]")
    a.label("L_icpf_skip")

def a_setup(R):
    a = R.a
    a(f"s_lshl_b32 s{sM0}, s{sIDX}, 13")
    a(f"s_lshl_b32 s{sWp}, s{sIDX}, 14"); a(f"s_add_u32 s{sWp}, s{sWp}, {WB}")
    if cfg.pf:
        a(f"v_lshrrev_b32 v52, 3, v{vL}"); a("v_lshlrev_b32 v52, 13, v52")
        a(f"v_and_b32 v53, 7, v{vL}"); a("v_lshl_add_u32 v56, v53, 7, v52")
        a(f"s_mul_i32 s{sT2}, s{sB}, 28"); a(f"s_lshl_b32 s{sT3}, s{sIDX}, 3"); a(f"s_add_u32 s{sT2}, s{sT2}, s{sT3}")
        a(f"s_lshl_b32 s{sT2}, s{sT2}, 13")

def a_pf(R, which):
    a = R.a
    if not cfg.pf: return
    if which == "wq":
        a(f"s_cmp_eq_u32 s{sIDX}, 3"); a("s_cselect_b32 exec_hi, 0, -1")
        R.vmem(f"buffer_load_dword v63, v56, {srd(SRD_WQ)}, s{sT2} offen {cfg.pf_flags}", "pf")
        a("s_mov_b32 exec_hi, -1")
    else:
        a(f"v_lshlrev_b32 v58, 7, v{vL}")
        a(f"s_mul_i32 s{sT2}, s{sB}, 28672"); a(f"s_lshl_b32 s{sT3}, s{sIDX}, 13"); a(f"s_add_u32 s{sT2}, s{sT2}, s{sT3}")
        R.vmem(f"buffer_load_dword v62, v58, {srd(SRD_WO)}, s{sT2} offen {cfg.pf_flags}", "pf")

def a_setup2(R):
    a = R.a
    wq_dma_pattern(a, vWqA, vL, vGq, 52, 53)
    a(f"v_lshrrev_b32 v52, 3, v{vL}"); a("v_lshlrev_b32 v52, 9, v52")
    a(f"s_lshl_b32 s{sT1}, s{sIDX}, 15"); a(f"v_add_u32 v52, s{sT1}, v52")
    a(f"v_and_b32 v53, 7, v{vL}"); a(f"v_xor_b32 v54, v53, v{vGq}")
    a(f"v_lshl_add_u32 v{vKdE}, v54, 4, v52")
    a("v_xor_b32 v54, 4, v54"); a(f"v_lshl_add_u32 v{vKdO}, v54, 4, v52")
    a("v_lshrrev_b32 v54, 1, v53"); a(f"v_xor_b32 v54, v54, v{vGq}")
    a("v_lshl_add_u32 v54, v54, 5, v52")
    a(f"v_and_b32 v55, 1, v{vL}"); a(f"v_lshl_add_u32 v{vVd}, v55, 4, v54")

def a_setup3(R):
    a = R.a
    a(f"s_lshr_b32 s{sT0}, s{sIDX}, 1")
    a(f"s_and_b32 s{sT1}, s{sIDX}, 1")
    a(f"v_lshrrev_b32 v52, 1, v{vQ}")
    a(f"v_xor_b32 v53, v{vGq}, v52")
    a(f"v_xor_b32 v54, 4, v53")
    a(f"s_lshl_b32 s{sT2}, s{sT1}, 14")
    a(f"v_lshlrev_b32 v55, 7, v{vQ}")
    a(f"v_add_u32 v55, s{sT2}, v55")
    a(f"v_lshl_add_u32 v40, v53, 4, v55")
    a(f"v_lshl_add_u32 v41, v54, 4, v55")
    a(f"s_mul_i32 s{sT2}, s{sT0}, {48*128}")
    a(f"s_add_u32 s{sT2}, s{sT2}, {QB}")
    a(f"v_lshlrev_b32 v55, 7, v{vQ}")
    a(f"v_add_u32 v55, s{sT2}, v55")
    a(f"v_lshl_add_u32 v42, v53, 4, v55")
    a(f"v_lshl_add_u32 v43, v54, 4, v55")

def a_pair_init(R):
    a = R.a
    a(f"s_lshl_b32 s{sT0}, s{sIDX}, 4"); a(f"s_add_u32 s{sT0}, s{sT0}, {PFL}")
    a(f"v_mov_b32 v55, s{sT0}"); a("v_mov_b32 v56, 0")
    R.lds("ds_write_b32 v55, v56", "pf0")
    R.wait_lg_all()

def a_pair_addr(R):
    a = R.a
    a(f"s_lshl_b32 s{sT0}, s{sIDX}, 4"); a(f"s_add_u32 s{sT0}, s{sT0}, {PFL}")
    a(f"v_mov_b32 v55, s{sT0}"); a(f"s_xor_b32 s{sT0}, s{sT0}, 16"); a(f"v_mov_b32 v56, s{sT0}")

def a_pair_sync(R, j):
    a = R.a
    R.wait_lg_all()
    a(f"v_mov_b32 v57, {j+1}")
    a("ds_write_b32 v55, v57")
    a.label(f"L_ps{j}")
    a("ds_read_b32 v57, v56")
    a("s_waitcnt lgkmcnt(0)")
    a(f"v_readfirstlane_b32 s{sT0}, v57")
    a(f"s_cmp_lt_u32 s{sT0}, {j+1}")
    a(f"s_cbranch_scc1 L_ps{j}")

def kv_dma(R, kind, n, ii):
    a = R.a
    j, w = n >> 1, n & 1
    buf = KVA if w == 0 else KVB
    a(f"s_add_u32 m0, s{sM0}, {buf + 1024*ii}")
    a(f"s_add_u32 s{sT1}, s{sCOL+j}, {131072*w + 4096*ii}")
    if kind == "K":
        R.vmem(f"buffer_load_dwordx4 v{vKdE + (ii & 1)}, {srd(SRD_K)}, s{sT1} offen {cfg.k_flags} lds", f"K{n}")
    else:
        R.vmem(f"buffer_load_dwordx4 v{vVd}, {srd(SRD_V)}, s{sT1} offen {cfg.v_flags} lds", f"V{n}")
def a_issue_KV(R, kind, n):
    R.a.comment(f"---- issue {kind} window {n}")
    for ii in range(8): kv_dma(R, kind, n, ii)

def a0_flag_zero(R):
    a = R.a
    a(f"s_or_b32 s{sT0}, s{sG}, s{sIDX}"); a(f"s_cmp_lg_u32 s{sT0}, 0"); a("s_cbranch_scc1 L_fz_skip")
    a(f"s_mul_i32 s{sT0}, s{sGRP}, {FSTR}"); a(f"s_add_u32 s{sT0}, s{sT0}, {FLG}")
    a(f"v_lshlrev_b32 v58, 2, v{vL}"); a("v_mov_b32 v59, 0")
    a(f"s_mov_b64 s[{sEX}:{sEX+1}], exec"); a("s_mov_b32 exec_hi, 0")
    a(f"buffer_store_dword v59, v58, {srd(SRD_WS)}, s{sT0} offen sc0 sc1")
    a(f"s_mov_b64 exec, s[{sEX}:{sEX+1}]")
    a.label("L_fz_skip")

def a0_flag_mark(R):
    a = R.a
    a(f"s_or_b32 s{sT0}, s{sG}, s{sIDX}"); a(f"s_cmp_lg_u32 s{sT0}, 0"); a("s_cbranch_scc1 L_fm_skip")
    a(f"s_lshl_b32 s{sT0}, s{sGRP}, 2"); a(f"v_mov_b32 v58, s{sT0}"); a("v_mov_b32 v59, 1")
    a(f"s_mov_b64 s[{sEX}:{sEX+1}], exec"); a("s_mov_b64 exec, 1")
    a(f"global_store_dword v58, v59, s[{sDBG}:{sDBG+1}] sc0 sc1")
    a(f"s_mov_b64 exec, s[{sEX}:{sEX+1}]")
    a.label("L_fm_skip")

def a_flag_load(R):
    a = R.a
    a(f"s_lshl_b32 s{sT0}, s{sGRP}, 2"); a(f"v_mov_b32 v58, s{sT0}")
    R.vmem(f"global_load_dword v59, v58, s[{sDBG}:{sDBG+1}] sc0 sc1", "chk")
def a_flag_check(R):
    a = R.a
    R.wait_vm("chk")
    a(f"s_mov_b32 s{sT2}, 0")
    a.label("L_fc_poll")
    a(f"v_readfirstlane_b32 s{sT1}, v59")
    a(f"s_cmp_eq_u32 s{sT1}, 1"); a("s_cbranch_scc1 L_fc_skip")
    a(f"s_add_u32 s{sT2}, s{sT2}, 1"); a(f"s_cmp_ge_u32 s{sT2}, 400000"); a("s_cbranch_scc1 L_fc_skip")
    a("s_sleep 2")
    a(f"global_load_dword v59, v58, s[{sDBG}:{sDBG+1}] sc0 sc1")
    a("s_waitcnt vmcnt(0)")
    a("s_branch L_fc_poll")
    a.label("L_fc_skip")

T1, T2 = WB, WB + 32768
def a_S(R, n, dma=None):
    a = R.a
    j, w = n >> 1, n & 1
    buf = KVA if w == 0 else KVB
    if n >= 6:
        if n == 6:
            for s2 in range(2): a(f"v_add_u32 v{40+s2}, {T1}, v{40+s2}")
        buf = 0 if n == 6 else 32768
    if w == 0:
        for s in range(2):
            for nt in range(3):
                R.lds(f"ds_read_b128 {vr(Qf(s,nt))}, v{42+s} offset:{12288*(j & 1) + 2048*nt}", "q")
    frs = [(i, s) for i in range(8) for s in range(2)]
    NB = 4
    def rd(k):
        i, s = frs[k]
        R.lds(f"ds_read_b128 {vr(KF + 4*(k % NB))}, v{40+s} offset:{buf + 2048*i}", f"kf{k}")
    for k in range(NB-1): rd(k)
    if dma and not cfg.interleave:
        for ii in range(8): kv_dma(R, dma[0], dma[1], ii)
        dma = None
    for k, (i, s) in enumerate(frs):
        if k + NB - 1 < len(frs): rd(k + NB - 1)
        if dma and k < 8: kv_dma(R, dma[0], dma[1], k)
        R.wait_lg(f"kf{k}")
        for nt in range(3):
            d = S_(8*w + i, nt)
            c = "0" if (j == 0 and s == 0) else vr(d)
            a(f"v_mfma_f32_16x16x32_bf16 {vr(d)}, {vr(KF + 4*(k % NB))}, {vr(Qf(s,nt))}, {c}")

M1 = (52, 54, 56)
L1 = (53, 55, 57)
BETA = (0, 2, 4); ALO = (6, 8, 10); ALP = (12, 14, 16)
ONES1, ONES2 = 36, 20
def Pf(w, s, nt): return S_(8*w + 2*s, nt)
def Oa(mt, nt): return S_(2*mt + 1, nt)
def XT(i, nt): return S_(9 + 2*i, nt)

def _rowmax(a, tiles, dst, tmp):
    for nt in range(3):
        m = dst[nt]
        vals = [S_(t, nt) + r for t in tiles for r in range(4)]
        a(f"v_max3_f32 v{m}, v{vals[0]}, v{vals[1]}, v{vals[2]}")
        a(f"v_max3_f32 v{tmp}, v{vals[3]}, v{vals[4]}, v{vals[5]}")
        k = 6
        while k + 3 < len(vals):
            a(f"v_max3_f32 v{m}, v{m}, v{vals[k]}, v{vals[k+1]}")
            a(f"v_max3_f32 v{tmp}, v{tmp}, v{vals[k+2]}, v{vals[k+3]}")
            k += 4
        rest = vals[k:]
        assert len(rest) == 2
        a(f"v_max3_f32 v{m}, v{m}, v{rest[0]}, v{rest[1]}")
        a(f"v_max_f32 v{m}, v{m}, v{tmp}")
    for nt in range(3):
        m = dst[nt]
        a(f"v_mov_b32 v{tmp+nt}, v{m}")
    for nt in range(3):
        a(f"v_permlane32_swap_b32 v{tmp+nt}, v{dst[nt]}")
    for nt in range(3):
        a(f"v_max_f32 v{dst[nt]}, v{tmp+nt}, v{dst[nt]}")
    for nt in range(3):
        a(f"v_mov_b32 v{tmp+nt}, v{dst[nt]}")
    for nt in range(3):
        a(f"v_permlane16_swap_b32 v{tmp+nt}, v{dst[nt]}")
    for nt in range(3):
        a(f"v_max_f32 v{dst[nt]}, v{tmp+nt}, v{dst[nt]}")
        a(f"v_mul_f32 v{dst[nt]}, s{sC}, v{dst[nt]}")

def _exppack(a, t0s, mreg):
    for t0 in t0s:
        for nt in range(3):
            m = mreg[nt]
            b0, b1 = S_(t0, nt), S_(t0+1, nt)
            for b in (b0, b0+2, b1, b1+2):
                a(f"v_pk_fma_f32 {vr(b,2)}, {vr(b,2)}, s[{sC}:{sC+1}], {vr(m,2)} op_sel_hi:[1,1,0] neg_lo:[0,0,1] neg_hi:[0,0,1]")
            src = [b0+r for r in range(4)] + [b1+r for r in range(4)]
            for v in src: a(f"v_exp_f32 v{v}, v{v}")
            a(f"v_cvt_pk_bf16_f32 v{b0}, v{src[0]}, v{src[1]}")
            a(f"v_cvt_pk_bf16_f32 v{b0+1}, v{src[2]}, v{src[3]}")
            a(f"v_cvt_pk_bf16_f32 v{b0+2}, v{src[4]}, v{src[5]}")
            a(f"v_cvt_pk_bf16_f32 v{b0+3}, v{src[6]}, v{src[7]}")

def _rowsum(a, w, ones, acc):
    for r in range(4): a(f"v_mov_b32 v{ones+r}, 0x3f803f80")
    for s in range(4):
        for nt in range(3):
            c = "0" if s == 0 else vr(acc(nt))
            a(f"v_mfma_f32_16x16x32_bf16 {vr(acc(nt))}, {vr(ones)}, {vr(Pf(w,s,nt))}, {c}")

def a_softmax1(R):
    a = R.a
    _rowmax(a, range(0, 8), M1, 24)
    _exppack(a, (0, 2, 4, 6), M1)
    _rowsum(a, 0, ONES1, lambda nt: S_(1, nt))
    for nt in range(3): a(f"v_mov_b32 v{L1[nt]}, v{S_(1,nt)}")

def a_softmax2(R):
    a = R.a
    M2 = (24, 26, 28)
    _rowmax(a, range(8, 16), M2, 30)
    for nt in range(3):
        a(f"v_max_f32 v{M2[nt]}, v{M2[nt]}, v{M1[nt]}")
        a(f"v_sub_f32 v{BETA[nt]}, v{M1[nt]}, v{M2[nt]}")
    for nt in range(3): a(f"v_exp_f32 v{BETA[nt]}, v{BETA[nt]}")
    _exppack(a, (8, 10, 12, 14), M2)
    _rowsum(a, 1, ONES2, lambda nt: S_(13, nt))
    a_vaddr(R)
    for nt in range(3):
        a(f"v_fma_f32 v{M2[nt]+1}, v{BETA[nt]}, v{L1[nt]}, v{S_(13,nt)}")
    for nt in range(3):
        R.lds(f"ds_write_b64 v59, {vr(M2[nt],2)} offset:{128*nt}", "st")
    for nt in range(3):
        a(f"v_mov_b32 v{18+2*nt}, v{M2[nt]}"); a(f"v_mov_b32 v{19+2*nt}, v{M2[nt]+1}")
    R.wait_lg_all()

vXW, vXR, vOW = 52, 53, 54
def a_vaddr(R):
    a = R.a
    a(f"s_and_b32 s{sT1}, s{sIDX}, 1")
    a(f"v_lshrrev_b32 v32, 2, v{vL}")
    a(f"v_lshrrev_b32 v33, 1, v32"); a("v_and_b32 v33, 3, v33")
    a(f"s_lshl_b32 s{sT2}, s{sT1}, 14")
    a(f"v_lshlrev_b32 v34, 7, v32"); a(f"v_add_u32 v34, s{sT2}, v34")
    a(f"v_and_b32 v35, 3, v{vL}"); a(f"v_lshl_add_u32 v34, v35, 3, v34")
    a(f"s_lshl_b32 s{sT2}, s{sT1}, 1")
    a(f"v_xor_b32 v33, s{sT2}, v33")
    for mt in range(4):
        a(f"v_xor_b32 v35, {mt}, v33")
        a(f"v_lshl_add_u32 v{40+mt}, v35, 5, v34")
    a(f"s_mul_i32 s{sT0}, s{sIDX}, 384"); a(f"s_add_u32 s{sT0}, s{sT0}, {STAT}")
    a(f"v_lshlrev_b32 v59, 3, v{vQ}"); a(f"v_add_u32 v59, s{sT0}, v59")
    a(f"s_xor_b32 s{sT1}, s{sIDX}, 1"); a(f"s_mul_i32 s{sT1}, s{sT1}, 384"); a(f"s_add_u32 s{sT1}, s{sT1}, {STAT}")
    a(f"v_lshlrev_b32 v60, 3, v{vQ}"); a(f"v_add_u32 v60, s{sT1}, v60")

def a_alpha(R):
    a = R.a
    M2 = (18, 20, 22)
    for nt in range(3):
        R.lds(f"ds_read_b64 v[{32+2*nt}:{33+2*nt}], v60 offset:{128*nt}", "st")
    a(f"s_mul_i32 s{sT2}, s{sIDX}, 6144"); a(f"s_add_u32 s{sT2}, s{sT2}, {XB}")
    a(f"v_lshlrev_b32 v55, 4, v{vL}"); a(f"v_add_u32 v{vXW}, s{sT2}, v55")
    a(f"s_xor_b32 s{sT2}, s{sIDX}, 1"); a(f"s_mul_i32 s{sT2}, s{sT2}, 6144"); a(f"s_add_u32 s{sT2}, s{sT2}, {XB}")
    a(f"v_add_u32 v{vXR}, s{sT2}, v55")
    a(f"s_and_b32 s{sT1}, s{sIDX}, 1")
    a(f"s_lshr_b32 s{sT0}, s{sIDX}, 1"); a(f"s_mul_i32 s{sT2}, s{sT0}, {48*128}"); a(f"s_add_u32 s{sT2}, s{sT2}, {OB}")
    a(f"v_lshlrev_b32 v{vOW}, 7, v{vQ}"); a(f"v_add_u32 v{vOW}, s{sT2}, v{vOW}")
    a(f"s_lshl_b32 s{sT3}, s{sT1}, 2")
    a(f"v_or_b32 v55, s{sT3}, v{vGq}")
    a(f"v_lshrrev_b32 v56, 1, v{vQ}"); a("v_xor_b32 v55, v55, v56")
    a(f"v_lshl_add_u32 v{vOW}, v55, 4, v{vOW}")
    R.wait_lg_all()
    for nt in range(3):
        mo, lo = 32 + 2*nt, 33 + 2*nt
        m, l = M2[nt], M2[nt] + 1
        a(f"v_max_f32 v38, v{m}, v{mo}")
        a(f"v_sub_f32 v{ALO[nt]}, v{m}, v38"); a(f"v_sub_f32 v{ALP[nt]}, v{mo}, v38")
        a(f"v_exp_f32 v{ALO[nt]}, v{ALO[nt]}"); a(f"v_exp_f32 v{ALP[nt]}, v{ALP[nt]}")
        a(f"v_mul_f32 v38, v{l}, v{ALO[nt]}")
        a(f"v_fma_f32 v38, v{lo}, v{ALP[nt]}, v38")
        a("v_rcp_f32 v38, v38")
        a(f"v_mul_f32 v{ALO[nt]}, v{ALO[nt]}, v38"); a(f"v_mul_f32 v{ALP[nt]}, v{ALP[nt]}, v38")

def a_PV(R, n, dma=None):
    a = R.a
    j, w = n >> 1, n & 1
    buf = KVA if w == 0 else KVB
    frs = [(s, mt) for s in range(4) for mt in range(4)]
    if w == 1: frs = frs[:12] + [(3, 2), (3, 3), (3, 0), (3, 1)]
    NB = 4
    def rd(k):
        s, mt = frs[k]
        b = KF + 4*(k % NB)
        R.lds(f"ds_read_b64_tr_b16 {vr(b,2)}, v{40+mt} offset:{buf + 4096*s}", f"vf{k}")
        R.lds(f"ds_read_b64_tr_b16 {vr(b+2,2)}, v{40+mt} offset:{buf + 4096*s + 2048}", f"vf{k}")
    for k in range(NB-1): rd(k)
    if dma and not cfg.interleave:
        for ii in range(8): kv_dma(R, dma[0], dma[1], ii)
        dma = None
    for k, (s, mt) in enumerate(frs):
        if k + NB - 1 < len(frs): rd(k + NB - 1)
        if dma and k < 8: kv_dma(R, dma[0], dma[1], k)
        R.wait_lg(f"vf{k}")
        for nt in range(3):
            d = Oa(mt, nt)
            c = "0" if (w == 0 and s == 0) else vr(d)
            a(f"v_mfma_f32_16x16x32_bf16 {vr(d)}, {vr(KF + 4*(k % NB))}, {vr(Pf(w,s,nt))}, {c}")
        if w == 1 and k >= 14:
            m2 = k - 12
            for nt in range(3):
                R.lds(f"ds_write_b128 v{vXW}, {vr(Oa(m2,nt))} offset:{((m2-2)*3+nt)*1024}", "xw")

def a_rescale(R):
    a = R.a
    for mt in range(4):
        for nt in range(3):
            if cfg.unpack:
                for r in range(4): a(f"v_mul_f32 v{Oa(mt,nt)+r}, v{BETA[nt]}, v{Oa(mt,nt)+r}")
                continue
            for h2 in (0, 2):
                b = Oa(mt, nt) + h2
                a(f"v_pk_mul_f32 {vr(b,2)}, {vr(b,2)}, {vr(BETA[nt],2)} op_sel_hi:[1,0]")

def a_xwrite(R):
    a = R.a
    for mt in (2, 3):
        for nt in range(3):
            R.lds(f"ds_write_b128 v{vXW}, {vr(Oa(mt,nt))} offset:{((mt-2)*3+nt)*1024}", "xw")

def a_xfinal(R, dma=None):
    a = R.a
    for nt in range(3):
        for i in range(2):
            R.lds(f"ds_read_b128 {vr(XT(i,nt))}, v{vXR} offset:{(i*3+nt)*1024}", f"xr{nt}")
    if dma:
        for ii in range(8): kv_dma(R, dma[0], dma[1], ii)
    for nt in range(3):
        for i in range(2):
            if cfg.unpack:
                for r in range(4): a(f"v_mul_f32 v{Oa(i,nt)+r}, v{ALO[nt]}, v{Oa(i,nt)+r}")
                continue
            for h2 in (0, 2):
                b = Oa(i, nt) + h2
                a(f"v_pk_mul_f32 {vr(b,2)}, {vr(b,2)}, {vr(ALO[nt],2)} op_sel_hi:[1,0]")
    for nt in range(3):
        R.wait_lg(f"xr{nt}")
        for i in range(2):
            if cfg.unpack:
                for r in range(4): a(f"v_fma_f32 v{Oa(i,nt)+r}, v{XT(i,nt)+r}, v{ALP[nt]}, v{Oa(i,nt)+r}")
                continue
            for h2 in (0, 2):
                b, x = Oa(i, nt) + h2, XT(i, nt) + h2
                a(f"v_pk_fma_f32 {vr(b,2)}, {vr(x,2)}, {vr(ALP[nt],2)}, {vr(b,2)} op_sel_hi:[1,0,1]")
        d = XT(0, nt)
        a(f"v_cvt_pk_bf16_f32 v{d}, v{Oa(0,nt)}, v{Oa(0,nt)+1}")
        a(f"v_cvt_pk_bf16_f32 v{d+1}, v{Oa(0,nt)+2}, v{Oa(0,nt)+3}")
        a(f"v_cvt_pk_bf16_f32 v{d+2}, v{Oa(1,nt)}, v{Oa(1,nt)+1}")
        a(f"v_cvt_pk_bf16_f32 v{d+3}, v{Oa(1,nt)+2}, v{Oa(1,nt)+3}")
        R.lds(f"ds_write_b128 v{vOW}, {vr(d)} offset:{2048*nt}", "ow")

PRING = 0
vWqD = 20
vWqR = 21
vQW = 25
PT = 26
vWqR5 = 35
def Xf(s, nt): return 40 + (s*3 + nt)*4
def Qa(mt, nt): return 208 + (mt*3 + nt)*4

def p_lane(a):
    a(f"v_mbcnt_lo_u32_b32 v{PT}, -1, 0"); a(f"v_mbcnt_hi_u32_b32 v{PT}, -1, v{PT}")
    a(f"v_and_b32 v{PT+1}, 15, v{PT}"); a(f"v_lshrrev_b32 v{PT+2}, 4, v{PT}")

def p_setup_pre(a):
    l, q, g = PT, PT+1, PT+2
    p = sIDX
    p_lane(a)
    a(f"s_mul_i32 s{sXo}, s{p}, 896")
    a(f"s_lshr_b32 s{sT0}, s{p}, 1")
    a(f"v_xor_b32 v{PT+3}, s{sT0}, v{l}"); a(f"v_lshlrev_b32 v{PT+3}, 4, v{PT+3}")
    for k in range(4):
        a(f"v_xor_b32 v{PT+4+k}, {(2*k) << 4}, v{PT+3}")

def p_setup(R):
    a = R.a
    a(f"s_mov_b64 s[{sEX}:{sEX+1}], exec")
    a("s_mov_b32 exec_hi, 0x00ffffff")
    for ii in range(12):
        base = (KVB + 3584*ii) if ii < 8 else (QB + 3584*(ii-8))
        a(f"s_add_u32 m0, s{sXo}, {base}")
        a(f"s_add_u32 s{sT1}, s{sXo}, {3584*ii}")
        R.vmem(f"buffer_load_dwordx4 v{PT+4 + (ii % 4)}, {srd(SRD_X)}, s{sT1} offen lds", "x")
    a(f"s_mov_b64 exec, s[{sEX}:{sEX+1}]")

def p_setup2(R):
    a = R.a
    l, q, g = PT, PT+1, PT+2
    p = sIDX
    a(f"s_lshl_b32 s{sWp}, s{p}, 14"); a(f"s_add_u32 s{sWp}, s{sWp}, {WB}")
    wq_dma_pattern(a, vWqD, l, g, PT+3, PT+4)
    a(f"v_lshrrev_b32 v{PT+3}, 2, v{l}")
    a(f"v_lshrrev_b32 v{PT+4}, 1, v{PT+3}"); a(f"v_and_b32 v{PT+4}, 3, v{PT+4}")
    a(f"v_lshlrev_b32 v{PT+5}, 7, v{PT+3}"); a(f"v_add_u32 v{PT+5}, s{sWp}, v{PT+5}")
    a(f"v_and_b32 v{PT+6}, 3, v{l}"); a(f"v_lshl_add_u32 v{PT+5}, v{PT+6}, 3, v{PT+5}")
    for mt in range(4):
        a(f"v_xor_b32 v{PT+6}, {mt}, v{PT+4}")
        a(f"v_lshl_add_u32 v{vWqR+mt}, v{PT+6}, 5, v{PT+5}")
    a(f"s_and_b32 s{sT0}, s{sIDX}, 1"); a(f"s_mul_i32 s{sT0}, s{sT0}, {48*128}")
    a(f"s_lshr_b32 s{sT1}, s{sIDX}, 1"); a(f"s_mul_i32 s{sT1}, s{sT1}, 12288")
    a(f"s_add_u32 s{sT0}, s{sT0}, s{sT1}"); a(f"s_add_u32 s{sT0}, s{sT0}, {QB}")
    a(f"v_lshlrev_b32 v{PT+5}, 7, v{q}"); a(f"v_add_u32 v{PT+5}, s{sT0}, v{PT+5}")
    a(f"v_and_b32 v{PT+6}, 1, v{g}"); a(f"v_lshl_add_u32 v{PT+5}, v{PT+6}, 3, v{PT+5}")
    a(f"v_lshrrev_b32 v{PT+6}, 1, v{g}"); a(f"v_lshrrev_b32 v{PT+3}, 1, v{q}"); a(f"v_xor_b32 v{PT+6}, v{PT+6}, v{PT+3}")
    a(f"v_lshl_add_u32 v{vQW}, v{PT+6}, 4, v{PT+5}")
    a(f"v_lshrrev_b32 v{PT+3}, 1, v{q}")
    a(f"v_lshrrev_b32 v{PT+4}, 1, v{g}"); a(f"v_xor_b32 v{PT+4}, v{PT+4}, v{PT+3}")
    a(f"s_mov_b32 s{sT0}, 896"); a(f"v_mul_lo_u32 v{PT+5}, s{sT0}, v{q}")
    a(f"v_and_b32 v{PT+6}, 1, v{g}"); a(f"v_lshl_add_u32 v{PT+5}, v{PT+6}, 3, v{PT+5}")
    a(f"v_add_u32 v{PT+5}, {KVB}, v{PT+5}")
    for k in range(4):
        a(f"v_xor_b32 v{PT+6}, {2*k}, v{PT+4}")
        a(f"v_lshl_add_u32 v{PT+7+k}, v{PT+6}, 4, v{PT+5}")

def p_xfrags(R):
    a = R.a
    for pas in range(2):
        for s in range(14):
            for nt in ((0, 1) if pas == 0 else (2,)):
                for half in range(2):
                    k = 2*(s & 1) + half
                    off = (14336*nt if pas == 0 else 0) + 128*(s >> 1)
                    R.lds_guard(1)
                    R.lds(f"ds_read_b64 {vr(Xf(s,nt)+2*half,2)}, v{PT+7+k} offset:{off}", "xf")
        if pas == 0:
            R.wait_lg_all()
            for k in range(4): a(f"v_add_u32 v{PT+7+k}, {QB-KVB}, v{PT+7+k}")
    R.wait_lg_all()

def p_qcompute(R, kaps, stream_next, hooks=None):
    a = R.a
    D = cfg.dq; NB = D + 1
    hooks = hooks or {}
    frs = [(kap, mt) for kap in kaps for mt in range(4)]
    def rd(f):
        kap, mt = frs[f]
        if mt == 0: R.wait_vm(f"w{kap}")
        b = PRING + 4*(f % NB)
        area, off = wq_slot(kap)
        ad = (vWqR if area == 'own' else vWqR5) + mt
        R.lds(f"ds_read_b64_tr_b16 {vr(b,2)}, v{ad} offset:{off}", f"f{kap}_{mt}")
        R.lds(f"ds_read_b64_tr_b16 {vr(b+2,2)}, v{ad} offset:{off + 2048}", f"f{kap}_{mt}")
    for f in range(min(D, len(frs))): rd(f)
    for f, (kap, mt) in enumerate(frs):
        J, s = divmod(kap, 14)
        if f + D < len(frs): rd(f + D)
        if stream_next and cfg.j0s5 and kap >= 1 and kap + 4 < 14: wq_dma(R, kap + 4, vWqD, [mt])
        R.wait_lg(f"f{kap}_{mt}")
        if cfg.kst and mt == 0 and kap < 14 and kap % 2 == 0: lstamp(a, 26 + kap // 2)
        for nt in range(3):
            d = Qa(mt, nt)
            c = "0" if s == 0 else vr(d)
            a(f"v_mfma_f32_16x16x32_bf16 {vr(d)}, {vr(PRING + 4*(f % NB))}, {vr(Xf(s,nt))}, {c}")
        if stream_next and not cfg.j0s5 and mt == 3 and kap + NSLOT_Q < 14: wq_dma(R, kap + NSLOT_Q, vWqD)
        if mt == 3 and kap in hooks: hooks[kap]()
    last = kaps[-1]
    if last % 14 == 13:
        if cfg.kst and last == 13: lstamp(a, 33)
        k = 0
        for m2 in range(4):
            a(f"v_xor_b32 v{PT+8}, {32*m2}, v{vQW}")
            for nt in range(3):
                d = Qa(m2, nt)
                t = PT + 2*(k % 4); k += 1
                a(f"v_cvt_pk_bf16_f32 v{t}, v{d}, v{d+1}")
                a(f"v_cvt_pk_bf16_f32 v{t+1}, v{d+2}, v{d+3}")
                R.lds_guard(1)
                R.lds(f"ds_write_b64 v{PT+8}, {vr(t,2)} offset:{2048*nt}", "qw")
        R.wait_lg("qw")

ORING = 0
vWoD = 32
vWoR = 34
vOR = 42
VT = 48
ALT = 208
PUB = [216 + 4*i for i in range(10)] + [20, 24]
def Outa(i, nt): return 64 + (i*3 + nt)*4
def Of(ks, nt): return 160 + (ks*3 + nt)*4

def p_vsetup(R, wide):
    a = R.a
    l, q, g = VT, VT+1, VT+2
    a(f"v_mbcnt_lo_u32_b32 v{l}, -1, 0"); a(f"v_mbcnt_hi_u32_b32 v{l}, -1, v{l}")
    a(f"v_and_b32 v{q}, 15, v{l}"); a(f"v_lshrrev_b32 v{g}, 4, v{l}")
    a(f"s_lshl_b32 s{sT0}, s{sIDX}, 8")
    if wide:
        a(f"v_bfe_u32 v{VT+3}, v{l}, 1, 3"); a(f"v_xor_b32 v{VT+3}, v{VT+3}, v{g}")
        a(f"s_mov_b32 s{sT1}, 896"); a(f"v_mul_lo_u32 v{VT+4}, s{sT1}, v{g}")
        a(f"v_and_b32 v{VT+5}, 1, v{l}"); a(f"v_lshl_add_u32 v{VT+4}, v{VT+5}, 4, v{VT+4}")
        a(f"v_add_u32 v{VT+4}, s{sT0}, v{VT+4}")
        a(f"v_lshl_add_u32 v{vWoD}, v{VT+3}, 5, v{VT+4}")
        a(f"v_xor_b32 v{VT+3}, 4, v{VT+3}"); a(f"v_lshl_add_u32 v{vWoD+1}, v{VT+3}, 5, v{VT+4}")
        a(f"v_lshrrev_b32 v{VT+3}, 2, v{l}"); a(f"v_and_b32 v{VT+4}, 7, v{VT+3}")
        a(f"v_lshlrev_b32 v{VT+5}, 8, v{VT+3}")
    else:
        a(f"v_lshrrev_b32 v{VT+3}, 3, v{l}"); a(f"s_mov_b32 s{sT1}, 896"); a(f"v_mul_lo_u32 v{VT+4}, s{sT1}, v{VT+3}")
        a(f"v_bfe_u32 v{VT+3}, v{l}, 1, 2"); a(f"v_xor_b32 v{VT+3}, v{VT+3}, v{g}")
        a(f"v_lshl_add_u32 v{VT+4}, v{VT+3}, 5, v{VT+4}")
        a(f"v_and_b32 v{VT+5}, 1, v{l}"); a(f"v_lshl_add_u32 v{VT+4}, v{VT+5}, 4, v{VT+4}")
        a(f"v_add_u32 v{vWoD}, s{sT0}, v{VT+4}")
        a(f"v_lshrrev_b32 v{VT+3}, 2, v{l}")
        a(f"v_lshrrev_b32 v{VT+4}, 1, v{VT+3}"); a(f"v_and_b32 v{VT+4}, 3, v{VT+4}")
        a(f"v_lshlrev_b32 v{VT+5}, 7, v{VT+3}")
    a(f"v_and_b32 v{VT+6}, 3, v{l}"); a(f"v_lshl_add_u32 v{VT+5}, v{VT+6}, 3, v{VT+5}")
    a(f"s_lshl_b32 s{sT1}, s{sIDX}, 13")
    for mt in range(8 if wide else 4):
        a(f"v_xor_b32 v{VT+6}, {mt}, v{VT+4}")
        a(f"v_lshl_add_u32 v{VT+7}, v{VT+6}, 5, v{VT+5}")
        a(f"v_add_u32 v{vWoR+mt}, s{sWp}, v{VT+7}")
        a(f"v_add_u32 v{ALT+mt}, s{sT1}, v{VT+7}")
    a(f"v_lshrrev_b32 v{VT+3}, 1, v{q}"); a(f"v_xor_b32 v{VT+3}, v{g}, v{VT+3}")
    a(f"v_lshlrev_b32 v{VT+4}, 7, v{q}"); a(f"v_add_u32 v{VT+4}, {OB}, v{VT+4}")
    a(f"v_lshl_add_u32 v{vOR}, v{VT+3}, 4, v{VT+4}")
    a(f"v_xor_b32 v{VT+3}, 4, v{VT+3}"); a(f"v_lshl_add_u32 v{vOR+1}, v{VT+3}, 4, v{VT+4}")
    a(f"s_lshl_b32 s{sM0}, s{sIDX}, 13")

def wo_slot(kap, wide):
    slot = 8192 if wide else 4096
    special = {14: ('kv', KVA), 15: ('kv', KVB)}
    if kap in special: return special[kap]
    return ('own', (kap % 2)*slot)

def wo_dma(R, kap, wide, ii_list=None):
    a = R.a
    j, ks = divmod(kap, 4); h, s = divmod(ks, 2)
    row0 = 256*h + 32*s
    area, off = wo_slot(kap, wide)
    base = sWp if area == 'own' else sM0
    for ii in (ii_list if ii_list is not None else range(8 if wide else 4)):
        a(f"s_add_u32 m0, s{base}, {off + 1024*ii}")
        rows = 4*ii if wide else 8*ii
        a(f"s_add_u32 s{sT1}, s{sCOL+4+j}, {(row0 + rows)*896}")
        pat = vWoD + ((ii & 1) if wide else 0)
        R.vmem(f"buffer_load_dwordx4 v{pat}, {srd(SRD_WO)}, s{sT1} offen {cfg.w_flags} lds", f"o{kap}")

def p_ofrags(R):
    for k2 in range(4):
        for nt in range(3):
            R.lds_guard(1)
            R.lds(f"ds_read_b128 {vr(Of(k2,nt))}, v{vOR + (k2 & 1)} offset:{6144*(k2 >> 1) + 2048*nt}", f"of{k2}")

vPK0, vPK1, vPV, vPF = 44, 45, 46, 56
def p_kv_setup(R, first=False):
    a = R.a
    l, g = VT, VT+2
    a(f"s_lshl_b32 s{sM0}, s{sIDX}, 13")
    a(f"v_mbcnt_lo_u32_b32 v{l}, -1, 0"); a(f"v_mbcnt_hi_u32_b32 v{l}, -1, v{l}"); a(f"v_lshrrev_b32 v{g}, 4, v{l}")
    a(f"v_lshrrev_b32 v{VT+3}, 3, v{l}"); a(f"v_lshlrev_b32 v{VT+3}, 9, v{VT+3}")
    a(f"s_lshl_b32 s{sT1}, s{sIDX}, 15"); a(f"v_add_u32 v{VT+3}, s{sT1}, v{VT+3}")
    a(f"v_and_b32 v{VT+4}, 7, v{l}"); a(f"v_xor_b32 v{VT+5}, v{VT+4}, v{g}")
    a(f"v_lshl_add_u32 v{vPK0}, v{VT+5}, 4, v{VT+3}")
    a(f"v_xor_b32 v{VT+5}, 4, v{VT+5}"); a(f"v_lshl_add_u32 v{vPK1}, v{VT+5}, 4, v{VT+3}")
    a(f"v_lshrrev_b32 v{VT+5}, 1, v{VT+4}"); a(f"v_xor_b32 v{VT+5}, v{VT+5}, v{g}")
    a(f"v_lshl_add_u32 v{VT+5}, v{VT+5}, 5, v{VT+3}")
    a(f"v_and_b32 v{VT+4}, 1, v{l}"); a(f"v_lshl_add_u32 v{vPV}, v{VT+4}, 4, v{VT+5}")
    a(f"v_lshlrev_b32 v{vPF}, 7, v{l}")

def p_issue_KV(R, kind, n):
    a = R.a
    j, w = n >> 1, n & 1
    buf = KVA if w == 0 else KVB
    if kind == "K" and n >= 6: buf = T1 if n == 6 else T2
    for ii in range(8):
        a(f"s_add_u32 m0, s{sM0}, {buf + 1024*ii}")
        a(f"s_add_u32 s{sT1}, s{sCOL+j}, {131072*w + 4096*ii}")
        if kind == "K": R.vmem(f"buffer_load_dwordx4 v{vPK0 + (ii & 1)}, {srd(SRD_K)}, s{sT1} offen {cfg.k_flags} lds", f"K{n}")
        else: R.vmem(f"buffer_load_dwordx4 v{vPV}, {srd(SRD_V)}, s{sT1} offen {cfg.v_flags} lds", f"V{n}")

def p_tlb_warm(R):
    a = R.a
    if not cfg.tlbw: return
    a(f"s_lshl_b32 s{sT0}, s{sB}, 4"); a(f"s_lshl_b32 s{sT1}, s{sBR}, 2"); a(f"s_add_u32 s{sT0}, s{sT0}, s{sT1}")
    a(f"s_mul_i32 s{sT0}, s{sT0}, {PART}")
    a(f"v_mov_b32 v58, s{sT0}")
    a(f"s_add_u32 s{sT1}, s{sT0}, {11*PART + PART - 4}"); a(f"v_writelane_b32 v58, s{sT1}, 1")
    a(f"s_mul_i32 s{sT1}, s2, {PART}"); a(f"v_writelane_b32 v58, s{sT1}, 2")
    a(f"s_mul_i32 s{sT1}, s{sGRP}, {FSTR}"); a(f"s_add_u32 s{sT1}, s{sT1}, {FLG}"); a(f"v_writelane_b32 v58, s{sT1}, 3")
    a(f"s_mul_i32 s{sT2}, s{sB}, {48*1792}")
    a(f"s_mov_b64 s[{sEX}:{sEX+1}], exec"); a("s_mov_b64 exec, 0xf")
    R.vmem(f"buffer_load_dword v59, v58, {srd(SRD_WS)}, 0 offen sc0 sc1", "tlb")
    a("s_mov_b64 exec, 1"); a("v_mov_b32 v60, 0")
    R.vmem(f"buffer_load_dword v59, v60, {srd(SRD_OUT)}, s{sT2} offen sc0 sc1", "tlb")
    a(f"s_mov_b64 exec, s[{sEX}:{sEX+1}]")

def p_pf_wo(R):
    a = R.a
    if not cfg.pf: return
    a(f"s_mul_i32 s{sT2}, s{sB}, 28672"); a(f"s_lshl_b32 s{sT3}, s{sIDX}, 13"); a(f"s_add_u32 s{sT2}, s{sT2}, s{sT3}")
    a(f"s_cmp_eq_u32 s{sIDX}, 3"); a("s_cselect_b32 exec_hi, 0, -1")
    R.vmem(f"buffer_load_dword v57, v{vPF}, {srd(SRD_WO)}, s{sT2} offen {cfg.pf_flags}", "pf")
    a("s_mov_b32 exec_hi, -1")

def p_of(R, k2):
    for nt in range(3):
        R.lds_guard(1)
        R.lds(f"ds_read_b128 {vr(Of(k2,nt))}, v{vOR + (k2 & 1)} offset:{6144*(k2 >> 1) + 2048*nt}", f"of{k2}")

def p_ocompute(R, kaps, wide, inter=None, ofr=False):
    a = R.a
    NT = 8 if wide else 4
    D = 4; NB = 5
    rowb = 256 if wide else 128
    inter = inter or {}
    frs = [(kap, mt) for kap in kaps for mt in range(NT)]
    def rd(f):
        kap, mt = frs[f]
        if mt == 0: R.wait_vm(f"o{kap}")
        b = ORING + 4*(f % NB)
        area, off = wo_slot(kap, wide)
        addr = (vWoR if area == 'own' else ALT) + mt
        R.lds_guard(2)
        R.lds(f"ds_read_b64_tr_b16 {vr(b,2)}, v{addr} offset:{off}", f"f{kap}_{mt}")
        R.lds(f"ds_read_b64_tr_b16 {vr(b+2,2)}, v{addr} offset:{off + 16*rowb}", f"f{kap}_{mt}")
    if ofr: p_of(R, 0)
    for f in range(D): rd(f)
    for f, (kap, mt) in enumerate(frs):
        j, ks = divmod(kap, 4)
        if f + D < len(frs): rd(f + D)
        if ofr and f < 3: p_of(R, f + 1)
        for (k2, ii) in inter.get(f, []): wo_dma(R, k2, wide, [ii])
        R.wait_lg(f"f{kap}_{mt}")
        if mt == 0: R.wait_lg(f"of{ks}")
        for nt in range(3):
            d = Outa(mt, nt)
            c = "0" if kap == 0 else vr(d)
            a(f"v_mfma_f32_16x16x32_bf16 {vr(d)}, {vr(ORING + 4*(f % NB))}, {vr(Of(ks,nt))}, {c}")
        if cfg.tst and mt == NT - 1 and kap >= 10: lstamp(a, 26 + kap - 10)

def p_oproj_phase(R, bar, wide):
    a = R.a
    NT = 8 if wide else 4
    nbar = 0
    def b1():
        nonlocal nbar
        if cfg.pv_all and 1 <= nbar <= 6: R.wait_vm(f"V{nbar+1}")
        bar(); nbar += 1
        if cfg.pv_all and 1 <= nbar <= 6: p_issue_KV(R, "V", nbar + 1)
    b1()
    if cfg.wo_first_after >= 6: wo_dma(R, 0, wide); wo_dma(R, 1, wide)
    b1()
    if cfg.pvprio: a(f"s_setprio {cfg.pvprio}")
    for j in range(3):
        a.comment(f"---- O projection chunk {j}")
        if cfg.altprio: a("s_setprio 1")
        p_ocompute(R, [4*j, 4*j+1], wide, ofr=True)
        wo_dma(R, 4*j+2, wide); wo_dma(R, 4*j+3, wide)
        if cfg.altprio: a("s_setprio 0")
        b1()
        if j < 2:
            p_ocompute(R, [4*j+2, 4*j+3], wide)
            wo_dma(R, 4*j+4, wide); wo_dma(R, 4*j+5, wide)
        else:
            if cfg.p7prio: a(f"s_setprio {cfg.p7prio}")
            if cfg.d14first:
                wo_dma(R, 14, wide); inter = {}
            else:
                inter = {f: [(14, f)] for f in range(NT)}
            inter.update({NT + f: [(12, f)] for f in range(NT)})
            p_ocompute(R, [10, 11], wide, inter=inter)
            wo_dma(R, 13, wide)
        b1()
    p_ocompute(R, [12, 13], wide, inter={f: [(15, f)] for f in range(NT)}, ofr=True)
    p_ocompute_last(R, wide)
    return nbar

def p_ocompute_last(R, wide):
    a = R.a
    NT = 8 if wide else 4
    D = 4; NB = 5
    rowb = 256 if wide else 128
    frs = [(kap, 2*ip + t) for ip in range(NT//2) for kap in (14, 15) for t in range(2)]
    def rd(f):
        kap, mt = frs[f]
        if f == 0: R.wait_vm("o14"); R.wait_vm("o15")
        b = ORING + 4*(f % NB)
        area, off = wo_slot(kap, wide)
        addr = (vWoR if area == 'own' else ALT) + mt
        R.lds_guard(2)
        R.lds(f"ds_read_b64_tr_b16 {vr(b,2)}, v{addr} offset:{off}", f"g{f}")
        R.lds(f"ds_read_b64_tr_b16 {vr(b+2,2)}, v{addr} offset:{off + 16*rowb}", f"g{f}")
    a(f"v_mbcnt_lo_u32_b32 v{VT}, -1, 0"); a(f"v_mbcnt_hi_u32_b32 v{VT}, -1, v{VT}"); a(f"v_lshlrev_b32 v{VT}, 4, v{VT}")
    a(f"s_mul_i32 s{sT2}, s2, {PART}"); a(f"s_mul_i32 s{sT3}, s{sIDX}, {12*1024}"); a(f"s_add_u32 s{sT2}, s{sT2}, s{sT3}")
    npub = 0
    def pub_pair(ip):
        nonlocal npub
        for nt in range(3):
            t = PUB[npub]; npub += 1
            d0, d1 = Outa(2*ip, nt), Outa(2*ip+1, nt)
            a(f"v_cvt_pk_bf16_f32 v{t}, v{d0}, v{d0+1}"); a(f"v_cvt_pk_bf16_f32 v{t+1}, v{d0+2}, v{d0+3}")
            a(f"v_cvt_pk_bf16_f32 v{t+2}, v{d1}, v{d1+1}"); a(f"v_cvt_pk_bf16_f32 v{t+3}, v{d1+2}, v{d1+3}")
            a(f"s_add_u32 s{sT1}, s{sT2}, {1024*(ip*3 + nt)}")
            R.vmem(f"buffer_store_dwordx4 {vr(t)}, v{VT}, {srd(SRD_WS)}, s{sT1} offen sc0 sc1", "pub")
    for f in range(D): rd(f)
    for f, (kap, mt) in enumerate(frs):
        ks = kap % 4
        if f + D < len(frs): rd(f + D)
        R.wait_lg(f"g{f}")
        for nt in range(3):
            d = Outa(mt, nt)
            a(f"v_mfma_f32_16x16x32_bf16 {vr(d)}, {vr(ORING + 4*(f % NB))}, {vr(Of(ks,nt))}, {vr(d)}")
        if f % 4 == 1 and f >= 5: pub_pair(f//4 - 1)
    pub_pair(NT//2 - 1)

def p_flag(R):
    a = R.a
    if cfg.tst: lstamp(a, 32)
    R.wait_vm_all()
    if cfg.tst: lstamp(a, 33)
    a(f"s_mul_i32 s{sT0}, s{sGRP}, {FSTR}"); a(f"s_add_u32 s{sT0}, s{sT0}, {FLG}")
    a(f"s_lshl_b32 s{sT1}, s{sG}, 2"); a(f"s_add_u32 s{sT1}, s{sT1}, s{sIDX}"); a(f"s_lshl_b32 s{sT1}, s{sT1}, 2")
    a(f"v_mov_b32 v2, s{sT1}"); a("v_mov_b32 v1, 1")
    a(f"s_mov_b64 s[{sEX}:{sEX+1}], exec")
    a("s_mov_b64 exec, 1")
    a(f"buffer_store_dword v1, v2, {srd(SRD_WS)}, s{sT0} offen sc0 sc1")
    a(f"s_mov_b64 exec, s[{sEX}:{sEX+1}]")

def emit_reduce(a):
    a.label("L_tail")
    if cfg.stamps: stamp(a, 50)
    a(f"s_min_u32 s{sT0}, s{sG}, 2"); a(f"s_mul_i32 s{sT1}, s{sG}, 5"); a(f"s_add_u32 s{sT0}, s{sT0}, s{sT1}")
    a(f"s_cmp_lt_u32 s{sG}, 2"); a(f"s_cselect_b32 s{sT1}, 6, 5")
    a(f"s_mov_b32 s80, s{sT1}")
    a(f"s_add_u32 s{sT0}, s{sT0}, s{sWAVE}")
    a("v_mbcnt_lo_u32_b32 v3, -1, 0"); a("v_mbcnt_hi_u32_b32 v3, -1, v3")
    a("v_lshlrev_b32 v6, 4, v3"); a("v_lshlrev_b32 v0, 2, v3")
    a(f"s_mul_i32 s{sT2}, s{sT0}, 171"); a(f"s_lshr_b32 s{sT2}, s{sT2}, 9")
    a(f"s_mul_i32 s{sT3}, s{sT2}, 3"); a(f"s_sub_u32 s{sT3}, s{sT0}, s{sT3}")
    a(f"s_lshl_b32 s{sT3}, s{sT3}, 4"); a(f"s_mul_i32 s{sT1}, s{sB}, 48"); a(f"s_add_u32 s{sT3}, s{sT3}, s{sT1}")
    a(f"s_mul_i32 s{sT3}, s{sT3}, 1792"); a(f"s_lshl_b32 s{sT2}, s{sT2}, 6"); a(f"s_add_u32 s{sT3}, s{sT3}, s{sT2}")
    a(f"s_mul_i32 s{sT1}, s{sBR}, 896"); a(f"s_add_u32 s78, s{sT3}, s{sT1}") if not cfg.lstamps else None
    if cfg.lstamps: a(f"s_mul_i32 s{sT1}, s{sBR}, 896"); a(f"s_add_u32 s100, s{sT3}, s{sT1}")
    sOUT = 100 if cfg.lstamps else 78
    a("v_and_b32 v7, 15, v3"); a(f"s_mov_b32 s{sT1}, 1792"); a(f"v_mul_lo_u32 v7, s{sT1}, v7")
    a("v_bfe_u32 v8, v3, 4, 1"); a("v_lshl_add_u32 v7, v8, 5, v7")
    a("v_lshrrev_b32 v8, 5, v3"); a("v_lshl_add_u32 v7, v8, 4, v7")
    a(f"s_lshl_b32 s{sT1}, s{sB}, 4"); a(f"s_lshl_b32 s{sT2}, s{sBR}, 2"); a(f"s_add_u32 s{sT1}, s{sT1}, s{sT2}")
    a(f"s_mul_i32 s{sT1}, s{sT1}, {PART}"); a(f"s_lshl_b32 s{sT2}, s{sT0}, 10"); a(f"s_add_u32 s{sT3}, s{sT1}, s{sT2}")
    if cfg.latepoll: a("s_barrier")
    a(f"s_cmp_lg_u32 s{sWAVE}, 0"); a("s_cbranch_scc1 L_nopoll")
    a(f"s_mul_i32 s{sT0}, s{sGRP}, {FSTR}"); a(f"s_add_u32 s{sT0}, s{sT0}, {FLG}")
    a(f"s_mov_b64 s[{sEX}:{sEX+1}], exec")
    a("s_mov_b32 exec_hi, 0")
    a(f"s_mov_b32 s{sT2}, 0")
    a.label("L_poll")
    a(f"buffer_load_dword v4, v0, {srd(SRD_WS)}, s{sT0} offen sc0 sc1")
    a("s_waitcnt vmcnt(0)")
    a("v_cmp_eq_u32 vcc, 1, v4")
    a("s_cmp_eq_u32 vcc_lo, -1")
    a("s_cbranch_scc1 L_poll_done")
    a(f"s_add_u32 s{sT2}, s{sT2}, 1")
    a(f"s_cmp_ge_u32 s{sT2}, 400000")
    a("s_cbranch_scc1 L_poll_done")
    if cfg.sleep: a(f"s_sleep {cfg.sleep}")
    a("s_branch L_poll")
    a.label("L_poll_done")
    a(f"s_mov_b64 exec, s[{sEX}:{sEX+1}]")
    a.label("L_nopoll")
    a("s_barrier")
    a(f"s_cmp_ge_u32 s{sWAVE}, s80")
    a("s_cbranch_scc1 " + ("L_nogather" if cfg.stamps else ("L_mini" if cfg.mini else "L_end")))
    if cfg.stamps: stamp(a, 52)
    for k in range(8):
        gb, gp = k >> 2, k & 3
        a(f"s_add_u32 s{sT2}, s{sT3}, {(gb*8 + gp)*PART}")
        a(f"buffer_load_dwordx4 {vr(64+4*k)}, v6, {srd(SRD_WS)}, s{sT2} offen sc0 sc1")
    acc = 16
    for k in range(8):
        a(f"s_waitcnt vmcnt({7-k})")
        for r in range(4):
            src = 64 + 4*k + r
            if k == 0:
                a(f"v_lshlrev_b32 v{acc+2*r}, 16, v{src}"); a(f"v_and_b32 v{acc+2*r+1}, 0xffff0000, v{src}")
            else:
                t = 8 + 2*(r & 1) + 2
                a(f"v_lshlrev_b32 v{t}, 16, v{src}"); a(f"v_and_b32 v{t+1}, 0xffff0000, v{src}")
                a(f"v_pk_add_f32 {vr(acc+2*r,2)}, {vr(acc+2*r,2)}, {vr(t,2)}")
    for r in range(4):
        a(f"v_cvt_pk_bf16_f32 v{12+r}, v{acc+2*r}, v{acc+2*r+1}")
    a("v_permlane16_swap_b32 v12, v14")
    a("v_permlane16_swap_b32 v13, v15")
    a(f"buffer_store_dwordx4 v[12:15], v7, {srd(SRD_OUT)}, s{sOUT} offen")
    if cfg.stamps:
        a("s_waitcnt vmcnt(0)")
        a.label("L_nogather")
        stamp(a, 53)
        a("s_memtime s[74:75]"); a("s_waitcnt lgkmcnt(0)"); a("v_writelane_b32 v61, s74, 61")
        stamp_store(a)
    if cfg.mini:
        a.label("L_mini")
        a("s_memrealtime s[72:73]"); a("s_waitcnt vmcnt(0) lgkmcnt(0)")
        a("s_memrealtime s[72:73]"); a("s_waitcnt lgkmcnt(0)")
        a("v_mov_b32 v61, 0"); a("v_writelane_b32 v61, s90, 62"); a("v_writelane_b32 v61, s72, 53")
        stamp_store(a)
    a.label("L_end")
    a("s_endpgm")

def build():
    a = Asm()
    if cfg.mini:
        a("s_memrealtime s[90:91]")
    if cfg.stamps:
        a("s_memrealtime s[72:73]"); a("s_memtime s[74:75]"); a("s_waitcnt lgkmcnt(0)")
        a("v_writelane_b32 v61, s72, 62"); a("v_writelane_b32 v61, s74, 60")
    emit_prologue(a)
    cnt = {"n": 0}
    def bar():
        a("s_barrier")
        if cfg.stamps: stamp(a, cnt["n"])
        cnt["n"] += 1
    A = Role(a)
    if cfg.prioA: a(f"s_setprio {cfg.prioA}")
    a_setup(A)
    if cfg.pf_first: a_pf(A, "wq")
    bar()
    if not cfg.pf_first: a_pf(A, "wq")
    a_setup2(A)
    bar()
    a0_flag_zero(A)
    for kap in range(4): wq_dma(A, kap, vWqA)
    a_issue_KV(A, "K", 0)
    a_setup3(A)
    a_pair_init(A)
    A.wait_vm("w3")
    a0_flag_mark(A)
    bar()
    bar()
    a_issue_KV(A, "K", 1)
    A.wait_vm("K0")
    bar()
    a_S(A, 0)
    A.wait_vm("K1")
    bar()
    a_S(A, 1, dma=("K", 2)); A.wait_vm("K2"); bar()
    a_flag_load(A)
    a_S(A, 2, dma=("K", 3)); A.wait_vm("K3"); a_flag_check(A); bar()
    a_S(A, 3, dma=("K", 4)); A.wait_vm("K4"); bar()
    a_issue_KV(A, "K", 5)
    bar()
    a_S(A, 4)
    A.wait_vm("K5")
    bar()
    a_S(A, 5)
    bar()
    a_S(A, 6)
    if cfg.split_sm: a_softmax1(A)
    bar()
    a_S(A, 7)
    if not cfg.split_sm: a_softmax1(A)
    a_softmax2(A)
    bar()
    for n in range(8):
        dma = ("V", n+1) if (1 <= n <= 6 and not cfg.pv_all) else None
        if cfg.prio7 and n == cfg.prio7from: a(f"s_setprio {cfg.prio7}")
        a_PV(A, n, dma)
        if n == 0:
            a_alpha(A); a_pair_addr(A)
        if n % 2 == 0:
            a_rescale(A)
        else:
            a_pair_sync(A, n >> 1)
            a_xfinal(A)
        if 1 <= n < 7 and not cfg.pv_all: A.wait_vm(f"V{n+1}")
        A.wait_lg_all()
        bar()
    nA = cnt["n"]
    A.wait_vm_all()
    a("s_branch L_tail")
    a.label("L_P")
    cnt["n"] = 0
    P = Role(a)
    stamp_move(a, 39)
    if cfg.stamps: stamp(a, 55)
    if cfg.prioP: a(f"s_setprio {cfg.prioP}")
    P.vm += ["x"]*12
    if cfg.stamps: stamp(a, 56)
    bar()
    p_setup2(P)
    P.wait_vm("x"); bar()
    p_xfrags(P)
    if cfg.j0s5:
        a(f"s_lshl_b32 s{sWq5}, s{sIDX}, 12"); a(f"s_add_u32 s{sWq5}, s{sWq5}, {QB}")
        a(f"s_sub_u32 s{sT0}, s{sWq5}, s{sWp}")
        for mt in range(4): a(f"v_add_u32 v{vWqR5+mt}, s{sT0}, v{vWqR+mt}")
    bar()
    if cfg.j0s5: wq_dma(P, 4, vWqD)
    p_qcompute(P, list(range(14)), True, hooks={cfg.k1_after: bar})
    bar()
    if cfg.pkprio: a(f"s_setprio {cfg.pkprio}")
    for kap in (14, 15, 16, 17): wq_dma(P, kap, vWqD)
    bar()
    for kaps, nxt in (([14,15], [18,19]), ([16,17,18,19], [20,21,22,23]), ([20,21,22,23], [24,25,26,27]), ([24,25,26,27], [])):
        p_qcompute(P, kaps, False)
        for kap in nxt: wq_dma(P, kap, vWqD)
        bar()
    if cfg.pkprio: a("s_setprio 0")
    a(f"s_cmp_eq_u32 s{sIDX}, 3")
    a("s_cbranch_scc1 L_P3")
    base = cnt["n"]
    for wide in (True, False):
        if not wide:
            a.label("L_P3"); cnt["n"] = base
        Pw = Role(a)
        STREG[0] = 39
        stamp_move(a, 47)
        p_kv_setup(Pw, first=True)
        p_issue_KV(Pw, "K", 6)
        p_vsetup(Pw, wide)
        bar()
        p_issue_KV(Pw, "K", 7); Pw.wait_vm("K6"); bar()
        p_issue_KV(Pw, "V", 0); Pw.wait_vm("K7"); bar()
        p_issue_KV(Pw, "V", 1); p_pf_wo(Pw); p_tlb_warm(Pw); Pw.wait_vm("V0"); bar()
        Pw.wait_vm("V1")
        nb = p_oproj_phase(Pw, bar, wide)
        assert nb == 8, nb
        if cfg.stamps: stamp(a, 59)
        p_flag(Pw)
        if cfg.stamps: stamp(a, 58)
        assert cnt["n"] == nA, (cnt["n"], nA)
        stamp_move(a, 61)
        if wide: a("s_branch L_tail")
    emit_reduce(a)
    a.finalize()
    return a

HEADER = open("cdna_kernels/" + NAME + ".s.ref").read().split("; Override launch")[0]
def full_text(a):
    s = HEADER
    s += f"; @launch grid=(256,1,1) block=(512,1,1) lds={LDS_BYTES}\n"
    s += f'.amdgcn_target "amdgcn-amd-amdhsa--gfx950"\n.text\n.globl {NAME}_kernel\n.p2align 8\n.type {NAME}_kernel,@function\n{NAME}_kernel:\n'
    body = a.text()
    if cfg.icpf:
        body = body.replace("  s_endpgm\n", "  s_endpgm\nL_code_end:\n") if body.count("s_endpgm") == 1 else body + "L_code_end:\n"
        body = body.replace("CODE_BYTES", f"L_code_end-{NAME}_kernel")
    s += body
    s += f""".section .rodata,"a"
.p2align 6
.amdhsa_kernel {NAME}_kernel
  .amdhsa_next_free_vgpr 256
  .amdhsa_next_free_sgpr 102
  .amdhsa_accum_offset 256
  .amdhsa_group_segment_fixed_size 0
  .amdhsa_kernarg_size 104
  .amdhsa_user_sgpr_count 2
  .amdhsa_user_sgpr_kernarg_segment_ptr 1
  .amdhsa_system_sgpr_workgroup_id_x 1
.end_amdhsa_kernel
"""
    return s

if __name__ == "__main__":
    out = sys.argv[1] if len(sys.argv) > 1 else "cdna_kernels/" + NAME + ".s"
    for kv in sys.argv[2:]:
        k, v = kv.split("=", 1)
        cur = getattr(cfg, k)
        if isinstance(cur, bool): v = v.lower() in ("1", "true")
        elif isinstance(cur, int): v = int(v)
        setattr(cfg, k, v)
    a = build()
    open(out, "w").write(full_text(a))
    print("wrote", out, "instrs:", sum(1 for i in a.ins if i.kind not in ('none','label')), "nops inserted:", a.nops_inserted)
```

```python
import sys, math, struct
from asmlib import Asm

NAME = "concat_heads__gqa_block_cached__gqa_block_cached__near_ridge"

class Cfg:
    k_flags = "nt"
    v_flags = "nt"
    w_flags = ""
    pf = True
    pf_flags = ""
    stamps = False
    lstamps = False
    mini = False
    prioA = 0
    prioP = 0
    dq = 4
    pf_wo_at = 8
    k1_after = 9
    split_sm = True
    sleep = 0
    interleave = False
    pf_first = False
    wo_first_after = 7
    tst = False
    early_x = True
    altprio = True
    pv_all = True
    latepoll = True
    pvprio = 0
    pkprio = 0
    p7prio = 0
    d14first = False
    tlbw = True
    icpf = True
    prio7 = 0
    prio7from = 7
    pkv = True
    unpack = True
    j0s5 = True
    rot = 1
    kst = False
cfg = Cfg()

KVA, KVB = 0, 32768
WB = 65536
QB = 131072
OB = 122880
XB = 135168
STAT = 159744
PFL = 161280
LDS_BYTES = 163840
PART = 43008
FLG = 16 << 20
FSTR = 8448
sWAVE, sIDX, sG, sB, sBR = 3, 4, 5, 6, 7
SRD_K, SRD_V, SRD_WQ, SRD_WO, SRD_X, SRD_OUT, SRD_WS = 8, 12, 16, 20, 24, 28, 32
sDBG = 58
sM0, sWp = 62, 63
sC = 64
sT0, sT1, sT2, sT3 = 66, 67, 68, 69
sEX = 70
sGRP, sXo = 76, 77
sCOL = 36
sJ = 44
def srd(b): return f"s[{b}:{b+3}]"
def vr(b, n=4): return f"v[{b}:{b+n-1}]"
def f32bits(x): return struct.unpack('<I', struct.pack('<f', x))[0]
vL, vQ, vGq = 44, 46, 47

class Role:
    def __init__(self, a): self.a = a; self.vm = []; self.lg = []
    def vmem(self, text, tag): self.a(text); self.vm.append(tag)
    def lds(self, text, tag): self.a(text); self.lg.append(tag)
    def wait_vm(self, tag):
        idx = [i for i, t in enumerate(self.vm) if t == tag]
        if not idx: return
        n = len(self.vm) - 1 - idx[-1]
        assert n <= 63
        self.a(f"s_waitcnt vmcnt({n})"); self.vm = self.vm[idx[-1]+1:]
    def wait_lg(self, tag):
        idx = [i for i, t in enumerate(self.lg) if t == tag]
        if not idx: return
        n = len(self.lg) - 1 - idx[-1]
        assert n <= 15, n
        self.a(f"s_waitcnt lgkmcnt({n})"); self.lg = self.lg[idx[-1]+1:]
    def wait_vm_all(self): self.a("s_waitcnt vmcnt(0)"); self.vm = []
    def wait_lg_all(self): self.a("s_waitcnt lgkmcnt(0)"); self.lg = []
    def lds_guard(self, n_new):
        if len(self.lg) + n_new > 15:
            keep = 15 - n_new
            self.a(f"s_waitcnt lgkmcnt({keep})"); self.lg = self.lg[len(self.lg)-keep:] if keep else []

STREG = [61]
PEND = []
def stamp(a, idx):
    a("s_memrealtime s[72:73]")
    a("s_waitcnt lgkmcnt(0)")
    a(f"v_writelane_b32 v{STREG[0]}, s72, {idx}")
    for (sp, i2) in PEND: a(f"v_writelane_b32 v{STREG[0]}, s{sp}, {i2}")
    PEND.clear()
def lstamp(a, idx):
    if not cfg.lstamps: return
    sp = 78 + 2*len(PEND)
    assert sp <= 98
    a(f"s_memrealtime s[{sp}:{sp+1}]")
    PEND.append((sp, idx))
def stamp_move(a, new):
    if cfg.stamps: a(f"v_mov_b32 v{new}, v{STREG[0]}")
    STREG[0] = new
def stamp_store(a):
    a(f"s_lshl_b32 s{sT0}, s2, 3"); a(f"s_add_u32 s{sT0}, s{sT0}, s{sWAVE}"); a(f"s_lshl_b32 s{sT0}, s{sT0}, 8")
    a("v_mbcnt_lo_u32_b32 v60, -1, 0"); a("v_mbcnt_hi_u32_b32 v60, -1, v60")
    a(f"v_lshlrev_b32 v60, 2, v60"); a(f"v_add_u32 v60, s{sT0}, v60")
    a("s_add_u32 s74, s60, 0x2000000"); a("s_addc_u32 s75, s61, 0")
    a("global_store_dword v60, v61, s[74:75]")
    a("s_waitcnt vmcnt(0)")

def emit_prologue(a):
    a("s_cmp_ge_u32 s2, 256")
    a("s_cbranch_scc1 L_end")
    a("s_load_dwordx16 s[36:51], s[0:1], 0")
    a("s_load_dwordx4 s[52:55], s[0:1], 64")
    a("s_load_dwordx4 s[56:59], s[0:1], 80")
    a("s_load_dwordx2 s[60:61], s[0:1], 96")
    a("v_and_b32 v44, 63, v0")
    a("v_lshrrev_b32 v45, 6, v0")
    a("v_and_b32 v46, 15, v44")
    a("v_lshrrev_b32 v47, 4, v44")
    a(f"v_readfirstlane_b32 s{sWAVE}, v45")
    a(f"s_bfe_u32 s{sBR}, s2, 0x10002")
    a(f"s_and_b32 s{sG}, s2, 3"); a(f"s_lshl_b32 s{sG}, s{sG}, 1")
    a(f"s_bfe_u32 s{sT0}, s2, 0x10003"); a(f"s_or_b32 s{sG}, s{sG}, s{sT0}")
    a(f"s_lshr_b32 s{sB}, s2, 4")
    a(f"s_and_b32 s{sIDX}, s{sWAVE}, 3")
    a(f"s_lshl_b32 s{sGRP}, s{sBR}, 4"); a(f"s_add_u32 s{sGRP}, s{sGRP}, s{sB}")
    a(f"s_mov_b32 s{sC}, 0x{f32bits(math.log2(math.e)/16.0):08x}"); a(f"s_mov_b32 s{sC+1}, s{sC}")
    a_code_prefetch(Role(a))
    p_setup_pre(a)
    a("s_waitcnt lgkmcnt(0)")
    if cfg.stamps: stamp(a, 54)
    a(f"s_cmp_eq_u32 s{sBR}, 0")
    a("s_cselect_b64 s[36:37], s[36:37], s[46:47]")
    def mk(srdb, ptr, off_s, size):
        if off_s is None:
            a(f"s_mov_b32 s{srdb}, s{ptr}"); a(f"s_and_b32 s{srdb+1}, s{ptr+1}, 0xffff")
        else:
            a(f"s_add_u32 s{srdb}, s{ptr}, s{off_s}")
            a(f"s_addc_u32 s{srdb+1}, s{ptr+1}, 0")
            a(f"s_and_b32 s{srdb+1}, s{srdb+1}, 0xffff")
        if isinstance(size, int): a(f"s_mov_b32 s{srdb+2}, {size}")
        else: a(size)
        a(f"s_mov_b32 s{srdb+3}, 0x20000")
    a(f"s_mul_i32 s{sT1}, s{sB}, 43008")
    mk(SRD_X, 36, sT1, 43008)
    a(f"s_cmp_lt_u32 s{sWAVE}, 4"); a("s_cbranch_scc1 L_nox")
    PX = Role(a); p_setup(PX)
    a.label("L_nox")
    a(f"s_cmp_eq_u32 s{sBR}, 0")
    for i in range(1, 5):
        a(f"s_cselect_b64 s[{36+2*i}:{37+2*i}], s[{36+2*i}:{37+2*i}], s[{46+2*i}:{47+2*i}]")
    a(f"s_lshl_b32 s{sT1}, s{sG}, 10")
    mk(SRD_WQ, 42, sT1, f"s_sub_u32 s{SRD_WQ+2}, {448*8192}, s{sT1}")
    a(f"s_lshl_b32 s{sT0}, s{sB}, 3"); a(f"s_add_u32 s{sT0}, s{sT0}, s{sG}"); a(f"s_lshl_b32 s{sT0}, s{sT0}, 18")
    mk(SRD_K, 38, sT0, 262144)
    mk(SRD_V, 40, sT0, 262144)
    a(f"s_mul_i32 s{sT1}, s{sG}, 458752")
    mk(SRD_WO, 44, sT1, 458752)
    mk(SRD_OUT, 56, None, 16*48*896*2)
    mk(SRD_WS, 60, None, FLG + 32*FSTR)
    if cfg.rot == 0:
        for j in range(4):
            a(f"s_movk_i32 s{sCOL+j}, {128*j}"); a(f"s_mov_b32 s{sCOL+4+j}, {64*j*896}")
        a(f"s_lshr_b32 s{sT2}, s{sIDX}, 1"); a(f"s_lshl_b32 s{sJ}, s{sT2}, 7"); a(f"s_add_u32 s{sJ+1}, s{sJ}, 256")
    else:
        if cfg.rot == 0: a(f"s_mov_b32 s{sT0}, 0")
        elif cfg.rot == 1: a(f"s_and_b32 s{sT0}, s{sB}, 3")
        elif cfg.rot == 2: a(f"s_add_u32 s{sT0}, s{sB}, s{sG}"); a(f"s_and_b32 s{sT0}, s{sT0}, 3")
        elif cfg.rot == 3: a(f"s_and_b32 s{sT0}, s{sB}, 1"); a(f"s_lshl_b32 s{sT0}, s{sT0}, 1")
        for j in range(4):
            a(f"s_add_u32 s{sT1}, s{sT0}, {j}"); a(f"s_and_b32 s{sT1}, s{sT1}, 3")
            a(f"s_lshl_b32 s{sCOL+j}, s{sT1}, 7"); a(f"s_mul_i32 s{sCOL+4+j}, s{sT1}, {64*896}")
        a(f"s_lshr_b32 s{sT2}, s{sIDX}, 1")
        for J in range(2):
            a(f"s_add_u32 s{sT1}, s{sT0}, s{sT2}"); a(f"s_add_u32 s{sT1}, s{sT1}, {2*J}"); a(f"s_and_b32 s{sT1}, s{sT1}, 3")
            a(f"s_lshl_b32 s{sJ+J}, s{sT1}, 7")
    a(f"s_cmp_ge_u32 s{sWAVE}, 4")
    a("s_cbranch_scc1 L_P")

def wq_dma_pattern(a, dst, l, g, t0, t1):
    a(f"v_lshrrev_b32 v{t0}, 3, v{l}"); a(f"v_lshlrev_b32 v{t0}, 13, v{t0}")
    a(f"v_bfe_u32 v{t1}, v{l}, 1, 2"); a(f"v_xor_b32 v{t1}, v{t1}, v{g}")
    a(f"v_lshl_add_u32 v{t0}, v{t1}, 5, v{t0}")
    a(f"v_and_b32 v{t1}, 1, v{l}"); a(f"v_lshl_add_u32 v{t0}, v{t1}, 4, v{t0}")
    a(f"s_and_b32 s{sT0}, s{sIDX}, 1"); a(f"s_lshl_b32 s{sT0}, s{sT0}, 9")
    a(f"v_add_u32 v{dst}, s{sT0}, v{t0}")

NSLOT_Q = 4
def wq_slot(kap):
    if cfg.j0s5 and kap < 14:
        sl = kap % 5
        return ('q', 0) if sl == 4 else ('own', sl*4096)
    return ('own', (kap % NSLOT_Q)*4096)
sWq5 = 47
def wq_dma(R, kap, vpat, ii_list=range(4)):
    a = R.a
    J, s = divmod(kap, 14)
    area, off = wq_slot(kap)
    for ii in ii_list:
        a(f"s_add_u32 m0, s{sWp if area == 'own' else sWq5}, {off + 1024*ii}")
        a(f"s_add_u32 s{sT1}, s{sJ+J}, {(32*s + 8*ii)*8192}")
        R.vmem(f"buffer_load_dwordx4 v{vpat}, {srd(SRD_WQ)}, s{sT1} offen {cfg.w_flags} lds", f"w{kap}")

def S_(t, nt): return 64 + (t*3 + nt)*4
def Qf(s, nt): return (s*3 + nt)*4
KF = 24
vKdE, vKdO, vVd, vWqA = 48, 49, 50, 51

def a_code_prefetch(R):
    a = R.a
    if not cfg.icpf: return
    a(f"s_cmp_lg_u32 s{sWAVE}, 3"); a("s_cbranch_scc1 L_icpf_skip")
    a("s_getpc_b64 s[72:73]")
    a.label("L_icpf_pc")
    a(f"s_sub_u32 s72, s72, L_icpf_pc-{NAME}_kernel"); a("s_subb_u32 s73, s73, 0")
    a(f"s_lshr_b32 s{sT0}, s2, 3"); a(f"s_lshl_b32 s{sT0}, s{sT0}, 11")
    a(f"v_lshlrev_b32 v58, 7, v{vL}"); a(f"v_add_u32 v58, s{sT0}, v58")
    a(f"s_mov_b64 s[{sEX}:{sEX+1}], exec"); a("s_mov_b64 exec, 0xffff")
    a("v_cmp_gt_u32 vcc, CODE_BYTES, v58")
    a("s_and_b64 exec, exec, vcc")
    a("s_cbranch_execz L_icpf_rest")
    a("global_load_dword v60, v58, s[72:73]")
    a.label("L_icpf_rest")
    a(f"s_mov_b64 exec, s[{sEX}:{sEX+1}]")
    a.label("L_icpf_skip")

def a_setup(R):
    a = R.a
    a(f"s_lshl_b32 s{sM0}, s{sIDX}, 13")
    a(f"s_lshl_b32 s{sWp}, s{sIDX}, 14"); a(f"s_add_u32 s{sWp}, s{sWp}, {WB}")
    if cfg.pf:
        a(f"v_lshrrev_b32 v52, 3, v{vL}"); a("v_lshlrev_b32 v52, 13, v52")
        a(f"v_and_b32 v53, 7, v{vL}"); a("v_lshl_add_u32 v56, v53, 7, v52")
        a(f"s_mul_i32 s{sT2}, s{sB}, 28"); a(f"s_lshl_b32 s{sT3}, s{sIDX}, 3"); a(f"s_add_u32 s{sT2}, s{sT2}, s{sT3}")
        a(f"s_lshl_b32 s{sT2}, s{sT2}, 13")

def a_pf(R, which):
    a = R.a
    if not cfg.pf: return
    if which == "wq":
        a(f"s_cmp_eq_u32 s{sIDX}, 3"); a("s_cselect_b32 exec_hi, 0, -1")
        R.vmem(f"buffer_load_dword v63, v56, {srd(SRD_WQ)}, s{sT2} offen {cfg.pf_flags}", "pf")
        a("s_mov_b32 exec_hi, -1")
    else:
        a(f"v_lshlrev_b32 v58, 7, v{vL}")
        a(f"s_mul_i32 s{sT2}, s{sB}, 28672"); a(f"s_lshl_b32 s{sT3}, s{sIDX}, 13"); a(f"s_add_u32 s{sT2}, s{sT2}, s{sT3}")
        R.vmem(f"buffer_load_dword v62, v58, {srd(SRD_WO)}, s{sT2} offen {cfg.pf_flags}", "pf")

def a_setup2(R):
    a = R.a
    wq_dma_pattern(a, vWqA, vL, vGq, 52, 53)
    a(f"v_lshrrev_b32 v52, 3, v{vL}"); a("v_lshlrev_b32 v52, 9, v52")
    a(f"s_lshl_b32 s{sT1}, s{sIDX}, 15"); a(f"v_add_u32 v52, s{sT1}, v52")
    a(f"v_and_b32 v53, 7, v{vL}"); a(f"v_xor_b32 v54, v53, v{vGq}")
    a(f"v_lshl_add_u32 v{vKdE}, v54, 4, v52")
    a("v_xor_b32 v54, 4, v54"); a(f"v_lshl_add_u32 v{vKdO}, v54, 4, v52")
    a("v_lshrrev_b32 v54, 1, v53"); a(f"v_xor_b32 v54, v54, v{vGq}")
    a("v_lshl_add_u32 v54, v54, 5, v52")
    a(f"v_and_b32 v55, 1, v{vL}"); a(f"v_lshl_add_u32 v{vVd}, v55, 4, v54")

def a_setup3(R):
    a = R.a
    a(f"s_lshr_b32 s{sT0}, s{sIDX}, 1")
    a(f"s_and_b32 s{sT1}, s{sIDX}, 1")
    a(f"v_lshrrev_b32 v52, 1, v{vQ}")
    a(f"v_xor_b32 v53, v{vGq}, v52")
    a(f"v_xor_b32 v54, 4, v53")
    a(f"s_lshl_b32 s{sT2}, s{sT1}, 14")
    a(f"v_lshlrev_b32 v55, 7, v{vQ}")
    a(f"v_add_u32 v55, s{sT2}, v55")
    a(f"v_lshl_add_u32 v40, v53, 4, v55")
    a(f"v_lshl_add_u32 v41, v54, 4, v55")
    a(f"s_mul_i32 s{sT2}, s{sT0}, {48*128}")
    a(f"s_add_u32 s{sT2}, s{sT2}, {QB}")
    a(f"v_lshlrev_b32 v55, 7, v{vQ}")
    a(f"v_add_u32 v55, s{sT2}, v55")
    a(f"v_lshl_add_u32 v42, v53, 4, v55")
    a(f"v_lshl_add_u32 v43, v54, 4, v55")

def a_pair_init(R):
    a = R.a
    a(f"s_lshl_b32 s{sT0}, s{sIDX}, 4"); a(f"s_add_u32 s{sT0}, s{sT0}, {PFL}")
    a(f"v_mov_b32 v55, s{sT0}"); a("v_mov_b32 v56, 0")
    R.lds("ds_write_b32 v55, v56", "pf0")
    R.wait_lg_all()

def a_pair_addr(R):
    a = R.a
    a(f"s_lshl_b32 s{sT0}, s{sIDX}, 4"); a(f"s_add_u32 s{sT0}, s{sT0}, {PFL}")
    a(f"v_mov_b32 v55, s{sT0}"); a(f"s_xor_b32 s{sT0}, s{sT0}, 16"); a(f"v_mov_b32 v56, s{sT0}")

def a_pair_sync(R, j):
    a = R.a
    R.wait_lg_all()
    if not cfg.early_x:
        a(f"v_mov_b32 v57, {j+1}")
        a("ds_write_b32 v55, v57")
    a.label(f"L_ps{j}")
    a("ds_read_b32 v57, v56")
    a("s_waitcnt lgkmcnt(0)")
    a(f"v_readfirstlane_b32 s{sT0}, v57")
    a(f"s_cmp_lt_u32 s{sT0}, {j+1}")
    a(f"s_cbranch_scc1 L_ps{j}")

def kv_dma(R, kind, n, ii):
    a = R.a
    j, w = n >> 1, n & 1
    buf = KVA if w == 0 else KVB
    a(f"s_add_u32 m0, s{sM0}, {buf + 1024*ii}")
    a(f"s_add_u32 s{sT1}, s{sCOL+j}, {131072*w + 4096*ii}")
    if kind == "K":
        R.vmem(f"buffer_load_dwordx4 v{vKdE + (ii & 1)}, {srd(SRD_K)}, s{sT1} offen {cfg.k_flags} lds", f"K{n}")
    else:
        R.vmem(f"buffer_load_dwordx4 v{vVd}, {srd(SRD_V)}, s{sT1} offen {cfg.v_flags} lds", f"V{n}")
def a_issue_KV(R, kind, n):
    R.a.comment(f"---- issue {kind} window {n}")
    for ii in range(8): kv_dma(R, kind, n, ii)

def a0_flag_zero(R):
    a = R.a
    a(f"s_or_b32 s{sT0}, s{sG}, s{sIDX}"); a(f"s_cmp_lg_u32 s{sT0}, 0"); a("s_cbranch_scc1 L_fz_skip")
    a(f"s_mul_i32 s{sT0}, s{sGRP}, {FSTR}"); a(f"s_add_u32 s{sT0}, s{sT0}, {FLG}")
    a(f"v_lshlrev_b32 v58, 2, v{vL}"); a("v_mov_b32 v59, 0")
    a(f"s_mov_b64 s[{sEX}:{sEX+1}], exec"); a("s_mov_b32 exec_hi, 0")
    a(f"buffer_store_dword v59, v58, {srd(SRD_WS)}, s{sT0} offen sc0 sc1")
    a(f"s_mov_b64 exec, s[{sEX}:{sEX+1}]")
    a.label("L_fz_skip")

def a0_flag_mark(R):
    a = R.a
    a(f"s_or_b32 s{sT0}, s{sG}, s{sIDX}"); a(f"s_cmp_lg_u32 s{sT0}, 0"); a("s_cbranch_scc1 L_fm_skip")
    a(f"s_lshl_b32 s{sT0}, s{sGRP}, 2"); a(f"v_mov_b32 v58, s{sT0}"); a("v_mov_b32 v59, 1")
    a(f"s_mov_b64 s[{sEX}:{sEX+1}], exec"); a("s_mov_b64 exec, 1")
    a(f"global_store_dword v58, v59, s[{sDBG}:{sDBG+1}] sc0 sc1")
    a(f"s_mov_b64 exec, s[{sEX}:{sEX+1}]")
    a.label("L_fm_skip")

def a_flag_load(R):
    a = R.a
    a(f"s_lshl_b32 s{sT0}, s{sGRP}, 2"); a(f"v_mov_b32 v58, s{sT0}")
    R.vmem(f"global_load_dword v59, v58, s[{sDBG}:{sDBG+1}] sc0 sc1", "chk")
def a_flag_check(R):
    a = R.a
    R.wait_vm("chk")
    a(f"s_mov_b32 s{sT2}, 0")
    a.label("L_fc_poll")
    a(f"v_readfirstlane_b32 s{sT1}, v59")
    a(f"s_cmp_eq_u32 s{sT1}, 1"); a("s_cbranch_scc1 L_fc_skip")
    a(f"s_add_u32 s{sT2}, s{sT2}, 1"); a(f"s_cmp_ge_u32 s{sT2}, 400000"); a("s_cbranch_scc1 L_fc_skip")
    a("s_sleep 2")
    a(f"global_load_dword v59, v58, s[{sDBG}:{sDBG+1}] sc0 sc1")
    a("s_waitcnt vmcnt(0)")
    a("s_branch L_fc_poll")
    a.label("L_fc_skip")

T1, T2 = WB, WB + 32768
def a_S(R, n, dma=None):
    a = R.a
    j, w = n >> 1, n & 1
    buf = KVA if w == 0 else KVB
    if n >= 6:
        if n == 6:
            for s2 in range(2): a(f"v_add_u32 v{40+s2}, {T1}, v{40+s2}")
        buf = 0 if n == 6 else 32768
    if w == 0:
        for s in range(2):
            for nt in range(3):
                R.lds(f"ds_read_b128 {vr(Qf(s,nt))}, v{42+s} offset:{12288*(j & 1) + 2048*nt}", "q")
    frs = [(i, s) for i in range(8) for s in range(2)]
    NB = 4
    def rd(k):
        i, s = frs[k]
        R.lds(f"ds_read_b128 {vr(KF + 4*(k % NB))}, v{40+s} offset:{buf + 2048*i}", f"kf{k}")
    for k in range(NB-1): rd(k)
    if dma and not cfg.interleave:
        for ii in range(8): kv_dma(R, dma[0], dma[1], ii)
        dma = None
    for k, (i, s) in enumerate(frs):
        if k + NB - 1 < len(frs): rd(k + NB - 1)
        if dma and k < 8: kv_dma(R, dma[0], dma[1], k)
        R.wait_lg(f"kf{k}")
        for nt in range(3):
            d = S_(8*w + i, nt)
            c = "0" if (j == 0 and s == 0) else vr(d)
            a(f"v_mfma_f32_16x16x32_bf16 {vr(d)}, {vr(KF + 4*(k % NB))}, {vr(Qf(s,nt))}, {c}")

M1 = (52, 54, 56)
L1 = (53, 55, 57)
BETA = (0, 2, 4); ALO = (6, 8, 10); ALP = (12, 14, 16)
ONES1, ONES2 = 36, 20
def Pf(w, s, nt): return S_(8*w + 2*s, nt)
def Oa(mt, nt): return S_(2*mt + 1, nt)
def XT(i, nt): return S_(9 + 2*i, nt)

def _rowmax(a, tiles, dst, tmp):
    for nt in range(3):
        m = dst[nt]
        vals = [S_(t, nt) + r for t in tiles for r in range(4)]
        a(f"v_max3_f32 v{m}, v{vals[0]}, v{vals[1]}, v{vals[2]}")
        a(f"v_max3_f32 v{tmp}, v{vals[3]}, v{vals[4]}, v{vals[5]}")
        k = 6
        while k + 3 < len(vals):
            a(f"v_max3_f32 v{m}, v{m}, v{vals[k]}, v{vals[k+1]}")
            a(f"v_max3_f32 v{tmp}, v{tmp}, v{vals[k+2]}, v{vals[k+3]}")
            k += 4
        rest = vals[k:]
        assert len(rest) == 2
        a(f"v_max3_f32 v{m}, v{m}, v{rest[0]}, v{rest[1]}")
        a(f"v_max_f32 v{m}, v{m}, v{tmp}")
    for nt in range(3):
        m = dst[nt]
        a(f"v_mov_b32 v{tmp+nt}, v{m}")
    for nt in range(3):
        a(f"v_permlane32_swap_b32 v{tmp+nt}, v{dst[nt]}")
    for nt in range(3):
        a(f"v_max_f32 v{dst[nt]}, v{tmp+nt}, v{dst[nt]}")
    for nt in range(3):
        a(f"v_mov_b32 v{tmp+nt}, v{dst[nt]}")
    for nt in range(3):
        a(f"v_permlane16_swap_b32 v{tmp+nt}, v{dst[nt]}")
    for nt in range(3):
        a(f"v_max_f32 v{dst[nt]}, v{tmp+nt}, v{dst[nt]}")
        a(f"v_mul_f32 v{dst[nt]}, s{sC}, v{dst[nt]}")

def _exppack(a, t0s, mreg):
    for t0 in t0s:
        for nt in range(3):
            m = mreg[nt]
            b0, b1 = S_(t0, nt), S_(t0+1, nt)
            for b in (b0, b0+2, b1, b1+2):
                a(f"v_pk_fma_f32 {vr(b,2)}, {vr(b,2)}, s[{sC}:{sC+1}], {vr(m,2)} op_sel_hi:[1,1,0] neg_lo:[0,0,1] neg_hi:[0,0,1]")
            src = [b0+r for r in range(4)] + [b1+r for r in range(4)]
            for v in src: a(f"v_exp_f32 v{v}, v{v}")
            a(f"v_cvt_pk_bf16_f32 v{b0}, v{src[0]}, v{src[1]}")
            a(f"v_cvt_pk_bf16_f32 v{b0+1}, v{src[2]}, v{src[3]}")
            a(f"v_cvt_pk_bf16_f32 v{b0+2}, v{src[4]}, v{src[5]}")
            a(f"v_cvt_pk_bf16_f32 v{b0+3}, v{src[6]}, v{src[7]}")

def _rowsum(a, w, ones, acc):
    for r in range(4): a(f"v_mov_b32 v{ones+r}, 0x3f803f80")
    for s in range(4):
        for nt in range(3):
            c = "0" if s == 0 else vr(acc(nt))
            a(f"v_mfma_f32_16x16x32_bf16 {vr(acc(nt))}, {vr(ones)}, {vr(Pf(w,s,nt))}, {c}")

def a_softmax1(R):
    a = R.a
    _rowmax(a, range(0, 8), M1, 24)
    _exppack(a, (0, 2, 4, 6), M1)
    _rowsum(a, 0, ONES1, lambda nt: S_(1, nt))
    for nt in range(3): a(f"v_mov_b32 v{L1[nt]}, v{S_(1,nt)}")

def a_softmax2(R):
    a = R.a
    M2 = (24, 26, 28)
    _rowmax(a, range(8, 16), M2, 30)
    for nt in range(3):
        a(f"v_max_f32 v{M2[nt]}, v{M2[nt]}, v{M1[nt]}")
        a(f"v_sub_f32 v{BETA[nt]}, v{M1[nt]}, v{M2[nt]}")
    for nt in range(3): a(f"v_exp_f32 v{BETA[nt]}, v{BETA[nt]}")
    _exppack(a, (8, 10, 12, 14), M2)
    _rowsum(a, 1, ONES2, lambda nt: S_(13, nt))
    a_vaddr(R)
    for nt in range(3):
        a(f"v_fma_f32 v{M2[nt]+1}, v{BETA[nt]}, v{L1[nt]}, v{S_(13,nt)}")
    for nt in range(3):
        R.lds(f"ds_write_b64 v59, {vr(M2[nt],2)} offset:{128*nt}", "st")
    for nt in range(3):
        a(f"v_mov_b32 v{18+2*nt}, v{M2[nt]}"); a(f"v_mov_b32 v{19+2*nt}, v{M2[nt]+1}")
    R.wait_lg_all()

vXW, vXR, vOW = 52, 53, 54
def a_vaddr(R):
    a = R.a
    a(f"s_and_b32 s{sT1}, s{sIDX}, 1")
    a(f"v_lshrrev_b32 v32, 2, v{vL}")
    a(f"v_lshrrev_b32 v33, 1, v32"); a("v_and_b32 v33, 3, v33")
    a(f"s_lshl_b32 s{sT2}, s{sT1}, 14")
    a(f"v_lshlrev_b32 v34, 7, v32"); a(f"v_add_u32 v34, s{sT2}, v34")
    a(f"v_and_b32 v35, 3, v{vL}"); a(f"v_lshl_add_u32 v34, v35, 3, v34")
    a(f"s_lshl_b32 s{sT2}, s{sT1}, 1")
    a(f"v_xor_b32 v33, s{sT2}, v33")
    for mt in range(4):
        a(f"v_xor_b32 v35, {mt}, v33")
        a(f"v_lshl_add_u32 v{40+mt}, v35, 5, v34")
    a(f"s_mul_i32 s{sT0}, s{sIDX}, 384"); a(f"s_add_u32 s{sT0}, s{sT0}, {STAT}")
    a(f"v_lshlrev_b32 v59, 3, v{vQ}"); a(f"v_add_u32 v59, s{sT0}, v59")
    a(f"s_xor_b32 s{sT1}, s{sIDX}, 1"); a(f"s_mul_i32 s{sT1}, s{sT1}, 384"); a(f"s_add_u32 s{sT1}, s{sT1}, {STAT}")
    a(f"v_lshlrev_b32 v60, 3, v{vQ}"); a(f"v_add_u32 v60, s{sT1}, v60")

def a_alpha(R):
    a = R.a
    M2 = (18, 20, 22)
    for nt in range(3):
        R.lds(f"ds_read_b64 v[{32+2*nt}:{33+2*nt}], v60 offset:{128*nt}", "st")
    a(f"s_mul_i32 s{sT2}, s{sIDX}, 6144"); a(f"s_add_u32 s{sT2}, s{sT2}, {XB}")
    a(f"v_lshlrev_b32 v55, 4, v{vL}"); a(f"v_add_u32 v{vXW}, s{sT2}, v55")
    a(f"s_xor_b32 s{sT2}, s{sIDX}, 1"); a(f"s_mul_i32 s{sT2}, s{sT2}, 6144"); a(f"s_add_u32 s{sT2}, s{sT2}, {XB}")
    a(f"v_add_u32 v{vXR}, s{sT2}, v55")
    a(f"s_and_b32 s{sT1}, s{sIDX}, 1")
    a(f"s_lshr_b32 s{sT0}, s{sIDX}, 1"); a(f"s_mul_i32 s{sT2}, s{sT0}, {48*128}"); a(f"s_add_u32 s{sT2}, s{sT2}, {OB}")
    a(f"v_lshlrev_b32 v{vOW}, 7, v{vQ}"); a(f"v_add_u32 v{vOW}, s{sT2}, v{vOW}")
    a(f"s_lshl_b32 s{sT3}, s{sT1}, 2")
    a(f"v_or_b32 v55, s{sT3}, v{vGq}")
    a(f"v_lshrrev_b32 v56, 1, v{vQ}"); a("v_xor_b32 v55, v55, v56")
    a(f"v_lshl_add_u32 v{vOW}, v55, 4, v{vOW}")
    R.wait_lg_all()
    for nt in range(3):
        mo, lo = 32 + 2*nt, 33 + 2*nt
        m, l = M2[nt], M2[nt] + 1
        a(f"v_max_f32 v38, v{m}, v{mo}")
        a(f"v_sub_f32 v{ALO[nt]}, v{m}, v38"); a(f"v_sub_f32 v{ALP[nt]}, v{mo}, v38")
        a(f"v_exp_f32 v{ALO[nt]}, v{ALO[nt]}"); a(f"v_exp_f32 v{ALP[nt]}, v{ALP[nt]}")
        a(f"v_mul_f32 v38, v{l}, v{ALO[nt]}")
        a(f"v_fma_f32 v38, v{lo}, v{ALP[nt]}, v38")
        a("v_rcp_f32 v38, v38")
        a(f"v_mul_f32 v{ALO[nt]}, v{ALO[nt]}, v38"); a(f"v_mul_f32 v{ALP[nt]}, v{ALP[nt]}, v38")

def a_PV(R, n, dma=None):
    a = R.a
    j, w = n >> 1, n & 1
    buf = KVA if w == 0 else KVB
    frs = [(s, mt) for s in range(4) for mt in range(4)]
    if w == 1 and cfg.early_x:
        frs = [(s, mt) for s in range(4) for mt in (2, 3)] + [(s, mt) for s in range(4) for mt in (0, 1)]
    elif w == 1: frs = frs[:12] + [(3, 2), (3, 3), (3, 0), (3, 1)]
    NB = 4
    def rd(k):
        s, mt = frs[k]
        b = KF + 4*(k % NB)
        R.lds(f"ds_read_b64_tr_b16 {vr(b,2)}, v{40+mt} offset:{buf + 4096*s}", f"vf{k}")
        R.lds(f"ds_read_b64_tr_b16 {vr(b+2,2)}, v{40+mt} offset:{buf + 4096*s + 2048}", f"vf{k}")
    for k in range(NB-1): rd(k)
    if dma and not cfg.interleave:
        for ii in range(8): kv_dma(R, dma[0], dma[1], ii)
        dma = None
    for k, (s, mt) in enumerate(frs):
        if k + NB - 1 < len(frs): rd(k + NB - 1)
        if dma and k < 8: kv_dma(R, dma[0], dma[1], k)
        R.wait_lg(f"vf{k}")
        for nt in range(3):
            d = Oa(mt, nt)
            c = "0" if (w == 0 and s == 0) else vr(d)
            a(f"v_mfma_f32_16x16x32_bf16 {vr(d)}, {vr(KF + 4*(k % NB))}, {vr(Pf(w,s,nt))}, {c}")
        if w == 1 and cfg.early_x and k in (8, 9):
            m2 = k - 6
            for nt in range(3):
                R.lds(f"ds_write_b128 v{vXW}, {vr(Oa(m2,nt))} offset:{((m2-2)*3+nt)*1024}", "xw")
            if k == 9:
                a(f"v_mov_b32 v57, {j+1}")
                R.lds("ds_write_b32 v55, v57", "xw")
        if w == 1 and not cfg.early_x and k >= 14:
            m2 = k - 12
            for nt in range(3):
                R.lds(f"ds_write_b128 v{vXW}, {vr(Oa(m2,nt))} offset:{((m2-2)*3+nt)*1024}", "xw")

def a_rescale(R):
    a = R.a
    for mt in range(4):
        for nt in range(3):
            if cfg.unpack:
                for r in range(4): a(f"v_mul_f32 v{Oa(mt,nt)+r}, v{BETA[nt]}, v{Oa(mt,nt)+r}")
                continue
            for h2 in (0, 2):
                b = Oa(mt, nt) + h2
                a(f"v_pk_mul_f32 {vr(b,2)}, {vr(b,2)}, {vr(BETA[nt],2)} op_sel_hi:[1,0]")

def a_xwrite(R):
    a = R.a
    for mt in (2, 3):
        for nt in range(3):
            R.lds(f"ds_write_b128 v{vXW}, {vr(Oa(mt,nt))} offset:{((mt-2)*3+nt)*1024}", "xw")

def a_xfinal(R, dma=None):
    a = R.a
    for nt in range(3):
        for i in range(2):
            R.lds(f"ds_read_b128 {vr(XT(i,nt))}, v{vXR} offset:{(i*3+nt)*1024}", f"xr{nt}")
    if dma:
        for ii in range(8): kv_dma(R, dma[0], dma[1], ii)
    for nt in range(3):
        for i in range(2):
            if cfg.unpack:
                for r in range(4): a(f"v_mul_f32 v{Oa(i,nt)+r}, v{ALO[nt]}, v{Oa(i,nt)+r}")
                continue
            for h2 in (0, 2):
                b = Oa(i, nt) + h2
                a(f"v_pk_mul_f32 {vr(b,2)}, {vr(b,2)}, {vr(ALO[nt],2)} op_sel_hi:[1,0]")
    for nt in range(3):
        R.wait_lg(f"xr{nt}")
        for i in range(2):
            if cfg.unpack:
                for r in range(4): a(f"v_fma_f32 v{Oa(i,nt)+r}, v{XT(i,nt)+r}, v{ALP[nt]}, v{Oa(i,nt)+r}")
                continue
            for h2 in (0, 2):
                b, x = Oa(i, nt) + h2, XT(i, nt) + h2
                a(f"v_pk_fma_f32 {vr(b,2)}, {vr(x,2)}, {vr(ALP[nt],2)}, {vr(b,2)} op_sel_hi:[1,0,1]")
        d = XT(0, nt)
        a(f"v_cvt_pk_bf16_f32 v{d}, v{Oa(0,nt)}, v{Oa(0,nt)+1}")
        a(f"v_cvt_pk_bf16_f32 v{d+1}, v{Oa(0,nt)+2}, v{Oa(0,nt)+3}")
        a(f"v_cvt_pk_bf16_f32 v{d+2}, v{Oa(1,nt)}, v{Oa(1,nt)+1}")
        a(f"v_cvt_pk_bf16_f32 v{d+3}, v{Oa(1,nt)+2}, v{Oa(1,nt)+3}")
        R.lds(f"ds_write_b128 v{vOW}, {vr(d)} offset:{2048*nt}", "ow")

PRING = 0
vWqD = 20
vWqR = 21
vQW = 25
PT = 26
vWqR5 = 35
def Xf(s, nt): return 40 + (s*3 + nt)*4
def Qa(mt, nt): return 208 + (mt*3 + nt)*4

def p_lane(a):
    a(f"v_mbcnt_lo_u32_b32 v{PT}, -1, 0"); a(f"v_mbcnt_hi_u32_b32 v{PT}, -1, v{PT}")
    a(f"v_and_b32 v{PT+1}, 15, v{PT}"); a(f"v_lshrrev_b32 v{PT+2}, 4, v{PT}")

def p_setup_pre(a):
    l, q, g = PT, PT+1, PT+2
    p = sIDX
    p_lane(a)
    a(f"s_mul_i32 s{sXo}, s{p}, 896")
    a(f"s_lshr_b32 s{sT0}, s{p}, 1")
    a(f"v_xor_b32 v{PT+3}, s{sT0}, v{l}"); a(f"v_lshlrev_b32 v{PT+3}, 4, v{PT+3}")
    for k in range(4):
        a(f"v_xor_b32 v{PT+4+k}, {(2*k) << 4}, v{PT+3}")

def p_setup(R):
    a = R.a
    a(f"s_mov_b64 s[{sEX}:{sEX+1}], exec")
    a("s_mov_b32 exec_hi, 0x00ffffff")
    for ii in range(12):
        base = (KVB + 3584*ii) if ii < 8 else (QB + 3584*(ii-8))
        a(f"s_add_u32 m0, s{sXo}, {base}")
        a(f"s_add_u32 s{sT1}, s{sXo}, {3584*ii}")
        R.vmem(f"buffer_load_dwordx4 v{PT+4 + (ii % 4)}, {srd(SRD_X)}, s{sT1} offen lds", "x")
    a(f"s_mov_b64 exec, s[{sEX}:{sEX+1}]")

def p_setup2(R):
    a = R.a
    l, q, g = PT, PT+1, PT+2
    p = sIDX
    a(f"s_lshl_b32 s{sWp}, s{p}, 14"); a(f"s_add_u32 s{sWp}, s{sWp}, {WB}")
    wq_dma_pattern(a, vWqD, l, g, PT+3, PT+4)
    a(f"v_lshrrev_b32 v{PT+3}, 2, v{l}")
    a(f"v_lshrrev_b32 v{PT+4}, 1, v{PT+3}"); a(f"v_and_b32 v{PT+4}, 3, v{PT+4}")
    a(f"v_lshlrev_b32 v{PT+5}, 7, v{PT+3}"); a(f"v_add_u32 v{PT+5}, s{sWp}, v{PT+5}")
    a(f"v_and_b32 v{PT+6}, 3, v{l}"); a(f"v_lshl_add_u32 v{PT+5}, v{PT+6}, 3, v{PT+5}")
    for mt in range(4):
        a(f"v_xor_b32 v{PT+6}, {mt}, v{PT+4}")
        a(f"v_lshl_add_u32 v{vWqR+mt}, v{PT+6}, 5, v{PT+5}")
    a(f"s_and_b32 s{sT0}, s{sIDX}, 1"); a(f"s_mul_i32 s{sT0}, s{sT0}, {48*128}")
    a(f"s_lshr_b32 s{sT1}, s{sIDX}, 1"); a(f"s_mul_i32 s{sT1}, s{sT1}, 12288")
    a(f"s_add_u32 s{sT0}, s{sT0}, s{sT1}"); a(f"s_add_u32 s{sT0}, s{sT0}, {QB}")
    a(f"v_lshlrev_b32 v{PT+5}, 7, v{q}"); a(f"v_add_u32 v{PT+5}, s{sT0}, v{PT+5}")
    a(f"v_and_b32 v{PT+6}, 1, v{g}"); a(f"v_lshl_add_u32 v{PT+5}, v{PT+6}, 3, v{PT+5}")
    a(f"v_lshrrev_b32 v{PT+6}, 1, v{g}"); a(f"v_lshrrev_b32 v{PT+3}, 1, v{q}"); a(f"v_xor_b32 v{PT+6}, v{PT+6}, v{PT+3}")
    a(f"v_lshl_add_u32 v{vQW}, v{PT+6}, 4, v{PT+5}")
    a(f"v_lshrrev_b32 v{PT+3}, 1, v{q}")
    a(f"v_lshrrev_b32 v{PT+4}, 1, v{g}"); a(f"v_xor_b32 v{PT+4}, v{PT+4}, v{PT+3}")
    a(f"s_mov_b32 s{sT0}, 896"); a(f"v_mul_lo_u32 v{PT+5}, s{sT0}, v{q}")
    a(f"v_and_b32 v{PT+6}, 1, v{g}"); a(f"v_lshl_add_u32 v{PT+5}, v{PT+6}, 3, v{PT+5}")
    a(f"v_add_u32 v{PT+5}, {KVB}, v{PT+5}")
    for k in range(4):
        a(f"v_xor_b32 v{PT+6}, {2*k}, v{PT+4}")
        a(f"v_lshl_add_u32 v{PT+7+k}, v{PT+6}, 4, v{PT+5}")

def p_xfrags(R):
    a = R.a
    for pas in range(2):
        for s in range(14):
            for nt in ((0, 1) if pas == 0 else (2,)):
                for half in range(2):
                    k = 2*(s & 1) + half
                    off = (14336*nt if pas == 0 else 0) + 128*(s >> 1)
                    R.lds_guard(1)
                    R.lds(f"ds_read_b64 {vr(Xf(s,nt)+2*half,2)}, v{PT+7+k} offset:{off}", "xf")
        if pas == 0:
            R.wait_lg_all()
            for k in range(4): a(f"v_add_u32 v{PT+7+k}, {QB-KVB}, v{PT+7+k}")
    R.wait_lg_all()

def p_qcompute(R, kaps, stream_next, hooks=None):
    a = R.a
    D = cfg.dq; NB = D + 1
    hooks = hooks or {}
    frs = [(kap, mt) for kap in kaps for mt in range(4)]
    def rd(f):
        kap, mt = frs[f]
        if mt == 0: R.wait_vm(f"w{kap}")
        b = PRING + 4*(f % NB)
        area, off = wq_slot(kap)
        ad = (vWqR if area == 'own' else vWqR5) + mt
        R.lds(f"ds_read_b64_tr_b16 {vr(b,2)}, v{ad} offset:{off}", f"f{kap}_{mt}")
        R.lds(f"ds_read_b64_tr_b16 {vr(b+2,2)}, v{ad} offset:{off + 2048}", f"f{kap}_{mt}")
    for f in range(min(D, len(frs))): rd(f)
    for f, (kap, mt) in enumerate(frs):
        J, s = divmod(kap, 14)
        if f + D < len(frs): rd(f + D)
        if stream_next and cfg.j0s5 and kap >= 1 and kap + 4 < 14: wq_dma(R, kap + 4, vWqD, [mt])
        R.wait_lg(f"f{kap}_{mt}")
        if cfg.kst and mt == 0 and kap < 14 and kap % 2 == 0: lstamp(a, 26 + kap // 2)
        for nt in range(3):
            d = Qa(mt, nt)
            c = "0" if s == 0 else vr(d)
            a(f"v_mfma_f32_16x16x32_bf16 {vr(d)}, {vr(PRING + 4*(f % NB))}, {vr(Xf(s,nt))}, {c}")
        if stream_next and not cfg.j0s5 and mt == 3 and kap + NSLOT_Q < 14: wq_dma(R, kap + NSLOT_Q, vWqD)
        if mt == 3 and kap in hooks: hooks[kap]()
    last = kaps[-1]
    if last % 14 == 13:
        if cfg.kst and last == 13: lstamp(a, 33)
        k = 0
        for m2 in range(4):
            a(f"v_xor_b32 v{PT+8}, {32*m2}, v{vQW}")
            for nt in range(3):
                d = Qa(m2, nt)
                t = PT + 2*(k % 4); k += 1
                a(f"v_cvt_pk_bf16_f32 v{t}, v{d}, v{d+1}")
                a(f"v_cvt_pk_bf16_f32 v{t+1}, v{d+2}, v{d+3}")
                R.lds_guard(1)
                R.lds(f"ds_write_b64 v{PT+8}, {vr(t,2)} offset:{2048*nt}", "qw")
        R.wait_lg("qw")

ORING = 0
vWoD = 32
vWoR = 34
vOR = 42
VT = 48
ALT = 208
PUB = [216 + 4*i for i in range(10)] + [20, 24]
def Outa(i, nt): return 64 + (i*3 + nt)*4
def Of(ks, nt): return 160 + (ks*3 + nt)*4

def p_vsetup(R, wide):
    a = R.a
    l, q, g = VT, VT+1, VT+2
    a(f"v_mbcnt_lo_u32_b32 v{l}, -1, 0"); a(f"v_mbcnt_hi_u32_b32 v{l}, -1, v{l}")
    a(f"v_and_b32 v{q}, 15, v{l}"); a(f"v_lshrrev_b32 v{g}, 4, v{l}")
    a(f"s_lshl_b32 s{sT0}, s{sIDX}, 8")
    if wide:
        a(f"v_bfe_u32 v{VT+3}, v{l}, 1, 3"); a(f"v_xor_b32 v{VT+3}, v{VT+3}, v{g}")
        a(f"s_mov_b32 s{sT1}, 896"); a(f"v_mul_lo_u32 v{VT+4}, s{sT1}, v{g}")
        a(f"v_and_b32 v{VT+5}, 1, v{l}"); a(f"v_lshl_add_u32 v{VT+4}, v{VT+5}, 4, v{VT+4}")
        a(f"v_add_u32 v{VT+4}, s{sT0}, v{VT+4}")
        a(f"v_lshl_add_u32 v{vWoD}, v{VT+3}, 5, v{VT+4}")
        a(f"v_xor_b32 v{VT+3}, 4, v{VT+3}"); a(f"v_lshl_add_u32 v{vWoD+1}, v{VT+3}, 5, v{VT+4}")
        a(f"v_lshrrev_b32 v{VT+3}, 2, v{l}"); a(f"v_and_b32 v{VT+4}, 7, v{VT+3}")
        a(f"v_lshlrev_b32 v{VT+5}, 8, v{VT+3}")
    else:
        a(f"v_lshrrev_b32 v{VT+3}, 3, v{l}"); a(f"s_mov_b32 s{sT1}, 896"); a(f"v_mul_lo_u32 v{VT+4}, s{sT1}, v{VT+3}")
        a(f"v_bfe_u32 v{VT+3}, v{l}, 1, 2"); a(f"v_xor_b32 v{VT+3}, v{VT+3}, v{g}")
        a(f"v_lshl_add_u32 v{VT+4}, v{VT+3}, 5, v{VT+4}")
        a(f"v_and_b32 v{VT+5}, 1, v{l}"); a(f"v_lshl_add_u32 v{VT+4}, v{VT+5}, 4, v{VT+4}")
        a(f"v_add_u32 v{vWoD}, s{sT0}, v{VT+4}")
        a(f"v_lshrrev_b32 v{VT+3}, 2, v{l}")
        a(f"v_lshrrev_b32 v{VT+4}, 1, v{VT+3}"); a(f"v_and_b32 v{VT+4}, 3, v{VT+4}")
        a(f"v_lshlrev_b32 v{VT+5}, 7, v{VT+3}")
    a(f"v_and_b32 v{VT+6}, 3, v{l}"); a(f"v_lshl_add_u32 v{VT+5}, v{VT+6}, 3, v{VT+5}")
    a(f"s_lshl_b32 s{sT1}, s{sIDX}, 13")
    for mt in range(8 if wide else 4):
        a(f"v_xor_b32 v{VT+6}, {mt}, v{VT+4}")
        a(f"v_lshl_add_u32 v{VT+7}, v{VT+6}, 5, v{VT+5}")
        a(f"v_add_u32 v{vWoR+mt}, s{sWp}, v{VT+7}")
        a(f"v_add_u32 v{ALT+mt}, s{sT1}, v{VT+7}")
    a(f"v_lshrrev_b32 v{VT+3}, 1, v{q}"); a(f"v_xor_b32 v{VT+3}, v{g}, v{VT+3}")
    a(f"v_lshlrev_b32 v{VT+4}, 7, v{q}"); a(f"v_add_u32 v{VT+4}, {OB}, v{VT+4}")
    a(f"v_lshl_add_u32 v{vOR}, v{VT+3}, 4, v{VT+4}")
    a(f"v_xor_b32 v{VT+3}, 4, v{VT+3}"); a(f"v_lshl_add_u32 v{vOR+1}, v{VT+3}, 4, v{VT+4}")
    a(f"s_lshl_b32 s{sM0}, s{sIDX}, 13")

def wo_slot(kap, wide):
    slot = 8192 if wide else 4096
    special = {14: ('kv', KVA), 15: ('kv', KVB)}
    if kap in special: return special[kap]
    return ('own', (kap % 2)*slot)

def wo_dma(R, kap, wide, ii_list=None):
    a = R.a
    j, ks = divmod(kap, 4); h, s = divmod(ks, 2)
    row0 = 256*h + 32*s
    area, off = wo_slot(kap, wide)
    base = sWp if area == 'own' else sM0
    for ii in (ii_list if ii_list is not None else range(8 if wide else 4)):
        a(f"s_add_u32 m0, s{base}, {off + 1024*ii}")
        rows = 4*ii if wide else 8*ii
        a(f"s_add_u32 s{sT1}, s{sCOL+4+j}, {(row0 + rows)*896}")
        pat = vWoD + ((ii & 1) if wide else 0)
        R.vmem(f"buffer_load_dwordx4 v{pat}, {srd(SRD_WO)}, s{sT1} offen {cfg.w_flags} lds", f"o{kap}")

def p_ofrags(R):
    for k2 in range(4):
        for nt in range(3):
            R.lds_guard(1)
            R.lds(f"ds_read_b128 {vr(Of(k2,nt))}, v{vOR + (k2 & 1)} offset:{6144*(k2 >> 1) + 2048*nt}", f"of{k2}")

vPK0, vPK1, vPV, vPF = 44, 45, 46, 56
def p_kv_setup(R, first=False):
    a = R.a
    l, g = VT, VT+2
    a(f"s_lshl_b32 s{sM0}, s{sIDX}, 13")
    a(f"v_mbcnt_lo_u32_b32 v{l}, -1, 0"); a(f"v_mbcnt_hi_u32_b32 v{l}, -1, v{l}"); a(f"v_lshrrev_b32 v{g}, 4, v{l}")
    a(f"v_lshrrev_b32 v{VT+3}, 3, v{l}"); a(f"v_lshlrev_b32 v{VT+3}, 9, v{VT+3}")
    a(f"s_lshl_b32 s{sT1}, s{sIDX}, 15"); a(f"v_add_u32 v{VT+3}, s{sT1}, v{VT+3}")
    a(f"v_and_b32 v{VT+4}, 7, v{l}"); a(f"v_xor_b32 v{VT+5}, v{VT+4}, v{g}")
    a(f"v_lshl_add_u32 v{vPK0}, v{VT+5}, 4, v{VT+3}")
    a(f"v_xor_b32 v{VT+5}, 4, v{VT+5}"); a(f"v_lshl_add_u32 v{vPK1}, v{VT+5}, 4, v{VT+3}")
    a(f"v_lshrrev_b32 v{VT+5}, 1, v{VT+4}"); a(f"v_xor_b32 v{VT+5}, v{VT+5}, v{g}")
    a(f"v_lshl_add_u32 v{VT+5}, v{VT+5}, 5, v{VT+3}")
    a(f"v_and_b32 v{VT+4}, 1, v{l}"); a(f"v_lshl_add_u32 v{vPV}, v{VT+4}, 4, v{VT+5}")
    a(f"v_lshlrev_b32 v{vPF}, 7, v{l}")

def p_issue_KV(R, kind, n):
    a = R.a
    j, w = n >> 1, n & 1
    buf = KVA if w == 0 else KVB
    if kind == "K" and n >= 6: buf = T1 if n == 6 else T2
    for ii in range(8):
        a(f"s_add_u32 m0, s{sM0}, {buf + 1024*ii}")
        a(f"s_add_u32 s{sT1}, s{sCOL+j}, {131072*w + 4096*ii}")
        if kind == "K": R.vmem(f"buffer_load_dwordx4 v{vPK0 + (ii & 1)}, {srd(SRD_K)}, s{sT1} offen {cfg.k_flags} lds", f"K{n}")
        else: R.vmem(f"buffer_load_dwordx4 v{vPV}, {srd(SRD_V)}, s{sT1} offen {cfg.v_flags} lds", f"V{n}")

def p_tlb_warm(R):
    a = R.a
    if not cfg.tlbw: return
    a(f"s_lshl_b32 s{sT0}, s{sB}, 4"); a(f"s_lshl_b32 s{sT1}, s{sBR}, 2"); a(f"s_add_u32 s{sT0}, s{sT0}, s{sT1}")
    a(f"s_mul_i32 s{sT0}, s{sT0}, {PART}")
    a(f"v_mov_b32 v58, s{sT0}")
    a(f"s_add_u32 s{sT1}, s{sT0}, {11*PART + PART - 4}"); a(f"v_writelane_b32 v58, s{sT1}, 1")
    a(f"s_mul_i32 s{sT1}, s2, {PART}"); a(f"v_writelane_b32 v58, s{sT1}, 2")
    a(f"s_mul_i32 s{sT1}, s{sGRP}, {FSTR}"); a(f"s_add_u32 s{sT1}, s{sT1}, {FLG}"); a(f"v_writelane_b32 v58, s{sT1}, 3")
    a(f"s_mul_i32 s{sT2}, s{sB}, {48*1792}")
    a(f"s_mov_b64 s[{sEX}:{sEX+1}], exec"); a("s_mov_b64 exec, 0xf")
    R.vmem(f"buffer_load_dword v59, v58, {srd(SRD_WS)}, 0 offen sc0 sc1", "tlb")
    a("s_mov_b64 exec, 1"); a("v_mov_b32 v60, 0")
    R.vmem(f"buffer_load_dword v59, v60, {srd(SRD_OUT)}, s{sT2} offen sc0 sc1", "tlb")
    a(f"s_mov_b64 exec, s[{sEX}:{sEX+1}]")

def p_pf_wo(R):
    a = R.a
    if not cfg.pf: return
    a(f"s_mul_i32 s{sT2}, s{sB}, 28672"); a(f"s_lshl_b32 s{sT3}, s{sIDX}, 13"); a(f"s_add_u32 s{sT2}, s{sT2}, s{sT3}")
    a(f"s_cmp_eq_u32 s{sIDX}, 3"); a("s_cselect_b32 exec_hi, 0, -1")
    R.vmem(f"buffer_load_dword v57, v{vPF}, {srd(SRD_WO)}, s{sT2} offen {cfg.pf_flags}", "pf")
    a("s_mov_b32 exec_hi, -1")

def p_of(R, k2):
    for nt in range(3):
        R.lds_guard(1)
        R.lds(f"ds_read_b128 {vr(Of(k2,nt))}, v{vOR + (k2 & 1)} offset:{6144*(k2 >> 1) + 2048*nt}", f"of{k2}")

def p_ocompute(R, kaps, wide, inter=None, ofr=False):
    a = R.a
    NT = 8 if wide else 4
    D = 4; NB = 5
    rowb = 256 if wide else 128
    inter = inter or {}
    frs = [(kap, mt) for kap in kaps for mt in range(NT)]
    def rd(f):
        kap, mt = frs[f]
        if mt == 0: R.wait_vm(f"o{kap}")
        b = ORING + 4*(f % NB)
        area, off = wo_slot(kap, wide)
        addr = (vWoR if area == 'own' else ALT) + mt
        R.lds_guard(2)
        R.lds(f"ds_read_b64_tr_b16 {vr(b,2)}, v{addr} offset:{off}", f"f{kap}_{mt}")
        R.lds(f"ds_read_b64_tr_b16 {vr(b+2,2)}, v{addr} offset:{off + 16*rowb}", f"f{kap}_{mt}")
    if ofr: p_of(R, 0)
    for f in range(D): rd(f)
    for f, (kap, mt) in enumerate(frs):
        j, ks = divmod(kap, 4)
        if f + D < len(frs): rd(f + D)
        if ofr and f < 3: p_of(R, f + 1)
        for (k2, ii) in inter.get(f, []): wo_dma(R, k2, wide, [ii])
        R.wait_lg(f"f{kap}_{mt}")
        if mt == 0: R.wait_lg(f"of{ks}")
        for nt in range(3):
            d = Outa(mt, nt)
            c = "0" if kap == 0 else vr(d)
            a(f"v_mfma_f32_16x16x32_bf16 {vr(d)}, {vr(ORING + 4*(f % NB))}, {vr(Of(ks,nt))}, {c}")
        if cfg.tst and mt == NT - 1 and kap >= 10: lstamp(a, 26 + kap - 10)

def p_oproj_phase(R, bar, wide):
    a = R.a
    NT = 8 if wide else 4
    nbar = 0
    def b1():
        nonlocal nbar
        if cfg.pv_all and 1 <= nbar <= 6: R.wait_vm(f"V{nbar+1}")
        bar(); nbar += 1
        if cfg.pv_all and 1 <= nbar <= 6: p_issue_KV(R, "V", nbar + 1)
    b1()
    if cfg.wo_first_after >= 6: wo_dma(R, 0, wide); wo_dma(R, 1, wide)
    b1()
    if cfg.pvprio: a(f"s_setprio {cfg.pvprio}")
    for j in range(3):
        a.comment(f"---- O projection chunk {j}")
        if cfg.altprio: a("s_setprio 1")
        p_ocompute(R, [4*j, 4*j+1], wide, ofr=True)
        wo_dma(R, 4*j+2, wide); wo_dma(R, 4*j+3, wide)
        if cfg.altprio: a("s_setprio 0")
        b1()
        if j < 2:
            p_ocompute(R, [4*j+2, 4*j+3], wide)
            wo_dma(R, 4*j+4, wide); wo_dma(R, 4*j+5, wide)
        else:
            if cfg.p7prio: a(f"s_setprio {cfg.p7prio}")
            if cfg.d14first:
                wo_dma(R, 14, wide); inter = {}
            else:
                inter = {f: [(14, f)] for f in range(NT)}
            inter.update({NT + f: [(12, f)] for f in range(NT)})
            p_ocompute(R, [10, 11], wide, inter=inter)
            wo_dma(R, 13, wide)
        b1()
    p_ocompute(R, [12, 13], wide, inter={f: [(15, f)] for f in range(NT)}, ofr=True)
    p_ocompute_last(R, wide)
    return nbar

def p_ocompute_last(R, wide):
    a = R.a
    NT = 8 if wide else 4
    D = 4; NB = 5
    rowb = 256 if wide else 128
    frs = [(kap, 2*ip + t) for ip in range(NT//2) for kap in (14, 15) for t in range(2)]
    def rd(f):
        kap, mt = frs[f]
        if f == 0: R.wait_vm("o14"); R.wait_vm("o15")
        b = ORING + 4*(f % NB)
        area, off = wo_slot(kap, wide)
        addr = (vWoR if area == 'own' else ALT) + mt
        R.lds_guard(2)
        R.lds(f"ds_read_b64_tr_b16 {vr(b,2)}, v{addr} offset:{off}", f"g{f}")
        R.lds(f"ds_read_b64_tr_b16 {vr(b+2,2)}, v{addr} offset:{off + 16*rowb}", f"g{f}")
    a(f"v_mbcnt_lo_u32_b32 v{VT}, -1, 0"); a(f"v_mbcnt_hi_u32_b32 v{VT}, -1, v{VT}"); a(f"v_lshlrev_b32 v{VT}, 4, v{VT}")
    a(f"s_mul_i32 s{sT2}, s2, {PART}"); a(f"s_mul_i32 s{sT3}, s{sIDX}, {12*1024}"); a(f"s_add_u32 s{sT2}, s{sT2}, s{sT3}")
    npub = 0
    def pub_pair(ip):
        nonlocal npub
        for nt in range(3):
            t = PUB[npub]; npub += 1
            d0, d1 = Outa(2*ip, nt), Outa(2*ip+1, nt)
            a(f"v_cvt_pk_bf16_f32 v{t}, v{d0}, v{d0+1}"); a(f"v_cvt_pk_bf16_f32 v{t+1}, v{d0+2}, v{d0+3}")
            a(f"v_cvt_pk_bf16_f32 v{t+2}, v{d1}, v{d1+1}"); a(f"v_cvt_pk_bf16_f32 v{t+3}, v{d1+2}, v{d1+3}")
            a(f"s_add_u32 s{sT1}, s{sT2}, {1024*(ip*3 + nt)}")
            R.vmem(f"buffer_store_dwordx4 {vr(t)}, v{VT}, {srd(SRD_WS)}, s{sT1} offen sc0 sc1", "pub")
    for f in range(D): rd(f)
    for f, (kap, mt) in enumerate(frs):
        ks = kap % 4
        if f + D < len(frs): rd(f + D)
        R.wait_lg(f"g{f}")
        for nt in range(3):
            d = Outa(mt, nt)
            a(f"v_mfma_f32_16x16x32_bf16 {vr(d)}, {vr(ORING + 4*(f % NB))}, {vr(Of(ks,nt))}, {vr(d)}")
        if f % 4 == 1 and f >= 5: pub_pair(f//4 - 1)
    pub_pair(NT//2 - 1)

def p_flag(R):
    a = R.a
    if cfg.tst: lstamp(a, 32)
    R.wait_vm_all()
    if cfg.tst: lstamp(a, 33)
    a(f"s_mul_i32 s{sT0}, s{sGRP}, {FSTR}"); a(f"s_add_u32 s{sT0}, s{sT0}, {FLG}")
    a(f"s_lshl_b32 s{sT1}, s{sG}, 2"); a(f"s_add_u32 s{sT1}, s{sT1}, s{sIDX}"); a(f"s_lshl_b32 s{sT1}, s{sT1}, 2")
    a(f"v_mov_b32 v2, s{sT1}"); a("v_mov_b32 v1, 1")
    a(f"s_mov_b64 s[{sEX}:{sEX+1}], exec")
    a("s_mov_b64 exec, 1")
    a(f"buffer_store_dword v1, v2, {srd(SRD_WS)}, s{sT0} offen sc0 sc1")
    a(f"s_mov_b64 exec, s[{sEX}:{sEX+1}]")

def emit_reduce(a):
    a.label("L_tail")
    if cfg.stamps: stamp(a, 50)
    a(f"s_min_u32 s{sT0}, s{sG}, 2"); a(f"s_mul_i32 s{sT1}, s{sG}, 5"); a(f"s_add_u32 s{sT0}, s{sT0}, s{sT1}")
    a(f"s_cmp_lt_u32 s{sG}, 2"); a(f"s_cselect_b32 s{sT1}, 6, 5")
    a(f"s_mov_b32 s80, s{sT1}")
    a(f"s_add_u32 s{sT0}, s{sT0}, s{sWAVE}")
    a("v_mbcnt_lo_u32_b32 v3, -1, 0"); a("v_mbcnt_hi_u32_b32 v3, -1, v3")
    a("v_lshlrev_b32 v6, 4, v3"); a("v_lshlrev_b32 v0, 2, v3")
    a(f"s_mul_i32 s{sT2}, s{sT0}, 171"); a(f"s_lshr_b32 s{sT2}, s{sT2}, 9")
    a(f"s_mul_i32 s{sT3}, s{sT2}, 3"); a(f"s_sub_u32 s{sT3}, s{sT0}, s{sT3}")
    a(f"s_lshl_b32 s{sT3}, s{sT3}, 4"); a(f"s_mul_i32 s{sT1}, s{sB}, 48"); a(f"s_add_u32 s{sT3}, s{sT3}, s{sT1}")
    a(f"s_mul_i32 s{sT3}, s{sT3}, 1792"); a(f"s_lshl_b32 s{sT2}, s{sT2}, 6"); a(f"s_add_u32 s{sT3}, s{sT3}, s{sT2}")
    a(f"s_mul_i32 s{sT1}, s{sBR}, 896"); a(f"s_add_u32 s78, s{sT3}, s{sT1}") if not cfg.lstamps else None
    if cfg.lstamps: a(f"s_mul_i32 s{sT1}, s{sBR}, 896"); a(f"s_add_u32 s100, s{sT3}, s{sT1}")
    sOUT = 100 if cfg.lstamps else 78
    a("v_and_b32 v7, 15, v3"); a(f"s_mov_b32 s{sT1}, 1792"); a(f"v_mul_lo_u32 v7, s{sT1}, v7")
    a("v_bfe_u32 v8, v3, 4, 1"); a("v_lshl_add_u32 v7, v8, 5, v7")
    a("v_lshrrev_b32 v8, 5, v3"); a("v_lshl_add_u32 v7, v8, 4, v7")
    a(f"s_lshl_b32 s{sT1}, s{sB}, 4"); a(f"s_lshl_b32 s{sT2}, s{sBR}, 2"); a(f"s_add_u32 s{sT1}, s{sT1}, s{sT2}")
    a(f"s_mul_i32 s{sT1}, s{sT1}, {PART}"); a(f"s_lshl_b32 s{sT2}, s{sT0}, 10"); a(f"s_add_u32 s{sT3}, s{sT1}, s{sT2}")
    if cfg.latepoll: a("s_barrier")
    a(f"s_cmp_lg_u32 s{sWAVE}, 0"); a("s_cbranch_scc1 L_nopoll")
    a(f"s_mul_i32 s{sT0}, s{sGRP}, {FSTR}"); a(f"s_add_u32 s{sT0}, s{sT0}, {FLG}")
    a(f"s_mov_b64 s[{sEX}:{sEX+1}], exec")
    a("s_mov_b32 exec_hi, 0")
    a(f"s_mov_b32 s{sT2}, 0")
    a.label("L_poll")
    a(f"buffer_load_dword v4, v0, {srd(SRD_WS)}, s{sT0} offen sc0 sc1")
    a("s_waitcnt vmcnt(0)")
    a("v_cmp_eq_u32 vcc, 1, v4")
    a("s_cmp_eq_u32 vcc_lo, -1")
    a("s_cbranch_scc1 L_poll_done")
    a(f"s_add_u32 s{sT2}, s{sT2}, 1")
    a(f"s_cmp_ge_u32 s{sT2}, 400000")
    a("s_cbranch_scc1 L_poll_done")
    if cfg.sleep: a(f"s_sleep {cfg.sleep}")
    a("s_branch L_poll")
    a.label("L_poll_done")
    a(f"s_mov_b64 exec, s[{sEX}:{sEX+1}]")
    a.label("L_nopoll")
    a("s_barrier")
    a(f"s_cmp_ge_u32 s{sWAVE}, s80")
    a("s_cbranch_scc1 " + ("L_nogather" if cfg.stamps else ("L_mini" if cfg.mini else "L_end")))
    if cfg.stamps: stamp(a, 52)
    for k in range(8):
        gb, gp = k >> 2, k & 3
        a(f"s_add_u32 s{sT2}, s{sT3}, {(gb*8 + gp)*PART}")
        a(f"buffer_load_dwordx4 {vr(64+4*k)}, v6, {srd(SRD_WS)}, s{sT2} offen sc0 sc1")
    acc = 16
    for k in range(8):
        a(f"s_waitcnt vmcnt({7-k})")
        for r in range(4):
            src = 64 + 4*k + r
            if k == 0:
                a(f"v_lshlrev_b32 v{acc+2*r}, 16, v{src}"); a(f"v_and_b32 v{acc+2*r+1}, 0xffff0000, v{src}")
            else:
                t = 8 + 2*(r & 1) + 2
                a(f"v_lshlrev_b32 v{t}, 16, v{src}"); a(f"v_and_b32 v{t+1}, 0xffff0000, v{src}")
                a(f"v_pk_add_f32 {vr(acc+2*r,2)}, {vr(acc+2*r,2)}, {vr(t,2)}")
    for r in range(4):
        a(f"v_cvt_pk_bf16_f32 v{12+r}, v{acc+2*r}, v{acc+2*r+1}")
    a("v_permlane16_swap_b32 v12, v14")
    a("v_permlane16_swap_b32 v13, v15")
    a(f"buffer_store_dwordx4 v[12:15], v7, {srd(SRD_OUT)}, s{sOUT} offen")
    if cfg.stamps:
        a("s_waitcnt vmcnt(0)")
        a.label("L_nogather")
        stamp(a, 53)
        a("s_memtime s[74:75]"); a("s_waitcnt lgkmcnt(0)"); a("v_writelane_b32 v61, s74, 61")
        stamp_store(a)
    if cfg.mini:
        a.label("L_mini")
        a("s_memrealtime s[72:73]"); a("s_waitcnt vmcnt(0) lgkmcnt(0)")
        a("s_memrealtime s[72:73]"); a("s_waitcnt lgkmcnt(0)")
        a("v_mov_b32 v61, 0"); a("v_writelane_b32 v61, s90, 62"); a("v_writelane_b32 v61, s72, 53")
        stamp_store(a)
    a.label("L_end")
    a("s_endpgm")

def build():
    a = Asm()
    if cfg.mini:
        a("s_memrealtime s[90:91]")
    if cfg.stamps:
        a("s_memrealtime s[72:73]"); a("s_memtime s[74:75]"); a("s_waitcnt lgkmcnt(0)")
        a("v_writelane_b32 v61, s72, 62"); a("v_writelane_b32 v61, s74, 60")
    emit_prologue(a)
    cnt = {"n": 0}
    def bar():
        a("s_barrier")
        if cfg.stamps: stamp(a, cnt["n"])
        cnt["n"] += 1
    A = Role(a)
    if cfg.prioA: a(f"s_setprio {cfg.prioA}")
    a_setup(A)
    if cfg.pf_first: a_pf(A, "wq")
    bar()
    if not cfg.pf_first: a_pf(A, "wq")
    a_setup2(A)
    bar()
    a0_flag_zero(A)
    for kap in range(4): wq_dma(A, kap, vWqA)
    a_issue_KV(A, "K", 0)
    a_setup3(A)
    a_pair_init(A)
    A.wait_vm("w3")
    a0_flag_mark(A)
    bar()
    bar()
    a_issue_KV(A, "K", 1)
    A.wait_vm("K0")
    bar()
    a_S(A, 0)
    A.wait_vm("K1")
    bar()
    a_S(A, 1, dma=("K", 2)); A.wait_vm("K2"); bar()
    a_flag_load(A)
    a_S(A, 2, dma=("K", 3)); A.wait_vm("K3"); a_flag_check(A); bar()
    a_S(A, 3, dma=("K", 4)); A.wait_vm("K4"); bar()
    a_issue_KV(A, "K", 5)
    bar()
    a_S(A, 4)
    A.wait_vm("K5")
    bar()
    a_S(A, 5)
    bar()
    a_S(A, 6)
    if cfg.split_sm: a_softmax1(A)
    bar()
    a_S(A, 7)
    if not cfg.split_sm: a_softmax1(A)
    a_softmax2(A)
    bar()
    for n in range(8):
        dma = ("V", n+1) if (1 <= n <= 6 and not cfg.pv_all) else None
        if cfg.prio7 and n == cfg.prio7from: a(f"s_setprio {cfg.prio7}")
        a_PV(A, n, dma)
        if n == 0:
            a_alpha(A); a_pair_addr(A)
        if n % 2 == 0:
            a_rescale(A)
        else:
            a_pair_sync(A, n >> 1)
            a_xfinal(A)
        if 1 <= n < 7 and not cfg.pv_all: A.wait_vm(f"V{n+1}")
        A.wait_lg_all()
        bar()
    nA = cnt["n"]
    A.wait_vm_all()
    a("s_branch L_tail")
    a.label("L_P")
    cnt["n"] = 0
    P = Role(a)
    stamp_move(a, 39)
    if cfg.stamps: stamp(a, 55)
    if cfg.prioP: a(f"s_setprio {cfg.prioP}")
    P.vm += ["x"]*12
    if cfg.stamps: stamp(a, 56)
    bar()
    p_setup2(P)
    P.wait_vm("x"); bar()
    p_xfrags(P)
    if cfg.j0s5:
        a(f"s_lshl_b32 s{sWq5}, s{sIDX}, 12"); a(f"s_add_u32 s{sWq5}, s{sWq5}, {QB}")
        a(f"s_sub_u32 s{sT0}, s{sWq5}, s{sWp}")
        for mt in range(4): a(f"v_add_u32 v{vWqR5+mt}, s{sT0}, v{vWqR+mt}")
    bar()
    if cfg.j0s5: wq_dma(P, 4, vWqD)
    p_qcompute(P, list(range(14)), True, hooks={cfg.k1_after: bar})
    bar()
    if cfg.pkprio: a(f"s_setprio {cfg.pkprio}")
    for kap in (14, 15, 16, 17): wq_dma(P, kap, vWqD)
    bar()
    for kaps, nxt in (([14,15], [18,19]), ([16,17,18,19], [20,21,22,23]), ([20,21,22,23], [24,25,26,27]), ([24,25,26,27], [])):
        p_qcompute(P, kaps, False)
        for kap in nxt: wq_dma(P, kap, vWqD)
        bar()
    if cfg.pkprio: a("s_setprio 0")
    a(f"s_cmp_eq_u32 s{sIDX}, 3")
    a("s_cbranch_scc1 L_P3")
    base = cnt["n"]
    for wide in (True, False):
        if not wide:
            a.label("L_P3"); cnt["n"] = base
        Pw = Role(a)
        STREG[0] = 39
        stamp_move(a, 47)
        p_kv_setup(Pw, first=True)
        p_issue_KV(Pw, "K", 6)
        p_vsetup(Pw, wide)
        bar()
        p_issue_KV(Pw, "K", 7); Pw.wait_vm("K6"); bar()
        p_issue_KV(Pw, "V", 0); Pw.wait_vm("K7"); bar()
        p_issue_KV(Pw, "V", 1); p_pf_wo(Pw); p_tlb_warm(Pw); Pw.wait_vm("V0"); bar()
        Pw.wait_vm("V1")
        nb = p_oproj_phase(Pw, bar, wide)
        assert nb == 8, nb
        if cfg.stamps: stamp(a, 59)
        p_flag(Pw)
        if cfg.stamps: stamp(a, 58)
        assert cnt["n"] == nA, (cnt["n"], nA)
        stamp_move(a, 61)
        if wide: a("s_branch L_tail")
    emit_reduce(a)
    a.finalize()
    return a

HEADER = open("cdna_kernels/" + NAME + ".s.ref").read().split("; Override launch")[0]
def full_text(a):
    s = HEADER
    s += f"; @launch grid=(256,1,1) block=(512,1,1) lds={LDS_BYTES}\n"
    s += f'.amdgcn_target "amdgcn-amd-amdhsa--gfx950"\n.text\n.globl {NAME}_kernel\n.p2align 8\n.type {NAME}_kernel,@function\n{NAME}_kernel:\n'
    body = a.text()
    if cfg.icpf:
        body = body.replace("  s_endpgm\n", "  s_endpgm\nL_code_end:\n") if body.count("s_endpgm") == 1 else body + "L_code_end:\n"
        body = body.replace("CODE_BYTES", f"L_code_end-{NAME}_kernel")
    s += body
    s += f""".section .rodata,"a"
.p2align 6
.amdhsa_kernel {NAME}_kernel
  .amdhsa_next_free_vgpr 256
  .amdhsa_next_free_sgpr 102
  .amdhsa_accum_offset 256
  .amdhsa_group_segment_fixed_size 0
  .amdhsa_kernarg_size 104
  .amdhsa_user_sgpr_count 2
  .amdhsa_user_sgpr_kernarg_segment_ptr 1
  .amdhsa_system_sgpr_workgroup_id_x 1
.end_amdhsa_kernel
"""
    return s

if __name__ == "__main__":
    out = sys.argv[1] if len(sys.argv) > 1 else "cdna_kernels/" + NAME + ".s"
    for kv in sys.argv[2:]:
        k, v = kv.split("=", 1)
        cur = getattr(cfg, k)
        if isinstance(cur, bool): v = v.lower() in ("1", "true")
        elif isinstance(cur, int): v = int(v)
        setattr(cfg, k, v)
    a = build()
    open(out, "w").write(full_text(a))
    print("wrote", out, "instrs:", sum(1 for i in a.ins if i.kind not in ('none','label')), "nops inserted:", a.nops_inserted)
```

```python
import sys, math, struct
from asmlib import Asm

NAME = "concat_heads__gqa_block_cached__gqa_block_cached__near_ridge"

class Cfg:
    k_flags = "nt"
    v_flags = "nt"
    w_flags = ""
    pf = True
    pf_flags = ""
    stamps = False
    lstamps = False
    mini = False
    prioA = 0
    prioP = 0
    dq = 4
    pf_wo_at = 8
    k1_after = 9
    split_sm = True
    sleep = 0
    interleave = False
    pf_first = False
    wo_first_after = 7
    tst = False
    a_odd_prio = 2
    a_keep_from = 7
    early_x = True
    altprio = True
    pv_all = True
    latepoll = True
    pvprio = 0
    pkprio = 0
    p7prio = 0
    d14first = False
    tlbw = True
    icpf = True
    prio7 = 0
    prio7from = 7
    pkv = True
    unpack = True
    j0s5 = True
    rot = 1
    kst = False
cfg = Cfg()

KVA, KVB = 0, 32768
WB = 65536
QB = 131072
OB = 122880
XB = 135168
STAT = 159744
PFL = 161280
LDS_BYTES = 163840
PART = 43008
FLG = 16 << 20
FSTR = 8448
sWAVE, sIDX, sG, sB, sBR = 3, 4, 5, 6, 7
SRD_K, SRD_V, SRD_WQ, SRD_WO, SRD_X, SRD_OUT, SRD_WS = 8, 12, 16, 20, 24, 28, 32
sDBG = 58
sM0, sWp = 62, 63
sC = 64
sT0, sT1, sT2, sT3 = 66, 67, 68, 69
sEX = 70
sGRP, sXo = 76, 77
sCOL = 36
sJ = 44
def srd(b): return f"s[{b}:{b+3}]"
def vr(b, n=4): return f"v[{b}:{b+n-1}]"
def f32bits(x): return struct.unpack('<I', struct.pack('<f', x))[0]
vL, vQ, vGq = 44, 46, 47

class Role:
    def __init__(self, a): self.a = a; self.vm = []; self.lg = []
    def vmem(self, text, tag): self.a(text); self.vm.append(tag)
    def lds(self, text, tag): self.a(text); self.lg.append(tag)
    def wait_vm(self, tag):
        idx = [i for i, t in enumerate(self.vm) if t == tag]
        if not idx: return
        n = len(self.vm) - 1 - idx[-1]
        assert n <= 63
        self.a(f"s_waitcnt vmcnt({n})"); self.vm = self.vm[idx[-1]+1:]
    def wait_lg(self, tag):
        idx = [i for i, t in enumerate(self.lg) if t == tag]
        if not idx: return
        n = len(self.lg) - 1 - idx[-1]
        assert n <= 15, n
        self.a(f"s_waitcnt lgkmcnt({n})"); self.lg = self.lg[idx[-1]+1:]
    def wait_vm_all(self): self.a("s_waitcnt vmcnt(0)"); self.vm = []
    def wait_lg_all(self): self.a("s_waitcnt lgkmcnt(0)"); self.lg = []
    def lds_guard(self, n_new):
        if len(self.lg) + n_new > 15:
            keep = 15 - n_new
            self.a(f"s_waitcnt lgkmcnt({keep})"); self.lg = self.lg[len(self.lg)-keep:] if keep else []

STREG = [61]
PEND = []
def stamp(a, idx):
    a("s_memrealtime s[72:73]")
    a("s_waitcnt lgkmcnt(0)")
    a(f"v_writelane_b32 v{STREG[0]}, s72, {idx}")
    for (sp, i2) in PEND: a(f"v_writelane_b32 v{STREG[0]}, s{sp}, {i2}")
    PEND.clear()
def lstamp(a, idx):
    if not cfg.lstamps: return
    sp = 78 + 2*len(PEND)
    assert sp <= 98
    a(f"s_memrealtime s[{sp}:{sp+1}]")
    PEND.append((sp, idx))
def stamp_move(a, new):
    if cfg.stamps: a(f"v_mov_b32 v{new}, v{STREG[0]}")
    STREG[0] = new
def stamp_store(a):
    a(f"s_lshl_b32 s{sT0}, s2, 3"); a(f"s_add_u32 s{sT0}, s{sT0}, s{sWAVE}"); a(f"s_lshl_b32 s{sT0}, s{sT0}, 8")
    a("v_mbcnt_lo_u32_b32 v60, -1, 0"); a("v_mbcnt_hi_u32_b32 v60, -1, v60")
    a(f"v_lshlrev_b32 v60, 2, v60"); a(f"v_add_u32 v60, s{sT0}, v60")
    a("s_add_u32 s74, s60, 0x2000000"); a("s_addc_u32 s75, s61, 0")
    a("global_store_dword v60, v61, s[74:75]")
    a("s_waitcnt vmcnt(0)")

def emit_prologue(a):
    a("s_cmp_ge_u32 s2, 256")
    a("s_cbranch_scc1 L_end")
    a("s_load_dwordx16 s[36:51], s[0:1], 0")
    a("s_load_dwordx4 s[52:55], s[0:1], 64")
    a("s_load_dwordx4 s[56:59], s[0:1], 80")
    a("s_load_dwordx2 s[60:61], s[0:1], 96")
    a("v_and_b32 v44, 63, v0")
    a("v_lshrrev_b32 v45, 6, v0")
    a("v_and_b32 v46, 15, v44")
    a("v_lshrrev_b32 v47, 4, v44")
    a(f"v_readfirstlane_b32 s{sWAVE}, v45")
    a(f"s_bfe_u32 s{sBR}, s2, 0x10002")
    a(f"s_and_b32 s{sG}, s2, 3"); a(f"s_lshl_b32 s{sG}, s{sG}, 1")
    a(f"s_bfe_u32 s{sT0}, s2, 0x10003"); a(f"s_or_b32 s{sG}, s{sG}, s{sT0}")
    a(f"s_lshr_b32 s{sB}, s2, 4")
    a(f"s_and_b32 s{sIDX}, s{sWAVE}, 3")
    a(f"s_lshl_b32 s{sGRP}, s{sBR}, 4"); a(f"s_add_u32 s{sGRP}, s{sGRP}, s{sB}")
    a(f"s_mov_b32 s{sC}, 0x{f32bits(math.log2(math.e)/16.0):08x}"); a(f"s_mov_b32 s{sC+1}, s{sC}")
    a_code_prefetch(Role(a))
    p_setup_pre(a)
    a("s_waitcnt lgkmcnt(0)")
    if cfg.stamps: stamp(a, 54)
    a(f"s_cmp_eq_u32 s{sBR}, 0")
    a("s_cselect_b64 s[36:37], s[36:37], s[46:47]")
    def mk(srdb, ptr, off_s, size):
        if off_s is None:
            a(f"s_mov_b32 s{srdb}, s{ptr}"); a(f"s_and_b32 s{srdb+1}, s{ptr+1}, 0xffff")
        else:
            a(f"s_add_u32 s{srdb}, s{ptr}, s{off_s}")
            a(f"s_addc_u32 s{srdb+1}, s{ptr+1}, 0")
            a(f"s_and_b32 s{srdb+1}, s{srdb+1}, 0xffff")
        if isinstance(size, int): a(f"s_mov_b32 s{srdb+2}, {size}")
        else: a(size)
        a(f"s_mov_b32 s{srdb+3}, 0x20000")
    a(f"s_mul_i32 s{sT1}, s{sB}, 43008")
    mk(SRD_X, 36, sT1, 43008)
    a(f"s_cmp_lt_u32 s{sWAVE}, 4"); a("s_cbranch_scc1 L_nox")
    PX = Role(a); p_setup(PX)
    a.label("L_nox")
    a(f"s_cmp_eq_u32 s{sBR}, 0")
    for i in range(1, 5):
        a(f"s_cselect_b64 s[{36+2*i}:{37+2*i}], s[{36+2*i}:{37+2*i}], s[{46+2*i}:{47+2*i}]")
    a(f"s_lshl_b32 s{sT1}, s{sG}, 10")
    mk(SRD_WQ, 42, sT1, f"s_sub_u32 s{SRD_WQ+2}, {448*8192}, s{sT1}")
    a(f"s_lshl_b32 s{sT0}, s{sB}, 3"); a(f"s_add_u32 s{sT0}, s{sT0}, s{sG}"); a(f"s_lshl_b32 s{sT0}, s{sT0}, 18")
    mk(SRD_K, 38, sT0, 262144)
    mk(SRD_V, 40, sT0, 262144)
    a(f"s_mul_i32 s{sT1}, s{sG}, 458752")
    mk(SRD_WO, 44, sT1, 458752)
    mk(SRD_OUT, 56, None, 16*48*896*2)
    mk(SRD_WS, 60, None, FLG + 32*FSTR)
    if cfg.rot == 0:
        for j in range(4):
            a(f"s_movk_i32 s{sCOL+j}, {128*j}"); a(f"s_mov_b32 s{sCOL+4+j}, {64*j*896}")
        a(f"s_lshr_b32 s{sT2}, s{sIDX}, 1"); a(f"s_lshl_b32 s{sJ}, s{sT2}, 7"); a(f"s_add_u32 s{sJ+1}, s{sJ}, 256")
    else:
        if cfg.rot == 0: a(f"s_mov_b32 s{sT0}, 0")
        elif cfg.rot == 1: a(f"s_and_b32 s{sT0}, s{sB}, 3")
        elif cfg.rot == 2: a(f"s_add_u32 s{sT0}, s{sB}, s{sG}"); a(f"s_and_b32 s{sT0}, s{sT0}, 3")
        elif cfg.rot == 3: a(f"s_and_b32 s{sT0}, s{sB}, 1"); a(f"s_lshl_b32 s{sT0}, s{sT0}, 1")
        for j in range(4):
            a(f"s_add_u32 s{sT1}, s{sT0}, {j}"); a(f"s_and_b32 s{sT1}, s{sT1}, 3")
            a(f"s_lshl_b32 s{sCOL+j}, s{sT1}, 7"); a(f"s_mul_i32 s{sCOL+4+j}, s{sT1}, {64*896}")
        a(f"s_lshr_b32 s{sT2}, s{sIDX}, 1")
        for J in range(2):
            a(f"s_add_u32 s{sT1}, s{sT0}, s{sT2}"); a(f"s_add_u32 s{sT1}, s{sT1}, {2*J}"); a(f"s_and_b32 s{sT1}, s{sT1}, 3")
            a(f"s_lshl_b32 s{sJ+J}, s{sT1}, 7")
    a(f"s_cmp_ge_u32 s{sWAVE}, 4")
    a("s_cbranch_scc1 L_P")

def wq_dma_pattern(a, dst, l, g, t0, t1):
    a(f"v_lshrrev_b32 v{t0}, 3, v{l}"); a(f"v_lshlrev_b32 v{t0}, 13, v{t0}")
    a(f"v_bfe_u32 v{t1}, v{l}, 1, 2"); a(f"v_xor_b32 v{t1}, v{t1}, v{g}")
    a(f"v_lshl_add_u32 v{t0}, v{t1}, 5, v{t0}")
    a(f"v_and_b32 v{t1}, 1, v{l}"); a(f"v_lshl_add_u32 v{t0}, v{t1}, 4, v{t0}")
    a(f"s_and_b32 s{sT0}, s{sIDX}, 1"); a(f"s_lshl_b32 s{sT0}, s{sT0}, 9")
    a(f"v_add_u32 v{dst}, s{sT0}, v{t0}")

NSLOT_Q = 4
def wq_slot(kap):
    if cfg.j0s5 and kap < 14:
        sl = kap % 5
        return ('q', 0) if sl == 4 else ('own', sl*4096)
    return ('own', (kap % NSLOT_Q)*4096)
sWq5 = 47
def wq_dma(R, kap, vpat, ii_list=range(4)):
    a = R.a
    J, s = divmod(kap, 14)
    area, off = wq_slot(kap)
    for ii in ii_list:
        a(f"s_add_u32 m0, s{sWp if area == 'own' else sWq5}, {off + 1024*ii}")
        a(f"s_add_u32 s{sT1}, s{sJ+J}, {(32*s + 8*ii)*8192}")
        R.vmem(f"buffer_load_dwordx4 v{vpat}, {srd(SRD_WQ)}, s{sT1} offen {cfg.w_flags} lds", f"w{kap}")

def S_(t, nt): return 64 + (t*3 + nt)*4
def Qf(s, nt): return (s*3 + nt)*4
KF = 24
vKdE, vKdO, vVd, vWqA = 48, 49, 50, 51

def a_code_prefetch(R):
    a = R.a
    if not cfg.icpf: return
    a(f"s_cmp_lg_u32 s{sWAVE}, 3"); a("s_cbranch_scc1 L_icpf_skip")
    a("s_getpc_b64 s[72:73]")
    a.label("L_icpf_pc")
    a(f"s_sub_u32 s72, s72, L_icpf_pc-{NAME}_kernel"); a("s_subb_u32 s73, s73, 0")
    a(f"s_lshr_b32 s{sT0}, s2, 3"); a(f"s_lshl_b32 s{sT0}, s{sT0}, 11")
    a(f"v_lshlrev_b32 v58, 7, v{vL}"); a(f"v_add_u32 v58, s{sT0}, v58")
    a(f"s_mov_b64 s[{sEX}:{sEX+1}], exec"); a("s_mov_b64 exec, 0xffff")
    a("v_cmp_gt_u32 vcc, CODE_BYTES, v58")
    a("s_and_b64 exec, exec, vcc")
    a("s_cbranch_execz L_icpf_rest")
    a("global_load_dword v60, v58, s[72:73]")
    a.label("L_icpf_rest")
    a(f"s_mov_b64 exec, s[{sEX}:{sEX+1}]")
    a.label("L_icpf_skip")

def a_setup(R):
    a = R.a
    a(f"s_lshl_b32 s{sM0}, s{sIDX}, 13")
    a(f"s_lshl_b32 s{sWp}, s{sIDX}, 14"); a(f"s_add_u32 s{sWp}, s{sWp}, {WB}")
    if cfg.pf:
        a(f"v_lshrrev_b32 v52, 3, v{vL}"); a("v_lshlrev_b32 v52, 13, v52")
        a(f"v_and_b32 v53, 7, v{vL}"); a("v_lshl_add_u32 v56, v53, 7, v52")
        a(f"s_mul_i32 s{sT2}, s{sB}, 28"); a(f"s_lshl_b32 s{sT3}, s{sIDX}, 3"); a(f"s_add_u32 s{sT2}, s{sT2}, s{sT3}")
        a(f"s_lshl_b32 s{sT2}, s{sT2}, 13")

def a_pf(R, which):
    a = R.a
    if not cfg.pf: return
    if which == "wq":
        a(f"s_cmp_eq_u32 s{sIDX}, 3"); a("s_cselect_b32 exec_hi, 0, -1")
        R.vmem(f"buffer_load_dword v63, v56, {srd(SRD_WQ)}, s{sT2} offen {cfg.pf_flags}", "pf")
        a("s_mov_b32 exec_hi, -1")
    else:
        a(f"v_lshlrev_b32 v58, 7, v{vL}")
        a(f"s_mul_i32 s{sT2}, s{sB}, 28672"); a(f"s_lshl_b32 s{sT3}, s{sIDX}, 13"); a(f"s_add_u32 s{sT2}, s{sT2}, s{sT3}")
        R.vmem(f"buffer_load_dword v62, v58, {srd(SRD_WO)}, s{sT2} offen {cfg.pf_flags}", "pf")

def a_setup2(R):
    a = R.a
    wq_dma_pattern(a, vWqA, vL, vGq, 52, 53)
    a(f"v_lshrrev_b32 v52, 3, v{vL}"); a("v_lshlrev_b32 v52, 9, v52")
    a(f"s_lshl_b32 s{sT1}, s{sIDX}, 15"); a(f"v_add_u32 v52, s{sT1}, v52")
    a(f"v_and_b32 v53, 7, v{vL}"); a(f"v_xor_b32 v54, v53, v{vGq}")
    a(f"v_lshl_add_u32 v{vKdE}, v54, 4, v52")
    a("v_xor_b32 v54, 4, v54"); a(f"v_lshl_add_u32 v{vKdO}, v54, 4, v52")
    a("v_lshrrev_b32 v54, 1, v53"); a(f"v_xor_b32 v54, v54, v{vGq}")
    a("v_lshl_add_u32 v54, v54, 5, v52")
    a(f"v_and_b32 v55, 1, v{vL}"); a(f"v_lshl_add_u32 v{vVd}, v55, 4, v54")

def a_setup3(R):
    a = R.a
    a(f"s_lshr_b32 s{sT0}, s{sIDX}, 1")
    a(f"s_and_b32 s{sT1}, s{sIDX}, 1")
    a(f"v_lshrrev_b32 v52, 1, v{vQ}")
    a(f"v_xor_b32 v53, v{vGq}, v52")
    a(f"v_xor_b32 v54, 4, v53")
    a(f"s_lshl_b32 s{sT2}, s{sT1}, 14")
    a(f"v_lshlrev_b32 v55, 7, v{vQ}")
    a(f"v_add_u32 v55, s{sT2}, v55")
    a(f"v_lshl_add_u32 v40, v53, 4, v55")
    a(f"v_lshl_add_u32 v41, v54, 4, v55")
    a(f"s_mul_i32 s{sT2}, s{sT0}, {48*128}")
    a(f"s_add_u32 s{sT2}, s{sT2}, {QB}")
    a(f"v_lshlrev_b32 v55, 7, v{vQ}")
    a(f"v_add_u32 v55, s{sT2}, v55")
    a(f"v_lshl_add_u32 v42, v53, 4, v55")
    a(f"v_lshl_add_u32 v43, v54, 4, v55")

def a_pair_init(R):
    a = R.a
    a(f"s_lshl_b32 s{sT0}, s{sIDX}, 4"); a(f"s_add_u32 s{sT0}, s{sT0}, {PFL}")
    a(f"v_mov_b32 v55, s{sT0}"); a("v_mov_b32 v56, 0")
    R.lds("ds_write_b32 v55, v56", "pf0")
    R.wait_lg_all()

def a_pair_addr(R):
    a = R.a
    a(f"s_lshl_b32 s{sT0}, s{sIDX}, 4"); a(f"s_add_u32 s{sT0}, s{sT0}, {PFL}")
    a(f"v_mov_b32 v55, s{sT0}"); a(f"s_xor_b32 s{sT0}, s{sT0}, 16"); a(f"v_mov_b32 v56, s{sT0}")

def a_pair_sync(R, j):
    a = R.a
    R.wait_lg_all()
    if not cfg.early_x:
        a(f"v_mov_b32 v57, {j+1}")
        a("ds_write_b32 v55, v57")
    a.label(f"L_ps{j}")
    a("ds_read_b32 v57, v56")
    a("s_waitcnt lgkmcnt(0)")
    a(f"v_readfirstlane_b32 s{sT0}, v57")
    a(f"s_cmp_lt_u32 s{sT0}, {j+1}")
    a(f"s_cbranch_scc1 L_ps{j}")

def kv_dma(R, kind, n, ii):
    a = R.a
    j, w = n >> 1, n & 1
    buf = KVA if w == 0 else KVB
    a(f"s_add_u32 m0, s{sM0}, {buf + 1024*ii}")
    a(f"s_add_u32 s{sT1}, s{sCOL+j}, {131072*w + 4096*ii}")
    if kind == "K":
        R.vmem(f"buffer_load_dwordx4 v{vKdE + (ii & 1)}, {srd(SRD_K)}, s{sT1} offen {cfg.k_flags} lds", f"K{n}")
    else:
        R.vmem(f"buffer_load_dwordx4 v{vVd}, {srd(SRD_V)}, s{sT1} offen {cfg.v_flags} lds", f"V{n}")
def a_issue_KV(R, kind, n):
    R.a.comment(f"---- issue {kind} window {n}")
    for ii in range(8): kv_dma(R, kind, n, ii)

def a0_flag_zero(R):
    a = R.a
    a(f"s_or_b32 s{sT0}, s{sG}, s{sIDX}"); a(f"s_cmp_lg_u32 s{sT0}, 0"); a("s_cbranch_scc1 L_fz_skip")
    a(f"s_mul_i32 s{sT0}, s{sGRP}, {FSTR}"); a(f"s_add_u32 s{sT0}, s{sT0}, {FLG}")
    a(f"v_lshlrev_b32 v58, 2, v{vL}"); a("v_mov_b32 v59, 0")
    a(f"s_mov_b64 s[{sEX}:{sEX+1}], exec"); a("s_mov_b32 exec_hi, 0")
    a(f"buffer_store_dword v59, v58, {srd(SRD_WS)}, s{sT0} offen sc0 sc1")
    a(f"s_mov_b64 exec, s[{sEX}:{sEX+1}]")
    a.label("L_fz_skip")

def a0_flag_mark(R):
    a = R.a
    a(f"s_or_b32 s{sT0}, s{sG}, s{sIDX}"); a(f"s_cmp_lg_u32 s{sT0}, 0"); a("s_cbranch_scc1 L_fm_skip")
    a(f"s_lshl_b32 s{sT0}, s{sGRP}, 2"); a(f"v_mov_b32 v58, s{sT0}"); a("v_mov_b32 v59, 1")
    a(f"s_mov_b64 s[{sEX}:{sEX+1}], exec"); a("s_mov_b64 exec, 1")
    a(f"global_store_dword v58, v59, s[{sDBG}:{sDBG+1}] sc0 sc1")
    a(f"s_mov_b64 exec, s[{sEX}:{sEX+1}]")
    a.label("L_fm_skip")

def a_flag_load(R):
    a = R.a
    a(f"s_lshl_b32 s{sT0}, s{sGRP}, 2"); a(f"v_mov_b32 v58, s{sT0}")
    R.vmem(f"global_load_dword v59, v58, s[{sDBG}:{sDBG+1}] sc0 sc1", "chk")
def a_flag_check(R):
    a = R.a
    R.wait_vm("chk")
    a(f"s_mov_b32 s{sT2}, 0")
    a.label("L_fc_poll")
    a(f"v_readfirstlane_b32 s{sT1}, v59")
    a(f"s_cmp_eq_u32 s{sT1}, 1"); a("s_cbranch_scc1 L_fc_skip")
    a(f"s_add_u32 s{sT2}, s{sT2}, 1"); a(f"s_cmp_ge_u32 s{sT2}, 400000"); a("s_cbranch_scc1 L_fc_skip")
    a("s_sleep 2")
    a(f"global_load_dword v59, v58, s[{sDBG}:{sDBG+1}] sc0 sc1")
    a("s_waitcnt vmcnt(0)")
    a("s_branch L_fc_poll")
    a.label("L_fc_skip")

T1, T2 = WB, WB + 32768
def a_S(R, n, dma=None):
    a = R.a
    j, w = n >> 1, n & 1
    buf = KVA if w == 0 else KVB
    if n >= 6:
        if n == 6:
            for s2 in range(2): a(f"v_add_u32 v{40+s2}, {T1}, v{40+s2}")
        buf = 0 if n == 6 else 32768
    if w == 0:
        for s in range(2):
            for nt in range(3):
                R.lds(f"ds_read_b128 {vr(Qf(s,nt))}, v{42+s} offset:{12288*(j & 1) + 2048*nt}", "q")
    frs = [(i, s) for i in range(8) for s in range(2)]
    NB = 4
    def rd(k):
        i, s = frs[k]
        R.lds(f"ds_read_b128 {vr(KF + 4*(k % NB))}, v{40+s} offset:{buf + 2048*i}", f"kf{k}")
    for k in range(NB-1): rd(k)
    if dma and not cfg.interleave:
        for ii in range(8): kv_dma(R, dma[0], dma[1], ii)
        dma = None
    for k, (i, s) in enumerate(frs):
        if k + NB - 1 < len(frs): rd(k + NB - 1)
        if dma and k < 8: kv_dma(R, dma[0], dma[1], k)
        R.wait_lg(f"kf{k}")
        for nt in range(3):
            d = S_(8*w + i, nt)
            c = "0" if (j == 0 and s == 0) else vr(d)
            a(f"v_mfma_f32_16x16x32_bf16 {vr(d)}, {vr(KF + 4*(k % NB))}, {vr(Qf(s,nt))}, {c}")

M1 = (52, 54, 56)
L1 = (53, 55, 57)
BETA = (0, 2, 4); ALO = (6, 8, 10); ALP = (12, 14, 16)
ONES1, ONES2 = 36, 20
def Pf(w, s, nt): return S_(8*w + 2*s, nt)
def Oa(mt, nt): return S_(2*mt + 1, nt)
def XT(i, nt): return S_(9 + 2*i, nt)

def _rowmax(a, tiles, dst, tmp):
    for nt in range(3):
        m = dst[nt]
        vals = [S_(t, nt) + r for t in tiles for r in range(4)]
        a(f"v_max3_f32 v{m}, v{vals[0]}, v{vals[1]}, v{vals[2]}")
        a(f"v_max3_f32 v{tmp}, v{vals[3]}, v{vals[4]}, v{vals[5]}")
        k = 6
        while k + 3 < len(vals):
            a(f"v_max3_f32 v{m}, v{m}, v{vals[k]}, v{vals[k+1]}")
            a(f"v_max3_f32 v{tmp}, v{tmp}, v{vals[k+2]}, v{vals[k+3]}")
            k += 4
        rest = vals[k:]
        assert len(rest) == 2
        a(f"v_max3_f32 v{m}, v{m}, v{rest[0]}, v{rest[1]}")
        a(f"v_max_f32 v{m}, v{m}, v{tmp}")
    for nt in range(3):
        m = dst[nt]
        a(f"v_mov_b32 v{tmp+nt}, v{m}")
    for nt in range(3):
        a(f"v_permlane32_swap_b32 v{tmp+nt}, v{dst[nt]}")
    for nt in range(3):
        a(f"v_max_f32 v{dst[nt]}, v{tmp+nt}, v{dst[nt]}")
    for nt in range(3):
        a(f"v_mov_b32 v{tmp+nt}, v{dst[nt]}")
    for nt in range(3):
        a(f"v_permlane16_swap_b32 v{tmp+nt}, v{dst[nt]}")
    for nt in range(3):
        a(f"v_max_f32 v{dst[nt]}, v{tmp+nt}, v{dst[nt]}")
        a(f"v_mul_f32 v{dst[nt]}, s{sC}, v{dst[nt]}")

def _exppack(a, t0s, mreg):
    for t0 in t0s:
        for nt in range(3):
            m = mreg[nt]
            b0, b1 = S_(t0, nt), S_(t0+1, nt)
            for b in (b0, b0+2, b1, b1+2):
                a(f"v_pk_fma_f32 {vr(b,2)}, {vr(b,2)}, s[{sC}:{sC+1}], {vr(m,2)} op_sel_hi:[1,1,0] neg_lo:[0,0,1] neg_hi:[0,0,1]")
            src = [b0+r for r in range(4)] + [b1+r for r in range(4)]
            for v in src: a(f"v_exp_f32 v{v}, v{v}")
            a(f"v_cvt_pk_bf16_f32 v{b0}, v{src[0]}, v{src[1]}")
            a(f"v_cvt_pk_bf16_f32 v{b0+1}, v{src[2]}, v{src[3]}")
            a(f"v_cvt_pk_bf16_f32 v{b0+2}, v{src[4]}, v{src[5]}")
            a(f"v_cvt_pk_bf16_f32 v{b0+3}, v{src[6]}, v{src[7]}")

def _rowsum(a, w, ones, acc):
    for r in range(4): a(f"v_mov_b32 v{ones+r}, 0x3f803f80")
    for s in range(4):
        for nt in range(3):
            c = "0" if s == 0 else vr(acc(nt))
            a(f"v_mfma_f32_16x16x32_bf16 {vr(acc(nt))}, {vr(ones)}, {vr(Pf(w,s,nt))}, {c}")

def a_softmax1(R):
    a = R.a
    _rowmax(a, range(0, 8), M1, 24)
    _exppack(a, (0, 2, 4, 6), M1)
    _rowsum(a, 0, ONES1, lambda nt: S_(1, nt))
    for nt in range(3): a(f"v_mov_b32 v{L1[nt]}, v{S_(1,nt)}")

def a_softmax2(R):
    a = R.a
    M2 = (24, 26, 28)
    _rowmax(a, range(8, 16), M2, 30)
    for nt in range(3):
        a(f"v_max_f32 v{M2[nt]}, v{M2[nt]}, v{M1[nt]}")
        a(f"v_sub_f32 v{BETA[nt]}, v{M1[nt]}, v{M2[nt]}")
    for nt in range(3): a(f"v_exp_f32 v{BETA[nt]}, v{BETA[nt]}")
    _exppack(a, (8, 10, 12, 14), M2)
    _rowsum(a, 1, ONES2, lambda nt: S_(13, nt))
    a_vaddr(R)
    for nt in range(3):
        a(f"v_fma_f32 v{M2[nt]+1}, v{BETA[nt]}, v{L1[nt]}, v{S_(13,nt)}")
    for nt in range(3):
        R.lds(f"ds_write_b64 v59, {vr(M2[nt],2)} offset:{128*nt}", "st")
    for nt in range(3):
        a(f"v_mov_b32 v{18+2*nt}, v{M2[nt]}"); a(f"v_mov_b32 v{19+2*nt}, v{M2[nt]+1}")
    R.wait_lg_all()

vXW, vXR, vOW = 52, 53, 54
def a_vaddr(R):
    a = R.a
    a(f"s_and_b32 s{sT1}, s{sIDX}, 1")
    a(f"v_lshrrev_b32 v32, 2, v{vL}")
    a(f"v_lshrrev_b32 v33, 1, v32"); a("v_and_b32 v33, 3, v33")
    a(f"s_lshl_b32 s{sT2}, s{sT1}, 14")
    a(f"v_lshlrev_b32 v34, 7, v32"); a(f"v_add_u32 v34, s{sT2}, v34")
    a(f"v_and_b32 v35, 3, v{vL}"); a(f"v_lshl_add_u32 v34, v35, 3, v34")
    a(f"s_lshl_b32 s{sT2}, s{sT1}, 1")
    a(f"v_xor_b32 v33, s{sT2}, v33")
    for mt in range(4):
        a(f"v_xor_b32 v35, {mt}, v33")
        a(f"v_lshl_add_u32 v{40+mt}, v35, 5, v34")
    a(f"s_mul_i32 s{sT0}, s{sIDX}, 384"); a(f"s_add_u32 s{sT0}, s{sT0}, {STAT}")
    a(f"v_lshlrev_b32 v59, 3, v{vQ}"); a(f"v_add_u32 v59, s{sT0}, v59")
    a(f"s_xor_b32 s{sT1}, s{sIDX}, 1"); a(f"s_mul_i32 s{sT1}, s{sT1}, 384"); a(f"s_add_u32 s{sT1}, s{sT1}, {STAT}")
    a(f"v_lshlrev_b32 v60, 3, v{vQ}"); a(f"v_add_u32 v60, s{sT1}, v60")

def a_alpha(R):
    a = R.a
    M2 = (18, 20, 22)
    for nt in range(3):
        R.lds(f"ds_read_b64 v[{32+2*nt}:{33+2*nt}], v60 offset:{128*nt}", "st")
    a(f"s_mul_i32 s{sT2}, s{sIDX}, 6144"); a(f"s_add_u32 s{sT2}, s{sT2}, {XB}")
    a(f"v_lshlrev_b32 v55, 4, v{vL}"); a(f"v_add_u32 v{vXW}, s{sT2}, v55")
    a(f"s_xor_b32 s{sT2}, s{sIDX}, 1"); a(f"s_mul_i32 s{sT2}, s{sT2}, 6144"); a(f"s_add_u32 s{sT2}, s{sT2}, {XB}")
    a(f"v_add_u32 v{vXR}, s{sT2}, v55")
    a(f"s_and_b32 s{sT1}, s{sIDX}, 1")
    a(f"s_lshr_b32 s{sT0}, s{sIDX}, 1"); a(f"s_mul_i32 s{sT2}, s{sT0}, {48*128}"); a(f"s_add_u32 s{sT2}, s{sT2}, {OB}")
    a(f"v_lshlrev_b32 v{vOW}, 7, v{vQ}"); a(f"v_add_u32 v{vOW}, s{sT2}, v{vOW}")
    a(f"s_lshl_b32 s{sT3}, s{sT1}, 2")
    a(f"v_or_b32 v55, s{sT3}, v{vGq}")
    a(f"v_lshrrev_b32 v56, 1, v{vQ}"); a("v_xor_b32 v55, v55, v56")
    a(f"v_lshl_add_u32 v{vOW}, v55, 4, v{vOW}")
    R.wait_lg_all()
    for nt in range(3):
        mo, lo = 32 + 2*nt, 33 + 2*nt
        m, l = M2[nt], M2[nt] + 1
        a(f"v_max_f32 v38, v{m}, v{mo}")
        a(f"v_sub_f32 v{ALO[nt]}, v{m}, v38"); a(f"v_sub_f32 v{ALP[nt]}, v{mo}, v38")
        a(f"v_exp_f32 v{ALO[nt]}, v{ALO[nt]}"); a(f"v_exp_f32 v{ALP[nt]}, v{ALP[nt]}")
        a(f"v_mul_f32 v38, v{l}, v{ALO[nt]}")
        a(f"v_fma_f32 v38, v{lo}, v{ALP[nt]}, v38")
        a("v_rcp_f32 v38, v38")
        a(f"v_mul_f32 v{ALO[nt]}, v{ALO[nt]}, v38"); a(f"v_mul_f32 v{ALP[nt]}, v{ALP[nt]}, v38")

def a_PV(R, n, dma=None):
    a = R.a
    j, w = n >> 1, n & 1
    buf = KVA if w == 0 else KVB
    frs = [(s, mt) for s in range(4) for mt in range(4)]
    if w == 1 and cfg.early_x:
        frs = [(s, mt) for s in range(4) for mt in (2, 3)] + [(s, mt) for s in range(4) for mt in (0, 1)]
    elif w == 1: frs = frs[:12] + [(3, 2), (3, 3), (3, 0), (3, 1)]
    NB = 4
    def rd(k):
        s, mt = frs[k]
        b = KF + 4*(k % NB)
        R.lds(f"ds_read_b64_tr_b16 {vr(b,2)}, v{40+mt} offset:{buf + 4096*s}", f"vf{k}")
        R.lds(f"ds_read_b64_tr_b16 {vr(b+2,2)}, v{40+mt} offset:{buf + 4096*s + 2048}", f"vf{k}")
    for k in range(NB-1): rd(k)
    if dma and not cfg.interleave:
        for ii in range(8): kv_dma(R, dma[0], dma[1], ii)
        dma = None
    for k, (s, mt) in enumerate(frs):
        if k + NB - 1 < len(frs): rd(k + NB - 1)
        if dma and k < 8: kv_dma(R, dma[0], dma[1], k)
        R.wait_lg(f"vf{k}")
        for nt in range(3):
            d = Oa(mt, nt)
            c = "0" if (w == 0 and s == 0) else vr(d)
            a(f"v_mfma_f32_16x16x32_bf16 {vr(d)}, {vr(KF + 4*(k % NB))}, {vr(Pf(w,s,nt))}, {c}")
        if w == 1 and cfg.early_x and k in (8, 9):
            m2 = k - 6
            for nt in range(3):
                R.lds(f"ds_write_b128 v{vXW}, {vr(Oa(m2,nt))} offset:{((m2-2)*3+nt)*1024}", "xw")
            if k == 9:
                a(f"v_mov_b32 v57, {j+1}")
                R.lds("ds_write_b32 v55, v57", "xw")
        if w == 1 and not cfg.early_x and k >= 14:
            m2 = k - 12
            for nt in range(3):
                R.lds(f"ds_write_b128 v{vXW}, {vr(Oa(m2,nt))} offset:{((m2-2)*3+nt)*1024}", "xw")

def a_rescale(R):
    a = R.a
    for mt in range(4):
        for nt in range(3):
            if cfg.unpack:
                for r in range(4): a(f"v_mul_f32 v{Oa(mt,nt)+r}, v{BETA[nt]}, v{Oa(mt,nt)+r}")
                continue
            for h2 in (0, 2):
                b = Oa(mt, nt) + h2
                a(f"v_pk_mul_f32 {vr(b,2)}, {vr(b,2)}, {vr(BETA[nt],2)} op_sel_hi:[1,0]")

def a_xwrite(R):
    a = R.a
    for mt in (2, 3):
        for nt in range(3):
            R.lds(f"ds_write_b128 v{vXW}, {vr(Oa(mt,nt))} offset:{((mt-2)*3+nt)*1024}", "xw")

def a_xfinal(R, dma=None):
    a = R.a
    for nt in range(3):
        for i in range(2):
            R.lds(f"ds_read_b128 {vr(XT(i,nt))}, v{vXR} offset:{(i*3+nt)*1024}", f"xr{nt}")
    if dma:
        for ii in range(8): kv_dma(R, dma[0], dma[1], ii)
    for nt in range(3):
        for i in range(2):
            if cfg.unpack:
                for r in range(4): a(f"v_mul_f32 v{Oa(i,nt)+r}, v{ALO[nt]}, v{Oa(i,nt)+r}")
                continue
            for h2 in (0, 2):
                b = Oa(i, nt) + h2
                a(f"v_pk_mul_f32 {vr(b,2)}, {vr(b,2)}, {vr(ALO[nt],2)} op_sel_hi:[1,0]")
    for nt in range(3):
        R.wait_lg(f"xr{nt}")
        for i in range(2):
            if cfg.unpack:
                for r in range(4): a(f"v_fma_f32 v{Oa(i,nt)+r}, v{XT(i,nt)+r}, v{ALP[nt]}, v{Oa(i,nt)+r}")
                continue
            for h2 in (0, 2):
                b, x = Oa(i, nt) + h2, XT(i, nt) + h2
                a(f"v_pk_fma_f32 {vr(b,2)}, {vr(x,2)}, {vr(ALP[nt],2)}, {vr(b,2)} op_sel_hi:[1,0,1]")
        d = XT(0, nt)
        a(f"v_cvt_pk_bf16_f32 v{d}, v{Oa(0,nt)}, v{Oa(0,nt)+1}")
        a(f"v_cvt_pk_bf16_f32 v{d+1}, v{Oa(0,nt)+2}, v{Oa(0,nt)+3}")
        a(f"v_cvt_pk_bf16_f32 v{d+2}, v{Oa(1,nt)}, v{Oa(1,nt)+1}")
        a(f"v_cvt_pk_bf16_f32 v{d+3}, v{Oa(1,nt)+2}, v{Oa(1,nt)+3}")
        R.lds(f"ds_write_b128 v{vOW}, {vr(d)} offset:{2048*nt}", "ow")

PRING = 0
vWqD = 20
vWqR = 21
vQW = 25
PT = 26
vWqR5 = 35
def Xf(s, nt): return 40 + (s*3 + nt)*4
def Qa(mt, nt): return 208 + (mt*3 + nt)*4

def p_lane(a):
    a(f"v_mbcnt_lo_u32_b32 v{PT}, -1, 0"); a(f"v_mbcnt_hi_u32_b32 v{PT}, -1, v{PT}")
    a(f"v_and_b32 v{PT+1}, 15, v{PT}"); a(f"v_lshrrev_b32 v{PT+2}, 4, v{PT}")

def p_setup_pre(a):
    l, q, g = PT, PT+1, PT+2
    p = sIDX
    p_lane(a)
    a(f"s_mul_i32 s{sXo}, s{p}, 896")
    a(f"s_lshr_b32 s{sT0}, s{p}, 1")
    a(f"v_xor_b32 v{PT+3}, s{sT0}, v{l}"); a(f"v_lshlrev_b32 v{PT+3}, 4, v{PT+3}")
    for k in range(4):
        a(f"v_xor_b32 v{PT+4+k}, {(2*k) << 4}, v{PT+3}")

def p_setup(R):
    a = R.a
    a(f"s_mov_b64 s[{sEX}:{sEX+1}], exec")
    a("s_mov_b32 exec_hi, 0x00ffffff")
    for ii in range(12):
        base = (KVB + 3584*ii) if ii < 8 else (QB + 3584*(ii-8))
        a(f"s_add_u32 m0, s{sXo}, {base}")
        a(f"s_add_u32 s{sT1}, s{sXo}, {3584*ii}")
        R.vmem(f"buffer_load_dwordx4 v{PT+4 + (ii % 4)}, {srd(SRD_X)}, s{sT1} offen lds", "x")
    a(f"s_mov_b64 exec, s[{sEX}:{sEX+1}]")

def p_setup2(R):
    a = R.a
    l, q, g = PT, PT+1, PT+2
    p = sIDX
    a(f"s_lshl_b32 s{sWp}, s{p}, 14"); a(f"s_add_u32 s{sWp}, s{sWp}, {WB}")
    wq_dma_pattern(a, vWqD, l, g, PT+3, PT+4)
    a(f"v_lshrrev_b32 v{PT+3}, 2, v{l}")
    a(f"v_lshrrev_b32 v{PT+4}, 1, v{PT+3}"); a(f"v_and_b32 v{PT+4}, 3, v{PT+4}")
    a(f"v_lshlrev_b32 v{PT+5}, 7, v{PT+3}"); a(f"v_add_u32 v{PT+5}, s{sWp}, v{PT+5}")
    a(f"v_and_b32 v{PT+6}, 3, v{l}"); a(f"v_lshl_add_u32 v{PT+5}, v{PT+6}, 3, v{PT+5}")
    for mt in range(4):
        a(f"v_xor_b32 v{PT+6}, {mt}, v{PT+4}")
        a(f"v_lshl_add_u32 v{vWqR+mt}, v{PT+6}, 5, v{PT+5}")
    a(f"s_and_b32 s{sT0}, s{sIDX}, 1"); a(f"s_mul_i32 s{sT0}, s{sT0}, {48*128}")
    a(f"s_lshr_b32 s{sT1}, s{sIDX}, 1"); a(f"s_mul_i32 s{sT1}, s{sT1}, 12288")
    a(f"s_add_u32 s{sT0}, s{sT0}, s{sT1}"); a(f"s_add_u32 s{sT0}, s{sT0}, {QB}")
    a(f"v_lshlrev_b32 v{PT+5}, 7, v{q}"); a(f"v_add_u32 v{PT+5}, s{sT0}, v{PT+5}")
    a(f"v_and_b32 v{PT+6}, 1, v{g}"); a(f"v_lshl_add_u32 v{PT+5}, v{PT+6}, 3, v{PT+5}")
    a(f"v_lshrrev_b32 v{PT+6}, 1, v{g}"); a(f"v_lshrrev_b32 v{PT+3}, 1, v{q}"); a(f"v_xor_b32 v{PT+6}, v{PT+6}, v{PT+3}")
    a(f"v_lshl_add_u32 v{vQW}, v{PT+6}, 4, v{PT+5}")
    a(f"v_lshrrev_b32 v{PT+3}, 1, v{q}")
    a(f"v_lshrrev_b32 v{PT+4}, 1, v{g}"); a(f"v_xor_b32 v{PT+4}, v{PT+4}, v{PT+3}")
    a(f"s_mov_b32 s{sT0}, 896"); a(f"v_mul_lo_u32 v{PT+5}, s{sT0}, v{q}")
    a(f"v_and_b32 v{PT+6}, 1, v{g}"); a(f"v_lshl_add_u32 v{PT+5}, v{PT+6}, 3, v{PT+5}")
    a(f"v_add_u32 v{PT+5}, {KVB}, v{PT+5}")
    for k in range(4):
        a(f"v_xor_b32 v{PT+6}, {2*k}, v{PT+4}")
        a(f"v_lshl_add_u32 v{PT+7+k}, v{PT+6}, 4, v{PT+5}")

def p_xfrags(R):
    a = R.a
    for pas in range(2):
        for s in range(14):
            for nt in ((0, 1) if pas == 0 else (2,)):
                for half in range(2):
                    k = 2*(s & 1) + half
                    off = (14336*nt if pas == 0 else 0) + 128*(s >> 1)
                    R.lds_guard(1)
                    R.lds(f"ds_read_b64 {vr(Xf(s,nt)+2*half,2)}, v{PT+7+k} offset:{off}", "xf")
        if pas == 0:
            R.wait_lg_all()
            for k in range(4): a(f"v_add_u32 v{PT+7+k}, {QB-KVB}, v{PT+7+k}")
    R.wait_lg_all()

def p_qcompute(R, kaps, stream_next, hooks=None):
    a = R.a
    D = cfg.dq; NB = D + 1
    hooks = hooks or {}
    frs = [(kap, mt) for kap in kaps for mt in range(4)]
    def rd(f):
        kap, mt = frs[f]
        if mt == 0: R.wait_vm(f"w{kap}")
        b = PRING + 4*(f % NB)
        area, off = wq_slot(kap)
        ad = (vWqR if area == 'own' else vWqR5) + mt
        R.lds(f"ds_read_b64_tr_b16 {vr(b,2)}, v{ad} offset:{off}", f"f{kap}_{mt}")
        R.lds(f"ds_read_b64_tr_b16 {vr(b+2,2)}, v{ad} offset:{off + 2048}", f"f{kap}_{mt}")
    for f in range(min(D, len(frs))): rd(f)
    for f, (kap, mt) in enumerate(frs):
        J, s = divmod(kap, 14)
        if f + D < len(frs): rd(f + D)
        if stream_next and cfg.j0s5 and kap >= 1 and kap + 4 < 14: wq_dma(R, kap + 4, vWqD, [mt])
        R.wait_lg(f"f{kap}_{mt}")
        if cfg.kst and mt == 0 and kap < 14 and kap % 2 == 0: lstamp(a, 26 + kap // 2)
        for nt in range(3):
            d = Qa(mt, nt)
            c = "0" if s == 0 else vr(d)
            a(f"v_mfma_f32_16x16x32_bf16 {vr(d)}, {vr(PRING + 4*(f % NB))}, {vr(Xf(s,nt))}, {c}")
        if stream_next and not cfg.j0s5 and mt == 3 and kap + NSLOT_Q < 14: wq_dma(R, kap + NSLOT_Q, vWqD)
        if mt == 3 and kap in hooks: hooks[kap]()
    last = kaps[-1]
    if last % 14 == 13:
        if cfg.kst and last == 13: lstamp(a, 33)
        k = 0
        for m2 in range(4):
            a(f"v_xor_b32 v{PT+8}, {32*m2}, v{vQW}")
            for nt in range(3):
                d = Qa(m2, nt)
                t = PT + 2*(k % 4); k += 1
                a(f"v_cvt_pk_bf16_f32 v{t}, v{d}, v{d+1}")
                a(f"v_cvt_pk_bf16_f32 v{t+1}, v{d+2}, v{d+3}")
                R.lds_guard(1)
                R.lds(f"ds_write_b64 v{PT+8}, {vr(t,2)} offset:{2048*nt}", "qw")
        R.wait_lg("qw")

ORING = 0
vWoD = 32
vWoR = 34
vOR = 42
VT = 48
ALT = 208
PUB = [216 + 4*i for i in range(10)] + [20, 24]
def Outa(i, nt): return 64 + (i*3 + nt)*4
def Of(ks, nt): return 160 + (ks*3 + nt)*4

def p_vsetup(R, wide):
    a = R.a
    l, q, g = VT, VT+1, VT+2
    a(f"v_mbcnt_lo_u32_b32 v{l}, -1, 0"); a(f"v_mbcnt_hi_u32_b32 v{l}, -1, v{l}")
    a(f"v_and_b32 v{q}, 15, v{l}"); a(f"v_lshrrev_b32 v{g}, 4, v{l}")
    a(f"s_lshl_b32 s{sT0}, s{sIDX}, 8")
    if wide:
        a(f"v_bfe_u32 v{VT+3}, v{l}, 1, 3"); a(f"v_xor_b32 v{VT+3}, v{VT+3}, v{g}")
        a(f"s_mov_b32 s{sT1}, 896"); a(f"v_mul_lo_u32 v{VT+4}, s{sT1}, v{g}")
        a(f"v_and_b32 v{VT+5}, 1, v{l}"); a(f"v_lshl_add_u32 v{VT+4}, v{VT+5}, 4, v{VT+4}")
        a(f"v_add_u32 v{VT+4}, s{sT0}, v{VT+4}")
        a(f"v_lshl_add_u32 v{vWoD}, v{VT+3}, 5, v{VT+4}")
        a(f"v_xor_b32 v{VT+3}, 4, v{VT+3}"); a(f"v_lshl_add_u32 v{vWoD+1}, v{VT+3}, 5, v{VT+4}")
        a(f"v_lshrrev_b32 v{VT+3}, 2, v{l}"); a(f"v_and_b32 v{VT+4}, 7, v{VT+3}")
        a(f"v_lshlrev_b32 v{VT+5}, 8, v{VT+3}")
    else:
        a(f"v_lshrrev_b32 v{VT+3}, 3, v{l}"); a(f"s_mov_b32 s{sT1}, 896"); a(f"v_mul_lo_u32 v{VT+4}, s{sT1}, v{VT+3}")
        a(f"v_bfe_u32 v{VT+3}, v{l}, 1, 2"); a(f"v_xor_b32 v{VT+3}, v{VT+3}, v{g}")
        a(f"v_lshl_add_u32 v{VT+4}, v{VT+3}, 5, v{VT+4}")
        a(f"v_and_b32 v{VT+5}, 1, v{l}"); a(f"v_lshl_add_u32 v{VT+4}, v{VT+5}, 4, v{VT+4}")
        a(f"v_add_u32 v{vWoD}, s{sT0}, v{VT+4}")
        a(f"v_lshrrev_b32 v{VT+3}, 2, v{l}")
        a(f"v_lshrrev_b32 v{VT+4}, 1, v{VT+3}"); a(f"v_and_b32 v{VT+4}, 3, v{VT+4}")
        a(f"v_lshlrev_b32 v{VT+5}, 7, v{VT+3}")
    a(f"v_and_b32 v{VT+6}, 3, v{l}"); a(f"v_lshl_add_u32 v{VT+5}, v{VT+6}, 3, v{VT+5}")
    a(f"s_lshl_b32 s{sT1}, s{sIDX}, 13")
    for mt in range(8 if wide else 4):
        a(f"v_xor_b32 v{VT+6}, {mt}, v{VT+4}")
        a(f"v_lshl_add_u32 v{VT+7}, v{VT+6}, 5, v{VT+5}")
        a(f"v_add_u32 v{vWoR+mt}, s{sWp}, v{VT+7}")
        a(f"v_add_u32 v{ALT+mt}, s{sT1}, v{VT+7}")
    a(f"v_lshrrev_b32 v{VT+3}, 1, v{q}"); a(f"v_xor_b32 v{VT+3}, v{g}, v{VT+3}")
    a(f"v_lshlrev_b32 v{VT+4}, 7, v{q}"); a(f"v_add_u32 v{VT+4}, {OB}, v{VT+4}")
    a(f"v_lshl_add_u32 v{vOR}, v{VT+3}, 4, v{VT+4}")
    a(f"v_xor_b32 v{VT+3}, 4, v{VT+3}"); a(f"v_lshl_add_u32 v{vOR+1}, v{VT+3}, 4, v{VT+4}")
    a(f"s_lshl_b32 s{sM0}, s{sIDX}, 13")

def wo_slot(kap, wide):
    slot = 8192 if wide else 4096
    special = {14: ('kv', KVA), 15: ('kv', KVB)}
    if kap in special: return special[kap]
    return ('own', (kap % 2)*slot)

def wo_dma(R, kap, wide, ii_list=None):
    a = R.a
    j, ks = divmod(kap, 4); h, s = divmod(ks, 2)
    row0 = 256*h + 32*s
    area, off = wo_slot(kap, wide)
    base = sWp if area == 'own' else sM0
    for ii in (ii_list if ii_list is not None else range(8 if wide else 4)):
        a(f"s_add_u32 m0, s{base}, {off + 1024*ii}")
        rows = 4*ii if wide else 8*ii
        a(f"s_add_u32 s{sT1}, s{sCOL+4+j}, {(row0 + rows)*896}")
        pat = vWoD + ((ii & 1) if wide else 0)
        R.vmem(f"buffer_load_dwordx4 v{pat}, {srd(SRD_WO)}, s{sT1} offen {cfg.w_flags} lds", f"o{kap}")

def p_ofrags(R):
    for k2 in range(4):
        for nt in range(3):
            R.lds_guard(1)
            R.lds(f"ds_read_b128 {vr(Of(k2,nt))}, v{vOR + (k2 & 1)} offset:{6144*(k2 >> 1) + 2048*nt}", f"of{k2}")

vPK0, vPK1, vPV, vPF = 44, 45, 46, 56
def p_kv_setup(R, first=False):
    a = R.a
    l, g = VT, VT+2
    a(f"s_lshl_b32 s{sM0}, s{sIDX}, 13")
    a(f"v_mbcnt_lo_u32_b32 v{l}, -1, 0"); a(f"v_mbcnt_hi_u32_b32 v{l}, -1, v{l}"); a(f"v_lshrrev_b32 v{g}, 4, v{l}")
    a(f"v_lshrrev_b32 v{VT+3}, 3, v{l}"); a(f"v_lshlrev_b32 v{VT+3}, 9, v{VT+3}")
    a(f"s_lshl_b32 s{sT1}, s{sIDX}, 15"); a(f"v_add_u32 v{VT+3}, s{sT1}, v{VT+3}")
    a(f"v_and_b32 v{VT+4}, 7, v{l}"); a(f"v_xor_b32 v{VT+5}, v{VT+4}, v{g}")
    a(f"v_lshl_add_u32 v{vPK0}, v{VT+5}, 4, v{VT+3}")
    a(f"v_xor_b32 v{VT+5}, 4, v{VT+5}"); a(f"v_lshl_add_u32 v{vPK1}, v{VT+5}, 4, v{VT+3}")
    a(f"v_lshrrev_b32 v{VT+5}, 1, v{VT+4}"); a(f"v_xor_b32 v{VT+5}, v{VT+5}, v{g}")
    a(f"v_lshl_add_u32 v{VT+5}, v{VT+5}, 5, v{VT+3}")
    a(f"v_and_b32 v{VT+4}, 1, v{l}"); a(f"v_lshl_add_u32 v{vPV}, v{VT+4}, 4, v{VT+5}")
    a(f"v_lshlrev_b32 v{vPF}, 7, v{l}")

def p_issue_KV(R, kind, n):
    a = R.a
    j, w = n >> 1, n & 1
    buf = KVA if w == 0 else KVB
    if kind == "K" and n >= 6: buf = T1 if n == 6 else T2
    for ii in range(8):
        a(f"s_add_u32 m0, s{sM0}, {buf + 1024*ii}")
        a(f"s_add_u32 s{sT1}, s{sCOL+j}, {131072*w + 4096*ii}")
        if kind == "K": R.vmem(f"buffer_load_dwordx4 v{vPK0 + (ii & 1)}, {srd(SRD_K)}, s{sT1} offen {cfg.k_flags} lds", f"K{n}")
        else: R.vmem(f"buffer_load_dwordx4 v{vPV}, {srd(SRD_V)}, s{sT1} offen {cfg.v_flags} lds", f"V{n}")

def p_tlb_warm(R):
    a = R.a
    if not cfg.tlbw: return
    a(f"s_lshl_b32 s{sT0}, s{sB}, 4"); a(f"s_lshl_b32 s{sT1}, s{sBR}, 2"); a(f"s_add_u32 s{sT0}, s{sT0}, s{sT1}")
    a(f"s_mul_i32 s{sT0}, s{sT0}, {PART}")
    a(f"v_mov_b32 v58, s{sT0}")
    a(f"s_add_u32 s{sT1}, s{sT0}, {11*PART + PART - 4}"); a(f"v_writelane_b32 v58, s{sT1}, 1")
    a(f"s_mul_i32 s{sT1}, s2, {PART}"); a(f"v_writelane_b32 v58, s{sT1}, 2")
    a(f"s_mul_i32 s{sT1}, s{sGRP}, {FSTR}"); a(f"s_add_u32 s{sT1}, s{sT1}, {FLG}"); a(f"v_writelane_b32 v58, s{sT1}, 3")
    a(f"s_mul_i32 s{sT2}, s{sB}, {48*1792}")
    a(f"s_mov_b64 s[{sEX}:{sEX+1}], exec"); a("s_mov_b64 exec, 0xf")
    R.vmem(f"buffer_load_dword v59, v58, {srd(SRD_WS)}, 0 offen sc0 sc1", "tlb")
    a("s_mov_b64 exec, 1"); a("v_mov_b32 v60, 0")
    R.vmem(f"buffer_load_dword v59, v60, {srd(SRD_OUT)}, s{sT2} offen sc0 sc1", "tlb")
    a(f"s_mov_b64 exec, s[{sEX}:{sEX+1}]")

def p_pf_wo(R):
    a = R.a
    if not cfg.pf: return
    a(f"s_mul_i32 s{sT2}, s{sB}, 28672"); a(f"s_lshl_b32 s{sT3}, s{sIDX}, 13"); a(f"s_add_u32 s{sT2}, s{sT2}, s{sT3}")
    a(f"s_cmp_eq_u32 s{sIDX}, 3"); a("s_cselect_b32 exec_hi, 0, -1")
    R.vmem(f"buffer_load_dword v57, v{vPF}, {srd(SRD_WO)}, s{sT2} offen {cfg.pf_flags}", "pf")
    a("s_mov_b32 exec_hi, -1")

def p_of(R, k2):
    for nt in range(3):
        R.lds_guard(1)
        R.lds(f"ds_read_b128 {vr(Of(k2,nt))}, v{vOR + (k2 & 1)} offset:{6144*(k2 >> 1) + 2048*nt}", f"of{k2}")

def p_ocompute(R, kaps, wide, inter=None, ofr=False):
    a = R.a
    NT = 8 if wide else 4
    D = 4; NB = 5
    rowb = 256 if wide else 128
    inter = inter or {}
    frs = [(kap, mt) for kap in kaps for mt in range(NT)]
    def rd(f):
        kap, mt = frs[f]
        if mt == 0: R.wait_vm(f"o{kap}")
        b = ORING + 4*(f % NB)
        area, off = wo_slot(kap, wide)
        addr = (vWoR if area == 'own' else ALT) + mt
        R.lds_guard(2)
        R.lds(f"ds_read_b64_tr_b16 {vr(b,2)}, v{addr} offset:{off}", f"f{kap}_{mt}")
        R.lds(f"ds_read_b64_tr_b16 {vr(b+2,2)}, v{addr} offset:{off + 16*rowb}", f"f{kap}_{mt}")
    if ofr: p_of(R, 0)
    for f in range(D): rd(f)
    for f, (kap, mt) in enumerate(frs):
        j, ks = divmod(kap, 4)
        if f + D < len(frs): rd(f + D)
        if ofr and f < 3: p_of(R, f + 1)
        for (k2, ii) in inter.get(f, []): wo_dma(R, k2, wide, [ii])
        R.wait_lg(f"f{kap}_{mt}")
        if mt == 0: R.wait_lg(f"of{ks}")
        for nt in range(3):
            d = Outa(mt, nt)
            c = "0" if kap == 0 else vr(d)
            a(f"v_mfma_f32_16x16x32_bf16 {vr(d)}, {vr(ORING + 4*(f % NB))}, {vr(Of(ks,nt))}, {c}")
        if cfg.tst and mt == NT - 1 and kap >= 10: lstamp(a, 26 + kap - 10)

def p_oproj_phase(R, bar, wide):
    a = R.a
    NT = 8 if wide else 4
    nbar = 0
    def b1():
        nonlocal nbar
        if cfg.pv_all and 1 <= nbar <= 6: R.wait_vm(f"V{nbar+1}")
        bar(); nbar += 1
        if cfg.pv_all and 1 <= nbar <= 6: p_issue_KV(R, "V", nbar + 1)
    b1()
    if cfg.wo_first_after >= 6: wo_dma(R, 0, wide); wo_dma(R, 1, wide)
    b1()
    if cfg.pvprio: a(f"s_setprio {cfg.pvprio}")
    for j in range(3):
        a.comment(f"---- O projection chunk {j}")
        if cfg.altprio: a("s_setprio 1")
        p_ocompute(R, [4*j, 4*j+1], wide, ofr=True)
        wo_dma(R, 4*j+2, wide); wo_dma(R, 4*j+3, wide)
        if cfg.altprio: a("s_setprio 0")
        b1()
        if j < 2:
            p_ocompute(R, [4*j+2, 4*j+3], wide)
            wo_dma(R, 4*j+4, wide); wo_dma(R, 4*j+5, wide)
        else:
            if cfg.p7prio: a(f"s_setprio {cfg.p7prio}")
            if cfg.d14first:
                wo_dma(R, 14, wide); inter = {}
            else:
                inter = {f: [(14, f)] for f in range(NT)}
            inter.update({NT + f: [(12, f)] for f in range(NT)})
            p_ocompute(R, [10, 11], wide, inter=inter)
            wo_dma(R, 13, wide)
        b1()
    p_ocompute(R, [12, 13], wide, inter={f: [(15, f)] for f in range(NT)}, ofr=True)
    p_ocompute_last(R, wide)
    return nbar

def p_ocompute_last(R, wide):
    a = R.a
    NT = 8 if wide else 4
    D = 4; NB = 5
    rowb = 256 if wide else 128
    frs = [(kap, 2*ip + t) for ip in range(NT//2) for kap in (14, 15) for t in range(2)]
    def rd(f):
        kap, mt = frs[f]
        if f == 0: R.wait_vm("o14"); R.wait_vm("o15")
        b = ORING + 4*(f % NB)
        area, off = wo_slot(kap, wide)
        addr = (vWoR if area == 'own' else ALT) + mt
        R.lds_guard(2)
        R.lds(f"ds_read_b64_tr_b16 {vr(b,2)}, v{addr} offset:{off}", f"g{f}")
        R.lds(f"ds_read_b64_tr_b16 {vr(b+2,2)}, v{addr} offset:{off + 16*rowb}", f"g{f}")
    a(f"v_mbcnt_lo_u32_b32 v{VT}, -1, 0"); a(f"v_mbcnt_hi_u32_b32 v{VT}, -1, v{VT}"); a(f"v_lshlrev_b32 v{VT}, 4, v{VT}")
    a(f"s_mul_i32 s{sT2}, s2, {PART}"); a(f"s_mul_i32 s{sT3}, s{sIDX}, {12*1024}"); a(f"s_add_u32 s{sT2}, s{sT2}, s{sT3}")
    npub = 0
    def pub_pair(ip):
        nonlocal npub
        for nt in range(3):
            t = PUB[npub]; npub += 1
            d0, d1 = Outa(2*ip, nt), Outa(2*ip+1, nt)
            a(f"v_cvt_pk_bf16_f32 v{t}, v{d0}, v{d0+1}"); a(f"v_cvt_pk_bf16_f32 v{t+1}, v{d0+2}, v{d0+3}")
            a(f"v_cvt_pk_bf16_f32 v{t+2}, v{d1}, v{d1+1}"); a(f"v_cvt_pk_bf16_f32 v{t+3}, v{d1+2}, v{d1+3}")
            a(f"s_add_u32 s{sT1}, s{sT2}, {1024*(ip*3 + nt)}")
            R.vmem(f"buffer_store_dwordx4 {vr(t)}, v{VT}, {srd(SRD_WS)}, s{sT1} offen sc0 sc1", "pub")
    for f in range(D): rd(f)
    for f, (kap, mt) in enumerate(frs):
        ks = kap % 4
        if f + D < len(frs): rd(f + D)
        R.wait_lg(f"g{f}")
        for nt in range(3):
            d = Outa(mt, nt)
            a(f"v_mfma_f32_16x16x32_bf16 {vr(d)}, {vr(ORING + 4*(f % NB))}, {vr(Of(ks,nt))}, {vr(d)}")
        if f % 4 == 1 and f >= 5: pub_pair(f//4 - 1)
    pub_pair(NT//2 - 1)

def p_flag(R):
    a = R.a
    if cfg.tst: lstamp(a, 32)
    R.wait_vm_all()
    if cfg.tst: lstamp(a, 33)
    a(f"s_mul_i32 s{sT0}, s{sGRP}, {FSTR}"); a(f"s_add_u32 s{sT0}, s{sT0}, {FLG}")
    a(f"s_lshl_b32 s{sT1}, s{sG}, 2"); a(f"s_add_u32 s{sT1}, s{sT1}, s{sIDX}"); a(f"s_lshl_b32 s{sT1}, s{sT1}, 2")
    a(f"v_mov_b32 v2, s{sT1}"); a("v_mov_b32 v1, 1")
    a(f"s_mov_b64 s[{sEX}:{sEX+1}], exec")
    a("s_mov_b64 exec, 1")
    a(f"buffer_store_dword v1, v2, {srd(SRD_WS)}, s{sT0} offen sc0 sc1")
    a(f"s_mov_b64 exec, s[{sEX}:{sEX+1}]")

def emit_reduce(a):
    a.label("L_tail")
    if cfg.stamps: stamp(a, 50)
    a(f"s_min_u32 s{sT0}, s{sG}, 2"); a(f"s_mul_i32 s{sT1}, s{sG}, 5"); a(f"s_add_u32 s{sT0}, s{sT0}, s{sT1}")
    a(f"s_cmp_lt_u32 s{sG}, 2"); a(f"s_cselect_b32 s{sT1}, 6, 5")
    a(f"s_mov_b32 s80, s{sT1}")
    a(f"s_add_u32 s{sT0}, s{sT0}, s{sWAVE}")
    a("v_mbcnt_lo_u32_b32 v3, -1, 0"); a("v_mbcnt_hi_u32_b32 v3, -1, v3")
    a("v_lshlrev_b32 v6, 4, v3"); a("v_lshlrev_b32 v0, 2, v3")
    a(f"s_mul_i32 s{sT2}, s{sT0}, 171"); a(f"s_lshr_b32 s{sT2}, s{sT2}, 9")
    a(f"s_mul_i32 s{sT3}, s{sT2}, 3"); a(f"s_sub_u32 s{sT3}, s{sT0}, s{sT3}")
    a(f"s_lshl_b32 s{sT3}, s{sT3}, 4"); a(f"s_mul_i32 s{sT1}, s{sB}, 48"); a(f"s_add_u32 s{sT3}, s{sT3}, s{sT1}")
    a(f"s_mul_i32 s{sT3}, s{sT3}, 1792"); a(f"s_lshl_b32 s{sT2}, s{sT2}, 6"); a(f"s_add_u32 s{sT3}, s{sT3}, s{sT2}")
    a(f"s_mul_i32 s{sT1}, s{sBR}, 896"); a(f"s_add_u32 s78, s{sT3}, s{sT1}") if not cfg.lstamps else None
    if cfg.lstamps: a(f"s_mul_i32 s{sT1}, s{sBR}, 896"); a(f"s_add_u32 s100, s{sT3}, s{sT1}")
    sOUT = 100 if cfg.lstamps else 78
    a("v_and_b32 v7, 15, v3"); a(f"s_mov_b32 s{sT1}, 1792"); a(f"v_mul_lo_u32 v7, s{sT1}, v7")
    a("v_bfe_u32 v8, v3, 4, 1"); a("v_lshl_add_u32 v7, v8, 5, v7")
    a("v_lshrrev_b32 v8, 5, v3"); a("v_lshl_add_u32 v7, v8, 4, v7")
    a(f"s_lshl_b32 s{sT1}, s{sB}, 4"); a(f"s_lshl_b32 s{sT2}, s{sBR}, 2"); a(f"s_add_u32 s{sT1}, s{sT1}, s{sT2}")
    a(f"s_mul_i32 s{sT1}, s{sT1}, {PART}"); a(f"s_lshl_b32 s{sT2}, s{sT0}, 10"); a(f"s_add_u32 s{sT3}, s{sT1}, s{sT2}")
    if cfg.latepoll: a("s_barrier")
    a(f"s_cmp_lg_u32 s{sWAVE}, 0"); a("s_cbranch_scc1 L_nopoll")
    a(f"s_mul_i32 s{sT0}, s{sGRP}, {FSTR}"); a(f"s_add_u32 s{sT0}, s{sT0}, {FLG}")
    a(f"s_mov_b64 s[{sEX}:{sEX+1}], exec")
    a("s_mov_b32 exec_hi, 0")
    a(f"s_mov_b32 s{sT2}, 0")
    a.label("L_poll")
    a(f"buffer_load_dword v4, v0, {srd(SRD_WS)}, s{sT0} offen sc0 sc1")
    a("s_waitcnt vmcnt(0)")
    a("v_cmp_eq_u32 vcc, 1, v4")
    a("s_cmp_eq_u32 vcc_lo, -1")
    a("s_cbranch_scc1 L_poll_done")
    a(f"s_add_u32 s{sT2}, s{sT2}, 1")
    a(f"s_cmp_ge_u32 s{sT2}, 400000")
    a("s_cbranch_scc1 L_poll_done")
    if cfg.sleep: a(f"s_sleep {cfg.sleep}")
    a("s_branch L_poll")
    a.label("L_poll_done")
    a(f"s_mov_b64 exec, s[{sEX}:{sEX+1}]")
    a.label("L_nopoll")
    a("s_barrier")
    a(f"s_cmp_ge_u32 s{sWAVE}, s80")
    a("s_cbranch_scc1 " + ("L_nogather" if cfg.stamps else ("L_mini" if cfg.mini else "L_end")))
    if cfg.stamps: stamp(a, 52)
    for k in range(8):
        gb, gp = k >> 2, k & 3
        a(f"s_add_u32 s{sT2}, s{sT3}, {(gb*8 + gp)*PART}")
        a(f"buffer_load_dwordx4 {vr(64+4*k)}, v6, {srd(SRD_WS)}, s{sT2} offen sc0 sc1")
    acc = 16
    for k in range(8):
        a(f"s_waitcnt vmcnt({7-k})")
        for r in range(4):
            src = 64 + 4*k + r
            if k == 0:
                a(f"v_lshlrev_b32 v{acc+2*r}, 16, v{src}"); a(f"v_and_b32 v{acc+2*r+1}, 0xffff0000, v{src}")
            else:
                t = 8 + 2*(r & 1) + 2
                a(f"v_lshlrev_b32 v{t}, 16, v{src}"); a(f"v_and_b32 v{t+1}, 0xffff0000, v{src}")
                a(f"v_pk_add_f32 {vr(acc+2*r,2)}, {vr(acc+2*r,2)}, {vr(t,2)}")
    for r in range(4):
        a(f"v_cvt_pk_bf16_f32 v{12+r}, v{acc+2*r}, v{acc+2*r+1}")
    a("v_permlane16_swap_b32 v12, v14")
    a("v_permlane16_swap_b32 v13, v15")
    a(f"buffer_store_dwordx4 v[12:15], v7, {srd(SRD_OUT)}, s{sOUT} offen")
    if cfg.stamps:
        a("s_waitcnt vmcnt(0)")
        a.label("L_nogather")
        stamp(a, 53)
        a("s_memtime s[74:75]"); a("s_waitcnt lgkmcnt(0)"); a("v_writelane_b32 v61, s74, 61")
        stamp_store(a)
    if cfg.mini:
        a.label("L_mini")
        a("s_memrealtime s[72:73]"); a("s_waitcnt vmcnt(0) lgkmcnt(0)")
        a("s_memrealtime s[72:73]"); a("s_waitcnt lgkmcnt(0)")
        a("v_mov_b32 v61, 0"); a("v_writelane_b32 v61, s90, 62"); a("v_writelane_b32 v61, s72, 53")
        stamp_store(a)
    a.label("L_end")
    a("s_endpgm")

def build():
    a = Asm()
    if cfg.mini:
        a("s_memrealtime s[90:91]")
    if cfg.stamps:
        a("s_memrealtime s[72:73]"); a("s_memtime s[74:75]"); a("s_waitcnt lgkmcnt(0)")
        a("v_writelane_b32 v61, s72, 62"); a("v_writelane_b32 v61, s74, 60")
    emit_prologue(a)
    cnt = {"n": 0}
    def bar():
        a("s_barrier")
        if cfg.stamps: stamp(a, cnt["n"])
        cnt["n"] += 1
    A = Role(a)
    if cfg.prioA: a(f"s_setprio {cfg.prioA}")
    a_setup(A)
    if cfg.pf_first: a_pf(A, "wq")
    bar()
    if not cfg.pf_first: a_pf(A, "wq")
    a_setup2(A)
    bar()
    a0_flag_zero(A)
    for kap in range(4): wq_dma(A, kap, vWqA)
    a_issue_KV(A, "K", 0)
    a_setup3(A)
    a_pair_init(A)
    A.wait_vm("w3")
    a0_flag_mark(A)
    bar()
    bar()
    a_issue_KV(A, "K", 1)
    A.wait_vm("K0")
    bar()
    a_S(A, 0)
    A.wait_vm("K1")
    bar()
    a_S(A, 1, dma=("K", 2)); A.wait_vm("K2"); bar()
    a_flag_load(A)
    a_S(A, 2, dma=("K", 3)); A.wait_vm("K3"); a_flag_check(A); bar()
    a_S(A, 3, dma=("K", 4)); A.wait_vm("K4"); bar()
    a_issue_KV(A, "K", 5)
    bar()
    a_S(A, 4)
    A.wait_vm("K5")
    bar()
    a_S(A, 5)
    bar()
    a_S(A, 6)
    if cfg.split_sm: a_softmax1(A)
    bar()
    a_S(A, 7)
    if not cfg.split_sm: a_softmax1(A)
    a_softmax2(A)
    bar()
    for n in range(8):
        dma = ("V", n+1) if (1 <= n <= 6 and not cfg.pv_all) else None
        if cfg.prio7 and n == cfg.prio7from: a(f"s_setprio {cfg.prio7}")
        if cfg.a_odd_prio and n % 2 == 1: a(f"s_setprio {cfg.a_odd_prio}")
        a_PV(A, n, dma)
        if cfg.a_odd_prio and n % 2 == 1 and n < cfg.a_keep_from: a("s_setprio 0")
        if n == 0:
            a_alpha(A); a_pair_addr(A)
        if n % 2 == 0:
            a_rescale(A)
        else:
            a_pair_sync(A, n >> 1)
            a_xfinal(A)
        if 1 <= n < 7 and not cfg.pv_all: A.wait_vm(f"V{n+1}")
        A.wait_lg_all()
        bar()
    nA = cnt["n"]
    A.wait_vm_all()
    a("s_branch L_tail")
    a.label("L_P")
    cnt["n"] = 0
    P = Role(a)
    stamp_move(a, 39)
    if cfg.stamps: stamp(a, 55)
    if cfg.prioP: a(f"s_setprio {cfg.prioP}")
    P.vm += ["x"]*12
    if cfg.stamps: stamp(a, 56)
    bar()
    p_setup2(P)
    P.wait_vm("x"); bar()
    p_xfrags(P)
    if cfg.j0s5:
        a(f"s_lshl_b32 s{sWq5}, s{sIDX}, 12"); a(f"s_add_u32 s{sWq5}, s{sWq5}, {QB}")
        a(f"s_sub_u32 s{sT0}, s{sWq5}, s{sWp}")
        for mt in range(4): a(f"v_add_u32 v{vWqR5+mt}, s{sT0}, v{vWqR+mt}")
    bar()
    if cfg.j0s5: wq_dma(P, 4, vWqD)
    p_qcompute(P, list(range(14)), True, hooks={cfg.k1_after: bar})
    bar()
    if cfg.pkprio: a(f"s_setprio {cfg.pkprio}")
    for kap in (14, 15, 16, 17): wq_dma(P, kap, vWqD)
    bar()
    for kaps, nxt in (([14,15], [18,19]), ([16,17,18,19], [20,21,22,23]), ([20,21,22,23], [24,25,26,27]), ([24,25,26,27], [])):
        p_qcompute(P, kaps, False)
        for kap in nxt: wq_dma(P, kap, vWqD)
        bar()
    if cfg.pkprio: a("s_setprio 0")
    a(f"s_cmp_eq_u32 s{sIDX}, 3")
    a("s_cbranch_scc1 L_P3")
    base = cnt["n"]
    for wide in (True, False):
        if not wide:
            a.label("L_P3"); cnt["n"] = base
        Pw = Role(a)
        STREG[0] = 39
        stamp_move(a, 47)
        p_kv_setup(Pw, first=True)
        p_issue_KV(Pw, "K", 6)
        p_vsetup(Pw, wide)
        bar()
        p_issue_KV(Pw, "K", 7); Pw.wait_vm("K6"); bar()
        p_issue_KV(Pw, "V", 0); Pw.wait_vm("K7"); bar()
        p_issue_KV(Pw, "V", 1); p_pf_wo(Pw); p_tlb_warm(Pw); Pw.wait_vm("V0"); bar()
        Pw.wait_vm("V1")
        nb = p_oproj_phase(Pw, bar, wide)
        assert nb == 8, nb
        if cfg.stamps: stamp(a, 59)
        p_flag(Pw)
        if cfg.stamps: stamp(a, 58)
        assert cnt["n"] == nA, (cnt["n"], nA)
        stamp_move(a, 61)
        if wide: a("s_branch L_tail")
    emit_reduce(a)
    a.finalize()
    return a

HEADER = open("cdna_kernels/" + NAME + ".s.ref").read().split("; Override launch")[0]
def full_text(a):
    s = HEADER
    s += f"; @launch grid=(256,1,1) block=(512,1,1) lds={LDS_BYTES}\n"
    s += f'.amdgcn_target "amdgcn-amd-amdhsa--gfx950"\n.text\n.globl {NAME}_kernel\n.p2align 8\n.type {NAME}_kernel,@function\n{NAME}_kernel:\n'
    body = a.text()
    if cfg.icpf:
        body = body.replace("  s_endpgm\n", "  s_endpgm\nL_code_end:\n") if body.count("s_endpgm") == 1 else body + "L_code_end:\n"
        body = body.replace("CODE_BYTES", f"L_code_end-{NAME}_kernel")
    s += body
    s += f""".section .rodata,"a"
.p2align 6
.amdhsa_kernel {NAME}_kernel
  .amdhsa_next_free_vgpr 256
  .amdhsa_next_free_sgpr 102
  .amdhsa_accum_offset 256
  .amdhsa_group_segment_fixed_size 0
  .amdhsa_kernarg_size 104
  .amdhsa_user_sgpr_count 2
  .amdhsa_user_sgpr_kernarg_segment_ptr 1
  .amdhsa_system_sgpr_workgroup_id_x 1
.end_amdhsa_kernel
"""
    return s

if __name__ == "__main__":
    out = sys.argv[1] if len(sys.argv) > 1 else "cdna_kernels/" + NAME + ".s"
    for kv in sys.argv[2:]:
        k, v = kv.split("=", 1)
        cur = getattr(cfg, k)
        if isinstance(cur, bool): v = v.lower() in ("1", "true")
        elif isinstance(cur, int): v = int(v)
        setattr(cfg, k, v)
    a = build()
    open(out, "w").write(full_text(a))
    print("wrote", out, "instrs:", sum(1 for i in a.ins if i.kind not in ('none','label')), "nops inserted:", a.nops_inserted)
```
